```python
import torch

def _softmax(x, axis=-1):
    return torch.softmax(x, dim=axis)
def _gelu(x):
    return torch.nn.functional.gelu(x, approximate="tanh")
def _silu(x):
    return torch.nn.functional.silu(x)
def _sigmoid(x):
    return torch.sigmoid(x)
def _layernorm(x, axis=-1, eps=1e-5):
    m = x.mean(dim=axis, keepdim=True)
    v = x.var(dim=axis, keepdim=True, unbiased=False)
    return (x - m) / torch.sqrt(v + eps)
def _scatter_add(tgt, idx, src, axis=0):
    return tgt.clone().index_add_(axis, idx, src)
def _segment_sum(src, seg, n):
    out = torch.zeros((n,) + src.shape[1:], dtype=src.dtype)
    return out.index_add_(0, seg, src)
def _pad(x, pw):
    flat = tuple(v for pair in reversed(pw) for v in pair)
    return torch.nn.functional.pad(x, flat)

kernel_name = 'sequential_preLN__grouped_kv_mqa__dense_activation_relu__prompt'

def setup_inputs():

    _w = (lambda a: (lambda t: t.to(torch.bfloat16) if t.is_floating_point() else t)(torch.as_tensor(a)))
    def _A_setup():
        B, S, D, H = 1, 2048, 576, 32
        Dh = D // H
        return {
            "x": _w((lambda *s: torch.randn(*s, dtype=torch.bfloat16) * 0.05)(B, S, D)),
            "wq": _w((lambda *s: torch.randn(*s, dtype=torch.bfloat16) * 0.05)(D, H * Dh)),
            "wk": _w((lambda *s: torch.randn(*s, dtype=torch.bfloat16) * 0.05)(D, Dh)),
            "wv": _w((lambda *s: torch.randn(*s, dtype=torch.bfloat16) * 0.05)(D, Dh)),
            "wo": _w((lambda *s: torch.randn(*s, dtype=torch.bfloat16) * 0.05)(H * Dh, D)),
        }
    _A_in = _A_setup()

    def _B_setup():
        B, S, D, Dff = 1, 2048, 576, 4608
        return {
            "x": _w((lambda *s: torch.randn(*s, dtype=torch.bfloat16) * 0.05)(B, S, D)),
            "w1": _w((lambda *s: torch.randn(*s, dtype=torch.bfloat16) * 0.05)(D, Dff)),
            "w2": _w((lambda *s: torch.randn(*s, dtype=torch.bfloat16) * 0.05)(Dff, D)),
        }
    _B_in = _B_setup()

    return {
        "A_x": _A_in["x"],
        "A_wq": _A_in["wq"],
        "A_wk": _A_in["wk"],
        "A_wv": _A_in["wv"],
        "A_wo": _A_in["wo"],
        "B_x": _B_in["x"],
        "B_w1": _B_in["w1"],
        "B_w2": _B_in["w2"],
    }

def reference(A_x, A_wq, A_wk, A_wv, A_wo, B_x, B_w1, B_w2):
    def _A_ref(x, wq, wk, wv, wo):
        B, S, D = x.shape
        H = 32
        Dh = D // H
        q = (lambda x, *d: x.permute(*d))((x @ wq).reshape(B, S, H, Dh), 0, 2, 1, 3)
        k = x @ wk
        v = x @ wv
        scores = torch.einsum("bhqd,bkd->bhqk", q, k) * (Dh ** -0.5)
        p = _softmax(scores, axis=-1)
        o = torch.einsum("bhqk,bkd->bhqd", p, v)
        return (lambda x, *d: x.permute(*d))(o, 0, 2, 1, 3).reshape(B, S, H * Dh) @ wo

    def _B_ref(x, w1, w2):
        h = torch.einsum("bsd,df->bsf", x, w1)
        zero = torch.zeros_like(h)
        h = torch.maximum(h, zero)
        return torch.einsum("bsf,fd->bsd", h, w2)

    x = A_x
    h = x + _A_ref(_layernorm(x, axis=-1), A_wq, A_wk, A_wv, A_wo)
    h2 = h + _B_ref(_layernorm(h, axis=-1), B_w1, B_w2)
    return h2
```

```python
class Asm:
    def __init__(self):
        self.lines = []
        self.uid = 0
    def __call__(self, s=""):
        for ln in s.split("\n"):
            ln = ln.strip()
            if not ln: continue
            if ln.endswith(":") or ln.startswith("."):
                self.lines.append(ln)
            else:
                self.lines.append("    " + ln)
    def label(self, base):
        self.uid += 1
        return f"L_{base}_{self.uid}"
    def text(self):
        return "\n".join(self.lines) + "\n"

def vr(b, n=1):
    return f"v{b}" if n == 1 else f"v[{b}:{b+n-1}]"
def ar(b, n=1):
    return f"a{b}" if n == 1 else f"a[{b}:{b+n-1}]"
def sr(b, n=1):
    return f"s{b}" if n == 1 else f"s[{b}:{b+n-1}]"
def R(b, n=1):
    if b >= 256:
        return ar(b - 256, n)
    assert b + n <= 256, (b, n)
    return vr(b, n)

def kernel_begin(a, name):
    a(f".globl {name}\n.p2align 8\n.type {name},@function\n{name}:")

def kernel_desc(name, vgpr, sgpr=102, nargs=88):
    if vgpr > 256:
        acc = 256
    else:
        acc = (vgpr + 3) // 4 * 4
    return f""".p2align 6
.amdhsa_kernel {name}
  .amdhsa_next_free_vgpr {vgpr}
  .amdhsa_next_free_sgpr {sgpr}
  .amdhsa_accum_offset {acc}
  .amdhsa_group_segment_fixed_size 0
  .amdhsa_kernarg_size {nargs}
  .amdhsa_user_sgpr_count 2
  .amdhsa_user_sgpr_kernarg_segment_ptr 1
  .amdhsa_system_sgpr_workgroup_id_x 1
.end_amdhsa_kernel
"""

def srd(a, d, base, off, size):
    if off == 0:
        a(f"s_mov_b32 s{d}, s{base}\ns_mov_b32 s{d+1}, s{base+1}")
    else:
        a(f"s_add_u32 s{d}, s{base}, {off}\ns_addc_u32 s{d+1}, s{base+1}, 0")
    a(f"s_mov_b32 s{d+2}, {size}\ns_mov_b32 s{d+3}, 0x00020000")

def interleave(main, fill, start=0, every=1):
    out = []
    fi = 0
    for i, m in enumerate(main):
        out.append(m)
        if i >= start and (i - start) % every == 0 and fi < len(fill):
            out.append(fill[fi]); fi += 1
    out.extend(fill[fi:])
    return out
```

```python
from asmlib import *

def gemm_core(a, *, NW, MT, NT, KS, D, RING, acc0, xr0, XD, wr0, v_xoff, v_lane16, v_ldsaddr,
              srdX, sX0, srdW, sW, sM0, xstep=1024, stamp=None, D0=None, pre_ops=0, mid=None, ramp=2):
    if D0 is None: D0 = D
    npieces = NT * KS
    nrounds = (npieces + NW - 1) // NW
    ringp = RING * NT
    wrap = ringp < npieces
    if wrap:
        assert ringp % NW == 0 and RING >= D + 2 + (NW - 1) // NT
    assert XD >= min(D + 1, KS)
    steps = [[] for _ in range(KS)]
    for t in range(nrounds):
        steps[(NW * t) // NT].append(("W", t))
    for ks in range(KS):
        for mt in range(MT):
            steps[ks].append(("X", ks, mt))
    pos = {}
    issued = [0]
    xadv = [0] * MT
    def emit_op(op):
        L = []
        if op[0] == "W":
            t = op[1]
            L.append(f"s_mov_b32 m0, s{sM0}")
            nxt = (NW * (t + 1))
            if wrap and nxt % ringp == 0:
                L.append(f"s_sub_u32 s{sM0}, s{sM0}, {(ringp - NW) * 1024}")
            else:
                L.append(f"s_add_u32 s{sM0}, s{sM0}, {NW * 1024}")
            L.append(f"buffer_load_dwordx4 v{v_lane16}, s[{srdW}:{srdW+3}], s{sW} offen lds")
            L.append(f"s_add_u32 s{sW}, s{sW}, {NW * 1024}")
        else:
            _, ks, mt = op
            off = ks * xstep - xadv[mt]
            if off >= 4096:
                L.append(f"s_add_u32 s{sX0+mt}, s{sX0+mt}, {off}")
                xadv[mt] += off; off = 0
            r = xr0 + ((ks % XD) * MT + mt) * 4
            L.append(f"buffer_load_dwordx4 {R(r,4)}, v{v_xoff}, s[{srdX}:{srdX+3}], s{sX0+mt} offen offset:{off}")
        pos[op] = issued[0]
        issued[0] += 1
        return "\n".join(L)
    def wait_for(wstep, xstp):
        last = -1
        for s in range(KS):
            for op in steps[s]:
                if (op[0] == "W" and s <= wstep) or (op[0] == "X" and s <= xstp):
                    assert op in pos, ("not issued yet", op, wstep, xstp)
                    last = max(last, pos[op])
        n = issued[0] - 1 - last
        assert n <= 63 or True
        return f"s_waitcnt vmcnt({min(63, n)})"
    def wread(ks, j):
        piece = (ks * NT + j) % ringp if wrap else ks * NT + j
        off = piece * 1024
        return f"ds_read_b128 {R(wr0 + 4*j, 4)}, v{v_ldsaddr + off // 65536} offset:{off % 65536}"
    nxt_step = 0
    for ks in range(min(D0, KS)):
        for op in steps[ks]:
            a(emit_op(op))
        nxt_step += 1
    if mid:
        issued[0] += mid()
    if stamp: stamp(0)
    a(wait_for(0, -1) + "\ns_barrier")
    if stamp: stamp(1)
    for j in range(NT):
        a(wread(0, j))
    for p in range(KS):
        a(wait_for(min(p + 1, KS - 1), p))
        if p + 1 < KS:
            a("s_barrier")
        if stamp: stamp(p + 2)
        fill = []
        n = 0
        while nxt_step < KS and nxt_step <= p + D and n < ramp:
            fill += steps[nxt_step]; nxt_step += 1; n += 1
        nf = len(fill)
        fi = 0
        for j in range(NT):
            younger = (NT - 1 - j) + (j if p + 1 < KS else 0)
            a(f"s_waitcnt lgkmcnt({min(15, younger)})")
            for mt in range(MT):
                acc = acc0 + (j * MT + mt) * 4
                x = xr0 + ((p % XD) * MT + mt) * 4
                c = "0" if p == 0 else R(acc, 4)
                a(f"v_mfma_f32_16x16x32_bf16 {R(acc,4)}, {R(wr0+4*j,4)}, {R(x,4)}, {c}")
                if mt == MT - 1 and p + 1 < KS:
                    a(wread(p + 1, j))
                slot = j * MT + mt
                while fi < nf and fi * NT * MT <= slot * nf:
                    a(emit_op(fill[fi])); fi += 1
        while fi < nf:
            a(emit_op(fill[fi])); fi += 1
    return issued[0]
```

```python
import sys, math
from asmlib import *
from gemm import gemm_core

T, DM, NH, DH, F = 2048, 576, 32, 18, 4608
NAME = "sequential_preLN__grouped_kv_mqa__dense_activation_relu__prompt"
A_X, A_WQ, A_WK, A_WV, A_WO, B_X, B_W1, B_W2, K_OUT, K_DBG, K_WS = [8 * i for i in range(11)]
def _al(x, a=4096): return (x + a - 1) // a * a
PAIR = 4736
WS = {}
_o = 0
for nm, sz in [("Q", T*DM*2), ("KV", 32*PAIR), ("MEAN1", T*4), ("O", T*DM*2), ("HC", T*DM*2), ("MU2", T*4),
               ("SS", T*8*4), ("WOF", 6*18*7*1024), ("W1F", DM*F*2), ("W2F", DM*F*2), ("H", T*F*2),
               ("PART", 4*T*DM*4), ("STAMP", 1 << 20)]:
    WS[nm] = (_o, sz); _o += _al(sz)
WS_END = _o
QSCALE = math.log2(math.e) / math.sqrt(DH)
def f32bits(x):
    import struct
    return struct.unpack("<I", struct.pack("<f", x))[0]
ONES = 0x3f803f80

def ws_srd(a, d, nm, base):
    srd(a, d, base, WS[nm][0], WS[nm][1])

def wave_lane(a, s_wave=3):
    a(f"v_lshrrev_b32 v1, 6, v0\nv_and_b32 v0, 63, v0\ns_nop 0\nv_readfirstlane_b32 s{s_wave}, v1")

def sum_g(a, v, t):
    a(f"v_mov_b32 v{t}, v{v}\ns_nop 1\nv_permlane32_swap_b32 v{v}, v{t}\ns_nop 1\nv_add_f32 v{v}, v{v}, v{t}")
    a(f"v_mov_b32 v{t}, v{v}\ns_nop 1\nv_permlane16_swap_b32 v{v}, v{t}\ns_nop 1\nv_add_f32 v{v}, v{v}, v{t}")

class Stamps:
    def __init__(self, a, on, kidx, vreg, vtmp):
        self.a, self.on, self.k, self.v, self.t = a, on, kidx, vreg, vtmp
    def start(self):
        if self.on:
            self.a(f"s_memrealtime s[96:97]\ns_memtime s[98:99]\nv_mov_b32 v{self.v}, 0\ns_waitcnt lgkmcnt(0)\nv_writelane_b32 v{self.v}, s96, 62")
    def __call__(self, i):
        if self.on:
            self.a(f"s_memtime s[96:97]\ns_waitcnt lgkmcnt(0)\ns_sub_u32 s96, s96, s98\nv_writelane_b32 v{self.v}, s96, {i}")
    def finish(self, s_ws, s_wave, nw):
        if self.on:
            a = self.a
            a("s_waitcnt vmcnt(0)")
            self(61)
            a(f"s_memrealtime s[96:97]\ns_waitcnt lgkmcnt(0)\nv_writelane_b32 v{self.v}, s96, 63")
            ws_srd(a, 92, "STAMP", s_ws)
            a(f"s_lshl_b32 s96, s2, 3\ns_add_u32 s96, s96, s{s_wave}\ns_lshl_b32 s96, s96, 8")
            a(f"v_mbcnt_lo_u32_b32 v{self.t}, -1, 0\nv_mbcnt_hi_u32_b32 v{self.t}, -1, v{self.t}\nv_lshlrev_b32 v{self.t}, 2, v{self.t}")
            a(f"buffer_store_dword v{self.v}, v{self.t}, s[92:95], s96 offen")

K1_GRID = 32 * 7 + 18
K1_LDS = 18 * 6144
def k1(a, stamp_k=-1):
    st = Stamps(a, stamp_k == 1, 1, 250, 251)
    kernel_begin(a, "k1_kernel")
    a(f"s_cmp_ge_u32 s2, {K1_GRID}\ns_cbranch_scc1 K1_end")
    a(f"s_load_dwordx4 s[4:7], s[0:1], {A_X}\ns_load_dwordx4 s[8:11], s[0:1], {A_WK}\ns_load_dwordx2 s[12:13], s[0:1], {A_WO}\ns_load_dwordx2 s[14:15], s[0:1], {K_WS}")
    st.start()
    wave_lane(a)
    a("v_and_b32 v1, 15, v0\nv_lshrrev_b32 v2, 4, v0")
    a("s_waitcnt lgkmcnt(0)")
    a("s_cmp_ge_u32 s2, 224\ns_cbranch_scc1 K1_wbar")
    srd(a, 16, 4, 0, T*DM*2)
    srd(a, 20, 6, 0, DM*DM*2)
    srd(a, 24, 8, 0, DM*DH*2)
    srd(a, 28, 10, 0, DM*DH*2)
    ws_srd(a, 32, "Q", 14)
    ws_srd(a, 36, "KV", 14)
    ws_srd(a, 40, "MEAN1", 14)
    a("s_and_b32 s44, s2, 31\ns_lshr_b32 s45, s2, 5")
    a("s_lshl_b32 s46, s44, 6\ns_lshl_b32 s47, s3, 4\ns_add_u32 s46, s46, s47")
    a(f"s_mul_i32 s47, s46, {DM*2}")
    a(f"v_mul_u32_u24 v3, {DM*2}, v1\nv_lshl_add_u32 v3, v2, 4, v3")
    X0 = 16
    for ks in range(18):
        a(f"buffer_load_dwordx4 v[{X0+4*ks}:{X0+4*ks+3}], v3, s[16:19], s47 offen offset:{64*ks}")
    a("s_cmp_eq_u32 s45, 6\ns_cbranch_scc1 K1_kvload")
    a("v_bfe_u32 v4, v0, 1, 3\ns_and_b32 s48, s3, 1\ns_lshl_b32 s48, s48, 2\nv_xor_b32 v5, s48, v4")
    a(f"v_mul_u32_u24 v5, {DM*2}, v5\nv_lshl_add_u32 v5, v2, 5, v5\nv_and_b32 v6, 1, v0\nv_lshl_add_u32 v5, v6, 4, v5")
    a("v_lshrrev_b32 v7, 5, v0\nv_lshlrev_b32 v8, 2, v7\nv_xor_b32 v8, v8, v4\nv_lshl_add_u32 v8, v7, 3, v8")
    a(f"v_mul_u32_u24 v8, {DM*2}, v8\nv_and_b32 v7, 1, v2\nv_lshl_add_u32 v8, v7, 5, v8\nv_lshl_add_u32 v8, v6, 4, v8\nv_add_u32 v8, 128, v8")
    a(f"s_mul_i32 s48, s45, 192\ns_mul_i32 s49, s3, {8*DM*2}\ns_add_u32 s49, s49, s48")
    a(f"s_mul_i32 s50, s3, {16*DM*2}\ns_add_u32 s50, s50, s48")
    a("s_lshl_b32 s51, s3, 10")
    a("s_lshr_b32 s52, s3, 1\ns_mul_i32 s52, s52, 6144\ns_and_b32 s53, s3, 1\ns_lshl_b32 s53, s53, 10\ns_add_u32 s52, s52, s53\ns_add_u32 s52, s52, 4096")
    for t in range(9):
        for half in range(2):
            a(f"s_mov_b32 m0, s51\ns_add_u32 s51, s51, 6144\nbuffer_load_dwordx4 v5, s[20:23], s49 offen lds\ns_add_u32 s49, s49, {32*DM*2}")
            if half == 0:
                a(f"s_mov_b32 m0, s52\ns_add_u32 s52, s52, 12288\nbuffer_load_dwordx4 v8, s[20:23], s50 offen lds\ns_add_u32 s50, s50, {64*DM*2}")
    a("s_waitcnt vmcnt(27)")
    a("s_branch K1_ln")
    a("K1_kvload:")
    a("s_lshl_b32 s48, s3, 6\nv_add_u32 v4, s48, v0")
    KVT = 100
    for it in range(3):
        a(f"v_add_u32 v5, {256*it}, v4\nv_mul_u32_u24 v{6+it}, 36, v5")
        for m, sd in enumerate((24, 28)):
            b = KVT + (it*2 + m) * 12
            a(f"buffer_load_dwordx4 v[{b}:{b+3}], v{6+it}, s[{sd}:{sd+3}], 0 offen")
            a(f"buffer_load_dwordx4 v[{b+4}:{b+7}], v{6+it}, s[{sd}:{sd+3}], 0 offen offset:16")
            a(f"buffer_load_dword v{b+8}, v{6+it}, s[{sd}:{sd+3}], 0 offen offset:32")
    for it in range(3):
        a(f"v_add_u32 v5, {256*it}, v4")
        a(f"v_lshrrev_b32 v9, 5, v5\nv_mul_u32_u24 v9, 3072, v9\nv_bfe_u32 v10, v5, 3, 2\nv_lshl_add_u32 v9, v10, 8, v9")
        a(f"v_and_b32 v10, 1, v10\nv_lshlrev_b32 v10, 2, v10\nv_and_b32 v11, 7, v5\nv_xor_b32 v10, v10, v11\nv_lshl_add_u32 v{6+it}, v10, 5, v9")
    a("s_waitcnt vmcnt(0)")
    for it in range(3):
        if it == 2:
            a("v_cmp_gt_u32 vcc, 64, v4\ns_and_saveexec_b64 s[54:55], vcc\ns_cbranch_execz K1_kvskip")
        for m in range(2):
            b = KVT + (it*2 + m) * 12
            a(f"ds_write_b128 v{6+it}, v[{b}:{b+3}] offset:{1024*m}\nds_write_b128 v{6+it}, v[{b+4}:{b+7}] offset:{1024*m+16}")
            a(f"ds_write_b32 v{6+it}, v{b+8} offset:{2048+4*m}")
    a("K1_kvskip:\ns_mov_b64 exec, -1")
    a("K1_ln:")
    st(0)
    a(f"s_mov_b32 s56, {ONES}\ns_mov_b32 s57, 0x00003f80\ns_mov_b32 s58, 0x3f800000")
    for i in range(4): a(f"v_mov_b32 v{4+i}, 0")
    for i in range(72):
        a(f"v_dot2_f32_bf16 v{4+i%4}, v{X0+i}, s56, v{4+i%4}")
    a("s_nop 2\nv_add_f32 v4, v4, v5\nv_add_f32 v6, v6, v7\nv_add_f32 v4, v4, v6")
    sum_g(a, 4, 5)
    a(f"v_mul_f32 v4, {f32bits(-1.0/DM)}, v4")
    for i in range(4): a(f"v_mov_b32 v{8+i}, 0")
    for i in range(74):
        t = 12 + 2 * (i % 2)
        if i < 72:
            a(f"v_dot2_f32_bf16 v{t}, v{X0+i}, s57, v4\nv_dot2_f32_bf16 v{t+1}, v{X0+i}, s58, v4")
        else:
            a("s_nop 1")
        if 1 <= i <= 72:
            tp = 12 + 2 * ((i - 1) % 2)
            if i == 1: a("s_nop 1")
            a(f"v_cvt_pk_bf16_f32 v{X0+i-1}, v{tp}, v{tp+1}")
        if i >= 2:
            a(f"v_dot2_f32_bf16 v{8+i%4}, v{X0+i-2}, v{X0+i-2}, v{8+i%4}")
    a("s_nop 2\nv_add_f32 v8, v8, v9\nv_add_f32 v10, v10, v11\nv_add_f32 v8, v8, v10")
    sum_g(a, 8, 9)
    a(f"v_mov_b32 v9, {f32bits(1e-5)}\nv_fmac_f32 v9, {f32bits(1.0/DM)}, v8\nv_rsq_f32 v5, v9")
    st(1)
    a("v_lshrrev_b32 v6, 2, v1\nv_lshlrev_b32 v6, 5, v6\nv_and_b32 v7, 3, v1\nv_lshl_add_u32 v6, v7, 3, v6")
    a("v_and_b32 v7, 1, v2\nv_lshlrev_b32 v7, 7, v7\nv_add_u32 v8, v6, v7\nv_xor_b32 v9, 128, v8")
    ACC = 88
    WF = 120
    a("s_cmp_eq_u32 s45, 6\ns_cbranch_scc1 K1_kvgemm")
    a("v_lshl_add_u32 v10, v2, 10, v8\nv_lshl_add_u32 v11, v2, 10, v9\nv_lshl_add_u32 v12, v2, 9, v8\nv_lshl_add_u32 v13, v2, 9, v9")
    for i in range(4): a(f"v_add_u32 v{180+i}, {9*6144}, v{10+i}")
    def qread(ks, j):
        hi = ks >= 9
        base = (ks - 9 * hi) * 6144
        vb = (180 if hi else 10) + (0 if j < 4 else 2)
        off = base + (j * 256 if j < 4 else 4096 + (j - 4) * 256)
        w = WF + ((ks % 2) * 6 + j) * 4
        return f"ds_read_b64_tr_b16 v[{w}:{w+1}], v{vb} offset:{off}\nds_read_b64_tr_b16 v[{w+2}:{w+3}], v{vb+1} offset:{off}"
    for ks in range(18):
        if ks % 6 == 0:
            a(f"s_waitcnt vmcnt({27 - 9 * (ks // 6 + 1)})\ns_barrier")
            if ks == 0: st(2)
            for j in range(6): a(qread(ks, j))
        nxt = ks + 1 if (ks + 1) % 6 else None
        for j in range(6):
            younger = 2 * (5 - j) + (2 * j if nxt else 0)
            a(f"s_waitcnt lgkmcnt({min(15, younger)})")
            w = WF + ((ks % 2) * 6 + j) * 4
            c = "0" if ks == 0 else f"v[{ACC+4*j}:{ACC+4*j+3}]"
            a(f"v_mfma_f32_16x16x32_bf16 v[{ACC+4*j}:{ACC+4*j+3}], v[{w}:{w+3}], v[{X0+4*ks}:{X0+4*ks+3}], {c}")
            if nxt: a(qread(nxt, j))
    st(3)
    a(f"v_mul_f32 v6, {f32bits(QSCALE)}, v5")
    a(f"v_mul_u32_u24 v3, {DM*2}, v1\nv_lshl_add_u32 v3, v2, 3, v3\ns_mul_i32 s48, s45, 192\ns_add_u32 s48, s48, s47\ns_nop 4")
    for j in range(6):
        b = ACC + 4*j
        for r in range(4): a(f"v_mul_f32 v{b+r}, v{b+r}, v6")
        a(f"v_cvt_pk_bf16_f32 v{b}, v{b}, v{b+1}\nv_cvt_pk_bf16_f32 v{b+1}, v{b+2}, v{b+3}")
        a(f"buffer_store_dwordx2 v[{b}:{b+1}], v3, s[32:35], s48 offen offset:{32*j}")
    a("s_branch K1_fin")
    a("K1_kvgemm:")
    a("v_lshl_add_u32 v10, v2, 8, v8\nv_lshl_add_u32 v11, v2, 8, v9")
    a("s_waitcnt lgkmcnt(0)\ns_barrier")
    for ks in range(18):
        for j in range(3):
            w = WF + ((ks % 2) * 3 + j) * 4
            a(f"ds_read_b64_tr_b16 v[{w}:{w+1}], v10 offset:{ks*3072+j*1024}\nds_read_b64_tr_b16 v[{w+2}:{w+3}], v11 offset:{ks*3072+j*1024}")
        a("s_waitcnt lgkmcnt(0)")
        x = f"v[{X0+4*ks}:{X0+4*ks+3}]"
        def W(j):
            w = WF + ((ks % 2) * 3 + j) * 4
            return f"v[{w}:{w+3}]"
        def C(i): return f"v[{ACC+4*i}:{ACC+4*i+3}]"
        c = (lambda i: "0") if ks == 0 else C
        a(f"v_mfma_f32_16x16x32_bf16 {C(0)}, {W(0)}, {x}, {c(0)}")
        a(f"v_mfma_f32_16x16x32_bf16 {C(1)}, {x}, {W(1)}, {c(1)}")
        a(f"v_mfma_f32_16x16x32_bf16 {C(2)}, {W(2)}, {x}, {c(2)}")
        a(f"v_mfma_f32_16x16x32_bf16 {C(3)}, {x}, {W(2)}, {c(3)}")
    a("v_lshlrev_b32 v6, 4, v2")
    for r in range(4):
        a(f"ds_bpermute_b32 v{12+r}, v6, v5 offset:{4*r}")
    a(f"s_mul_i32 s48, s44, {PAIR}")
    a("v_sub_f32 v7, 0, v4\nv_lshlrev_b32 v8, 2, v1\nv_lshl_add_u32 v8, v2, 20, v8\ns_lshl_b32 s49, s46, 2")
    a("buffer_store_dword v7, v8, s[40:43], s49 offen")
    a("s_waitcnt lgkmcnt(0)")
    b = ACC
    for r in range(4): a(f"v_mul_f32 v{b+r}, v{b+r}, v5")
    a(f"v_cvt_pk_bf16_f32 v{b}, v{b}, v{b+1}\nv_cvt_pk_bf16_f32 v{b+1}, v{b+2}, v{b+3}")
    a("v_lshrrev_b32 v7, 1, v2\nv_lshlrev_b32 v7, 9, v7\nv_lshl_add_u32 v7, v1, 4, v7\nv_and_b32 v8, 1, v2\nv_lshl_add_u32 v7, v8, 3, v7")
    a("s_lshr_b32 s49, s3, 1\ns_lshl_b32 s49, s49, 10\ns_and_b32 s50, s3, 1\ns_lshl_b32 s50, s50, 8\ns_add_u32 s49, s49, s50\ns_add_u32 s49, s49, s48")
    a(f"buffer_store_dwordx2 v[{b}:{b+1}], v7, s[36:39], s49 offen")
    b = ACC + 8
    a(f"v_mul_f32 v{b}, v{b}, v5\nv_mul_f32 v{b+1}, v{b+1}, v5\nv_cvt_pk_bf16_f32 v{b}, v{b}, v{b+1}")
    a("v_lshlrev_b32 v7, 2, v1\nv_lshl_add_u32 v7, v2, 20, v7\ns_lshl_b32 s49, s3, 6\ns_add_u32 s49, s49, s48")
    a(f"buffer_store_dword v{b}, v7, s[36:39], s49 offen offset:2048")
    a("v_and_b32 v8, 1, v2\nv_mul_u32_u24 v8, 19, v8\nv_add_u32 v8, v8, v1\nv_lshlrev_b32 v8, 4, v8\nv_lshrrev_b32 v9, 1, v2\nv_lshl_add_u32 v8, v9, 3, v8")
    a("s_mul_i32 s49, s3, 608\ns_add_u32 s49, s49, s48")
    for i, b in enumerate((ACC + 4, ACC + 12)):
        for r in range(4): a(f"v_mul_f32 v{b+r}, v{b+r}, v{12+r}")
        a(f"v_cvt_pk_bf16_f32 v{b}, v{b}, v{b+1}\nv_cvt_pk_bf16_f32 v{b+1}, v{b+2}, v{b+3}")
        if i == 0:
            a(f"buffer_store_dwordx2 v[{b}:{b+1}], v8, s[36:39], s49 offen offset:2304")
        else:
            a(f"v_cmp_eq_u32 vcc, 4, v1\nv_mov_b32 v9, {ONES}\ns_nop 1\nv_cndmask_b32 v{b}, v{b}, v9, vcc\nv_cndmask_b32 v{b+1}, v{b+1}, v9, vcc")
            a("v_subrev_u32 v9, 2, v1\nv_cmp_gt_u32 vcc, 3, v9\ns_and_saveexec_b64 s[54:55], vcc")
            a(f"buffer_store_dwordx2 v[{b}:{b+1}], v8, s[36:39], s49 offen offset:{2304 + 14*16}")
            a("s_mov_b64 exec, -1")
    a("s_branch K1_fin")
    a("K1_wbar:")
    srd(a, 16, 12, 0, DM*DM*2)
    ws_srd(a, 20, "WOF", 14)
    a("s_sub_u32 s44, s2, 224")
    a(f"s_lshl_b32 s45, s44, 5\ns_lshl_b32 s46, s3, 3\ns_add_u32 s45, s45, s46\ns_mul_i32 s45, s45, {DM*2}")
    a(f"v_lshrrev_b32 v3, 3, v0\nv_mul_u32_u24 v4, {DM*2}, v3\nv_and_b32 v5, 7, v0\nv_lshl_add_u32 v4, v5, 4, v4")
    for i in range(9):
        a(f"buffer_load_dwordx4 v[{16+4*i}:{19+4*i}], v4, s[16:19], s45 offen offset:{128*i}")
    a(f"s_mov_b32 s56, {ONES}\nv_mov_b32 v6, 0\nv_mov_b32 v7, 0\ns_waitcnt vmcnt(0)")
    for i in range(36):
        a(f"v_dot2_f32_bf16 v{6+i%2}, v{16+i}, s56, v{6+i%2}")
    a("s_nop 2\nv_add_f32 v6, v6, v7\ns_nop 1")
    for x in (1, 2, 4):
        a(f"ds_swizzle_b32 v7, v6 offset:{(x << 10) | 0x1f}\ns_waitcnt lgkmcnt(0)\nv_add_f32 v6, v6, v7")
    a(f"v_mul_f32 v6, {f32bits(1.0/DM)}, v6")
    a("v_cvt_pk_bf16_f32 v7, v6, v6\nv_lshlrev_b32 v8, 16, v7\nv_sub_f32 v8, v6, v8\nv_cvt_pk_bf16_f32 v8, v8, v8")
    a("v_lshlrev_b32 v9, 5, v5\nv_lshl_add_u32 v9, v3, 1, v9")
    a(f"s_mul_i32 s46, s44, {7*1024}\ns_lshl_b32 s47, s3, 8\ns_add_u32 s46, s46, s47\ns_add_u32 s46, s46, 6144")
    for nb in range(6):
        a(f"buffer_store_short v7, v9, s[20:23], s46 offen\nbuffer_store_short v8, v9, s[20:23], s46 offen offset:16")
        a(f"s_add_u32 s46, s46, {18*7*1024}")
    a("K1_fin:")
    st.finish(14, 3, 4)
    a("K1_end:\ns_endpgm")
    return kernel_desc("k1_kernel", 256 if stamp_k == 1 else 184)

K2_GRID = 256
K2_LDS = 32 * PAIR
N_UNITS = 162 + 1296 + 1296
def k2(a, stamp_k=-1, force_fallback=False):
    st = Stamps(a, stamp_k == 2, 2, 250, 251)
    kernel_begin(a, "k2_kernel")
    a(f"s_cmp_ge_u32 s2, {K2_GRID}\ns_cbranch_scc1 K2_end")
    a(f"s_load_dwordx2 s[4:5], s[0:1], {A_WO}\ns_load_dwordx4 s[8:11], s[0:1], {B_W1}\ns_load_dwordx2 s[14:15], s[0:1], {K_WS}")
    st.start()
    wave_lane(a)
    a("v_and_b32 v1, 31, v0\nv_lshrrev_b32 v2, 5, v0\nv_lshlrev_b32 v3, 4, v0")
    a("s_waitcnt lgkmcnt(0)")
    ws_srd(a, 16, "KV", 14)
    ws_srd(a, 20, "Q", 14)
    ws_srd(a, 24, "O", 14)
    a("s_lshr_b32 s40, s2, 2\ns_and_b32 s41, s2, 3\ns_lshl_b32 s41, s41, 3\ns_add_u32 s41, s41, s3")
    a(f"s_mul_i32 s42, s40, {32*DM*2}\ns_mul_i32 s43, s41, 36\ns_add_u32 s42, s42, s43")
    a(f"v_mul_u32_u24 v4, {DM*2}, v1\nv_lshl_add_u32 v5, v2, 4, v4")
    Q1, Q2 = 8, 12
    a(f"buffer_load_dwordx4 v[{Q1}:{Q1+3}], v5, s[20:23], s42 offen\nbuffer_load_dword v{Q2}, v4, s[20:23], s42 offen offset:32\nv_mov_b32 v{Q2+1}, 0")
    a("s_lshl_b32 s44, s3, 10")
    NR = 19
    for r in range(NR):
        if r == NR - 1:
            a("s_cmp_ge_u32 s3, 4\ns_cbranch_scc1 K2_dmadone")
        a(f"s_mov_b32 m0, s44\ns_nop 0\nbuffer_load_dwordx4 v3, s[16:19], s44 offen lds\ns_add_u32 s44, s44, 8192")
    a("K2_dmadone:")
    PR = 208
    srd(a, 28, 4, 0, DM*DM*2)
    srd(a, 32, 8, 0, DM*F*2)
    srd(a, 36, 10, 0, DM*F*2)
    ws_srd(a, 60, "WOF", 14)
    tot = WS["W2F"][0] + WS["W2F"][1] - WS["WOF"][0]
    a(f"s_mov_b32 s62, {tot}")
    OW1, OW2 = WS["W1F"][0] - WS["WOF"][0], WS["W2F"][0] - WS["WOF"][0]
    a("v_and_b32 v6, 15, v0\nv_lshrrev_b32 v7, 4, v0")
    a("v_bfrev_b32 v240, 1\nv_bfrev_b32 v241, 1")
    def repack_loads():
        for rnd in range(2):
            L = a.label("rp")
            raw = PR + 16 * rnd
            dst = 240 + rnd
            a(f"s_mul_i32 s45, s2, 11\ns_add_u32 s45, s45, s3\ns_add_u32 s45, s45, {8*rnd}")
            if rnd == 1:
                a(f"s_cmp_ge_u32 s3, 3\ns_cbranch_scc1 {L}_skip")
            a(f"s_cmp_ge_u32 s45, {N_UNITS}\ns_cbranch_scc1 {L}_skip")
            a(f"s_cmp_lt_u32 s45, 162\ns_cbranch_scc1 {L}_wo\ns_cmp_lt_u32 s45, {162+1296}\ns_cbranch_scc1 {L}_w1")
            def dst_lane():
                a(f"v_and_b32 v244, 3, v6\nv_lshlrev_b32 v244, 6, v244\nv_lshl_add_u32 v244, v7, 8, v244")
            a(f"s_sub_u32 s45, s45, {162+1296}\ns_mul_hi_u32 s46, s45, {(2**32 + 8)//9}\ns_mul_i32 s47, s46, 9\ns_sub_u32 s47, s45, s47")
            a(f"s_mul_i32 s48, s46, {32*DM*2}\ns_lshl_b32 s49, s47, 7\ns_add_u32 s48, s48, s49")
            a(f"v_mul_u32_u24 v242, {4*DM*2}, v7\nv_lshl_add_u32 v242, v6, 3, v242")
            for s_ in range(8):
                off = (16 * (s_ >> 2) + (s_ & 3)) * DM * 2
                a(f"s_add_u32 s49, s48, {off}\nbuffer_load_dwordx2 v[{raw+2*s_}:{raw+2*s_+1}], v242, s[36:39], s49 offen")
            a(f"s_lshl_b32 s47, s47, 2\nv_lshrrev_b32 v243, 2, v6\nv_add_u32 v243, s47, v243")
            a(f"v_mul_u32_u24 v245, 57, v243\nv_lshrrev_b32 v245, 9, v245")
            a(f"v_mul_u32_u24 v246, 9, v245\nv_sub_u32 v246, v243, v246")
            a(f"v_mul_u32_u24 v245, {144*9}, v245\nv_add_u32 v245, v245, v246\ns_mul_i32 s46, s46, 9\nv_add_u32 v245, s46, v245")
            dst_lane()
            a(f"v_lshl_add_u32 v{dst}, v245, 10, v244\nv_add_u32 v{dst}, {OW2}, v{dst}")
            a(f"s_branch {L}_skip")
            a(f"{L}_w1:")
            a(f"s_sub_u32 s45, s45, 162\ns_mul_hi_u32 s46, s45, {(2**32 + 71)//72}\ns_mul_i32 s47, s46, 72\ns_sub_u32 s47, s45, s47")
            a(f"s_mul_i32 s48, s46, {32*F*2}\ns_lshl_b32 s49, s47, 7\ns_add_u32 s48, s48, s49")
            a(f"v_mul_u32_u24 v242, {4*F*2}, v7\nv_lshl_add_u32 v242, v6, 3, v242")
            for s_ in range(8):
                off = (16 * (s_ >> 2) + (s_ & 3)) * F * 2
                a(f"s_add_u32 s49, s48, {off}\nbuffer_load_dwordx2 v[{raw+2*s_}:{raw+2*s_+1}], v242, s[32:35], s49 offen")
            a(f"s_lshl_b32 s47, s47, 2\nv_lshrrev_b32 v243, 2, v6\nv_add_u32 v243, s47, v243")
            a(f"v_mul_u32_u24 v245, 7282, v243\nv_lshrrev_b32 v245, 16, v245")
            a(f"v_mul_u32_u24 v246, 9, v245\nv_sub_u32 v246, v243, v246")
            a(f"v_and_b32 v247, 1, v245\nv_sub_u32 v246, v246, v247\nv_cmp_gt_i32 vcc, 0, v246\ns_nop 1\nv_cndmask_b32 v246, v246, 8, vcc")
            a(f"v_mul_u32_u24 v245, {18*9}, v245\nv_add_u32 v245, v245, v246\ns_mul_i32 s46, s46, 9\nv_add_u32 v245, s46, v245")
            dst_lane()
            a(f"v_lshl_add_u32 v{dst}, v245, 10, v244\nv_add_u32 v{dst}, {OW1}, v{dst}")
            a(f"s_branch {L}_skip")
            a(f"{L}_wo:")
            a(f"s_mul_hi_u32 s46, s45, {(2**32 + 8)//9}\ns_mul_i32 s47, s46, 9\ns_sub_u32 s47, s45, s47")
            a(f"s_mul_i32 s48, s46, {32*DM*2}\ns_lshl_b32 s49, s47, 7\ns_add_u32 s48, s48, s49")
            a(f"v_mul_u32_u24 v242, {8*DM*2}, v7\nv_lshl_add_u32 v242, v6, 3, v242")
            for s_ in range(8):
                a(f"s_add_u32 s49, s48, {s_*DM*2}\nbuffer_load_dwordx2 v[{raw+2*s_}:{raw+2*s_+1}], v242, s[28:31], s49 offen")
            a(f"s_lshl_b32 s47, s47, 2\nv_lshrrev_b32 v243, 2, v6\nv_add_u32 v243, s47, v243")
            a(f"v_mul_u32_u24 v245, 43, v243\nv_lshrrev_b32 v245, 8, v245")
            a(f"v_mul_u32_u24 v246, 6, v245\nv_sub_u32 v246, v243, v246")
            a(f"v_mul_u32_u24 v245, {18*7}, v245\nv_add_u32 v245, v245, v246\ns_mul_i32 s46, s46, 7\nv_add_u32 v245, s46, v245")
            dst_lane()
            a(f"v_lshl_add_u32 v{dst}, v245, 10, v244")
            a(f"{L}_skip:")
    VKA, VK2, VVA = 14, 15, 16
    a(f"v_and_b32 v17, 3, v1\nv_mov_b32 v18, 4\nv_subrev_u32 v19, 20, v1\nv_cmp_gt_u32 vcc, 8, v19\ns_nop 1\nv_cndmask_b32 v17, v18, v17, vcc")
    a(f"v_cmp_gt_u32 vcc, 19, v1\ns_nop 1\nv_cndmask_b32 v17, v17, v1, vcc\nv_mov_b32 v18, 18\nv_cmp_eq_u32 vcc, 22, v1\ns_nop 1\nv_cndmask_b32 v17, v17, v18, vcc")
    a(f"v_mul_u32_u24 v18, 19, v2\nv_add_u32 v17, v17, v18\nv_lshlrev_b32 v17, 4, v17")
    SA, SB, P, O, NM = 32, 64, 96, 112, 128
    KF = 144
    K2F = 160
    VF = 164
    a(f"v_mov_b32 v{K2F+1}, 0\nv_mov_b32 v{K2F+3}, 0")
    def set_addr():
        a(f"v_mov_b32 v{VKA}, v3\nv_lshlrev_b32 v{VK2}, 2, v0\nv_mov_b32 v{VVA}, v17")
    def rdK(i, rel):
        o = rel * PAIR
        return [f"ds_read_b128 v[{KF+8*i}:{KF+8*i+3}], v{VKA} offset:{o}",
                f"ds_read_b128 v[{KF+8*i+4}:{KF+8*i+7}], v{VKA} offset:{o+1024}",
                f"ds_read_b32 v{K2F+2*i}, v{VK2} offset:{o+2048}"]
    def rdV(i, rel):
        o = rel * PAIR + 2304
        return [f"ds_read_b128 v[{VF+16*i+4*q}:{VF+16*i+4*q+3}], v{VVA} offset:{o+608*q}" for q in range(4)]
    def qk(S, i, c):
        return [f"v_mfma_f32_32x32x16_bf16 v[{S}:{S+15}], v[{KF+8*i}:{KF+8*i+3}], v[{Q1}:{Q1+3}], {c}",
                f"v_mfma_f32_32x32x16_bf16 v[{S+16}:{S+31}], v[{KF+8*i+4}:{KF+8*i+7}], v[{Q1}:{Q1+3}], {c}",
                f"v_mfma_f32_32x32x4_2b_bf16 v[{S}:{S+31}], v[{K2F+2*i}:{K2F+2*i+1}], v[{Q2}:{Q2+1}], v[{S}:{S+31}]"]
    def rowmax(S, dst, first):
        L = []
        r = 0
        if first:
            L.append(f"v_max_f32 v{dst}, v{S}, v{S+1}"); r = 2
        while r < 32:
            L.append(f"v_max3_f32 v{dst}, v{S+r}, v{S+r+1}, v{dst}"); r += 2
        return L
    def set_nm(src):
        a(f"v_mov_b32 v19, v{src}\ns_nop 1\nv_permlane32_swap_b32 v{src}, v19\ns_nop 1\nv_max_f32 v{src}, v{src}, v19")
        for r in range(16): a(f"v_sub_f32 v{NM+r}, 0, v{src}")
    NMr = f"v[{NM}:{NM+15}]"
    def chunk_wait(c):
        lastpair = min(32, 8 * (c + 1) + 2)
        r = (lastpair * PAIR - 1) // 1024 // 8
        return max(0, 17 - r)
    st(0)
    a(f"s_waitcnt vmcnt({chunk_wait(0)})\ns_barrier")
    st(1)
    set_addr()
    for x in rdK(0, 0): a(x)
    a("s_waitcnt lgkmcnt(0)")
    q = qk(SA, 0, "0")
    a(q[0]); a(q[1]); a("s_nop 9"); a(q[2]); a("s_nop 15\ns_nop 3")
    for x in rowmax(SA, 18, True): a(x)
    if force_fallback:
        a("v_add_f32 v18, -100.0, v18" .replace("-100.0", str(f32bits(-100.0))))
    set_nm(18)
    a("s_mov_b32 s51, 0")
    a("K2_pass:")
    set_addr()
    for r in range(16): a(f"v_mov_b32 v{O+r}, 0")
    for x in rdK(0, 0): a(x)
    for x in rdK(1, 1): a(x)
    for x in rdV(0, 0): a(x)
    a("s_waitcnt lgkmcnt(7)")
    q = qk(SA, 0, NMr)
    a(q[0]); a(q[1]); a("s_nop 9"); a(q[2]); a("s_nop 15\ns_nop 3")
    a("s_mov_b32 s52, 0")
    a(".p2align 6\nK2_loop:")
    BODY = 8
    for i in range(BODY):
        cur, nxt = (SA, SB) if i % 2 == 0 else (SB, SA)
        ks_, vs_ = (i + 1) % 2, i % 2
        q = qk(nxt, ks_, NMr)
        pv = [f"v_mfma_f32_32x32x16_bf16 v[{O}:{O+15}], v[{VF+16*vs_+4*u}:{VF+16*vs_+4*u+3}], v[{P+4*u}:{P+4*u+3}], v[{O}:{O+15}]" for u in range(4)]
        def E(g):
            b = cur + 4 * g
            return [f"v_exp_f32 v{b+r}, v{b+r}" for r in range(4)] + \
                   [f"v_cvt_pk_bf16_f32 v{P+2*g}, v{b}, v{b+1}", f"v_cvt_pk_bf16_f32 v{P+2*g+1}, v{b+2}, v{b+3}"]
        kr = rdK(i % 2, i + 2)
        vrd = rdV((i + 1) % 2, i + 1)
        seq = []
        seq += ["s_waitcnt lgkmcnt(4)", q[0]] + kr[0:1] + E(0)
        seq += [q[1]] + kr[1:3] + E(1)
        e2 = E(2)
        seq += e2[:1] + ["s_waitcnt lgkmcnt(3)", pv[0]] + e2[1:]
        seq += [q[2]] + vrd[0:2] + E(3)
        e4 = E(4)
        seq += vrd[2:4] + e4[:3] + [pv[1]] + e4[3:]
        seq += E(5)
        e6 = E(6)
        seq += e6[:2] + [pv[2]] + e6[2:]
        seq += E(7)
        seq += ["s_nop 1", pv[3]]
        for x in seq: a(x)
    a(f"v_add_u32 v{VKA}, {BODY*PAIR}, v{VKA}\nv_add_u32 v{VK2}, {BODY*PAIR}, v{VK2}\nv_add_u32 v{VVA}, {BODY*PAIR}, v{VVA}")
    a("s_add_u32 s52, s52, 1\ns_cmp_eq_u32 s52, 4\ns_cbranch_scc1 K2_done")
    a("s_cmp_lg_u32 s51, 0\ns_cbranch_scc1 K2_loop")
    a("s_cmp_lg_u32 s52, 1\ns_cbranch_scc1 K2_loop")
    a("s_waitcnt vmcnt(0)\ns_barrier")
    repack_loads()
    a("s_branch K2_loop")
    a("K2_done:")
    st(2)
    a("s_waitcnt lgkmcnt(0)\ns_nop 15")
    a(f"s_cmp_lg_u32 s51, 0\ns_cbranch_scc1 K2_out")
    a(f"v_mov_b32 v19, {f32bits(2.0**60)}\nv_cmp_nle_f32 vcc, v{O+10}, v19\ns_nop 4\ns_cbranch_vccz K2_out")
    set_addr()
    a("s_mov_b32 s52, 0\nv_mov_b32 v18, 0xff800000")
    a("K2_maxloop:")
    for x in rdK(0, 0): a(x)
    a("s_waitcnt lgkmcnt(0)")
    q = qk(SA, 0, "0")
    a(q[0]); a(q[1]); a("s_nop 9"); a(q[2]); a("s_nop 15\ns_nop 3")
    for x in rowmax(SA, 18, False): a(x)
    a(f"v_add_u32 v{VKA}, {PAIR}, v{VKA}\nv_add_u32 v{VK2}, {PAIR}, v{VK2}")
    a("s_add_u32 s52, s52, 1\ns_cmp_lt_u32 s52, 32\ns_cbranch_scc1 K2_maxloop")
    set_nm(18)
    a("s_mov_b32 s51, 1\ns_branch K2_pass")
    a("K2_out:")
    a(f"v_rcp_f32 v19, v{O+10}\ns_nop 0")
    for r in range(10): a(f"v_mul_f32 v{O+r}, v{O+r}, v19")
    for r in range(5): a(f"v_cvt_pk_bf16_f32 v{P+r}, v{O+2*r}, v{O+2*r+1}")
    a("v_lshl_add_u32 v5, v2, 3, v4\nv_lshl_add_u32 v20, v2, 24, v4")
    a(f"buffer_store_dwordx2 v[{P}:{P+1}], v5, s[24:27], s42 offen\nbuffer_store_dwordx2 v[{P+2}:{P+3}], v5, s[24:27], s42 offen offset:16")
    a(f"buffer_store_dword v{P+4}, v20, s[24:27], s42 offen offset:32")
    a("s_waitcnt vmcnt(3)")
    a("s_mov_b32 s53, 0x05040100\ns_mov_b32 s54, 0x07060302")
    for rnd in range(2):
        raw = PR + 16 * rnd
        for q_ in range(4):
            t = SA + 4 * (rnd * 4 + q_)
            sel = 53 + (q_ & 1)
            for j in range(4):
                lo, hi = raw + 2 * (2 * j) + (q_ >> 1), raw + 2 * (2 * j + 1) + (q_ >> 1)
                a(f"v_perm_b32 v{t+j}, v{hi}, v{lo}, s{sel}")
            a(f"buffer_store_dwordx4 v[{t}:{t+3}], v{240+rnd}, s[60:63], 0 offen offset:{16*q_}")
    st.finish(14, 3, 8)
    a("K2_end:\ns_endpgm")
    return kernel_desc("k2_kernel", 256)

def gemm_prolog(a):
    wave_lane(a)
    a("v_lshlrev_b32 v2, 4, v0\nv_add_u32 v3, 0x10000, v2\nv_add_u32 v4, 0x20000, v2")
    a("v_and_b32 v5, 15, v0\nv_lshrrev_b32 v6, 4, v0")

K3_GRID = 192
K3_LDS = 128 * 1024
def k3(a, stamp_k=-1):
    st = Stamps(a, stamp_k == 3, 3, 250, 251)
    kernel_begin(a, "k3_kernel")
    a(f"s_cmp_ge_u32 s2, {K3_GRID}\ns_cbranch_scc1 K3_end")
    a(f"s_load_dwordx2 s[4:5], s[0:1], {A_X}\ns_load_dwordx2 s[14:15], s[0:1], {K_WS}")
    st.start()
    gemm_prolog(a)
    a("s_and_b32 s40, s2, 7\ns_lshr_b32 s41, s2, 3\ns_lshl_b32 s44, s40, 2\ns_and_b32 s42, s41, 3\ns_add_u32 s44, s44, s42\ns_lshr_b32 s45, s41, 2")
    a("s_lshl_b32 s46, s44, 2\ns_add_u32 s46, s46, s3")
    a(f"s_mul_i32 s30, s46, {16*DM*2}")
    a(f"v_mul_u32_u24 v7, {DM*2}, v5\nv_lshl_add_u32 v8, v6, 3, v7\nv_lshl_add_u32 v7, v6, 4, v7")
    a(f"s_mul_i32 s36, s45, {18*7*1024}\ns_lshl_b32 s37, s3, 10\ns_add_u32 s36, s36, s37")
    a("s_waitcnt lgkmcnt(0)")
    ws_srd(a, 16, "O", 14)
    ws_srd(a, 20, "WOF", 14)
    srd(a, 24, 4, 0, T*DM*2)
    ws_srd(a, 48, "MEAN1", 14)
    ws_srd(a, 52, "HC", 14)
    ws_srd(a, 56, "MU2", 14)
    ws_srd(a, 60, "SS", 14)
    WR, XR, ACC, XRES = 12, 40, 112, 140
    def mid():
        a(f"s_mul_i32 s47, s45, 192\ns_mul_i32 s64, s46, {16*DM*2}\ns_add_u32 s47, s47, s64")
        for j in range(6):
            a(f"buffer_load_dwordx2 v[{XRES+2*j}:{XRES+2*j+1}], v8, s[24:27], s47 offen offset:{32*j}")
        a(f"v_lshlrev_b32 v9, 2, v5\ns_lshl_b32 s65, s46, 6\nbuffer_load_dword v10, v9, s[48:51], s65 offen")
        return 7
    gemm_core(a, NW=4, MT=1, NT=7, KS=18, D=8, RING=18, acc0=ACC, xr0=XR, XD=18, wr0=WR, v_xoff=7, v_lane16=2, v_ldsaddr=2,
              srdX=16, sX0=30, srdW=20, sW=36, sM0=37, xstep=64, stamp=st, D0=4, mid=mid)
    st(40)
    a("s_nop 7")
    e = ACC + 24
    a(f"v_add_f32 v10, v10, v{e}\nv_add_f32 v10, v10, v{e+1}")
    a("v_mov_b32 v11, 0")
    for j in range(6):
        b = ACC + 4 * j
        for h in range(2):
            x = XRES + 2 * j + h
            a(f"v_lshlrev_b32 v12, 16, v{x}\nv_and_b32 v13, 0xffff0000, v{x}")
            a(f"v_add_f32 v{b+2*h}, v{b+2*h}, v12\nv_add_f32 v{b+2*h+1}, v{b+2*h+1}, v13")
            a(f"v_sub_f32 v{b+2*h}, v{b+2*h}, v10\nv_sub_f32 v{b+2*h+1}, v{b+2*h+1}, v10")
            a(f"v_cvt_pk_bf16_f32 v{XR+2*j+h}, v{b+2*h}, v{b+2*h+1}")
            a(f"v_dot2_f32_bf16 v11, v{XR+2*j+h}, v{XR+2*j+h}, v11")
    a(f"s_mul_i32 s47, s46, {18*1024}\ns_mul_i32 s64, s45, 3072\ns_add_u32 s47, s47, s64")
    for u in range(3):
        a(f"buffer_store_dwordx4 v[{XR+4*u}:{XR+4*u+3}], v2, s[52:55], s47 offen offset:{1024*u}")
    sum_g(a, 11, 12)
    a("v_lshlrev_b32 v12, 5, v5\nv_lshl_add_u32 v12, v6, 20, v12\ns_lshl_b32 s47, s46, 9\ns_lshl_b32 s64, s45, 2\ns_add_u32 s47, s47, s64")
    a("buffer_store_dword v11, v12, s[60:63], s47 offen")
    a("s_cmp_lg_u32 s45, 0\ns_cbranch_scc1 K3_fin")
    a("v_lshl_add_u32 v9, v6, 20, v9\nbuffer_store_dword v10, v9, s[56:59], s65 offen")
    a("K3_fin:")
    st.finish(14, 3, 4)
    a("K3_end:\ns_endpgm")
    return kernel_desc("k3_kernel", 256 if stamp_k == 3 else 152)

K4_GRID = 256
K4_NW = 8
K4_LDS = 16 * 9 * 1024
def k4(a, stamp_k=-1):
    st = Stamps(a, stamp_k == 4, 4, 250, 251)
    NW, MT, D, XD = K4_NW, 2, 3, 12
    kernel_begin(a, "k4_kernel")
    a(f"s_cmp_ge_u32 s2, {K4_GRID}\ns_cbranch_scc1 K4_end")
    a(f"s_load_dwordx2 s[14:15], s[0:1], {K_WS}")
    st.start()
    gemm_prolog(a)
    a("s_and_b32 s40, s2, 7\ns_lshr_b32 s41, s2, 3")
    a("s_lshl_b32 s42, s40, 2\ns_and_b32 s43, s41, 3\ns_add_u32 s42, s42, s43\ns_lshr_b32 s43, s41, 2")
    a(f"s_lshl_b32 s44, s43, 4\ns_mul_i32 s45, s3, {MT}\ns_add_u32 s44, s44, s45")
    for mt in range(MT):
        a(f"s_add_u32 s45, s44, {mt}\ns_mul_i32 s{30+mt}, s45, {18*1024}")
    a(f"s_mul_i32 s36, s42, {162*1024}\ns_lshl_b32 s37, s3, 10\ns_add_u32 s36, s36, s37")
    a("s_waitcnt lgkmcnt(0)")
    ws_srd(a, 16, "HC", 14)
    ws_srd(a, 20, "W1F", 14)
    ws_srd(a, 24, "H", 14)
    WR = 8; XR = WR + 36; ACC = XR + XD*MT*4
    gemm_core(a, NW=NW, MT=MT, NT=9, KS=18, D=D, RING=16, acc0=ACC, xr0=XR, XD=XD, wr0=WR, v_xoff=2, v_lane16=2, v_ldsaddr=2,
              srdX=16, sX0=30, srdW=20, sW=36, sM0=37, stamp=st, D0=2)
    st(40)
    a("s_mul_i32 s46, s42, 9\ns_add_u32 s47, s46, 1\ns_lshr_b32 s47, s47, 1\ns_lshl_b32 s47, s47, 10")
    a("s_and_b32 s48, s42, 1\ns_cmp_eq_u32 s48, 0\ns_movk_i32 s49, 4096\ns_cselect_b32 s49, s49, -1016\ns_add_u32 s49, s49, s47")
    a("s_nop 7")
    for mt in range(MT):
        a(f"s_add_u32 s45, s44, {mt}\ns_mul_i32 s45, s45, {144*1024}\ns_add_u32 s50, s45, s47\ns_add_u32 s51, s45, s49")
        for jp in range(5):
            t = XR + (mt * 5 + jp) * 4
            for q in range(2 if jp < 4 else 1):
                src = ACC + ((2*jp + q) * MT + mt) * 4
                a(f"v_cvt_pk_bf16_f32 v{t+2*q}, v{src}, v{src+1}\nv_cvt_pk_bf16_f32 v{t+2*q+1}, v{src+2}, v{src+3}")
                a(f"v_pk_max_i16 v{t+2*q}, v{t+2*q}, 0\nv_pk_max_i16 v{t+2*q+1}, v{t+2*q+1}, 0")
            if jp < 4:
                a(f"buffer_store_dwordx4 v[{t}:{t+3}], v2, s[24:27], s50 offen offset:{jp*1024}")
            else:
                a(f"buffer_store_dwordx2 v[{t}:{t+1}], v2, s[24:27], s51 offen")
    st.finish(14, 3, NW)
    a("K4_end:\ns_endpgm")
    return kernel_desc("k4_kernel", 256 if stamp_k == 4 else ACC + 72)

K5_GRID = 256
K5_LDS = 16 * 9 * 1024
def k5(a, stamp_k=-1):
    st = Stamps(a, stamp_k == 5, 5, 250, 251)
    NW, MT, D, XD = 4, 2, 6, 12
    kernel_begin(a, "k5_kernel")
    a(f"s_cmp_ge_u32 s2, {K5_GRID}\ns_cbranch_scc1 K5_end")
    a(f"s_load_dwordx2 s[14:15], s[0:1], {K_WS}")
    st.start()
    gemm_prolog(a)
    a("s_and_b32 s40, s2, 7\ns_lshr_b32 s41, s2, 3\ns_and_b32 s52, s40, 3\ns_lshr_b32 s40, s40, 2")
    a("s_and_b32 s42, s41, 3\ns_lshr_b32 s43, s41, 2\ns_lshl_b32 s40, s40, 3\ns_add_u32 s43, s43, s40")
    a(f"s_lshl_b32 s44, s43, 3\ns_mul_i32 s45, s3, {MT}\ns_add_u32 s44, s44, s45")
    a(f"s_mul_i32 s53, s52, {36*1024}")
    for mt in range(MT):
        a(f"s_add_u32 s45, s44, {mt}\ns_mul_i32 s{30+mt}, s45, {144*1024}\ns_add_u32 s{30+mt}, s{30+mt}, s53")
    a(f"s_mul_i32 s36, s42, {144*9*1024}\ns_mul_i32 s53, s52, {36*9*1024}\ns_add_u32 s36, s36, s53\ns_lshl_b32 s37, s3, 10\ns_add_u32 s36, s36, s37")
    a("s_waitcnt lgkmcnt(0)")
    ws_srd(a, 16, "H", 14)
    ws_srd(a, 20, "W2F", 14)
    ws_srd(a, 24, "PART", 14)
    WR = 8; XR = WR + 36; ACC = XR + XD*MT*4
    gemm_core(a, NW=NW, MT=MT, NT=9, KS=36, D=D, RING=16, acc0=ACC, xr0=XR, XD=XD, wr0=WR, v_xoff=2, v_lane16=2, v_ldsaddr=2,
              srdX=16, sX0=30, srdW=20, sW=36, sM0=37, stamp=st, D0=3)
    st(40)
    a(f"s_mul_i32 s46, s52, {128*36*1024}\ns_mul_i32 s47, s42, {9*1024}\ns_add_u32 s46, s46, s47\ns_nop 7")
    for mt in range(MT):
        a(f"s_add_u32 s45, s44, {mt}\ns_mul_i32 s45, s45, {36*1024}\ns_add_u32 s50, s45, s46")
        for j in range(9):
            src = ACC + (j * MT + mt) * 4
            if j % 4 == 0 and j: a("s_add_u32 s50, s50, 4096")
            a(f"buffer_store_dwordx4 v[{src}:{src+3}], v2, s[24:27], s50 offen offset:{(j%4)*1024}")
    st.finish(14, 3, NW)
    a("K5_end:\ns_endpgm")
    return kernel_desc("k5_kernel", 256 if stamp_k == 5 else ACC + 72)

K6_GRID = 128 * 18 // 4
def k6(a, stamp_k=-1):
    st = Stamps(a, stamp_k == 6, 6, 250, 251)
    kernel_begin(a, "k6_kernel")
    a(f"s_cmp_ge_u32 s2, {K6_GRID}\ns_cbranch_scc1 K6_end")
    a(f"s_load_dwordx2 s[4:5], s[0:1], {K_OUT}\ns_load_dwordx2 s[14:15], s[0:1], {K_WS}")
    st.start()
    gemm_prolog(a)
    a(f"s_lshl_b32 s40, s2, 2\ns_add_u32 s40, s40, s3")
    a(f"s_mul_hi_u32 s41, s40, {(2**32+17)//18}\ns_mul_i32 s42, s41, 18\ns_sub_u32 s42, s40, s42")
    a("s_waitcnt lgkmcnt(0)")
    ws_srd(a, 16, "PART", 14)
    ws_srd(a, 20, "HC", 14)
    ws_srd(a, 24, "MU2", 14)
    ws_srd(a, 28, "SS", 14)
    srd(a, 32, 4, 0, T*DM*2)
    a("s_lshl_b32 s43, s40, 11\ns_lshl_b32 s44, s40, 10")
    for kq in range(4):
        a(f"buffer_load_dwordx4 v[{16+8*kq}:{19+8*kq}], v2, s[16:19], s43 offen\nbuffer_load_dwordx4 v[{20+8*kq}:{23+8*kq}], v2, s[16:19], s43 offen offset:1024")
        a(f"s_add_u32 s43, s43, {128*36*1024}")
    a("buffer_load_dwordx4 v[48:51], v2, s[20:23], s44 offen")
    a("v_lshlrev_b32 v7, 2, v5\ns_lshl_b32 s45, s41, 6\nbuffer_load_dword v8, v7, s[24:27], s45 offen")
    a("v_lshlrev_b32 v7, 5, v5\ns_lshl_b32 s45, s41, 9\nbuffer_load_dwordx4 v[52:55], v7, s[28:31], s45 offen\nbuffer_load_dwordx2 v[56:57], v7, s[28:31], s45 offen offset:16")
    a(f"v_mul_u32_u24 v9, {DM*2}, v5\nv_lshl_add_u32 v9, v6, 3, v9\ns_mul_i32 s46, s41, {16*DM*2}\ns_lshl_b32 s47, s42, 6\ns_add_u32 s46, s46, s47")
    a("s_waitcnt vmcnt(0)")
    a("v_add_f32 v52, v52, v53\nv_add_f32 v54, v54, v55\nv_add_f32 v56, v56, v57\nv_add_f32 v52, v52, v54\nv_add_f32 v52, v52, v56")
    a(f"v_mov_b32 v53, {f32bits(1e-5)}\nv_fmac_f32 v53, {f32bits(1.0/DM)}, v52\nv_rsq_f32 v10, v53")
    for r in range(8):
        a(f"v_add_f32 v{16+r}, v{16+r}, v{24+r}\nv_add_f32 v{32+r}, v{32+r}, v{40+r}\nv_add_f32 v{16+r}, v{16+r}, v{32+r}")
    for r in range(4):
        a(f"v_lshlrev_b32 v11, 16, v{48+r}\nv_and_b32 v12, 0xffff0000, v{48+r}\nv_add_f32 v11, v11, v8\nv_add_f32 v12, v12, v8")
        a(f"v_fmac_f32 v11, v{16+2*r}, v10\nv_fmac_f32 v12, v{17+2*r}, v10\nv_cvt_pk_bf16_f32 v{58+r}, v11, v12")
    a("buffer_store_dwordx2 v[58:59], v9, s[32:35], s46 offen\nbuffer_store_dwordx2 v[60:61], v9, s[32:35], s46 offen offset:32")
    st.finish(14, 3, 4)
    a("K6_end:\ns_endpgm")
    return kernel_desc("k6_kernel", 256 if stamp_k == 6 else 64)

HEADER = open("cdna_kernels/" + NAME + ".s.ref").read().split("; Override launch geometry")[0]
def build(stamp_k=-1, force_fallback=False, extra_launch=0):
    a = Asm()
    launches = [("k1_kernel", K1_GRID, 256, K1_LDS), ("k2_kernel", K2_GRID, 512, K2_LDS), ("k3_kernel", K3_GRID, 256, K3_LDS),
                ("k4_kernel", K4_GRID, K4_NW*64, K4_LDS), ("k5_kernel", K5_GRID, 256, K5_LDS), ("k6_kernel", K6_GRID, 256, 0)]
    launches += [("nop_kernel", 256, 256, 0)] * extra_launch
    hdr = HEADER + "".join(f"; @launch kernel={k} grid=({g},1,1) block=({b},1,1) lds={l}\n" for k, g, b, l in launches)
    a('.amdgcn_target "amdgcn-amd-amdhsa--gfx950"\n.text')
    descs = [k1(a, stamp_k), k2(a, stamp_k, force_fallback), k3(a, stamp_k), k4(a, stamp_k), k5(a, stamp_k), k6(a, stamp_k)]
    if extra_launch:
        kernel_begin(a, "nop_kernel"); a("s_endpgm"); descs.append(kernel_desc("nop_kernel", 8))
    a('.section .rodata,"a"')
    return hdr + a.text() + "".join(descs)

if __name__ == "__main__":
    out = sys.argv[1] if len(sys.argv) > 1 else "cdna_kernels/" + NAME + ".s"
    kw = eval("dict(" + (sys.argv[2] if len(sys.argv) > 2 else "") + ")")
    open(out, "w").write(build(**kw))
```

```python
from asmlib import *

def ffn_core(a, *, srdX, sX, srdW, sW, srdP, sP, v_lane16, v_h8, s_wave, RINGF=48, stamp=None, stflag=" sc1", XPRE=9, WPX=1, PACE=3):
    XB = 3
    ACC = 16
    XF = 112
    TMP = 160
    assert RINGF <= 64
    def wreg(f): return 256 + 4 * (f % RINGF)
    NF = 324
    issued = [0]
    wpos = {}
    wadv = [0]
    nw = [0]
    def wload():
        f = nw[0]; nw[0] += 1
        off = f * 1024 - wadv[0]
        L = []
        if off >= 4096:
            L.append(f"s_add_u32 s{sW}, s{sW}, {off}"); wadv[0] += off; off = 0
        L.append(f"buffer_load_dwordx4 {R(wreg(f),4)}, v{v_lane16}, s[{srdW}:{srdW+3}], s{sW} offen offset:{off}")
        wpos[f] = issued[0]; issued[0] += 1
        return "\n".join(L)
    a(f"s_mul_i32 s90, s{s_wave}, 18432\ns_add_u32 s{sX}, s{sX}, s90")
    xpos = {}
    nx = [0]
    def xload():
        i = nx[0]; nx[0] += 1
        xpos[i] = issued[0]; issued[0] += 1
        t = ""
        if i % 4 == 0:
            t = "s_mov_b32 m0, s90\ns_add_u32 s90, s90, 4096\n"
        t += f"buffer_load_dwordx4 v{v_lane16}, s[{srdX}:{srdX+3}], s{sX} offen offset:{(i%4)*1024} lds"
        if i % 4 == 3: t += f"\ns_add_u32 s{sX}, s{sX}, 4096"
        return t
    XC = 3
    for i in range(XC): a(xload())
    for i in range(3): a(wload())
    while nx[0] < XPRE:
        a(xload())
        for i in range(WPX): a(wload())
    if stamp: stamp(0)
    a(f"s_waitcnt vmcnt({issued[0] - 1 - xpos[XC-1]})\ns_barrier")
    if stamp: stamp(1)
    def xread(step, mt):
        ph, ks = step // 54, step % 18
        off = 73728 + (ks * 4 + mt) * 1024 if ph else (mt * 18 + ks) * 1024
        r = XF + 16 * (step % XB) + 4 * mt
        return f"ds_read_b128 v[{r}:{r+3}], v{v_lane16 + off // 65536} offset:{off % 65536}"
    def epilogue(grp):
        ph, g = divmod(grp, 3)
        ac = ACC + 48 * (grp % 2)
        L = []
        if ph == 0:
            for t in range(3):
                for mt in range(4):
                    b = ac + (t * 4 + mt) * 4
                    tm = TMP + ((t * 4 + mt) % 8) * 2
                    L.append((f"v_cvt_pk_bf16_f32 v{tm}, v{b}, v{b+1}", 0)); L.append((f"v_cvt_pk_bf16_f32 v{tm+1}, v{b+2}, v{b+3}", 0))
                    L.append((f"v_pk_max_i16 v{tm}, v{tm}, 0", 0)); L.append((f"v_pk_max_i16 v{tm+1}, v{tm+1}, 0", 0))
                    L.append((f"ds_write_b64 v{v_h8 + (t & 1)}, v[{tm}:{tm+1}] offset:{mt*1024 + (6*g + (t >> 1))*4096}", 1))
        else:
            for t in range(3):
                tl = 3 * g + t
                for u in range(2):
                    tm = TMP + ((t * 2 + u) % 4) * 4
                    for q in range(2):
                        b = ac + (t * 4 + 2 * u + q) * 4
                        L.append((f"v_cvt_pk_bf16_f32 v{tm+2*q}, v{b}, v{b+1}", 0))
                        L.append((f"v_cvt_pk_bf16_f32 v{tm+2*q+1}, v{b+2}, v{b+3}", 0))
                    L.append((f"s_add_u32 s91, s{sP}, {(u*36 + tl)*1024}\nbuffer_store_dwordx4 v[{tm}:{tm+3}], v{v_lane16}, s[{srdP}:{srdP+3}], s91 offen{stflag}", 0))
        return L
    lds_q = []
    def lds_wait(tag):
        if tag not in lds_q: return None
        i = len(lds_q) - 1 - lds_q[::-1].index(tag)
        n = len(lds_q) - 1 - i
        if n > 15:
            n = 15
            del lds_q[:len(lds_q) - 15]
        else:
            del lds_q[:i + 1]
        return f"s_waitcnt lgkmcnt({n})"
    NS = 108
    for st_ in range(2):
        for mt in range(4):
            a(xread(st_, mt)); lds_q.append(("x", st_))
    pending = []
    for step in range(NS):
        grp, ks = divmod(step, 18)
        ac = ACC + 48 * (grp % 2)
        if ks == 0 and grp > 0:
            assert not pending
            pending = epilogue(grp - 1)
            if stamp: stamp(2 + grp)
        ns = step + 2
        if ns < 18 and ns % XC == 0:
            assert nx[0] > ns + XC - 1
            a(f"s_waitcnt vmcnt({issued[0] - 1 - xpos[ns + XC - 1]})\ns_barrier")
        if ns == 54:
            assert not pending
            w = lds_wait(("w",))
            if w: a(w)
            a("s_barrier")
        if ns == 54 + 12:
            assert not pending
            w = lds_wait(("w",))
            if w: a(w)
            a("s_barrier")
        f0 = 3 * step
        vw = min(63, issued[0] - 1 - wpos[f0 + 2])
        lw = lds_wait(("x", step))
        a(f"s_waitcnt vmcnt({vw})" + (lw[len("s_waitcnt"):] if lw else ""))
        fills = [mt for mt in range(4)] if ns < NS else []
        for t in range(3):
            f = f0 + t
            for mt in range(4):
                d = ac + (t * 4 + mt) * 4
                x = XF + 16 * (step % XB) + 4 * mt
                c = "0" if ks == 0 else R(d, 4)
                a(f"v_mfma_f32_16x16x32_bf16 {R(d,4)}, {R(wreg(f),4)}, v[{x}:{x+3}], {c}")
                slot = t * 4 + mt
                used = 0
                if mt == 0 and nw[0] < NF and nw[0] < f + RINGF:
                    a(wload()); used += 1
                elif slot == 2 and nx[0] < 18:
                    a(xload()); used += 1
                elif slot in (6, 10) and nw[0] < NF and nw[0] < f + RINGF - 2:
                    a(wload()); used += 1
                if fills and slot % 2 == 1:
                    a(xread(ns, fills.pop(0))); lds_q.append(("x", ns)); used += 1
                while pending and used < (1 if mt == 0 else 2) and (ks > 0 or slot >= 8) and (grp < 4 or len(pending) > 30 - 5 * ((ks + PACE - 1) // PACE + (PACE == 1) * 9)):
                    txt, ld = pending.pop(0)
                    a(txt); used += 1
                    if ld: lds_q.append(("w",))
    if stamp: stamp(8)
    a("s_nop 7")
    for (txt, ld) in epilogue(5):
        a(txt)
```

```python
from asmlib import *

def gemm_core(a, *, NW, MT, NT, KS, D, RING, acc0, xr0, XD, wr0, v_xoff, v_lane16, v_ldsaddr,
              srdX, sX0, srdW, sW, sM0, xstep=1024, stamp=None, D0=None, pre_ops=0, mid=None, ramp=2, extra_tile=None, mid_at=-1):
    if D0 is None: D0 = D
    npieces = NT * KS
    nrounds = (npieces + NW - 1) // NW
    ringp = RING * NT
    wrap = ringp < npieces
    if wrap:
        assert ringp % NW == 0 and RING >= D + 2 + (NW - 1) // NT
    assert XD >= min(D + 1, KS)
    steps = [[] for _ in range(KS)]
    for t in range(nrounds):
        steps[(NW * t) // NT].append(("W", t))
    for ks in range(KS):
        for mt in range(MT):
            steps[ks].append(("X", ks, mt))
    pos = {}
    issued = [0]
    xadv = [0] * MT
    def emit_op(op):
        L = []
        if op[0] == "W":
            t = op[1]
            L.append(f"s_mov_b32 m0, s{sM0}")
            nxt = (NW * (t + 1))
            if wrap and nxt % ringp == 0:
                L.append(f"s_sub_u32 s{sM0}, s{sM0}, {(ringp - NW) * 1024}")
            else:
                L.append(f"s_add_u32 s{sM0}, s{sM0}, {NW * 1024}")
            L.append(f"buffer_load_dwordx4 v{v_lane16}, s[{srdW}:{srdW+3}], s{sW} offen lds")
            L.append(f"s_add_u32 s{sW}, s{sW}, {NW * 1024}")
        else:
            _, ks, mt = op
            off = ks * xstep - xadv[mt]
            if off >= 4096:
                L.append(f"s_add_u32 s{sX0+mt}, s{sX0+mt}, {off}")
                xadv[mt] += off; off = 0
            r = xr0 + ((ks % XD) * MT + mt) * 4
            L.append(f"buffer_load_dwordx4 {R(r,4)}, v{v_xoff}, s[{srdX}:{srdX+3}], s{sX0+mt} offen offset:{off}")
        pos[op] = issued[0]
        issued[0] += 1
        return "\n".join(L)
    def wait_for(wstep, xstp):
        last = -1
        for s in range(KS):
            for op in steps[s]:
                if (op[0] == "W" and s <= wstep) or (op[0] == "X" and s <= xstp):
                    assert op in pos, ("not issued yet", op, wstep, xstp)
                    last = max(last, pos[op])
        n = issued[0] - 1 - last
        assert n <= 63 or True
        return f"s_waitcnt vmcnt({min(63, n)})"
    NTT = NT + (1 if extra_tile is not None else 0)
    def wread(ks, j):
        piece = (ks * NT + j) % ringp if wrap else ks * NT + j
        off = piece * 1024
        if j == NT: off = extra_tile + ks * 1024
        return f"ds_read_b128 {R(wr0 + 4*j, 4)}, v{v_ldsaddr + off // 65536} offset:{off % 65536}"
    nxt_step = 0
    for ks in range(min(D0, KS)):
        for op in steps[ks]:
            a(emit_op(op))
        nxt_step += 1
    if mid and mid_at < 0:
        issued[0] += mid()
    if stamp: stamp(0)
    a(wait_for(0, -1) + "\ns_barrier")
    if stamp: stamp(1)
    for j in range(NTT):
        a(wread(0, j))
    for p in range(KS):
        a(wait_for(min(p + 1, KS - 1), p))
        if p + 1 < KS:
            a("s_barrier")
        if stamp: stamp(p + 2)
        if mid and mid_at == p:
            issued[0] += mid()
        fill = []
        n = 0
        while nxt_step < KS and nxt_step <= p + D and n < ramp:
            fill += steps[nxt_step]; nxt_step += 1; n += 1
        nf = len(fill)
        fi = 0
        for j in range(NTT):
            younger = (NTT - 1 - j) + (j if p + 1 < KS else 0)
            a(f"s_waitcnt lgkmcnt({min(15, younger)})")
            for mt in range(MT):
                acc = acc0 + (j * MT + mt) * 4
                x = xr0 + ((p % XD) * MT + mt) * 4
                c = "0" if p == 0 else R(acc, 4)
                a(f"v_mfma_f32_16x16x32_bf16 {R(acc,4)}, {R(wr0+4*j,4)}, {R(x,4)}, {c}")
                if mt == MT - 1 and p + 1 < KS:
                    a(wread(p + 1, j))
                slot = j * MT + mt
                while fi < nf and fi * NTT * MT <= slot * nf:
                    a(emit_op(fill[fi])); fi += 1
        while fi < nf:
            a(emit_op(fill[fi])); fi += 1
    return issued[0]
```

```python
import sys, math
from asmlib import *
from gemm import gemm_core
from ffn import ffn_core

T, DM, NH, DH, F = 2048, 576, 32, 18, 4608
NAME = "sequential_preLN__grouped_kv_mqa__dense_activation_relu__prompt"
A_X, A_WQ, A_WK, A_WV, A_WO, B_X, B_W1, B_W2, K_OUT, K_DBG, K_WS = [8 * i for i in range(11)]
def _al(x, a=4096): return (x + a - 1) // a * a
PAIR = 4736
WS = {}
_o = 0
for nm, sz in [("Q", T*DM*2), ("KV", 32*PAIR), ("MEAN1", T*4), ("O", T*DM*2), ("HC", T*DM*2), ("MU2", T*4),
               ("SS", T*8*4), ("XC", T*DM*2), ("WBAR", 18*1024), ("WOF", 648*1024), ("WF", 2*DM*F*2),
               ("PART", 8*T*DM*2), ("STAMP", 16 << 20)]:
    WS[nm] = (_o, sz); _o += _al(sz)
WS_END = _o
QSCALE = math.log2(math.e) / math.sqrt(DH)
def f32bits(x):
    import struct
    return struct.unpack("<I", struct.pack("<f", x))[0]
ONES = 0x3f803f80

def ws_srd(a, d, nm, base):
    srd(a, d, base, WS[nm][0], WS[nm][1])

def wave_lane(a, s_wave=3):
    a(f"v_lshrrev_b32 v1, 6, v0\nv_and_b32 v0, 63, v0\ns_nop 0\nv_readfirstlane_b32 s{s_wave}, v1")

def sum_g(a, v, t):
    a(f"v_mov_b32 v{t}, v{v}\ns_nop 1\nv_permlane32_swap_b32 v{v}, v{t}\ns_nop 1\nv_add_f32 v{v}, v{v}, v{t}")
    a(f"v_mov_b32 v{t}, v{v}\ns_nop 1\nv_permlane16_swap_b32 v{v}, v{t}\ns_nop 1\nv_add_f32 v{v}, v{v}, v{t}")

LIGHT = [False]
OPT = dict(prio=4, k2_nt=True, codepf=True)
class Stamps:
    def __init__(self, a, on, kidx, vreg, vtmp):
        self.a, self.on, self.k, self.v, self.t = a, bool(on) or LIGHT[0], kidx, vreg, vtmp
        self.full = bool(on)
    def start(self):
        if self.on:
            self.a(f"s_memrealtime s[96:97]\ns_memtime s[98:99]\nv_mov_b32 v{self.v}, 0\ns_waitcnt lgkmcnt(0)\nv_writelane_b32 v{self.v}, s96, 62")
    def __call__(self, i):
        if self.full or (self.on and i == 61):
            self.a(f"s_memtime s[96:97]\ns_waitcnt lgkmcnt(0)\ns_sub_u32 s96, s96, s98\nv_writelane_b32 v{self.v}, s96, {i}")
    def finish(self, s_ws, s_wave, nw):
        if self.on:
            a = self.a
            a("s_waitcnt vmcnt(0)")
            self(61)
            a(f"s_memrealtime s[96:97]\ns_waitcnt lgkmcnt(0)\nv_writelane_b32 v{self.v}, s96, 63")
            ws_srd(a, 92, "STAMP", s_ws)
            a(f"s_lshl_b32 s96, s2, 3\ns_add_u32 s96, s96, s{s_wave}\ns_lshl_b32 s96, s96, 8\ns_add_u32 s96, s96, {self.k << 21}")
            a(f"v_mbcnt_lo_u32_b32 v{self.t}, -1, 0\nv_mbcnt_hi_u32_b32 v{self.t}, -1, v{self.t}\nv_lshlrev_b32 v{self.t}, 2, v{self.t}")
            a(f"buffer_store_dword v{self.v}, v{self.t}, s[92:95], s96 offen")

K1_GRID = 256
K1_LDS = 147456
def k1(a, stamp_k=-1):
    st = Stamps(a, stamp_k == 1, 1, 196, 197)
    XL = 73728
    kernel_begin(a, "k1_kernel")
    a(f"s_cmp_ge_u32 s2, {K1_GRID}\ns_cbranch_scc1 K1_end")
    a(f"s_load_dwordx4 s[4:7], s[0:1], {A_X}\ns_load_dwordx4 s[8:11], s[0:1], {A_WK}\ns_load_dwordx2 s[12:13], s[0:1], {A_WO}\ns_load_dwordx2 s[14:15], s[0:1], {K_WS}")
    st.start()
    wave_lane(a)
    a("v_and_b32 v1, 15, v0\nv_lshrrev_b32 v2, 4, v0")
    if OPT.get("k1_map", 1) == 0:
        a("s_and_b32 s44, s2, 31\ns_lshr_b32 s45, s2, 5")
        a("s_lshr_b32 s60, s44, 3\ns_mul_i32 s60, s60, 9\ns_lshr_b32 s60, s60, 2\ns_add_u32 s60, s60, s45\ns_and_b32 s61, s44, 7\ns_add_u32 s60, s60, s61")
    elif OPT.get("k1_map", 1) == 1:
        a("s_bfe_u32 s44, s2, 0x20001\ns_lshl_b32 s44, s44, 3\ns_bfe_u32 s61, s2, 0x30003\ns_add_u32 s44, s44, s61\ns_and_b32 s45, s2, 1\ns_lshl_b32 s45, s45, 2\ns_lshr_b32 s62, s2, 6\ns_add_u32 s45, s45, s62")
        a("s_mul_i32 s60, s62, 9\ns_lshr_b32 s60, s60, 2\ns_add_u32 s60, s60, s61\ns_and_b32 s61, s2, 7\ns_add_u32 s60, s60, s61")
    else:
        a("s_bfe_u32 s44, s2, 0x10002\ns_lshl_b32 s44, s44, 4\ns_bfe_u32 s61, s2, 0x40003\ns_add_u32 s44, s44, s61\ns_and_b32 s45, s2, 3\ns_lshl_b32 s45, s45, 1\ns_lshr_b32 s62, s2, 7\ns_add_u32 s45, s45, s62")
        a("s_lshl_b32 s60, s62, 2\ns_add_u32 s60, s60, s61\ns_and_b32 s61, s2, 3\ns_add_u32 s60, s60, s61")
    a("s_mul_i32 s61, s60, 57\ns_lshr_b32 s61, s61, 9\ns_mul_i32 s61, s61, 9\ns_sub_u32 s60, s60, s61")
    a("v_lshrrev_b32 v4, 3, v0\nv_and_b32 v5, 7, v0")
    a("s_cmp_ge_u32 s3, 4\ns_cbranch_scc1 K1_loader")
    a("s_cmp_eq_u32 s45, 7\ns_cbranch_scc1 K1_wbar")
    a("s_lshl_b32 s46, s44, 6\ns_lshl_b32 s47, s3, 4\ns_add_u32 s46, s46, s47")
    a(f"s_mul_i32 s47, s46, {DM*2}")
    a(f"v_xor_b32 v6, v4, v5\nv_mul_u32_u24 v3, {DM*2}, v4\nv_lshl_add_u32 v3, v6, 4, v3\nv_add_u32 v6, {8*DM*2 - 1024}, v3")
    a(f"s_lshl_b32 s61, s60, 7\ns_mul_i32 s63, s3, 18432\ns_add_u32 s63, s63, {XL}\ns_mov_b32 s64, s63")
    a("s_waitcnt lgkmcnt(0)")
    srd(a, 16, 4, 0, T*DM*2)
    X0 = 16
    for p in range(9):
        a("s_mov_b32 m0, s64\ns_add_u32 s62, s47, s61\ns_add_u32 s64, s64, 2048")
        a("buffer_load_dwordx4 v3, s[16:19], s62 offen lds\nbuffer_load_dwordx4 v6, s[16:19], s62 offen offset:1024 lds")
        a(f"s_add_u32 s61, s61, 128\ns_cmp_eq_u32 s61, {DM*2}\ns_cselect_b32 s61, 0, s61")
    if OPT.get("k1_xfirst", False): a("s_barrier")
    st(0)
    ws_srd(a, 32, "Q", 14)
    ws_srd(a, 36, "KV", 14)
    ws_srd(a, 40, "MEAN1", 14)
    ws_srd(a, 68, "XC", 14)
    a("v_and_b32 v7, 7, v1\nv_xor_b32 v8, v2, v7\nv_lshlrev_b32 v8, 4, v8\nv_lshl_add_u32 v8, v1, 7, v8\nv_add_u32 v8, s63, v8\nv_xor_b32 v9, 64, v8")
    AR = 172
    a("v_lshrrev_b32 v10, 2, v1\nv_and_b32 v11, 3, v1\nv_lshl_add_u32 v12, v2, 3, v10")
    a("v_lshrrev_b32 v13, 1, v10\nv_and_b32 v14, 1, v2\nv_lshl_add_u32 v13, v14, 1, v13")
    a("v_lshlrev_b32 v15, 7, v12\nv_lshl_add_u32 v15, v11, 3, v15")
    for j in range(4):
        a(f"v_xor_b32 v7, {j}, v13\nv_lshl_add_u32 v{AR+j}, v7, 5, v15")
    a("v_lshlrev_b32 v15, 6, v12\nv_lshl_add_u32 v15, v11, 3, v15\nv_add_u32 v15, 4096, v15")
    for j in range(2):
        a(f"v_xor_b32 v7, {j}, v14\nv_lshl_add_u32 v{AR+4+j}, v7, 5, v15")
    for i in range(6): a(f"v_add_u32 v{AR+6+i}, {9*6144}, v{AR+i}")
    a(f"v_lshlrev_b32 v7, 5, v10\nv_lshl_add_u32 v7, v11, 3, v7\nv_lshl_add_u32 v7, v14, 7, v7\nv_lshl_add_u32 v{AR+12}, v2, 8, v7\nv_xor_b32 v{AR+13}, 128, v{AR+12}")
    a(f"s_mov_b32 s56, {ONES}\ns_mov_b32 s57, 0x00003f80\ns_mov_b32 s58, 0x3f800000")
    for i in range(4): a(f"v_mov_b32 v{4+i}, 0")
    for p in range(10):
        if p < 9:
            a(f"s_waitcnt vmcnt({16 - 2*p})")
            a(f"ds_read_b128 v[{X0+8*p}:{X0+8*p+3}], v8 offset:{2048*p}\nds_read_b128 v[{X0+8*p+4}:{X0+8*p+7}], v9 offset:{2048*p}")
        if p > 0:
            a(f"s_waitcnt lgkmcnt({2 if p < 9 else 0})")
            for i in range(8*(p-1), 8*p):
                a(f"v_dot2_f32_bf16 v{4+i%4}, v{X0+i}, s56, v{4+i%4}")
    st(1)
    a("s_nop 2\nv_add_f32 v4, v4, v5\nv_add_f32 v6, v6, v7\nv_add_f32 v4, v4, v6")
    sum_g(a, 4, 5)
    a(f"v_mul_f32 v4, {f32bits(-1.0/DM)}, v4")
    for i in range(4): a(f"v_mov_b32 v{8+i}, 0")
    ACC, WF, CT = 88, 120, 188
    def center(ks):
        L = []
        for r in range(4):
            L += [f"v_dot2_f32_bf16 v{CT+2*r}, v{X0+4*ks+r}, s57, v4", f"v_dot2_f32_bf16 v{CT+2*r+1}, v{X0+4*ks+r}, s58, v4"]
        L += sq(ks - 1) if ks > 0 else ["s_nop 2"]
        L += [f"v_cvt_pk_bf16_f32 v{X0+4*ks+r}, v{CT+2*r}, v{CT+2*r+1}" for r in range(4)]
        return L
    def sq(ks): return [f"v_dot2_f32_bf16 v{8+r}, v{X0+4*ks+r}, v{X0+4*ks+r}, v{8+r}" for r in range(4)]
    def rstd():
        for x in sq(17): a(x)
        a("s_nop 2\nv_add_f32 v8, v8, v9\nv_add_f32 v10, v10, v11\nv_add_f32 v8, v8, v10")
        sum_g(a, 8, 9)
        a(f"v_mov_b32 v9, {f32bits(1e-5)}\nv_fmac_f32 v9, {f32bits(1.0/DM)}, v8\nv_rsq_f32 v5, v9\ns_nop 0")
    a("s_cmp_eq_u32 s45, 6\ns_cbranch_scc1 K1_kvgemm")
    def qread(ks, j):
        hi = ks >= 9
        off = (ks - 9 * hi) * 6144
        vb = AR + 6 * hi + j
        w = WF + ((ks % 2) * 6 + j) * 4
        return [f"ds_read_b64_tr_b16 v[{w}:{w+1}], v{vb} offset:{off}", f"ds_read_b64_tr_b16 v[{w+2}:{w+3}], v{vb} offset:{off + (512 if j < 4 else 256)}"]
    for ks in range(18):
        for x in center(ks): a(x)
    rstd()
    st(6)
    a("s_barrier")
    st(2)
    for j in range(6):
        for x in qread(0, j): a(x)
    for ks in range(18):
        if ks in (5, 11):
            st(4 + ks); a("s_barrier"); st(5 + ks)
        for j in range(6):
            a(f"s_waitcnt lgkmcnt({10 if ks < 17 else 10 - 2*j})")
            w = WF + ((ks % 2) * 6 + j) * 4
            c = "0" if ks == 0 else f"v[{ACC+4*j}:{ACC+4*j+3}]"
            a(f"v_mfma_f32_16x16x32_bf16 v[{ACC+4*j}:{ACC+4*j+3}], v[{w}:{w+3}], v[{X0+4*ks}:{X0+4*ks+3}], {c}")
            if ks < 17:
                for x in qread(ks + 1, j): a(x)
    st(3)
    a(f"v_mul_f32 v6, {f32bits(QSCALE)}, v5")
    a("v_lshlrev_b32 v3, 3, v0")
    a(f"s_lshr_b32 s48, s46, 5\ns_mul_i32 s48, s48, {4*9216}\ns_and_b32 s49, s3, 1\ns_mul_i32 s49, s49, 4608\ns_add_u32 s48, s48, s49")
    a("s_mul_i32 s49, s45, 6\ns_and_b32 s50, s45, 1\ns_lshl_b32 s51, s50, 1\ns_add_u32 s51, s51, s49\ns_lshl_b32 s50, s50, 2\ns_sub_u32 s52, s49, s50")
    for j in range(6):
        b = ACC + 4*j
        a(f"s_add_u32 s53, s{51 if j < 4 else 52}, {j}\ns_mul_i32 s54, s53, 57\ns_lshr_b32 s54, s54, 9\ns_mul_i32 s54, s54, 4608\ns_lshl_b32 s53, s53, 9\ns_add_u32 s53, s53, s54\ns_add_u32 s53, s53, s48")
        for r in range(4): a(f"v_mul_f32 v{b+r}, v{b+r}, v6")
        a(f"v_cvt_pk_bf16_f32 v{b}, v{b}, v{b+1}\nv_cvt_pk_bf16_f32 v{b+1}, v{b+2}, v{b+3}")
        a(f"buffer_store_dwordx2 v[{b}:{b+1}], v3, s[32:35], s53 offen")
    a("s_branch K1_fin")
    a("K1_loader:")
    if OPT["codepf"]:
        a("s_cmp_lt_u32 s2, 248\ns_cbranch_scc1 K1_nopf")
        a("s_getpc_b64 s[58:59]\nK1_pc:\ns_sub_u32 s58, s58, K1_pc-k1_kernel\ns_subb_u32 s59, s59, 0")
        a("s_sub_u32 s56, s3, 4\ns_lshl_b32 s56, s56, 13\nv_lshlrev_b32 v20, 7, v0\nv_add_u32 v20, s56, v20\nv_mov_b32 v21, k3_kernel-k1_kernel-4\nv_min_u32 v20, v20, v21\nglobal_load_dword v22, v20, s[58:59]")
        a("K1_nopf:")
    a("s_cmp_eq_u32 s45, 7\ns_cbranch_scc1 K1_end")
    a("s_sub_u32 s3, s3, 4")
    a("s_cmp_eq_u32 s45, 6\ns_cbranch_scc1 K1_kvload")
    a("v_and_b32 v6, 1, v2\ns_and_b32 s48, s3, 1\ns_lshl_b32 s48, s48, 2\nv_lshlrev_b32 v6, 1, v6\nv_or_b32 v6, s48, v6\nv_xor_b32 v6, v6, v5")
    a(f"v_mul_u32_u24 v5, {DM*2}, v4\nv_lshl_add_u32 v5, v6, 4, v5")
    a("v_lshrrev_b32 v7, 5, v0\nv_lshlrev_b32 v7, 1, v7\nv_and_b32 v8, 3, v0\nv_xor_b32 v7, v7, v8\nv_lshrrev_b32 v8, 2, v0")
    a(f"v_mul_u32_u24 v8, {DM*2}, v8\nv_lshl_add_u32 v8, v7, 4, v8")
    a("s_mul_i32 s48, s45, 192\ns_and_b32 s53, s45, 1\ns_lshl_b32 s54, s53, 6\ns_add_u32 s49, s48, s54\ns_xor_b32 s53, s53, 1\ns_lshl_b32 s53, s53, 7\ns_add_u32 s50, s48, s53")
    a(f"s_mul_i32 s53, s3, {8*DM*2}\ns_add_u32 s49, s49, s53\ns_mul_i32 s53, s3, {16*DM*2}\ns_add_u32 s50, s50, s53")
    a("s_lshl_b32 s51, s3, 10")
    a("s_lshr_b32 s52, s3, 1\ns_mul_i32 s52, s52, 6144\ns_and_b32 s53, s3, 1\ns_lshl_b32 s53, s53, 10\ns_add_u32 s52, s52, s53\ns_add_u32 s52, s52, 4096")
    a(f"s_mul_i32 s61, s60, {64*DM*2}")
    a("s_waitcnt lgkmcnt(0)")
    srd(a, 20, 6, 0, DM*DM*2)
    if OPT.get("k1_xfirst", False): a("s_barrier")
    for t in range(9):
        if t == 6: a("s_waitcnt vmcnt(9)\ns_barrier")
        a(f"s_add_u32 s62, s49, s61\ns_add_u32 s63, s50, s61\ns_add_u32 s64, s62, {32*DM*2}")
        a(f"s_mov_b32 m0, s51\ns_add_u32 s51, s51, 6144\nbuffer_load_dwordx4 v5, s[20:23], s62 offen lds")
        a(f"s_mov_b32 m0, s52\ns_add_u32 s52, s52, 12288\nbuffer_load_dwordx4 v8, s[20:23], s63 offen lds")
        a(f"s_mov_b32 m0, s51\ns_add_u32 s51, s51, 6144\nbuffer_load_dwordx4 v5, s[20:23], s64 offen lds")
        a(f"s_add_u32 s61, s61, {64*DM*2}\ns_cmp_eq_u32 s61, {DM*DM*2}\ns_cselect_b32 s61, 0, s61")
    a("s_waitcnt vmcnt(9)\ns_barrier\ns_waitcnt vmcnt(0)\ns_barrier")
    a("s_branch K1_end")
    a("K1_kvload:")
    a("s_waitcnt lgkmcnt(0)")
    srd(a, 24, 8, 0, DM*DH*2)
    srd(a, 28, 10, 0, DM*DH*2)
    a("s_lshl_b32 s48, s3, 6\nv_add_u32 v4, s48, v0")
    KVT = 100
    if OPT.get("k1_xfirst", False): a("s_barrier")
    for it in range(3):
        a(f"v_add_u32 v5, {256*it}, v4\nv_mul_u32_u24 v{6+it}, 36, v5")
        for m, sd in enumerate((24, 28)):
            b = KVT + (it*2 + m) * 12
            a(f"buffer_load_dwordx4 v[{b}:{b+3}], v{6+it}, s[{sd}:{sd+3}], 0 offen")
            a(f"buffer_load_dwordx4 v[{b+4}:{b+7}], v{6+it}, s[{sd}:{sd+3}], 0 offen offset:16")
            a(f"buffer_load_dword v{b+8}, v{6+it}, s[{sd}:{sd+3}], 0 offen offset:32")
    a("s_lshl_b32 s61, s60, 1")
    for it in range(3):
        a(f"v_add_u32 v5, {256*it}, v4")
        a(f"v_lshrrev_b32 v9, 5, v5\nv_subrev_u32 v9, s61, v9\nv_add_u32 v12, 18, v9\nv_min_u32 v9, v9, v12")
        a(f"v_mul_u32_u24 v9, 3072, v9\nv_bfe_u32 v10, v5, 3, 2\nv_lshl_add_u32 v9, v10, 8, v9")
        a(f"v_and_b32 v10, 1, v10\nv_lshlrev_b32 v10, 2, v10\nv_and_b32 v11, 7, v5\nv_xor_b32 v10, v10, v11\nv_lshl_add_u32 v{6+it}, v10, 5, v9")
    a("s_waitcnt vmcnt(0)")
    for it in range(3):
        if it == 2:
            a("s_cmp_lg_u32 s3, 0\ns_cbranch_scc1 K1_kvskip")
        for m in range(2):
            b = KVT + (it*2 + m) * 12
            a(f"ds_write_b128 v{6+it}, v[{b}:{b+3}] offset:{1024*m}\nds_write_b128 v{6+it}, v[{b+4}:{b+7}] offset:{1024*m+16}")
            a(f"ds_write_b32 v{6+it}, v{b+8} offset:{2048+4*m}")
    a("K1_kvskip:\ns_waitcnt lgkmcnt(0)\ns_barrier\ns_branch K1_end")
    a("K1_kvgemm:")
    a(f"v_lshlrev_b32 v3, 4, v0\ns_lshr_b32 s48, s46, 4\ns_mul_i32 s48, s48, 18432\ns_lshl_b32 s61, s60, 11")
    for p in range(9):
        a("s_add_u32 s62, s48, s61")
        a(f"buffer_store_dwordx4 v[{X0+8*p}:{X0+8*p+3}], v3, s[68:71], s62 offen\nbuffer_store_dwordx4 v[{X0+8*p+4}:{X0+8*p+7}], v3, s[68:71], s62 offen offset:1024")
        a(f"s_add_u32 s61, s61, 2048\ns_cmp_eq_u32 s61, 18432\ns_cselect_b32 s61, 0, s61")
    def kread(ks):
        L = []
        for j in range(3):
            w = WF + ((ks % 2) * 3 + j) * 4
            L += [f"ds_read_b64_tr_b16 v[{w}:{w+1}], v{AR+12} offset:{ks*3072+j*1024}", f"ds_read_b64_tr_b16 v[{w+2}:{w+3}], v{AR+13} offset:{ks*3072+j*1024}"]
        return L
    for ks in range(18):
        for x in center(ks): a(x)
    rstd()
    a("s_barrier")
    for x in kread(0): a(x)
    for ks in range(18):
        x = f"v[{X0+4*ks}:{X0+4*ks+3}]"
        def W(j):
            w = WF + ((ks % 2) * 3 + j) * 4
            return f"v[{w}:{w+3}]"
        def C(i): return f"v[{ACC+4*i}:{ACC+4*i+3}]"
        c = (lambda i: "0") if ks == 0 else C
        fill = kread(ks + 1) if ks < 17 else []
        a("s_waitcnt lgkmcnt(0)\ns_nop 0")
        ms = [f"v_mfma_f32_16x16x32_bf16 {C(0)}, {W(0)}, {x}, {c(0)}",
              f"v_mfma_f32_16x16x32_bf16 {C(1)}, {x}, {W(1)}, {c(1)}",
              f"v_mfma_f32_16x16x32_bf16 {C(2)}, {W(2)}, {x}, {c(2)}",
              f"v_mfma_f32_16x16x32_bf16 {C(3)}, {x}, {W(2)}, {c(3)}"]
        for m in ms:
            a(m)
            for y in fill[:3]: a(y)
            fill = fill[3:]
    a("v_lshlrev_b32 v6, 4, v2")
    for r in range(4):
        a(f"ds_bpermute_b32 v{12+r}, v6, v5 offset:{4*r}")
    a(f"s_mul_i32 s48, s44, {PAIR}")
    a("v_sub_f32 v7, 0, v4\nv_lshlrev_b32 v8, 2, v1\nv_lshl_add_u32 v8, v2, 20, v8\ns_lshl_b32 s49, s46, 2")
    a("buffer_store_dword v7, v8, s[40:43], s49 offen")
    a("s_waitcnt lgkmcnt(0)")
    b = ACC
    for r in range(4): a(f"v_mul_f32 v{b+r}, v{b+r}, v5")
    a(f"v_cvt_pk_bf16_f32 v{b}, v{b}, v{b+1}\nv_cvt_pk_bf16_f32 v{b+1}, v{b+2}, v{b+3}")
    a("v_lshrrev_b32 v7, 1, v2\nv_lshlrev_b32 v7, 9, v7\nv_lshl_add_u32 v7, v1, 4, v7\nv_and_b32 v8, 1, v2\nv_lshl_add_u32 v7, v8, 3, v7")
    a("s_lshr_b32 s49, s3, 1\ns_lshl_b32 s49, s49, 10\ns_and_b32 s50, s3, 1\ns_lshl_b32 s50, s50, 8\ns_add_u32 s49, s49, s50\ns_add_u32 s49, s49, s48")
    a(f"buffer_store_dwordx2 v[{b}:{b+1}], v7, s[36:39], s49 offen")
    b = ACC + 8
    a(f"v_mul_f32 v{b}, v{b}, v5\nv_mul_f32 v{b+1}, v{b+1}, v5\nv_cvt_pk_bf16_f32 v{b}, v{b}, v{b+1}")
    a("v_lshlrev_b32 v7, 2, v1\nv_lshl_add_u32 v7, v2, 20, v7\ns_lshl_b32 s49, s3, 6\ns_add_u32 s49, s49, s48")
    a(f"buffer_store_dword v{b}, v7, s[36:39], s49 offen offset:2048")
    a("v_and_b32 v8, 1, v2\nv_mul_u32_u24 v8, 19, v8\nv_add_u32 v8, v8, v1\nv_lshlrev_b32 v8, 4, v8\nv_lshrrev_b32 v9, 1, v2\nv_lshl_add_u32 v8, v9, 3, v8")
    a("s_mul_i32 s49, s3, 608\ns_add_u32 s49, s49, s48")
    for i, b in enumerate((ACC + 4, ACC + 12)):
        for r in range(4): a(f"v_mul_f32 v{b+r}, v{b+r}, v{12+r}")
        a(f"v_cvt_pk_bf16_f32 v{b}, v{b}, v{b+1}\nv_cvt_pk_bf16_f32 v{b+1}, v{b+2}, v{b+3}")
        if i == 0:
            a(f"buffer_store_dwordx2 v[{b}:{b+1}], v8, s[36:39], s49 offen offset:2304")
        else:
            a(f"v_cmp_eq_u32 vcc, 4, v1\nv_mov_b32 v9, {ONES}\ns_nop 1\nv_cndmask_b32 v{b}, v{b}, v9, vcc\nv_cndmask_b32 v{b+1}, v{b+1}, v9, vcc")
            a("v_subrev_u32 v9, 2, v1\nv_cmp_gt_u32 vcc, 3, v9\ns_and_saveexec_b64 s[54:55], vcc")
            a(f"buffer_store_dwordx2 v[{b}:{b+1}], v8, s[36:39], s49 offen offset:{2304 + 14*16}")
            a("s_mov_b64 exec, -1")
    a("s_branch K1_fin")
    a("K1_wbar:\ns_waitcnt lgkmcnt(0)")
    srd(a, 16, 12, 0, DM*DM*2)
    ws_srd(a, 20, "WBAR", 14)
    a("s_cmp_ge_u32 s44, 18\ns_cbranch_scc1 K1_fin")
    a("v_lshrrev_b32 v3, 3, v0\nv_and_b32 v5, 7, v0")
    a("s_cmp_ge_u32 s44, 16\ns_cbranch_scc1 K1_wb_hi")
    a("s_mul_i32 s45, s44, 36\ns_lshr_b32 s46, s3, 1\ns_mul_i32 s46, s46, 18\ns_add_u32 s45, s45, s46\ns_and_b32 s46, s3, 1\ns_lshl_b32 s46, s46, 2\ns_add_u32 s45, s45, s46")
    a("v_lshrrev_b32 v4, 2, v3\nv_lshlrev_b32 v4, 3, v4\nv_and_b32 v6, 3, v3\nv_add_u32 v4, v4, v6")
    a("s_branch K1_wb_go")
    a("K1_wb_hi:")
    a("s_sub_u32 s45, s44, 16\ns_mul_i32 s45, s45, 288\ns_mul_i32 s46, s3, 72\ns_add_u32 s45, s45, s46\ns_add_u32 s45, s45, 16")
    a("v_lshrrev_b32 v4, 1, v3\nv_mul_u32_u24 v4, 18, v4\nv_and_b32 v6, 1, v3\nv_add_u32 v4, v4, v6")
    a("K1_wb_go:")
    a(f"s_mul_i32 s45, s45, {DM*2}\nv_mul_u32_u24 v4, {DM*2}, v4\nv_lshl_add_u32 v4, v5, 4, v4")
    for i in range(9):
        a(f"buffer_load_dwordx4 v[{16+4*i}:{19+4*i}], v4, s[16:19], s45 offen offset:{128*i}")
    a(f"s_mov_b32 s56, {ONES}\nv_mov_b32 v6, 0\nv_mov_b32 v7, 0\ns_waitcnt vmcnt(0)")
    for i in range(36):
        a(f"v_dot2_f32_bf16 v{6+i%2}, v{16+i}, s56, v{6+i%2}")
    a("s_nop 2\nv_add_f32 v6, v6, v7\ns_nop 1")
    for x in (1, 2, 4):
        a(f"ds_swizzle_b32 v7, v6 offset:{(x << 10) | 0x1f}\ns_waitcnt lgkmcnt(0)\nv_add_f32 v6, v6, v7")
    a(f"v_mul_f32 v6, {f32bits(1.0/DM)}, v6")
    a("v_cvt_pk_bf16_f32 v7, v6, v6\nv_lshlrev_b32 v8, 16, v7\nv_sub_f32 v8, v6, v8\nv_cvt_pk_bf16_f32 v8, v8, v8")
    a("v_lshlrev_b32 v9, 5, v5\nv_lshl_add_u32 v9, v3, 1, v9")
    a(f"s_lshl_b32 s46, s44, 10\ns_lshl_b32 s47, s3, 8\ns_add_u32 s46, s46, s47")
    a(f"buffer_store_short v7, v9, s[20:23], s46 offen\nbuffer_store_short v8, v9, s[20:23], s46 offen offset:16")
    a("K1_fin:")
    st.finish(14, 3, 4)
    a("K1_end:\ns_endpgm")
    return kernel_desc("k1_kernel", 200)

K2_GRID = 256
K2_LDS = 32 * PAIR + 9216
def k2(a, stamp_k=-1, force_fallback=False):
    st = Stamps(a, stamp_k == 2, 2, 250, 251)
    kernel_begin(a, "k2_kernel")
    a(f"s_cmp_ge_u32 s2, {K2_GRID}\ns_cbranch_scc1 K2_end")
    a(f"s_load_dwordx2 s[14:15], s[0:1], {K_WS}\ns_load_dwordx2 s[4:5], s[0:1], {A_WO}\ns_load_dwordx4 s[8:11], s[0:1], {B_W1}")
    st.start()
    wave_lane(a)
    a("v_and_b32 v1, 31, v0\nv_lshrrev_b32 v2, 5, v0\nv_lshlrev_b32 v3, 4, v0")
    a("s_lshr_b32 s40, s2, 2\ns_and_b32 s41, s2, 3\ns_lshl_b32 s41, s41, 3\ns_add_u32 s41, s41, s3")
    a(f"s_mul_i32 s42, s2, 9216\ns_lshl_b32 s43, s3, 10\ns_add_u32 s42, s42, s43\ns_add_u32 s43, s43, {32*PAIR}")
    a("s_lshl_b32 s44, s3, 10")
    a("s_waitcnt lgkmcnt(0)")
    ws_srd(a, 16, "KV", 14)
    ws_srd(a, 20, "Q", 14)
    Q1, Q2 = 8, 12
    def dma(r):
        txt = f"s_mov_b32 m0, s44\ns_nop 0\nbuffer_load_dwordx4 v3, s[16:19], s44 offen lds\ns_add_u32 s44, s44, 8192"
        if r == 18:
            L = a.label("dm")
            txt = f"s_cmp_ge_u32 s3, 4\ns_cbranch_scc1 {L}\n{txt}\n{L}:"
        return txt
    a("s_cmp_lg_u32 s3, 0\ns_cbranch_scc1 K2_q1")
    a(f"s_mov_b32 m0, {32*PAIR + 8192}\ns_add_u32 s45, s42, 8192\nbuffer_load_dwordx4 v3, s[20:23], s45 offen lds")
    a("K2_q1:")
    a("s_mov_b32 m0, s43\ns_nop 0\nbuffer_load_dwordx4 v3, s[20:23], s42 offen lds")
    a(dma(0)); a(dma(1)); a(dma(2))
    a(f"v_mov_b32 v{Q2+1}, 0")
    ws_srd(a, 24, "O", 14)
    a(f"v_lshrrev_b32 v4, 4, v1\nv_mul_u32_u24 v4, 4608, v4\nv_and_b32 v5, 15, v1\nv_lshl_add_u32 v4, v5, 3, v4\nv_add_u32 v4, {32*PAIR}, v4")
    a("s_mul_i32 s45, s3, 9\nv_lshlrev_b32 v5, 2, v2\nv_add_u32 v5, s45, v5")
    for i in range(5):
        if i < 4: a(f"v_add_u32 v30, {i}, v5")
        else: a("s_add_u32 s45, s45, 8\nv_mov_b32 v30, s45")
        a(f"v_lshrrev_b32 v31, 1, v30\nv_lshl_add_u32 v31, v31, 7, v4\nv_and_b32 v30, 1, v30\nv_lshl_add_u32 v{25+i}, v30, 2, v31")
    SEG = 13
    VKA, VK2, VVA = 14, 17, 20
    a(f"v_mul_u32_u24 v23, 19, v2\nv_add_u32 v23, v23, v1\nv_lshlrev_b32 v23, 4, v23\nv_mov_b32 v24, 0x40000\nv_cmp_gt_u32 vcc, 19, v1\ns_nop 1\nv_cndmask_b32 v{VVA}, v24, v23, vcc")
    a(f"v_mov_b32 v{VKA}, v3\nv_lshlrev_b32 v{VK2}, 2, v0")
    for b in (VKA, VK2, VVA):
        a(f"v_add_u32 v{b+1}, {SEG*PAIR}, v{b}\nv_add_u32 v{b+2}, {2*SEG*PAIR}, v{b}")
    SA, SB, P, O, NM = 32, 64, 96, 112, 128
    KF, K2F, VF = 144, 160, 164
    a(f"v_mov_b32 v{K2F+1}, 0\nv_mov_b32 v{K2F+3}, 0")
    for r in range(16): a(f"v_mov_b32 v{O+r}, 0")
    PR = 208
    OWF = WS["WF"][0] - WS["WOF"][0]
    def rp_setup(rnd):
        L = a.label("rp")
        SD = 64 + 4 * rnd
        SB_ = 72 + 4 * rnd
        SO = 82 + 4 * rnd
        vsrc, dst = 242 + rnd, 240 + rnd
        t = []
        A = t.append
        if rnd == 0:
            A(f"s_add_u32 s60, s14, {WS['WOF'][0]}\ns_addc_u32 s61, s15, 0\ns_mov_b32 s62, {WS['WF'][0] + WS['WF'][1] - WS['WOF'][0]}\ns_mov_b32 s63, 0x00020000")
            A("v_and_b32 v6, 15, v0\nv_lshrrev_b32 v7, 4, v0")
            A("s_mov_b32 s80, 0x05040100\ns_mov_b32 s81, 0x07060302")
        A(f"s_mul_i32 s47, s2, 11\ns_add_u32 s47, s47, s3\ns_add_u32 s47, s47, {8*rnd}")
        if rnd == 1:
            A("s_cmp_ge_u32 s3, 3\ns_cselect_b32 s47, 2800, s47")
        A(f"s_mul_hi_u32 s48, s47, {(2**32 + 161)//162}\ns_mul_i32 s49, s48, 162\ns_sub_u32 s47, s47, s49")
        A(f"s_mul_hi_u32 s49, s47, {(2**32 + 8)//9}\ns_mul_i32 s50, s49, 9\ns_sub_u32 s50, s47, s50")
        A(f"s_mov_b32 s{SD+3}, 0x00020000\ns_lshl_b32 s54, s50, 7")
        A(f"s_cmp_ge_u32 s48, 16\ns_cbranch_scc1 {L}_wo")
        A(f"s_lshr_b32 s45, s48, 1\ns_and_b32 s46, s48, 1\ns_mov_b32 s{SD+2}, {DM*F*2}\nv_mov_b32 v{dst}, v3")
        A(f"s_mul_i32 s53, s45, 1296\ns_mul_i32 s55, s46, 162\ns_add_u32 s53, s53, s55\ns_mul_i32 s55, s49, 3\ns_add_u32 s53, s53, s55\ns_add_u32 s53, s53, {OWF//1024}")
        for q in range(4):
            A(f"s_lshl_b32 s55, s50, 2\ns_add_u32 s55, s55, {q}\ns_mul_i32 s56, s55, 86\ns_lshr_b32 s56, s56, 8\ns_mul_i32 s57, s56, 86\ns_lshr_b32 s57, s57, 8")
            A(f"s_mul_i32 s57, s57, 162\ns_mul_i32 s58, s56, 51\ns_add_u32 s57, s57, s58")
            A(f"s_lshr_b32 s58, s56, 2\ns_mul_i32 s58, s58, 1242\ns_mul_i32 s56, s56, 321\ns_sub_u32 s56, s56, s58")
            A(f"s_cmp_eq_u32 s46, 1\ns_cselect_b32 s56, s57, s56\ns_add_u32 s55, s55, s56\ns_add_u32 s55, s55, s53\ns_lshl_b32 s{SO+q}, s55, 10")
        A(f"s_cmp_eq_u32 s46, 1\ns_cbranch_scc1 {L}_w2")
        A(f"s_mov_b32 s{SD}, s8\ns_mov_b32 s{SD+1}, s9\ns_mul_i32 s53, s49, {32*F*2}\ns_mul_i32 s55, s45, {DM*2}\ns_add_u32 s53, s53, s55\ns_add_u32 s{SB_}, s53, s54")
        A(f"s_mov_b32 s{SB_+1}, {4*F*2}\ns_mov_b32 s{SB_+2}, {2*F*2}\ns_mov_b32 s{SB_+3}, {F*2}")
        A(f"v_mul_u32_u24 v{vsrc}, {8*F*2}, v7\nv_lshl_add_u32 v{vsrc}, v6, 3, v{vsrc}\ns_branch {L}_done")
        A(f"{L}_w2:")
        A(f"s_mov_b32 s{SD}, s10\ns_mov_b32 s{SD+1}, s11\ns_lshr_b32 s53, s49, 1\ns_lshl_b32 s53, s53, 6\ns_and_b32 s55, s49, 1\ns_lshl_b32 s55, s55, 1\ns_add_u32 s53, s53, s55")
        A(f"s_mul_i32 s55, s45, {DM}\ns_add_u32 s53, s53, s55\ns_mul_i32 s53, s53, {DM*2}\ns_add_u32 s{SB_}, s53, s54")
        A(f"s_mov_b32 s{SB_+1}, {DM*2}\ns_mov_b32 s{SB_+2}, {8*DM*2}\ns_mov_b32 s{SB_+3}, {4*DM*2}")
        A(f"v_mul_u32_u24 v{vsrc}, {16*DM*2}, v7\nv_lshl_add_u32 v{vsrc}, v6, 3, v{vsrc}\ns_branch {L}_done")
        A(f"{L}_wo:")
        A(f"s_mov_b32 s{SD}, s4\ns_mov_b32 s{SD+1}, s5\ns_cmp_eq_u32 s48, 16\ns_cselect_b32 s{SD+2}, {DM*DM*2}, 0\ns_cselect_b32 s56, 0, 0x40000000")
        A(f"s_mul_i32 s55, s49, 6144\ns_add_u32 s{SO}, s56, s55\ns_add_u32 s{SO+1}, s{SO}, 1024\ns_add_u32 s{SO+2}, s{SO}, 16\ns_add_u32 s{SO+3}, s{SO}, 1040")
        A(f"s_lshl_b32 s55, s50, 1\nv_lshrrev_b32 v245, 3, v6\nv_add_u32 v245, s55, v245\nv_mul_u32_u24 v246, 86, v245\nv_lshrrev_b32 v246, 8, v246")
        A(f"v_mul_u32_u24 v246, 51, v246\nv_add_u32 v245, v245, v246\nv_lshlrev_b32 v245, 11, v245")
        A(f"v_and_b32 v246, 7, v6\nv_lshl_add_u32 v245, v246, 5, v245\nv_lshl_add_u32 v{dst}, v7, 8, v245")
        A(f"s_mov_b32 s{SB_+3}, {DM*2}\ns_cmp_ge_u32 s49, 16\ns_cbranch_scc1 {L}_wo2")
        A(f"s_mul_i32 s53, s49, {36*DM*2}\ns_mov_b32 s{SB_+1}, {8*DM*2}\ns_mov_b32 s{SB_+2}, {2*DM*2}")
        A(f"v_lshrrev_b32 v246, 1, v7\nv_mul_u32_u24 v246, 18, v246\nv_and_b32 v247, 1, v7\nv_lshl_add_u32 v246, v247, 2, v246\ns_branch {L}_wo3")
        A(f"{L}_wo2:")
        A(f"s_sub_u32 s53, s49, 16\ns_mul_i32 s53, s53, {288*DM*2}\ns_add_u32 s53, s53, {16*DM*2}\ns_mov_b32 s{SB_+1}, {36*DM*2}\ns_mov_b32 s{SB_+2}, {18*DM*2}")
        A(f"v_mul_u32_u24 v246, 72, v7")
        A(f"{L}_wo3:")
        A(f"s_add_u32 s{SB_}, s53, s54\nv_mul_u32_u24 v{vsrc}, {DM*2}, v246\nv_lshl_add_u32 v{vsrc}, v6, 3, v{vsrc}")
        A(f"{L}_done:")
        return "\n".join(t)
    def rp_load(rnd, s_):
        SD, SB_ = 64 + 4 * rnd, 72 + 4 * rnd
        raw = PR + 16 * rnd
        t = f"s_mov_b32 s55, s{SB_}\n"
        if s_ & 4: t += f"s_add_u32 s55, s55, s{SB_+1}\n"
        if s_ & 2: t += f"s_add_u32 s55, s55, s{SB_+2}\n"
        if s_ & 1: t += f"s_add_u32 s55, s55, s{SB_+3}\n"
        return t + f"buffer_load_dwordx2 v[{raw+2*s_}:{raw+2*s_+1}], v{242+rnd}, s[{SD}:{SD+3}], s55 offen" + (" nt" if OPT["k2_nt"] else "")
    def rp_store(rnd, q_):
        raw = PR + 16 * rnd
        t = 196 + 4 * (q_ % 2)
        L = [f"v_perm_b32 v{t+j}, v{raw+2*(2*j+1)+(q_>>1)}, v{raw+2*(2*j)+(q_>>1)}, s{80+(q_&1)}" for j in range(4)]
        L.append(f"buffer_store_dwordx4 v[{t}:{t+3}], v{240+rnd}, s[60:63], s{82+4*rnd+q_} offen" + OPT.get("k2_st", " sc1"))
        return "\n".join(L)
    def w3(txt):
        L = a.label("w3")
        return f"s_cmp_ge_u32 s3, 3\ns_cbranch_scc1 {L}\n{txt}\n{L}:"
    def seg(p): return p // SEG, (p % SEG) * PAIR
    def rdK(i, p):
        sg, o = seg(p)
        return [f"ds_read_b128 v[{KF+8*i}:{KF+8*i+3}], v{VKA+sg} offset:{o}",
                f"ds_read_b128 v[{KF+8*i+4}:{KF+8*i+7}], v{VKA+sg} offset:{o+1024}",
                f"ds_read_b32 v{K2F+2*i}, v{VK2+sg} offset:{o+2048}"]
    def rdV(i, p):
        sg, o = seg(p)
        return [f"ds_read_b128 v[{VF+16*i+4*q}:{VF+16*i+4*q+3}], v{VVA+sg} offset:{o+2304+608*q}" for q in range(4)]
    def qk(S, i, c):
        return [f"v_mfma_f32_32x32x16_bf16 v[{S}:{S+15}], v[{KF+8*i}:{KF+8*i+3}], v[{Q1}:{Q1+3}], {c}",
                f"v_mfma_f32_32x32x16_bf16 v[{S+16}:{S+31}], v[{KF+8*i+4}:{KF+8*i+7}], v[{Q1}:{Q1+3}], {c}",
                f"v_mfma_f32_32x32x4_2b_bf16 v[{S}:{S+31}], v[{K2F+2*i}:{K2F+2*i+1}], v[{Q2}:{Q2+1}], v[{S}:{S+31}]"]
    def pvm(vs_, u):
        return f"v_mfma_f32_32x32x16_bf16 v[{O}:{O+15}], v[{VF+16*vs_+4*u}:{VF+16*vs_+4*u+3}], v[{P+4*u}:{P+4*u+3}], v[{O}:{O+15}]"
    def rowmax(S, dst, first):
        L = []; r = 0
        if first:
            L.append(f"v_max_f32 v{dst}, v{S}, v{S+1}"); r = 2
        while r < 32:
            L.append(f"v_max3_f32 v{dst}, v{S+r}, v{S+r+1}, v{dst}"); r += 2
        return L
    def set_nm(src):
        a(f"v_mov_b32 v25, v{src}\ns_nop 1\nv_permlane32_swap_b32 v{src}, v25\ns_nop 1\nv_max_f32 v{src}, v{src}, v25")
        for r in range(16): a(f"v_sub_f32 v{NM+r}, 0, v{src}")
    def E(cur, g):
        b = cur + 4 * g
        return [f"v_exp_f32 v{b+r}, v{b+r}" for r in range(4)] + \
               [f"v_cvt_pk_bf16_f32 v{P+2*g}, v{b}, v{b+1}", f"v_cvt_pk_bf16_f32 v{P+2*g+1}, v{b+2}, v{b+3}"]
    NMr = f"v[{NM}:{NM+15}]"
    if OPT["prio"]: a("s_setprio 1")
    st(0)
    a("s_waitcnt vmcnt(1)\ns_barrier")
    st(1)
    for i in range(5): a(f"ds_read_b32 v{Q1+i}, v{25+i}")
    for x in rdK(0, 0) + rdK(1, 1) + rdV(0, 0): a(x)
    a("s_waitcnt lgkmcnt(7)")
    q = qk(SA, 0, "0")
    a(q[0]); a(q[1]); a("s_nop 9"); a(q[2]); a("s_nop 15\ns_nop 3")
    for x in rowmax(SA, 24, True): a(x)
    if force_fallback:
        a(f"v_add_f32 v24, {f32bits(-100.0)}, v24")
    set_nm(24)
    for r in range(32): a(f"v_add_f32 v{SA+r}, v{SA+r}, v{NM}")
    st(2)
    extra = {i: [] for i in range(32)}
    pre = {i: [] for i in range(32)}
    r = 3
    for i in range(8):
        extra[i] += [dma(r), dma(r + 1)]; r += 2
    pre[1].append("s_waitcnt vmcnt(2)\ns_barrier"); pre[3].append("s_waitcnt vmcnt(2)\ns_barrier"); pre[9].append("s_waitcnt vmcnt(0)\ns_barrier")
    if not OPT.get('k2_norp'):
        pre[8].append(rp_setup(0)); pre[9].insert(0, rp_setup(1))
        for n in range(8):
            extra[9 + n // 2].append(rp_load(0, n))
            extra[13 + n // 2].append(w3(rp_load(1, n)))
        ST0 = OPT.get("k2_st0", 23)
        pre[ST0].append("s_waitcnt vmcnt(0)")
        for n in range(4):
            extra[ST0 + n // 2].append(rp_store(0, n))
            extra[ST0 + 2 + n // 2].append(w3(rp_store(1, n)))
    if OPT["codepf"]:
        L = a.label("cp")
        extra[18].append(f"s_lshr_b32 s56, s2, 3\ns_cmp_ge_u32 s56, CODE_PF_N\ns_cbranch_scc1 {L}\ns_cmp_lg_u32 s3, 0\ns_cbranch_scc1 {L}\n"
                         f"s_getpc_b64 s[58:59]\n{L}_pc:\ns_add_u32 s58, s58, k3_kernel-{L}_pc\ns_addc_u32 s59, s59, 0\n"
                         f"s_lshl_b32 s56, s56, 13\nv_lshlrev_b32 v206, 7, v0\nv_add_u32 v206, s56, v206\nglobal_load_dword v207, v206, s[58:59]\n{L}:")
    for i in range(32):
        cur, nxt = (SA, SB) if i % 2 == 0 else (SB, SA)
        q = qk(nxt, (i + 1) % 2, NMr) if i < 31 else ["", "", ""]
        vs_ = i % 2
        kr = rdK(i % 2, i + 2) if i + 2 < 32 else ["", "", ""]
        vrd = rdV((i + 1) % 2, i + 1) if i < 31 else [""] * 4
        e = [E(cur, g) for g in range(8)]
        ex = extra[i] + ["", ""]
        seq = list(pre[i])
        if OPT["prio"] and i % 5 in (0, OPT["prio"]):
            L = a.label("pr")
            seq.append(f"s_cmp_lt_u32 s3, 4\ns_cbranch_scc1 {L}\ns_setprio {2 if i % 5 == 0 else 0}\n{L}:")
        seq += ["s_waitcnt lgkmcnt(0)", q[0]] + kr[0:2] + e[0]
        seq += [pvm(1 - vs_, 3) if i > 0 else ""] + kr[2:3] + vrd[0:1] + e[1]
        seq += [q[1]] + vrd[1:3] + e[2]
        seq += [pvm(vs_, 0)] + vrd[3:4] + e[3]
        seq += [q[2], ex[0]] + e[4] + e[5][:3]
        seq += [pvm(vs_, 1), ex[1]] + e[5][3:] + e[6][:2]
        seq += [pvm(vs_, 2)] + e[6][2:] + e[7]
        for x in seq:
            if x: a(x)
        if i % 4 == 3: st(8 + i)
    a("s_nop 1"); a(pvm(1, 3))
    st(6)
    a("s_setprio 0\ns_nop 15")
    def bcast_l():
        a(f"v_mov_b32 v25, v{O+10}\nv_mov_b32 v26, v{O+10}\ns_nop 1\nv_permlane32_swap_b32 v25, v26\ns_nop 1")
    bcast_l()
    a(f"v_mov_b32 v26, {f32bits(2.0**60)}\nv_cmp_nle_f32 vcc, v25, v26\ns_nop 4\ns_cbranch_vccz K2_out")
    a("v_mov_b32 v24, 0xff800000")
    for ps in range(2):
        a(f"s_mov_b32 s52, 0\nv_mov_b32 v27, v{VKA}\nv_mov_b32 v28, v{VK2}\nv_mov_b32 v29, v{VVA}")
        a(f"K2_fb{ps}:")
        a(f"ds_read_b128 v[{KF}:{KF+3}], v27\nds_read_b128 v[{KF+4}:{KF+7}], v27 offset:1024\nds_read_b32 v{K2F}, v28 offset:2048")
        if ps:
            for u in range(4): a(f"ds_read_b128 v[{VF+4*u}:{VF+4*u+3}], v29 offset:{2304+608*u}")
        a("s_waitcnt lgkmcnt(0)")
        q = qk(SA, 0, NMr if ps else "0")
        a(q[0]); a(q[1]); a("s_nop 9"); a(q[2]); a("s_nop 15\ns_nop 3")
        if ps == 0:
            for x in rowmax(SA, 24, False): a(x)
        else:
            for g in range(8):
                for x in E(SA, g): a(x)
            a("s_nop 1")
            for u in range(4): a(pvm(0, u))
        a(f"v_add_u32 v27, {PAIR}, v27\nv_add_u32 v28, {PAIR}, v28\nv_add_u32 v29, {PAIR}, v29")
        a(f"s_add_u32 s52, s52, 1\ns_cmp_lt_u32 s52, 32\ns_cbranch_scc1 K2_fb{ps}")
        if ps == 0:
            set_nm(24)
            for r in range(16): a(f"v_mov_b32 v{O+r}, 0")
    a("s_nop 15")
    bcast_l()
    a("K2_out:")
    a(f"v_rcp_f32 v25, v25\ns_nop 0")
    for r in range(10): a(f"v_mul_f32 v{O+r}, v{O+r}, v25")
    for r in range(5): a(f"v_cvt_pk_bf16_f32 v{P+r}, v{O+2*r}, v{O+2*r+1}")
    a(f"v_lshrrev_b32 v26, 4, v1\nv_mul_u32_u24 v26, {18*1024}, v26\nv_and_b32 v27, 15, v1\nv_lshl_add_u32 v26, v27, 4, v26")
    a("v_lshl_add_u32 v27, v2, 8, v26\nv_lshl_add_u32 v28, v2, 24, v26")
    a(f"s_mul_i32 s42, s40, {36*1024}\ns_lshl_b32 s43, s41, 9\ns_add_u32 s43, s43, s42")
    a(f"buffer_store_dwordx4 v[{P}:{P+3}], v27, s[24:27], s43 offen")
    a("s_lshr_b32 s43, s41, 2\ns_lshl_b32 s43, s43, 8\ns_and_b32 s44, s41, 3\ns_lshl_b32 s44, s44, 2\ns_add_u32 s43, s43, s44\ns_add_u32 s43, s43, s42\ns_add_u32 s43, s43, 16384")
    a(f"buffer_store_dword v{P+4}, v28, s[24:27], s43 offen")
    st.finish(14, 3, 8)
    a("K2_end:\ns_endpgm")
    return kernel_desc("k2_kernel", 256)

def gemm_prolog(a):
    wave_lane(a)
    a("v_lshlrev_b32 v2, 4, v0\nv_add_u32 v3, 0x10000, v2\nv_add_u32 v4, 0x20000, v2")
    a("v_and_b32 v5, 15, v0\nv_lshrrev_b32 v6, 4, v0")

K3_GRID = 192
K3_LDS = 128 * 1024
def k3(a, stamp_k=-1):
    st = Stamps(a, stamp_k == 3, 3, 250, 251)
    kernel_begin(a, "k3_kernel")
    a(f"s_cmp_ge_u32 s2, {K3_GRID}\ns_cbranch_scc1 K3_end")
    a(f"s_load_dwordx2 s[14:15], s[0:1], {K_WS}\ns_load_dwordx2 s[4:5], s[0:1], {A_X}")
    st.start()
    gemm_prolog(a)
    a("s_and_b32 s40, s2, 7\ns_lshr_b32 s41, s2, 3\ns_lshl_b32 s44, s40, 2\ns_and_b32 s42, s41, 3\ns_add_u32 s44, s44, s42\ns_lshr_b32 s45, s41, 2")
    a("s_lshl_b32 s46, s44, 2\ns_add_u32 s46, s46, s3")
    a(f"s_mul_i32 s30, s46, {18*1024}")
    a(f"v_mul_u32_u24 v7, {DM*2}, v5\nv_lshl_add_u32 v8, v6, 4, v7")
    a(f"s_mul_i32 s36, s45, {108*1024}\ns_lshl_b32 s37, s3, 10\ns_add_u32 s36, s36, s37")
    a("s_waitcnt lgkmcnt(0)")
    ws_srd(a, 16, "O", 14)
    ws_srd(a, 20, "WOF", 14)
    ws_srd(a, 68, "WBAR", 14)
    ws_srd(a, 24, "XC", 14)
    ws_srd(a, 48, "MEAN1", 14)
    ws_srd(a, 52, "HC", 14)
    ws_srd(a, 56, "MU2", 14)
    ws_srd(a, 60, "SS", 14)
    WR, XR, ACC, XRES = 12, 40, 112, 140
    a(f"s_lshl_b32 s72, s3, 10\ns_add_u32 s73, s72, {108*1024}")
    for i in range(5):
        a("s_mov_b32 m0, s73\ns_add_u32 s73, s73, 4096\nbuffer_load_dwordx4 v2, s[68:71], s72 offen lds\ns_add_u32 s72, s72, 4096")
    def mid():
        a(f"s_mul_i32 s47, s45, 3072\ns_mul_i32 s64, s46, 18432\ns_add_u32 s47, s47, s64")
        for u in range(3):
            a(f"buffer_load_dwordx4 v[{XRES+4*u}:{XRES+4*u+3}], v2, s[24:27], s47 offen offset:{1024*u}")
        a(f"v_lshlrev_b32 v9, 2, v5\ns_lshl_b32 s65, s46, 6\nbuffer_load_dword v10, v9, s[48:51], s65 offen")
        return 4
    gemm_core(a, NW=4, MT=1, NT=6, KS=18, D=OPT.get("k3_D", 8), RING=18, acc0=ACC, xr0=XR, XD=18, wr0=WR, v_xoff=2, v_lane16=2, v_ldsaddr=2,
              srdX=16, sX0=30, srdW=20, sW=36, sM0=37, stamp=st, D0=OPT.get("k3_D0", 3), mid=mid, extra_tile=108*1024, mid_at=OPT.get("k3_mid", 10))
    st(40)
    a("s_waitcnt vmcnt(0)\ns_nop 7")
    e = ACC + 24
    a(f"v_add_f32 v10, v10, v{e}\nv_add_f32 v10, v10, v{e+1}")
    a("v_mov_b32 v11, 0")
    for u in range(3):
        for r in range(4):
            x = XRES + 4 * u + r
            lo, hi = ACC + 8 * u + r, ACC + 8 * u + 4 + r
            a(f"v_lshlrev_b32 v12, 16, v{x}\nv_and_b32 v13, 0xffff0000, v{x}")
            a(f"v_add_f32 v{lo}, v{lo}, v12\nv_add_f32 v{hi}, v{hi}, v13")
            a(f"v_sub_f32 v{lo}, v{lo}, v10\nv_sub_f32 v{hi}, v{hi}, v10")
            a(f"v_cvt_pk_bf16_f32 v{XR+4*u+r}, v{lo}, v{hi}")
            a(f"v_dot2_f32_bf16 v11, v{XR+4*u+r}, v{XR+4*u+r}, v11")
    a(f"s_mul_i32 s47, s46, {18*1024}\ns_mul_i32 s64, s45, 3072\ns_add_u32 s47, s47, s64")
    for u in range(3):
        a(f"buffer_store_dwordx4 v[{XR+4*u}:{XR+4*u+3}], v2, s[52:55], s47 offen offset:{1024*u}")
    sum_g(a, 11, 12)
    a("v_lshlrev_b32 v12, 5, v5\nv_lshl_add_u32 v12, v6, 20, v12\ns_lshl_b32 s47, s46, 9\ns_lshl_b32 s64, s45, 2\ns_add_u32 s47, s47, s64")
    a("buffer_store_dword v11, v12, s[60:63], s47 offen")
    a("s_cmp_lg_u32 s45, 0\ns_cbranch_scc1 K3_fin")
    a("v_lshl_add_u32 v9, v6, 20, v9\nbuffer_store_dword v10, v9, s[56:59], s65 offen")
    a("K3_fin:")
    st.finish(14, 3, 4)
    a("K3_end:\ns_endpgm")
    return kernel_desc("k3_kernel", 256 if (stamp_k == 3 or LIGHT[0]) else 152)

K4_GRID = 256
K4_LDS = 147456
def k4(a, stamp_k=-1):
    st = Stamps(a, stamp_k == 4, 4, 7, 8)
    kernel_begin(a, "k4_kernel")
    a(f"s_cmp_ge_u32 s2, {K4_GRID}\ns_cbranch_scc1 K4_end")
    a(f"s_load_dwordx2 s[14:15], s[0:1], {K_WS}")
    st.start()
    wave_lane(a)
    a("v_lshlrev_b32 v2, 4, v0\nv_add_u32 v3, 0x10000, v2\nv_add_u32 v4, 0x20000, v2")
    SL = OPT.get("k4_sl", 2); lg = SL.bit_length() - 1
    a(f"s_and_b32 s46, s2, 7\ns_lshr_b32 s47, s2, 3\ns_and_b32 s40, s46, {8//SL-1}\ns_lshl_b32 s40, s40, {lg}\ns_and_b32 s48, s47, {SL-1}\ns_add_u32 s40, s40, s48")
    a(f"s_lshr_b32 s41, s46, {3-lg}\ns_lshl_b32 s41, s41, {5-lg}\ns_lshr_b32 s48, s47, {lg}\ns_add_u32 s41, s41, s48")
    a("s_mul_i32 s42, s3, 3\ns_lshr_b32 s43, s42, 1\ns_lshl_b32 s43, s43, 12\ns_and_b32 s44, s42, 1\ns_lshl_b32 s45, s44, 3\ns_add_u32 s43, s43, s45\ns_add_u32 s43, s43, 73728")
    a("v_add_u32 v5, s43, v2")
    a("s_mul_i32 s45, s44, 4080\ns_add_u32 s45, s45, 8\nv_add_u32 v6, s45, v5")
    a(f"s_mul_i32 s30, s41, 73728")
    a(f"s_lshl_b32 s46, s40, 2\ns_add_u32 s46, s46, s3\ns_mul_i32 s31, s46, {324*1024}")
    a(f"s_lshl_b32 s46, s40, 5\ns_add_u32 s46, s46, s41\ns_mul_i32 s32, s46, 73728\ns_mul_i32 s46, s3, 9216\ns_add_u32 s32, s32, s46")
    a("s_waitcnt lgkmcnt(0)")
    ws_srd(a, 16, "HC", 14)
    ws_srd(a, 20, "WF", 14)
    ws_srd(a, 24, "PART", 14)
    ffn_core(a, srdX=16, sX=30, srdW=20, sW=31, srdP=24, sP=32, v_lane16=2, v_h8=5, s_wave=3, RINGF=OPT.get("ringf", 24),
             stamp=st, stflag=OPT.get("k4_st", " sc1"), XPRE=OPT.get("xpre", 9), WPX=OPT.get("wpx", 1), PACE=OPT.get("pace", 3))
    st.finish(14, 3, 4)
    a("K4_end:\ns_endpgm")
    return kernel_desc("k4_kernel", 512)

K5_GRID = 64 * 9
def k5(a, stamp_k=-1):
    st = Stamps(a, stamp_k == 5, 5, 200, 201)
    kernel_begin(a, "k5_kernel")
    a(f"s_cmp_ge_u32 s2, {K5_GRID}\ns_cbranch_scc1 K5_end")
    a(f"s_load_dwordx2 s[14:15], s[0:1], {K_WS}\ns_load_dwordx2 s[4:5], s[0:1], {K_OUT}")
    st.start()
    a("s_mov_b32 s3, 0\nv_lshlrev_b32 v2, 4, v0\nv_and_b32 v5, 15, v0\nv_lshrrev_b32 v6, 4, v0")
    a(f"s_mul_hi_u32 s41, s2, {(2**32+8)//9}\ns_mul_i32 s42, s41, 9\ns_sub_u32 s42, s2, s42")
    a("s_lshl_b32 s43, s2, 12")
    a("s_waitcnt lgkmcnt(0)")
    ws_srd(a, 16, "PART", 14)
    PB, HB, SSB, AC = 16, 144, 160, 176 - 8
    AC = 208
    for j in range(8):
        for q in range(4):
            a(f"buffer_load_dwordx4 v[{PB+16*j+4*q}:{PB+16*j+4*q+3}], v2, s[16:19], s43 offen offset:{1024*q}")
        a(f"s_add_u32 s43, s43, {T*DM*2}")
    ws_srd(a, 20, "HC", 14)
    ws_srd(a, 24, "MU2", 14)
    ws_srd(a, 28, "SS", 14)
    srd(a, 32, 4, 0, T*DM*2)
    a(f"s_mul_i32 s44, s41, {36*1024}\ns_lshl_b32 s45, s42, 11\ns_add_u32 s44, s44, s45\ns_add_u32 s45, s44, {18*1024}")
    a("v_lshlrev_b32 v7, 4, v5\nv_lshl_add_u32 v7, v6, 9, v7")
    for m in range(2):
        a(f"buffer_load_dwordx4 v[{HB+8*m}:{HB+8*m+3}], v7, s[20:23], s{44+m} offen\nbuffer_load_dwordx4 v[{HB+8*m+4}:{HB+8*m+7}], v7, s[20:23], s{44+m} offen offset:256")
    a("v_lshlrev_b32 v7, 2, v5\ns_lshl_b32 s45, s41, 7\nbuffer_load_dword v8, v7, s[24:27], s45 offen\nbuffer_load_dword v9, v7, s[24:27], s45 offen offset:64")
    a("v_lshlrev_b32 v7, 5, v5\ns_lshl_b32 s45, s41, 10")
    for m in range(2):
        a(f"buffer_load_dwordx4 v[{SSB+8*m}:{SSB+8*m+3}], v7, s[28:31], s45 offen offset:{512*m}\nbuffer_load_dwordx2 v[{SSB+8*m+4}:{SSB+8*m+5}], v7, s[28:31], s45 offen offset:{512*m+16}")
    a(f"v_mul_u32_u24 v10, {DM*2}, v5\nv_lshl_add_u32 v10, v6, 5, v10\ns_mul_i32 s46, s41, {32*DM*2}\ns_lshl_b32 s47, s42, 7\ns_add_u32 s46, s46, s47\ns_add_u32 s47, s46, {16*DM*2}")
    a(f"s_mov_b32 s57, 0x00003f80\ns_mov_b32 s58, 0x3f800000")
    for j in range(8):
        a(f"s_waitcnt vmcnt({10 + 4*(7-j)})")
        for q in range(4):
            for m in range(2):
                for p in range(2):
                    src = PB + 16*j + 4*q + 2*m + p
                    for h in range(2):
                        d = AC + 16*m + 4*(2*p+h) + q
                        c = "0" if j == 0 else f"v{d}"
                        a(f"v_dot2_f32_bf16 v{d}, v{src}, s{57+h}, {c}")
    a("s_waitcnt vmcnt(0)")
    for m in range(2):
        b = SSB + 8*m
        a(f"v_add_f32 v{b}, v{b}, v{b+1}\nv_add_f32 v{b+2}, v{b+2}, v{b+3}\nv_add_f32 v{b+4}, v{b+4}, v{b+5}\nv_add_f32 v{b}, v{b}, v{b+2}\nv_add_f32 v{b}, v{b}, v{b+4}")
        a(f"v_mov_b32 v{b+1}, {f32bits(1e-5)}\nv_fmac_f32 v{b+1}, {f32bits(1.0/DM)}, v{b}\nv_rsq_f32 v{b}, v{b+1}")
    for m in range(2):
        for i in range(8):
            hcr = HB + 8*m + i
            d = AC + 16*m + 2*i
            a(f"v_lshlrev_b32 v11, 16, v{hcr}\nv_and_b32 v12, 0xffff0000, v{hcr}\nv_add_f32 v11, v11, v{8+m}\nv_add_f32 v12, v12, v{8+m}")
            a(f"v_fmac_f32 v11, v{d}, v{SSB+8*m}\nv_fmac_f32 v12, v{d+1}, v{SSB+8*m}\nv_cvt_pk_bf16_f32 v{PB+8*m+i}, v11, v12")
        a(f"buffer_store_dwordx4 v[{PB+8*m}:{PB+8*m+3}], v10, s[32:35], s{46+m} offen\nbuffer_store_dwordx4 v[{PB+8*m+4}:{PB+8*m+7}], v10, s[32:35], s{46+m} offen offset:16")
    st.finish(14, 3, 1)
    a("K5_end:\ns_endpgm\nCODE_END:")
    return kernel_desc("k5_kernel", 240)

HEADER = open("cdna_kernels/" + NAME + ".s.ref").read().split("; Override launch geometry")[0]
def build(stamp_k=-1, force_fallback=False, light=False, **opt):
    LIGHT[0] = light
    OPT.update(opt)
    a = Asm()
    launches = [("k1_kernel", K1_GRID, 512, K1_LDS), ("k2_kernel", K2_GRID, 512, K2_LDS), ("k3_kernel", K3_GRID, 256, K3_LDS),
                ("k4_kernel", K4_GRID, 256, K4_LDS), ("k5_kernel", K5_GRID, 64, 0)]
    hdr = HEADER + "".join(f"; @launch kernel={k} grid=({g},1,1) block=({b},1,1) lds={l}\n" for k, g, b, l in launches)
    a('.amdgcn_target "amdgcn-amd-amdhsa--gfx950"\n.text')
    descs = [k1(a, stamp_k), k2(a, stamp_k, force_fallback), k3(a, stamp_k), k4(a, stamp_k), k5(a, stamp_k)]
    a('.set CODE_PF_N, (CODE_END - k3_kernel) / 8192')
    a('.section .rodata,"a"')
    return hdr + a.text() + "".join(descs)

if __name__ == "__main__":
    out = sys.argv[1] if len(sys.argv) > 1 else "cdna_kernels/" + NAME + ".s"
    kw = eval("dict(" + (sys.argv[2] if len(sys.argv) > 2 else "") + ")")
    open(out, "w").write(build(**kw))
```

```python
class Asm:
    def __init__(self):
        self.lines = []
        self.uid = 0
    def __call__(self, s=""):
        for ln in s.split("\n"):
            ln = ln.strip()
            if not ln: continue
            if ln.endswith(":") or ln.startswith("."):
                self.lines.append(ln)
            else:
                self.lines.append("    " + ln)
    def label(self, base):
        self.uid += 1
        return f"L_{base}_{self.uid}"
    def text(self):
        return "\n".join(self.lines) + "\n"

def vr(b, n=1):
    return f"v{b}" if n == 1 else f"v[{b}:{b+n-1}]"
def ar(b, n=1):
    return f"a{b}" if n == 1 else f"a[{b}:{b+n-1}]"
def sr(b, n=1):
    return f"s{b}" if n == 1 else f"s[{b}:{b+n-1}]"
def R(b, n=1):
    if b >= 256:
        return ar(b - 256, n)
    assert b + n <= 256, (b, n)
    return vr(b, n)

def kernel_begin(a, name):
    a(f".globl {name}\n.p2align 8\n.type {name},@function\n{name}:")

def kernel_desc(name, vgpr, sgpr=102, nargs=88, acc=None):
    if acc is not None:
        pass
    elif vgpr > 256:
        acc = 256
    else:
        acc = (vgpr + 3) // 4 * 4
    return f""".p2align 6
.amdhsa_kernel {name}
  .amdhsa_next_free_vgpr {vgpr}
  .amdhsa_next_free_sgpr {sgpr}
  .amdhsa_accum_offset {acc}
  .amdhsa_group_segment_fixed_size 0
  .amdhsa_kernarg_size {nargs}
  .amdhsa_user_sgpr_count 2
  .amdhsa_user_sgpr_kernarg_segment_ptr 1
  .amdhsa_system_sgpr_workgroup_id_x 1
.end_amdhsa_kernel
"""

def srd(a, d, base, off, size):
    if off == 0:
        a(f"s_mov_b32 s{d}, s{base}\ns_mov_b32 s{d+1}, s{base+1}")
    else:
        a(f"s_add_u32 s{d}, s{base}, {off}\ns_addc_u32 s{d+1}, s{base+1}, 0")
    a(f"s_mov_b32 s{d+2}, {size}\ns_mov_b32 s{d+3}, 0x00020000")

def interleave(main, fill, start=0, every=1):
    out = []
    fi = 0
    for i, m in enumerate(main):
        out.append(m)
        if i >= start and (i - start) % every == 0 and fi < len(fill):
            out.append(fill[fi]); fi += 1
    out.extend(fill[fi:])
    return out
```

```python
from asmlib import *

HB = 77824
STG = 25600
CNT = HB + 73728
FFN_LDS = CNT + 64
XC = 3

def ffn_compute(a, *, srdW, sW, v_lane16, v_h8, v_p, v_one, RINGF=20, stamp=None, PRE=18):
    XB = 3
    ACC = 16
    XF = 112
    TMP = 160
    def wreg(f): return 176 + 4 * (f % RINGF)
    NF = 324
    issued = [0]
    wpos = {}
    wadv = [0]
    nw = [0]
    def wload():
        f = nw[0]; nw[0] += 1
        off = f * 1024 - wadv[0]
        L = []
        if off >= 4096:
            L.append(f"s_add_u32 s{sW}, s{sW}, {off}"); wadv[0] += off; off = 0
        L.append(f"buffer_load_dwordx4 {R(wreg(f),4)}, v{v_lane16}, s[{srdW}:{srdW+3}], s{sW} offen offset:{off}")
        wpos[f] = issued[0]; issued[0] += 1
        return "\n".join(L)
    for i in range(PRE): a(wload())
    if stamp: stamp(0)
    a("s_barrier")
    if stamp: stamp(1)
    def xread(step, mt):
        ph, ks = step // 54, step % 18
        off = HB + (ks * 4 + mt) * 1024 if ph else (mt * 18 + ks) * 1024
        r = XF + 16 * (step % XB) + 4 * mt
        return f"ds_read_b128 v[{r}:{r+3}], v{v_lane16 + off // 65536} offset:{off % 65536}"
    def epilogue(grp):
        ph, g = divmod(grp, 3)
        ac = ACC + 48 * (grp % 2)
        L = []
        for t in range(3):
            for mt in range(4):
                b = ac + (t * 4 + mt) * 4
                tm = TMP + ((t * 4 + mt) % 8) * 2
                L.append((f"v_cvt_pk_bf16_f32 v{tm}, v{b}, v{b+1}", 0)); L.append((f"v_cvt_pk_bf16_f32 v{tm+1}, v{b+2}, v{b+3}", 0))
                if ph == 0:
                    L.append((f"v_pk_max_i16 v{tm}, v{tm}, 0", 0)); L.append((f"v_pk_max_i16 v{tm+1}, v{tm+1}, 0", 0))
                    L.append((f"ds_write_b64 v{v_h8 + (t & 1)}, v[{tm}:{tm+1}] offset:{mt*1024 + (6*g + (t >> 1))*4096}", 1))
                else:
                    L.append((f"ds_write_b64 v{v_p + t}, v[{tm}:{tm+1}] offset:{mt*6400}", 1))
            if ph: L.append((f"v_add_u32 v{v_p + t}, {STG}, v{v_p + t}", 0))
        if ph:
            L.append((f"s_mov_b64 exec, 1\nds_add_u32 v{v_one+1}, v{v_one} offset:{4*g}\ns_mov_b64 exec, -1", 1))
        return L
    lds_q = []
    def lds_wait(tag):
        if tag not in lds_q: return None
        i = len(lds_q) - 1 - lds_q[::-1].index(tag)
        n = len(lds_q) - 1 - i
        if n > 15:
            n = 15
            del lds_q[:len(lds_q) - 15]
        else:
            del lds_q[:i + 1]
        return f"s_waitcnt lgkmcnt({n})"
    NS = 108
    for st_ in range(2):
        for mt in range(4):
            a(xread(st_, mt)); lds_q.append(("x", st_))
    pending = []
    for step in range(NS):
        grp, ks = divmod(step, 18)
        ac = ACC + 48 * (grp % 2)
        if ks == 0 and grp > 0:
            assert not pending
            pending = epilogue(grp - 1)
            if stamp: stamp(2 + grp)
        ns = step + 2
        if ns < 18 and ns % XC == 0:
            a("s_barrier")
        if ns in (54, 54 + 12):
            assert not pending
            w = lds_wait(("w",))
            if w: a(w)
            a("s_barrier")
        f0 = 3 * step
        vw = min(63, issued[0] - 1 - wpos[f0 + 2])
        lw = lds_wait(("x", step))
        a(f"s_waitcnt vmcnt({vw})" + (lw[len("s_waitcnt"):] if lw else ""))
        fills = [mt for mt in range(4)] if ns < NS else []
        for t in range(3):
            f = f0 + t
            for mt in range(4):
                d = ac + (t * 4 + mt) * 4
                x = XF + 16 * (step % XB) + 4 * mt
                c = "0" if ks == 0 else R(d, 4)
                a(f"v_mfma_f32_16x16x32_bf16 {R(d,4)}, {R(wreg(f),4)}, v[{x}:{x+3}], {c}")
                slot = t * 4 + mt
                used = 0
                if mt == 0 and nw[0] < NF and nw[0] < f + RINGF:
                    a(wload()); used += 1
                elif mt == 2 and nw[0] < NF and nw[0] < f + RINGF:
                    a(wload()); used += 1
                if fills and slot % 2 == 1:
                    a(xread(ns, fills.pop(0))); lds_q.append(("x", ns)); used += 1
                while pending and used < (1 if mt == 0 else 2) and (ks > 0 or slot >= 8):
                    txt, ld = pending.pop(0)
                    a(txt); used += 1
                    if ld: lds_q.append(("w",))
    if stamp: stamp(8)
    a("s_nop 7")
    for (txt, ld) in epilogue(5):
        a(txt)
N_BARRIERS_AFTER_X = 2
```

```python
import sys, math
from asmlib import *
from gemm import gemm_core
import ffn

T, DM, NH, DH, F = 2048, 576, 32, 18, 4608
NAME = "sequential_preLN__grouped_kv_mqa__dense_activation_relu__prompt"
A_X, A_WQ, A_WK, A_WV, A_WO, B_X, B_W1, B_W2, K_OUT, K_DBG, K_WS = [8 * i for i in range(11)]
def _al(x, a=4096): return (x + a - 1) // a * a
PAIR = 4736
FL_PF, FL_OF, FL_HF, FL_RF = 0, 393216, 393216 + 32768, 393216 + 32768 + 131072
FL_END = FL_RF + 8192
WS = {}
_o = 0
for nm, sz in [("Q", T*DM*2), ("KV", 32*PAIR), ("MEAN1", T*4), ("O", T*DM*2), ("HC", T*DM*2), ("MU2", T*4),
               ("SS", T*8*4), ("XC", T*DM*2), ("WBAR", 18*1024), ("WOF", 648*1024), ("WF", 2*DM*F*2),
               ("PART", 8*T*DM*2), ("FLAG", FL_END), ("STAMP", 16 << 20)]:
    WS[nm] = (_o, sz); _o += _al(sz)
WS_END = _o
QSCALE = math.log2(math.e) / math.sqrt(DH)
def f32bits(x):
    import struct
    return struct.unpack("<I", struct.pack("<f", x))[0]
ONES = 0x3f803f80

def ws_srd(a, d, nm, base):
    srd(a, d, base, WS[nm][0], WS[nm][1])

def wave_lane(a, s_wave=3):
    a(f"v_lshrrev_b32 v1, 6, v0\nv_and_b32 v0, 63, v0\ns_nop 0\nv_readfirstlane_b32 s{s_wave}, v1")

def sum_g(a, v, t):
    a(f"v_mov_b32 v{t}, v{v}\ns_nop 1\nv_permlane32_swap_b32 v{v}, v{t}\ns_nop 1\nv_add_f32 v{v}, v{v}, v{t}")
    a(f"v_mov_b32 v{t}, v{v}\ns_nop 1\nv_permlane16_swap_b32 v{v}, v{t}\ns_nop 1\nv_add_f32 v{v}, v{v}, v{t}")

LIGHT = [False]
OPT = dict(prio=4, k2_nt=True, codepf=True)
class Stamps:
    def __init__(self, a, on, kidx, vreg, vtmp):
        self.a, self.on, self.k, self.v, self.t = a, bool(on) or LIGHT[0], kidx, vreg, vtmp
        self.full = bool(on)
    def start(self):
        if self.on:
            self.a(f"s_memrealtime s[96:97]\ns_memtime s[98:99]\nv_mov_b32 v{self.v}, 0\ns_waitcnt lgkmcnt(0)\nv_writelane_b32 v{self.v}, s96, 62")
    def __call__(self, i):
        if self.full or (self.on and i == 61):
            self.a(f"s_memtime s[96:97]\ns_waitcnt lgkmcnt(0)\ns_sub_u32 s96, s96, s98\nv_writelane_b32 v{self.v}, s96, {i}")
    def finish(self, s_ws, s_wave, nw):
        if self.on:
            a = self.a
            a("s_waitcnt vmcnt(0)")
            self(61)
            a(f"s_memrealtime s[96:97]\ns_waitcnt lgkmcnt(0)\nv_writelane_b32 v{self.v}, s96, 63")
            ws_srd(a, 92, "STAMP", s_ws)
            a(f"s_lshl_b32 s96, s2, 3\ns_add_u32 s96, s96, s{s_wave}\ns_lshl_b32 s96, s96, 8\ns_add_u32 s96, s96, {self.k << 21}")
            a(f"v_mbcnt_lo_u32_b32 v{self.t}, -1, 0\nv_mbcnt_hi_u32_b32 v{self.t}, -1, v{self.t}\nv_lshlrev_b32 v{self.t}, 2, v{self.t}")
            a(f"buffer_store_dword v{self.v}, v{self.t}, s[92:95], s96 offen")


class Repack:
    PR = 208
    def __init__(self, a): self.a = a
    def common(self):
        return (f"s_add_u32 s60, s14, {WS['WOF'][0]}\ns_addc_u32 s61, s15, 0\ns_mov_b32 s62, {WS['WF'][0] + WS['WF'][1] - WS['WOF'][0]}\ns_mov_b32 s63, 0x00020000\n"
                "v_and_b32 v6, 15, v0\nv_lshrrev_b32 v7, 4, v0\ns_mov_b32 s80, 0x05040100\ns_mov_b32 s81, 0x07060302")
    def regs(self, rnd): return 64 + 4 * rnd, 72 + 4 * rnd, 82 + 4 * rnd, 242 + rnd, 240 + rnd
    def setup_ffn(self, rnd, pw1, pw2):
        L = self.a.label("rp")
        SD, SB_, SO, vsrc, dst = self.regs(rnd)
        OWF = WS["WF"][0] - WS["WOF"][0]
        t = []; A = t.append
        A(f"s_mul_hi_u32 s46, s47, {(2**32 + 161)//162}\ns_mul_i32 s49, s46, 162\ns_sub_u32 s47, s47, s49")
        A(f"s_mul_hi_u32 s49, s47, {(2**32 + 8)//9}\ns_mul_i32 s50, s49, 9\ns_sub_u32 s50, s47, s50")
        A(f"s_mov_b32 s{SD+3}, 0x00020000\ns_lshl_b32 s54, s50, 7\nv_mov_b32 v{dst}, v3")
        A(f"s_cmp_lt_u32 s46, 2\ns_cselect_b32 s{SD+2}, {DM*F*2}, 0\ns_cselect_b32 s57, 0, 0x100000")
        A(f"s_mul_i32 s53, s45, 1296\ns_mul_i32 s55, s46, 162\ns_add_u32 s53, s53, s55\ns_mul_i32 s55, s49, 3\ns_add_u32 s53, s53, s55\ns_add_u32 s53, s53, {OWF//1024}\ns_add_u32 s53, s53, s57")
        for q in range(4):
            A(f"s_lshl_b32 s55, s50, 2\ns_add_u32 s55, s55, {q}\ns_mul_i32 s56, s55, 86\ns_lshr_b32 s56, s56, 8")
            A(f"s_lshr_b32 s58, s56, 2\ns_mul_i32 s58, s58, 1242\ns_mul_i32 s56, s56, 321\ns_sub_u32 s56, s56, s58")
            A(f"s_add_u32 s55, s55, s56\ns_add_u32 s55, s55, s53\ns_lshl_b32 s{SO+q}, s55, 10")
        A(f"s_cmp_eq_u32 s46, 1\ns_cbranch_scc1 {L}_w2")
        A(f"s_mov_b32 s{SD}, s{pw1}\ns_mov_b32 s{SD+1}, s{pw1+1}\ns_mul_i32 s53, s49, {32*F*2}\ns_mul_i32 s55, s45, {DM*2}\ns_add_u32 s53, s53, s55\ns_add_u32 s{SB_}, s53, s54")
        A(f"s_mov_b32 s{SB_+1}, {4*F*2}\ns_mov_b32 s{SB_+2}, {2*F*2}\ns_mov_b32 s{SB_+3}, {F*2}")
        A(f"v_mul_u32_u24 v{vsrc}, {8*F*2}, v7\nv_lshl_add_u32 v{vsrc}, v6, 3, v{vsrc}\ns_branch {L}_done")
        A(f"{L}_w2:")
        A(f"s_mov_b32 s{SD}, s{pw2}\ns_mov_b32 s{SD+1}, s{pw2+1}\ns_lshr_b32 s53, s49, 1\ns_lshl_b32 s53, s53, 6\ns_and_b32 s55, s49, 1\ns_lshl_b32 s55, s55, 1\ns_add_u32 s53, s53, s55")
        A(f"s_mul_i32 s55, s45, {DM}\ns_add_u32 s53, s53, s55\ns_mul_i32 s53, s53, {DM*2}\ns_add_u32 s{SB_}, s53, s54")
        A(f"s_mov_b32 s{SB_+1}, {DM*2}\ns_mov_b32 s{SB_+2}, {8*DM*2}\ns_mov_b32 s{SB_+3}, {4*DM*2}")
        A(f"v_mul_u32_u24 v{vsrc}, {16*DM*2}, v7\nv_lshl_add_u32 v{vsrc}, v6, 3, v{vsrc}")
        A(f"{L}_done:")
        return "\n".join(t)
    def setup_wo(self, rnd, pwo):
        L = self.a.label("rp")
        SD, SB_, SO, vsrc, dst = self.regs(rnd)
        t = []; A = t.append
        A(f"s_mul_hi_u32 s49, s47, {(2**32 + 8)//9}\ns_mul_i32 s50, s49, 9\ns_sub_u32 s50, s47, s50")
        A(f"s_mov_b32 s{SD+3}, 0x00020000\ns_lshl_b32 s54, s50, 7")
        A(f"s_mov_b32 s{SD}, s{pwo}\ns_mov_b32 s{SD+1}, s{pwo+1}\ns_cmp_lt_u32 s47, 162\ns_cselect_b32 s{SD+2}, {DM*DM*2}, 0\ns_cselect_b32 s56, 0, 0x40000000")
        A(f"s_mul_i32 s55, s49, 6144\ns_add_u32 s{SO}, s56, s55\ns_add_u32 s{SO+1}, s{SO}, 1024\ns_add_u32 s{SO+2}, s{SO}, 16\ns_add_u32 s{SO+3}, s{SO}, 1040")
        A(f"s_lshl_b32 s55, s50, 1\nv_lshrrev_b32 v245, 3, v6\nv_add_u32 v245, s55, v245\nv_mul_u32_u24 v246, 86, v245\nv_lshrrev_b32 v246, 8, v246")
        A(f"v_mul_u32_u24 v246, 51, v246\nv_add_u32 v245, v245, v246\nv_lshlrev_b32 v245, 11, v245")
        A(f"v_and_b32 v246, 7, v6\nv_lshl_add_u32 v245, v246, 5, v245\nv_lshl_add_u32 v{dst}, v7, 8, v245")
        A(f"s_mov_b32 s{SB_+3}, {DM*2}\ns_cmp_ge_u32 s49, 16\ns_cbranch_scc1 {L}_wo2")
        A(f"s_mul_i32 s53, s49, {36*DM*2}\ns_mov_b32 s{SB_+1}, {8*DM*2}\ns_mov_b32 s{SB_+2}, {2*DM*2}")
        A(f"v_lshrrev_b32 v246, 1, v7\nv_mul_u32_u24 v246, 18, v246\nv_and_b32 v247, 1, v7\nv_lshl_add_u32 v246, v247, 2, v246\ns_branch {L}_wo3")
        A(f"{L}_wo2:")
        A(f"s_sub_u32 s53, s49, 16\ns_mul_i32 s53, s53, {288*DM*2}\ns_add_u32 s53, s53, {16*DM*2}\ns_mov_b32 s{SB_+1}, {36*DM*2}\ns_mov_b32 s{SB_+2}, {18*DM*2}")
        A(f"v_mul_u32_u24 v246, 72, v7")
        A(f"{L}_wo3:")
        A(f"s_add_u32 s{SB_}, s53, s54\nv_mul_u32_u24 v{vsrc}, {DM*2}, v246\nv_lshl_add_u32 v{vsrc}, v6, 3, v{vsrc}")
        return "\n".join(t)
    def load(self, rnd, s_, flag=""):
        SD, SB_, SO, vsrc, dst = self.regs(rnd)
        raw = self.PR + 16 * rnd
        t = f"s_mov_b32 s55, s{SB_}\n"
        if s_ & 4: t += f"s_add_u32 s55, s55, s{SB_+1}\n"
        if s_ & 2: t += f"s_add_u32 s55, s55, s{SB_+2}\n"
        if s_ & 1: t += f"s_add_u32 s55, s55, s{SB_+3}\n"
        return t + f"buffer_load_dwordx2 v[{raw+2*s_}:{raw+2*s_+1}], v{vsrc}, s[{SD}:{SD+3}], s55 offen{flag}"
    def store(self, rnd, q_, flag=""):
        SD, SB_, SO, vsrc, dst = self.regs(rnd)
        raw = self.PR + 16 * rnd
        t = 196 + 4 * (q_ % 2)
        L = [f"v_perm_b32 v{t+j}, v{raw+2*(2*j+1)+(q_>>1)}, v{raw+2*(2*j)+(q_>>1)}, s{80+(q_&1)}" for j in range(4)]
        L.append(f"buffer_store_dwordx4 v[{t}:{t+3}], v{dst}, s[60:63], s{SO+q_} offen{flag}")
        return "\n".join(L)
    def touch(self, rnd):
        SD, SB_, SO, vsrc, dst = self.regs(rnd)
        return "s_mov_b64 exec, 0xff\nv_lshlrev_b32 v204, 7, v0\n" + "\n".join(f"buffer_load_dword v205, v204, s[60:63], s{SO+q} offen" for q in range(4)) + "\ns_mov_b64 exec, -1"

def ffn_map(sj, smb):
    SL = OPT.get("k4_sl", 2); lg = SL.bit_length() - 1
    return (f"s_and_b32 s46, s2, 7\ns_lshr_b32 s47, s2, 3\ns_and_b32 s{sj}, s46, {8//SL-1}\ns_lshl_b32 s{sj}, s{sj}, {lg}\ns_and_b32 s48, s47, {SL-1}\ns_add_u32 s{sj}, s{sj}, s48\n"
            f"s_lshr_b32 s{smb}, s46, {3-lg}\ns_lshl_b32 s{smb}, s{smb}, {5-lg}\ns_lshr_b32 s48, s47, {lg}\ns_add_u32 s{smb}, s{smb}, s48\n")

def poll(a, n, voff, srd_, soff, vt, slp=2):
    L = a.label("poll")
    a(f"s_mov_b32 s73, 0x8000\ns_mov_b64 exec, {(1 << n) - 1}")
    a(f"{L}:\nbuffer_load_dword v{vt}, v{voff}, s[{srd_}:{srd_+3}], s{soff} offen sc1\ns_waitcnt vmcnt(0)\nv_cmp_eq_u32 vcc, 1, v{vt}\ns_nop 1\ns_cmp_eq_u32 vcc_lo, {(1 << n) - 1}\ns_cbranch_scc1 {L}_ok\ns_sleep {slp}\ns_sub_u32 s73, s73, 1\ns_cbranch_scc0 {L}\n{L}_ok:")
    a("s_mov_b64 exec, -1")

K1_GRID = 256
K1_LDS = 147456
def k1(a, stamp_k=-1):
    st = Stamps(a, stamp_k == 1, 1, 250, 251)
    XL = 73728
    kernel_begin(a, "k1_kernel")
    a(f"s_cmp_ge_u32 s2, {K1_GRID}\ns_cbranch_scc1 K1_end")
    a(f"s_load_dwordx4 s[4:7], s[0:1], {A_X}\ns_load_dwordx4 s[8:11], s[0:1], {A_WK}\ns_load_dwordx2 s[12:13], s[0:1], {A_WO}\ns_load_dwordx2 s[14:15], s[0:1], {K_WS}")
    st.start()
    wave_lane(a)
    a("v_and_b32 v1, 15, v0\nv_lshrrev_b32 v2, 4, v0")
    if OPT.get("k1_map", 1) == 0:
        a("s_and_b32 s44, s2, 31\ns_lshr_b32 s45, s2, 5")
        a("s_lshr_b32 s60, s44, 3\ns_mul_i32 s60, s60, 9\ns_lshr_b32 s60, s60, 2\ns_add_u32 s60, s60, s45\ns_and_b32 s61, s44, 7\ns_add_u32 s60, s60, s61")
    elif OPT.get("k1_map", 1) == 1:
        a("s_bfe_u32 s44, s2, 0x20001\ns_lshl_b32 s44, s44, 3\ns_bfe_u32 s61, s2, 0x30003\ns_add_u32 s44, s44, s61\ns_and_b32 s45, s2, 1\ns_lshl_b32 s45, s45, 2\ns_lshr_b32 s62, s2, 6\ns_add_u32 s45, s45, s62")
        a("s_mul_i32 s60, s62, 9\ns_lshr_b32 s60, s60, 2\ns_add_u32 s60, s60, s61\ns_and_b32 s61, s2, 7\ns_add_u32 s60, s60, s61")
    else:
        a("s_bfe_u32 s44, s2, 0x10002\ns_lshl_b32 s44, s44, 4\ns_bfe_u32 s61, s2, 0x40003\ns_add_u32 s44, s44, s61\ns_and_b32 s45, s2, 3\ns_lshl_b32 s45, s45, 1\ns_lshr_b32 s62, s2, 7\ns_add_u32 s45, s45, s62")
        a("s_lshl_b32 s60, s62, 2\ns_add_u32 s60, s60, s61\ns_and_b32 s61, s2, 3\ns_add_u32 s60, s60, s61")
    a("s_mul_i32 s61, s60, 57\ns_lshr_b32 s61, s61, 9\ns_mul_i32 s61, s61, 9\ns_sub_u32 s60, s60, s61")
    a("v_lshrrev_b32 v4, 3, v0\nv_and_b32 v5, 7, v0")
    a("s_cmp_ge_u32 s3, 4\ns_cbranch_scc1 K1_loader")
    a("s_cmp_eq_u32 s45, 7\ns_cbranch_scc1 K1_wbar")
    a("s_lshl_b32 s46, s44, 6\ns_lshl_b32 s47, s3, 4\ns_add_u32 s46, s46, s47")
    a(f"s_mul_i32 s47, s46, {DM*2}")
    a(f"v_xor_b32 v6, v4, v5\nv_mul_u32_u24 v3, {DM*2}, v4\nv_lshl_add_u32 v3, v6, 4, v3\nv_add_u32 v6, {8*DM*2 - 1024}, v3")
    a(f"s_lshl_b32 s61, s60, 7\ns_mul_i32 s63, s3, 18432\ns_add_u32 s63, s63, {XL}\ns_mov_b32 s64, s63")
    a("s_waitcnt lgkmcnt(0)")
    srd(a, 16, 4, 0, T*DM*2)
    X0 = 16
    for p in range(9):
        a("s_mov_b32 m0, s64\ns_add_u32 s62, s47, s61\ns_add_u32 s64, s64, 2048")
        a("buffer_load_dwordx4 v3, s[16:19], s62 offen lds\nbuffer_load_dwordx4 v6, s[16:19], s62 offen offset:1024 lds")
        a(f"s_add_u32 s61, s61, 128\ns_cmp_eq_u32 s61, {DM*2}\ns_cselect_b32 s61, 0, s61")
    if OPT.get("k1_xfirst", False): a("s_barrier")
    st(0)
    ws_srd(a, 32, "Q", 14)
    ws_srd(a, 36, "KV", 14)
    ws_srd(a, 40, "MEAN1", 14)
    ws_srd(a, 68, "XC", 14)
    a("v_and_b32 v7, 7, v1\nv_xor_b32 v8, v2, v7\nv_lshlrev_b32 v8, 4, v8\nv_lshl_add_u32 v8, v1, 7, v8\nv_add_u32 v8, s63, v8\nv_xor_b32 v9, 64, v8")
    AR = 172
    a("v_lshrrev_b32 v10, 2, v1\nv_and_b32 v11, 3, v1\nv_lshl_add_u32 v12, v2, 3, v10")
    a("v_lshrrev_b32 v13, 1, v10\nv_and_b32 v14, 1, v2\nv_lshl_add_u32 v13, v14, 1, v13")
    a("v_lshlrev_b32 v15, 7, v12\nv_lshl_add_u32 v15, v11, 3, v15")
    for j in range(4):
        a(f"v_xor_b32 v7, {j}, v13\nv_lshl_add_u32 v{AR+j}, v7, 5, v15")
    a("v_lshlrev_b32 v15, 6, v12\nv_lshl_add_u32 v15, v11, 3, v15\nv_add_u32 v15, 4096, v15")
    for j in range(2):
        a(f"v_xor_b32 v7, {j}, v14\nv_lshl_add_u32 v{AR+4+j}, v7, 5, v15")
    for i in range(6): a(f"v_add_u32 v{AR+6+i}, {9*6144}, v{AR+i}")
    a(f"v_lshlrev_b32 v7, 5, v10\nv_lshl_add_u32 v7, v11, 3, v7\nv_lshl_add_u32 v7, v14, 7, v7\nv_lshl_add_u32 v{AR+12}, v2, 8, v7\nv_xor_b32 v{AR+13}, 128, v{AR+12}")
    a(f"s_mov_b32 s56, {ONES}\ns_mov_b32 s57, 0x00003f80\ns_mov_b32 s58, 0x3f800000")
    for i in range(4): a(f"v_mov_b32 v{4+i}, 0")
    for p in range(10):
        if p < 9:
            a(f"s_waitcnt vmcnt({16 - 2*p})")
            a(f"ds_read_b128 v[{X0+8*p}:{X0+8*p+3}], v8 offset:{2048*p}\nds_read_b128 v[{X0+8*p+4}:{X0+8*p+7}], v9 offset:{2048*p}")
        if p > 0:
            a(f"s_waitcnt lgkmcnt({2 if p < 9 else 0})")
            for i in range(8*(p-1), 8*p):
                a(f"v_dot2_f32_bf16 v{4+i%4}, v{X0+i}, s56, v{4+i%4}")
    st(1)
    a("s_nop 2\nv_add_f32 v4, v4, v5\nv_add_f32 v6, v6, v7\nv_add_f32 v4, v4, v6")
    sum_g(a, 4, 5)
    a(f"v_mul_f32 v4, {f32bits(-1.0/DM)}, v4")
    for i in range(4): a(f"v_mov_b32 v{8+i}, 0")
    ACC, WF, CT = 88, 120, 188
    def center(ks):
        L = []
        for r in range(4):
            L += [f"v_dot2_f32_bf16 v{CT+2*r}, v{X0+4*ks+r}, s57, v4", f"v_dot2_f32_bf16 v{CT+2*r+1}, v{X0+4*ks+r}, s58, v4"]
        L += sq(ks - 1) if ks > 0 else ["s_nop 2"]
        L += [f"v_cvt_pk_bf16_f32 v{X0+4*ks+r}, v{CT+2*r}, v{CT+2*r+1}" for r in range(4)]
        return L
    def sq(ks): return [f"v_dot2_f32_bf16 v{8+r}, v{X0+4*ks+r}, v{X0+4*ks+r}, v{8+r}" for r in range(4)]
    def rstd():
        for x in sq(17): a(x)
        a("s_nop 2\nv_add_f32 v8, v8, v9\nv_add_f32 v10, v10, v11\nv_add_f32 v8, v8, v10")
        sum_g(a, 8, 9)
        a(f"v_mov_b32 v9, {f32bits(1e-5)}\nv_fmac_f32 v9, {f32bits(1.0/DM)}, v8\nv_rsq_f32 v5, v9\ns_nop 0")
    a("s_cmp_eq_u32 s45, 6\ns_cbranch_scc1 K1_kvgemm")
    def qread(ks, j):
        hi = ks >= 9
        off = (ks - 9 * hi) * 6144
        vb = AR + 6 * hi + j
        w = WF + ((ks % 2) * 6 + j) * 4
        return [f"ds_read_b64_tr_b16 v[{w}:{w+1}], v{vb} offset:{off}", f"ds_read_b64_tr_b16 v[{w+2}:{w+3}], v{vb} offset:{off + (512 if j < 4 else 256)}"]
    for ks in range(18):
        for x in center(ks): a(x)
    rstd()
    st(6)
    a("s_barrier")
    st(2)
    for j in range(6):
        for x in qread(0, j): a(x)
    for ks in range(18):
        if ks in (5, 11):
            st(4 + ks); a("s_barrier"); st(5 + ks)
        for j in range(6):
            a(f"s_waitcnt lgkmcnt({10 if ks < 17 else 10 - 2*j})")
            w = WF + ((ks % 2) * 6 + j) * 4
            c = "0" if ks == 0 else f"v[{ACC+4*j}:{ACC+4*j+3}]"
            a(f"v_mfma_f32_16x16x32_bf16 v[{ACC+4*j}:{ACC+4*j+3}], v[{w}:{w+3}], v[{X0+4*ks}:{X0+4*ks+3}], {c}")
            if ks < 17:
                for x in qread(ks + 1, j): a(x)
    st(3)
    a(f"v_mul_f32 v6, {f32bits(QSCALE)}, v5")
    a("v_lshlrev_b32 v3, 3, v0")
    a(f"s_lshr_b32 s48, s46, 5\ns_mul_i32 s48, s48, {4*9216}\ns_and_b32 s49, s3, 1\ns_mul_i32 s49, s49, 4608\ns_add_u32 s48, s48, s49")
    a("s_mul_i32 s49, s45, 6\ns_and_b32 s50, s45, 1\ns_lshl_b32 s51, s50, 1\ns_add_u32 s51, s51, s49\ns_lshl_b32 s50, s50, 2\ns_sub_u32 s52, s49, s50")
    for j in range(6):
        b = ACC + 4*j
        a(f"s_add_u32 s53, s{51 if j < 4 else 52}, {j}\ns_mul_i32 s54, s53, 57\ns_lshr_b32 s54, s54, 9\ns_mul_i32 s54, s54, 4608\ns_lshl_b32 s53, s53, 9\ns_add_u32 s53, s53, s54\ns_add_u32 s53, s53, s48")
        for r in range(4): a(f"v_mul_f32 v{b+r}, v{b+r}, v6")
        a(f"v_cvt_pk_bf16_f32 v{b}, v{b}, v{b+1}\nv_cvt_pk_bf16_f32 v{b+1}, v{b+2}, v{b+3}")
        a(f"buffer_store_dwordx2 v[{b}:{b+1}], v3, s[32:35], s53 offen" + OPT.get('k1_st', ' sc1'))
    a("s_branch K1_fin")
    a("K1_loader:")
    if OPT["codepf"]:
        a("s_cmp_lt_u32 s2, 248\ns_cbranch_scc1 K1_nopf")
        a("s_getpc_b64 s[58:59]\nK1_pc:\ns_sub_u32 s58, s58, K1_pc-k1_kernel\ns_subb_u32 s59, s59, 0")
        a("s_sub_u32 s56, s3, 4\ns_lshl_b32 s56, s56, 13\nv_lshlrev_b32 v20, 7, v0\nv_add_u32 v20, s56, v20\nv_mov_b32 v21, K2_out-k1_kernel\nv_min_u32 v20, v20, v21\nglobal_load_dword v22, v20, s[58:59]")
        a("K1_nopf:")
    a("s_cmp_eq_u32 s45, 7\ns_cbranch_scc1 K1_worp")
    a("s_sub_u32 s3, s3, 4")
    a("s_cmp_eq_u32 s45, 6\ns_cbranch_scc1 K1_kvload")
    a("v_and_b32 v6, 1, v2\ns_and_b32 s48, s3, 1\ns_lshl_b32 s48, s48, 2\nv_lshlrev_b32 v6, 1, v6\nv_or_b32 v6, s48, v6\nv_xor_b32 v6, v6, v5")
    a(f"v_mul_u32_u24 v5, {DM*2}, v4\nv_lshl_add_u32 v5, v6, 4, v5")
    a("v_lshrrev_b32 v7, 5, v0\nv_lshlrev_b32 v7, 1, v7\nv_and_b32 v8, 3, v0\nv_xor_b32 v7, v7, v8\nv_lshrrev_b32 v8, 2, v0")
    a(f"v_mul_u32_u24 v8, {DM*2}, v8\nv_lshl_add_u32 v8, v7, 4, v8")
    a("s_mul_i32 s48, s45, 192\ns_and_b32 s53, s45, 1\ns_lshl_b32 s54, s53, 6\ns_add_u32 s49, s48, s54\ns_xor_b32 s53, s53, 1\ns_lshl_b32 s53, s53, 7\ns_add_u32 s50, s48, s53")
    a(f"s_mul_i32 s53, s3, {8*DM*2}\ns_add_u32 s49, s49, s53\ns_mul_i32 s53, s3, {16*DM*2}\ns_add_u32 s50, s50, s53")
    a("s_lshl_b32 s51, s3, 10")
    a("s_lshr_b32 s52, s3, 1\ns_mul_i32 s52, s52, 6144\ns_and_b32 s53, s3, 1\ns_lshl_b32 s53, s53, 10\ns_add_u32 s52, s52, s53\ns_add_u32 s52, s52, 4096")
    a(f"s_mul_i32 s61, s60, {64*DM*2}")
    a("s_waitcnt lgkmcnt(0)")
    srd(a, 20, 6, 0, DM*DM*2)
    if OPT.get("k1_xfirst", False): a("s_barrier")
    for t in range(9):
        if t == 6: a("s_waitcnt vmcnt(9)\ns_barrier")
        a(f"s_add_u32 s62, s49, s61\ns_add_u32 s63, s50, s61\ns_add_u32 s64, s62, {32*DM*2}")
        a(f"s_mov_b32 m0, s51\ns_add_u32 s51, s51, 6144\nbuffer_load_dwordx4 v5, s[20:23], s62 offen lds")
        a(f"s_mov_b32 m0, s52\ns_add_u32 s52, s52, 12288\nbuffer_load_dwordx4 v8, s[20:23], s63 offen lds")
        a(f"s_mov_b32 m0, s51\ns_add_u32 s51, s51, 6144\nbuffer_load_dwordx4 v5, s[20:23], s64 offen lds")
        a(f"s_add_u32 s61, s61, {64*DM*2}\ns_cmp_eq_u32 s61, {DM*DM*2}\ns_cselect_b32 s61, 0, s61")
    a("s_waitcnt vmcnt(9)\ns_barrier\ns_waitcnt vmcnt(0)\ns_barrier")
    a("s_branch K1_end")
    a("K1_kvload:")
    a("s_waitcnt lgkmcnt(0)")
    srd(a, 24, 8, 0, DM*DH*2)
    srd(a, 28, 10, 0, DM*DH*2)
    a("s_lshl_b32 s48, s3, 6\nv_add_u32 v4, s48, v0")
    KVT = 100
    if OPT.get("k1_xfirst", False): a("s_barrier")
    for it in range(3):
        a(f"v_add_u32 v5, {256*it}, v4\nv_mul_u32_u24 v{6+it}, 36, v5")
        for m, sd in enumerate((24, 28)):
            b = KVT + (it*2 + m) * 12
            a(f"buffer_load_dwordx4 v[{b}:{b+3}], v{6+it}, s[{sd}:{sd+3}], 0 offen")
            a(f"buffer_load_dwordx4 v[{b+4}:{b+7}], v{6+it}, s[{sd}:{sd+3}], 0 offen offset:16")
            a(f"buffer_load_dword v{b+8}, v{6+it}, s[{sd}:{sd+3}], 0 offen offset:32")
    a("s_lshl_b32 s61, s60, 1")
    for it in range(3):
        a(f"v_add_u32 v5, {256*it}, v4")
        a(f"v_lshrrev_b32 v9, 5, v5\nv_subrev_u32 v9, s61, v9\nv_add_u32 v12, 18, v9\nv_min_u32 v9, v9, v12")
        a(f"v_mul_u32_u24 v9, 3072, v9\nv_bfe_u32 v10, v5, 3, 2\nv_lshl_add_u32 v9, v10, 8, v9")
        a(f"v_and_b32 v10, 1, v10\nv_lshlrev_b32 v10, 2, v10\nv_and_b32 v11, 7, v5\nv_xor_b32 v10, v10, v11\nv_lshl_add_u32 v{6+it}, v10, 5, v9")
    a("s_waitcnt vmcnt(0)")
    for it in range(3):
        if it == 2:
            a("s_cmp_lg_u32 s3, 0\ns_cbranch_scc1 K1_kvskip")
        for m in range(2):
            b = KVT + (it*2 + m) * 12
            a(f"ds_write_b128 v{6+it}, v[{b}:{b+3}] offset:{1024*m}\nds_write_b128 v{6+it}, v[{b+4}:{b+7}] offset:{1024*m+16}")
            a(f"ds_write_b32 v{6+it}, v{b+8} offset:{2048+4*m}")
    a("K1_kvskip:\ns_waitcnt lgkmcnt(0)\ns_barrier\ns_branch K1_end")
    a("K1_worp:\ns_waitcnt lgkmcnt(0)\nv_lshlrev_b32 v3, 4, v0")
    rp = Repack(a)
    a(rp.common())
    for rnd in range(2):
        a(f"s_lshl_b32 s47, s44, 2\ns_add_u32 s47, s47, s3\ns_add_u32 s47, s47, {128*rnd - 4 & 0xffffffff}")
        a(rp.setup_wo(rnd, 12))
        for n in range(8): a(rp.load(rnd, n))
    for rnd in range(2):
        a(f"s_waitcnt vmcnt({8 if rnd == 0 else 4})")
        for n in range(4): a(rp.store(rnd, n) + "\ns_nop 1")
    a("s_branch K1_end")
    a("K1_kvgemm:")
    a(f"v_lshlrev_b32 v3, 4, v0\ns_lshr_b32 s48, s46, 4\ns_mul_i32 s48, s48, 18432\ns_lshl_b32 s61, s60, 11")
    for p in range(9):
        a("s_add_u32 s62, s48, s61")
        a(f"buffer_store_dwordx4 v[{X0+8*p}:{X0+8*p+3}], v3, s[68:71], s62 offen{OPT.get('k1_st', ' sc1')}\nbuffer_store_dwordx4 v[{X0+8*p+4}:{X0+8*p+7}], v3, s[68:71], s62 offen offset:1024{OPT.get('k1_st', ' sc1')}")
        a(f"s_add_u32 s61, s61, 2048\ns_cmp_eq_u32 s61, 18432\ns_cselect_b32 s61, 0, s61")
    def kread(ks):
        L = []
        for j in range(3):
            w = WF + ((ks % 2) * 3 + j) * 4
            L += [f"ds_read_b64_tr_b16 v[{w}:{w+1}], v{AR+12} offset:{ks*3072+j*1024}", f"ds_read_b64_tr_b16 v[{w+2}:{w+3}], v{AR+13} offset:{ks*3072+j*1024}"]
        return L
    for ks in range(18):
        for x in center(ks): a(x)
    rstd()
    a("s_barrier")
    for x in kread(0): a(x)
    for ks in range(18):
        x = f"v[{X0+4*ks}:{X0+4*ks+3}]"
        def W(j):
            w = WF + ((ks % 2) * 3 + j) * 4
            return f"v[{w}:{w+3}]"
        def C(i): return f"v[{ACC+4*i}:{ACC+4*i+3}]"
        c = (lambda i: "0") if ks == 0 else C
        fill = kread(ks + 1) if ks < 17 else []
        a("s_waitcnt lgkmcnt(0)\ns_nop 0")
        ms = [f"v_mfma_f32_16x16x32_bf16 {C(0)}, {W(0)}, {x}, {c(0)}",
              f"v_mfma_f32_16x16x32_bf16 {C(1)}, {x}, {W(1)}, {c(1)}",
              f"v_mfma_f32_16x16x32_bf16 {C(2)}, {W(2)}, {x}, {c(2)}",
              f"v_mfma_f32_16x16x32_bf16 {C(3)}, {x}, {W(2)}, {c(3)}"]
        for m in ms:
            a(m)
            for y in fill[:3]: a(y)
            fill = fill[3:]
    a("v_lshlrev_b32 v6, 4, v2")
    for r in range(4):
        a(f"ds_bpermute_b32 v{12+r}, v6, v5 offset:{4*r}")
    a(f"s_mul_i32 s48, s44, {PAIR}")
    a("v_sub_f32 v7, 0, v4\nv_lshlrev_b32 v8, 2, v1\nv_lshl_add_u32 v8, v2, 20, v8\ns_lshl_b32 s49, s46, 2")
    a("buffer_store_dword v7, v8, s[40:43], s49 offen")
    a("s_waitcnt lgkmcnt(0)")
    b = ACC
    for r in range(4): a(f"v_mul_f32 v{b+r}, v{b+r}, v5")
    a(f"v_cvt_pk_bf16_f32 v{b}, v{b}, v{b+1}\nv_cvt_pk_bf16_f32 v{b+1}, v{b+2}, v{b+3}")
    a("v_lshrrev_b32 v7, 1, v2\nv_lshlrev_b32 v7, 9, v7\nv_lshl_add_u32 v7, v1, 4, v7\nv_and_b32 v8, 1, v2\nv_lshl_add_u32 v7, v8, 3, v7")
    a("s_lshr_b32 s49, s3, 1\ns_lshl_b32 s49, s49, 10\ns_and_b32 s50, s3, 1\ns_lshl_b32 s50, s50, 8\ns_add_u32 s49, s49, s50\ns_add_u32 s49, s49, s48")
    a(f"buffer_store_dwordx2 v[{b}:{b+1}], v7, s[36:39], s49 offen")
    b = ACC + 8
    a(f"v_mul_f32 v{b}, v{b}, v5\nv_mul_f32 v{b+1}, v{b+1}, v5\nv_cvt_pk_bf16_f32 v{b}, v{b}, v{b+1}")
    a("v_lshlrev_b32 v7, 2, v1\nv_lshl_add_u32 v7, v2, 20, v7\ns_lshl_b32 s49, s3, 6\ns_add_u32 s49, s49, s48")
    a(f"buffer_store_dword v{b}, v7, s[36:39], s49 offen offset:2048")
    a("v_and_b32 v8, 1, v2\nv_mul_u32_u24 v8, 19, v8\nv_add_u32 v8, v8, v1\nv_lshlrev_b32 v8, 4, v8\nv_lshrrev_b32 v9, 1, v2\nv_lshl_add_u32 v8, v9, 3, v8")
    a("s_mul_i32 s49, s3, 608\ns_add_u32 s49, s49, s48")
    for i, b in enumerate((ACC + 4, ACC + 12)):
        for r in range(4): a(f"v_mul_f32 v{b+r}, v{b+r}, v{12+r}")
        a(f"v_cvt_pk_bf16_f32 v{b}, v{b}, v{b+1}\nv_cvt_pk_bf16_f32 v{b+1}, v{b+2}, v{b+3}")
        if i == 0:
            a(f"buffer_store_dwordx2 v[{b}:{b+1}], v8, s[36:39], s49 offen offset:2304")
        else:
            a(f"v_cmp_eq_u32 vcc, 4, v1\nv_mov_b32 v9, {ONES}\ns_nop 1\nv_cndmask_b32 v{b}, v{b}, v9, vcc\nv_cndmask_b32 v{b+1}, v{b+1}, v9, vcc")
            a("v_subrev_u32 v9, 2, v1\nv_cmp_gt_u32 vcc, 3, v9\ns_and_saveexec_b64 s[54:55], vcc")
            a(f"buffer_store_dwordx2 v[{b}:{b+1}], v8, s[36:39], s49 offen offset:{2304 + 14*16}")
            a("s_mov_b64 exec, -1")
    a("s_branch K1_fin")
    a("K1_wbar:\ns_waitcnt lgkmcnt(0)")
    srd(a, 16, 12, 0, DM*DM*2)
    ws_srd(a, 20, "WBAR", 14)
    a("s_cmp_lt_u32 s44, 18\ns_cbranch_scc1 K1_wb0")
    ws_srd(a, 24, "FLAG", 14)
    a("s_sub_u32 s45, s44, 18\ns_lshl_b32 s45, s45, 2\ns_add_u32 s45, s45, s3\ns_lshl_b32 s46, s45, 13\nv_lshlrev_b32 v3, 7, v0")
    a(f"v_mov_b32 v8, 0\nv_mov_b32 v9, 0\nv_mov_b32 v10, 0\nv_mov_b32 v11, 0\nbuffer_store_dword v8, v3, s[24:27], s46 offen\ns_add_u32 s46, s46, {56*8192}\nbuffer_store_dword v8, v3, s[24:27], s46 offen")
    a(f"s_lshl_b32 s46, s45, 10\ns_add_u32 s46, s46, {FL_RF}\nv_lshlrev_b32 v3, 4, v0\nbuffer_store_dwordx4 v[8:11], v3, s[24:27], s46 offen\ns_branch K1_fin")
    a("K1_wb0:")
    a("v_lshrrev_b32 v3, 3, v0\nv_and_b32 v5, 7, v0")
    a("s_cmp_ge_u32 s44, 16\ns_cbranch_scc1 K1_wb_hi")
    a("s_mul_i32 s45, s44, 36\ns_lshr_b32 s46, s3, 1\ns_mul_i32 s46, s46, 18\ns_add_u32 s45, s45, s46\ns_and_b32 s46, s3, 1\ns_lshl_b32 s46, s46, 2\ns_add_u32 s45, s45, s46")
    a("v_lshrrev_b32 v4, 2, v3\nv_lshlrev_b32 v4, 3, v4\nv_and_b32 v6, 3, v3\nv_add_u32 v4, v4, v6")
    a("s_branch K1_wb_go")
    a("K1_wb_hi:")
    a("s_sub_u32 s45, s44, 16\ns_mul_i32 s45, s45, 288\ns_mul_i32 s46, s3, 72\ns_add_u32 s45, s45, s46\ns_add_u32 s45, s45, 16")
    a("v_lshrrev_b32 v4, 1, v3\nv_mul_u32_u24 v4, 18, v4\nv_and_b32 v6, 1, v3\nv_add_u32 v4, v4, v6")
    a("K1_wb_go:")
    a(f"s_mul_i32 s45, s45, {DM*2}\nv_mul_u32_u24 v4, {DM*2}, v4\nv_lshl_add_u32 v4, v5, 4, v4")
    for i in range(9):
        a(f"buffer_load_dwordx4 v[{16+4*i}:{19+4*i}], v4, s[16:19], s45 offen offset:{128*i}")
    a(f"s_mov_b32 s56, {ONES}\nv_mov_b32 v6, 0\nv_mov_b32 v7, 0\ns_waitcnt vmcnt(0)")
    for i in range(36):
        a(f"v_dot2_f32_bf16 v{6+i%2}, v{16+i}, s56, v{6+i%2}")
    a("s_nop 2\nv_add_f32 v6, v6, v7\ns_nop 1")
    for x in (1, 2, 4):
        a(f"ds_swizzle_b32 v7, v6 offset:{(x << 10) | 0x1f}\ns_waitcnt lgkmcnt(0)\nv_add_f32 v6, v6, v7")
    a(f"v_mul_f32 v6, {f32bits(1.0/DM)}, v6")
    a("v_cvt_pk_bf16_f32 v7, v6, v6\nv_lshlrev_b32 v8, 16, v7\nv_sub_f32 v8, v6, v8\nv_cvt_pk_bf16_f32 v8, v8, v8")
    a("v_lshlrev_b32 v9, 5, v5\nv_lshl_add_u32 v9, v3, 1, v9")
    a(f"s_lshl_b32 s46, s44, 10\ns_lshl_b32 s47, s3, 8\ns_add_u32 s46, s46, s47")
    a(f"buffer_store_short v7, v9, s[20:23], s46 offen\nbuffer_store_short v8, v9, s[20:23], s46 offen offset:16")
    a("K1_fin:")
    st.finish(14, 3, 4)
    a("K1_end:\ns_endpgm")
    return kernel_desc("k1_kernel", 256)

K2_GRID = 256
K2_LDS = 32 * PAIR + 9216
def k2(a, stamp_k=-1, force_fallback=False):
    st = Stamps(a, stamp_k == 2, 2, 255, 254)
    kernel_begin(a, "k2_kernel")
    a(f"s_cmp_ge_u32 s2, {K2_GRID}\ns_cbranch_scc1 K2_end")
    a(f"s_load_dwordx2 s[14:15], s[0:1], {K_WS}\ns_load_dwordx2 s[4:5], s[0:1], {K_OUT}\ns_load_dwordx4 s[8:11], s[0:1], {B_W1}")
    st.start()
    wave_lane(a)
    a("v_and_b32 v1, 31, v0\nv_lshrrev_b32 v2, 5, v0\nv_lshlrev_b32 v3, 4, v0")
    a("s_lshr_b32 s40, s2, 2\ns_and_b32 s41, s2, 3\ns_lshl_b32 s41, s41, 3\ns_add_u32 s41, s41, s3")
    a(f"s_mul_i32 s42, s2, 9216\ns_lshl_b32 s43, s3, 10\ns_add_u32 s42, s42, s43\ns_add_u32 s43, s43, {32*PAIR}")
    a("s_lshl_b32 s44, s3, 10")
    a("s_waitcnt lgkmcnt(0)")
    ws_srd(a, 16, "KV", 14)
    ws_srd(a, 20, "Q", 14)
    Q1, Q2 = 8, 12
    def dma(r):
        txt = f"s_mov_b32 m0, s44\ns_nop 0\nbuffer_load_dwordx4 v3, s[16:19], s44 offen lds\ns_add_u32 s44, s44, 8192"
        if r == 18:
            L = a.label("dm")
            txt = f"s_cmp_ge_u32 s3, 4\ns_cbranch_scc1 {L}\n{txt}\n{L}:"
        return txt
    a("s_cmp_lg_u32 s3, 0\ns_cbranch_scc1 K2_q1")
    a(f"s_mov_b32 m0, {32*PAIR + 8192}\ns_add_u32 s45, s42, 8192\nbuffer_load_dwordx4 v3, s[20:23], s45 offen lds")
    a("K2_q1:")
    a("s_mov_b32 m0, s43\ns_nop 0\nbuffer_load_dwordx4 v3, s[20:23], s42 offen lds")
    a(dma(0)); a(dma(1)); a(dma(2))
    a(f"v_mov_b32 v{Q2+1}, 0")
    ws_srd(a, 24, "O", 14)
    a(f"v_lshrrev_b32 v4, 4, v1\nv_mul_u32_u24 v4, 4608, v4\nv_and_b32 v5, 15, v1\nv_lshl_add_u32 v4, v5, 3, v4\nv_add_u32 v4, {32*PAIR}, v4")
    a("s_mul_i32 s45, s3, 9\nv_lshlrev_b32 v5, 2, v2\nv_add_u32 v5, s45, v5")
    for i in range(5):
        if i < 4: a(f"v_add_u32 v30, {i}, v5")
        else: a("s_add_u32 s45, s45, 8\nv_mov_b32 v30, s45")
        a(f"v_lshrrev_b32 v31, 1, v30\nv_lshl_add_u32 v31, v31, 7, v4\nv_and_b32 v30, 1, v30\nv_lshl_add_u32 v{25+i}, v30, 2, v31")
    SEG = 13
    VKA, VK2, VVA = 14, 17, 20
    a(f"v_mul_u32_u24 v23, 19, v2\nv_add_u32 v23, v23, v1\nv_lshlrev_b32 v23, 4, v23\nv_mov_b32 v24, 0x40000\nv_cmp_gt_u32 vcc, 19, v1\ns_nop 1\nv_cndmask_b32 v{VVA}, v24, v23, vcc")
    a(f"v_mov_b32 v{VKA}, v3\nv_lshlrev_b32 v{VK2}, 2, v0")
    for b in (VKA, VK2, VVA):
        a(f"v_add_u32 v{b+1}, {SEG*PAIR}, v{b}\nv_add_u32 v{b+2}, {2*SEG*PAIR}, v{b}")
    SA, SB, P, O, NM = 32, 64, 96, 112, 128
    KF, K2F, VF = 144, 160, 164
    a(f"v_mov_b32 v{K2F+1}, 0\nv_mov_b32 v{K2F+3}, 0")
    for r in range(16): a(f"v_mov_b32 v{O+r}, 0")
    rp = Repack(a)
    def w3(txt):
        L = a.label("w3")
        return f"s_cmp_ge_u32 s3, 3\ns_cbranch_scc1 {L}\n{txt}\n{L}:"
    def seg(p): return p // SEG, (p % SEG) * PAIR
    def rdK(i, p):
        sg, o = seg(p)
        return [f"ds_read_b128 v[{KF+8*i}:{KF+8*i+3}], v{VKA+sg} offset:{o}",
                f"ds_read_b128 v[{KF+8*i+4}:{KF+8*i+7}], v{VKA+sg} offset:{o+1024}",
                f"ds_read_b32 v{K2F+2*i}, v{VK2+sg} offset:{o+2048}"]
    def rdV(i, p):
        sg, o = seg(p)
        return [f"ds_read_b128 v[{VF+16*i+4*q}:{VF+16*i+4*q+3}], v{VVA+sg} offset:{o+2304+608*q}" for q in range(4)]
    def qk(S, i, c):
        return [f"v_mfma_f32_32x32x16_bf16 v[{S}:{S+15}], v[{KF+8*i}:{KF+8*i+3}], v[{Q1}:{Q1+3}], {c}",
                f"v_mfma_f32_32x32x16_bf16 v[{S+16}:{S+31}], v[{KF+8*i+4}:{KF+8*i+7}], v[{Q1}:{Q1+3}], {c}",
                f"v_mfma_f32_32x32x4_2b_bf16 v[{S}:{S+31}], v[{K2F+2*i}:{K2F+2*i+1}], v[{Q2}:{Q2+1}], v[{S}:{S+31}]"]
    def pvm(vs_, u):
        return f"v_mfma_f32_32x32x16_bf16 v[{O}:{O+15}], v[{VF+16*vs_+4*u}:{VF+16*vs_+4*u+3}], v[{P+4*u}:{P+4*u+3}], v[{O}:{O+15}]"
    def rowmax(S, dst, first):
        L = []; r = 0
        if first:
            L.append(f"v_max_f32 v{dst}, v{S}, v{S+1}"); r = 2
        while r < 32:
            L.append(f"v_max3_f32 v{dst}, v{S+r}, v{S+r+1}, v{dst}"); r += 2
        return L
    def set_nm(src):
        a(f"v_mov_b32 v25, v{src}\ns_nop 1\nv_permlane32_swap_b32 v{src}, v25\ns_nop 1\nv_max_f32 v{src}, v{src}, v25")
        for r in range(16): a(f"v_sub_f32 v{NM+r}, 0, v{src}")
    def E(cur, g):
        b = cur + 4 * g
        return [f"v_exp_f32 v{b+r}, v{b+r}" for r in range(4)] + \
               [f"v_cvt_pk_bf16_f32 v{P+2*g}, v{b}, v{b+1}", f"v_cvt_pk_bf16_f32 v{P+2*g+1}, v{b+2}, v{b+3}"]
    NMr = f"v[{NM}:{NM+15}]"
    if OPT["prio"]: a("s_setprio 1")
    st(0)
    a("s_waitcnt vmcnt(2)\ns_barrier")
    st(1)
    for i in range(5): a(f"ds_read_b32 v{Q1+i}, v{25+i}")
    for x in rdK(0, 0) + rdK(1, 1) + rdV(0, 0): a(x)
    a("s_waitcnt lgkmcnt(7)")
    q = qk(SA, 0, "0")
    a(q[0]); a(q[1]); a("s_nop 9"); a(q[2]); a("s_nop 15\ns_nop 3")
    for x in rowmax(SA, 24, True): a(x)
    if force_fallback:
        a(f"v_add_f32 v24, {f32bits(-100.0)}, v24")
    set_nm(24)
    for r in range(32): a(f"v_add_f32 v{SA+r}, v{SA+r}, v{NM}")
    st(2)
    extra = {i: [] for i in range(32)}
    pre = {i: [] for i in range(32)}
    r = 3
    for i in range(8):
        extra[i] += [dma(r), dma(r + 1)]; r += 2
    pre[0].append("s_waitcnt vmcnt(0)\ns_barrier"); pre[3].append("s_waitcnt vmcnt(2)\ns_barrier"); pre[9].append(f"v_mov_b32 v196, 0\nv_mov_b32 v197, 0\nv_mov_b32 v198, 0\nv_mov_b32 v199, 0\nv_mov_b32 v200, {ffn.CNT}\nds_write_b128 v200, v[196:199]\ns_waitcnt vmcnt(0) lgkmcnt(0)\ns_barrier")
    nt_ = " nt" if OPT["k2_nt"] else ""
    def uidx(rnd):
        t = ("" if rnd else ffn_map(34, 35)) + f"s_mov_b32 s45, s34\ns_mul_i32 s47, s35, 11\ns_add_u32 s47, s47, s3\n"
        if rnd: t += "s_add_u32 s47, s47, 8\ns_cmp_ge_u32 s3, 3\ns_cselect_b32 s47, 400, s47\n"
        return t
    pre[8].append(rp.common() + "\n" + uidx(0) + rp.setup_ffn(0, 8, 10)); pre[9].insert(0, uidx(1) + rp.setup_ffn(1, 8, 10))
    for n in range(8):
        extra[9 + n // 2].append(rp.load(0, n, nt_))
        extra[13 + n // 2].append(w3(rp.load(1, n, nt_)))
    ST0 = OPT.get("k2_st0", 21)
    pre[ST0].append("s_waitcnt vmcnt(0)")
    for n in range(4):
        extra[ST0 + n // 2].append(rp.store(0, n, " sc1"))
        extra[ST0 + 2 + n // 2].append(w3(rp.store(1, n, " sc1")))
    FB = WS["FLAG"][0]
    pre[ST0 + 7].append("s_waitcnt vmcnt(0)")
    extra[ST0 + 7].append(f"s_add_u32 s36, s14, {FB}\ns_addc_u32 s37, s15, 0\ns_mov_b32 s38, {FL_END}\ns_mov_b32 s39, 0x00020000\n"
                          f"s_lshl_b32 s45, s34, 8\ns_lshl_b32 s46, s35, 3\ns_add_u32 s45, s45, s46\ns_add_u32 s45, s45, s3\ns_lshl_b32 s45, s45, 2\ns_add_u32 s45, s45, {FL_RF}\n"
                          "v_mov_b32 v206, 1\nv_mov_b32 v207, 0\ns_mov_b64 exec, 1\nbuffer_store_dword v206, v207, s[36:39], s45 offen sc1\ns_mov_b64 exec, -1")
    if OPT.get("k2_touch", True):
        extra[ST0 + 7].append(rp.touch(0)); extra[ST0 + 8].append(w3(rp.touch(1)))
    EW = OPT.get("wo_early", 10)
    if EW:
        wo0, wosz = WS["WOF"]
        pre[22].append(f"s_lshr_b32 s77, s2, 5\ns_add_u32 s20, s14, {wo0}\ns_addc_u32 s21, s15, 0\ns_mov_b32 s22, {wosz}\ns_mov_b32 s23, 0x00020000\n"
                       f"s_lshl_b32 s32, s3, 10\ns_mul_i32 s33, s77, {108*1024}\ns_add_u32 s33, s33, s32\ns_waitcnt lgkmcnt(0)\ns_barrier")
        nb_ = 0
        for i in list(range(25, 32)) + list(range(22, 32)):
            if nb_ < EW and len(extra[i]) < 2:
                extra[i].append("s_mov_b32 m0, s32\ns_add_u32 s32, s32, 8192\nbuffer_load_dwordx4 v3, s[20:23], s33 offen lds\ns_add_u32 s33, s33, 8192"); nb_ += 1
        assert nb_ == EW
    if OPT.get("wo_touch", True):
        L = a.label("wt")
        wb0 = WS["WBAR"][0]; wsz = WS["WOF"][0] + WS["WOF"][1] - wb0
        extra[19].append(f"s_sub_u32 s56, s3, 3\ns_cmp_ge_u32 s56, 3\ns_cbranch_scc1 {L}\ns_lshr_b32 s57, s2, 3\ns_mul_i32 s57, s57, 3\ns_add_u32 s56, s56, s57\ns_lshl_b32 s56, s56, 13\n"
                         f"s_add_u32 s28, s14, {wb0}\ns_addc_u32 s29, s15, 0\ns_mov_b32 s30, {wsz}\ns_mov_b32 s31, 0x00020000\nv_lshlrev_b32 v206, 7, v0\nbuffer_load_dword v205, v206, s[28:31], s56 offen\n{L}:")
    if OPT["codepf"]:
        L = a.label("cp")
        extra[18].append(f"s_lshr_b32 s56, s2, 3\ns_cmp_ge_u32 s56, CODE_PF_N\ns_cbranch_scc1 {L}\ns_cmp_lg_u32 s3, 0\ns_cbranch_scc1 {L}\n"
                         f"s_getpc_b64 s[58:59]\n{L}_pc:\ns_add_u32 s58, s58, K2_out-{L}_pc\ns_addc_u32 s59, s59, 0\n"
                         f"s_lshl_b32 s56, s56, 13\nv_lshlrev_b32 v206, 7, v0\nv_add_u32 v206, s56, v206\nv_min_u32 v206, CODE_END-K2_out-4, v206\nglobal_load_dword v205, v206, s[58:59]\n{L}:")
    for i in range(32):
        cur, nxt = (SA, SB) if i % 2 == 0 else (SB, SA)
        q = qk(nxt, (i + 1) % 2, NMr) if i < 31 else ["", "", ""]
        vs_ = i % 2
        kr = rdK(i % 2, i + 2) if i + 2 < 32 else ["", "", ""]
        vrd = rdV((i + 1) % 2, i + 1) if i < 31 else [""] * 4
        e = [E(cur, g) for g in range(8)]
        ex = extra[i] + ["", ""]
        seq = list(pre[i])
        if OPT["prio"] and i % 5 in (0, OPT["prio"]):
            L = a.label("pr")
            seq.append(f"s_cmp_lt_u32 s3, 4\ns_cbranch_scc1 {L}\ns_setprio {2 if i % 5 == 0 else 0}\n{L}:")
        seq += ["s_waitcnt lgkmcnt(0)", q[0]] + kr[0:2] + e[0]
        seq += [pvm(1 - vs_, 3) if i > 0 else ""] + kr[2:3] + vrd[0:1] + e[1]
        seq += [q[1]] + vrd[1:3] + e[2]
        seq += [pvm(vs_, 0)] + vrd[3:4] + e[3]
        seq += [q[2], ex[0]] + e[4] + e[5][:3]
        seq += [pvm(vs_, 1), ex[1]] + e[5][3:] + e[6][:2]
        seq += [pvm(vs_, 2)] + e[6][2:] + e[7]
        for x in seq:
            if x: a(x)
        if i % 8 == 7: st(3 + i // 8)
    a("s_nop 1"); a(pvm(1, 3))
    a("s_setprio 0\ns_nop 15")
    def bcast_l():
        a(f"v_mov_b32 v25, v{O+10}\nv_mov_b32 v26, v{O+10}\ns_nop 1\nv_permlane32_swap_b32 v25, v26\ns_nop 1")
    bcast_l()
    a(f"v_mov_b32 v26, {f32bits(2.0**60)}\nv_cmp_nle_f32 vcc, v25, v26\ns_nop 4\ns_cbranch_vccz K2_out")
    a("v_mov_b32 v24, 0xff800000")
    for ps in range(2):
        a(f"s_mov_b32 s52, 0\nv_mov_b32 v27, v{VKA}\nv_mov_b32 v28, v{VK2}\nv_mov_b32 v29, v{VVA}")
        a(f"K2_fb{ps}:")
        a(f"buffer_load_dwordx4 v[{KF}:{KF+3}], v27, s[16:19], 0 offen\nbuffer_load_dwordx4 v[{KF+4}:{KF+7}], v27, s[16:19], 0 offen offset:1024\nbuffer_load_dword v{K2F}, v28, s[16:19], 0 offen offset:2048")
        if ps:
            a("s_movk_i32 s53, 2304")
            for u in range(4): a(f"buffer_load_dwordx4 v[{VF+4*u}:{VF+4*u+3}], v29, s[16:19], s53 offen offset:{608*u}")
        a("s_waitcnt vmcnt(0)")
        q = qk(SA, 0, NMr if ps else "0")
        a(q[0]); a(q[1]); a("s_nop 9"); a(q[2]); a("s_nop 15\ns_nop 3")
        if ps == 0:
            for x in rowmax(SA, 24, False): a(x)
        else:
            for g in range(8):
                for x in E(SA, g): a(x)
            a("s_nop 1")
            for u in range(4): a(pvm(0, u))
        a(f"v_add_u32 v27, {PAIR}, v27\nv_add_u32 v28, {PAIR}, v28\nv_add_u32 v29, {PAIR}, v29")
        a(f"s_add_u32 s52, s52, 1\ns_cmp_lt_u32 s52, 32\ns_cbranch_scc1 K2_fb{ps}")
        if ps == 0:
            set_nm(24)
            for r in range(16): a(f"v_mov_b32 v{O+r}, 0")
    a("s_nop 15")
    bcast_l()
    a("K2_out:")
    WR, XR, ACC, XRES = 12, 40, 112, 140
    a("s_lshr_b32 s77, s2, 5\ns_and_b32 s78, s2, 7\ns_lshl_b32 s78, s78, 2\ns_bfe_u32 s43, s2, 0x20003\ns_add_u32 s78, s78, s43")
    a("s_cmp_ge_u32 s3, 4\ns_cbranch_scc1 K2_noearly")
    a("s_lshl_b32 s46, s78, 2\ns_add_u32 s46, s46, s3")
    ws_srd(a, 48, "MEAN1", 14)
    ws_srd(a, 52, "XC", 14)
    a(f"s_mul_i32 s47, s77, 3072\ns_mul_i32 s30, s46, 18432\ns_add_u32 s47, s47, s30")
    for u in range(3):
        a(f"buffer_load_dwordx4 v[{XRES+4*u}:{XRES+4*u+3}], v3, s[52:55], s47 offen offset:{1024*u}")
    a(f"v_and_b32 v166, 15, v0\nv_lshlrev_b32 v166, 2, v166\ns_lshl_b32 s65, s46, 6\nbuffer_load_dword v165, v166, s[48:51], s65 offen")
    a(f"s_lshl_b32 s43, s34, 10\ns_add_u32 s43, s43, {FL_RF}\nbuffer_load_dwordx4 v[160:163], v3, s[36:39], s43 offen sc1")
    a("K2_noearly:")
    a(f"v_rcp_f32 v25, v25\ns_nop 0")
    for r in range(10): a(f"v_mul_f32 v{O+r}, v{O+r}, v25")
    for r in range(5): a(f"v_cvt_pk_bf16_f32 v{P+r}, v{O+2*r}, v{O+2*r+1}")
    a(f"v_lshrrev_b32 v26, 4, v1\nv_mul_u32_u24 v27, {18*1024}, v26\nv_and_b32 v28, 15, v1\nv_lshl_add_u32 v27, v28, 4, v27\nv_lshl_add_u32 v27, v2, 8, v27")
    a(f"s_mul_i32 s42, s40, {36*1024}\ns_lshl_b32 s43, s41, 9\ns_add_u32 s43, s43, s42")
    a(f"buffer_store_dwordx4 v[{P}:{P+3}], v27, s[24:27], s43 offen sc1")
    OSC = 32 * PAIR + 1024
    a(f"s_lshr_b32 s43, s3, 2\ns_lshl_b32 s43, s43, 8\ns_and_b32 s44, s3, 3\ns_lshl_b32 s44, s44, 2\ns_add_u32 s43, s43, s44\ns_add_u32 s43, s43, {OSC}")
    a(f"v_lshlrev_b32 v26, 9, v26\nv_lshl_add_u32 v26, v28, 4, v26\nv_add_u32 v26, s43, v26\ns_mov_b64 exec, 0xffffffff\nds_write_b32 v26, v{P+4}\ns_mov_b64 exec, -1")
    a(f"v_mov_b32 v172, {ffn.CNT}\nv_mov_b32 v8, 1\nv_mov_b32 v9, 0\ns_lshl_b32 s79, s2, 7\ns_add_u32 s79, s79, {FL_OF}")
    a(f"v_add_u32 v4, {OSC}, v3\nv_mul_u32_u24 v5, {18*1024}, v2\nv_lshl_add_u32 v5, v1, 4, v5")
    a("s_and_b32 s43, s2, 3\ns_lshl_b32 s43, s43, 9\ns_add_u32 s43, s43, s42\ns_add_u32 s43, s43, 16384")
    a("s_waitcnt lgkmcnt(0)\ns_barrier")
    st(7)
    a("s_cmp_lg_u32 s3, 0\ns_cbranch_scc1 K3_norem")
    a("ds_read_b128 v[12:15], v4\ns_waitcnt lgkmcnt(0)\nbuffer_store_dwordx4 v[12:15], v5, s[24:27], s43 offen sc1")
    a("K3_norem:")
    a("v_lshlrev_b32 v2, 4, v0\ns_mov_b32 s40, s77\ns_mov_b32 s41, s78")
    a("s_waitcnt vmcnt(0)\ns_mov_b64 exec, 1\nds_add_rtn_u32 v168, v172, v8 offset:12\ns_waitcnt lgkmcnt(0)\nv_readfirstlane_b32 s70, v168\ns_cmp_lg_u32 s70, 7\ns_cbranch_scc1 K3_nofl")
    a("buffer_store_dword v8, v9, s[36:39], s79 offen sc1\nK3_nofl:\ns_mov_b64 exec, -1")
    a("s_cmp_ge_u32 s3, 4\ns_cbranch_scc1 K3_loader")
    a("v_add_u32 v3, 0x10000, v2\nv_add_u32 v4, 0x20000, v2\nv_and_b32 v5, 15, v0\nv_lshrrev_b32 v6, 4, v0\nv_lshlrev_b32 v7, 7, v0")
    a("v_lshlrev_b32 v11, 2, v5\nv_mov_b32 v10, v165")
    st(8)
    a("s_cmp_ge_u32 s40, 6\ns_cbranch_scc1 K4_compute")
    a(f"s_lshl_b32 s43, s41, 3\ns_lshr_b32 s44, s3, 1\ns_lshl_b32 s44, s44, 2\ns_add_u32 s43, s43, s44\ns_lshl_b32 s43, s43, 7\ns_add_u32 s43, s43, {FL_OF}")
    ws_srd(a, 52, "HC", 14)
    ws_srd(a, 56, "MU2", 14)
    ws_srd(a, 60, "SS", 14)
    a("s_barrier")
    st(13)
    for j in range(7):
        off = j * 1024 if j < 6 else 108 * 1024
        a(f"ds_read_b128 v[{12+4*j}:{15+4*j}], v{2 + off // 65536} offset:{off % 65536}")
    poll(a, 4, 7, 36, 43, 164, 1)
    st(9)
    def oload(ks):
        return ("s_add_u32 s30, s30, 4096\n" if ks and ks % 4 == 0 else "") + f"buffer_load_dwordx4 v[{XR+4*ks}:{XR+4*ks+3}], v2, s[24:27], s30 offen offset:{(ks%4)*1024} sc1"
    OD = OPT.get("k3_od", 6)
    for ks in range(OD): a(oload(ks))
    st(10)
    def wread(ks, j):
        off = (ks * 6 + j) * 1024 if j < 6 else (108 + ks) * 1024
        return f"ds_read_b128 v[{WR+4*j}:{WR+4*j+3}], v{2 + off // 65536} offset:{off % 65536}"
    nl = OD
    for ks in range(18):
        for j in range(7):
            a((f"s_waitcnt vmcnt({nl-1-ks}) " if j == 0 else "s_waitcnt ") + f"lgkmcnt({6 if ks < 17 else 6-j})")
            c = "0" if ks == 0 else f"v[{ACC+4*j}:{ACC+4*j+3}]"
            a(f"v_mfma_f32_16x16x32_bf16 v[{ACC+4*j}:{ACC+4*j+3}], v[{WR+4*j}:{WR+4*j+3}], v[{XR+4*ks}:{XR+4*ks+3}], {c}")
            if ks < 17: a(wread(ks + 1, j))
            if j in (1, 4) and nl < 18:
                a(oload(nl)); nl += 1
    a("s_barrier")
    st(11)
    e = ACC + 24
    a(f"s_nop 6\nv_add_f32 v10, v10, v{e}\nv_add_f32 v10, v10, v{e+1}\nv_mov_b32 v14, 0")
    for u in range(3):
        for r in range(4):
            x = XRES + 4 * u + r
            lo, hi = ACC + 8 * u + r, ACC + 8 * u + 4 + r
            a(f"v_lshlrev_b32 v12, 16, v{x}\nv_and_b32 v13, 0xffff0000, v{x}")
            a(f"v_add_f32 v{lo}, v{lo}, v12\nv_add_f32 v{hi}, v{hi}, v13")
            a(f"v_sub_f32 v{lo}, v{lo}, v10\nv_sub_f32 v{hi}, v{hi}, v10")
            a(f"v_cvt_pk_bf16_f32 v{XR+4*u+r}, v{lo}, v{hi}")
        a(f"buffer_store_dwordx4 v[{XR+4*u}:{XR+4*u+3}], v2, s[52:55], s47 offen offset:{1024*u} sc1")
    for i in range(12): a(f"v_dot2_f32_bf16 v14, v{XR+i}, v{XR+i}, v14")
    a("s_nop 2")
    sum_g(a, 14, 12)
    a("s_lshl_b32 s43, s41, 3\ns_add_u32 s43, s43, s40\ns_lshl_b32 s43, s43, 8\ns_lshl_b32 s44, s3, 6\ns_add_u32 s43, s43, s44\ns_mov_b64 exec, 0xffff")
    a("buffer_store_dword v14, v11, s[60:63], s43 offen sc1")
    a("s_cmp_lg_u32 s40, 0\ns_cbranch_scc1 K3_nomu\nbuffer_store_dword v10, v11, s[56:59], s65 offen sc1\nK3_nomu:")
    a(f"s_lshl_b32 s43, s46, 3\ns_add_u32 s43, s43, s40\ns_lshl_b32 s43, s43, 7\ns_add_u32 s43, s43, {FL_HF}")
    a("s_waitcnt vmcnt(0)\ns_mov_b64 exec, 1\nbuffer_store_dword v8, v9, s[36:39], s43 offen sc1\ns_mov_b64 exec, -1")
    st(12)
    a("s_branch K4_compute")
    a("K3_loader:")
    a(f"v_mov_b32 v4, {ffn.CNT}")
    a("s_sub_u32 s33, s3, 4\ns_cmp_ge_u32 s40, 6\ns_cbranch_scc1 K4_helper")
    ws_srd(a, 20, "WOF", 14)
    ws_srd(a, 68, "WBAR", 14)
    a(f"s_lshl_b32 s76, s33, 10\ns_mul_i32 s75, s40, {108*1024}\ns_add_u32 s74, s76, {EW*8192}\ns_add_u32 s75, s75, s74")
    for i in range(2*EW, 32):
        sd, so = ((20, 75) if i < 27 else (68, 76))
        a(f"s_mov_b32 m0, s74\ns_add_u32 s74, s74, 4096\nbuffer_load_dwordx4 v2, s[{sd}:{sd+3}], s{so} offen lds\ns_add_u32 s{so}, s{so}, 4096")
    a("s_waitcnt vmcnt(0)\ns_barrier\ns_barrier\ns_branch K4_helper")
    k4(a, st)
    a("K2_end:\ns_endpgm\nCODE_END:")
    return kernel_desc("k2_kernel", 256)

def k4(a, st0):
    st = lambda i: st0(20 + i)
    a("K4_compute:\ns_mov_b32 s40, s34\ns_mov_b32 s41, s35")
    a(f"s_lshl_b32 s43, s34, 10\ns_add_u32 s43, s43, {FL_RF}\ns_mov_b32 s73, 0x8000\ns_branch K3_rf1")
    a("K3_rf:\nbuffer_load_dwordx4 v[160:163], v2, s[36:39], s43 offen sc1\ns_waitcnt vmcnt(0)\nK3_rf1:\nv_and_b32 v12, v160, v161\nv_and_b32 v14, v162, v163\nv_and_b32 v12, v12, v14\nv_cmp_eq_u32 vcc, 1, v12\ns_nop 1")
    a("s_cmp_eq_u64 vcc, -1\ns_cbranch_scc1 K3_rfok\ns_sleep 2\ns_sub_u32 s73, s73, 1\ns_cbranch_scc0 K3_rf\nK3_rfok:")
    a(f"s_lshl_b32 s46, s40, 2\ns_add_u32 s46, s46, s3\ns_mul_i32 s31, s46, {324*1024}")
    ws_srd(a, 20, "WF", 14)
    a("s_setprio 2")
    a("v_add_u32 v3, 0x10000, v2\nv_add_u32 v4, 0x20000, v2")
    a(f"s_mul_i32 s42, s3, 3\ns_lshr_b32 s43, s42, 1\ns_lshl_b32 s43, s43, 12\ns_and_b32 s44, s42, 1\ns_lshl_b32 s45, s44, 3\ns_add_u32 s43, s43, s45\ns_add_u32 s43, s43, {ffn.HB}")
    a("v_add_u32 v5, s43, v2")
    a("s_mul_i32 s45, s44, 4080\ns_add_u32 s45, s45, 8\nv_add_u32 v6, s45, v5")
    a("v_and_b32 v12, 15, v0\nv_mul_u32_u24 v12, 400, v12\nv_lshrrev_b32 v13, 4, v0\nv_lshl_add_u32 v12, v13, 5, v12")
    for t in range(3):
        a(f"s_add_u32 s45, s42, {t}\ns_lshr_b32 s46, s45, 2\ns_lshl_b32 s46, s46, 7\ns_and_b32 s45, s45, 3\ns_lshl_b32 s45, s45, 3\ns_add_u32 s45, s45, s46\nv_add_u32 v{7+t}, s45, v12")
    a(f"v_mov_b32 v10, 1\nv_mov_b32 v11, {ffn.CNT}")
    ffn.ffn_compute(a, srdW=20, sW=31, v_lane16=2, v_h8=5, v_p=7, v_one=10, RINGF=(19 if (st0.on) else 20), stamp=st, PRE=OPT.get("k4_pre", 12))
    PB, AC = 48, 112
    uid = [0]
    def pub_setup(nr, g0):
        ws_srd(a, 24, "PART", 14)
        ws_srd(a, 36, "FLAG", 14)
        rows = nr * 1024 // 384
        a(f"s_mul_i32 s45, s33, {rows*400}\ns_add_u32 s45, s45, {g0*ffn.STG}")
        for i in range(nr):
            a(f"v_add_u32 v12, {64*i}, v0\nv_mul_u32_u24 v13, 2731, v12\nv_lshrrev_b32 v13, 16, v13\nv_add_u32 v12, v12, v13\nv_lshlrev_b32 v12, 4, v12\nv_add_u32 v{36+i}, s45, v12")
        a(f"s_mul_i32 s49, s41, 3\ns_add_u32 s49, s49, {g0}\ns_mul_i32 s46, s49, {8*24576}\ns_mul_i32 s47, s40, 24576\ns_mul_i32 s48, s33, {nr*1024}\ns_add_u32 s47, s47, s48\ns_add_u32 s47, s47, s46")
        a(f"v_mov_b32 v4, {ffn.CNT + 4*g0}\nv_mov_b32 v13, 1\nv_mov_b32 v18, 0")
        a("s_lshl_b32 s49, s49, 12\ns_lshl_b32 s50, s33, 10\ns_lshl_b32 s51, s40, 7\ns_add_u32 s50, s50, s51\ns_add_u32 s50, s50, s49")
    def publish(nr, k, sb):
        uid[0] += 1; u = uid[0]
        a("s_mov_b32 s72, 0x40000")
        a(f"K4_pl{u}:\nds_read_b32 v3, v4 offset:{4*k}\ns_waitcnt lgkmcnt(0)\nv_readfirstlane_b32 s70, v3\ns_cmp_eq_u32 s70, 4\ns_cbranch_scc1 K4_go{u}\ns_sleep 2\ns_sub_u32 s72, s72, 1\ns_cbranch_scc0 K4_pl{u}\nK4_go{u}:")
        st(sb)
        for i in range(nr):
            a(f"ds_read_b128 v[{PB+4*i}:{PB+4*i+3}], v{36+i} offset:{k*ffn.STG}")
        a("s_mov_b32 s71, s47")
        for i in range(nr):
            if i and i % 4 == 0: a("s_add_u32 s71, s71, 4096")
            a(f"s_waitcnt lgkmcnt({nr-1-i})\nbuffer_store_dwordx4 v[{PB+4*i}:{PB+4*i+3}], v2, s[24:27], s71 offen offset:{(i%4)*1024} sc1")
        a("s_waitcnt vmcnt(0)")
        a(f"s_mov_b64 exec, 1\nbuffer_store_dword v13, v18, s[36:39], s50 offen sc1\ns_mov_b64 exec, -1")
        st(sb + 1)
        a(f"s_add_u32 s47, s47, {8*24576}\ns_add_u32 s50, s50, 4096")
    def red_setup(nu, g0, ng, pubrows):
        ws_srd(a, 24, "PART", 14)
        ws_srd(a, 36, "FLAG", 14)
        ws_srd(a, 16, "HC", 14)
        ws_srd(a, 52, "MU2", 14)
        ws_srd(a, 56, "SS", 14)
        srd(a, 60, 4, 0, T*DM*2)
        a(f"s_lshl_b32 s42, s40, 2\ns_mul_i32 s43, s33, {nu}\ns_add_u32 s42, s42, s43\ns_lshl_b32 s43, s42, 1")
        a(f"s_mul_i32 s49, s41, 3\ns_add_u32 s49, s49, {g0}\ns_mul_i32 s46, s49, {8*24576}\ns_mul_i32 s48, s42, 768\ns_add_u32 s48, s48, s46")
        a(f"s_lshl_b32 s49, s49, 12\ns_lshr_b32 s51, s43, {pubrows.bit_length()-1}\ns_lshl_b32 s51, s51, 10\ns_add_u32 s51, s51, s49")
        a("v_lshlrev_b32 v12, 7, v0")
        a("v_cmp_lt_u32 vcc, 23, v0\nv_subrev_u32 v6, 24, v0\ns_nop 0\nv_cndmask_b32 v5, 0, 1, vcc\nv_cndmask_b32 v6, v0, v6, vcc")
        a("v_add_u32 v7, s43, v5")
        a("v_cmp_gt_u32 vcc, 48, v0\nv_bfrev_b32 v8, 1\ns_nop 0\nv_cndmask_b32 v9, v8, v2, vcc")
        a("v_lshrrev_b32 v10, 4, v7\nv_mul_u32_u24 v10, 18432, v10\nv_lshl_add_u32 v10, v6, 8, v10\nv_and_b32 v11, 15, v7\nv_lshl_add_u32 v10, v11, 4, v10\nv_cndmask_b32 v10, v8, v10, vcc")
        a(f"v_mul_u32_u24 v11, {DM*2}, v7\nv_lshl_add_u32 v11, v6, 4, v11\nv_cndmask_b32 v11, v8, v11, vcc")
        a(f"s_mul_i32 s30, s41, 73728\ns_add_u32 s30, s30, {g0*6144}")
        for k in range(ng):
            for un in range(nu):
                a(f"buffer_load_dwordx4 v[{20+4*(k*nu+un)}:{23+4*(k*nu+un)}], v10, s[16:19], s30 offen offset:{32*un} sc1")
            a("s_add_u32 s30, s30, 6144")
        a("v_lshlrev_b32 v19, 2, v7\ns_lshl_b32 s44, s41, 8\ns_lshl_b32 s65, s41, 11")
        for un in range(nu):
            a(f"buffer_load_dword v{140+un}, v19, s[52:55], s44 offen offset:{8*un} sc1")
            for nb in range(6):
                a(f"buffer_load_dword v{144+8*un+nb}, v19, s[56:59], s65 offen offset:{8*un+256*nb} sc1")
        a(f"s_mul_i32 s64, s41, {64*DM*2}\ns_add_u32 s64, s64, {g0*384}")
        a("v_and_b32 v19, 1, v0\nv_cmp_eq_u32 s[66:67], 1, v19")
        a(f"s_mov_b32 s68, 0x00003f80\ns_mov_b32 s69, 0x3f800000")
    def red_stats(nu):
        for un in range(nu):
            b = 144 + 8*un
            a(f"v_add_f32 v{b}, v{b}, v{b+1}\nv_add_f32 v{b+2}, v{b+2}, v{b+3}\nv_add_f32 v{b+4}, v{b+4}, v{b+5}\nv_add_f32 v{b}, v{b}, v{b+2}\nv_add_f32 v{b}, v{b}, v{b+4}")
            a(f"v_mov_b32 v{b+1}, {f32bits(1e-5)}\nv_fmac_f32 v{b+1}, {f32bits(1.0/DM)}, v{b}\nv_rsq_f32 v{142+un}, v{b+1}")
    def reduce(nu, k, sb, slp, stats=False):
        uid[0] += 1; u = uid[0]
        a("s_mov_b32 s73, 0x8000\ns_mov_b64 exec, 0xff")
        a(f"K4_pg{u}:\nbuffer_load_dword v3, v12, s[36:39], s51 offen sc1\ns_waitcnt vmcnt(0)\nv_cmp_eq_u32 vcc, 1, v3\ns_nop 1\ns_cmp_eq_u32 vcc_lo, 0xff\ns_cbranch_scc1 K4_gg{u}\ns_sleep {slp}\ns_sub_u32 s73, s73, 1\ns_cbranch_scc0 K4_pg{u}\nK4_gg{u}:")
        a("s_mov_b64 exec, -1")
        st(sb)
        for un in range(nu):
            a("s_mov_b32 s71, s48")
            for j in range(8):
                b = PB + 32*un + 4*j
                a(f"buffer_load_dwordx4 v[{b}:{b+3}], v9, s[24:27], s71 offen offset:{768*un} sc1\ns_add_u32 s71, s71, 24576")
        if stats: red_stats(nu)
        for un in range(nu):
            for j in range(8):
                a(f"s_waitcnt vmcnt({8*(nu-1-un) + 7-j})")
                for qq in range(2):
                    for p in range(2):
                        for hh in range(2):
                            d = AC + 2*(2*p+hh) + qq
                            c = "0" if j == 0 else f"v{d}"
                            a(f"v_dot2_f32_bf16 v{d}, v{PB+32*un+4*j+2*qq+p}, s{68+hh}, {c}")
            a("s_nop 2")
            for i in range(4):
                a(f"v_cndmask_b32 v{AC+8+i}, v{AC+4+i}, v{AC+i}, s[66:67]")
                a(f"v_cndmask_b32 v{AC+12+i}, v{AC+i}, v{AC+4+i}, s[66:67]")
            a("s_nop 1")
            for i in range(4):
                a(f"v_mov_b32_dpp v{AC+16+i}, v{AC+8+i} quad_perm:[1,0,3,2] row_mask:0xf bank_mask:0xf")
            for hlf in range(2):
                for e in range(2):
                    k_, r_ = AC + 12 + 2*hlf + e, AC + 16 + 2*hlf + e
                    a(f"v_cndmask_b32 v{AC+4*hlf+e}, v{k_}, v{r_}, s[66:67]\nv_cndmask_b32 v{AC+4*hlf+2+e}, v{r_}, v{k_}, s[66:67]")
            h0 = 20 + 4*(k*nu+un)
            for i in range(4):
                hcr = h0 + i
                a(f"v_lshlrev_b32 v16, 16, v{hcr}\nv_and_b32 v17, 0xffff0000, v{hcr}\nv_add_f32 v16, v16, v{140+un}\nv_add_f32 v17, v17, v{140+un}")
                a(f"v_fmac_f32 v16, v{AC+2*i}, v{142+un}\nv_fmac_f32 v17, v{AC+2*i+1}, v{142+un}\nv_cvt_pk_bf16_f32 v{hcr}, v16, v17")
        for un in range(nu):
            h0 = 20 + 4*(k*nu+un)
            a(f"buffer_store_dwordx4 v[{h0}:{h0+3}], v11, s[60:63], s64 offen offset:{384*k + 2*DM*2*un}")
        st(sb + 1)
        a(f"s_add_u32 s48, s48, {8*24576}\ns_add_u32 s51, s51, 4096")
    a("s_mov_b32 s33, s3")
    pub_setup(6, 2); publish(6, 0, 10)
    red_setup(1, 2, 1, 16); reduce(1, 0, 12, 1, stats=True)
    a("s_branch K4_fin")
    a("K4_helper:")
    a(f"s_setprio {OPT.get('k4_hprio', 3)}\ns_mov_b32 s40, s34\ns_mov_b32 s41, s35")
    a(f"s_mul_i32 s30, s41, 73728\ns_mul_i32 s90, s33, 18432\ns_add_u32 s30, s30, s90")
    ws_srd(a, 16, "HC", 14)
    a(f"s_lshl_b32 s43, s41, 2\ns_add_u32 s43, s43, s33\ns_lshl_b32 s43, s43, 10\ns_add_u32 s43, s43, {FL_HF}\nv_lshlrev_b32 v12, 7, v0")
    poll(a, 6, 12, 36, 43, 3, 1)
    st(9)
    for i in range(18):
        if i % 4 == 0: a("s_mov_b32 m0, s90\ns_add_u32 s90, s90, 4096")
        a(f"buffer_load_dwordx4 v2, s[16:19], s30 offen offset:{(i%4)*1024} sc1 lds")
        if i % 4 == 3: a("s_add_u32 s30, s30, 4096")
        if i >= 5 and i % 3 == 2: a("s_waitcnt vmcnt(3)\ns_barrier")
    a("s_waitcnt vmcnt(0)\ns_barrier")
    a("s_cmp_ge_u32 s33, 2\ns_cbranch_scc1 K4_reducer")
    pub_setup(12, 0)
    for i in range(ffn.N_BARRIERS_AFTER_X): a("s_barrier")
    publish(12, 0, 10); publish(12, 1, 14)
    a("s_branch K4_fin")
    a("K4_reducer:\ns_sub_u32 s33, s33, 2")
    red_setup(2, 0, 2, 32)
    a("s_waitcnt vmcnt(0)")
    red_stats(2)
    for i in range(ffn.N_BARRIERS_AFTER_X): a("s_barrier")
    for k in range(2):
        a(f"s_mov_b32 s72, 0x40000\nK4_rw{k}:\nds_read_b32 v3, v4 offset:{4*k}\ns_waitcnt lgkmcnt(0)\nv_readfirstlane_b32 s70, v3\ns_cmp_eq_u32 s70, 4\ns_cbranch_scc1 K4_rg{k}\ns_sleep 4\ns_sub_u32 s72, s72, 1\ns_cbranch_scc0 K4_rw{k}\nK4_rg{k}:")
        reduce(2, k, 12 + 4*k, 8)
    a("K4_fin:")
    st0.finish(14, 3, 8)

HEADER = open("cdna_kernels/" + NAME + ".s.ref").read().split("; Override launch geometry")[0]
def build(stamp_k=-1, force_fallback=False, light=False, **opt):
    LIGHT[0] = light
    OPT.update(opt)
    a = Asm()
    launches = [("k1_kernel", K1_GRID, 512, K1_LDS), ("k2_kernel", K2_GRID, 512, K2_LDS)]
    hdr = HEADER + "".join(f"; @launch kernel={k} grid=({g},1,1) block=({b},1,1) lds={l}\n" for k, g, b, l in launches)
    a('.amdgcn_target "amdgcn-amd-amdhsa--gfx950"\n.text')
    descs = [k1(a, stamp_k), k2(a, stamp_k, force_fallback)]
    a('.set CODE_PF_N, (CODE_END - K2_out + 8191) / 8192')
    a('.section .rodata,"a"')
    return hdr + a.text() + "".join(descs)

if __name__ == "__main__":
    out = sys.argv[1] if len(sys.argv) > 1 else "cdna_kernels/" + NAME + ".s"
    kw = eval("dict(" + (sys.argv[2] if len(sys.argv) > 2 else "") + ")")
    open(out, "w").write(build(**kw))
```

```python
import sys, math
from asmlib import *
from gemm import gemm_core
import ffn

T, DM, NH, DH, F = 2048, 576, 32, 18, 4608
NAME = "sequential_preLN__grouped_kv_mqa__dense_activation_relu__prompt"
A_X, A_WQ, A_WK, A_WV, A_WO, B_X, B_W1, B_W2, K_OUT, K_DBG, K_WS = [8 * i for i in range(11)]
def _al(x, a=4096): return (x + a - 1) // a * a
PAIR = 4736
FL_PF, FL_OF, FL_HF, FL_RF = 0, 393216, 393216 + 32768, 393216 + 32768 + 131072
FL_END = FL_RF + 8192
WS = {}
_o = 0
for nm, sz in [("Q", T*DM*2), ("KV", 32*PAIR), ("MEAN1", T*4), ("O", T*DM*2), ("HC", T*DM*2), ("MU2", T*4),
               ("SS", T*8*4), ("XC", T*DM*2), ("WBAR", 18*1024), ("WOF", 648*1024), ("WF", 2*DM*F*2),
               ("PART", 8*T*DM*2), ("FLAG", FL_END), ("STAMP", 16 << 20)]:
    WS[nm] = (_o, sz); _o += _al(sz)
WS_END = _o
QSCALE = math.log2(math.e) / math.sqrt(DH)
def f32bits(x):
    import struct
    return struct.unpack("<I", struct.pack("<f", x))[0]
ONES = 0x3f803f80

def ws_srd(a, d, nm, base):
    srd(a, d, base, WS[nm][0], WS[nm][1])

def wave_lane(a, s_wave=3):
    a(f"v_lshrrev_b32 v1, 6, v0\nv_and_b32 v0, 63, v0\ns_nop 0\nv_readfirstlane_b32 s{s_wave}, v1")

def sum_g(a, v, t):
    a(f"v_mov_b32 v{t}, v{v}\ns_nop 1\nv_permlane32_swap_b32 v{v}, v{t}\ns_nop 1\nv_add_f32 v{v}, v{v}, v{t}")
    a(f"v_mov_b32 v{t}, v{v}\ns_nop 1\nv_permlane16_swap_b32 v{v}, v{t}\ns_nop 1\nv_add_f32 v{v}, v{v}, v{t}")

LIGHT = [False]
OPT = dict(prio=4, k2_nt=True, codepf=True)
class Stamps:
    def __init__(self, a, on, kidx, vreg, vtmp):
        self.a, self.on, self.k, self.v, self.t = a, bool(on) or LIGHT[0], kidx, vreg, vtmp
        self.full = bool(on)
    def start(self):
        if self.on:
            self.a(f"s_memrealtime s[96:97]\ns_memtime s[98:99]\nv_mov_b32 v{self.v}, 0\ns_waitcnt lgkmcnt(0)\nv_writelane_b32 v{self.v}, s96, 62")
    def __call__(self, i):
        if self.full or (self.on and i == 61):
            if OPT.get("rt") and i != 61:
                self.a(f"s_memrealtime s[96:97]\ns_waitcnt lgkmcnt(0)\nv_writelane_b32 v{self.v}, s96, {i}")
            else:
                self.a(f"s_memtime s[96:97]\ns_waitcnt lgkmcnt(0)\ns_sub_u32 s96, s96, s98\nv_writelane_b32 v{self.v}, s96, {i}")
    def finish(self, s_ws, s_wave, nw):
        if self.on:
            a = self.a
            a("s_waitcnt vmcnt(0)")
            self(61)
            a(f"s_memrealtime s[96:97]\ns_waitcnt lgkmcnt(0)\nv_writelane_b32 v{self.v}, s96, 63")
            ws_srd(a, 92, "STAMP", s_ws)
            a(f"s_lshl_b32 s96, s2, 3\ns_add_u32 s96, s96, s{s_wave}\ns_lshl_b32 s96, s96, 8\ns_add_u32 s96, s96, {self.k << 21}")
            a(f"v_mbcnt_lo_u32_b32 v{self.t}, -1, 0\nv_mbcnt_hi_u32_b32 v{self.t}, -1, v{self.t}\nv_lshlrev_b32 v{self.t}, 2, v{self.t}")
            a(f"buffer_store_dword v{self.v}, v{self.t}, s[92:95], s96 offen")


class Repack:
    PR = 208
    def __init__(self, a): self.a = a
    def common(self):
        return (f"s_add_u32 s60, s14, {WS['WOF'][0]}\ns_addc_u32 s61, s15, 0\ns_mov_b32 s62, {WS['WF'][0] + WS['WF'][1] - WS['WOF'][0]}\ns_mov_b32 s63, 0x00020000\n"
                "v_and_b32 v6, 15, v0\nv_lshrrev_b32 v7, 4, v0\ns_mov_b32 s80, 0x05040100\ns_mov_b32 s81, 0x07060302")
    def regs(self, rnd): return 64 + 4 * rnd, 72 + 4 * rnd, 82 + 4 * rnd, 242 + rnd, 240 + rnd
    def setup_ffn(self, rnd, pw1, pw2):
        L = self.a.label("rp")
        SD, SB_, SO, vsrc, dst = self.regs(rnd)
        OWF = WS["WF"][0] - WS["WOF"][0]
        t = []; A = t.append
        A(f"s_mul_hi_u32 s46, s47, {(2**32 + 161)//162}\ns_mul_i32 s49, s46, 162\ns_sub_u32 s47, s47, s49")
        A(f"s_mul_hi_u32 s49, s47, {(2**32 + 8)//9}\ns_mul_i32 s50, s49, 9\ns_sub_u32 s50, s47, s50")
        A(f"s_mov_b32 s{SD+3}, 0x00020000\ns_lshl_b32 s54, s50, 7\nv_mov_b32 v{dst}, v3")
        A(f"s_cmp_lt_u32 s46, 2\ns_cselect_b32 s{SD+2}, {DM*F*2}, 0\ns_cselect_b32 s57, 0, 0x100000")
        A(f"s_mul_i32 s53, s45, 1296\ns_mul_i32 s55, s46, 162\ns_add_u32 s53, s53, s55\ns_mul_i32 s55, s49, 3\ns_add_u32 s53, s53, s55\ns_add_u32 s53, s53, {OWF//1024}\ns_add_u32 s53, s53, s57")
        for q in range(4):
            A(f"s_lshl_b32 s55, s50, 2\ns_add_u32 s55, s55, {q}\ns_mul_i32 s56, s55, 86\ns_lshr_b32 s56, s56, 8")
            A(f"s_lshr_b32 s58, s56, 2\ns_mul_i32 s58, s58, 1242\ns_mul_i32 s56, s56, 321\ns_sub_u32 s56, s56, s58")
            A(f"s_add_u32 s55, s55, s56\ns_add_u32 s55, s55, s53\ns_lshl_b32 s{SO+q}, s55, 10")
        A(f"s_cmp_eq_u32 s46, 1\ns_cbranch_scc1 {L}_w2")
        A(f"s_mov_b32 s{SD}, s{pw1}\ns_mov_b32 s{SD+1}, s{pw1+1}\ns_mul_i32 s53, s49, {32*F*2}\ns_mul_i32 s55, s45, {DM*2}\ns_add_u32 s53, s53, s55\ns_add_u32 s{SB_}, s53, s54")
        A(f"s_mov_b32 s{SB_+1}, {4*F*2}\ns_mov_b32 s{SB_+2}, {2*F*2}\ns_mov_b32 s{SB_+3}, {F*2}")
        A(f"v_mul_u32_u24 v{vsrc}, {8*F*2}, v7\nv_lshl_add_u32 v{vsrc}, v6, 3, v{vsrc}\ns_branch {L}_done")
        A(f"{L}_w2:")
        A(f"s_mov_b32 s{SD}, s{pw2}\ns_mov_b32 s{SD+1}, s{pw2+1}\ns_lshr_b32 s53, s49, 1\ns_lshl_b32 s53, s53, 6\ns_and_b32 s55, s49, 1\ns_lshl_b32 s55, s55, 1\ns_add_u32 s53, s53, s55")
        A(f"s_mul_i32 s55, s45, {DM}\ns_add_u32 s53, s53, s55\ns_mul_i32 s53, s53, {DM*2}\ns_add_u32 s{SB_}, s53, s54")
        A(f"s_mov_b32 s{SB_+1}, {DM*2}\ns_mov_b32 s{SB_+2}, {8*DM*2}\ns_mov_b32 s{SB_+3}, {4*DM*2}")
        A(f"v_mul_u32_u24 v{vsrc}, {16*DM*2}, v7\nv_lshl_add_u32 v{vsrc}, v6, 3, v{vsrc}")
        A(f"{L}_done:")
        return "\n".join(t)
    def setup_wo(self, rnd, pwo):
        L = self.a.label("rp")
        SD, SB_, SO, vsrc, dst = self.regs(rnd)
        t = []; A = t.append
        A(f"s_mul_hi_u32 s49, s47, {(2**32 + 8)//9}\ns_mul_i32 s50, s49, 9\ns_sub_u32 s50, s47, s50")
        A(f"s_mov_b32 s{SD+3}, 0x00020000\ns_lshl_b32 s54, s50, 7")
        A(f"s_mov_b32 s{SD}, s{pwo}\ns_mov_b32 s{SD+1}, s{pwo+1}\ns_cmp_lt_u32 s47, 162\ns_cselect_b32 s{SD+2}, {DM*DM*2}, 0\ns_cselect_b32 s56, 0, 0x40000000")
        A(f"s_mul_i32 s55, s49, 6144\ns_add_u32 s{SO}, s56, s55\ns_add_u32 s{SO+1}, s{SO}, 1024\ns_add_u32 s{SO+2}, s{SO}, 16\ns_add_u32 s{SO+3}, s{SO}, 1040")
        A(f"s_lshl_b32 s55, s50, 1\nv_lshrrev_b32 v245, 3, v6\nv_add_u32 v245, s55, v245\nv_mul_u32_u24 v246, 86, v245\nv_lshrrev_b32 v246, 8, v246")
        A(f"v_mul_u32_u24 v246, 51, v246\nv_add_u32 v245, v245, v246\nv_lshlrev_b32 v245, 11, v245")
        A(f"v_and_b32 v246, 7, v6\nv_lshl_add_u32 v245, v246, 5, v245\nv_lshl_add_u32 v{dst}, v7, 8, v245")
        A(f"s_mov_b32 s{SB_+3}, {DM*2}\ns_cmp_ge_u32 s49, 16\ns_cbranch_scc1 {L}_wo2")
        A(f"s_mul_i32 s53, s49, {36*DM*2}\ns_mov_b32 s{SB_+1}, {8*DM*2}\ns_mov_b32 s{SB_+2}, {2*DM*2}")
        A(f"v_lshrrev_b32 v246, 1, v7\nv_mul_u32_u24 v246, 18, v246\nv_and_b32 v247, 1, v7\nv_lshl_add_u32 v246, v247, 2, v246\ns_branch {L}_wo3")
        A(f"{L}_wo2:")
        A(f"s_sub_u32 s53, s49, 16\ns_mul_i32 s53, s53, {288*DM*2}\ns_add_u32 s53, s53, {16*DM*2}\ns_mov_b32 s{SB_+1}, {36*DM*2}\ns_mov_b32 s{SB_+2}, {18*DM*2}")
        A(f"v_mul_u32_u24 v246, 72, v7")
        A(f"{L}_wo3:")
        A(f"s_add_u32 s{SB_}, s53, s54\nv_mul_u32_u24 v{vsrc}, {DM*2}, v246\nv_lshl_add_u32 v{vsrc}, v6, 3, v{vsrc}")
        return "\n".join(t)
    def load(self, rnd, s_, flag=""):
        SD, SB_, SO, vsrc, dst = self.regs(rnd)
        raw = self.PR + 16 * rnd
        t = f"s_mov_b32 s55, s{SB_}\n"
        if s_ & 4: t += f"s_add_u32 s55, s55, s{SB_+1}\n"
        if s_ & 2: t += f"s_add_u32 s55, s55, s{SB_+2}\n"
        if s_ & 1: t += f"s_add_u32 s55, s55, s{SB_+3}\n"
        return t + f"buffer_load_dwordx2 v[{raw+2*s_}:{raw+2*s_+1}], v{vsrc}, s[{SD}:{SD+3}], s55 offen{flag}"
    def store(self, rnd, q_, flag=""):
        SD, SB_, SO, vsrc, dst = self.regs(rnd)
        raw = self.PR + 16 * rnd
        t = 196 + 4 * (q_ % 2)
        L = [f"v_perm_b32 v{t+j}, v{raw+2*(2*j+1)+(q_>>1)}, v{raw+2*(2*j)+(q_>>1)}, s{80+(q_&1)}" for j in range(4)]
        L.append(f"buffer_store_dwordx4 v[{t}:{t+3}], v{dst}, s[60:63], s{SO+q_} offen{flag}")
        return "\n".join(L)
    def touch(self, rnd):
        SD, SB_, SO, vsrc, dst = self.regs(rnd)
        return "s_mov_b64 exec, 0xff\nv_lshlrev_b32 v204, 7, v0\n" + "\n".join(f"buffer_load_dword v205, v204, s[60:63], s{SO+q} offen" for q in range(4)) + "\ns_mov_b64 exec, -1"

def ffn_map(sj, smb):
    SL = OPT.get("k4_sl", 2); lg = SL.bit_length() - 1
    return (f"s_and_b32 s46, s2, 7\ns_lshr_b32 s47, s2, 3\ns_and_b32 s{sj}, s46, {8//SL-1}\ns_lshl_b32 s{sj}, s{sj}, {lg}\ns_and_b32 s48, s47, {SL-1}\ns_add_u32 s{sj}, s{sj}, s48\n"
            f"s_lshr_b32 s{smb}, s46, {3-lg}\ns_lshl_b32 s{smb}, s{smb}, {5-lg}\ns_lshr_b32 s48, s47, {lg}\ns_add_u32 s{smb}, s{smb}, s48\n")

def poll(a, n, voff, srd_, soff, vt, slp=2):
    L = a.label("poll")
    a(f"s_mov_b32 s73, 0x8000\ns_mov_b64 exec, {(1 << n) - 1}")
    a(f"{L}:\nbuffer_load_dword v{vt}, v{voff}, s[{srd_}:{srd_+3}], s{soff} offen sc1\ns_waitcnt vmcnt(0)\nv_cmp_eq_u32 vcc, 1, v{vt}\ns_nop 1\ns_cmp_eq_u32 vcc_lo, {(1 << n) - 1}\ns_cbranch_scc1 {L}_ok\ns_sleep {slp}\ns_sub_u32 s73, s73, 1\ns_cbranch_scc0 {L}\n{L}_ok:")
    a("s_mov_b64 exec, -1")

K1_GRID = 256
K1_LDS = 147456
def k1(a, stamp_k=-1):
    st = Stamps(a, stamp_k == 1, 1, 250, 251)
    XL = 73728
    kernel_begin(a, "k1_kernel")
    a(f"s_cmp_ge_u32 s2, {K1_GRID}\ns_cbranch_scc1 K1_end")
    a(f"s_load_dwordx4 s[4:7], s[0:1], {A_X}\ns_load_dwordx4 s[8:11], s[0:1], {A_WK}\ns_load_dwordx2 s[12:13], s[0:1], {A_WO}\ns_load_dwordx2 s[14:15], s[0:1], {K_WS}")
    st.start()
    wave_lane(a)
    a("v_and_b32 v1, 15, v0\nv_lshrrev_b32 v2, 4, v0")
    if OPT.get("k1_map", 1) == 0:
        a("s_and_b32 s44, s2, 31\ns_lshr_b32 s45, s2, 5")
        a("s_lshr_b32 s60, s44, 3\ns_mul_i32 s60, s60, 9\ns_lshr_b32 s60, s60, 2\ns_add_u32 s60, s60, s45\ns_and_b32 s61, s44, 7\ns_add_u32 s60, s60, s61")
    elif OPT.get("k1_map", 1) == 1:
        a("s_bfe_u32 s44, s2, 0x20001\ns_lshl_b32 s44, s44, 3\ns_bfe_u32 s61, s2, 0x30003\ns_add_u32 s44, s44, s61\ns_and_b32 s45, s2, 1\ns_lshl_b32 s45, s45, 2\ns_lshr_b32 s62, s2, 6\ns_add_u32 s45, s45, s62")
        a("s_mul_i32 s60, s62, 9\ns_lshr_b32 s60, s60, 2\ns_add_u32 s60, s60, s61\ns_and_b32 s61, s2, 7\ns_add_u32 s60, s60, s61")
    else:
        a("s_bfe_u32 s44, s2, 0x10002\ns_lshl_b32 s44, s44, 4\ns_bfe_u32 s61, s2, 0x40003\ns_add_u32 s44, s44, s61\ns_and_b32 s45, s2, 3\ns_lshl_b32 s45, s45, 1\ns_lshr_b32 s62, s2, 7\ns_add_u32 s45, s45, s62")
        a("s_lshl_b32 s60, s62, 2\ns_add_u32 s60, s60, s61\ns_and_b32 s61, s2, 3\ns_add_u32 s60, s60, s61")
    a("s_mul_i32 s61, s60, 57\ns_lshr_b32 s61, s61, 9\ns_mul_i32 s61, s61, 9\ns_sub_u32 s60, s60, s61")
    a("v_lshrrev_b32 v4, 3, v0\nv_and_b32 v5, 7, v0")
    a("s_cmp_ge_u32 s3, 4\ns_cbranch_scc1 K1_loader")
    a("s_cmp_eq_u32 s45, 7\ns_cbranch_scc1 K1_wbar")
    a("s_lshl_b32 s46, s44, 6\ns_lshl_b32 s47, s3, 4\ns_add_u32 s46, s46, s47")
    a(f"s_mul_i32 s47, s46, {DM*2}")
    a(f"v_xor_b32 v6, v4, v5\nv_mul_u32_u24 v3, {DM*2}, v4\nv_lshl_add_u32 v3, v6, 4, v3\nv_add_u32 v6, {8*DM*2 - 1024}, v3")
    a(f"s_lshl_b32 s61, s60, 7\ns_mul_i32 s63, s3, 18432\ns_add_u32 s63, s63, {XL}\ns_mov_b32 s64, s63")
    a("s_waitcnt lgkmcnt(0)")
    srd(a, 16, 4, 0, T*DM*2)
    X0 = 16
    for p in range(9):
        a("s_mov_b32 m0, s64\ns_add_u32 s62, s47, s61\ns_add_u32 s64, s64, 2048")
        a("buffer_load_dwordx4 v3, s[16:19], s62 offen lds\nbuffer_load_dwordx4 v6, s[16:19], s62 offen offset:1024 lds")
        a(f"s_add_u32 s61, s61, 128\ns_cmp_eq_u32 s61, {DM*2}\ns_cselect_b32 s61, 0, s61")
    if OPT.get("k1_xfirst", False): a("s_barrier")
    st(0)
    ws_srd(a, 32, "Q", 14)
    ws_srd(a, 36, "KV", 14)
    ws_srd(a, 40, "MEAN1", 14)
    ws_srd(a, 68, "XC", 14)
    a("v_and_b32 v7, 7, v1\nv_xor_b32 v8, v2, v7\nv_lshlrev_b32 v8, 4, v8\nv_lshl_add_u32 v8, v1, 7, v8\nv_add_u32 v8, s63, v8\nv_xor_b32 v9, 64, v8")
    AR = 172
    a("v_lshrrev_b32 v10, 2, v1\nv_and_b32 v11, 3, v1\nv_lshl_add_u32 v12, v2, 3, v10")
    a("v_lshrrev_b32 v13, 1, v10\nv_and_b32 v14, 1, v2\nv_lshl_add_u32 v13, v14, 1, v13")
    a("v_lshlrev_b32 v15, 7, v12\nv_lshl_add_u32 v15, v11, 3, v15")
    for j in range(4):
        a(f"v_xor_b32 v7, {j}, v13\nv_lshl_add_u32 v{AR+j}, v7, 5, v15")
    a("v_lshlrev_b32 v15, 6, v12\nv_lshl_add_u32 v15, v11, 3, v15\nv_add_u32 v15, 4096, v15")
    for j in range(2):
        a(f"v_xor_b32 v7, {j}, v14\nv_lshl_add_u32 v{AR+4+j}, v7, 5, v15")
    for i in range(6): a(f"v_add_u32 v{AR+6+i}, {9*6144}, v{AR+i}")
    a(f"v_lshlrev_b32 v7, 5, v10\nv_lshl_add_u32 v7, v11, 3, v7\nv_lshl_add_u32 v7, v14, 7, v7\nv_lshl_add_u32 v{AR+12}, v2, 8, v7\nv_xor_b32 v{AR+13}, 128, v{AR+12}")
    a(f"s_mov_b32 s56, {ONES}\ns_mov_b32 s57, 0x00003f80\ns_mov_b32 s58, 0x3f800000")
    for i in range(4): a(f"v_mov_b32 v{4+i}, 0")
    for p in range(10):
        if p < 9:
            a(f"s_waitcnt vmcnt({16 - 2*p})")
            a(f"ds_read_b128 v[{X0+8*p}:{X0+8*p+3}], v8 offset:{2048*p}\nds_read_b128 v[{X0+8*p+4}:{X0+8*p+7}], v9 offset:{2048*p}")
        if p > 0:
            a(f"s_waitcnt lgkmcnt({2 if p < 9 else 0})")
            for i in range(8*(p-1), 8*p):
                a(f"v_dot2_f32_bf16 v{4+i%4}, v{X0+i}, s56, v{4+i%4}")
    st(1)
    a("s_nop 2\nv_add_f32 v4, v4, v5\nv_add_f32 v6, v6, v7\nv_add_f32 v4, v4, v6")
    sum_g(a, 4, 5)
    a(f"v_mul_f32 v4, {f32bits(-1.0/DM)}, v4")
    for i in range(4): a(f"v_mov_b32 v{8+i}, 0")
    ACC, WF, CT = 88, 120, 188
    def center(ks):
        L = []
        for r in range(4):
            L += [f"v_dot2_f32_bf16 v{CT+2*r}, v{X0+4*ks+r}, s57, v4", f"v_dot2_f32_bf16 v{CT+2*r+1}, v{X0+4*ks+r}, s58, v4"]
        L += sq(ks - 1) if ks > 0 else ["s_nop 2"]
        L += [f"v_cvt_pk_bf16_f32 v{X0+4*ks+r}, v{CT+2*r}, v{CT+2*r+1}" for r in range(4)]
        return L
    def sq(ks): return [f"v_dot2_f32_bf16 v{8+r}, v{X0+4*ks+r}, v{X0+4*ks+r}, v{8+r}" for r in range(4)]
    def rstd():
        for x in sq(17): a(x)
        a("s_nop 2\nv_add_f32 v8, v8, v9\nv_add_f32 v10, v10, v11\nv_add_f32 v8, v8, v10")
        sum_g(a, 8, 9)
        a(f"v_mov_b32 v9, {f32bits(1e-5)}\nv_fmac_f32 v9, {f32bits(1.0/DM)}, v8\nv_rsq_f32 v5, v9\ns_nop 0")
    a("s_cmp_eq_u32 s45, 6\ns_cbranch_scc1 K1_kvgemm")
    def qread(ks, j):
        hi = ks >= 9
        off = (ks - 9 * hi) * 6144
        vb = AR + 6 * hi + j
        w = WF + ((ks % 2) * 6 + j) * 4
        return [f"ds_read_b64_tr_b16 v[{w}:{w+1}], v{vb} offset:{off}", f"ds_read_b64_tr_b16 v[{w+2}:{w+3}], v{vb} offset:{off + (512 if j < 4 else 256)}"]
    for ks in range(18):
        for x in center(ks): a(x)
    rstd()
    st(6)
    a("s_barrier")
    st(2)
    for j in range(6):
        for x in qread(0, j): a(x)
    for ks in range(18):
        if ks in (5, 11):
            st(4 + ks); a("s_barrier"); st(5 + ks)
        for j in range(6):
            a(f"s_waitcnt lgkmcnt({10 if ks < 17 else 10 - 2*j})")
            w = WF + ((ks % 2) * 6 + j) * 4
            c = "0" if ks == 0 else f"v[{ACC+4*j}:{ACC+4*j+3}]"
            a(f"v_mfma_f32_16x16x32_bf16 v[{ACC+4*j}:{ACC+4*j+3}], v[{w}:{w+3}], v[{X0+4*ks}:{X0+4*ks+3}], {c}")
            if ks < 17:
                for x in qread(ks + 1, j): a(x)
    st(3)
    a(f"v_mul_f32 v6, {f32bits(QSCALE)}, v5")
    a("v_lshlrev_b32 v3, 3, v0")
    a(f"s_lshr_b32 s48, s46, 5\ns_mul_i32 s48, s48, {4*9216}\ns_and_b32 s49, s3, 1\ns_mul_i32 s49, s49, 4608\ns_add_u32 s48, s48, s49")
    a("s_mul_i32 s49, s45, 6\ns_and_b32 s50, s45, 1\ns_lshl_b32 s51, s50, 1\ns_add_u32 s51, s51, s49\ns_lshl_b32 s50, s50, 2\ns_sub_u32 s52, s49, s50")
    for j in range(6):
        b = ACC + 4*j
        a(f"s_add_u32 s53, s{51 if j < 4 else 52}, {j}\ns_mul_i32 s54, s53, 57\ns_lshr_b32 s54, s54, 9\ns_mul_i32 s54, s54, 4608\ns_lshl_b32 s53, s53, 9\ns_add_u32 s53, s53, s54\ns_add_u32 s53, s53, s48")
        for r in range(4): a(f"v_mul_f32 v{b+r}, v{b+r}, v6")
        a(f"v_cvt_pk_bf16_f32 v{b}, v{b}, v{b+1}\nv_cvt_pk_bf16_f32 v{b+1}, v{b+2}, v{b+3}")
        a(f"buffer_store_dwordx2 v[{b}:{b+1}], v3, s[32:35], s53 offen" + OPT.get('k1_st', ' sc1'))
    a("s_branch K1_fin")
    a("K1_loader:")
    if OPT["codepf"]:
        a("s_cmp_lt_u32 s2, 248\ns_cbranch_scc1 K1_nopf")
        a("s_getpc_b64 s[58:59]\nK1_pc:\ns_sub_u32 s58, s58, K1_pc-k1_kernel\ns_subb_u32 s59, s59, 0")
        a("s_sub_u32 s56, s3, 4\ns_lshl_b32 s56, s56, 13\nv_lshlrev_b32 v20, 7, v0\nv_add_u32 v20, s56, v20\nv_mov_b32 v21, K2_out-k1_kernel\nv_min_u32 v20, v20, v21\nglobal_load_dword v22, v20, s[58:59]")
        a("K1_nopf:")
    a("s_cmp_eq_u32 s45, 7\ns_cbranch_scc1 K1_worp")
    a("s_sub_u32 s3, s3, 4")
    a("s_cmp_eq_u32 s45, 6\ns_cbranch_scc1 K1_kvload")
    a("v_and_b32 v6, 1, v2\ns_and_b32 s48, s3, 1\ns_lshl_b32 s48, s48, 2\nv_lshlrev_b32 v6, 1, v6\nv_or_b32 v6, s48, v6\nv_xor_b32 v6, v6, v5")
    a(f"v_mul_u32_u24 v5, {DM*2}, v4\nv_lshl_add_u32 v5, v6, 4, v5")
    a("v_lshrrev_b32 v7, 5, v0\nv_lshlrev_b32 v7, 1, v7\nv_and_b32 v8, 3, v0\nv_xor_b32 v7, v7, v8\nv_lshrrev_b32 v8, 2, v0")
    a(f"v_mul_u32_u24 v8, {DM*2}, v8\nv_lshl_add_u32 v8, v7, 4, v8")
    a("s_mul_i32 s48, s45, 192\ns_and_b32 s53, s45, 1\ns_lshl_b32 s54, s53, 6\ns_add_u32 s49, s48, s54\ns_xor_b32 s53, s53, 1\ns_lshl_b32 s53, s53, 7\ns_add_u32 s50, s48, s53")
    a(f"s_mul_i32 s53, s3, {8*DM*2}\ns_add_u32 s49, s49, s53\ns_mul_i32 s53, s3, {16*DM*2}\ns_add_u32 s50, s50, s53")
    a("s_lshl_b32 s51, s3, 10")
    a("s_lshr_b32 s52, s3, 1\ns_mul_i32 s52, s52, 6144\ns_and_b32 s53, s3, 1\ns_lshl_b32 s53, s53, 10\ns_add_u32 s52, s52, s53\ns_add_u32 s52, s52, 4096")
    a(f"s_mul_i32 s61, s60, {64*DM*2}")
    a("s_waitcnt lgkmcnt(0)")
    srd(a, 20, 6, 0, DM*DM*2)
    if OPT.get("k1_xfirst", False): a("s_barrier")
    for t in range(9):
        if t == 6: a("s_waitcnt vmcnt(9)\ns_barrier")
        a(f"s_add_u32 s62, s49, s61\ns_add_u32 s63, s50, s61\ns_add_u32 s64, s62, {32*DM*2}")
        a(f"s_mov_b32 m0, s51\ns_add_u32 s51, s51, 6144\nbuffer_load_dwordx4 v5, s[20:23], s62 offen lds")
        a(f"s_mov_b32 m0, s52\ns_add_u32 s52, s52, 12288\nbuffer_load_dwordx4 v8, s[20:23], s63 offen lds")
        a(f"s_mov_b32 m0, s51\ns_add_u32 s51, s51, 6144\nbuffer_load_dwordx4 v5, s[20:23], s64 offen lds")
        a(f"s_add_u32 s61, s61, {64*DM*2}\ns_cmp_eq_u32 s61, {DM*DM*2}\ns_cselect_b32 s61, 0, s61")
    a("s_waitcnt vmcnt(9)\ns_barrier\ns_waitcnt vmcnt(0)\ns_barrier")
    a("s_branch K1_end")
    a("K1_kvload:")
    a("s_waitcnt lgkmcnt(0)")
    srd(a, 24, 8, 0, DM*DH*2)
    srd(a, 28, 10, 0, DM*DH*2)
    a("s_lshl_b32 s48, s3, 6\nv_add_u32 v4, s48, v0")
    KVT = 100
    if OPT.get("k1_xfirst", False): a("s_barrier")
    for it in range(3):
        a(f"v_add_u32 v5, {256*it}, v4\nv_mul_u32_u24 v{6+it}, 36, v5")
        for m, sd in enumerate((24, 28)):
            b = KVT + (it*2 + m) * 12
            a(f"buffer_load_dwordx4 v[{b}:{b+3}], v{6+it}, s[{sd}:{sd+3}], 0 offen")
            a(f"buffer_load_dwordx4 v[{b+4}:{b+7}], v{6+it}, s[{sd}:{sd+3}], 0 offen offset:16")
            a(f"buffer_load_dword v{b+8}, v{6+it}, s[{sd}:{sd+3}], 0 offen offset:32")
    a("s_lshl_b32 s61, s60, 1")
    for it in range(3):
        a(f"v_add_u32 v5, {256*it}, v4")
        a(f"v_lshrrev_b32 v9, 5, v5\nv_subrev_u32 v9, s61, v9\nv_add_u32 v12, 18, v9\nv_min_u32 v9, v9, v12")
        a(f"v_mul_u32_u24 v9, 3072, v9\nv_bfe_u32 v10, v5, 3, 2\nv_lshl_add_u32 v9, v10, 8, v9")
        a(f"v_and_b32 v10, 1, v10\nv_lshlrev_b32 v10, 2, v10\nv_and_b32 v11, 7, v5\nv_xor_b32 v10, v10, v11\nv_lshl_add_u32 v{6+it}, v10, 5, v9")
    a("s_waitcnt vmcnt(0)")
    for it in range(3):
        if it == 2:
            a("s_cmp_lg_u32 s3, 0\ns_cbranch_scc1 K1_kvskip")
        for m in range(2):
            b = KVT + (it*2 + m) * 12
            a(f"ds_write_b128 v{6+it}, v[{b}:{b+3}] offset:{1024*m}\nds_write_b128 v{6+it}, v[{b+4}:{b+7}] offset:{1024*m+16}")
            a(f"ds_write_b32 v{6+it}, v{b+8} offset:{2048+4*m}")
    a("K1_kvskip:\ns_waitcnt lgkmcnt(0)\ns_barrier\ns_branch K1_end")
    a("K1_worp:\ns_waitcnt lgkmcnt(0)\nv_lshlrev_b32 v3, 4, v0")
    rp = Repack(a)
    a(rp.common())
    for rnd in range(2):
        a(f"s_lshl_b32 s47, s44, 2\ns_add_u32 s47, s47, s3\ns_add_u32 s47, s47, {128*rnd - 4 & 0xffffffff}")
        a(rp.setup_wo(rnd, 12))
        for n in range(8): a(rp.load(rnd, n))
    for rnd in range(2):
        a(f"s_waitcnt vmcnt({8 if rnd == 0 else 4})")
        for n in range(4): a(rp.store(rnd, n) + "\ns_nop 1")
    a("s_branch K1_end")
    a("K1_kvgemm:")
    a(f"v_lshlrev_b32 v3, 4, v0\ns_lshr_b32 s48, s46, 4\ns_mul_i32 s48, s48, 18432\ns_lshl_b32 s61, s60, 11")
    for p in range(9):
        a("s_add_u32 s62, s48, s61")
        a(f"buffer_store_dwordx4 v[{X0+8*p}:{X0+8*p+3}], v3, s[68:71], s62 offen{OPT.get('k1_st', ' sc1')}\nbuffer_store_dwordx4 v[{X0+8*p+4}:{X0+8*p+7}], v3, s[68:71], s62 offen offset:1024{OPT.get('k1_st', ' sc1')}")
        a(f"s_add_u32 s61, s61, 2048\ns_cmp_eq_u32 s61, 18432\ns_cselect_b32 s61, 0, s61")
    def kread(ks):
        L = []
        for j in range(3):
            w = WF + ((ks % 2) * 3 + j) * 4
            L += [f"ds_read_b64_tr_b16 v[{w}:{w+1}], v{AR+12} offset:{ks*3072+j*1024}", f"ds_read_b64_tr_b16 v[{w+2}:{w+3}], v{AR+13} offset:{ks*3072+j*1024}"]
        return L
    for ks in range(18):
        for x in center(ks): a(x)
    rstd()
    a("s_barrier")
    for x in kread(0): a(x)
    for ks in range(18):
        x = f"v[{X0+4*ks}:{X0+4*ks+3}]"
        def W(j):
            w = WF + ((ks % 2) * 3 + j) * 4
            return f"v[{w}:{w+3}]"
        def C(i): return f"v[{ACC+4*i}:{ACC+4*i+3}]"
        c = (lambda i: "0") if ks == 0 else C
        fill = kread(ks + 1) if ks < 17 else []
        a("s_waitcnt lgkmcnt(0)\ns_nop 0")
        ms = [f"v_mfma_f32_16x16x32_bf16 {C(0)}, {W(0)}, {x}, {c(0)}",
              f"v_mfma_f32_16x16x32_bf16 {C(1)}, {x}, {W(1)}, {c(1)}",
              f"v_mfma_f32_16x16x32_bf16 {C(2)}, {W(2)}, {x}, {c(2)}",
              f"v_mfma_f32_16x16x32_bf16 {C(3)}, {x}, {W(2)}, {c(3)}"]
        for m in ms:
            a(m)
            for y in fill[:3]: a(y)
            fill = fill[3:]
    a("v_lshlrev_b32 v6, 4, v2")
    for r in range(4):
        a(f"ds_bpermute_b32 v{12+r}, v6, v5 offset:{4*r}")
    a(f"s_mul_i32 s48, s44, {PAIR}")
    a("v_sub_f32 v7, 0, v4\nv_lshlrev_b32 v8, 2, v1\nv_lshl_add_u32 v8, v2, 20, v8\ns_lshl_b32 s49, s46, 2")
    a("buffer_store_dword v7, v8, s[40:43], s49 offen")
    a("s_waitcnt lgkmcnt(0)")
    b = ACC
    for r in range(4): a(f"v_mul_f32 v{b+r}, v{b+r}, v5")
    a(f"v_cvt_pk_bf16_f32 v{b}, v{b}, v{b+1}\nv_cvt_pk_bf16_f32 v{b+1}, v{b+2}, v{b+3}")
    a("v_lshrrev_b32 v7, 1, v2\nv_lshlrev_b32 v7, 9, v7\nv_lshl_add_u32 v7, v1, 4, v7\nv_and_b32 v8, 1, v2\nv_lshl_add_u32 v7, v8, 3, v7")
    a("s_lshr_b32 s49, s3, 1\ns_lshl_b32 s49, s49, 10\ns_and_b32 s50, s3, 1\ns_lshl_b32 s50, s50, 8\ns_add_u32 s49, s49, s50\ns_add_u32 s49, s49, s48")
    a(f"buffer_store_dwordx2 v[{b}:{b+1}], v7, s[36:39], s49 offen")
    b = ACC + 8
    a(f"v_mul_f32 v{b}, v{b}, v5\nv_mul_f32 v{b+1}, v{b+1}, v5\nv_cvt_pk_bf16_f32 v{b}, v{b}, v{b+1}")
    a("v_lshlrev_b32 v7, 2, v1\nv_lshl_add_u32 v7, v2, 20, v7\ns_lshl_b32 s49, s3, 6\ns_add_u32 s49, s49, s48")
    a(f"buffer_store_dword v{b}, v7, s[36:39], s49 offen offset:2048")
    a("v_and_b32 v8, 1, v2\nv_mul_u32_u24 v8, 19, v8\nv_add_u32 v8, v8, v1\nv_lshlrev_b32 v8, 4, v8\nv_lshrrev_b32 v9, 1, v2\nv_lshl_add_u32 v8, v9, 3, v8")
    a("s_mul_i32 s49, s3, 608\ns_add_u32 s49, s49, s48")
    for i, b in enumerate((ACC + 4, ACC + 12)):
        for r in range(4): a(f"v_mul_f32 v{b+r}, v{b+r}, v{12+r}")
        a(f"v_cvt_pk_bf16_f32 v{b}, v{b}, v{b+1}\nv_cvt_pk_bf16_f32 v{b+1}, v{b+2}, v{b+3}")
        if i == 0:
            a(f"buffer_store_dwordx2 v[{b}:{b+1}], v8, s[36:39], s49 offen offset:2304")
        else:
            a(f"v_cmp_eq_u32 vcc, 4, v1\nv_mov_b32 v9, {ONES}\ns_nop 1\nv_cndmask_b32 v{b}, v{b}, v9, vcc\nv_cndmask_b32 v{b+1}, v{b+1}, v9, vcc")
            a("v_subrev_u32 v9, 2, v1\nv_cmp_gt_u32 vcc, 3, v9\ns_and_saveexec_b64 s[54:55], vcc")
            a(f"buffer_store_dwordx2 v[{b}:{b+1}], v8, s[36:39], s49 offen offset:{2304 + 14*16}")
            a("s_mov_b64 exec, -1")
    a("s_branch K1_fin")
    a("K1_wbar:\ns_waitcnt lgkmcnt(0)")
    srd(a, 16, 12, 0, DM*DM*2)
    ws_srd(a, 20, "WBAR", 14)
    a("s_cmp_lt_u32 s44, 18\ns_cbranch_scc1 K1_wb0")
    ws_srd(a, 24, "FLAG", 14)
    a("s_sub_u32 s45, s44, 18\ns_lshl_b32 s45, s45, 2\ns_add_u32 s45, s45, s3\ns_lshl_b32 s46, s45, 13\nv_lshlrev_b32 v3, 7, v0")
    a(f"v_mov_b32 v8, 0\nv_mov_b32 v9, 0\nv_mov_b32 v10, 0\nv_mov_b32 v11, 0\nbuffer_store_dword v8, v3, s[24:27], s46 offen\ns_add_u32 s46, s46, {56*8192}\nbuffer_store_dword v8, v3, s[24:27], s46 offen")
    a(f"s_lshl_b32 s46, s45, 10\ns_add_u32 s46, s46, {FL_RF}\nv_lshlrev_b32 v3, 4, v0\nbuffer_store_dwordx4 v[8:11], v3, s[24:27], s46 offen\ns_branch K1_fin")
    a("K1_wb0:")
    a("v_lshrrev_b32 v3, 3, v0\nv_and_b32 v5, 7, v0")
    a("s_cmp_ge_u32 s44, 16\ns_cbranch_scc1 K1_wb_hi")
    a("s_mul_i32 s45, s44, 36\ns_lshr_b32 s46, s3, 1\ns_mul_i32 s46, s46, 18\ns_add_u32 s45, s45, s46\ns_and_b32 s46, s3, 1\ns_lshl_b32 s46, s46, 2\ns_add_u32 s45, s45, s46")
    a("v_lshrrev_b32 v4, 2, v3\nv_lshlrev_b32 v4, 3, v4\nv_and_b32 v6, 3, v3\nv_add_u32 v4, v4, v6")
    a("s_branch K1_wb_go")
    a("K1_wb_hi:")
    a("s_sub_u32 s45, s44, 16\ns_mul_i32 s45, s45, 288\ns_mul_i32 s46, s3, 72\ns_add_u32 s45, s45, s46\ns_add_u32 s45, s45, 16")
    a("v_lshrrev_b32 v4, 1, v3\nv_mul_u32_u24 v4, 18, v4\nv_and_b32 v6, 1, v3\nv_add_u32 v4, v4, v6")
    a("K1_wb_go:")
    a(f"s_mul_i32 s45, s45, {DM*2}\nv_mul_u32_u24 v4, {DM*2}, v4\nv_lshl_add_u32 v4, v5, 4, v4")
    for i in range(9):
        a(f"buffer_load_dwordx4 v[{16+4*i}:{19+4*i}], v4, s[16:19], s45 offen offset:{128*i}")
    a(f"s_mov_b32 s56, {ONES}\nv_mov_b32 v6, 0\nv_mov_b32 v7, 0\ns_waitcnt vmcnt(0)")
    for i in range(36):
        a(f"v_dot2_f32_bf16 v{6+i%2}, v{16+i}, s56, v{6+i%2}")
    a("s_nop 2\nv_add_f32 v6, v6, v7\ns_nop 1")
    for x in (1, 2, 4):
        a(f"ds_swizzle_b32 v7, v6 offset:{(x << 10) | 0x1f}\ns_waitcnt lgkmcnt(0)\nv_add_f32 v6, v6, v7")
    a(f"v_mul_f32 v6, {f32bits(1.0/DM)}, v6")
    a("v_cvt_pk_bf16_f32 v7, v6, v6\nv_lshlrev_b32 v8, 16, v7\nv_sub_f32 v8, v6, v8\nv_cvt_pk_bf16_f32 v8, v8, v8")
    a("v_lshlrev_b32 v9, 5, v5\nv_lshl_add_u32 v9, v3, 1, v9")
    a(f"s_lshl_b32 s46, s44, 10\ns_lshl_b32 s47, s3, 8\ns_add_u32 s46, s46, s47")
    a(f"buffer_store_short v7, v9, s[20:23], s46 offen\nbuffer_store_short v8, v9, s[20:23], s46 offen offset:16")
    a("K1_fin:")
    st.finish(14, 3, 4)
    a("K1_end:\ns_endpgm")
    return kernel_desc("k1_kernel", 256)

K2_GRID = 256
K2_LDS = 32 * PAIR + 9216
def k2(a, stamp_k=-1, force_fallback=False):
    st = Stamps(a, stamp_k == 2, 2, 255, 254)
    kernel_begin(a, "k2_kernel")
    a(f"s_cmp_ge_u32 s2, {K2_GRID}\ns_cbranch_scc1 K2_end")
    a(f"s_load_dwordx2 s[14:15], s[0:1], {K_WS}\ns_load_dwordx2 s[4:5], s[0:1], {K_OUT}\ns_load_dwordx4 s[8:11], s[0:1], {B_W1}")
    st.start()
    wave_lane(a)
    a("v_and_b32 v1, 31, v0\nv_lshrrev_b32 v2, 5, v0\nv_lshlrev_b32 v3, 4, v0")
    a("s_lshr_b32 s40, s2, 2\ns_and_b32 s41, s2, 3\ns_lshl_b32 s41, s41, 3\ns_add_u32 s41, s41, s3")
    a(f"s_mul_i32 s42, s2, 9216\ns_lshl_b32 s43, s3, 10\ns_add_u32 s42, s42, s43\ns_add_u32 s43, s43, {32*PAIR}")
    a("s_lshl_b32 s44, s3, 10")
    a("s_waitcnt lgkmcnt(0)")
    ws_srd(a, 16, "KV", 14)
    ws_srd(a, 20, "Q", 14)
    Q1, Q2 = 8, 12
    def dma(r):
        txt = f"s_mov_b32 m0, s44\ns_nop 0\nbuffer_load_dwordx4 v3, s[16:19], s44 offen lds\ns_add_u32 s44, s44, 8192"
        if r == 18:
            L = a.label("dm")
            txt = f"s_cmp_ge_u32 s3, 4\ns_cbranch_scc1 {L}\n{txt}\n{L}:"
        return txt
    a("s_cmp_lg_u32 s3, 0\ns_cbranch_scc1 K2_q1")
    a(f"s_mov_b32 m0, {32*PAIR + 8192}\ns_add_u32 s45, s42, 8192\nbuffer_load_dwordx4 v3, s[20:23], s45 offen lds")
    a("K2_q1:")
    a("s_mov_b32 m0, s43\ns_nop 0\nbuffer_load_dwordx4 v3, s[20:23], s42 offen lds")
    a(dma(0)); a(dma(1)); a(dma(2))
    a(f"v_mov_b32 v{Q2+1}, 0")
    ws_srd(a, 24, "O", 14)
    a(f"v_lshrrev_b32 v4, 4, v1\nv_mul_u32_u24 v4, 4608, v4\nv_and_b32 v5, 15, v1\nv_lshl_add_u32 v4, v5, 3, v4\nv_add_u32 v4, {32*PAIR}, v4")
    a("s_mul_i32 s45, s3, 9\nv_lshlrev_b32 v5, 2, v2\nv_add_u32 v5, s45, v5")
    for i in range(5):
        if i < 4: a(f"v_add_u32 v30, {i}, v5")
        else: a("s_add_u32 s45, s45, 8\nv_mov_b32 v30, s45")
        a(f"v_lshrrev_b32 v31, 1, v30\nv_lshl_add_u32 v31, v31, 7, v4\nv_and_b32 v30, 1, v30\nv_lshl_add_u32 v{25+i}, v30, 2, v31")
    SEG = 13
    VKA, VK2, VVA = 14, 17, 20
    a(f"v_mul_u32_u24 v23, 19, v2\nv_add_u32 v23, v23, v1\nv_lshlrev_b32 v23, 4, v23\nv_mov_b32 v24, 0x40000\nv_cmp_gt_u32 vcc, 19, v1\ns_nop 1\nv_cndmask_b32 v{VVA}, v24, v23, vcc")
    a(f"v_mov_b32 v{VKA}, v3\nv_lshlrev_b32 v{VK2}, 2, v0")
    for b in (VKA, VK2, VVA):
        a(f"v_add_u32 v{b+1}, {SEG*PAIR}, v{b}\nv_add_u32 v{b+2}, {2*SEG*PAIR}, v{b}")
    SA, SB, P, O, NM = 32, 64, 96, 112, 128
    KF, K2F, VF = 144, 160, 164
    a(f"v_mov_b32 v{K2F+1}, 0\nv_mov_b32 v{K2F+3}, 0")
    for r in range(16): a(f"v_mov_b32 v{O+r}, 0")
    rp = Repack(a)
    def w3(txt):
        L = a.label("w3")
        return f"s_cmp_ge_u32 s3, 3\ns_cbranch_scc1 {L}\n{txt}\n{L}:"
    def seg(p): return p // SEG, (p % SEG) * PAIR
    def rdK(i, p):
        sg, o = seg(p)
        return [f"ds_read_b128 v[{KF+8*i}:{KF+8*i+3}], v{VKA+sg} offset:{o}",
                f"ds_read_b128 v[{KF+8*i+4}:{KF+8*i+7}], v{VKA+sg} offset:{o+1024}",
                f"ds_read_b32 v{K2F+2*i}, v{VK2+sg} offset:{o+2048}"]
    def rdV(i, p):
        sg, o = seg(p)
        return [f"ds_read_b128 v[{VF+16*i+4*q}:{VF+16*i+4*q+3}], v{VVA+sg} offset:{o+2304+608*q}" for q in range(4)]
    def qk(S, i, c):
        return [f"v_mfma_f32_32x32x16_bf16 v[{S}:{S+15}], v[{KF+8*i}:{KF+8*i+3}], v[{Q1}:{Q1+3}], {c}",
                f"v_mfma_f32_32x32x16_bf16 v[{S+16}:{S+31}], v[{KF+8*i+4}:{KF+8*i+7}], v[{Q1}:{Q1+3}], {c}",
                f"v_mfma_f32_32x32x4_2b_bf16 v[{S}:{S+31}], v[{K2F+2*i}:{K2F+2*i+1}], v[{Q2}:{Q2+1}], v[{S}:{S+31}]"]
    def pvm(vs_, u):
        return f"v_mfma_f32_32x32x16_bf16 v[{O}:{O+15}], v[{VF+16*vs_+4*u}:{VF+16*vs_+4*u+3}], v[{P+4*u}:{P+4*u+3}], v[{O}:{O+15}]"
    def rowmax(S, dst, first):
        L = []; r = 0
        if first:
            L.append(f"v_max_f32 v{dst}, v{S}, v{S+1}"); r = 2
        while r < 32:
            L.append(f"v_max3_f32 v{dst}, v{S+r}, v{S+r+1}, v{dst}"); r += 2
        return L
    def set_nm(src):
        a(f"v_mov_b32 v25, v{src}\ns_nop 1\nv_permlane32_swap_b32 v{src}, v25\ns_nop 1\nv_max_f32 v{src}, v{src}, v25")
        for r in range(16): a(f"v_sub_f32 v{NM+r}, 0, v{src}")
    def E(cur, g):
        b = cur + 4 * g
        return [f"v_exp_f32 v{b+r}, v{b+r}" for r in range(4)] + \
               [f"v_cvt_pk_bf16_f32 v{P+2*g}, v{b}, v{b+1}", f"v_cvt_pk_bf16_f32 v{P+2*g+1}, v{b+2}, v{b+3}"]
    NMr = f"v[{NM}:{NM+15}]"
    if OPT["prio"]: a("s_setprio 1")
    st(0)
    a("s_waitcnt vmcnt(2)\ns_barrier")
    st(1)
    for i in range(5): a(f"ds_read_b32 v{Q1+i}, v{25+i}")
    for x in rdK(0, 0) + rdK(1, 1) + rdV(0, 0): a(x)
    a("s_waitcnt lgkmcnt(7)")
    q = qk(SA, 0, "0")
    a(q[0]); a(q[1]); a("s_nop 9"); a(q[2]); a("s_nop 15\ns_nop 3")
    for x in rowmax(SA, 24, True): a(x)
    if force_fallback:
        a(f"v_add_f32 v24, {f32bits(-100.0)}, v24")
    set_nm(24)
    for r in range(32): a(f"v_add_f32 v{SA+r}, v{SA+r}, v{NM}")
    st(2)
    extra = {i: [] for i in range(32)}
    pre = {i: [] for i in range(32)}
    r = 3
    for i in range(8):
        extra[i] += [dma(r), dma(r + 1)]; r += 2
    pre[0].append("s_waitcnt vmcnt(0)\ns_barrier"); pre[3].append("s_waitcnt vmcnt(2)\ns_barrier"); pre[9].append(f"v_mov_b32 v196, 0\nv_mov_b32 v197, 0\nv_mov_b32 v198, 0\nv_mov_b32 v199, 0\nv_mov_b32 v200, {ffn.CNT}\nds_write_b128 v200, v[196:199]\ns_waitcnt vmcnt(0) lgkmcnt(0)\ns_barrier")
    nt_ = " nt" if OPT["k2_nt"] else ""
    def uidx(rnd):
        t = ("" if rnd else ffn_map(34, 35)) + f"s_mov_b32 s45, s34\ns_mul_i32 s47, s35, 11\ns_add_u32 s47, s47, s3\n"
        if rnd: t += "s_add_u32 s47, s47, 8\ns_cmp_ge_u32 s3, 3\ns_cselect_b32 s47, 400, s47\n"
        return t
    pre[8].append(rp.common() + "\n" + uidx(0) + rp.setup_ffn(0, 8, 10)); pre[9].insert(0, uidx(1) + rp.setup_ffn(1, 8, 10))
    for n in range(8):
        extra[9 + n // 2].append(rp.load(0, n, nt_))
        extra[13 + n // 2].append(w3(rp.load(1, n, nt_)))
    ST0 = OPT.get("k2_st0", 21)
    pre[ST0].append("s_waitcnt vmcnt(0)")
    for n in range(4):
        extra[ST0 + n // 2].append(rp.store(0, n, " sc1"))
        extra[ST0 + 2 + n // 2].append(w3(rp.store(1, n, " sc1")))
    FB = WS["FLAG"][0]
    pre[ST0 + 7].append("s_waitcnt vmcnt(0)")
    extra[ST0 + 7].append(f"s_add_u32 s36, s14, {FB}\ns_addc_u32 s37, s15, 0\ns_mov_b32 s38, {FL_END}\ns_mov_b32 s39, 0x00020000\n"
                          f"s_lshl_b32 s45, s34, 8\ns_lshl_b32 s46, s35, 3\ns_add_u32 s45, s45, s46\ns_add_u32 s45, s45, s3\ns_lshl_b32 s45, s45, 2\ns_add_u32 s45, s45, {FL_RF}\n"
                          "v_mov_b32 v206, 1\nv_mov_b32 v207, 0\ns_mov_b64 exec, 1\nbuffer_store_dword v206, v207, s[36:39], s45 offen sc1\ns_mov_b64 exec, -1")
    if OPT.get("k2_touch", True):
        extra[ST0 + 7].append(rp.touch(0)); extra[ST0 + 8].append(w3(rp.touch(1)))
    EW = OPT.get("wo_early", 10)
    if EW:
        wo0, wosz = WS["WOF"]
        pre[22].append(f"s_lshr_b32 s77, s2, 5\ns_add_u32 s20, s14, {wo0}\ns_addc_u32 s21, s15, 0\ns_mov_b32 s22, {wosz}\ns_mov_b32 s23, 0x00020000\n"
                       f"s_lshl_b32 s32, s3, 10\ns_mul_i32 s33, s77, {108*1024}\ns_add_u32 s33, s33, s32\ns_waitcnt lgkmcnt(0)\ns_barrier")
        nb_ = 0
        for i in list(range(25, 32)) + list(range(22, 32)):
            if nb_ < EW and len(extra[i]) < 2:
                extra[i].append("s_mov_b32 m0, s32\ns_add_u32 s32, s32, 8192\nbuffer_load_dwordx4 v3, s[20:23], s33 offen lds\ns_add_u32 s33, s33, 8192"); nb_ += 1
        assert nb_ == EW
    if OPT.get("wo_touch", True):
        L = a.label("wt")
        wb0 = WS["WBAR"][0]; wsz = WS["WOF"][0] + WS["WOF"][1] - wb0
        extra[19].append(f"s_sub_u32 s56, s3, 3\ns_cmp_ge_u32 s56, 3\ns_cbranch_scc1 {L}\ns_lshr_b32 s57, s2, 3\ns_mul_i32 s57, s57, 3\ns_add_u32 s56, s56, s57\ns_lshl_b32 s56, s56, 13\n"
                         f"s_add_u32 s28, s14, {wb0}\ns_addc_u32 s29, s15, 0\ns_mov_b32 s30, {wsz}\ns_mov_b32 s31, 0x00020000\nv_lshlrev_b32 v206, 7, v0\nbuffer_load_dword v205, v206, s[28:31], s56 offen\n{L}:")
    if OPT["codepf"]:
        L = a.label("cp")
        extra[18].append(f"s_lshr_b32 s56, s2, 3\ns_cmp_ge_u32 s56, CODE_PF_N\ns_cbranch_scc1 {L}\ns_cmp_lg_u32 s3, 0\ns_cbranch_scc1 {L}\n"
                         f"s_getpc_b64 s[58:59]\n{L}_pc:\ns_add_u32 s58, s58, K2_out-{L}_pc\ns_addc_u32 s59, s59, 0\n"
                         f"s_lshl_b32 s56, s56, 13\nv_lshlrev_b32 v206, 7, v0\nv_add_u32 v206, s56, v206\nv_min_u32 v206, CODE_END-K2_out-4, v206\nglobal_load_dword v205, v206, s[58:59]\n{L}:")
    for i in range(32):
        cur, nxt = (SA, SB) if i % 2 == 0 else (SB, SA)
        q = qk(nxt, (i + 1) % 2, NMr) if i < 31 else ["", "", ""]
        vs_ = i % 2
        kr = rdK(i % 2, i + 2) if i + 2 < 32 else ["", "", ""]
        vrd = rdV((i + 1) % 2, i + 1) if i < 31 else [""] * 4
        e = [E(cur, g) for g in range(8)]
        ex = extra[i] + ["", ""]
        seq = list(pre[i])
        if OPT["prio"] and i % 5 in (0, OPT["prio"]):
            L = a.label("pr")
            seq.append(f"s_cmp_lt_u32 s3, 4\ns_cbranch_scc1 {L}\ns_setprio {2 if i % 5 == 0 else 0}\n{L}:")
        seq += ["s_waitcnt lgkmcnt(0)", q[0]] + kr[0:2] + e[0]
        seq += [pvm(1 - vs_, 3) if i > 0 else ""] + kr[2:3] + vrd[0:1] + e[1]
        seq += [q[1]] + vrd[1:3] + e[2]
        seq += [pvm(vs_, 0)] + vrd[3:4] + e[3]
        seq += [q[2], ex[0]] + e[4] + e[5][:3]
        seq += [pvm(vs_, 1), ex[1]] + e[5][3:] + e[6][:2]
        seq += [pvm(vs_, 2)] + e[6][2:] + e[7]
        for x in seq:
            if x: a(x)
        if i % 8 == 7: st(3 + i // 8)
    a("s_nop 1"); a(pvm(1, 3))
    a("s_setprio 0\ns_nop 15")
    def bcast_l():
        a(f"v_mov_b32 v25, v{O+10}\nv_mov_b32 v26, v{O+10}\ns_nop 1\nv_permlane32_swap_b32 v25, v26\ns_nop 1")
    bcast_l()
    a(f"v_mov_b32 v26, {f32bits(2.0**60)}\nv_cmp_nle_f32 vcc, v25, v26\ns_nop 4\ns_cbranch_vccz K2_out")
    a("v_mov_b32 v24, 0xff800000")
    for ps in range(2):
        a(f"s_mov_b32 s52, 0\nv_mov_b32 v27, v{VKA}\nv_mov_b32 v28, v{VK2}\nv_mov_b32 v29, v{VVA}")
        a(f"K2_fb{ps}:")
        a(f"buffer_load_dwordx4 v[{KF}:{KF+3}], v27, s[16:19], 0 offen\nbuffer_load_dwordx4 v[{KF+4}:{KF+7}], v27, s[16:19], 0 offen offset:1024\nbuffer_load_dword v{K2F}, v28, s[16:19], 0 offen offset:2048")
        if ps:
            a("s_movk_i32 s53, 2304")
            for u in range(4): a(f"buffer_load_dwordx4 v[{VF+4*u}:{VF+4*u+3}], v29, s[16:19], s53 offen offset:{608*u}")
        a("s_waitcnt vmcnt(0)")
        q = qk(SA, 0, NMr if ps else "0")
        a(q[0]); a(q[1]); a("s_nop 9"); a(q[2]); a("s_nop 15\ns_nop 3")
        if ps == 0:
            for x in rowmax(SA, 24, False): a(x)
        else:
            for g in range(8):
                for x in E(SA, g): a(x)
            a("s_nop 1")
            for u in range(4): a(pvm(0, u))
        a(f"v_add_u32 v27, {PAIR}, v27\nv_add_u32 v28, {PAIR}, v28\nv_add_u32 v29, {PAIR}, v29")
        a(f"s_add_u32 s52, s52, 1\ns_cmp_lt_u32 s52, 32\ns_cbranch_scc1 K2_fb{ps}")
        if ps == 0:
            set_nm(24)
            for r in range(16): a(f"v_mov_b32 v{O+r}, 0")
    a("s_nop 15")
    bcast_l()
    a("K2_out:")
    WR, XR, ACC, XRES = 12, 40, 112, 140
    a("s_lshr_b32 s77, s2, 5\ns_and_b32 s78, s2, 7\ns_lshl_b32 s78, s78, 2\ns_bfe_u32 s43, s2, 0x20003\ns_add_u32 s78, s78, s43")
    a("s_cmp_ge_u32 s3, 4\ns_cbranch_scc1 K2_noearly")
    a("s_lshl_b32 s46, s78, 2\ns_add_u32 s46, s46, s3")
    ws_srd(a, 48, "MEAN1", 14)
    ws_srd(a, 52, "XC", 14)
    a(f"s_mul_i32 s47, s77, 3072\ns_mul_i32 s30, s46, 18432\ns_add_u32 s47, s47, s30")
    for u in range(3):
        a(f"buffer_load_dwordx4 v[{XRES+4*u}:{XRES+4*u+3}], v3, s[52:55], s47 offen offset:{1024*u}")
    a(f"v_and_b32 v166, 15, v0\nv_lshlrev_b32 v166, 2, v166\ns_lshl_b32 s65, s46, 6\nbuffer_load_dword v165, v166, s[48:51], s65 offen")
    a(f"s_lshl_b32 s43, s34, 10\ns_add_u32 s43, s43, {FL_RF}\nbuffer_load_dwordx4 v[160:163], v3, s[36:39], s43 offen sc1")
    a("K2_noearly:")
    a(f"v_rcp_f32 v25, v25\ns_nop 0")
    for r in range(10): a(f"v_mul_f32 v{O+r}, v{O+r}, v25")
    for r in range(5): a(f"v_cvt_pk_bf16_f32 v{P+r}, v{O+2*r}, v{O+2*r+1}")
    a(f"v_lshrrev_b32 v26, 4, v1\nv_mul_u32_u24 v27, {18*1024}, v26\nv_and_b32 v28, 15, v1\nv_lshl_add_u32 v27, v28, 4, v27\nv_lshl_add_u32 v27, v2, 8, v27")
    a(f"s_mul_i32 s42, s40, {36*1024}\ns_lshl_b32 s43, s41, 9\ns_add_u32 s43, s43, s42")
    a(f"buffer_store_dwordx4 v[{P}:{P+3}], v27, s[24:27], s43 offen sc1")
    OSC = 32 * PAIR + 1024
    a(f"s_lshr_b32 s43, s3, 2\ns_lshl_b32 s43, s43, 8\ns_and_b32 s44, s3, 3\ns_lshl_b32 s44, s44, 2\ns_add_u32 s43, s43, s44\ns_add_u32 s43, s43, {OSC}")
    a(f"v_lshlrev_b32 v26, 9, v26\nv_lshl_add_u32 v26, v28, 4, v26\nv_add_u32 v26, s43, v26\ns_mov_b64 exec, 0xffffffff\nds_write_b32 v26, v{P+4}\ns_mov_b64 exec, -1")
    a(f"v_mov_b32 v172, {ffn.CNT}\nv_mov_b32 v8, 1\nv_mov_b32 v9, 0\ns_lshl_b32 s79, s2, 7\ns_add_u32 s79, s79, {FL_OF}")
    a(f"v_add_u32 v4, {OSC}, v3\nv_mul_u32_u24 v5, {18*1024}, v2\nv_lshl_add_u32 v5, v1, 4, v5")
    a("s_and_b32 s43, s2, 3\ns_lshl_b32 s43, s43, 9\ns_add_u32 s43, s43, s42\ns_add_u32 s43, s43, 16384")
    a("s_waitcnt lgkmcnt(0)\ns_barrier")
    st(7)
    a("s_cmp_lg_u32 s3, 0\ns_cbranch_scc1 K3_norem")
    a("ds_read_b128 v[12:15], v4\ns_waitcnt lgkmcnt(0)\nbuffer_store_dwordx4 v[12:15], v5, s[24:27], s43 offen sc1")
    a("K3_norem:")
    a("v_lshlrev_b32 v2, 4, v0\ns_mov_b32 s40, s77\ns_mov_b32 s41, s78")
    a("s_waitcnt vmcnt(0)\ns_mov_b64 exec, 1\nds_add_rtn_u32 v168, v172, v8 offset:12\ns_waitcnt lgkmcnt(0)\nv_readfirstlane_b32 s70, v168\ns_cmp_lg_u32 s70, 7\ns_cbranch_scc1 K3_nofl")
    a("buffer_store_dword v8, v9, s[36:39], s79 offen sc1\nK3_nofl:\ns_mov_b64 exec, -1")
    a("s_cmp_ge_u32 s3, 4\ns_cbranch_scc1 K3_loader")
    a("v_add_u32 v3, 0x10000, v2\nv_add_u32 v4, 0x20000, v2\nv_and_b32 v5, 15, v0\nv_lshrrev_b32 v6, 4, v0\nv_lshlrev_b32 v7, 7, v0")
    a("v_lshlrev_b32 v11, 2, v5\nv_mov_b32 v10, v165")
    st(8)
    a("s_cmp_ge_u32 s40, 6\ns_cbranch_scc1 K4_compute")
    a(f"s_lshl_b32 s43, s41, 3\ns_lshr_b32 s44, s3, 1\ns_lshl_b32 s44, s44, 2\ns_add_u32 s43, s43, s44\ns_lshl_b32 s43, s43, 7\ns_add_u32 s43, s43, {FL_OF}")
    ws_srd(a, 52, "HC", 14)
    ws_srd(a, 56, "MU2", 14)
    ws_srd(a, 60, "SS", 14)
    a("s_barrier")
    st(13)
    for j in range(7):
        off = j * 1024 if j < 6 else 108 * 1024
        a(f"ds_read_b128 v[{12+4*j}:{15+4*j}], v{2 + off // 65536} offset:{off % 65536}")
    poll(a, 4, 7, 36, 43, 164, 1)
    st(9)
    def oload(ks):
        return ("s_add_u32 s30, s30, 4096\n" if ks and ks % 4 == 0 else "") + f"buffer_load_dwordx4 v[{XR+4*ks}:{XR+4*ks+3}], v2, s[24:27], s30 offen offset:{(ks%4)*1024} sc1"
    OD = OPT.get("k3_od", 6)
    for ks in range(OD): a(oload(ks))
    st(10)
    def wread(ks, j):
        off = (ks * 6 + j) * 1024 if j < 6 else (108 + ks) * 1024
        return f"ds_read_b128 v[{WR+4*j}:{WR+4*j+3}], v{2 + off // 65536} offset:{off % 65536}"
    nl = OD
    for ks in range(18):
        for j in range(7):
            a((f"s_waitcnt vmcnt({nl-1-ks}) " if j == 0 else "s_waitcnt ") + f"lgkmcnt({6 if ks < 17 else 6-j})")
            c = "0" if ks == 0 else f"v[{ACC+4*j}:{ACC+4*j+3}]"
            a(f"v_mfma_f32_16x16x32_bf16 v[{ACC+4*j}:{ACC+4*j+3}], v[{WR+4*j}:{WR+4*j+3}], v[{XR+4*ks}:{XR+4*ks+3}], {c}")
            if ks < 17: a(wread(ks + 1, j))
            if j in (1, 4) and nl < 18:
                a(oload(nl)); nl += 1
    a("s_barrier")
    st(11)
    e = ACC + 24
    a(f"s_nop 6\nv_add_f32 v10, v10, v{e}\nv_add_f32 v10, v10, v{e+1}\nv_mov_b32 v14, 0")
    for u in range(3):
        for r in range(4):
            x = XRES + 4 * u + r
            lo, hi = ACC + 8 * u + r, ACC + 8 * u + 4 + r
            a(f"v_lshlrev_b32 v12, 16, v{x}\nv_and_b32 v13, 0xffff0000, v{x}")
            a(f"v_add_f32 v{lo}, v{lo}, v12\nv_add_f32 v{hi}, v{hi}, v13")
            a(f"v_sub_f32 v{lo}, v{lo}, v10\nv_sub_f32 v{hi}, v{hi}, v10")
            a(f"v_cvt_pk_bf16_f32 v{XR+4*u+r}, v{lo}, v{hi}")
        a(f"buffer_store_dwordx4 v[{XR+4*u}:{XR+4*u+3}], v2, s[52:55], s47 offen offset:{1024*u} sc1")
    for i in range(12): a(f"v_dot2_f32_bf16 v14, v{XR+i}, v{XR+i}, v14")
    a("s_nop 2")
    sum_g(a, 14, 12)
    a("s_lshl_b32 s43, s41, 3\ns_add_u32 s43, s43, s40\ns_lshl_b32 s43, s43, 8\ns_lshl_b32 s44, s3, 6\ns_add_u32 s43, s43, s44\ns_mov_b64 exec, 0xffff")
    a("buffer_store_dword v14, v11, s[60:63], s43 offen sc1")
    a("s_cmp_lg_u32 s40, 0\ns_cbranch_scc1 K3_nomu\nbuffer_store_dword v10, v11, s[56:59], s65 offen sc1\nK3_nomu:")
    a(f"s_lshl_b32 s43, s46, 3\ns_add_u32 s43, s43, s40\ns_lshl_b32 s43, s43, 7\ns_add_u32 s43, s43, {FL_HF}")
    a("s_waitcnt vmcnt(0)\ns_mov_b64 exec, 1\nbuffer_store_dword v8, v9, s[36:39], s43 offen sc1\ns_mov_b64 exec, -1")
    st(12)
    a("s_branch K4_compute")
    a("K3_loader:")
    a(f"v_mov_b32 v4, {ffn.CNT}")
    a("s_sub_u32 s33, s3, 4\ns_cmp_ge_u32 s40, 6\ns_cbranch_scc1 K4_helper")
    ws_srd(a, 20, "WOF", 14)
    ws_srd(a, 68, "WBAR", 14)
    a(f"s_lshl_b32 s76, s33, 10\ns_mul_i32 s75, s40, {108*1024}\ns_add_u32 s74, s76, {EW*8192}\ns_add_u32 s75, s75, s74")
    for i in range(2*EW, 32):
        sd, so = ((20, 75) if i < 27 else (68, 76))
        a(f"s_mov_b32 m0, s74\ns_add_u32 s74, s74, 4096\nbuffer_load_dwordx4 v2, s[{sd}:{sd+3}], s{so} offen lds\ns_add_u32 s{so}, s{so}, 4096")
    a("s_waitcnt vmcnt(0)\ns_barrier\ns_barrier\ns_branch K4_helper")
    k4(a, st)
    a("K2_end:\ns_endpgm\nCODE_END:")
    return kernel_desc("k2_kernel", 256)

def k4(a, st0):
    st = lambda i: st0(20 + i)
    a("K4_compute:\ns_mov_b32 s40, s34\ns_mov_b32 s41, s35")
    a(f"s_lshl_b32 s43, s34, 10\ns_add_u32 s43, s43, {FL_RF}\ns_mov_b32 s73, 0x8000\ns_branch K3_rf1")
    a("K3_rf:\nbuffer_load_dwordx4 v[160:163], v2, s[36:39], s43 offen sc1\ns_waitcnt vmcnt(0)\nK3_rf1:\nv_and_b32 v12, v160, v161\nv_and_b32 v14, v162, v163\nv_and_b32 v12, v12, v14\nv_cmp_eq_u32 vcc, 1, v12\ns_nop 1")
    a("s_cmp_eq_u64 vcc, -1\ns_cbranch_scc1 K3_rfok\ns_sleep 2\ns_sub_u32 s73, s73, 1\ns_cbranch_scc0 K3_rf\nK3_rfok:")
    a(f"s_lshl_b32 s46, s40, 2\ns_add_u32 s46, s46, s3\ns_mul_i32 s31, s46, {324*1024}")
    ws_srd(a, 20, "WF", 14)
    a("s_setprio 2")
    a("v_add_u32 v3, 0x10000, v2\nv_add_u32 v4, 0x20000, v2")
    a(f"s_mul_i32 s42, s3, 3\ns_lshr_b32 s43, s42, 1\ns_lshl_b32 s43, s43, 12\ns_and_b32 s44, s42, 1\ns_lshl_b32 s45, s44, 3\ns_add_u32 s43, s43, s45\ns_add_u32 s43, s43, {ffn.HB}")
    a("v_add_u32 v5, s43, v2")
    a("s_mul_i32 s45, s44, 4080\ns_add_u32 s45, s45, 8\nv_add_u32 v6, s45, v5")
    a("v_and_b32 v12, 15, v0\nv_mul_u32_u24 v12, 400, v12\nv_lshrrev_b32 v13, 4, v0\nv_lshl_add_u32 v12, v13, 5, v12")
    for t in range(3):
        a(f"s_add_u32 s45, s42, {t}\ns_lshr_b32 s46, s45, 2\ns_lshl_b32 s46, s46, 7\ns_and_b32 s45, s45, 3\ns_lshl_b32 s45, s45, 3\ns_add_u32 s45, s45, s46\nv_add_u32 v{7+t}, s45, v12")
    a(f"v_mov_b32 v10, 1\nv_mov_b32 v11, {ffn.CNT}")
    ffn.ffn_compute(a, srdW=20, sW=31, v_lane16=2, v_h8=5, v_p=7, v_one=10, RINGF=(19 if (st0.on) else 20), stamp=st, PRE=OPT.get("k4_pre", 12))
    PB, AC = 48, 112
    uid = [0]
    def pub_setup(nr, g0):
        ws_srd(a, 24, "PART", 14)
        ws_srd(a, 36, "FLAG", 14)
        rows = nr * 1024 // 384
        a(f"s_mul_i32 s45, s33, {rows*400}\ns_add_u32 s45, s45, {g0*ffn.STG}")
        for i in range(nr):
            a(f"v_add_u32 v12, {64*i}, v0\nv_mul_u32_u24 v13, 2731, v12\nv_lshrrev_b32 v13, 16, v13\nv_add_u32 v12, v12, v13\nv_lshlrev_b32 v12, 4, v12\nv_add_u32 v{36+i}, s45, v12")
        a(f"s_mul_i32 s49, s41, 3\ns_add_u32 s49, s49, {g0}\ns_mul_i32 s46, s49, {8*24576}\ns_mul_i32 s47, s40, 24576\ns_mul_i32 s48, s33, {nr*1024}\ns_add_u32 s47, s47, s48\ns_add_u32 s47, s47, s46")
        a(f"v_mov_b32 v4, {ffn.CNT + 4*g0}\nv_mov_b32 v13, 1\nv_mov_b32 v18, 0")
        a("s_lshl_b32 s49, s49, 12\ns_lshl_b32 s50, s33, 10\ns_lshl_b32 s51, s40, 7\ns_add_u32 s50, s50, s51\ns_add_u32 s50, s50, s49")
    def publish(nr, k, sb):
        uid[0] += 1; u = uid[0]
        a("s_mov_b32 s72, 0x40000")
        a(f"K4_pl{u}:\nds_read_b32 v3, v4 offset:{4*k}\ns_waitcnt lgkmcnt(0)\nv_readfirstlane_b32 s70, v3\ns_cmp_eq_u32 s70, 4\ns_cbranch_scc1 K4_go{u}\ns_sleep 2\ns_sub_u32 s72, s72, 1\ns_cbranch_scc0 K4_pl{u}\nK4_go{u}:")
        st(sb)
        for i in range(nr):
            a(f"ds_read_b128 v[{PB+4*i}:{PB+4*i+3}], v{36+i} offset:{k*ffn.STG}")
        a("s_mov_b32 s71, s47")
        for i in range(nr):
            if i and i % 4 == 0: a("s_add_u32 s71, s71, 4096")
            a(f"s_waitcnt lgkmcnt({nr-1-i})\nbuffer_store_dwordx4 v[{PB+4*i}:{PB+4*i+3}], v2, s[24:27], s71 offen offset:{(i%4)*1024} sc1")
        a("s_waitcnt vmcnt(0)")
        a(f"s_mov_b64 exec, 1\nbuffer_store_dword v13, v18, s[36:39], s50 offen sc1\ns_mov_b64 exec, -1")
        st(sb + 1)
        a(f"s_add_u32 s47, s47, {8*24576}\ns_add_u32 s50, s50, 4096")
    def red_setup(nu, g0, ng, pubrows):
        ws_srd(a, 24, "PART", 14)
        ws_srd(a, 36, "FLAG", 14)
        ws_srd(a, 16, "HC", 14)
        ws_srd(a, 52, "MU2", 14)
        ws_srd(a, 56, "SS", 14)
        srd(a, 60, 4, 0, T*DM*2)
        a(f"s_lshl_b32 s42, s40, 2\ns_mul_i32 s43, s33, {nu}\ns_add_u32 s42, s42, s43\ns_lshl_b32 s43, s42, 1")
        a(f"s_mul_i32 s49, s41, 3\ns_add_u32 s49, s49, {g0}\ns_mul_i32 s46, s49, {8*24576}\ns_mul_i32 s48, s42, 768\ns_add_u32 s48, s48, s46")
        a(f"s_lshl_b32 s49, s49, 12\ns_lshr_b32 s51, s43, {pubrows.bit_length()-1}\ns_lshl_b32 s51, s51, 10\ns_add_u32 s51, s51, s49")
        a("v_lshlrev_b32 v12, 7, v0")
        a("v_cmp_lt_u32 vcc, 23, v0\nv_subrev_u32 v6, 24, v0\ns_nop 0\nv_cndmask_b32 v5, 0, 1, vcc\nv_cndmask_b32 v6, v0, v6, vcc")
        a("v_add_u32 v7, s43, v5")
        a("v_cmp_gt_u32 vcc, 48, v0\nv_bfrev_b32 v8, 1\ns_nop 0\nv_cndmask_b32 v9, v8, v2, vcc")
        a("v_lshrrev_b32 v10, 4, v7\nv_mul_u32_u24 v10, 18432, v10\nv_lshl_add_u32 v10, v6, 8, v10\nv_and_b32 v11, 15, v7\nv_lshl_add_u32 v10, v11, 4, v10\nv_cndmask_b32 v10, v8, v10, vcc")
        a(f"v_mul_u32_u24 v11, {DM*2}, v7\nv_lshl_add_u32 v11, v6, 4, v11\nv_cndmask_b32 v11, v8, v11, vcc")
        a(f"s_mul_i32 s30, s41, 73728\ns_add_u32 s30, s30, {g0*6144}")
        for k in range(ng):
            for un in range(nu):
                a(f"buffer_load_dwordx4 v[{20+4*(k*nu+un)}:{23+4*(k*nu+un)}], v10, s[16:19], s30 offen offset:{32*un} sc1")
            a("s_add_u32 s30, s30, 6144")
        a("v_lshlrev_b32 v19, 2, v7\ns_lshl_b32 s44, s41, 8\ns_lshl_b32 s65, s41, 11")
        for un in range(nu):
            a(f"buffer_load_dword v{140+un}, v19, s[52:55], s44 offen offset:{8*un} sc1")
            for nb in range(6):
                a(f"buffer_load_dword v{144+8*un+nb}, v19, s[56:59], s65 offen offset:{8*un+256*nb} sc1")
        a(f"s_mul_i32 s64, s41, {64*DM*2}\ns_add_u32 s64, s64, {g0*384}")
        a("v_and_b32 v19, 1, v0\nv_cmp_eq_u32 s[66:67], 1, v19")
        a(f"s_mov_b32 s68, 0x00003f80\ns_mov_b32 s69, 0x3f800000")
    def red_stats(nu):
        for un in range(nu):
            b = 144 + 8*un
            a(f"v_add_f32 v{b}, v{b}, v{b+1}\nv_add_f32 v{b+2}, v{b+2}, v{b+3}\nv_add_f32 v{b+4}, v{b+4}, v{b+5}\nv_add_f32 v{b}, v{b}, v{b+2}\nv_add_f32 v{b}, v{b}, v{b+4}")
            a(f"v_mov_b32 v{b+1}, {f32bits(1e-5)}\nv_fmac_f32 v{b+1}, {f32bits(1.0/DM)}, v{b}\nv_rsq_f32 v{142+un}, v{b+1}")
    def reduce(nu, k, sb, slp, stats=False):
        uid[0] += 1; u = uid[0]
        a("s_mov_b32 s73, 0x8000\ns_mov_b64 exec, 0xff")
        a(f"K4_pg{u}:\nbuffer_load_dword v3, v12, s[36:39], s51 offen sc1\ns_waitcnt vmcnt(0)\nv_cmp_eq_u32 vcc, 1, v3\ns_nop 1\ns_cmp_eq_u32 vcc_lo, 0xff\ns_cbranch_scc1 K4_gg{u}\ns_sleep {slp}\ns_sub_u32 s73, s73, 1\ns_cbranch_scc0 K4_pg{u}\nK4_gg{u}:")
        a("s_mov_b64 exec, -1")
        st(sb)
        for un in range(nu):
            a("s_mov_b32 s71, s48")
            for j in range(8):
                b = PB + 32*un + 4*j
                a(f"buffer_load_dwordx4 v[{b}:{b+3}], v9, s[24:27], s71 offen offset:{768*un} sc1\ns_add_u32 s71, s71, 24576")
        if stats: red_stats(nu)
        for un in range(nu):
            for j in range(8):
                a(f"s_waitcnt vmcnt({8*(nu-1-un) + 7-j})")
                for qq in range(2):
                    for p in range(2):
                        for hh in range(2):
                            d = AC + 2*(2*p+hh) + qq
                            c = "0" if j == 0 else f"v{d}"
                            a(f"v_dot2_f32_bf16 v{d}, v{PB+32*un+4*j+2*qq+p}, s{68+hh}, {c}")
            a("s_nop 2")
            for i in range(4):
                a(f"v_cndmask_b32 v{AC+8+i}, v{AC+4+i}, v{AC+i}, s[66:67]")
                a(f"v_cndmask_b32 v{AC+12+i}, v{AC+i}, v{AC+4+i}, s[66:67]")
            a("s_nop 1")
            for i in range(4):
                a(f"v_mov_b32_dpp v{AC+16+i}, v{AC+8+i} quad_perm:[1,0,3,2] row_mask:0xf bank_mask:0xf")
            for hlf in range(2):
                for e in range(2):
                    k_, r_ = AC + 12 + 2*hlf + e, AC + 16 + 2*hlf + e
                    a(f"v_cndmask_b32 v{AC+4*hlf+e}, v{k_}, v{r_}, s[66:67]\nv_cndmask_b32 v{AC+4*hlf+2+e}, v{r_}, v{k_}, s[66:67]")
            h0 = 20 + 4*(k*nu+un)
            for i in range(4):
                hcr = h0 + i
                a(f"v_lshlrev_b32 v16, 16, v{hcr}\nv_and_b32 v17, 0xffff0000, v{hcr}\nv_add_f32 v16, v16, v{140+un}\nv_add_f32 v17, v17, v{140+un}")
                a(f"v_fmac_f32 v16, v{AC+2*i}, v{142+un}\nv_fmac_f32 v17, v{AC+2*i+1}, v{142+un}\nv_cvt_pk_bf16_f32 v{hcr}, v16, v17")
        for un in range(nu):
            h0 = 20 + 4*(k*nu+un)
            a(f"buffer_store_dwordx4 v[{h0}:{h0+3}], v11, s[60:63], s64 offen offset:{384*k + 2*DM*2*un}")
        st(sb + 1)
        a(f"s_add_u32 s48, s48, {8*24576}\ns_add_u32 s51, s51, 4096")
    a("s_mov_b32 s33, s3")
    pub_setup(6, 2); publish(6, 0, 10)
    red_setup(1, 2, 1, 16); reduce(1, 0, 12, 1, stats=True)
    a("s_branch K4_fin")
    a("K4_helper:")
    a(f"s_setprio {OPT.get('k4_hprio', 3)}\ns_mov_b32 s40, s34\ns_mov_b32 s41, s35")
    a(f"s_mul_i32 s30, s41, 73728\ns_mul_i32 s90, s33, 18432\ns_add_u32 s30, s30, s90")
    ws_srd(a, 16, "HC", 14)
    a(f"s_lshl_b32 s43, s41, 2\ns_add_u32 s43, s43, s33\ns_lshl_b32 s43, s43, 10\ns_add_u32 s43, s43, {FL_HF}\nv_lshlrev_b32 v12, 7, v0")
    poll(a, 6, 12, 36, 43, 3, 1)
    st(9)
    for i in range(18):
        if i % 4 == 0: a("s_mov_b32 m0, s90\ns_add_u32 s90, s90, 4096")
        a(f"buffer_load_dwordx4 v2, s[16:19], s30 offen offset:{(i%4)*1024} sc1 lds")
        if i % 4 == 3: a("s_add_u32 s30, s30, 4096")
        if i >= 5 and i % 3 == 2: a("s_waitcnt vmcnt(3)\ns_barrier")
    a("s_waitcnt vmcnt(0)\ns_barrier")
    a("s_cmp_ge_u32 s33, 2\ns_cbranch_scc1 K4_reducer")
    pub_setup(12, 0)
    for i in range(ffn.N_BARRIERS_AFTER_X): a("s_barrier")
    publish(12, 0, 10); publish(12, 1, 14)
    a("s_branch K4_fin")
    a("K4_reducer:\ns_sub_u32 s33, s33, 2")
    red_setup(2, 0, 2, 32)
    a("s_waitcnt vmcnt(0)")
    red_stats(2)
    for i in range(ffn.N_BARRIERS_AFTER_X): a("s_barrier")
    for k in range(2):
        a(f"s_mov_b32 s72, 0x40000\nK4_rw{k}:\nds_read_b32 v3, v4 offset:{4*k}\ns_waitcnt lgkmcnt(0)\nv_readfirstlane_b32 s70, v3\ns_cmp_eq_u32 s70, 4\ns_cbranch_scc1 K4_rg{k}\ns_sleep 4\ns_sub_u32 s72, s72, 1\ns_cbranch_scc0 K4_rw{k}\nK4_rg{k}:")
        reduce(2, k, 12 + 4*k, 8)
    a("K4_fin:")
    st0.finish(14, 3, 8)

HEADER = open("cdna_kernels/" + NAME + ".s.ref").read().split("; Override launch geometry")[0]
def build(stamp_k=-1, force_fallback=False, light=False, **opt):
    LIGHT[0] = light
    OPT.update(opt)
    a = Asm()
    launches = [("k1_kernel", K1_GRID, 512, K1_LDS), ("k2_kernel", K2_GRID, 512, K2_LDS)]
    hdr = HEADER + "".join(f"; @launch kernel={k} grid=({g},1,1) block=({b},1,1) lds={l}\n" for k, g, b, l in launches)
    a('.amdgcn_target "amdgcn-amd-amdhsa--gfx950"\n.text')
    descs = [k1(a, stamp_k), k2(a, stamp_k, force_fallback)]
    a('.set CODE_PF_N, (CODE_END - K2_out + 8191) / 8192')
    a('.section .rodata,"a"')
    return hdr + a.text() + "".join(descs)

if __name__ == "__main__":
    out = sys.argv[1] if len(sys.argv) > 1 else "cdna_kernels/" + NAME + ".s"
    kw = eval("dict(" + (sys.argv[2] if len(sys.argv) > 2 else "") + ")")
    open(out, "w").write(build(**kw))
```

```python
import sys, math
from asmlib import *
from gemm import gemm_core
import ffn

T, DM, NH, DH, F = 2048, 576, 32, 18, 4608
NAME = "sequential_preLN__grouped_kv_mqa__dense_activation_relu__prompt"
A_X, A_WQ, A_WK, A_WV, A_WO, B_X, B_W1, B_W2, K_OUT, K_DBG, K_WS = [8 * i for i in range(11)]
def _al(x, a=4096): return (x + a - 1) // a * a
PAIR = 4736
FL_PF, FL_OF, FL_HF, FL_RF = 0, 393216, 393216 + 32768, 393216 + 32768 + 131072
FL_END = FL_RF + 8192
WS = {}
_o = 0
for nm, sz in [("Q", T*DM*2), ("KV", 32*PAIR), ("MEAN1", T*4), ("O", T*DM*2), ("HC", T*DM*2), ("MU2", T*4),
               ("SS", T*8*4), ("XC", T*DM*2), ("WBAR", 18*1024), ("WOF", 648*1024), ("WF", 2*DM*F*2),
               ("PART", 8*T*DM*2), ("FLAG", FL_END), ("STAMP", 16 << 20)]:
    WS[nm] = (_o, sz); _o += _al(sz)
WS_END = _o
QSCALE = math.log2(math.e) / math.sqrt(DH)
def f32bits(x):
    import struct
    return struct.unpack("<I", struct.pack("<f", x))[0]
ONES = 0x3f803f80

def ws_srd(a, d, nm, base):
    srd(a, d, base, WS[nm][0], WS[nm][1])

def wave_lane(a, s_wave=3):
    a(f"v_lshrrev_b32 v1, 6, v0\nv_and_b32 v0, 63, v0\ns_nop 0\nv_readfirstlane_b32 s{s_wave}, v1")

def sum_g(a, v, t):
    a(f"v_mov_b32 v{t}, v{v}\ns_nop 1\nv_permlane32_swap_b32 v{v}, v{t}\ns_nop 1\nv_add_f32 v{v}, v{v}, v{t}")
    a(f"v_mov_b32 v{t}, v{v}\ns_nop 1\nv_permlane16_swap_b32 v{v}, v{t}\ns_nop 1\nv_add_f32 v{v}, v{v}, v{t}")

LIGHT = [False]
OPT = dict(prio=4, k2_nt=True, codepf=True)
class Stamps:
    def __init__(self, a, on, kidx, vreg, vtmp):
        self.a, self.on, self.k, self.v, self.t = a, bool(on) or LIGHT[0], kidx, vreg, vtmp
        self.full = bool(on)
    def start(self):
        if OPT.get("dbgt"):
            self.a(f"s_load_dwordx2 s[100:101], s[0:1], {K_DBG}\ns_memrealtime s[98:99]\ns_waitcnt lgkmcnt(0)")
        if self.on:
            self.a(f"s_memrealtime s[96:97]\ns_memtime s[98:99]\nv_mov_b32 v{self.v}, 0\ns_waitcnt lgkmcnt(0)\nv_writelane_b32 v{self.v}, s96, 62")
    def __call__(self, i):
        if self.full or (self.on and i == 61):
            if OPT.get("rt") and i != 61:
                self.a(f"s_memrealtime s[96:97]\ns_waitcnt lgkmcnt(0)\nv_writelane_b32 v{self.v}, s96, {i}")
            else:
                self.a(f"s_memtime s[96:97]\ns_waitcnt lgkmcnt(0)\ns_sub_u32 s96, s96, s98\nv_writelane_b32 v{self.v}, s96, {i}")
    def finish(self, s_ws, s_wave, nw):
        if OPT.get("dbgt"):
            a = self.a
            a("s_waitcnt vmcnt(0)\ns_memrealtime s[96:97]\ns_waitcnt lgkmcnt(0)")
            a("s_mov_b32 s92, s100\ns_mov_b32 s93, s101\ns_mov_b32 s94, 256\ns_mov_b32 s95, 0x00020000\ns_mov_b64 exec, 1")
            a(f"s_not_b32 s97, s98\nv_mov_b32 v1, 0\nv_mov_b32 v2, s97\nv_mov_b32 v3, s98\nv_mov_b32 v4, s96\nv_mov_b32 v5, {self.k}")
            a("buffer_atomic_umax v2, v1, s[92:95], 0 offen\nbuffer_atomic_umax v3, v1, s[92:95], 0 offen offset:4\nbuffer_atomic_umax v4, v1, s[92:95], 0 offen offset:8\nbuffer_atomic_umax v5, v1, s[92:95], 0 offen offset:12\ns_mov_b64 exec, -1")
        if self.on:
            a = self.a
            a("s_waitcnt vmcnt(0)")
            self(61)
            a(f"s_memrealtime s[96:97]\ns_waitcnt lgkmcnt(0)\nv_writelane_b32 v{self.v}, s96, 63")
            ws_srd(a, 92, "STAMP", s_ws)
            a(f"s_lshl_b32 s96, s2, 3\ns_add_u32 s96, s96, s{s_wave}\ns_lshl_b32 s96, s96, 8\ns_add_u32 s96, s96, {self.k << 21}")
            a(f"v_mbcnt_lo_u32_b32 v{self.t}, -1, 0\nv_mbcnt_hi_u32_b32 v{self.t}, -1, v{self.t}\nv_lshlrev_b32 v{self.t}, 2, v{self.t}")
            a(f"buffer_store_dword v{self.v}, v{self.t}, s[92:95], s96 offen")


class Repack:
    PR = 208
    def __init__(self, a): self.a = a
    def common(self):
        return (f"s_add_u32 s60, s14, {WS['WOF'][0]}\ns_addc_u32 s61, s15, 0\ns_mov_b32 s62, {WS['WF'][0] + WS['WF'][1] - WS['WOF'][0]}\ns_mov_b32 s63, 0x00020000\n"
                "v_and_b32 v6, 15, v0\nv_lshrrev_b32 v7, 4, v0\ns_mov_b32 s80, 0x05040100\ns_mov_b32 s81, 0x07060302")
    def regs(self, rnd): return 64 + 4 * rnd, 72 + 4 * rnd, 82 + 4 * rnd, 242 + rnd, 240 + rnd
    def setup_ffn(self, rnd, pw1, pw2):
        L = self.a.label("rp")
        SD, SB_, SO, vsrc, dst = self.regs(rnd)
        OWF = WS["WF"][0] - WS["WOF"][0]
        t = []; A = t.append
        A(f"s_mul_hi_u32 s46, s47, {(2**32 + 161)//162}\ns_mul_i32 s49, s46, 162\ns_sub_u32 s47, s47, s49")
        A(f"s_mul_hi_u32 s49, s47, {(2**32 + 8)//9}\ns_mul_i32 s50, s49, 9\ns_sub_u32 s50, s47, s50")
        A(f"s_mov_b32 s{SD+3}, 0x00020000\ns_lshl_b32 s54, s50, 7\nv_mov_b32 v{dst}, v3")
        A(f"s_cmp_lt_u32 s46, 2\ns_cselect_b32 s{SD+2}, {DM*F*2}, 0\ns_cselect_b32 s57, 0, 0x100000")
        A(f"s_mul_i32 s53, s45, 1296\ns_mul_i32 s55, s46, 162\ns_add_u32 s53, s53, s55\ns_mul_i32 s55, s49, 3\ns_add_u32 s53, s53, s55\ns_add_u32 s53, s53, {OWF//1024}\ns_add_u32 s53, s53, s57")
        for q in range(4):
            A(f"s_lshl_b32 s55, s50, 2\ns_add_u32 s55, s55, {q}\ns_mul_i32 s56, s55, 86\ns_lshr_b32 s56, s56, 8")
            A(f"s_lshr_b32 s58, s56, 2\ns_mul_i32 s58, s58, 1242\ns_mul_i32 s56, s56, 321\ns_sub_u32 s56, s56, s58")
            A(f"s_add_u32 s55, s55, s56\ns_add_u32 s55, s55, s53\ns_lshl_b32 s{SO+q}, s55, 10")
        A(f"s_cmp_eq_u32 s46, 1\ns_cbranch_scc1 {L}_w2")
        A(f"s_mov_b32 s{SD}, s{pw1}\ns_mov_b32 s{SD+1}, s{pw1+1}\ns_mul_i32 s53, s49, {32*F*2}\ns_mul_i32 s55, s45, {DM*2}\ns_add_u32 s53, s53, s55\ns_add_u32 s{SB_}, s53, s54")
        A(f"s_mov_b32 s{SB_+1}, {4*F*2}\ns_mov_b32 s{SB_+2}, {2*F*2}\ns_mov_b32 s{SB_+3}, {F*2}")
        A(f"v_mul_u32_u24 v{vsrc}, {8*F*2}, v7\nv_lshl_add_u32 v{vsrc}, v6, 3, v{vsrc}\ns_branch {L}_done")
        A(f"{L}_w2:")
        A(f"s_mov_b32 s{SD}, s{pw2}\ns_mov_b32 s{SD+1}, s{pw2+1}\ns_lshr_b32 s53, s49, 1\ns_lshl_b32 s53, s53, 6\ns_and_b32 s55, s49, 1\ns_lshl_b32 s55, s55, 1\ns_add_u32 s53, s53, s55")
        A(f"s_mul_i32 s55, s45, {DM}\ns_add_u32 s53, s53, s55\ns_mul_i32 s53, s53, {DM*2}\ns_add_u32 s{SB_}, s53, s54")
        A(f"s_mov_b32 s{SB_+1}, {DM*2}\ns_mov_b32 s{SB_+2}, {8*DM*2}\ns_mov_b32 s{SB_+3}, {4*DM*2}")
        A(f"v_mul_u32_u24 v{vsrc}, {16*DM*2}, v7\nv_lshl_add_u32 v{vsrc}, v6, 3, v{vsrc}")
        A(f"{L}_done:")
        return "\n".join(t)
    def setup_wo(self, rnd, pwo):
        L = self.a.label("rp")
        SD, SB_, SO, vsrc, dst = self.regs(rnd)
        t = []; A = t.append
        A(f"s_mul_hi_u32 s49, s47, {(2**32 + 8)//9}\ns_mul_i32 s50, s49, 9\ns_sub_u32 s50, s47, s50")
        A(f"s_mov_b32 s{SD+3}, 0x00020000\ns_lshl_b32 s54, s50, 7")
        A(f"s_mov_b32 s{SD}, s{pwo}\ns_mov_b32 s{SD+1}, s{pwo+1}\ns_cmp_lt_u32 s47, 162\ns_cselect_b32 s{SD+2}, {DM*DM*2}, 0\ns_cselect_b32 s56, 0, 0x40000000")
        A(f"s_mul_i32 s55, s49, 6144\ns_add_u32 s{SO}, s56, s55\ns_add_u32 s{SO+1}, s{SO}, 1024\ns_add_u32 s{SO+2}, s{SO}, 16\ns_add_u32 s{SO+3}, s{SO}, 1040")
        A(f"s_lshl_b32 s55, s50, 1\nv_lshrrev_b32 v245, 3, v6\nv_add_u32 v245, s55, v245\nv_mul_u32_u24 v246, 86, v245\nv_lshrrev_b32 v246, 8, v246")
        A(f"v_mul_u32_u24 v246, 51, v246\nv_add_u32 v245, v245, v246\nv_lshlrev_b32 v245, 11, v245")
        A(f"v_and_b32 v246, 7, v6\nv_lshl_add_u32 v245, v246, 5, v245\nv_lshl_add_u32 v{dst}, v7, 8, v245")
        A(f"s_mov_b32 s{SB_+3}, {DM*2}\ns_cmp_ge_u32 s49, 16\ns_cbranch_scc1 {L}_wo2")
        A(f"s_mul_i32 s53, s49, {36*DM*2}\ns_mov_b32 s{SB_+1}, {8*DM*2}\ns_mov_b32 s{SB_+2}, {2*DM*2}")
        A(f"v_lshrrev_b32 v246, 1, v7\nv_mul_u32_u24 v246, 18, v246\nv_and_b32 v247, 1, v7\nv_lshl_add_u32 v246, v247, 2, v246\ns_branch {L}_wo3")
        A(f"{L}_wo2:")
        A(f"s_sub_u32 s53, s49, 16\ns_mul_i32 s53, s53, {288*DM*2}\ns_add_u32 s53, s53, {16*DM*2}\ns_mov_b32 s{SB_+1}, {36*DM*2}\ns_mov_b32 s{SB_+2}, {18*DM*2}")
        A(f"v_mul_u32_u24 v246, 72, v7")
        A(f"{L}_wo3:")
        A(f"s_add_u32 s{SB_}, s53, s54\nv_mul_u32_u24 v{vsrc}, {DM*2}, v246\nv_lshl_add_u32 v{vsrc}, v6, 3, v{vsrc}")
        return "\n".join(t)
    def load(self, rnd, s_, flag=""):
        SD, SB_, SO, vsrc, dst = self.regs(rnd)
        raw = self.PR + 16 * rnd
        t = f"s_mov_b32 s55, s{SB_}\n"
        if s_ & 4: t += f"s_add_u32 s55, s55, s{SB_+1}\n"
        if s_ & 2: t += f"s_add_u32 s55, s55, s{SB_+2}\n"
        if s_ & 1: t += f"s_add_u32 s55, s55, s{SB_+3}\n"
        return t + f"buffer_load_dwordx2 v[{raw+2*s_}:{raw+2*s_+1}], v{vsrc}, s[{SD}:{SD+3}], s55 offen{flag}"
    def store(self, rnd, q_, flag=""):
        SD, SB_, SO, vsrc, dst = self.regs(rnd)
        raw = self.PR + 16 * rnd
        t = 196 + 4 * (q_ % 2)
        L = [f"v_perm_b32 v{t+j}, v{raw+2*(2*j+1)+(q_>>1)}, v{raw+2*(2*j)+(q_>>1)}, s{80+(q_&1)}" for j in range(4)]
        L.append(f"buffer_store_dwordx4 v[{t}:{t+3}], v{dst}, s[60:63], s{SO+q_} offen{flag}")
        return "\n".join(L)
    def touch(self, rnd):
        SD, SB_, SO, vsrc, dst = self.regs(rnd)
        return "s_mov_b64 exec, 0xff\nv_lshlrev_b32 v204, 7, v0\n" + "\n".join(f"buffer_load_dword v205, v204, s[60:63], s{SO+q} offen" for q in range(4)) + "\ns_mov_b64 exec, -1"

def ffn_map(sj, smb):
    SL = OPT.get("k4_sl", 2); lg = SL.bit_length() - 1
    return (f"s_and_b32 s46, s2, 7\ns_lshr_b32 s47, s2, 3\ns_and_b32 s{sj}, s46, {8//SL-1}\ns_lshl_b32 s{sj}, s{sj}, {lg}\ns_and_b32 s48, s47, {SL-1}\ns_add_u32 s{sj}, s{sj}, s48\n"
            f"s_lshr_b32 s{smb}, s46, {3-lg}\ns_lshl_b32 s{smb}, s{smb}, {5-lg}\ns_lshr_b32 s48, s47, {lg}\ns_add_u32 s{smb}, s{smb}, s48\n")

def poll(a, n, voff, srd_, soff, vt, slp=2):
    L = a.label("poll")
    a(f"s_mov_b32 s73, 0x8000\ns_mov_b64 exec, {(1 << n) - 1}")
    a(f"{L}:\nbuffer_load_dword v{vt}, v{voff}, s[{srd_}:{srd_+3}], s{soff} offen sc1\ns_waitcnt vmcnt(0)\nv_cmp_eq_u32 vcc, 1, v{vt}\ns_nop 1\ns_cmp_eq_u32 vcc_lo, {(1 << n) - 1}\ns_cbranch_scc1 {L}_ok\ns_sleep {slp}\ns_sub_u32 s73, s73, 1\ns_cbranch_scc0 {L}\n{L}_ok:")
    a("s_mov_b64 exec, -1")

K1_GRID = 256
K1_LDS = 147456
def k1(a, stamp_k=-1):
    st = Stamps(a, stamp_k == 1, 1, 250, 251)
    XL = 73728
    kernel_begin(a, "k1_kernel")
    a(f"s_cmp_ge_u32 s2, {K1_GRID}\ns_cbranch_scc1 K1_end")
    a(f"s_load_dwordx4 s[4:7], s[0:1], {A_X}\ns_load_dwordx4 s[8:11], s[0:1], {A_WK}\ns_load_dwordx2 s[12:13], s[0:1], {A_WO}\ns_load_dwordx2 s[14:15], s[0:1], {K_WS}")
    st.start()
    wave_lane(a)
    a("v_and_b32 v1, 15, v0\nv_lshrrev_b32 v2, 4, v0")
    if OPT.get("k1_map", 1) == 0:
        a("s_and_b32 s44, s2, 31\ns_lshr_b32 s45, s2, 5")
        a("s_lshr_b32 s60, s44, 3\ns_mul_i32 s60, s60, 9\ns_lshr_b32 s60, s60, 2\ns_add_u32 s60, s60, s45\ns_and_b32 s61, s44, 7\ns_add_u32 s60, s60, s61")
    elif OPT.get("k1_map", 1) == 1:
        a("s_bfe_u32 s44, s2, 0x20001\ns_lshl_b32 s44, s44, 3\ns_bfe_u32 s61, s2, 0x30003\ns_add_u32 s44, s44, s61\ns_and_b32 s45, s2, 1\ns_lshl_b32 s45, s45, 2\ns_lshr_b32 s62, s2, 6\ns_add_u32 s45, s45, s62")
        a("s_mul_i32 s60, s62, 9\ns_lshr_b32 s60, s60, 2\ns_add_u32 s60, s60, s61\ns_and_b32 s61, s2, 7\ns_add_u32 s60, s60, s61")
    else:
        a("s_bfe_u32 s44, s2, 0x10002\ns_lshl_b32 s44, s44, 4\ns_bfe_u32 s61, s2, 0x40003\ns_add_u32 s44, s44, s61\ns_and_b32 s45, s2, 3\ns_lshl_b32 s45, s45, 1\ns_lshr_b32 s62, s2, 7\ns_add_u32 s45, s45, s62")
        a("s_lshl_b32 s60, s62, 2\ns_add_u32 s60, s60, s61\ns_and_b32 s61, s2, 3\ns_add_u32 s60, s60, s61")
    a("s_mul_i32 s61, s60, 57\ns_lshr_b32 s61, s61, 9\ns_mul_i32 s61, s61, 9\ns_sub_u32 s60, s60, s61")
    a("v_lshrrev_b32 v4, 3, v0\nv_and_b32 v5, 7, v0")
    a("s_cmp_ge_u32 s3, 4\ns_cbranch_scc1 K1_loader")
    a("s_cmp_eq_u32 s45, 7\ns_cbranch_scc1 K1_wbar")
    a("s_lshl_b32 s46, s44, 6\ns_lshl_b32 s47, s3, 4\ns_add_u32 s46, s46, s47")
    a(f"s_mul_i32 s47, s46, {DM*2}")
    a(f"v_xor_b32 v6, v4, v5\nv_mul_u32_u24 v3, {DM*2}, v4\nv_lshl_add_u32 v3, v6, 4, v3\nv_add_u32 v6, {8*DM*2 - 1024}, v3")
    a(f"s_lshl_b32 s61, s60, 7\ns_mul_i32 s63, s3, 18432\ns_add_u32 s63, s63, {XL}\ns_mov_b32 s64, s63")
    a("s_waitcnt lgkmcnt(0)")
    srd(a, 16, 4, 0, T*DM*2)
    X0 = 16
    for p in range(9):
        a("s_mov_b32 m0, s64\ns_add_u32 s62, s47, s61\ns_add_u32 s64, s64, 2048")
        a("buffer_load_dwordx4 v3, s[16:19], s62 offen lds\nbuffer_load_dwordx4 v6, s[16:19], s62 offen offset:1024 lds")
        a(f"s_add_u32 s61, s61, 128\ns_cmp_eq_u32 s61, {DM*2}\ns_cselect_b32 s61, 0, s61")
    if OPT.get("k1_xfirst", False): a("s_barrier")
    st(0)
    ws_srd(a, 32, "Q", 14)
    ws_srd(a, 36, "KV", 14)
    ws_srd(a, 40, "MEAN1", 14)
    ws_srd(a, 68, "XC", 14)
    a("v_and_b32 v7, 7, v1\nv_xor_b32 v8, v2, v7\nv_lshlrev_b32 v8, 4, v8\nv_lshl_add_u32 v8, v1, 7, v8\nv_add_u32 v8, s63, v8\nv_xor_b32 v9, 64, v8")
    AR = 172
    a("v_lshrrev_b32 v10, 2, v1\nv_and_b32 v11, 3, v1\nv_lshl_add_u32 v12, v2, 3, v10")
    a("v_lshrrev_b32 v13, 1, v10\nv_and_b32 v14, 1, v2\nv_lshl_add_u32 v13, v14, 1, v13")
    a("v_lshlrev_b32 v15, 7, v12\nv_lshl_add_u32 v15, v11, 3, v15")
    for j in range(4):
        a(f"v_xor_b32 v7, {j}, v13\nv_lshl_add_u32 v{AR+j}, v7, 5, v15")
    a("v_lshlrev_b32 v15, 6, v12\nv_lshl_add_u32 v15, v11, 3, v15\nv_add_u32 v15, 4096, v15")
    for j in range(2):
        a(f"v_xor_b32 v7, {j}, v14\nv_lshl_add_u32 v{AR+4+j}, v7, 5, v15")
    for i in range(6): a(f"v_add_u32 v{AR+6+i}, {9*6144}, v{AR+i}")
    a(f"v_lshlrev_b32 v7, 5, v10\nv_lshl_add_u32 v7, v11, 3, v7\nv_lshl_add_u32 v7, v14, 7, v7\nv_lshl_add_u32 v{AR+12}, v2, 8, v7\nv_xor_b32 v{AR+13}, 128, v{AR+12}")
    a(f"s_mov_b32 s56, {ONES}\ns_mov_b32 s57, 0x00003f80\ns_mov_b32 s58, 0x3f800000")
    for i in range(4): a(f"v_mov_b32 v{4+i}, 0")
    for p in range(10):
        if p < 9:
            a(f"s_waitcnt vmcnt({16 - 2*p})")
            a(f"ds_read_b128 v[{X0+8*p}:{X0+8*p+3}], v8 offset:{2048*p}\nds_read_b128 v[{X0+8*p+4}:{X0+8*p+7}], v9 offset:{2048*p}")
        if p > 0:
            a(f"s_waitcnt lgkmcnt({2 if p < 9 else 0})")
            for i in range(8*(p-1), 8*p):
                a(f"v_dot2_f32_bf16 v{4+i%4}, v{X0+i}, s56, v{4+i%4}")
    st(1)
    a("s_nop 2\nv_add_f32 v4, v4, v5\nv_add_f32 v6, v6, v7\nv_add_f32 v4, v4, v6")
    sum_g(a, 4, 5)
    a(f"v_mul_f32 v4, {f32bits(-1.0/DM)}, v4")
    for i in range(4): a(f"v_mov_b32 v{8+i}, 0")
    ACC, WF, CT = 88, 120, 188
    def center(ks):
        L = []
        for r in range(4):
            L += [f"v_dot2_f32_bf16 v{CT+2*r}, v{X0+4*ks+r}, s57, v4", f"v_dot2_f32_bf16 v{CT+2*r+1}, v{X0+4*ks+r}, s58, v4"]
        L += sq(ks - 1) if ks > 0 else ["s_nop 2"]
        L += [f"v_cvt_pk_bf16_f32 v{X0+4*ks+r}, v{CT+2*r}, v{CT+2*r+1}" for r in range(4)]
        return L
    def sq(ks): return [f"v_dot2_f32_bf16 v{8+r}, v{X0+4*ks+r}, v{X0+4*ks+r}, v{8+r}" for r in range(4)]
    def rstd():
        for x in sq(17): a(x)
        a("s_nop 2\nv_add_f32 v8, v8, v9\nv_add_f32 v10, v10, v11\nv_add_f32 v8, v8, v10")
        sum_g(a, 8, 9)
        a(f"v_mov_b32 v9, {f32bits(1e-5)}\nv_fmac_f32 v9, {f32bits(1.0/DM)}, v8\nv_rsq_f32 v5, v9\ns_nop 0")
    a("s_cmp_eq_u32 s45, 6\ns_cbranch_scc1 K1_kvgemm")
    def qread(ks, j):
        hi = ks >= 9
        off = (ks - 9 * hi) * 6144
        vb = AR + 6 * hi + j
        w = WF + ((ks % 2) * 6 + j) * 4
        return [f"ds_read_b64_tr_b16 v[{w}:{w+1}], v{vb} offset:{off}", f"ds_read_b64_tr_b16 v[{w+2}:{w+3}], v{vb} offset:{off + (512 if j < 4 else 256)}"]
    for ks in range(18):
        for x in center(ks): a(x)
    rstd()
    st(6)
    a("s_barrier")
    st(2)
    for j in range(6):
        for x in qread(0, j): a(x)
    for ks in range(18):
        if ks in (5, 11):
            st(4 + ks); a("s_barrier"); st(5 + ks)
        for j in range(6):
            a(f"s_waitcnt lgkmcnt({10 if ks < 17 else 10 - 2*j})")
            w = WF + ((ks % 2) * 6 + j) * 4
            c = "0" if ks == 0 else f"v[{ACC+4*j}:{ACC+4*j+3}]"
            a(f"v_mfma_f32_16x16x32_bf16 v[{ACC+4*j}:{ACC+4*j+3}], v[{w}:{w+3}], v[{X0+4*ks}:{X0+4*ks+3}], {c}")
            if ks < 17:
                for x in qread(ks + 1, j): a(x)
    st(3)
    a(f"v_mul_f32 v6, {f32bits(QSCALE)}, v5")
    a("v_lshlrev_b32 v3, 3, v0")
    a(f"s_lshr_b32 s48, s46, 5\ns_mul_i32 s48, s48, {4*9216}\ns_and_b32 s49, s3, 1\ns_mul_i32 s49, s49, 4608\ns_add_u32 s48, s48, s49")
    a("s_mul_i32 s49, s45, 6\ns_and_b32 s50, s45, 1\ns_lshl_b32 s51, s50, 1\ns_add_u32 s51, s51, s49\ns_lshl_b32 s50, s50, 2\ns_sub_u32 s52, s49, s50")
    for j in range(6):
        b = ACC + 4*j
        a(f"s_add_u32 s53, s{51 if j < 4 else 52}, {j}\ns_mul_i32 s54, s53, 57\ns_lshr_b32 s54, s54, 9\ns_mul_i32 s54, s54, 4608\ns_lshl_b32 s53, s53, 9\ns_add_u32 s53, s53, s54\ns_add_u32 s53, s53, s48")
        for r in range(4): a(f"v_mul_f32 v{b+r}, v{b+r}, v6")
        a(f"v_cvt_pk_bf16_f32 v{b}, v{b}, v{b+1}\nv_cvt_pk_bf16_f32 v{b+1}, v{b+2}, v{b+3}")
        a(f"buffer_store_dwordx2 v[{b}:{b+1}], v3, s[32:35], s53 offen" + OPT.get('k1_st', ' sc1'))
    a("s_branch K1_fin")
    a("K1_loader:")
    if OPT["codepf"]:
        a("s_cmp_lt_u32 s2, 248\ns_cbranch_scc1 K1_nopf")
        a("s_getpc_b64 s[58:59]\nK1_pc:\ns_sub_u32 s58, s58, K1_pc-k1_kernel\ns_subb_u32 s59, s59, 0")
        a("s_sub_u32 s56, s3, 4\ns_lshl_b32 s56, s56, 13\nv_lshlrev_b32 v20, 7, v0\nv_add_u32 v20, s56, v20\nv_mov_b32 v21, K2_out-k1_kernel\nv_min_u32 v20, v20, v21\nglobal_load_dword v22, v20, s[58:59]")
        a("K1_nopf:")
    a("s_cmp_eq_u32 s45, 7\ns_cbranch_scc1 K1_worp")
    a("s_sub_u32 s3, s3, 4")
    a("s_cmp_eq_u32 s45, 6\ns_cbranch_scc1 K1_kvload")
    a("v_and_b32 v6, 1, v2\ns_and_b32 s48, s3, 1\ns_lshl_b32 s48, s48, 2\nv_lshlrev_b32 v6, 1, v6\nv_or_b32 v6, s48, v6\nv_xor_b32 v6, v6, v5")
    a(f"v_mul_u32_u24 v5, {DM*2}, v4\nv_lshl_add_u32 v5, v6, 4, v5")
    a("v_lshrrev_b32 v7, 5, v0\nv_lshlrev_b32 v7, 1, v7\nv_and_b32 v8, 3, v0\nv_xor_b32 v7, v7, v8\nv_lshrrev_b32 v8, 2, v0")
    a(f"v_mul_u32_u24 v8, {DM*2}, v8\nv_lshl_add_u32 v8, v7, 4, v8")
    a("s_mul_i32 s48, s45, 192\ns_and_b32 s53, s45, 1\ns_lshl_b32 s54, s53, 6\ns_add_u32 s49, s48, s54\ns_xor_b32 s53, s53, 1\ns_lshl_b32 s53, s53, 7\ns_add_u32 s50, s48, s53")
    a(f"s_mul_i32 s53, s3, {8*DM*2}\ns_add_u32 s49, s49, s53\ns_mul_i32 s53, s3, {16*DM*2}\ns_add_u32 s50, s50, s53")
    a("s_lshl_b32 s51, s3, 10")
    a("s_lshr_b32 s52, s3, 1\ns_mul_i32 s52, s52, 6144\ns_and_b32 s53, s3, 1\ns_lshl_b32 s53, s53, 10\ns_add_u32 s52, s52, s53\ns_add_u32 s52, s52, 4096")
    a(f"s_mul_i32 s61, s60, {64*DM*2}")
    a("s_waitcnt lgkmcnt(0)")
    srd(a, 20, 6, 0, DM*DM*2)
    if OPT.get("k1_xfirst", False): a("s_barrier")
    for t in range(9):
        if t == 6: a("s_waitcnt vmcnt(9)\ns_barrier")
        a(f"s_add_u32 s62, s49, s61\ns_add_u32 s63, s50, s61\ns_add_u32 s64, s62, {32*DM*2}")
        a(f"s_mov_b32 m0, s51\ns_add_u32 s51, s51, 6144\nbuffer_load_dwordx4 v5, s[20:23], s62 offen lds")
        a(f"s_mov_b32 m0, s52\ns_add_u32 s52, s52, 12288\nbuffer_load_dwordx4 v8, s[20:23], s63 offen lds")
        a(f"s_mov_b32 m0, s51\ns_add_u32 s51, s51, 6144\nbuffer_load_dwordx4 v5, s[20:23], s64 offen lds")
        a(f"s_add_u32 s61, s61, {64*DM*2}\ns_cmp_eq_u32 s61, {DM*DM*2}\ns_cselect_b32 s61, 0, s61")
    a("s_waitcnt vmcnt(9)\ns_barrier\ns_waitcnt vmcnt(0)\ns_barrier")
    a("s_branch K1_end")
    a("K1_kvload:")
    a("s_waitcnt lgkmcnt(0)")
    srd(a, 24, 8, 0, DM*DH*2)
    srd(a, 28, 10, 0, DM*DH*2)
    a("s_lshl_b32 s48, s3, 6\nv_add_u32 v4, s48, v0")
    KVT = 100
    if OPT.get("k1_xfirst", False): a("s_barrier")
    for it in range(3):
        a(f"v_add_u32 v5, {256*it}, v4\nv_mul_u32_u24 v{6+it}, 36, v5")
        for m, sd in enumerate((24, 28)):
            b = KVT + (it*2 + m) * 12
            a(f"buffer_load_dwordx4 v[{b}:{b+3}], v{6+it}, s[{sd}:{sd+3}], 0 offen")
            a(f"buffer_load_dwordx4 v[{b+4}:{b+7}], v{6+it}, s[{sd}:{sd+3}], 0 offen offset:16")
            a(f"buffer_load_dword v{b+8}, v{6+it}, s[{sd}:{sd+3}], 0 offen offset:32")
    a("s_lshl_b32 s61, s60, 1")
    for it in range(3):
        a(f"v_add_u32 v5, {256*it}, v4")
        a(f"v_lshrrev_b32 v9, 5, v5\nv_subrev_u32 v9, s61, v9\nv_add_u32 v12, 18, v9\nv_min_u32 v9, v9, v12")
        a(f"v_mul_u32_u24 v9, 3072, v9\nv_bfe_u32 v10, v5, 3, 2\nv_lshl_add_u32 v9, v10, 8, v9")
        a(f"v_and_b32 v10, 1, v10\nv_lshlrev_b32 v10, 2, v10\nv_and_b32 v11, 7, v5\nv_xor_b32 v10, v10, v11\nv_lshl_add_u32 v{6+it}, v10, 5, v9")
    a("s_waitcnt vmcnt(0)")
    for it in range(3):
        if it == 2:
            a("s_cmp_lg_u32 s3, 0\ns_cbranch_scc1 K1_kvskip")
        for m in range(2):
            b = KVT + (it*2 + m) * 12
            a(f"ds_write_b128 v{6+it}, v[{b}:{b+3}] offset:{1024*m}\nds_write_b128 v{6+it}, v[{b+4}:{b+7}] offset:{1024*m+16}")
            a(f"ds_write_b32 v{6+it}, v{b+8} offset:{2048+4*m}")
    a("K1_kvskip:\ns_waitcnt lgkmcnt(0)\ns_barrier\ns_branch K1_end")
    a("K1_worp:\ns_waitcnt lgkmcnt(0)\nv_lshlrev_b32 v3, 4, v0")
    rp = Repack(a)
    a(rp.common())
    for rnd in range(2):
        a(f"s_lshl_b32 s47, s44, 2\ns_add_u32 s47, s47, s3\ns_add_u32 s47, s47, {128*rnd - 4 & 0xffffffff}")
        a(rp.setup_wo(rnd, 12))
        for n in range(8): a(rp.load(rnd, n))
    for rnd in range(2):
        a(f"s_waitcnt vmcnt({8 if rnd == 0 else 4})")
        for n in range(4): a(rp.store(rnd, n) + "\ns_nop 1")
    a("s_branch K1_end")
    a("K1_kvgemm:")
    a(f"v_lshlrev_b32 v3, 4, v0\ns_lshr_b32 s48, s46, 4\ns_mul_i32 s48, s48, 18432\ns_lshl_b32 s61, s60, 11")
    for p in range(9):
        a("s_add_u32 s62, s48, s61")
        a(f"buffer_store_dwordx4 v[{X0+8*p}:{X0+8*p+3}], v3, s[68:71], s62 offen{OPT.get('k1_st', ' sc1')}\nbuffer_store_dwordx4 v[{X0+8*p+4}:{X0+8*p+7}], v3, s[68:71], s62 offen offset:1024{OPT.get('k1_st', ' sc1')}")
        a(f"s_add_u32 s61, s61, 2048\ns_cmp_eq_u32 s61, 18432\ns_cselect_b32 s61, 0, s61")
    def kread(ks):
        L = []
        for j in range(3):
            w = WF + ((ks % 2) * 3 + j) * 4
            L += [f"ds_read_b64_tr_b16 v[{w}:{w+1}], v{AR+12} offset:{ks*3072+j*1024}", f"ds_read_b64_tr_b16 v[{w+2}:{w+3}], v{AR+13} offset:{ks*3072+j*1024}"]
        return L
    for ks in range(18):
        for x in center(ks): a(x)
    rstd()
    a("s_barrier")
    for x in kread(0): a(x)
    for ks in range(18):
        x = f"v[{X0+4*ks}:{X0+4*ks+3}]"
        def W(j):
            w = WF + ((ks % 2) * 3 + j) * 4
            return f"v[{w}:{w+3}]"
        def C(i): return f"v[{ACC+4*i}:{ACC+4*i+3}]"
        c = (lambda i: "0") if ks == 0 else C
        fill = kread(ks + 1) if ks < 17 else []
        a("s_waitcnt lgkmcnt(0)\ns_nop 0")
        ms = [f"v_mfma_f32_16x16x32_bf16 {C(0)}, {W(0)}, {x}, {c(0)}",
              f"v_mfma_f32_16x16x32_bf16 {C(1)}, {x}, {W(1)}, {c(1)}",
              f"v_mfma_f32_16x16x32_bf16 {C(2)}, {W(2)}, {x}, {c(2)}",
              f"v_mfma_f32_16x16x32_bf16 {C(3)}, {x}, {W(2)}, {c(3)}"]
        for m in ms:
            a(m)
            for y in fill[:3]: a(y)
            fill = fill[3:]
    a("v_lshlrev_b32 v6, 4, v2")
    for r in range(4):
        a(f"ds_bpermute_b32 v{12+r}, v6, v5 offset:{4*r}")
    a(f"s_mul_i32 s48, s44, {PAIR}")
    a("v_sub_f32 v7, 0, v4\nv_lshlrev_b32 v8, 2, v1\nv_lshl_add_u32 v8, v2, 20, v8\ns_lshl_b32 s49, s46, 2")
    a("buffer_store_dword v7, v8, s[40:43], s49 offen")
    a("s_waitcnt lgkmcnt(0)")
    b = ACC
    for r in range(4): a(f"v_mul_f32 v{b+r}, v{b+r}, v5")
    a(f"v_cvt_pk_bf16_f32 v{b}, v{b}, v{b+1}\nv_cvt_pk_bf16_f32 v{b+1}, v{b+2}, v{b+3}")
    a("v_lshrrev_b32 v7, 1, v2\nv_lshlrev_b32 v7, 9, v7\nv_lshl_add_u32 v7, v1, 4, v7\nv_and_b32 v8, 1, v2\nv_lshl_add_u32 v7, v8, 3, v7")
    a("s_lshr_b32 s49, s3, 1\ns_lshl_b32 s49, s49, 10\ns_and_b32 s50, s3, 1\ns_lshl_b32 s50, s50, 8\ns_add_u32 s49, s49, s50\ns_add_u32 s49, s49, s48")
    a(f"buffer_store_dwordx2 v[{b}:{b+1}], v7, s[36:39], s49 offen")
    b = ACC + 8
    a(f"v_mul_f32 v{b}, v{b}, v5\nv_mul_f32 v{b+1}, v{b+1}, v5\nv_cvt_pk_bf16_f32 v{b}, v{b}, v{b+1}")
    a("v_lshlrev_b32 v7, 2, v1\nv_lshl_add_u32 v7, v2, 20, v7\ns_lshl_b32 s49, s3, 6\ns_add_u32 s49, s49, s48")
    a(f"buffer_store_dword v{b}, v7, s[36:39], s49 offen offset:2048")
    a("v_and_b32 v8, 1, v2\nv_mul_u32_u24 v8, 19, v8\nv_add_u32 v8, v8, v1\nv_lshlrev_b32 v8, 4, v8\nv_lshrrev_b32 v9, 1, v2\nv_lshl_add_u32 v8, v9, 3, v8")
    a("s_mul_i32 s49, s3, 608\ns_add_u32 s49, s49, s48")
    for i, b in enumerate((ACC + 4, ACC + 12)):
        for r in range(4): a(f"v_mul_f32 v{b+r}, v{b+r}, v{12+r}")
        a(f"v_cvt_pk_bf16_f32 v{b}, v{b}, v{b+1}\nv_cvt_pk_bf16_f32 v{b+1}, v{b+2}, v{b+3}")
        if i == 0:
            a(f"buffer_store_dwordx2 v[{b}:{b+1}], v8, s[36:39], s49 offen offset:2304")
        else:
            a(f"v_cmp_eq_u32 vcc, 4, v1\nv_mov_b32 v9, {ONES}\ns_nop 1\nv_cndmask_b32 v{b}, v{b}, v9, vcc\nv_cndmask_b32 v{b+1}, v{b+1}, v9, vcc")
            a("v_subrev_u32 v9, 2, v1\nv_cmp_gt_u32 vcc, 3, v9\ns_and_saveexec_b64 s[54:55], vcc")
            a(f"buffer_store_dwordx2 v[{b}:{b+1}], v8, s[36:39], s49 offen offset:{2304 + 14*16}")
            a("s_mov_b64 exec, -1")
    a("s_branch K1_fin")
    a("K1_wbar:\ns_waitcnt lgkmcnt(0)")
    srd(a, 16, 12, 0, DM*DM*2)
    ws_srd(a, 20, "WBAR", 14)
    a("s_cmp_lt_u32 s44, 18\ns_cbranch_scc1 K1_wb0")
    ws_srd(a, 24, "FLAG", 14)
    a("s_sub_u32 s45, s44, 18\ns_lshl_b32 s45, s45, 2\ns_add_u32 s45, s45, s3\ns_lshl_b32 s46, s45, 13\nv_lshlrev_b32 v3, 7, v0")
    a(f"v_mov_b32 v8, 0\nv_mov_b32 v9, 0\nv_mov_b32 v10, 0\nv_mov_b32 v11, 0\nbuffer_store_dword v8, v3, s[24:27], s46 offen\ns_add_u32 s46, s46, {56*8192}\nbuffer_store_dword v8, v3, s[24:27], s46 offen")
    a(f"s_lshl_b32 s46, s45, 10\ns_add_u32 s46, s46, {FL_RF}\nv_lshlrev_b32 v3, 4, v0\nbuffer_store_dwordx4 v[8:11], v3, s[24:27], s46 offen\ns_branch K1_fin")
    a("K1_wb0:")
    a("v_lshrrev_b32 v3, 3, v0\nv_and_b32 v5, 7, v0")
    a("s_cmp_ge_u32 s44, 16\ns_cbranch_scc1 K1_wb_hi")
    a("s_mul_i32 s45, s44, 36\ns_lshr_b32 s46, s3, 1\ns_mul_i32 s46, s46, 18\ns_add_u32 s45, s45, s46\ns_and_b32 s46, s3, 1\ns_lshl_b32 s46, s46, 2\ns_add_u32 s45, s45, s46")
    a("v_lshrrev_b32 v4, 2, v3\nv_lshlrev_b32 v4, 3, v4\nv_and_b32 v6, 3, v3\nv_add_u32 v4, v4, v6")
    a("s_branch K1_wb_go")
    a("K1_wb_hi:")
    a("s_sub_u32 s45, s44, 16\ns_mul_i32 s45, s45, 288\ns_mul_i32 s46, s3, 72\ns_add_u32 s45, s45, s46\ns_add_u32 s45, s45, 16")
    a("v_lshrrev_b32 v4, 1, v3\nv_mul_u32_u24 v4, 18, v4\nv_and_b32 v6, 1, v3\nv_add_u32 v4, v4, v6")
    a("K1_wb_go:")
    a(f"s_mul_i32 s45, s45, {DM*2}\nv_mul_u32_u24 v4, {DM*2}, v4\nv_lshl_add_u32 v4, v5, 4, v4")
    for i in range(9):
        a(f"buffer_load_dwordx4 v[{16+4*i}:{19+4*i}], v4, s[16:19], s45 offen offset:{128*i}")
    a(f"s_mov_b32 s56, {ONES}\nv_mov_b32 v6, 0\nv_mov_b32 v7, 0\ns_waitcnt vmcnt(0)")
    for i in range(36):
        a(f"v_dot2_f32_bf16 v{6+i%2}, v{16+i}, s56, v{6+i%2}")
    a("s_nop 2\nv_add_f32 v6, v6, v7\ns_nop 1")
    for x in (1, 2, 4):
        a(f"ds_swizzle_b32 v7, v6 offset:{(x << 10) | 0x1f}\ns_waitcnt lgkmcnt(0)\nv_add_f32 v6, v6, v7")
    a(f"v_mul_f32 v6, {f32bits(1.0/DM)}, v6")
    a("v_cvt_pk_bf16_f32 v7, v6, v6\nv_lshlrev_b32 v8, 16, v7\nv_sub_f32 v8, v6, v8\nv_cvt_pk_bf16_f32 v8, v8, v8")
    a("v_lshlrev_b32 v9, 5, v5\nv_lshl_add_u32 v9, v3, 1, v9")
    a(f"s_lshl_b32 s46, s44, 10\ns_lshl_b32 s47, s3, 8\ns_add_u32 s46, s46, s47")
    a(f"buffer_store_short v7, v9, s[20:23], s46 offen\nbuffer_store_short v8, v9, s[20:23], s46 offen offset:16")
    a("K1_fin:")
    st.finish(14, 3, 4)
    a("K1_end:\ns_endpgm")
    return kernel_desc("k1_kernel", 256)

K2_GRID = 256
K2_LDS = 32 * PAIR + 9216
def k2(a, stamp_k=-1, force_fallback=False):
    st = Stamps(a, stamp_k == 2, 2, 255, 254)
    kernel_begin(a, "k2_kernel")
    a(f"s_cmp_ge_u32 s2, {K2_GRID}\ns_cbranch_scc1 K2_end")
    a(f"s_load_dwordx2 s[14:15], s[0:1], {K_WS}\ns_load_dwordx2 s[4:5], s[0:1], {K_OUT}\ns_load_dwordx4 s[8:11], s[0:1], {B_W1}")
    st.start()
    wave_lane(a)
    a("v_and_b32 v1, 31, v0\nv_lshrrev_b32 v2, 5, v0\nv_lshlrev_b32 v3, 4, v0")
    a("s_lshr_b32 s40, s2, 2\ns_and_b32 s41, s2, 3\ns_lshl_b32 s41, s41, 3\ns_add_u32 s41, s41, s3")
    a(f"s_mul_i32 s42, s2, 9216\ns_lshl_b32 s43, s3, 10\ns_add_u32 s42, s42, s43\ns_add_u32 s43, s43, {32*PAIR}")
    a("s_lshl_b32 s44, s3, 10")
    a("s_waitcnt lgkmcnt(0)")
    ws_srd(a, 16, "KV", 14)
    ws_srd(a, 20, "Q", 14)
    Q1, Q2 = 8, 12
    def dma(r):
        txt = f"s_mov_b32 m0, s44\ns_nop 0\nbuffer_load_dwordx4 v3, s[16:19], s44 offen lds\ns_add_u32 s44, s44, 8192"
        if r == 18:
            L = a.label("dm")
            txt = f"s_cmp_ge_u32 s3, 4\ns_cbranch_scc1 {L}\n{txt}\n{L}:"
        return txt
    a("s_cmp_lg_u32 s3, 0\ns_cbranch_scc1 K2_q1")
    a(f"s_mov_b32 m0, {32*PAIR + 8192}\ns_add_u32 s45, s42, 8192\nbuffer_load_dwordx4 v3, s[20:23], s45 offen lds")
    a("K2_q1:")
    a("s_mov_b32 m0, s43\ns_nop 0\nbuffer_load_dwordx4 v3, s[20:23], s42 offen lds")
    a(dma(0)); a(dma(1)); a(dma(2))
    a(f"v_mov_b32 v{Q2+1}, 0")
    ws_srd(a, 24, "O", 14)
    a(f"v_lshrrev_b32 v4, 4, v1\nv_mul_u32_u24 v4, 4608, v4\nv_and_b32 v5, 15, v1\nv_lshl_add_u32 v4, v5, 3, v4\nv_add_u32 v4, {32*PAIR}, v4")
    a("s_mul_i32 s45, s3, 9\nv_lshlrev_b32 v5, 2, v2\nv_add_u32 v5, s45, v5")
    for i in range(5):
        if i < 4: a(f"v_add_u32 v30, {i}, v5")
        else: a("s_add_u32 s45, s45, 8\nv_mov_b32 v30, s45")
        a(f"v_lshrrev_b32 v31, 1, v30\nv_lshl_add_u32 v31, v31, 7, v4\nv_and_b32 v30, 1, v30\nv_lshl_add_u32 v{25+i}, v30, 2, v31")
    SEG = 13
    VKA, VK2, VVA = 14, 17, 20
    a(f"v_mul_u32_u24 v23, 19, v2\nv_add_u32 v23, v23, v1\nv_lshlrev_b32 v23, 4, v23\nv_mov_b32 v24, 0x40000\nv_cmp_gt_u32 vcc, 19, v1\ns_nop 1\nv_cndmask_b32 v{VVA}, v24, v23, vcc")
    a(f"v_mov_b32 v{VKA}, v3\nv_lshlrev_b32 v{VK2}, 2, v0")
    for b in (VKA, VK2, VVA):
        a(f"v_add_u32 v{b+1}, {SEG*PAIR}, v{b}\nv_add_u32 v{b+2}, {2*SEG*PAIR}, v{b}")
    SA, SB, P, O, NM = 32, 64, 96, 112, 128
    KF, K2F, VF = 144, 160, 164
    a(f"v_mov_b32 v{K2F+1}, 0\nv_mov_b32 v{K2F+3}, 0")
    for r in range(16): a(f"v_mov_b32 v{O+r}, 0")
    rp = Repack(a)
    def w3(txt):
        L = a.label("w3")
        return f"s_cmp_ge_u32 s3, 3\ns_cbranch_scc1 {L}\n{txt}\n{L}:"
    def seg(p): return p // SEG, (p % SEG) * PAIR
    def rdK(i, p):
        sg, o = seg(p)
        return [f"ds_read_b128 v[{KF+8*i}:{KF+8*i+3}], v{VKA+sg} offset:{o}",
                f"ds_read_b128 v[{KF+8*i+4}:{KF+8*i+7}], v{VKA+sg} offset:{o+1024}",
                f"ds_read_b32 v{K2F+2*i}, v{VK2+sg} offset:{o+2048}"]
    def rdV(i, p):
        sg, o = seg(p)
        return [f"ds_read_b128 v[{VF+16*i+4*q}:{VF+16*i+4*q+3}], v{VVA+sg} offset:{o+2304+608*q}" for q in range(4)]
    def qk(S, i, c):
        return [f"v_mfma_f32_32x32x16_bf16 v[{S}:{S+15}], v[{KF+8*i}:{KF+8*i+3}], v[{Q1}:{Q1+3}], {c}",
                f"v_mfma_f32_32x32x16_bf16 v[{S+16}:{S+31}], v[{KF+8*i+4}:{KF+8*i+7}], v[{Q1}:{Q1+3}], {c}",
                f"v_mfma_f32_32x32x4_2b_bf16 v[{S}:{S+31}], v[{K2F+2*i}:{K2F+2*i+1}], v[{Q2}:{Q2+1}], v[{S}:{S+31}]"]
    def pvm(vs_, u):
        return f"v_mfma_f32_32x32x16_bf16 v[{O}:{O+15}], v[{VF+16*vs_+4*u}:{VF+16*vs_+4*u+3}], v[{P+4*u}:{P+4*u+3}], v[{O}:{O+15}]"
    def rowmax(S, dst, first):
        L = []; r = 0
        if first:
            L.append(f"v_max_f32 v{dst}, v{S}, v{S+1}"); r = 2
        while r < 32:
            L.append(f"v_max3_f32 v{dst}, v{S+r}, v{S+r+1}, v{dst}"); r += 2
        return L
    def set_nm(src):
        a(f"v_mov_b32 v25, v{src}\ns_nop 1\nv_permlane32_swap_b32 v{src}, v25\ns_nop 1\nv_max_f32 v{src}, v{src}, v25")
        for r in range(16): a(f"v_sub_f32 v{NM+r}, 0, v{src}")
    def E(cur, g):
        b = cur + 4 * g
        return [f"v_exp_f32 v{b+r}, v{b+r}" for r in range(4)] + \
               [f"v_cvt_pk_bf16_f32 v{P+2*g}, v{b}, v{b+1}", f"v_cvt_pk_bf16_f32 v{P+2*g+1}, v{b+2}, v{b+3}"]
    NMr = f"v[{NM}:{NM+15}]"
    if OPT["prio"]: a("s_setprio 1")
    st(0)
    a("s_waitcnt vmcnt(2)\ns_barrier")
    st(1)
    for i in range(5): a(f"ds_read_b32 v{Q1+i}, v{25+i}")
    for x in rdK(0, 0) + rdK(1, 1) + rdV(0, 0): a(x)
    a("s_waitcnt lgkmcnt(7)")
    q = qk(SA, 0, "0")
    a(q[0]); a(q[1]); a("s_nop 9"); a(q[2]); a("s_nop 15\ns_nop 3")
    for x in rowmax(SA, 24, True): a(x)
    if force_fallback:
        a(f"v_add_f32 v24, {f32bits(-100.0)}, v24")
    set_nm(24)
    for r in range(32): a(f"v_add_f32 v{SA+r}, v{SA+r}, v{NM}")
    st(2)
    extra = {i: [] for i in range(32)}
    pre = {i: [] for i in range(32)}
    r = 3
    for i in range(8):
        extra[i] += [dma(r), dma(r + 1)]; r += 2
    pre[0].append("s_waitcnt vmcnt(0)\ns_barrier"); pre[3].append("s_waitcnt vmcnt(2)\ns_barrier"); pre[9].append(f"v_mov_b32 v196, 0\nv_mov_b32 v197, 0\nv_mov_b32 v198, 0\nv_mov_b32 v199, 0\nv_mov_b32 v200, {ffn.CNT}\nds_write_b128 v200, v[196:199]\ns_waitcnt vmcnt(0) lgkmcnt(0)\ns_barrier")
    nt_ = " nt" if OPT["k2_nt"] else ""
    def uidx(rnd):
        t = ("" if rnd else ffn_map(34, 35)) + f"s_mov_b32 s45, s34\ns_mul_i32 s47, s35, 11\ns_add_u32 s47, s47, s3\n"
        if rnd: t += "s_add_u32 s47, s47, 8\ns_cmp_ge_u32 s3, 3\ns_cselect_b32 s47, 400, s47\n"
        return t
    pre[8].append(rp.common() + "\n" + uidx(0) + rp.setup_ffn(0, 8, 10)); pre[9].insert(0, uidx(1) + rp.setup_ffn(1, 8, 10))
    for n in range(8):
        extra[9 + n // 2].append(rp.load(0, n, nt_))
        extra[13 + n // 2].append(w3(rp.load(1, n, nt_)))
    ST0 = OPT.get("k2_st0", 21)
    pre[ST0].append("s_waitcnt vmcnt(0)")
    for n in range(4):
        extra[ST0 + n // 2].append(rp.store(0, n, " sc1"))
        extra[ST0 + 2 + n // 2].append(w3(rp.store(1, n, " sc1")))
    FB = WS["FLAG"][0]
    pre[ST0 + 7].append("s_waitcnt vmcnt(0)")
    extra[ST0 + 7].append(f"s_add_u32 s36, s14, {FB}\ns_addc_u32 s37, s15, 0\ns_mov_b32 s38, {FL_END}\ns_mov_b32 s39, 0x00020000\n"
                          f"s_lshl_b32 s45, s34, 8\ns_lshl_b32 s46, s35, 3\ns_add_u32 s45, s45, s46\ns_add_u32 s45, s45, s3\ns_lshl_b32 s45, s45, 2\ns_add_u32 s45, s45, {FL_RF}\n"
                          "v_mov_b32 v206, 1\nv_mov_b32 v207, 0\ns_mov_b64 exec, 1\nbuffer_store_dword v206, v207, s[36:39], s45 offen sc1\ns_mov_b64 exec, -1")
    if OPT.get("k2_touch", True):
        extra[ST0 + 7].append(rp.touch(0)); extra[ST0 + 8].append(w3(rp.touch(1)))
    EW = OPT.get("wo_early", 10)
    if EW:
        wo0, wosz = WS["WOF"]
        pre[22].append(f"s_lshr_b32 s77, s2, 5\ns_add_u32 s20, s14, {wo0}\ns_addc_u32 s21, s15, 0\ns_mov_b32 s22, {wosz}\ns_mov_b32 s23, 0x00020000\n"
                       f"s_lshl_b32 s32, s3, 10\ns_mul_i32 s33, s77, {108*1024}\ns_add_u32 s33, s33, s32\ns_waitcnt lgkmcnt(0)\ns_barrier")
        nb_ = 0
        for i in list(range(25, 32)) + list(range(22, 32)):
            if nb_ < EW and len(extra[i]) < 2:
                extra[i].append("s_mov_b32 m0, s32\ns_add_u32 s32, s32, 8192\nbuffer_load_dwordx4 v3, s[20:23], s33 offen lds\ns_add_u32 s33, s33, 8192"); nb_ += 1
        assert nb_ == EW
    if OPT.get("wo_touch", True):
        L = a.label("wt")
        wb0 = WS["WBAR"][0]; wsz = WS["WOF"][0] + WS["WOF"][1] - wb0
        extra[19].append(f"s_sub_u32 s56, s3, 3\ns_cmp_ge_u32 s56, 3\ns_cbranch_scc1 {L}\ns_lshr_b32 s57, s2, 3\ns_mul_i32 s57, s57, 3\ns_add_u32 s56, s56, s57\ns_lshl_b32 s56, s56, 13\n"
                         f"s_add_u32 s28, s14, {wb0}\ns_addc_u32 s29, s15, 0\ns_mov_b32 s30, {wsz}\ns_mov_b32 s31, 0x00020000\nv_lshlrev_b32 v206, 7, v0\nbuffer_load_dword v205, v206, s[28:31], s56 offen\n{L}:")
    if OPT["codepf"]:
        L = a.label("cp")
        extra[18].append(f"s_lshr_b32 s56, s2, 3\ns_cmp_ge_u32 s56, CODE_PF_N\ns_cbranch_scc1 {L}\ns_cmp_lg_u32 s3, 0\ns_cbranch_scc1 {L}\n"
                         f"s_getpc_b64 s[58:59]\n{L}_pc:\ns_add_u32 s58, s58, K2_out-{L}_pc\ns_addc_u32 s59, s59, 0\n"
                         f"s_lshl_b32 s56, s56, 13\nv_lshlrev_b32 v206, 7, v0\nv_add_u32 v206, s56, v206\nv_min_u32 v206, CODE_END-K2_out-4, v206\nglobal_load_dword v205, v206, s[58:59]\n{L}:")
    for i in range(32):
        cur, nxt = (SA, SB) if i % 2 == 0 else (SB, SA)
        q = qk(nxt, (i + 1) % 2, NMr) if i < 31 else ["", "", ""]
        vs_ = i % 2
        kr = rdK(i % 2, i + 2) if i + 2 < 32 else ["", "", ""]
        vrd = rdV((i + 1) % 2, i + 1) if i < 31 else [""] * 4
        e = [E(cur, g) for g in range(8)]
        ex = extra[i] + ["", ""]
        seq = list(pre[i])
        if OPT["prio"] and i % 5 in (0, OPT["prio"]):
            L = a.label("pr")
            seq.append(f"s_cmp_lt_u32 s3, 4\ns_cbranch_scc1 {L}\ns_setprio {2 if i % 5 == 0 else 0}\n{L}:")
        seq += ["s_waitcnt lgkmcnt(0)", q[0]] + kr[0:2] + e[0]
        seq += [pvm(1 - vs_, 3) if i > 0 else ""] + kr[2:3] + vrd[0:1] + e[1]
        seq += [q[1]] + vrd[1:3] + e[2]
        seq += [pvm(vs_, 0)] + vrd[3:4] + e[3]
        seq += [q[2], ex[0]] + e[4] + e[5][:3]
        seq += [pvm(vs_, 1), ex[1]] + e[5][3:] + e[6][:2]
        seq += [pvm(vs_, 2)] + e[6][2:] + e[7]
        for x in seq:
            if x: a(x)
        if i % 8 == 7: st(3 + i // 8)
    a("s_nop 1"); a(pvm(1, 3))
    a("s_setprio 0\ns_nop 15")
    def bcast_l():
        a(f"v_mov_b32 v25, v{O+10}\nv_mov_b32 v26, v{O+10}\ns_nop 1\nv_permlane32_swap_b32 v25, v26\ns_nop 1")
    bcast_l()
    a(f"v_mov_b32 v26, {f32bits(2.0**60)}\nv_cmp_nle_f32 vcc, v25, v26\ns_nop 4\ns_cbranch_vccz K2_out")
    a("v_mov_b32 v24, 0xff800000")
    for ps in range(2):
        a(f"s_mov_b32 s52, 0\nv_mov_b32 v27, v{VKA}\nv_mov_b32 v28, v{VK2}\nv_mov_b32 v29, v{VVA}")
        a(f"K2_fb{ps}:")
        a(f"buffer_load_dwordx4 v[{KF}:{KF+3}], v27, s[16:19], 0 offen\nbuffer_load_dwordx4 v[{KF+4}:{KF+7}], v27, s[16:19], 0 offen offset:1024\nbuffer_load_dword v{K2F}, v28, s[16:19], 0 offen offset:2048")
        if ps:
            a("s_movk_i32 s53, 2304")
            for u in range(4): a(f"buffer_load_dwordx4 v[{VF+4*u}:{VF+4*u+3}], v29, s[16:19], s53 offen offset:{608*u}")
        a("s_waitcnt vmcnt(0)")
        q = qk(SA, 0, NMr if ps else "0")
        a(q[0]); a(q[1]); a("s_nop 9"); a(q[2]); a("s_nop 15\ns_nop 3")
        if ps == 0:
            for x in rowmax(SA, 24, False): a(x)
        else:
            for g in range(8):
                for x in E(SA, g): a(x)
            a("s_nop 1")
            for u in range(4): a(pvm(0, u))
        a(f"v_add_u32 v27, {PAIR}, v27\nv_add_u32 v28, {PAIR}, v28\nv_add_u32 v29, {PAIR}, v29")
        a(f"s_add_u32 s52, s52, 1\ns_cmp_lt_u32 s52, 32\ns_cbranch_scc1 K2_fb{ps}")
        if ps == 0:
            set_nm(24)
            for r in range(16): a(f"v_mov_b32 v{O+r}, 0")
    a("s_nop 15")
    bcast_l()
    a("K2_out:")
    WR, XR, ACC, XRES = 12, 40, 112, 140
    a("s_lshr_b32 s77, s2, 5\ns_and_b32 s78, s2, 7\ns_lshl_b32 s78, s78, 2\ns_bfe_u32 s43, s2, 0x20003\ns_add_u32 s78, s78, s43")
    a("s_cmp_ge_u32 s3, 4\ns_cbranch_scc1 K2_noearly")
    a("s_lshl_b32 s46, s78, 2\ns_add_u32 s46, s46, s3")
    ws_srd(a, 48, "MEAN1", 14)
    ws_srd(a, 52, "XC", 14)
    a(f"s_mul_i32 s47, s77, 3072\ns_mul_i32 s30, s46, 18432\ns_add_u32 s47, s47, s30")
    for u in range(3):
        a(f"buffer_load_dwordx4 v[{XRES+4*u}:{XRES+4*u+3}], v3, s[52:55], s47 offen offset:{1024*u}")
    a(f"v_and_b32 v166, 15, v0\nv_lshlrev_b32 v166, 2, v166\ns_lshl_b32 s65, s46, 6\nbuffer_load_dword v165, v166, s[48:51], s65 offen")
    a(f"s_lshl_b32 s43, s34, 10\ns_add_u32 s43, s43, {FL_RF}\nbuffer_load_dwordx4 v[160:163], v3, s[36:39], s43 offen sc1")
    a("K2_noearly:")
    a(f"v_rcp_f32 v25, v25\ns_nop 0")
    for r in range(10): a(f"v_mul_f32 v{O+r}, v{O+r}, v25")
    for r in range(5): a(f"v_cvt_pk_bf16_f32 v{P+r}, v{O+2*r}, v{O+2*r+1}")
    a(f"v_lshrrev_b32 v26, 4, v1\nv_mul_u32_u24 v27, {18*1024}, v26\nv_and_b32 v28, 15, v1\nv_lshl_add_u32 v27, v28, 4, v27\nv_lshl_add_u32 v27, v2, 8, v27")
    a(f"s_mul_i32 s42, s40, {36*1024}\ns_lshl_b32 s43, s41, 9\ns_add_u32 s43, s43, s42")
    a(f"buffer_store_dwordx4 v[{P}:{P+3}], v27, s[24:27], s43 offen sc1")
    OSC = 32 * PAIR + 1024
    a(f"s_lshr_b32 s43, s3, 2\ns_lshl_b32 s43, s43, 8\ns_and_b32 s44, s3, 3\ns_lshl_b32 s44, s44, 2\ns_add_u32 s43, s43, s44\ns_add_u32 s43, s43, {OSC}")
    a(f"v_lshlrev_b32 v26, 9, v26\nv_lshl_add_u32 v26, v28, 4, v26\nv_add_u32 v26, s43, v26\ns_mov_b64 exec, 0xffffffff\nds_write_b32 v26, v{P+4}\ns_mov_b64 exec, -1")
    a(f"v_mov_b32 v172, {ffn.CNT}\nv_mov_b32 v8, 1\nv_mov_b32 v9, 0\ns_lshl_b32 s79, s2, 7\ns_add_u32 s79, s79, {FL_OF}")
    a(f"v_add_u32 v4, {OSC}, v3\nv_mul_u32_u24 v5, {18*1024}, v2\nv_lshl_add_u32 v5, v1, 4, v5")
    a("s_and_b32 s43, s2, 3\ns_lshl_b32 s43, s43, 9\ns_add_u32 s43, s43, s42\ns_add_u32 s43, s43, 16384")
    a("s_waitcnt lgkmcnt(0)\ns_barrier")
    st(7)
    a("s_cmp_lg_u32 s3, 0\ns_cbranch_scc1 K3_norem")
    a("ds_read_b128 v[12:15], v4\ns_waitcnt lgkmcnt(0)\nbuffer_store_dwordx4 v[12:15], v5, s[24:27], s43 offen sc1")
    a("K3_norem:")
    a("v_lshlrev_b32 v2, 4, v0\ns_mov_b32 s40, s77\ns_mov_b32 s41, s78")
    a("s_waitcnt vmcnt(0)\ns_mov_b64 exec, 1\nds_add_rtn_u32 v168, v172, v8 offset:12\ns_waitcnt lgkmcnt(0)\nv_readfirstlane_b32 s70, v168\ns_cmp_lg_u32 s70, 7\ns_cbranch_scc1 K3_nofl")
    a("buffer_store_dword v8, v9, s[36:39], s79 offen sc1\nK3_nofl:\ns_mov_b64 exec, -1")
    a("s_cmp_ge_u32 s3, 4\ns_cbranch_scc1 K3_loader")
    a("v_add_u32 v3, 0x10000, v2\nv_add_u32 v4, 0x20000, v2\nv_and_b32 v5, 15, v0\nv_lshrrev_b32 v6, 4, v0\nv_lshlrev_b32 v7, 7, v0")
    a("v_lshlrev_b32 v11, 2, v5\nv_mov_b32 v10, v165")
    st(8)
    a("s_cmp_ge_u32 s40, 6\ns_cbranch_scc1 K4_compute")
    a(f"s_lshl_b32 s43, s41, 3\ns_lshr_b32 s44, s3, 1\ns_lshl_b32 s44, s44, 2\ns_add_u32 s43, s43, s44\ns_lshl_b32 s43, s43, 7\ns_add_u32 s43, s43, {FL_OF}")
    ws_srd(a, 52, "HC", 14)
    ws_srd(a, 56, "MU2", 14)
    ws_srd(a, 60, "SS", 14)
    a("s_barrier")
    st(13)
    for j in range(7):
        off = j * 1024 if j < 6 else 108 * 1024
        a(f"ds_read_b128 v[{12+4*j}:{15+4*j}], v{2 + off // 65536} offset:{off % 65536}")
    poll(a, 4, 7, 36, 43, 164, 1)
    st(9)
    def oload(ks):
        return ("s_add_u32 s30, s30, 4096\n" if ks and ks % 4 == 0 else "") + f"buffer_load_dwordx4 v[{XR+4*ks}:{XR+4*ks+3}], v2, s[24:27], s30 offen offset:{(ks%4)*1024} sc1"
    OD = OPT.get("k3_od", 6)
    for ks in range(OD): a(oload(ks))
    st(10)
    def wread(ks, j):
        off = (ks * 6 + j) * 1024 if j < 6 else (108 + ks) * 1024
        return f"ds_read_b128 v[{WR+4*j}:{WR+4*j+3}], v{2 + off // 65536} offset:{off % 65536}"
    nl = OD
    for ks in range(18):
        for j in range(7):
            a((f"s_waitcnt vmcnt({nl-1-ks}) " if j == 0 else "s_waitcnt ") + f"lgkmcnt({6 if ks < 17 else 6-j})")
            c = "0" if ks == 0 else f"v[{ACC+4*j}:{ACC+4*j+3}]"
            a(f"v_mfma_f32_16x16x32_bf16 v[{ACC+4*j}:{ACC+4*j+3}], v[{WR+4*j}:{WR+4*j+3}], v[{XR+4*ks}:{XR+4*ks+3}], {c}")
            if ks < 17: a(wread(ks + 1, j))
            if j in (1, 4) and nl < 18:
                a(oload(nl)); nl += 1
    a("s_barrier")
    st(11)
    e = ACC + 24
    a(f"s_nop 6\nv_add_f32 v10, v10, v{e}\nv_add_f32 v10, v10, v{e+1}\nv_mov_b32 v14, 0")
    for u in range(3):
        for r in range(4):
            x = XRES + 4 * u + r
            lo, hi = ACC + 8 * u + r, ACC + 8 * u + 4 + r
            a(f"v_lshlrev_b32 v12, 16, v{x}\nv_and_b32 v13, 0xffff0000, v{x}")
            a(f"v_add_f32 v{lo}, v{lo}, v12\nv_add_f32 v{hi}, v{hi}, v13")
            a(f"v_sub_f32 v{lo}, v{lo}, v10\nv_sub_f32 v{hi}, v{hi}, v10")
            a(f"v_cvt_pk_bf16_f32 v{XR+4*u+r}, v{lo}, v{hi}")
        a(f"buffer_store_dwordx4 v[{XR+4*u}:{XR+4*u+3}], v2, s[52:55], s47 offen offset:{1024*u} sc1")
    for i in range(12): a(f"v_dot2_f32_bf16 v14, v{XR+i}, v{XR+i}, v14")
    a("s_nop 2")
    sum_g(a, 14, 12)
    a("s_lshl_b32 s43, s41, 3\ns_add_u32 s43, s43, s40\ns_lshl_b32 s43, s43, 8\ns_lshl_b32 s44, s3, 6\ns_add_u32 s43, s43, s44\ns_mov_b64 exec, 0xffff")
    a("buffer_store_dword v14, v11, s[60:63], s43 offen sc1")
    a("s_cmp_lg_u32 s40, 0\ns_cbranch_scc1 K3_nomu\nbuffer_store_dword v10, v11, s[56:59], s65 offen sc1\nK3_nomu:")
    a(f"s_lshl_b32 s43, s46, 3\ns_add_u32 s43, s43, s40\ns_lshl_b32 s43, s43, 7\ns_add_u32 s43, s43, {FL_HF}")
    a("s_waitcnt vmcnt(0)\ns_mov_b64 exec, 1\nbuffer_store_dword v8, v9, s[36:39], s43 offen sc1\ns_mov_b64 exec, -1")
    st(12)
    a("s_branch K4_compute")
    a("K3_loader:")
    a(f"v_mov_b32 v4, {ffn.CNT}")
    a("s_sub_u32 s33, s3, 4\ns_cmp_ge_u32 s40, 6\ns_cbranch_scc1 K4_helper")
    ws_srd(a, 20, "WOF", 14)
    ws_srd(a, 68, "WBAR", 14)
    a(f"s_lshl_b32 s76, s33, 10\ns_mul_i32 s75, s40, {108*1024}\ns_add_u32 s74, s76, {EW*8192}\ns_add_u32 s75, s75, s74")
    for i in range(2*EW, 32):
        sd, so = ((20, 75) if i < 27 else (68, 76))
        a(f"s_mov_b32 m0, s74\ns_add_u32 s74, s74, 4096\nbuffer_load_dwordx4 v2, s[{sd}:{sd+3}], s{so} offen lds\ns_add_u32 s{so}, s{so}, 4096")
    a("s_waitcnt vmcnt(0)\ns_barrier\ns_barrier\ns_branch K4_helper")
    k4(a, st)
    a("K2_end:\ns_endpgm\nCODE_END:")
    return kernel_desc("k2_kernel", 256)

def k4(a, st0):
    st = lambda i: st0(20 + i)
    a("K4_compute:\ns_mov_b32 s40, s34\ns_mov_b32 s41, s35")
    a(f"s_lshl_b32 s43, s34, 10\ns_add_u32 s43, s43, {FL_RF}\ns_mov_b32 s73, 0x8000\ns_branch K3_rf1")
    a("K3_rf:\nbuffer_load_dwordx4 v[160:163], v2, s[36:39], s43 offen sc1\ns_waitcnt vmcnt(0)\nK3_rf1:\nv_and_b32 v12, v160, v161\nv_and_b32 v14, v162, v163\nv_and_b32 v12, v12, v14\nv_cmp_eq_u32 vcc, 1, v12\ns_nop 1")
    a("s_cmp_eq_u64 vcc, -1\ns_cbranch_scc1 K3_rfok\ns_sleep 2\ns_sub_u32 s73, s73, 1\ns_cbranch_scc0 K3_rf\nK3_rfok:")
    a(f"s_lshl_b32 s46, s40, 2\ns_add_u32 s46, s46, s3\ns_mul_i32 s31, s46, {324*1024}")
    ws_srd(a, 20, "WF", 14)
    a("s_setprio 2")
    a("v_add_u32 v3, 0x10000, v2\nv_add_u32 v4, 0x20000, v2")
    a(f"s_mul_i32 s42, s3, 3\ns_lshr_b32 s43, s42, 1\ns_lshl_b32 s43, s43, 12\ns_and_b32 s44, s42, 1\ns_lshl_b32 s45, s44, 3\ns_add_u32 s43, s43, s45\ns_add_u32 s43, s43, {ffn.HB}")
    a("v_add_u32 v5, s43, v2")
    a("s_mul_i32 s45, s44, 4080\ns_add_u32 s45, s45, 8\nv_add_u32 v6, s45, v5")
    a("v_and_b32 v12, 15, v0\nv_mul_u32_u24 v12, 400, v12\nv_lshrrev_b32 v13, 4, v0\nv_lshl_add_u32 v12, v13, 5, v12")
    for t in range(3):
        a(f"s_add_u32 s45, s42, {t}\ns_lshr_b32 s46, s45, 2\ns_lshl_b32 s46, s46, 7\ns_and_b32 s45, s45, 3\ns_lshl_b32 s45, s45, 3\ns_add_u32 s45, s45, s46\nv_add_u32 v{7+t}, s45, v12")
    a(f"v_mov_b32 v10, 1\nv_mov_b32 v11, {ffn.CNT}")
    ffn.ffn_compute(a, srdW=20, sW=31, v_lane16=2, v_h8=5, v_p=7, v_one=10, RINGF=(19 if (st0.on) else 20), stamp=st, PRE=OPT.get("k4_pre", 12))
    PB, AC = 48, 112
    uid = [0]
    def pub_setup(nr, g0):
        ws_srd(a, 24, "PART", 14)
        ws_srd(a, 36, "FLAG", 14)
        rows = nr * 1024 // 384
        a(f"s_mul_i32 s45, s33, {rows*400}\ns_add_u32 s45, s45, {g0*ffn.STG}")
        for i in range(nr):
            a(f"v_add_u32 v12, {64*i}, v0\nv_mul_u32_u24 v13, 2731, v12\nv_lshrrev_b32 v13, 16, v13\nv_add_u32 v12, v12, v13\nv_lshlrev_b32 v12, 4, v12\nv_add_u32 v{36+i}, s45, v12")
        a(f"s_mul_i32 s49, s41, 3\ns_add_u32 s49, s49, {g0}\ns_mul_i32 s46, s49, {8*24576}\ns_mul_i32 s47, s40, 24576\ns_mul_i32 s48, s33, {nr*1024}\ns_add_u32 s47, s47, s48\ns_add_u32 s47, s47, s46")
        a(f"v_mov_b32 v4, {ffn.CNT + 4*g0}\nv_mov_b32 v13, 1\nv_mov_b32 v18, 0")
        a("s_lshl_b32 s49, s49, 12\ns_lshl_b32 s50, s33, 10\ns_lshl_b32 s51, s40, 7\ns_add_u32 s50, s50, s51\ns_add_u32 s50, s50, s49")
    def publish(nr, k, sb):
        uid[0] += 1; u = uid[0]
        a("s_mov_b32 s72, 0x40000")
        a(f"K4_pl{u}:\nds_read_b32 v3, v4 offset:{4*k}\ns_waitcnt lgkmcnt(0)\nv_readfirstlane_b32 s70, v3\ns_cmp_eq_u32 s70, 4\ns_cbranch_scc1 K4_go{u}\ns_sleep 2\ns_sub_u32 s72, s72, 1\ns_cbranch_scc0 K4_pl{u}\nK4_go{u}:")
        st(sb)
        for i in range(nr):
            a(f"ds_read_b128 v[{PB+4*i}:{PB+4*i+3}], v{36+i} offset:{k*ffn.STG}")
        a("s_mov_b32 s71, s47")
        for i in range(nr):
            if i and i % 4 == 0: a("s_add_u32 s71, s71, 4096")
            a(f"s_waitcnt lgkmcnt({nr-1-i})\nbuffer_store_dwordx4 v[{PB+4*i}:{PB+4*i+3}], v2, s[24:27], s71 offen offset:{(i%4)*1024} sc1")
        a("s_waitcnt vmcnt(0)")
        a(f"s_mov_b64 exec, 1\nbuffer_store_dword v13, v18, s[36:39], s50 offen sc1\ns_mov_b64 exec, -1")
        st(sb + 1)
        a(f"s_add_u32 s47, s47, {8*24576}\ns_add_u32 s50, s50, 4096")
    def red_setup(nu, g0, ng, pubrows):
        ws_srd(a, 24, "PART", 14)
        ws_srd(a, 36, "FLAG", 14)
        ws_srd(a, 16, "HC", 14)
        ws_srd(a, 52, "MU2", 14)
        ws_srd(a, 56, "SS", 14)
        srd(a, 60, 4, 0, T*DM*2)
        a(f"s_lshl_b32 s42, s40, 2\ns_mul_i32 s43, s33, {nu}\ns_add_u32 s42, s42, s43\ns_lshl_b32 s43, s42, 1")
        a(f"s_mul_i32 s49, s41, 3\ns_add_u32 s49, s49, {g0}\ns_mul_i32 s46, s49, {8*24576}\ns_mul_i32 s48, s42, 768\ns_add_u32 s48, s48, s46")
        a(f"s_lshl_b32 s49, s49, 12\ns_lshr_b32 s51, s43, {pubrows.bit_length()-1}\ns_lshl_b32 s51, s51, 10\ns_add_u32 s51, s51, s49")
        a("v_lshlrev_b32 v12, 7, v0")
        a("v_cmp_lt_u32 vcc, 23, v0\nv_subrev_u32 v6, 24, v0\ns_nop 0\nv_cndmask_b32 v5, 0, 1, vcc\nv_cndmask_b32 v6, v0, v6, vcc")
        a("v_add_u32 v7, s43, v5")
        a("v_cmp_gt_u32 vcc, 48, v0\nv_bfrev_b32 v8, 1\ns_nop 0\nv_cndmask_b32 v9, v8, v2, vcc")
        a("v_lshrrev_b32 v10, 4, v7\nv_mul_u32_u24 v10, 18432, v10\nv_lshl_add_u32 v10, v6, 8, v10\nv_and_b32 v11, 15, v7\nv_lshl_add_u32 v10, v11, 4, v10\nv_cndmask_b32 v10, v8, v10, vcc")
        a(f"v_mul_u32_u24 v11, {DM*2}, v7\nv_lshl_add_u32 v11, v6, 4, v11\nv_cndmask_b32 v11, v8, v11, vcc")
        a(f"s_mul_i32 s30, s41, 73728\ns_add_u32 s30, s30, {g0*6144}")
        for k in range(ng):
            for un in range(nu):
                a(f"buffer_load_dwordx4 v[{20+4*(k*nu+un)}:{23+4*(k*nu+un)}], v10, s[16:19], s30 offen offset:{32*un} sc1")
            a("s_add_u32 s30, s30, 6144")
        a("v_lshlrev_b32 v19, 2, v7\ns_lshl_b32 s44, s41, 8\ns_lshl_b32 s65, s41, 11")
        for un in range(nu):
            a(f"buffer_load_dword v{140+un}, v19, s[52:55], s44 offen offset:{8*un} sc1")
            for nb in range(6):
                a(f"buffer_load_dword v{144+8*un+nb}, v19, s[56:59], s65 offen offset:{8*un+256*nb} sc1")
        a(f"s_mul_i32 s64, s41, {64*DM*2}\ns_add_u32 s64, s64, {g0*384}")
        a("v_and_b32 v19, 1, v0\nv_cmp_eq_u32 s[66:67], 1, v19")
        a(f"s_mov_b32 s68, 0x00003f80\ns_mov_b32 s69, 0x3f800000")
    def red_stats(nu):
        for un in range(nu):
            b = 144 + 8*un
            a(f"v_add_f32 v{b}, v{b}, v{b+1}\nv_add_f32 v{b+2}, v{b+2}, v{b+3}\nv_add_f32 v{b+4}, v{b+4}, v{b+5}\nv_add_f32 v{b}, v{b}, v{b+2}\nv_add_f32 v{b}, v{b}, v{b+4}")
            a(f"v_mov_b32 v{b+1}, {f32bits(1e-5)}\nv_fmac_f32 v{b+1}, {f32bits(1.0/DM)}, v{b}\nv_rsq_f32 v{142+un}, v{b+1}")
    def reduce(nu, k, sb, slp, stats=False):
        uid[0] += 1; u = uid[0]
        a("s_mov_b32 s73, 0x8000\ns_mov_b64 exec, 0xff")
        a(f"K4_pg{u}:\nbuffer_load_dword v3, v12, s[36:39], s51 offen sc1\ns_waitcnt vmcnt(0)\nv_cmp_eq_u32 vcc, 1, v3\ns_nop 1\ns_cmp_eq_u32 vcc_lo, 0xff\ns_cbranch_scc1 K4_gg{u}\ns_sleep {slp}\ns_sub_u32 s73, s73, 1\ns_cbranch_scc0 K4_pg{u}\nK4_gg{u}:")
        a("s_mov_b64 exec, -1")
        st(sb)
        for un in range(nu):
            a("s_mov_b32 s71, s48")
            for j in range(8):
                b = PB + 32*un + 4*j
                a(f"buffer_load_dwordx4 v[{b}:{b+3}], v9, s[24:27], s71 offen offset:{768*un} sc1\ns_add_u32 s71, s71, 24576")
        if stats: red_stats(nu)
        for un in range(nu):
            for j in range(8):
                a(f"s_waitcnt vmcnt({8*(nu-1-un) + 7-j})")
                for qq in range(2):
                    for p in range(2):
                        for hh in range(2):
                            d = AC + 2*(2*p+hh) + qq
                            c = "0" if j == 0 else f"v{d}"
                            a(f"v_dot2_f32_bf16 v{d}, v{PB+32*un+4*j+2*qq+p}, s{68+hh}, {c}")
            a("s_nop 2")
            for i in range(4):
                a(f"v_cndmask_b32 v{AC+8+i}, v{AC+4+i}, v{AC+i}, s[66:67]")
                a(f"v_cndmask_b32 v{AC+12+i}, v{AC+i}, v{AC+4+i}, s[66:67]")
            a("s_nop 1")
            for i in range(4):
                a(f"v_mov_b32_dpp v{AC+16+i}, v{AC+8+i} quad_perm:[1,0,3,2] row_mask:0xf bank_mask:0xf")
            for hlf in range(2):
                for e in range(2):
                    k_, r_ = AC + 12 + 2*hlf + e, AC + 16 + 2*hlf + e
                    a(f"v_cndmask_b32 v{AC+4*hlf+e}, v{k_}, v{r_}, s[66:67]\nv_cndmask_b32 v{AC+4*hlf+2+e}, v{r_}, v{k_}, s[66:67]")
            h0 = 20 + 4*(k*nu+un)
            for i in range(4):
                hcr = h0 + i
                a(f"v_lshlrev_b32 v16, 16, v{hcr}\nv_and_b32 v17, 0xffff0000, v{hcr}\nv_add_f32 v16, v16, v{140+un}\nv_add_f32 v17, v17, v{140+un}")
                a(f"v_fmac_f32 v16, v{AC+2*i}, v{142+un}\nv_fmac_f32 v17, v{AC+2*i+1}, v{142+un}\nv_cvt_pk_bf16_f32 v{hcr}, v16, v17")
        for un in range(nu):
            h0 = 20 + 4*(k*nu+un)
            a(f"buffer_store_dwordx4 v[{h0}:{h0+3}], v11, s[60:63], s64 offen offset:{384*k + 2*DM*2*un}")
        st(sb + 1)
        a(f"s_add_u32 s48, s48, {8*24576}\ns_add_u32 s51, s51, 4096")
    a("s_mov_b32 s33, s3")
    pub_setup(6, 2); publish(6, 0, 10)
    red_setup(1, 2, 1, 16); reduce(1, 0, 12, 1, stats=True)
    a("s_branch K4_fin")
    a("K4_helper:")
    a(f"s_setprio {OPT.get('k4_hprio', 3)}\ns_mov_b32 s40, s34\ns_mov_b32 s41, s35")
    a(f"s_mul_i32 s30, s41, 73728\ns_mul_i32 s90, s33, 18432\ns_add_u32 s30, s30, s90")
    ws_srd(a, 16, "HC", 14)
    a(f"s_lshl_b32 s43, s41, 2\ns_add_u32 s43, s43, s33\ns_lshl_b32 s43, s43, 10\ns_add_u32 s43, s43, {FL_HF}\nv_lshlrev_b32 v12, 7, v0")
    poll(a, 6, 12, 36, 43, 3, 1)
    st(9)
    for i in range(18):
        if i % 4 == 0: a("s_mov_b32 m0, s90\ns_add_u32 s90, s90, 4096")
        a(f"buffer_load_dwordx4 v2, s[16:19], s30 offen offset:{(i%4)*1024} sc1 lds")
        if i % 4 == 3: a("s_add_u32 s30, s30, 4096")
        if i >= 5 and i % 3 == 2: a("s_waitcnt vmcnt(3)\ns_barrier")
    a("s_waitcnt vmcnt(0)\ns_barrier")
    a("s_cmp_ge_u32 s33, 2\ns_cbranch_scc1 K4_reducer")
    pub_setup(12, 0)
    for i in range(ffn.N_BARRIERS_AFTER_X): a("s_barrier")
    publish(12, 0, 10); publish(12, 1, 14)
    a("s_branch K4_fin")
    a("K4_reducer:\ns_sub_u32 s33, s33, 2")
    red_setup(2, 0, 2, 32)
    a("s_waitcnt vmcnt(0)")
    red_stats(2)
    for i in range(ffn.N_BARRIERS_AFTER_X): a("s_barrier")
    for k in range(2):
        a(f"s_mov_b32 s72, 0x40000\nK4_rw{k}:\nds_read_b32 v3, v4 offset:{4*k}\ns_waitcnt lgkmcnt(0)\nv_readfirstlane_b32 s70, v3\ns_cmp_eq_u32 s70, 4\ns_cbranch_scc1 K4_rg{k}\ns_sleep 4\ns_sub_u32 s72, s72, 1\ns_cbranch_scc0 K4_rw{k}\nK4_rg{k}:")
        reduce(2, k, 12 + 4*k, 8)
    a("K4_fin:")
    st0.finish(14, 3, 8)

HEADER = open("cdna_kernels/" + NAME + ".s.ref").read().split("; Override launch geometry")[0]
def build(stamp_k=-1, force_fallback=False, light=False, **opt):
    LIGHT[0] = light
    OPT.update(opt)
    a = Asm()
    launches = [("k1_kernel", K1_GRID, 512, K1_LDS), ("k2_kernel", K2_GRID, 512, K2_LDS)]
    hdr = HEADER + "".join(f"; @launch kernel={k} grid=({g},1,1) block=({b},1,1) lds={l}\n" for k, g, b, l in launches)
    a('.amdgcn_target "amdgcn-amd-amdhsa--gfx950"\n.text')
    descs = [k1(a, stamp_k), k2(a, stamp_k, force_fallback)]
    a('.set CODE_PF_N, (CODE_END - K2_out + 8191) / 8192')
    a('.section .rodata,"a"')
    return hdr + a.text() + "".join(descs)

if __name__ == "__main__":
    out = sys.argv[1] if len(sys.argv) > 1 else "cdna_kernels/" + NAME + ".s"
    kw = eval("dict(" + (sys.argv[2] if len(sys.argv) > 2 else "") + ")")
    open(out, "w").write(build(**kw))
```

```python
from asmlib import *

HB = 77824
STG = 8192
CNT = HB + 73728
FFN_LDS = CNT + 64
XC = 3
N_BARRIERS_AFTER_X = 2

class Stream:
    XB = 3
    def __init__(self, a, pat, *, srdW, sW, v_lane16, v_h8, v_p, v_one, ACC, XF, TMP, RB, RINGF, stamp=None):
        self.__dict__.update(locals())
        self.groups = [(0, g, 3) for g in range(3)]
        cb = 0
        for n in pat:
            self.groups.append((1, cb, n)); cb += n
        assert cb == 9
        self.NF = 324
        self.issued = 0; self.wpos = {}; self.wadv = 0; self.nw = 0
    def wreg(self, f): return self.RB + 4 * (f % self.RINGF)
    def wload(self):
        f = self.nw; self.nw += 1
        off = f * 1024 - self.wadv
        L = []
        if off >= 4096:
            L.append(f"s_add_u32 s{self.sW}, s{self.sW}, {off}"); self.wadv += off; off = 0
        L.append(f"buffer_load_dwordx4 {R(self.wreg(f),4)}, v{self.v_lane16}, s[{self.srdW}:{self.srdW+3}], s{self.sW} offen offset:{off}")
        self.wpos[f] = self.issued; self.issued += 1
        return "\n".join(L)
    def prefill(self, n):
        for i in range(n): self.a(self.wload())
    def xread(self, step, mt):
        ph, ks = self.groups[step // 18][0], step % 18
        off = HB + (ks * 4 + mt) * 1024 if ph else (mt * 18 + ks) * 1024
        r = self.XF + 16 * (step % self.XB) + 4 * mt
        return f"ds_read_b128 v[{r}:{r+3}], v{self.v_lane16 + off // 65536} offset:{off % 65536}"
    def epilogue(self, gi):
        ph, g, nt = self.groups[gi]
        ac = self.ACC + 48 * (gi % 2)
        L = []
        for t in range(nt):
            for mt in range(4):
                b = ac + (t * 4 + mt) * 4
                tm = self.TMP + ((t * 4 + mt) % 8) * 2
                L.append((f"v_cvt_pk_bf16_f32 v{tm}, v{b}, v{b+1}", 0)); L.append((f"v_cvt_pk_bf16_f32 v{tm+1}, v{b+2}, v{b+3}", 0))
                if ph == 0:
                    L.append((f"v_pk_max_i16 v{tm}, v{tm}, 0", 0)); L.append((f"v_pk_max_i16 v{tm+1}, v{tm+1}, 0", 0))
                    L.append((f"ds_write_b64 v{self.v_h8 + (t & 1)}, v[{tm}:{tm+1}] offset:{mt*1024 + (6*g + (t >> 1))*4096}", 1))
                else:
                    off = (g + t) * STG + mt * 2048
                    hi = off >= 32768
                    L.append((f"ds_write_b64 v{self.v_p + hi}, v[{tm}:{tm+1}] offset:{off - 32768 * hi}", 1))
            if ph:
                L.append((f"s_mov_b64 exec, 1\nds_add_u32 v{self.v_one+1}, v{self.v_one} offset:{4*(g+t)}\ns_mov_b64 exec, -1", 1))
        return L
    def run(self):
        a, stamp, RINGF = self.a, self.stamp, self.RINGF
        if stamp: stamp(0)
        a("s_barrier")
        if stamp: stamp(1)
        lds_q = []
        def lds_wait(tag):
            if tag not in lds_q: return None
            i = len(lds_q) - 1 - lds_q[::-1].index(tag)
            n = len(lds_q) - 1 - i
            if n > 15:
                n = 15
                del lds_q[:len(lds_q) - 15]
            else:
                del lds_q[:i + 1]
            return f"s_waitcnt lgkmcnt({n})"
        NS = 18 * len(self.groups)
        for st_ in range(2):
            for mt in range(4):
                a(self.xread(st_, mt)); lds_q.append(("x", st_))
        pending = []
        f0 = 0
        since = 0
        for step in range(NS):
            gi, ks = divmod(step, 18)
            nt = self.groups[gi][2]
            ac = self.ACC + 48 * (gi % 2)
            if ks == 0 and gi > 0:
                assert not pending
                pending = self.epilogue(gi - 1)
                since = 0
                if stamp and gi < 6: stamp(2 + gi)
            ns = step + 2
            if ns < 18 and ns % XC == 0:
                a("s_barrier")
            if ns in (54, 54 + 12):
                assert not pending
                w = lds_wait(("w",))
                if w: a(w)
                a("s_barrier")
            vw = min(63, self.issued - 1 - self.wpos[f0 + nt - 1])
            lw = lds_wait(("x", step))
            a(f"s_waitcnt vmcnt({vw})" + (lw[len("s_waitcnt"):] if lw else ""))
            fills = [mt for mt in range(4)] if ns < NS else []
            for t in range(nt):
                f = f0 + t
                for mt in range(4):
                    d = ac + (t * 4 + mt) * 4
                    x = self.XF + 16 * (step % self.XB) + 4 * mt
                    c = "0" if ks == 0 else R(d, 4)
                    a(f"v_mfma_f32_16x16x32_bf16 {R(d,4)}, {R(self.wreg(f),4)}, v[{x}:{x+3}], {c}")
                    since += 1
                    slot = t * 4 + mt
                    used = 0
                    if mt in (0, 2) and self.nw < self.NF and self.nw < f + RINGF:
                        a(self.wload()); used += 1
                    if fills and (slot % 2 == 1 or nt == 1):
                        a(self.xread(ns, fills.pop(0))); lds_q.append(("x", ns)); used += 1
                    while pending and used < (1 if mt == 0 else 2) and since > 8:
                        txt, ld = pending.pop(0)
                        a(txt); used += 1
                        if ld: lds_q.append(("w",))
            assert not fills
            f0 += nt
        if stamp: stamp(8)
        a("s_nop 7")
        for (txt, ld) in self.epilogue(len(self.groups) - 1):
            a(txt)
```

```python
import sys, math
from asmlib import *
from gemm import gemm_core
import ffn

T, DM, NH, DH, F = 2048, 576, 32, 18, 4608
NAME = "sequential_preLN__grouped_kv_mqa__dense_activation_relu__prompt"
A_X, A_WQ, A_WK, A_WV, A_WO, B_X, B_W1, B_W2, K_OUT, K_DBG, K_WS = [8 * i for i in range(11)]
def _al(x, a=4096): return (x + a - 1) // a * a
PAIR = 4736
FL_PF, FL_OF, FL_HF, FL_RF = 0, 294912, 294912 + 32768, 294912 + 32768 + 131072
FL_END = FL_RF + 8192
WS = {}
_o = 0
for nm, sz in [("Q", T*DM*2), ("KV", 32*PAIR), ("MEAN1", T*4), ("O", T*DM*2), ("HC", T*DM*2), ("MU2", T*4),
               ("SS", T*8*4), ("XC", T*DM*2), ("WBAR", 18*1024), ("WOF", 648*1024), ("WF", 2*DM*F*2),
               ("PART", 8*T*DM*2), ("FLAG", FL_END), ("STAMP", 16 << 20)]:
    WS[nm] = (_o, sz); _o += _al(sz)
WS_END = _o
QSCALE = math.log2(math.e) / math.sqrt(DH)
def f32bits(x):
    import struct
    return struct.unpack("<I", struct.pack("<f", x))[0]
ONES = 0x3f803f80

def ws_srd(a, d, nm, base):
    srd(a, d, base, WS[nm][0], WS[nm][1])

def wave_lane(a, s_wave=3):
    a(f"v_lshrrev_b32 v1, 6, v0\nv_and_b32 v0, 63, v0\ns_nop 0\nv_readfirstlane_b32 s{s_wave}, v1")

def sum_g(a, v, t):
    a(f"v_mov_b32 v{t}, v{v}\ns_nop 1\nv_permlane32_swap_b32 v{v}, v{t}\ns_nop 1\nv_add_f32 v{v}, v{v}, v{t}")
    a(f"v_mov_b32 v{t}, v{v}\ns_nop 1\nv_permlane16_swap_b32 v{v}, v{t}\ns_nop 1\nv_add_f32 v{v}, v{v}, v{t}")

LIGHT = [False]
OPT = dict(prio=3, k2_nt=True, codepf=True)
class Stamps:
    def __init__(self, a, on, kidx, vreg, vtmp):
        self.a, self.on, self.k, self.v, self.t = a, bool(on) or LIGHT[0], kidx, vreg, vtmp
        self.full = bool(on)
    def start(self):
        if OPT.get("dbgt"):
            self.a(f"s_load_dwordx2 s[100:101], s[0:1], {K_DBG}\ns_memrealtime s[98:99]\ns_waitcnt lgkmcnt(0)")
        if self.on:
            self.a(f"s_memrealtime s[96:97]\ns_memtime s[98:99]\nv_mov_b32 v{self.v}, 0\ns_waitcnt lgkmcnt(0)\nv_writelane_b32 v{self.v}, s96, 62")
    def __call__(self, i):
        if self.full or (self.on and i == 61):
            if OPT.get("rt") and i != 61:
                self.a(f"s_memrealtime s[96:97]\ns_waitcnt lgkmcnt(0)\nv_writelane_b32 v{self.v}, s96, {i}")
            else:
                self.a(f"s_memtime s[96:97]\ns_waitcnt lgkmcnt(0)\ns_sub_u32 s96, s96, s98\nv_writelane_b32 v{self.v}, s96, {i}")
    def dyn(self, base, sreg):
        if self.full:
            self.a(f"s_memrealtime s[96:97]\ns_add_u32 m0, s{sreg}, {base}\ns_waitcnt lgkmcnt(0)\nv_writelane_b32 v{self.v}, s96, m0")
    def finish(self, s_ws, s_wave, nw):
        if OPT.get("dbgt"):
            a = self.a
            a("s_waitcnt vmcnt(0)\ns_memrealtime s[96:97]\ns_waitcnt lgkmcnt(0)")
            a("s_mov_b32 s92, s100\ns_mov_b32 s93, s101\ns_mov_b32 s94, 256\ns_mov_b32 s95, 0x00020000\ns_mov_b64 exec, 1")
            a(f"s_not_b32 s97, s98\nv_mov_b32 v1, 0\nv_mov_b32 v2, s97\nv_mov_b32 v3, s98\nv_mov_b32 v4, s96\nv_mov_b32 v5, {self.k}")
            a("buffer_atomic_umax v2, v1, s[92:95], 0 offen\nbuffer_atomic_umax v3, v1, s[92:95], 0 offen offset:4\nbuffer_atomic_umax v4, v1, s[92:95], 0 offen offset:8\nbuffer_atomic_umax v5, v1, s[92:95], 0 offen offset:12\ns_mov_b64 exec, -1")
        if self.on:
            a = self.a
            a("s_waitcnt vmcnt(0)")
            self(61)
            a(f"s_memrealtime s[96:97]\ns_waitcnt lgkmcnt(0)\nv_writelane_b32 v{self.v}, s96, 63")
            ws_srd(a, 92, "STAMP", s_ws)
            a(f"s_lshl_b32 s96, s2, 3\ns_add_u32 s96, s96, s{s_wave}\ns_lshl_b32 s96, s96, 8\ns_add_u32 s96, s96, {self.k << 21}")
            a(f"v_mbcnt_lo_u32_b32 v{self.t}, -1, 0\nv_mbcnt_hi_u32_b32 v{self.t}, -1, v{self.t}\nv_lshlrev_b32 v{self.t}, 2, v{self.t}")
            a(f"buffer_store_dword v{self.v}, v{self.t}, s[92:95], s96 offen")


def PAT(): return OPT.get('pat', (3, 3, 2, 1))
class Repack:
    PR = 208
    def __init__(self, a): self.a = a
    def common(self):
        return (f"s_add_u32 s60, s14, {WS['WOF'][0]}\ns_addc_u32 s61, s15, 0\ns_mov_b32 s62, {WS['WF'][0] + WS['WF'][1] - WS['WOF'][0]}\ns_mov_b32 s63, 0x00020000\n"
                "v_and_b32 v6, 15, v0\nv_lshrrev_b32 v7, 4, v0\ns_mov_b32 s80, 0x05040100\ns_mov_b32 s81, 0x07060302")
    def regs(self, rnd): return 64 + 4 * rnd, 72 + 4 * rnd, 82 + 4 * rnd, 242 + rnd, 240 + rnd
    def setup_ffn(self, rnd, pw1, pw2):
        L = self.a.label("rp")
        SD, SB_, SO, vsrc, dst = self.regs(rnd)
        OWF = WS["WF"][0] - WS["WOF"][0]
        t = []; A = t.append
        A(f"s_mul_hi_u32 s46, s47, {(2**32 + 161)//162}\ns_mul_i32 s49, s46, 162\ns_sub_u32 s47, s47, s49")
        A(f"s_mul_hi_u32 s49, s47, {(2**32 + 8)//9}\ns_mul_i32 s50, s49, 9\ns_sub_u32 s50, s47, s50")
        A(f"s_mov_b32 s{SD+3}, 0x00020000\ns_lshl_b32 s54, s50, 7\nv_mov_b32 v{dst}, v3")
        A(f"s_cmp_lt_u32 s46, 2\ns_cselect_b32 s{SD+2}, {DM*F*2}, 0\ns_cselect_b32 s57, 0, 0x100000")
        A(f"s_mul_i32 s53, s45, 1296\ns_mul_i32 s55, s46, 162\ns_add_u32 s53, s53, s55\ns_add_u32 s53, s53, {OWF//1024}\ns_add_u32 s53, s53, s57")
        A(f"s_cmp_eq_u32 s46, 1\ns_cbranch_scc1 {L}_w2")
        A("s_mul_i32 s55, s49, 3\ns_add_u32 s53, s53, s55")
        for q in range(4):
            A(f"s_lshl_b32 s55, s50, 2\ns_add_u32 s55, s55, {q}\ns_mul_i32 s56, s55, 86\ns_lshr_b32 s56, s56, 8")
            A(f"s_lshr_b32 s58, s56, 2\ns_mul_i32 s58, s58, 1242\ns_mul_i32 s56, s56, 321\ns_sub_u32 s56, s56, s58")
            A(f"s_add_u32 s55, s55, s56\ns_add_u32 s55, s55, s53\ns_lshl_b32 s{SO+q}, s55, 10")
        A(f"s_mov_b32 s{SD}, s{pw1}\ns_mov_b32 s{SD+1}, s{pw1+1}\ns_mul_i32 s53, s49, {32*F*2}\ns_mul_i32 s55, s45, {DM*2}\ns_add_u32 s53, s53, s55\ns_add_u32 s{SB_}, s53, s54")
        A(f"s_mov_b32 s{SB_+1}, {4*F*2}\ns_mov_b32 s{SB_+2}, {2*F*2}\ns_mov_b32 s{SB_+3}, {F*2}")
        A(f"v_mul_u32_u24 v{vsrc}, {8*F*2}, v7\nv_lshl_add_u32 v{vsrc}, v6, 3, v{vsrc}\ns_branch {L}_done")
        A(f"{L}_w2:")
        idx, siz = 0, 0
        cb = 0
        for n in PAT():
            for i in range(n):
                idx |= i << (2 * (cb + i)); siz |= n << (2 * (cb + i))
            cb += n
        A(f"s_lshl_b32 s55, s50, 1\ns_lshr_b32 s56, {idx}, s55\ns_and_b32 s56, s56, 3\ns_lshr_b32 s58, {siz}, s55\ns_and_b32 s58, s58, 3")
        A("s_mul_i32 s58, s58, s49\ns_add_u32 s53, s53, s58\ns_mul_i32 s58, s50, 18\ns_add_u32 s53, s53, s58\ns_mul_i32 s56, s56, 17\ns_sub_u32 s53, s53, s56")
        A(f"s_lshl_b32 s{SO}, s53, 10\ns_add_u32 s{SO+1}, s{SO}, {324*1024}\ns_add_u32 s{SO+2}, s{SO}, {648*1024}\ns_add_u32 s{SO+3}, s{SO}, {972*1024}")
        A(f"s_mov_b32 s{SD}, s{pw2}\ns_mov_b32 s{SD+1}, s{pw2+1}\ns_lshr_b32 s53, s49, 1\ns_lshl_b32 s53, s53, 6\ns_and_b32 s55, s49, 1\ns_lshl_b32 s55, s55, 1\ns_add_u32 s53, s53, s55")
        A(f"s_mul_i32 s55, s45, {DM}\ns_add_u32 s53, s53, s55\ns_mul_i32 s53, s53, {DM*2}\ns_add_u32 s{SB_}, s53, s54")
        A(f"s_mov_b32 s{SB_+1}, {DM*2}\ns_mov_b32 s{SB_+2}, {8*DM*2}\ns_mov_b32 s{SB_+3}, {4*DM*2}")
        A(f"v_mul_u32_u24 v{vsrc}, {16*DM*2}, v7\nv_lshl_add_u32 v{vsrc}, v6, 3, v{vsrc}")
        A(f"{L}_done:")
        return "\n".join(t)
    def setup_wo(self, rnd, pwo):
        L = self.a.label("rp")
        SD, SB_, SO, vsrc, dst = self.regs(rnd)
        t = []; A = t.append
        A(f"s_mul_hi_u32 s49, s47, {(2**32 + 8)//9}\ns_mul_i32 s50, s49, 9\ns_sub_u32 s50, s47, s50")
        A(f"s_mov_b32 s{SD+3}, 0x00020000\ns_lshl_b32 s54, s50, 7")
        A(f"s_mov_b32 s{SD}, s{pwo}\ns_mov_b32 s{SD+1}, s{pwo+1}\ns_cmp_lt_u32 s47, 162\ns_cselect_b32 s{SD+2}, {DM*DM*2}, 0\ns_cselect_b32 s56, 0, 0x40000000")
        A(f"s_mul_i32 s55, s49, 6144\ns_add_u32 s{SO}, s56, s55\ns_add_u32 s{SO+1}, s{SO}, 1024\ns_add_u32 s{SO+2}, s{SO}, 16\ns_add_u32 s{SO+3}, s{SO}, 1040")
        A(f"s_lshl_b32 s55, s50, 1\nv_lshrrev_b32 v245, 3, v6\nv_add_u32 v245, s55, v245\nv_mul_u32_u24 v246, 86, v245\nv_lshrrev_b32 v246, 8, v246")
        A(f"v_mul_u32_u24 v246, 51, v246\nv_add_u32 v245, v245, v246\nv_lshlrev_b32 v245, 11, v245")
        A(f"v_and_b32 v246, 7, v6\nv_lshl_add_u32 v245, v246, 5, v245\nv_lshl_add_u32 v{dst}, v7, 8, v245")
        A(f"s_mov_b32 s{SB_+3}, {DM*2}\ns_cmp_ge_u32 s49, 16\ns_cbranch_scc1 {L}_wo2")
        A(f"s_mul_i32 s53, s49, {36*DM*2}\ns_mov_b32 s{SB_+1}, {8*DM*2}\ns_mov_b32 s{SB_+2}, {2*DM*2}")
        A(f"v_lshrrev_b32 v246, 1, v7\nv_mul_u32_u24 v246, 18, v246\nv_and_b32 v247, 1, v7\nv_lshl_add_u32 v246, v247, 2, v246\ns_branch {L}_wo3")
        A(f"{L}_wo2:")
        A(f"s_sub_u32 s53, s49, 16\ns_mul_i32 s53, s53, {288*DM*2}\ns_add_u32 s53, s53, {16*DM*2}\ns_mov_b32 s{SB_+1}, {36*DM*2}\ns_mov_b32 s{SB_+2}, {18*DM*2}")
        A(f"v_mul_u32_u24 v246, 72, v7")
        A(f"{L}_wo3:")
        A(f"s_add_u32 s{SB_}, s53, s54\nv_mul_u32_u24 v{vsrc}, {DM*2}, v246\nv_lshl_add_u32 v{vsrc}, v6, 3, v{vsrc}")
        return "\n".join(t)
    def load(self, rnd, s_, flag=""):
        SD, SB_, SO, vsrc, dst = self.regs(rnd)
        raw = self.PR + 16 * rnd
        t = f"s_mov_b32 s55, s{SB_}\n"
        if s_ & 4: t += f"s_add_u32 s55, s55, s{SB_+1}\n"
        if s_ & 2: t += f"s_add_u32 s55, s55, s{SB_+2}\n"
        if s_ & 1: t += f"s_add_u32 s55, s55, s{SB_+3}\n"
        return t + f"buffer_load_dwordx2 v[{raw+2*s_}:{raw+2*s_+1}], v{vsrc}, s[{SD}:{SD+3}], s55 offen{flag}"
    def store(self, rnd, q_, flag=""):
        SD, SB_, SO, vsrc, dst = self.regs(rnd)
        raw = self.PR + 16 * rnd
        t = 196 + 4 * (q_ % 2)
        L = [f"v_perm_b32 v{t+j}, v{raw+2*(2*j+1)+(q_>>1)}, v{raw+2*(2*j)+(q_>>1)}, s{80+(q_&1)}" for j in range(4)]
        L.append(f"buffer_store_dwordx4 v[{t}:{t+3}], v{dst}, s[60:63], s{SO+q_} offen{flag}")
        return "\n".join(L)
    def touch(self, rnd):
        SD, SB_, SO, vsrc, dst = self.regs(rnd)
        return "s_mov_b64 exec, 0xff\nv_lshlrev_b32 v204, 7, v0\n" + "\n".join(f"buffer_load_dword v205, v204, s[60:63], s{SO+q} offen" for q in range(4)) + "\ns_mov_b64 exec, -1"

def ffn_map(sj, smb):
    SL = OPT.get("k4_sl", 1); lg = SL.bit_length() - 1
    return (f"s_and_b32 s46, s2, 7\ns_lshr_b32 s47, s2, 3\ns_and_b32 s{sj}, s46, {8//SL-1}\ns_lshl_b32 s{sj}, s{sj}, {lg}\ns_and_b32 s48, s47, {SL-1}\ns_add_u32 s{sj}, s{sj}, s48\n"
            f"s_lshr_b32 s{smb}, s46, {3-lg}\ns_lshl_b32 s{smb}, s{smb}, {5-lg}\ns_lshr_b32 s48, s47, {lg}\ns_add_u32 s{smb}, s{smb}, s48\n")

def poll(a, n, voff, srd_, soff, vt, slp=2):
    L = a.label("poll")
    a(f"s_mov_b32 s73, 0x8000\ns_mov_b64 exec, {(1 << n) - 1}")
    a(f"{L}:\nbuffer_load_dword v{vt}, v{voff}, s[{srd_}:{srd_+3}], s{soff} offen sc1\ns_waitcnt vmcnt(0)\nv_cmp_eq_u32 vcc, 1, v{vt}\ns_nop 1\ns_cmp_eq_u32 vcc_lo, {(1 << n) - 1}\ns_cbranch_scc1 {L}_ok\ns_sleep {slp}\ns_sub_u32 s73, s73, 1\ns_cbranch_scc0 {L}\n{L}_ok:")
    a("s_mov_b64 exec, -1")

K1_GRID = 256
K1_LDS = 159744 + 1280
def k1(a, stamp_k=-1):
    st = Stamps(a, stamp_k == 1, 1, 250, 251)
    XLQ, XLK = 73728, 86016
    KVI = 21504
    ST = OPT.get('k1_st', ' sc1')
    kernel_begin(a, "k1_kernel")
    if OPT["codepf"]:
        a(f"s_cmp_ge_u32 s2, {OPT.get('pfn', 64)}\ns_cbranch_scc1 K1_nopf")
        a("s_getpc_b64 s[58:59]\nK1_pc:\nv_lshlrev_b32 v252, 7, v0\nv_min_u32 v252, K2_out-K1_pc, v252\nglobal_load_dword v253, v252, s[58:59]")
        a("K1_nopf:")
    a(f"s_cmp_ge_u32 s2, {K1_GRID}\ns_cbranch_scc1 K1_end")
    a(f"s_load_dwordx4 s[4:7], s[0:1], {A_X}\ns_load_dwordx4 s[8:11], s[0:1], {A_WK}\ns_load_dwordx2 s[12:13], s[0:1], {A_WO}\ns_load_dwordx2 s[14:15], s[0:1], {K_WS}")
    st.start()
    wave_lane(a)
    a("v_and_b32 v1, 15, v0\nv_lshrrev_b32 v2, 4, v0")
    a("s_bfe_u32 s44, s2, 0x20001\ns_lshl_b32 s44, s44, 3\ns_bfe_u32 s61, s2, 0x30003\ns_add_u32 s44, s44, s61\ns_and_b32 s45, s2, 1\ns_lshl_b32 s45, s45, 2\ns_lshr_b32 s62, s2, 6\ns_add_u32 s45, s45, s62")
    a("s_mul_i32 s60, s62, 9\ns_lshr_b32 s60, s60, 2\ns_add_u32 s60, s60, s61\ns_and_b32 s61, s2, 7\ns_add_u32 s60, s60, s61")
    a("s_mul_i32 s61, s60, 57\ns_lshr_b32 s61, s61, 9\ns_mul_i32 s61, s61, 9\ns_sub_u32 s60, s60, s61")
    a(f"s_cmp_eq_u32 s45, 6\ns_cselect_b32 s60, 0, s60\ns_mov_b32 s63, {XLQ}\ns_cselect_b32 s63, {XLK}, s63")
    a("v_lshrrev_b32 v4, 3, v0\nv_and_b32 v5, 7, v0")
    EX = 159744
    X0 = 16
    AR = 172
    ACC, CS, RS, GR, WF, ON = 88, 192, 112, 116, 120, 168
    ONr = f"v[{ON}:{ON+3}]"
    def V4(b): return f"v[{b}:{b+3}]"
    def lane_rc():
        a("v_lshrrev_b32 v10, 2, v1\nv_and_b32 v11, 3, v1\nv_lshl_add_u32 v12, v2, 3, v10")
    def xaddr(sbase):
        a(f"v_and_b32 v7, 7, v1\nv_xor_b32 v8, v2, v7\nv_lshlrev_b32 v8, 4, v8\nv_lshl_add_u32 v8, v1, 7, v8\nv_add_u32 v8, s{sbase}, v8\nv_xor_b32 v9, 64, v8")
        a("v_add_u32 v190, 0x8000, v8\nv_add_u32 v191, 0x8000, v9")
    def xrd(reg, ks, extra=0):
        p, e = divmod(ks, 2)
        b, o = (8 + e, 8192 * p) if p < 4 else (190 + e, 8192 * (p - 4))
        return f"ds_read_b128 {V4(reg)}, v{b} offset:{o + extra}"
    def waddr(shalf):
        a("v_lshrrev_b32 v13, 1, v10\nv_and_b32 v14, 1, v2\nv_lshl_add_u32 v13, v14, 1, v13")
        a("v_lshlrev_b32 v15, 7, v12\nv_lshl_add_u32 v15, v11, 3, v15\nv_lshlrev_b32 v7, 6, v12\nv_lshl_add_u32 v7, v11, 3, v7\nv_add_u32 v7, 4096, v7")
        a(f"s_cmp_eq_u32 s{shalf}, 1\ns_cselect_b64 vcc, -1, 0\ns_mul_i32 s55, s{shalf}, 3")
        a(f"v_xor_b32 v184, s55, v13\nv_lshl_add_u32 v{AR}, v184, 5, v15\nv_add_u32 v{AR+3}, 512, v{AR}")
        for t in (1, 2):
            a(f"v_xor_b32 v184, {t}, v13\nv_lshl_add_u32 v184, v184, 5, v15\nv_xor_b32 v185, {t-1}, v14\nv_lshl_add_u32 v185, v185, 5, v7")
            a(f"v_cndmask_b32 v{AR+t}, v184, v185, vcc\nv_add_u32 v184, 512, v184\nv_add_u32 v185, 256, v185\nv_cndmask_b32 v{AR+3+t}, v184, v185, vcc")
        for i in range(6): a(f"v_add_u32 v{AR+6+i}, {9*6144}, v{AR+i}")
    def wrd(reg, ks, t):
        hi = ks >= 9
        off = (ks - 9 * hi) * 6144
        return [f"ds_read_b64_tr_b16 v[{reg}:{reg+1}], v{AR+6*hi+t} offset:{off}", f"ds_read_b64_tr_b16 v[{reg+2}:{reg+3}], v{AR+6*hi+3+t} offset:{off}"]
    def stat_mfma(x, first):
        return [f"v_mfma_f32_16x16x32_bf16 {V4(RS)}, {ONr}, {V4(x)}, {'0' if first else V4(RS)}",
                f"v_mfma_f32_16x16x32_bf16 {V4(GR)}, {V4(x)}, {V4(x)}, {'0' if first else V4(GR)}"]
    def stats_out():
        a("v_cmp_eq_u32 vcc, 1, v11\nv_cmp_eq_u32 s[54:55], 2, v11\nv_cmp_eq_u32 s[56:57], 3, v11\nv_cmp_eq_u32 s[58:59], v10, v2\ns_nop 3")
        a(f"v_mul_f32 v4, {f32bits(-1.0/DM)}, v{RS}")
        a(f"v_cndmask_b32 v5, v{GR}, v{GR+1}, vcc\nv_cndmask_b32 v5, v5, v{GR+2}, s[54:55]\nv_cndmask_b32 v5, v5, v{GR+3}, s[56:57]\nv_cndmask_b32 v5, 0, v5, s[58:59]")
        sum_g(a, 5, 7)
        a(f"v_mul_f32 v5, {f32bits(1.0/DM)}, v5\nv_fma_f32 v5, -v4, v4, v5\nv_max_f32 v5, 0, v5\nv_add_f32 v5, {f32bits(1e-5)}, v5\nv_rsq_f32 v5, v5")
        a(f"s_lshl_b32 s54, s3, 7\ns_add_u32 s54, s54, {EX + 768}\nv_lshlrev_b32 v7, 3, v1\nv_add_u32 v7, s54, v7\nds_write_b64 v7, v[4:5]")
    a("s_cmp_lt_u32 s3, 4\ns_cbranch_scc1 K1_comp")
    a("s_cmp_eq_u32 s45, 7\ns_cbranch_scc1 K1_worp")
    a("s_sub_u32 s3, s3, 4")
    a("s_cmp_eq_u32 s45, 6\ns_cbranch_scc1 K1_kvload")
    a("v_and_b32 v6, 1, v2\ns_and_b32 s48, s3, 1\ns_lshl_b32 s48, s48, 2\nv_lshlrev_b32 v6, 1, v6\nv_or_b32 v6, s48, v6\nv_xor_b32 v6, v6, v5")
    a(f"v_mul_u32_u24 v3, {DM*2}, v4\nv_lshl_add_u32 v3, v6, 4, v3")
    a("v_lshrrev_b32 v7, 5, v0\nv_lshlrev_b32 v7, 1, v7\nv_and_b32 v6, 3, v0\nv_xor_b32 v7, v7, v6\nv_lshrrev_b32 v6, 2, v0")
    a(f"v_mul_u32_u24 v6, {DM*2}, v6\nv_lshl_add_u32 v6, v7, 4, v6")
    a("s_mul_i32 s48, s45, 192\ns_and_b32 s53, s45, 1\ns_lshl_b32 s54, s53, 6\ns_add_u32 s49, s48, s54\ns_xor_b32 s53, s53, 1\ns_lshl_b32 s53, s53, 7\ns_add_u32 s50, s48, s53")
    a(f"s_mul_i32 s53, s3, {8*DM*2}\ns_add_u32 s49, s49, s53\ns_mul_i32 s53, s3, {16*DM*2}\ns_add_u32 s50, s50, s53")
    a("s_lshl_b32 s51, s3, 10")
    a("s_lshr_b32 s52, s3, 1\ns_mul_i32 s52, s52, 6144\ns_and_b32 s53, s3, 1\ns_lshl_b32 s53, s53, 10\ns_add_u32 s52, s52, s53\ns_add_u32 s52, s52, 4096")
    a(f"s_mul_i32 s61, s60, {64*DM*2}")
    a("s_waitcnt lgkmcnt(0)")
    srd(a, 20, 6, 0, DM*DM*2)
    def wdma():
        a(f"s_add_u32 s62, s49, s61\ns_add_u32 s65, s50, s61\ns_add_u32 s64, s62, {32*DM*2}")
        a(f"s_mov_b32 m0, s51\ns_add_u32 s51, s51, 6144\nbuffer_load_dwordx4 v3, s[20:23], s62 offen lds")
        a(f"s_mov_b32 m0, s52\ns_add_u32 s52, s52, 12288\nbuffer_load_dwordx4 v6, s[20:23], s65 offen lds")
        a(f"s_mov_b32 m0, s51\ns_add_u32 s51, s51, 6144\nbuffer_load_dwordx4 v3, s[20:23], s64 offen lds")
        a(f"s_add_u32 s61, s61, {64*DM*2}\ns_cmp_eq_u32 s61, {DM*DM*2}\ns_cselect_b32 s61, 0, s61")
    LA = OPT.get('k1_la', 3)
    for t in range(LA): wdma()
    lane_rc()
    a("s_lshl_b32 s66, s3, 11\ns_add_u32 s66, s66, s63\ns_lshr_b32 s67, s3, 1")
    xaddr(66); waddr(67)
    a("s_and_b32 s55, s3, 1\ns_mul_i32 s55, s55, 6144")
    for i in range(12): a(f"v_add_u32 v{AR+i}, s55, v{AR+i}")
    for r in range(4): a(f"v_mov_b32 v{ON+r}, {ONES}")
    for p in range(10):
        if p < 9:
            a(f"s_waitcnt vmcnt({3*(min(p + LA, 9) - p - 1)}) lgkmcnt(0)\ns_barrier")
            b = (p % 2) * 20
            a(xrd(X0 + b, 2*p)); a(xrd(X0 + b + 4, 2*p + 1))
            for t in range(3):
                for x in wrd(X0 + b + 8 + 4*t, 2*p if p != 4 else 8, t): a(x)
        else:
            a("s_waitcnt lgkmcnt(0)")
        if p > 0:
            b = ((p - 1) % 2) * 20
            for x in stat_mfma(X0 + b, p == 1) + stat_mfma(X0 + b + 4, False): a(x)
            for t in range(3):
                a(f"v_mfma_f32_16x16x32_bf16 {V4(CS+4*t)}, {V4(X0+b+8+4*t)}, {ONr}, {'0' if p == 1 else V4(CS+4*t)}")
        if p + LA < 9: wdma()
    stats_out()
    a(f"s_mul_i32 s54, s3, 192\ns_add_u32 s54, s54, {EX}\nv_lshlrev_b32 v7, 4, v2\nv_add_u32 v7, s54, v7")
    for t in range(3): a(f"ds_write_b128 v7, {V4(CS+4*t)} offset:{64*t}")
    a("s_waitcnt lgkmcnt(0)\ns_barrier\ns_branch K1_end")
    a("K1_comp:")
    a("s_cmp_eq_u32 s45, 7\ns_cbranch_scc1 K1_wbar")
    a("s_lshl_b32 s46, s44, 6\ns_lshl_b32 s47, s3, 4\ns_add_u32 s46, s46, s47")
    a(f"s_mul_i32 s47, s46, {DM*2}")
    a(f"v_xor_b32 v6, v4, v5\nv_mul_u32_u24 v3, {DM*2}, v4\nv_lshl_add_u32 v3, v6, 4, v3\nv_add_u32 v6, {8*DM*2 - 1024}, v3")
    a(f"s_lshl_b32 s61, s60, 7\ns_lshl_b32 s64, s3, 11\ns_add_u32 s64, s63, s64\ns_mov_b32 s66, s64")
    a("s_waitcnt lgkmcnt(0)")
    srd(a, 16, 4, 0, T*DM*2)
    def xdma():
        return ("s_mov_b32 m0, s64\ns_add_u32 s62, s47, s61\ns_add_u32 s64, s64, 8192\n"
                "buffer_load_dwordx4 v3, s[16:19], s62 offen lds\nbuffer_load_dwordx4 v6, s[16:19], s62 offen offset:1024 lds\n"
                f"s_add_u32 s61, s61, 128\ns_cmp_eq_u32 s61, {DM*2}\ns_cselect_b32 s61, 0, s61")
    XA = OPT.get("k1_xa", 4)
    for p in range(XA): a(xdma())
    st(0)
    lane_rc()
    a("s_cmp_eq_u32 s45, 6\ns_cbranch_scc1 K1_kvgemm")
    a("s_and_b32 s68, s3, 1\ns_lshl_b32 s66, s68, 12\ns_add_u32 s66, s66, s63\ns_lshr_b32 s67, s3, 1")
    xaddr(66); waddr(67)
    ws_srd(a, 32, "Q", 14)
    def frags(ks):
        b = X0 + (ks % 2) * 20
        L = [xrd(b, ks), xrd(b + 4, ks, 2048)]
        for t in range(3): L += wrd(b + 8 + 4*t, ks, t)
        return L
    nx = XA
    a(f"s_waitcnt vmcnt({2*XA-2})\ns_barrier")
    st(2)
    for x in frags(0): a(x)
    for ks in range(18):
        p = ks // 2
        if ks % 2 == 1 and ks < 17:
            a(f"s_waitcnt vmcnt({2*(nx - p - 2)})" + (" lgkmcnt(6)" if ks == 9 else "") + "\ns_barrier")
        b = X0 + (ks % 2) * 20
        nf = frags(ks + 1) if ks < 17 else []
        issued = 0
        for t in range(3):
            a(f"s_waitcnt lgkmcnt({4 - 2*t + issued})")
            for m in range(2):
                d = ACC + (t*2 + m) * 4
                a(f"v_mfma_f32_16x16x32_bf16 {V4(d)}, {V4(b+8+4*t)}, {V4(b+4*m)}, {'0' if ks == 0 else V4(d)}")
                for x in nf[:2]: a(x); issued += 1
                nf = nf[2:]
        if ks % 2 == 0 and nx < 9:
            a(xdma()); nx += 1
    st(3)
    a("v_lshlrev_b32 v3, 3, v0")
    a(f"s_lshl_b32 s48, s44, 1\ns_add_u32 s48, s48, s68\ns_mul_i32 s48, s48, {4*9216}")
    a("s_mul_i32 s49, s45, 6\ns_and_b32 s50, s45, 1\ns_lshl_b32 s51, s50, 1\ns_add_u32 s51, s51, s49\ns_lshl_b32 s50, s50, 2\ns_sub_u32 s52, s49, s50\ns_mul_i32 s69, s67, 3")
    a(f"s_mul_i32 s54, s67, 384\ns_add_u32 s54, s54, {EX}\nv_lshlrev_b32 v7, 4, v2\nv_add_u32 v7, s54, v7")
    a(f"s_lshl_b32 s54, s68, 8\ns_add_u32 s54, s54, {EX + 768}\nv_lshlrev_b32 v8, 3, v1\nv_add_u32 v8, s54, v8")
    a("s_barrier")
    a("ds_read_b64 v[12:13], v8\nds_read_b64 v[14:15], v8 offset:128")
    for i in range(6): a(f"ds_read_b128 {V4(CS+4*i)}, v7 offset:{64*i}")
    a(f"s_waitcnt lgkmcnt(0)\nv_mul_f32 v13, {f32bits(QSCALE)}, v13\nv_mul_f32 v15, {f32bits(QSCALE)}, v15")
    for t in range(3):
        a(f"s_add_u32 s53, s69, {t}\ns_cmp_lt_u32 s53, 4\ns_cselect_b32 s54, s51, s52\ns_add_u32 s53, s53, s54")
        a("s_mul_i32 s54, s53, 57\ns_lshr_b32 s54, s54, 9\ns_mul_i32 s54, s54, 4608\ns_lshl_b32 s53, s53, 9\ns_add_u32 s53, s53, s54\ns_add_u32 s53, s53, s48\ns_add_u32 s55, s53, 4608")
        for r in range(4): a(f"v_add_f32 v{CS+4*t+r}, v{CS+4*t+r}, v{CS+12+4*t+r}")
        for m in range(2):
            b = ACC + (t*2 + m) * 4
            for r in range(4): a(f"v_fmac_f32 v{b+r}, v{CS+4*t+r}, v{12+2*m}\nv_mul_f32 v{b+r}, v{b+r}, v{13+2*m}")
            a(f"v_cvt_pk_bf16_f32 v{b}, v{b}, v{b+1}\nv_cvt_pk_bf16_f32 v{b+1}, v{b+2}, v{b+3}")
            a(f"buffer_store_dwordx2 v[{b}:{b+1}], v3, s[32:35], s{53+2*m} offen{ST}")
    a("s_branch K1_fin")
    def kaddr():
        a(f"v_mul_u32_u24 v13, 36, v12\nv_lshl_add_u32 v13, v11, 3, v13\nv_and_b32 v14, 1, v10\nv_mul_u32_u24 v14, {KVI - 4}, v14\nv_add_u32 v{AR}, v13, v14")
    a("K1_kvload:")
    a(f"v_lshlrev_b32 v3, 4, v0\ns_and_b32 s48, s3, 1\ns_lshl_b32 s48, s48, 2\ns_mul_i32 s49, s3, {KVI}")
    a("s_waitcnt lgkmcnt(0)")
    a(f"s_cmp_lt_u32 s3, 2\ns_cselect_b32 s24, s8, s10\ns_cselect_b32 s25, s9, s11\ns_mov_b32 s26, {DM*DH*2}\ns_mov_b32 s27, 0x00020000")
    for i in range(21):
        if i % 4 == 0: a("s_mov_b32 m0, s49\ns_add_u32 s49, s49, 4096")
        a(f"buffer_load_dwordx4 v3, s[24:27], s48 offen offset:{(i%4)*1024} lds")
        if i % 4 == 3: a("s_add_u32 s48, s48, 4096")
    lane_rc()
    a("s_lshl_b32 s66, s3, 11\ns_add_u32 s66, s66, s63")
    xaddr(66); kaddr()
    a(f"s_and_b32 s55, s3, 1\ns_mul_i32 s55, s55, {2*KVI}\ns_lshr_b32 s56, s3, 1\ns_lshl_b32 s56, s56, 5\ns_add_u32 s55, s55, s56\nv_add_u32 v{AR}, s55, v{AR}")
    for r in range(4): a(f"v_mov_b32 v{ON+r}, {ONES}")
    ws_srd(a, 40, "MEAN1", 14)
    ws_srd(a, 68, "XC", 14)
    a(f"s_lshl_b32 s46, s44, 2\ns_add_u32 s46, s46, s3\ns_mul_i32 s48, s46, 18432")
    a("s_waitcnt vmcnt(0)\ns_barrier")
    def kl(ks):
        w = WF + (ks % 4) * 4
        return [xrd(X0 + 4*ks, ks), f"ds_read_b64_tr_b16 v[{w}:{w+1}], v{AR} offset:{ks*1152}", f"ds_read_b64_tr_b16 v[{w+2}:{w+3}], v{AR} offset:{ks*1152 + 144}"]
    for ks in range(3):
        for x in kl(ks): a(x)
    for ks in range(18):
        a(f"s_waitcnt lgkmcnt({3*min(2, 17-ks)})")
        for x in stat_mfma(X0 + 4*ks, ks == 0): a(x)
        a(f"v_mfma_f32_16x16x32_bf16 {V4(CS)}, {V4(WF + (ks % 4) * 4)}, {ONr}, {'0' if ks == 0 else V4(CS)}")
        if ks + 3 < 18:
            for x in kl(ks + 3): a(x)
        if ks and ks % 4 == 0: a("s_add_u32 s48, s48, 4096")
        a(f"buffer_store_dwordx4 {V4(X0+4*ks)}, v3, s[68:71], s48 offen offset:{(ks%4)*1024}{ST}")
    stats_out()
    a(f"s_lshl_b32 s54, s3, 6\ns_add_u32 s54, s54, {EX}\nv_lshlrev_b32 v7, 4, v2\nv_add_u32 v7, s54, v7\nds_write_b128 v7, {V4(CS)}")
    a("s_waitcnt lgkmcnt(0)\ns_barrier")
    a("v_sub_f32 v9, 0, v4\nv_lshlrev_b32 v7, 2, v1\nv_lshl_add_u32 v7, v2, 20, v7\ns_lshl_b32 s49, s46, 6\nbuffer_store_dword v9, v7, s[40:43], s49 offen")
    a("s_branch K1_end")
    a("K1_worp:\ns_waitcnt lgkmcnt(0)\nv_lshlrev_b32 v3, 4, v0")
    rp = Repack(a)
    a(rp.common())
    for rnd in range(2):
        a(f"s_lshl_b32 s47, s44, 2\ns_add_u32 s47, s47, s3\ns_add_u32 s47, s47, {128*rnd - 4 & 0xffffffff}")
        a(rp.setup_wo(rnd, 12))
        for n in range(8): a(rp.load(rnd, n))
    for rnd in range(2):
        a(f"s_waitcnt vmcnt({8 if rnd == 0 else 4})")
        for n in range(4): a(rp.store(rnd, n) + "\ns_nop 1")
    a("s_branch K1_end")
    a("K1_kvgemm:")
    for p in range(XA, 9): a(xdma())
    ws_srd(a, 36, "KV", 14)
    xaddr(66); kaddr()
    for ks in range(18):
        if ks % 2 == 0: a(f"s_waitcnt vmcnt({16 - ks})")
        a(xrd(X0 + 4*ks, ks))
    st(20)
    a("s_barrier")
    st(22)
    def kread(ks):
        L = []
        for j in range(4):
            w = WF + ((ks % 2) * 4 + j) * 4
            o = ks * 1152 + (j & 1) * 2 * KVI + (j >> 1) * 32
            L += [f"ds_read_b64_tr_b16 v[{w}:{w+1}], v{AR} offset:{o}", f"ds_read_b64_tr_b16 v[{w+2}:{w+3}], v{AR} offset:{o + 144}"]
        return L
    for x in kread(0): a(x)
    for ks in range(18):
        x = V4(X0 + 4*ks)
        fill = kread(ks + 1) if ks < 17 else []
        for j in range(4):
            w = V4(WF + ((ks % 2) * 4 + j) * 4)
            a(f"s_waitcnt lgkmcnt({6 if ks < 17 else 6 - 2*j})")
            A_, B_ = (w, x) if j % 2 == 0 else (x, w)
            a(f"v_mfma_f32_16x16x32_bf16 {V4(ACC+4*j)}, {A_}, {B_}, {'0' if ks == 0 else V4(ACC+4*j)}")
            for y in fill[:2]: a(y)
            fill = fill[2:]
    st(23)
    a(f"s_mul_i32 s48, s44, {PAIR}")
    a(f"s_lshl_b32 s54, s3, 7\ns_add_u32 s54, s54, {EX + 768}\nv_lshlrev_b32 v7, 3, v1\nv_add_u32 v7, s54, v7\nv_lshlrev_b32 v8, 5, v2\nv_add_u32 v8, s54, v8")
    a(f"v_lshlrev_b32 v9, 4, v2\nv_add_u32 v9, {EX}, v9\nv_lshlrev_b32 v10, 2, v1\nv_add_u32 v10, {EX}, v10\nv_mov_b32 v{ON}, {ONES}")
    a("s_barrier")
    a(f"ds_read_b64 v[4:5], v7\nds_read_b128 v[216:219], v8\nds_read_b128 v[220:223], v8 offset:16\nds_read_b128 {V4(CS)}, v9\nds_read_b128 {V4(CS+8)}, v9 offset:128")
    a(f"ds_read_b32 v{CS+4}, v10 offset:64\nds_read_b32 v{CS+12}, v10 offset:192")
    a("v_lshrrev_b32 v7, 1, v2\nv_lshlrev_b32 v7, 9, v7\nv_lshl_add_u32 v7, v1, 4, v7\nv_and_b32 v8, 1, v2\nv_lshl_add_u32 v7, v8, 3, v7")
    a("s_lshr_b32 s49, s3, 1\ns_lshl_b32 s49, s49, 10\ns_and_b32 s50, s3, 1\ns_lshl_b32 s50, s50, 8\ns_add_u32 s49, s49, s50\ns_add_u32 s49, s49, s48")
    a("s_waitcnt lgkmcnt(0)")
    b = ACC
    for r in range(4): a(f"v_fmac_f32 v{b+r}, v{CS+r}, v4\nv_mul_f32 v{b+r}, v{b+r}, v5")
    a(f"v_cvt_pk_bf16_f32 v{b}, v{b}, v{b+1}\nv_cvt_pk_bf16_f32 v{b+1}, v{b+2}, v{b+3}")
    a(f"buffer_store_dwordx2 v[{b}:{b+1}], v7, s[36:39], s49 offen")
    b = ACC + 8
    for r in range(2): a(f"v_fmac_f32 v{b+r}, v{CS+8+r}, v4\nv_mul_f32 v{b+r}, v{b+r}, v5")
    a(f"v_cvt_pk_bf16_f32 v{b}, v{b}, v{b+1}")
    a("v_lshlrev_b32 v7, 2, v1\nv_lshl_add_u32 v7, v2, 20, v7\ns_lshl_b32 s49, s3, 6\ns_add_u32 s49, s49, s48")
    a(f"buffer_store_dword v{b}, v7, s[36:39], s49 offen offset:2048")
    a("v_and_b32 v8, 1, v2\nv_mul_u32_u24 v8, 19, v8\nv_add_u32 v8, v8, v1\nv_lshlrev_b32 v8, 4, v8\nv_lshrrev_b32 v10, 1, v2\nv_lshl_add_u32 v8, v10, 3, v8")
    a("s_mul_i32 s49, s3, 608\ns_add_u32 s49, s49, s48")
    for i, b in enumerate((4, 12)):
        for r in range(4): a(f"v_fmac_f32 v{ACC+b+r}, v{CS+b}, v{216+2*r}\nv_mul_f32 v{ACC+b+r}, v{ACC+b+r}, v{217+2*r}")
        b += ACC
        a(f"v_cvt_pk_bf16_f32 v{b}, v{b}, v{b+1}\nv_cvt_pk_bf16_f32 v{b+1}, v{b+2}, v{b+3}")
        if i == 0:
            a(f"buffer_store_dwordx2 v[{b}:{b+1}], v8, s[36:39], s49 offen offset:2304")
        else:
            a(f"v_cmp_eq_u32 vcc, 2, v1\ns_nop 1\nv_cndmask_b32 v{b}, v{b}, v{ON}, vcc\nv_cndmask_b32 v{b+1}, v{b+1}, v{ON}, vcc")
            a("v_cmp_gt_u32 vcc, 3, v1\ns_and_saveexec_b64 s[54:55], vcc")
            a(f"buffer_store_dwordx2 v[{b}:{b+1}], v8, s[36:39], s49 offen offset:{2304 + 16*16}")
            a("s_mov_b64 exec, -1")
    a("s_branch K1_fin")
    a("K1_wbar:\ns_waitcnt lgkmcnt(0)")
    srd(a, 16, 12, 0, DM*DM*2)
    ws_srd(a, 20, "WBAR", 14)
    a("s_cmp_lt_u32 s44, 18\ns_cbranch_scc1 K1_wb0")
    ws_srd(a, 24, "FLAG", 14)
    a("s_sub_u32 s45, s44, 18\ns_lshl_b32 s45, s45, 2\ns_add_u32 s45, s45, s3\ns_lshl_b32 s46, s45, 13\nv_lshlrev_b32 v3, 7, v0")
    a(f"v_mov_b32 v8, 0\nv_mov_b32 v9, 0\nv_mov_b32 v10, 0\nv_mov_b32 v11, 0\nbuffer_store_dword v8, v3, s[24:27], s46 offen\ns_add_u32 s46, s46, {56*8192}\nbuffer_store_dword v8, v3, s[24:27], s46 offen")
    a(f"s_lshl_b32 s46, s45, 10\ns_add_u32 s46, s46, {FL_RF}\nv_lshlrev_b32 v3, 4, v0\nbuffer_store_dwordx4 v[8:11], v3, s[24:27], s46 offen\ns_branch K1_fin")
    a("K1_wb0:")
    a("v_lshrrev_b32 v3, 3, v0\nv_and_b32 v5, 7, v0")
    a("s_cmp_ge_u32 s44, 16\ns_cbranch_scc1 K1_wb_hi")
    a("s_mul_i32 s45, s44, 36\ns_lshr_b32 s46, s3, 1\ns_mul_i32 s46, s46, 18\ns_add_u32 s45, s45, s46\ns_and_b32 s46, s3, 1\ns_lshl_b32 s46, s46, 2\ns_add_u32 s45, s45, s46")
    a("v_lshrrev_b32 v4, 2, v3\nv_lshlrev_b32 v4, 3, v4\nv_and_b32 v6, 3, v3\nv_add_u32 v4, v4, v6")
    a("s_branch K1_wb_go")
    a("K1_wb_hi:")
    a("s_sub_u32 s45, s44, 16\ns_mul_i32 s45, s45, 288\ns_mul_i32 s46, s3, 72\ns_add_u32 s45, s45, s46\ns_add_u32 s45, s45, 16")
    a("v_lshrrev_b32 v4, 1, v3\nv_mul_u32_u24 v4, 18, v4\nv_and_b32 v6, 1, v3\nv_add_u32 v4, v4, v6")
    a("K1_wb_go:")
    a(f"s_mul_i32 s45, s45, {DM*2}\nv_mul_u32_u24 v4, {DM*2}, v4\nv_lshl_add_u32 v4, v5, 4, v4")
    for i in range(9):
        a(f"buffer_load_dwordx4 v[{16+4*i}:{19+4*i}], v4, s[16:19], s45 offen offset:{128*i}")
    a(f"s_mov_b32 s56, {ONES}\nv_mov_b32 v6, 0\nv_mov_b32 v7, 0\ns_waitcnt vmcnt(0)")
    for i in range(36):
        a(f"v_dot2_f32_bf16 v{6+i%2}, v{16+i}, s56, v{6+i%2}")
    a("s_nop 2\nv_add_f32 v6, v6, v7\ns_nop 1")
    for x in (1, 2, 4):
        a(f"ds_swizzle_b32 v7, v6 offset:{(x << 10) | 0x1f}\ns_waitcnt lgkmcnt(0)\nv_add_f32 v6, v6, v7")
    a(f"v_mul_f32 v6, {f32bits(1.0/DM)}, v6")
    a("v_cvt_pk_bf16_f32 v7, v6, v6\nv_lshlrev_b32 v8, 16, v7\nv_sub_f32 v8, v6, v8\nv_cvt_pk_bf16_f32 v8, v8, v8")
    a("v_lshlrev_b32 v9, 5, v5\nv_lshl_add_u32 v9, v3, 1, v9")
    a(f"s_lshl_b32 s46, s44, 10\ns_lshl_b32 s47, s3, 8\ns_add_u32 s46, s46, s47")
    a(f"buffer_store_short v7, v9, s[20:23], s46 offen\nbuffer_store_short v8, v9, s[20:23], s46 offen offset:16")
    a("K1_fin:")
    st.finish(14, 3, 4)
    a("K1_end:\ns_endpgm")
    return kernel_desc("k1_kernel", 256)

K2_GRID = 256
K2_LDS = 32 * PAIR + 9216
def k2(a, stamp_k=-1, force_fallback=False):
    st = Stamps(a, stamp_k == 2, 2, 255, 254)
    kernel_begin(a, "k2_kernel")
    a(f"s_cmp_ge_u32 s2, {K2_GRID}\ns_cbranch_scc1 K2_end")
    a(f"s_load_dwordx2 s[14:15], s[0:1], {K_WS}\ns_load_dwordx2 s[4:5], s[0:1], {K_OUT}\ns_load_dwordx4 s[8:11], s[0:1], {B_W1}")
    st.start()
    wave_lane(a)
    a("v_and_b32 v1, 31, v0\nv_lshrrev_b32 v2, 5, v0\nv_lshlrev_b32 v3, 4, v0")
    a("s_lshr_b32 s40, s2, 2\ns_and_b32 s41, s2, 3\ns_lshl_b32 s41, s41, 3\ns_add_u32 s41, s41, s3")
    a(f"s_mul_i32 s42, s2, 9216\ns_lshl_b32 s43, s3, 10\ns_add_u32 s42, s42, s43\ns_add_u32 s43, s43, {32*PAIR}")
    a("s_lshl_b32 s44, s3, 10")
    a("s_waitcnt lgkmcnt(0)")
    ws_srd(a, 16, "KV", 14)
    ws_srd(a, 20, "Q", 14)
    Q1, Q2 = 8, 12
    def dma(r):
        txt = f"s_mov_b32 m0, s44\ns_nop 0\nbuffer_load_dwordx4 v3, s[16:19], s44 offen lds\ns_add_u32 s44, s44, 8192"
        if r == 18:
            L = a.label("dm")
            txt = f"s_cmp_ge_u32 s3, 4\ns_cbranch_scc1 {L}\n{txt}\n{L}:"
        return txt
    a("s_cmp_lg_u32 s3, 0\ns_cbranch_scc1 K2_q1")
    a(f"s_mov_b32 m0, {32*PAIR + 8192}\ns_add_u32 s45, s42, 8192\nbuffer_load_dwordx4 v3, s[20:23], s45 offen lds")
    a("K2_q1:")
    a("s_mov_b32 m0, s43\ns_nop 0\nbuffer_load_dwordx4 v3, s[20:23], s42 offen lds")
    a(dma(0)); a(dma(1)); a(dma(2))
    a(f"v_mov_b32 v{Q2+1}, 0")
    ws_srd(a, 24, "O", 14)
    a(f"v_lshrrev_b32 v4, 4, v1\nv_mul_u32_u24 v4, 4608, v4\nv_and_b32 v5, 15, v1\nv_lshl_add_u32 v4, v5, 3, v4\nv_add_u32 v4, {32*PAIR}, v4")
    a("s_mul_i32 s45, s3, 9\nv_lshlrev_b32 v5, 2, v2\nv_add_u32 v5, s45, v5")
    for i in range(5):
        if i < 4: a(f"v_add_u32 v30, {i}, v5")
        else: a("s_add_u32 s45, s45, 8\nv_mov_b32 v30, s45")
        a(f"v_lshrrev_b32 v31, 1, v30\nv_lshl_add_u32 v31, v31, 7, v4\nv_and_b32 v30, 1, v30\nv_lshl_add_u32 v{25+i}, v30, 2, v31")
    SEG = 13
    VKA, VK2, VVA = 14, 17, 20
    a(f"v_mul_u32_u24 v23, 19, v2\nv_add_u32 v23, v23, v1\nv_lshlrev_b32 v23, 4, v23\nv_mov_b32 v24, 0x40000\nv_cmp_gt_u32 vcc, 19, v1\ns_nop 1\nv_cndmask_b32 v{VVA}, v24, v23, vcc")
    a(f"v_mov_b32 v{VKA}, v3\nv_lshlrev_b32 v{VK2}, 2, v0")
    for b in (VKA, VK2, VVA):
        a(f"v_add_u32 v{b+1}, {SEG*PAIR}, v{b}\nv_add_u32 v{b+2}, {2*SEG*PAIR}, v{b}")
    SA, SB, P, O, NM = 32, 64, 96, 112, 128
    KF, K2F, VF = 144, 160, 164
    a(f"v_mov_b32 v{K2F+1}, 0\nv_mov_b32 v{K2F+3}, 0")
    for r in range(16): a(f"v_mov_b32 v{O+r}, 0")
    rp = Repack(a)
    def w3(txt):
        L = a.label("w3")
        return (f"s_cmp_lt_u32 s3, 5" if OPT.get("w3hi", True) else f"s_cmp_ge_u32 s3, 3") + f"\ns_cbranch_scc1 {L}\n{txt}\n{L}:"
    def seg(p): return p // SEG, (p % SEG) * PAIR
    def rdK(i, p):
        sg, o = seg(p)
        return [f"ds_read_b128 v[{KF+8*i}:{KF+8*i+3}], v{VKA+sg} offset:{o}",
                f"ds_read_b128 v[{KF+8*i+4}:{KF+8*i+7}], v{VKA+sg} offset:{o+1024}",
                f"ds_read_b32 v{K2F+2*i}, v{VK2+sg} offset:{o+2048}"]
    def rdV(i, p):
        sg, o = seg(p)
        return [f"ds_read_b128 v[{VF+16*i+4*q}:{VF+16*i+4*q+3}], v{VVA+sg} offset:{o+2304+608*q}" for q in range(4)]
    def qk(S, i, c):
        return [f"v_mfma_f32_32x32x16_bf16 v[{S}:{S+15}], v[{KF+8*i}:{KF+8*i+3}], v[{Q1}:{Q1+3}], {c}",
                f"v_mfma_f32_32x32x16_bf16 v[{S+16}:{S+31}], v[{KF+8*i+4}:{KF+8*i+7}], v[{Q1}:{Q1+3}], {c}",
                f"v_mfma_f32_32x32x4_2b_bf16 v[{S}:{S+31}], v[{K2F+2*i}:{K2F+2*i+1}], v[{Q2}:{Q2+1}], v[{S}:{S+31}]"]
    def pvm(vs_, u):
        return f"v_mfma_f32_32x32x16_bf16 v[{O}:{O+15}], v[{VF+16*vs_+4*u}:{VF+16*vs_+4*u+3}], v[{P+4*u}:{P+4*u+3}], v[{O}:{O+15}]"
    def rowmax(S, dst, first):
        L = []; r = 0
        if first:
            L.append(f"v_max_f32 v{dst}, v{S}, v{S+1}"); r = 2
        while r < 32:
            L.append(f"v_max3_f32 v{dst}, v{S+r}, v{S+r+1}, v{dst}"); r += 2
        return L
    def set_nm(src):
        a(f"v_mov_b32 v25, v{src}\ns_nop 1\nv_permlane32_swap_b32 v{src}, v25\ns_nop 1\nv_max_f32 v{src}, v{src}, v25")
        for r in range(16): a(f"v_sub_f32 v{NM+r}, 0, v{src}")
    def E(cur, g):
        b = cur + 4 * g
        return [f"v_exp_f32 v{b+r}, v{b+r}" for r in range(4)] + \
               [f"v_cvt_pk_bf16_f32 v{P+2*g}, v{b}, v{b+1}", f"v_cvt_pk_bf16_f32 v{P+2*g+1}, v{b+2}, v{b+3}"]
    NMr = f"v[{NM}:{NM+15}]"
    if OPT["prio"]: a("s_setprio 1")
    st(0)
    a("s_waitcnt vmcnt(2)\ns_barrier")
    st(1)
    for i in range(5): a(f"ds_read_b32 v{Q1+i}, v{25+i}")
    for x in rdK(0, 0) + rdK(1, 1) + rdV(0, 0): a(x)
    a("s_waitcnt lgkmcnt(7)")
    q = qk(SA, 0, "0")
    a(q[0]); a(q[1]); a("s_nop 9"); a(q[2]); a("s_nop 15\ns_nop 3")
    for x in rowmax(SA, 24, True): a(x)
    if force_fallback:
        a(f"v_add_f32 v24, {f32bits(-100.0)}, v24")
    set_nm(24)
    for r in range(32): a(f"v_add_f32 v{SA+r}, v{SA+r}, v{NM}")
    st(2)
    extra = {i: [] for i in range(32)}
    pre = {i: [] for i in range(32)}
    r = 3
    for i in range(8):
        extra[i] += [dma(r), dma(r + 1)]; r += 2
    pre[0].append("s_waitcnt vmcnt(0)\ns_barrier"); pre[3].append("s_waitcnt vmcnt(2)\ns_barrier"); pre[9].append(f"v_mov_b32 v196, 0\nv_mov_b32 v197, 0\nv_mov_b32 v198, 0\nv_mov_b32 v199, 0\nv_mov_b32 v200, {ffn.CNT}\nds_write_b128 v200, v[196:199]\nds_write_b128 v200, v[196:199] offset:16\nds_write_b128 v200, v[196:199] offset:32\ns_waitcnt vmcnt(0) lgkmcnt(0)\ns_barrier")
    nt_ = " nt" if OPT["k2_nt"] else ""
    def uidx(rnd):
        t = ("" if rnd else ffn_map(34, 35)) + f"s_mov_b32 s45, s34\ns_mul_i32 s47, s35, 11\ns_add_u32 s47, s47, s3\n"
        if rnd and OPT.get("w3hi", True): t += "s_add_u32 s47, s47, 3\ns_cmp_lt_u32 s3, 5\ns_cselect_b32 s47, 400, s47\n"
        elif rnd: t += "s_add_u32 s47, s47, 8\ns_cmp_ge_u32 s3, 3\ns_cselect_b32 s47, 400, s47\n"
        return t
    pre[8].append(rp.common() + "\n" + uidx(0) + rp.setup_ffn(0, 8, 10)); pre[9].insert(0, uidx(1) + rp.setup_ffn(1, 8, 10))
    for n in range(8):
        extra[9 + n // 2].append(rp.load(0, n, nt_))
        extra[13 + n // 2].append(w3(rp.load(1, n, nt_)))
    ST0 = OPT.get("k2_st0", 21)
    pre[ST0].append("s_waitcnt vmcnt(0)")
    for n in range(4):
        extra[ST0 + n // 2].append(rp.store(0, n, " sc1"))
        extra[ST0 + 2 + n // 2].append(w3(rp.store(1, n, " sc1")))
    FB = WS["FLAG"][0]
    pre[ST0 + 7].append("s_waitcnt vmcnt(0)")
    extra[ST0 + 7].append(f"s_add_u32 s36, s14, {FB}\ns_addc_u32 s37, s15, 0\ns_mov_b32 s38, {FL_END}\ns_mov_b32 s39, 0x00020000\n"
                          f"s_lshl_b32 s45, s34, 8\ns_lshl_b32 s46, s35, 3\ns_add_u32 s45, s45, s46\ns_add_u32 s45, s45, s3\ns_lshl_b32 s45, s45, 2\ns_add_u32 s45, s45, {FL_RF}\n"
                          "v_mov_b32 v206, 1\nv_mov_b32 v207, 0\ns_mov_b64 exec, 1\nbuffer_store_dword v206, v207, s[36:39], s45 offen sc1\ns_mov_b64 exec, -1")
    if OPT.get("k2_touch", True):
        extra[ST0 + 7].append(rp.touch(0)); extra[ST0 + 8].append(w3(rp.touch(1)))
    if OPT.get("tlb", False):
        L = a.label("tl")
        extra[17].append(f"s_cmp_lg_u32 s3, 7\ns_cbranch_scc1 {L}\ns_mov_b32 s28, s14\ns_mov_b32 s29, s15\ns_mov_b32 s30, {WS['STAMP'][0]}\ns_mov_b32 s31, 0x00020000\n"
                         f"v_lshlrev_b32 v206, 20, v0\nbuffer_load_dword v205, v206, s[28:31], 0 offen\n"
                         f"s_mov_b32 s28, s4\ns_mov_b32 s29, s5\ns_mov_b32 s30, {T*DM*2}\nbuffer_load_dword v205, v206, s[28:31], 0 offen\n{L}:")
    EW = OPT.get("wo_early", 10)
    if EW:
        wo0, wosz = WS["WOF"]
        pre[22].append(f"s_lshr_b32 s77, s2, 5\ns_add_u32 s20, s14, {wo0}\ns_addc_u32 s21, s15, 0\ns_mov_b32 s22, {wosz}\ns_mov_b32 s23, 0x00020000\n"
                       f"s_lshl_b32 s32, s3, 10\ns_mul_i32 s33, s77, {108*1024}\ns_add_u32 s33, s33, s32\ns_waitcnt lgkmcnt(0)\ns_barrier")
        nb_ = 0
        for i in list(range(25, 32)) + list(range(22, 32)):
            if nb_ < EW and len(extra[i]) < 2:
                extra[i].append("s_mov_b32 m0, s32\ns_add_u32 s32, s32, 8192\nbuffer_load_dwordx4 v3, s[20:23], s33 offen lds\ns_add_u32 s33, s33, 8192"); nb_ += 1
        assert nb_ == EW
    if OPT.get("wo_touch", True):
        L = a.label("wt")
        wb0 = WS["WBAR"][0]; wsz = WS["WOF"][0] + WS["WOF"][1] - wb0
        extra[19].append(f"s_sub_u32 s56, s3, 3\ns_cmp_ge_u32 s56, 3\ns_cbranch_scc1 {L}\ns_lshr_b32 s57, s2, 3\ns_mul_i32 s57, s57, 3\ns_add_u32 s56, s56, s57\ns_lshl_b32 s56, s56, 13\n"
                         f"s_add_u32 s28, s14, {wb0}\ns_addc_u32 s29, s15, 0\ns_mov_b32 s30, {wsz}\ns_mov_b32 s31, 0x00020000\nv_lshlrev_b32 v206, 7, v0\nbuffer_load_dword v205, v206, s[28:31], s56 offen\n{L}:")
    if OPT["codepf"]:
        L = a.label("cp")
        extra[18].append(f"s_lshr_b32 s56, s2, 3\ns_cmp_ge_u32 s56, CODE_PF_N\ns_cbranch_scc1 {L}\ns_cmp_lg_u32 s3, 0\ns_cbranch_scc1 {L}\n"
                         f"s_getpc_b64 s[58:59]\n{L}_pc:\ns_add_u32 s58, s58, K2_out-{L}_pc\ns_addc_u32 s59, s59, 0\n"
                         f"s_lshl_b32 s56, s56, 13\nv_lshlrev_b32 v206, 7, v0\nv_add_u32 v206, s56, v206\nv_min_u32 v206, CODE_END-K2_out-4, v206\nglobal_load_dword v205, v206, s[58:59]\n{L}:")
    for i in range(32):
        cur, nxt = (SA, SB) if i % 2 == 0 else (SB, SA)
        q = qk(nxt, (i + 1) % 2, NMr) if i < 31 else ["", "", ""]
        vs_ = i % 2
        kr = rdK(i % 2, i + 2) if i + 2 < 32 else ["", "", ""]
        vrd = rdV((i + 1) % 2, i + 1) if i < 31 else [""] * 4
        e = [E(cur, g) for g in range(8)]
        ex = extra[i] + ["", ""]
        seq = list(pre[i])
        PP = OPT.get("pp", 4)
        if OPT["prio"] and i % PP in (0, OPT["prio"]):
            L = a.label("pr")
            seq.append(f"s_cmp_lt_u32 s3, 4\ns_cbranch_scc1 {L}\ns_setprio {2 if i % PP == 0 else 0}\n{L}:")
        seq += ["s_waitcnt lgkmcnt(0)", q[0]] + kr[0:2] + e[0]
        seq += [pvm(1 - vs_, 3) if i > 0 else ""] + kr[2:3] + vrd[0:1] + e[1]
        seq += [q[1]] + vrd[1:3] + e[2]
        seq += [pvm(vs_, 0)] + vrd[3:4] + e[3]
        seq += [q[2], ex[0]] + e[4] + e[5][:3]
        seq += [pvm(vs_, 1), ex[1]] + e[5][3:] + e[6][:2]
        seq += [pvm(vs_, 2)] + e[6][2:] + e[7]
        for x in seq:
            if x: a(x)
        if i % 8 == 7: st(3 + i // 8)
    a("s_nop 1"); a(pvm(1, 3))
    a("s_setprio 0\ns_nop 15")
    def bcast_l():
        a(f"v_mov_b32 v25, v{O+10}\nv_mov_b32 v26, v{O+10}\ns_nop 1\nv_permlane32_swap_b32 v25, v26\ns_nop 1")
    bcast_l()
    a(f"v_mov_b32 v26, {f32bits(2.0**60)}\nv_cmp_nle_f32 vcc, v25, v26\ns_nop 4\ns_cbranch_vccz K2_out")
    a("v_mov_b32 v24, 0xff800000")
    for ps in range(2):
        a(f"s_mov_b32 s52, 0\nv_mov_b32 v27, v{VKA}\nv_mov_b32 v28, v{VK2}\nv_mov_b32 v29, v{VVA}")
        a(f"K2_fb{ps}:")
        a(f"buffer_load_dwordx4 v[{KF}:{KF+3}], v27, s[16:19], 0 offen\nbuffer_load_dwordx4 v[{KF+4}:{KF+7}], v27, s[16:19], 0 offen offset:1024\nbuffer_load_dword v{K2F}, v28, s[16:19], 0 offen offset:2048")
        if ps:
            a("s_movk_i32 s53, 2304")
            for u in range(4): a(f"buffer_load_dwordx4 v[{VF+4*u}:{VF+4*u+3}], v29, s[16:19], s53 offen offset:{608*u}")
        a("s_waitcnt vmcnt(0)")
        q = qk(SA, 0, NMr if ps else "0")
        a(q[0]); a(q[1]); a("s_nop 9"); a(q[2]); a("s_nop 15\ns_nop 3")
        if ps == 0:
            for x in rowmax(SA, 24, False): a(x)
        else:
            for g in range(8):
                for x in E(SA, g): a(x)
            a("s_nop 1")
            for u in range(4): a(pvm(0, u))
        a(f"v_add_u32 v27, {PAIR}, v27\nv_add_u32 v28, {PAIR}, v28\nv_add_u32 v29, {PAIR}, v29")
        a(f"s_add_u32 s52, s52, 1\ns_cmp_lt_u32 s52, 32\ns_cbranch_scc1 K2_fb{ps}")
        if ps == 0:
            set_nm(24)
            for r in range(16): a(f"v_mov_b32 v{O+r}, 0")
    a("s_nop 15")
    bcast_l()
    a("K2_out:")
    WR, XR, ACC, XRES = 12, 40, 112, 140
    a("s_lshr_b32 s77, s2, 5\ns_and_b32 s78, s2, 7\ns_lshl_b32 s78, s78, 2\ns_bfe_u32 s43, s2, 0x20003\ns_add_u32 s78, s78, s43")
    a("s_cmp_ge_u32 s3, 4\ns_cbranch_scc1 K2_noearly")
    a("s_lshl_b32 s46, s78, 2\ns_add_u32 s46, s46, s3")
    ws_srd(a, 48, "MEAN1", 14)
    ws_srd(a, 52, "XC", 14)
    a(f"s_mul_i32 s47, s77, 3072\ns_mul_i32 s30, s46, 18432\ns_add_u32 s47, s47, s30")
    for u in range(3):
        a(f"buffer_load_dwordx4 v[{XRES+4*u}:{XRES+4*u+3}], v3, s[52:55], s47 offen offset:{1024*u}")
    a(f"v_and_b32 v166, 15, v0\nv_lshlrev_b32 v166, 2, v166\ns_lshl_b32 s65, s46, 6\nbuffer_load_dword v165, v166, s[48:51], s65 offen")
    a("K2_noearly:")
    a(f"s_lshl_b32 s43, s34, 10\ns_add_u32 s43, s43, {FL_RF}\nbuffer_load_dwordx4 v[160:163], v3, s[36:39], s43 offen sc1")
    a(f"v_rcp_f32 v25, v25\ns_nop 0")
    for r in range(10): a(f"v_mul_f32 v{O+r}, v{O+r}, v25")
    for r in range(5): a(f"v_cvt_pk_bf16_f32 v{P+r}, v{O+2*r}, v{O+2*r+1}")
    a(f"v_lshrrev_b32 v26, 4, v1\nv_mul_u32_u24 v27, {18*1024}, v26\nv_and_b32 v28, 15, v1\nv_lshl_add_u32 v27, v28, 4, v27\nv_lshl_add_u32 v27, v2, 8, v27")
    a(f"s_mul_i32 s42, s40, {36*1024}\ns_lshl_b32 s43, s41, 9\ns_add_u32 s43, s43, s42")
    a(f"buffer_store_dwordx4 v[{P}:{P+3}], v27, s[24:27], s43 offen sc1")
    OSC = 32 * PAIR + 1024
    a(f"s_lshr_b32 s43, s3, 2\ns_lshl_b32 s43, s43, 8\ns_and_b32 s44, s3, 3\ns_lshl_b32 s44, s44, 2\ns_add_u32 s43, s43, s44\ns_add_u32 s43, s43, {OSC}")
    a(f"v_lshlrev_b32 v26, 9, v26\nv_lshl_add_u32 v26, v28, 4, v26\nv_add_u32 v26, s43, v26\ns_mov_b64 exec, 0xffffffff\nds_write_b32 v26, v{P+4}\ns_mov_b64 exec, -1")
    a(f"v_mov_b32 v172, {ffn.CNT}\nv_mov_b32 v8, 1\nv_mov_b32 v9, 0\ns_lshl_b32 s79, s2, 7\ns_add_u32 s79, s79, {FL_OF}")
    a(f"v_add_u32 v4, {OSC}, v3\nv_mul_u32_u24 v5, {18*1024}, v2\nv_lshl_add_u32 v5, v1, 4, v5")
    a("s_and_b32 s43, s2, 3\ns_lshl_b32 s43, s43, 9\ns_add_u32 s43, s43, s42\ns_add_u32 s43, s43, 16384")
    a("s_waitcnt lgkmcnt(0)\ns_barrier")
    st(7)
    a("s_cmp_lg_u32 s3, 0\ns_cbranch_scc1 K3_norem")
    a("ds_read_b128 v[12:15], v4\ns_waitcnt lgkmcnt(0)\nbuffer_store_dwordx4 v[12:15], v5, s[24:27], s43 offen sc1")
    a("K3_norem:")
    a("v_lshlrev_b32 v2, 4, v0\ns_mov_b32 s40, s77\ns_mov_b32 s41, s78")
    a("s_waitcnt vmcnt(0)\ns_mov_b64 exec, 1\nds_add_rtn_u32 v168, v172, v8 offset:36\ns_waitcnt lgkmcnt(0)\nv_readfirstlane_b32 s70, v168\ns_cmp_lg_u32 s70, 7\ns_cbranch_scc1 K3_nofl")
    a("buffer_store_dword v8, v9, s[36:39], s79 offen sc1\nK3_nofl:\ns_mov_b64 exec, -1")
    a("s_cmp_ge_u32 s3, 4\ns_cbranch_scc1 K3_loader")
    a("v_add_u32 v3, 0x10000, v2\nv_add_u32 v4, 0x20000, v2\nv_and_b32 v5, 15, v0\nv_lshrrev_b32 v6, 4, v0\nv_lshlrev_b32 v7, 7, v0")
    a("v_lshlrev_b32 v11, 2, v5\nv_mov_b32 v10, v165")
    st(8)
    a("s_cmp_ge_u32 s40, 6\ns_cbranch_scc1 K4_compute")
    a(f"s_lshl_b32 s43, s41, 3\ns_lshr_b32 s44, s3, 1\ns_lshl_b32 s44, s44, 2\ns_add_u32 s43, s43, s44\ns_lshl_b32 s43, s43, 7\ns_add_u32 s43, s43, {FL_OF}")
    ws_srd(a, 52, "HC", 14)
    ws_srd(a, 56, "MU2", 14)
    ws_srd(a, 60, "SS", 14)
    a("s_barrier")
    st(13)
    for j in range(7):
        off = j * 1024 if j < 6 else 108 * 1024
        a(f"ds_read_b128 v[{12+4*j}:{15+4*j}], v{2 + off // 65536} offset:{off % 65536}")
    poll(a, 4, 7, 36, 43, 164, 1)
    st(9)
    def oload(ks):
        return ("s_add_u32 s30, s30, 4096\n" if ks and ks % 4 == 0 else "") + f"buffer_load_dwordx4 v[{XR+4*ks}:{XR+4*ks+3}], v2, s[24:27], s30 offen offset:{(ks%4)*1024} sc1"
    OD = OPT.get("k3_od", 6)
    for ks in range(OD): a(oload(ks))
    st(10)
    def wread(ks, j):
        off = (ks * 6 + j) * 1024 if j < 6 else (108 + ks) * 1024
        return f"ds_read_b128 v[{WR+4*j}:{WR+4*j+3}], v{2 + off // 65536} offset:{off % 65536}"
    nl = OD
    for ks in range(18):
        for j in range(7):
            a((f"s_waitcnt vmcnt({nl-1-ks}) " if j == 0 else "s_waitcnt ") + f"lgkmcnt({6 if ks < 17 else 6-j})")
            c = "0" if ks == 0 else f"v[{ACC+4*j}:{ACC+4*j+3}]"
            a(f"v_mfma_f32_16x16x32_bf16 v[{ACC+4*j}:{ACC+4*j+3}], v[{WR+4*j}:{WR+4*j+3}], v[{XR+4*ks}:{XR+4*ks+3}], {c}")
            if ks < 17: a(wread(ks + 1, j))
            if j in (1, 4) and nl < 18:
                a(oload(nl)); nl += 1
    a("s_barrier")
    st(11)
    e = ACC + 24
    a(f"s_nop 6\nv_add_f32 v10, v10, v{e}\nv_add_f32 v10, v10, v{e+1}\nv_mov_b32 v14, 0")
    for u in range(3):
        for r in range(4):
            x = XRES + 4 * u + r
            lo, hi = ACC + 8 * u + r, ACC + 8 * u + 4 + r
            a(f"v_lshlrev_b32 v12, 16, v{x}\nv_and_b32 v13, 0xffff0000, v{x}")
            a(f"v_add_f32 v{lo}, v{lo}, v12\nv_add_f32 v{hi}, v{hi}, v13")
            a(f"v_sub_f32 v{lo}, v{lo}, v10\nv_sub_f32 v{hi}, v{hi}, v10")
            a(f"v_cvt_pk_bf16_f32 v{XR+4*u+r}, v{lo}, v{hi}")
        a(f"buffer_store_dwordx4 v[{XR+4*u}:{XR+4*u+3}], v2, s[52:55], s47 offen offset:{1024*u} sc1")
    for i in range(12): a(f"v_dot2_f32_bf16 v14, v{XR+i}, v{XR+i}, v14")
    a("s_nop 2")
    sum_g(a, 14, 12)
    a("s_lshl_b32 s43, s41, 3\ns_add_u32 s43, s43, s40\ns_lshl_b32 s43, s43, 8\ns_lshl_b32 s44, s3, 6\ns_add_u32 s43, s43, s44\ns_mov_b64 exec, 0xffff")
    a("buffer_store_dword v14, v11, s[60:63], s43 offen sc1")
    a("s_cmp_lg_u32 s40, 0\ns_cbranch_scc1 K3_nomu\nbuffer_store_dword v10, v11, s[56:59], s65 offen sc1\nK3_nomu:")
    a(f"s_lshl_b32 s43, s46, 3\ns_add_u32 s43, s43, s40\ns_lshl_b32 s43, s43, 7\ns_add_u32 s43, s43, {FL_HF}")
    a("s_waitcnt vmcnt(0)\ns_mov_b64 exec, 1\nbuffer_store_dword v8, v9, s[36:39], s43 offen sc1\ns_mov_b64 exec, -1")
    st(12)
    a("s_branch K4_compute")
    a("K3_loader:")
    a(f"v_mov_b32 v4, {ffn.CNT}")
    a("s_sub_u32 s33, s3, 4\ns_cmp_ge_u32 s40, 6\ns_cbranch_scc1 K3_pf")
    ws_srd(a, 20, "WOF", 14)
    ws_srd(a, 68, "WBAR", 14)
    a(f"s_lshl_b32 s76, s33, 10\ns_mul_i32 s75, s40, {108*1024}\ns_add_u32 s74, s76, {EW*8192}\ns_add_u32 s75, s75, s74")
    for i in range(2*EW, 32):
        sd, so = ((20, 75) if i < 27 else (68, 76))
        a(f"s_mov_b32 m0, s74\ns_add_u32 s74, s74, 4096\nbuffer_load_dwordx4 v2, s[{sd}:{sd+3}], s{so} offen lds\ns_add_u32 s{so}, s{so}, 4096")
    a("s_waitcnt vmcnt(0)\ns_barrier")
    a("K3_pf:")
    a("s_cmp_ge_u32 s40, 6\ns_cbranch_scc1 K4_helper\ns_barrier\ns_branch K4_helper")
    k4(a, st)
    a("K2_end:\ns_endpgm\nCODE_END:")
    return kernel_desc("k2_kernel", 256)

def rf_check(a, first_loaded):
    L = a.label("rf")
    a(f"s_lshl_b32 s43, s34, 10\ns_add_u32 s43, s43, {FL_RF}\ns_mov_b32 s73, 0x8000" + (f"\ns_branch {L}_1" if first_loaded else ""))
    a(f"{L}:\nbuffer_load_dwordx4 v[160:163], v2, s[36:39], s43 offen sc1\ns_waitcnt vmcnt(0)\n{L}_1:\nv_and_b32 v12, v160, v161\nv_and_b32 v14, v162, v163\nv_and_b32 v12, v12, v14\nv_cmp_eq_u32 vcc, 1, v12\ns_nop 1")
    a(f"s_cmp_eq_u64 vcc, -1\ns_cbranch_scc1 {L}_ok\ns_sleep 2\ns_sub_u32 s73, s73, 1\ns_cbranch_scc0 {L}\n{L}_ok:")
def h_bases(a, sw):
    a("v_add_u32 v3, 0x10000, v2\nv_add_u32 v4, 0x20000, v2")
    a(f"s_mul_i32 s42, s{sw}, 3\ns_lshr_b32 s43, s42, 1\ns_lshl_b32 s43, s43, 12\ns_and_b32 s44, s42, 1\ns_lshl_b32 s45, s44, 3\ns_add_u32 s43, s43, s45\ns_add_u32 s43, s43, {ffn.HB}")
    a("v_add_u32 v5, s43, v2")
    a("s_mul_i32 s45, s44, 4080\ns_add_u32 s45, s45, 8\nv_add_u32 v6, s45, v5")
def k4(a, st0):
    st = lambda i: st0(20 + i)
    a("K4_compute:\ns_mov_b32 s40, s34\ns_mov_b32 s41, s35")
    rf_check(a, True)
    a(f"s_lshl_b32 s46, s40, 2\ns_add_u32 s46, s46, s3\ns_mul_i32 s31, s46, {324*1024}")
    ws_srd(a, 20, "WF", 14)
    cs = ffn.Stream(a, PAT(), srdW=20, sW=31, v_lane16=2, v_h8=5, v_p=7, v_one=10, ACC=16, XF=112, TMP=160, RB=176,
                    RINGF=(19 if st0.on else 20), stamp=st)
    cs.prefill(OPT.get("k4_pre", 18))
    a("s_setprio 2")
    h_bases(a, 3)
    a("v_and_b32 v12, 15, v0\nv_lshrrev_b32 v13, 4, v0\ns_lshr_b32 s45, s3, 1\nv_lshl_add_u32 v13, v13, 1, s45\nv_and_b32 v14, 7, v0\nv_xor_b32 v13, v13, v14")
    a("s_and_b32 s45, s3, 1\ns_lshl_b32 s45, s45, 3\nv_lshl_add_u32 v13, v13, 4, s45\nv_lshl_add_u32 v7, v12, 7, v13\nv_add_u32 v8, 0x8000, v7")
    a(f"v_mov_b32 v10, 1\nv_mov_b32 v11, {ffn.CNT}")
    cs.run()
    a("s_branch K4_work")
    PB, AC = 48, 112
    a("K4_helper:")
    a(f"s_setprio {OPT.get('k4_hprio', 0)}\ns_mov_b32 s40, s34\ns_mov_b32 s41, s35")
    a(f"s_mul_i32 s30, s41, 73728\ns_mul_i32 s90, s33, 18432\ns_add_u32 s30, s30, s90")
    ws_srd(a, 16, "HC", 14)
    a(f"s_lshl_b32 s43, s41, 2\ns_add_u32 s43, s43, s33\ns_lshl_b32 s43, s43, 10\ns_add_u32 s43, s43, {FL_HF}\nv_lshlrev_b32 v12, 7, v0")
    poll(a, 6, 12, 36, 43, 13, 1)
    st(9)
    for i in range(18):
        if i % 4 == 0: a("s_mov_b32 m0, s90\ns_add_u32 s90, s90, 4096")
        a(f"buffer_load_dwordx4 v2, s[16:19], s30 offen offset:{(i%4)*1024} sc1 lds")
        if i % 4 == 3: a("s_add_u32 s30, s30, 4096")
        if i >= 5 and i % 3 == 2: a("s_waitcnt vmcnt(3)\ns_barrier")
    a("s_waitcnt vmcnt(0)\ns_barrier")
    for i in range(ffn.N_BARRIERS_AFTER_X): a("s_barrier")
    NPUB = OPT.get("npub", 2)
    a(f"s_cmp_ge_u32 s33, {NPUB}\ns_cbranch_scc1 K4_work")
    def wait_cnt(L, slp):
        a(f"s_mov_b32 s72, 0x40000\n{L}:\nds_read_b32 v3, v4\ns_waitcnt lgkmcnt(0)\nv_readfirstlane_b32 s70, v3\ns_cmp_eq_u32 s70, 4\ns_cbranch_scc1 {L}_ok\ns_sleep {slp}\ns_sub_u32 s72, s72, 1\ns_cbranch_scc0 {L}\n{L}_ok:")
    SWZ = "v_lshrrev_b32 v5, 3, v0\nv_and_b32 v6, 7, v0\nv_xor_b32 v7, v5, v6\nv_lshlrev_b32 v7, 4, v7\nv_lshl_add_u32 v7, v5, 7, v7"
    ws_srd(a, 24, "PART", 14)
    a("s_mov_b32 s42, s33"); a(SWZ)
    a(f"s_lshl_b32 s44, s42, 13\nv_add_u32 v7, s44, v7\ns_lshl_b32 s44, s42, 2\ns_add_u32 s44, s44, {ffn.CNT}\nv_mov_b32 v4, s44")
    a("s_mul_i32 s49, s41, 9\ns_add_u32 s49, s49, s42\ns_lshl_b32 s47, s49, 16\ns_lshl_b32 s51, s49, 10")
    a("s_lshl_b32 s44, s40, 13\ns_add_u32 s47, s47, s44\ns_lshl_b32 s44, s40, 7\ns_add_u32 s51, s51, s44\nv_mov_b32 v13, 1\nv_mov_b32 v18, 0")
    a("K4_pub:")
    wait_cnt("K4_pw", 2)
    st0.dyn(34, 42)
    for i in range(8): a(f"ds_read_b128 v[{PB+4*i}:{PB+4*i+3}], v7 offset:{1024*i}")
    a("s_add_u32 s71, s47, 4096")
    for i in range(8):
        a(f"s_cmp_eq_u32 s40, {i}\ns_cbranch_scc1 K4_ps{i}\ns_waitcnt lgkmcnt({7-i})\nbuffer_store_dwordx4 v[{PB+4*i}:{PB+4*i+3}], v2, s[24:27], s{47 if i < 4 else 71} offen offset:{(i%4)*1024} sc1\nK4_ps{i}:")
    a("s_waitcnt vmcnt(0) lgkmcnt(0)\ns_mov_b64 exec, 1\nbuffer_store_dword v13, v18, s[36:39], s51 offen sc1\ns_mov_b64 exec, -1")
    st0.dyn(43, 42)
    a(f"s_add_u32 s42, s42, {NPUB}\ns_add_u32 s47, s47, {NPUB << 16}\ns_add_u32 s51, s51, {NPUB << 10}\nv_add_u32 v7, {NPUB << 13}, v7\nv_add_u32 v4, {4*NPUB}, v4\ns_cmp_lt_u32 s42, 9\ns_cbranch_scc1 K4_pub")
    a("K4_work:")
    a(f"v_mov_b32 v14, {ffn.CNT}\nv_mov_b32 v15, 1")
    TAKE = "s_mov_b64 exec, 1\nds_add_rtn_u32 v3, v14, v15 offset:40\ns_mov_b64 exec, -1\ns_waitcnt lgkmcnt(0)\nv_readfirstlane_b32 s42, v3\ns_cmp_ge_u32 s42, 9\ns_cbranch_scc1 K4_fin"
    a(TAKE)
    ws_srd(a, 16, "HC", 14)
    ws_srd(a, 24, "PART", 14)
    ws_srd(a, 52, "MU2", 14)
    ws_srd(a, 56, "SS", 14)
    srd(a, 60, 4, 0, T*DM*2)
    a(SWZ)
    a("s_lshl_b32 s43, s40, 3\nv_add_u32 v8, s43, v5")
    a("v_lshlrev_b32 v19, 2, v8\ns_lshl_b32 s44, s41, 8\ns_lshl_b32 s65, s41, 11\nbuffer_load_dword v140, v19, s[52:55], s44 offen sc1")
    for nb in range(6): a(f"buffer_load_dword v{144+nb}, v19, s[56:59], s65 offen offset:{256*nb} sc1")
    a("s_lshl_b32 s44, s40, 10\nv_add_u32 v9, s44, v7\nv_lshlrev_b32 v12, 7, v0")
    a("v_lshrrev_b32 v10, 4, v8\nv_mul_u32_u24 v10, 18432, v10\nv_lshl_add_u32 v10, v6, 8, v10\nv_and_b32 v11, 15, v8\nv_lshl_add_u32 v10, v11, 4, v10")
    a(f"v_mul_u32_u24 v11, {DM*2}, v8\nv_lshl_add_u32 v11, v6, 4, v11")
    a("v_and_b32 v19, 1, v0\nv_cmp_eq_u32 s[66:67], 1, v19\ns_mov_b32 s68, 0x00003f80\ns_mov_b32 s69, 0x3f800000\ns_mov_b32 s74, 0")
    a("K4_red:")
    a("s_mul_i32 s30, s41, 73728\ns_lshl_b32 s44, s42, 11\ns_add_u32 s30, s30, s44\nbuffer_load_dwordx4 v[20:23], v10, s[16:19], s30 offen sc1")
    a(f"s_mul_i32 s64, s41, {64*DM*2}\ns_lshl_b32 s44, s42, 7\ns_add_u32 s64, s64, s44")
    a(f"s_lshl_b32 s44, s42, 13\nv_add_u32 v7, s44, v9\ns_lshl_b32 s44, s42, 2\ns_add_u32 s44, s44, {ffn.CNT}\nv_mov_b32 v4, s44")
    a("s_mul_i32 s49, s41, 9\ns_add_u32 s49, s49, s42\ns_lshl_b32 s71, s49, 16\ns_lshl_b32 s51, s49, 10\ns_lshl_b32 s44, s40, 10\ns_add_u32 s71, s71, s44")
    wait_cnt("K4_rw", 4)
    poll(a, 8, 12, 36, 51, 3, OPT.get("red_slp", 2))
    st0.dyn(52, 42)
    for j in range(8):
        b = PB + 4*j
        a(f"s_cmp_eq_u32 s40, {j}\ns_cbranch_scc1 K4_ro{j}\nbuffer_load_dwordx4 v[{b}:{b+3}], v2, s[24:27], s71 offen sc1\ns_branch K4_rp{j}\nK4_ro{j}:\nds_read_b128 v[{b}:{b+3}], v7\nK4_rp{j}:\ns_add_u32 s71, s71, 8192")
    a("s_cmp_lg_u32 s74, 0\ns_cbranch_scc1 K4_hs\ns_mov_b32 s74, 1")
    a("v_add_f32 v144, v144, v145\nv_add_f32 v146, v146, v147\nv_add_f32 v148, v148, v149\nv_add_f32 v144, v144, v146\nv_add_f32 v144, v144, v148")
    a(f"v_mov_b32 v145, {f32bits(1e-5)}\nv_fmac_f32 v145, {f32bits(1.0/DM)}, v144\nv_rsq_f32 v142, v145\nK4_hs:")
    for i in range(4):
        a(f"v_lshlrev_b32 v{24+2*i}, 16, v{20+i}\nv_and_b32 v{25+2*i}, 0xffff0000, v{20+i}\nv_add_f32 v{24+2*i}, v{24+2*i}, v140\nv_add_f32 v{25+2*i}, v{25+2*i}, v140")
    a("s_waitcnt lgkmcnt(0)")
    for j in range(8):
        a(f"s_waitcnt vmcnt({max(0, 6-j)})")
        for qq in range(2):
            for p in range(2):
                src = PB + 4*j + 2*qq + p
                d0, d1 = AC + 4*p + qq, AC + 4*p + 2 + qq
                if OPT.get("red_dot", False):
                    for hh, d in ((0, d0), (1, d1)):
                        a(f"v_dot2_f32_bf16 v{d}, v{src}, s{68+hh}, {'0' if j == 0 else f'v{d}'}")
                elif j == 0:
                    a(f"v_lshlrev_b32 v{d0}, 16, v{src}\nv_and_b32 v{d1}, 0xffff0000, v{src}")
                else:
                    a(f"v_lshlrev_b32 v16, 16, v{src}\nv_and_b32 v{src}, 0xffff0000, v{src}\nv_add_f32 v{d0}, v{d0}, v16\nv_add_f32 v{d1}, v{d1}, v{src}")
    a("s_nop 2")
    for i in range(4):
        a(f"v_cndmask_b32 v{AC+8+i}, v{AC+4+i}, v{AC+i}, s[66:67]")
        a(f"v_cndmask_b32 v{AC+12+i}, v{AC+i}, v{AC+4+i}, s[66:67]")
    a("s_nop 1")
    for i in range(4):
        a(f"v_mov_b32_dpp v{AC+16+i}, v{AC+8+i} quad_perm:[1,0,3,2] row_mask:0xf bank_mask:0xf")
    for hlf in range(2):
        for e in range(2):
            k_, r_ = AC + 12 + 2*hlf + e, AC + 16 + 2*hlf + e
            a(f"v_cndmask_b32 v{AC+4*hlf+e}, v{k_}, v{r_}, s[66:67]\nv_cndmask_b32 v{AC+4*hlf+2+e}, v{r_}, v{k_}, s[66:67]")
    for i in range(4):
        a(f"v_fmac_f32 v{24+2*i}, v{AC+2*i}, v142\nv_fmac_f32 v{25+2*i}, v{AC+2*i+1}, v142\nv_cvt_pk_bf16_f32 v{40+i}, v{24+2*i}, v{25+2*i}")
    a("buffer_store_dwordx4 v[40:43], v11, s[60:63], s64 offen")
    st0.dyn(8, 42)
    a(TAKE + "\ns_branch K4_red")
    a("K4_fin:")
    st0.finish(14, 3, 8)

HEADER = open("cdna_kernels/" + NAME + ".s.ref").read().split("; Override launch geometry")[0]
def build(stamp_k=-1, force_fallback=False, light=False, **opt):
    LIGHT[0] = light
    OPT.update(opt)
    a = Asm()
    launches = [("k1_kernel", K1_GRID, 512, K1_LDS), ("k2_kernel", K2_GRID, 512, K2_LDS)]
    hdr = HEADER + "".join(f"; @launch kernel={k} grid=({g},1,1) block=({b},1,1) lds={l}\n" for k, g, b, l in launches)
    a('.amdgcn_target "amdgcn-amd-amdhsa--gfx950"\n.text')
    descs = [k1(a, stamp_k), k2(a, stamp_k, force_fallback)]
    a('.set CODE_PF_N, (CODE_END - K2_out + 8191) / 8192')
    a('.section .rodata,"a"')
    return hdr + a.text() + "".join(descs)

if __name__ == "__main__":
    out = sys.argv[1] if len(sys.argv) > 1 else "cdna_kernels/" + NAME + ".s"
    kw = eval("dict(" + (sys.argv[2] if len(sys.argv) > 2 else "") + ")")
    open(out, "w").write(build(**kw))
```

```python
import sys, math
from asmlib import *
from gemm import gemm_core
import ffn

T, DM, NH, DH, F = 2048, 576, 32, 18, 4608
NAME = "sequential_preLN__grouped_kv_mqa__dense_activation_relu__prompt"
A_X, A_WQ, A_WK, A_WV, A_WO, B_X, B_W1, B_W2, K_OUT, K_DBG, K_WS = [8 * i for i in range(11)]
def _al(x, a=4096): return (x + a - 1) // a * a
PAIR = 4736
FL_PF, FL_OF, FL_HF, FL_RF = 0, 294912, 294912 + 32768, 294912 + 32768 + 131072
FL_END = FL_RF + 8192
WS = {}
_o = 0
for nm, sz in [("Q", T*DM*2), ("KV", 32*PAIR), ("MEAN1", T*4), ("O", T*DM*2), ("HC", T*DM*2), ("MU2", T*4),
               ("SS", T*8*4), ("XC", T*DM*2), ("WBAR", 18*1024), ("WOF", 648*1024), ("WF", 2*DM*F*2),
               ("PART", 8*T*DM*2), ("FLAG", FL_END), ("STAMP", 16 << 20)]:
    WS[nm] = (_o, sz); _o += _al(sz)
WS_END = _o
QSCALE = math.log2(math.e) / math.sqrt(DH)
def f32bits(x):
    import struct
    return struct.unpack("<I", struct.pack("<f", x))[0]
ONES = 0x3f803f80

def ws_srd(a, d, nm, base):
    srd(a, d, base, WS[nm][0], WS[nm][1])

def wave_lane(a, s_wave=3):
    a(f"v_lshrrev_b32 v1, 6, v0\nv_and_b32 v0, 63, v0\ns_nop 0\nv_readfirstlane_b32 s{s_wave}, v1")

def sum_g(a, v, t):
    a(f"v_mov_b32 v{t}, v{v}\ns_nop 1\nv_permlane32_swap_b32 v{v}, v{t}\ns_nop 1\nv_add_f32 v{v}, v{v}, v{t}")
    a(f"v_mov_b32 v{t}, v{v}\ns_nop 1\nv_permlane16_swap_b32 v{v}, v{t}\ns_nop 1\nv_add_f32 v{v}, v{v}, v{t}")

LIGHT = [False]
OPT = dict(prio=3, k2_nt=True, codepf=True)
class Stamps:
    def __init__(self, a, on, kidx, vreg, vtmp):
        self.a, self.on, self.k, self.v, self.t = a, bool(on) or LIGHT[0], kidx, vreg, vtmp
        self.full = bool(on)
    def start(self):
        if OPT.get("dbgt"):
            self.a(f"s_load_dwordx2 s[100:101], s[0:1], {K_DBG}")
        if self.on:
            self.a(f"s_memrealtime s[96:97]\ns_memtime s[98:99]\nv_mov_b32 v{self.v}, 0\ns_waitcnt lgkmcnt(0)\nv_writelane_b32 v{self.v}, s96, 62")
    def __call__(self, i):
        if self.full or (self.on and i == 61):
            if OPT.get("rt") and i != 61:
                self.a(f"s_memrealtime s[96:97]\ns_waitcnt lgkmcnt(0)\nv_writelane_b32 v{self.v}, s96, {i}")
            else:
                self.a(f"s_memtime s[96:97]\ns_waitcnt lgkmcnt(0)\ns_sub_u32 s96, s96, s98\nv_writelane_b32 v{self.v}, s96, {i}")
    def dyn(self, base, sreg):
        if self.full:
            self.a(f"s_memrealtime s[96:97]\ns_add_u32 m0, s{sreg}, {base}\ns_waitcnt lgkmcnt(0)\nv_writelane_b32 v{self.v}, s96, m0")
    def finish(self, s_ws, s_wave, nw):
        if self.on:
            a = self.a
            a("s_waitcnt vmcnt(0)")
            self(61)
            a(f"s_memrealtime s[96:97]\ns_waitcnt lgkmcnt(0)\nv_writelane_b32 v{self.v}, s96, 63")
            ws_srd(a, 92, "STAMP", s_ws)
            a(f"s_lshl_b32 s96, s2, 3\ns_add_u32 s96, s96, s{s_wave}\ns_lshl_b32 s96, s96, 8\ns_add_u32 s96, s96, {self.k << 21}")
            a(f"v_mbcnt_lo_u32_b32 v{self.t}, -1, 0\nv_mbcnt_hi_u32_b32 v{self.t}, -1, v{self.t}\nv_lshlrev_b32 v{self.t}, 2, v{self.t}")
            a(f"buffer_store_dword v{self.v}, v{self.t}, s[92:95], s96 offen")
            if OPT.get("dbgt") and self.k == 2:
                L = a.label("dbg")
                a(f"s_cmp_lg_u32 s2, 8\ns_cbranch_scc1 {L}\ns_cmp_lg_u32 s{s_wave}, 0\ns_cbranch_scc1 {L}")
                a(f"s_mov_b32 s96, {1 << 21}\nbuffer_load_dword v20, v{self.t}, s[92:95], s96 offen\ns_mov_b32 s96, {(1 << 21) + 129*2048}\nbuffer_load_dword v21, v{self.t}, s[92:95], s96 offen\ns_waitcnt vmcnt(0)")
                items = [(20, 62), (20, 63), (21, 62), (21, 63), (self.v, 62), (self.v, 1), (self.v, 2), (self.v, 7), (self.v, 9), (self.v, 12), (self.v, 21), (self.v, 25), (self.v, 28), (self.v, 63)]
                a("v_mov_b32 v22, 0\ns_nop 1\nv_readlane_b32 s97, v20, 62\ns_nop 3")
                for i, (r, l) in enumerate(items):
                    a(f"v_readlane_b32 s96, v{r}, {l}\ns_nop 3\ns_sub_u32 s96, s96, s97\nv_writelane_b32 v22, s96, {i}")
                a(f"s_mov_b32 s92, s100\ns_mov_b32 s93, s101\ns_mov_b32 s94, 64\ns_mov_b32 s95, 0x00020000\nbuffer_store_dword v22, v{self.t}, s[92:95], 0 offen\n{L}:")


def PAT(): return OPT.get('pat', (3, 3, 2, 1))
class Repack:
    PR = 208
    def __init__(self, a): self.a = a
    def common(self):
        return (f"s_add_u32 s60, s14, {WS['WOF'][0]}\ns_addc_u32 s61, s15, 0\ns_mov_b32 s62, {WS['WF'][0] + WS['WF'][1] - WS['WOF'][0]}\ns_mov_b32 s63, 0x00020000\n"
                "v_and_b32 v6, 15, v0\nv_lshrrev_b32 v7, 4, v0\ns_mov_b32 s80, 0x05040100\ns_mov_b32 s81, 0x07060302")
    def regs(self, rnd): return 64 + 4 * rnd, 72 + 4 * rnd, 82 + 4 * rnd, 242 + rnd, 240 + rnd
    def setup_ffn(self, rnd, pw1, pw2):
        L = self.a.label("rp")
        SD, SB_, SO, vsrc, dst = self.regs(rnd)
        OWF = WS["WF"][0] - WS["WOF"][0]
        t = []; A = t.append
        A(f"s_mul_hi_u32 s46, s47, {(2**32 + 161)//162}\ns_mul_i32 s49, s46, 162\ns_sub_u32 s47, s47, s49")
        A(f"s_mul_hi_u32 s49, s47, {(2**32 + 8)//9}\ns_mul_i32 s50, s49, 9\ns_sub_u32 s50, s47, s50")
        A(f"s_mov_b32 s{SD+3}, 0x00020000\ns_lshl_b32 s54, s50, 7\nv_mov_b32 v{dst}, v3")
        A(f"s_cmp_lt_u32 s46, 2\ns_cselect_b32 s{SD+2}, {DM*F*2}, 0\ns_cselect_b32 s57, 0, 0x100000")
        A(f"s_mul_i32 s53, s45, 1296\ns_mul_i32 s55, s46, 162\ns_add_u32 s53, s53, s55\ns_add_u32 s53, s53, {OWF//1024}\ns_add_u32 s53, s53, s57")
        A(f"s_cmp_eq_u32 s46, 1\ns_cbranch_scc1 {L}_w2")
        A("s_mul_i32 s55, s49, 3\ns_add_u32 s53, s53, s55")
        for q in range(4):
            A(f"s_lshl_b32 s55, s50, 2\ns_add_u32 s55, s55, {q}\ns_mul_i32 s56, s55, 86\ns_lshr_b32 s56, s56, 8")
            A(f"s_lshr_b32 s58, s56, 2\ns_mul_i32 s58, s58, 1242\ns_mul_i32 s56, s56, 321\ns_sub_u32 s56, s56, s58")
            A(f"s_add_u32 s55, s55, s56\ns_add_u32 s55, s55, s53\ns_lshl_b32 s{SO+q}, s55, 10")
        A(f"s_mov_b32 s{SD}, s{pw1}\ns_mov_b32 s{SD+1}, s{pw1+1}\ns_mul_i32 s53, s49, {32*F*2}\ns_mul_i32 s55, s45, {DM*2}\ns_add_u32 s53, s53, s55\ns_add_u32 s{SB_}, s53, s54")
        A(f"s_mov_b32 s{SB_+1}, {4*F*2}\ns_mov_b32 s{SB_+2}, {2*F*2}\ns_mov_b32 s{SB_+3}, {F*2}")
        A(f"v_mul_u32_u24 v{vsrc}, {8*F*2}, v7\nv_lshl_add_u32 v{vsrc}, v6, 3, v{vsrc}\ns_branch {L}_done")
        A(f"{L}_w2:")
        idx, siz = 0, 0
        cb = 0
        for n in PAT():
            for i in range(n):
                idx |= i << (2 * (cb + i)); siz |= n << (2 * (cb + i))
            cb += n
        A(f"s_lshl_b32 s55, s50, 1\ns_lshr_b32 s56, {idx}, s55\ns_and_b32 s56, s56, 3\ns_lshr_b32 s58, {siz}, s55\ns_and_b32 s58, s58, 3")
        A("s_mul_i32 s58, s58, s49\ns_add_u32 s53, s53, s58\ns_mul_i32 s58, s50, 18\ns_add_u32 s53, s53, s58\ns_mul_i32 s56, s56, 17\ns_sub_u32 s53, s53, s56")
        A(f"s_lshl_b32 s{SO}, s53, 10\ns_add_u32 s{SO+1}, s{SO}, {324*1024}\ns_add_u32 s{SO+2}, s{SO}, {648*1024}\ns_add_u32 s{SO+3}, s{SO}, {972*1024}")
        A(f"s_mov_b32 s{SD}, s{pw2}\ns_mov_b32 s{SD+1}, s{pw2+1}\ns_lshr_b32 s53, s49, 1\ns_lshl_b32 s53, s53, 6\ns_and_b32 s55, s49, 1\ns_lshl_b32 s55, s55, 1\ns_add_u32 s53, s53, s55")
        A(f"s_mul_i32 s55, s45, {DM}\ns_add_u32 s53, s53, s55\ns_mul_i32 s53, s53, {DM*2}\ns_add_u32 s{SB_}, s53, s54")
        A(f"s_mov_b32 s{SB_+1}, {DM*2}\ns_mov_b32 s{SB_+2}, {8*DM*2}\ns_mov_b32 s{SB_+3}, {4*DM*2}")
        A(f"v_mul_u32_u24 v{vsrc}, {16*DM*2}, v7\nv_lshl_add_u32 v{vsrc}, v6, 3, v{vsrc}")
        A(f"{L}_done:")
        return "\n".join(t)
    def setup_wo(self, rnd, pwo):
        L = self.a.label("rp")
        SD, SB_, SO, vsrc, dst = self.regs(rnd)
        t = []; A = t.append
        A(f"s_mul_hi_u32 s49, s47, {(2**32 + 8)//9}\ns_mul_i32 s50, s49, 9\ns_sub_u32 s50, s47, s50")
        A(f"s_mov_b32 s{SD+3}, 0x00020000\ns_lshl_b32 s54, s50, 7")
        A(f"s_mov_b32 s{SD}, s{pwo}\ns_mov_b32 s{SD+1}, s{pwo+1}\ns_cmp_lt_u32 s47, 162\ns_cselect_b32 s{SD+2}, {DM*DM*2}, 0\ns_cselect_b32 s56, 0, 0x40000000")
        A(f"s_mul_i32 s55, s49, 6144\ns_add_u32 s{SO}, s56, s55\ns_add_u32 s{SO+1}, s{SO}, 1024\ns_add_u32 s{SO+2}, s{SO}, 16\ns_add_u32 s{SO+3}, s{SO}, 1040")
        A(f"s_lshl_b32 s55, s50, 1\nv_lshrrev_b32 v245, 3, v6\nv_add_u32 v245, s55, v245\nv_mul_u32_u24 v246, 86, v245\nv_lshrrev_b32 v246, 8, v246")
        A(f"v_mul_u32_u24 v246, 51, v246\nv_add_u32 v245, v245, v246\nv_lshlrev_b32 v245, 11, v245")
        A(f"v_and_b32 v246, 7, v6\nv_lshl_add_u32 v245, v246, 5, v245\nv_lshl_add_u32 v{dst}, v7, 8, v245")
        A(f"s_mov_b32 s{SB_+3}, {DM*2}\ns_cmp_ge_u32 s49, 16\ns_cbranch_scc1 {L}_wo2")
        A(f"s_mul_i32 s53, s49, {36*DM*2}\ns_mov_b32 s{SB_+1}, {8*DM*2}\ns_mov_b32 s{SB_+2}, {2*DM*2}")
        A(f"v_lshrrev_b32 v246, 1, v7\nv_mul_u32_u24 v246, 18, v246\nv_and_b32 v247, 1, v7\nv_lshl_add_u32 v246, v247, 2, v246\ns_branch {L}_wo3")
        A(f"{L}_wo2:")
        A(f"s_sub_u32 s53, s49, 16\ns_mul_i32 s53, s53, {288*DM*2}\ns_add_u32 s53, s53, {16*DM*2}\ns_mov_b32 s{SB_+1}, {36*DM*2}\ns_mov_b32 s{SB_+2}, {18*DM*2}")
        A(f"v_mul_u32_u24 v246, 72, v7")
        A(f"{L}_wo3:")
        A(f"s_add_u32 s{SB_}, s53, s54\nv_mul_u32_u24 v{vsrc}, {DM*2}, v246\nv_lshl_add_u32 v{vsrc}, v6, 3, v{vsrc}")
        return "\n".join(t)
    def load(self, rnd, s_, flag=""):
        SD, SB_, SO, vsrc, dst = self.regs(rnd)
        raw = self.PR + 16 * rnd
        t = f"s_mov_b32 s55, s{SB_}\n"
        if s_ & 4: t += f"s_add_u32 s55, s55, s{SB_+1}\n"
        if s_ & 2: t += f"s_add_u32 s55, s55, s{SB_+2}\n"
        if s_ & 1: t += f"s_add_u32 s55, s55, s{SB_+3}\n"
        return t + f"buffer_load_dwordx2 v[{raw+2*s_}:{raw+2*s_+1}], v{vsrc}, s[{SD}:{SD+3}], s55 offen{flag}"
    def store(self, rnd, q_, flag=""):
        SD, SB_, SO, vsrc, dst = self.regs(rnd)
        raw = self.PR + 16 * rnd
        t = 196 + 4 * (q_ % 2)
        L = [f"v_perm_b32 v{t+j}, v{raw+2*(2*j+1)+(q_>>1)}, v{raw+2*(2*j)+(q_>>1)}, s{80+(q_&1)}" for j in range(4)]
        L.append(f"buffer_store_dwordx4 v[{t}:{t+3}], v{dst}, s[60:63], s{SO+q_} offen{flag}")
        return "\n".join(L)
    def touch(self, rnd):
        SD, SB_, SO, vsrc, dst = self.regs(rnd)
        return "s_mov_b64 exec, 0xff\nv_lshlrev_b32 v204, 7, v0\n" + "\n".join(f"buffer_load_dword v205, v204, s[60:63], s{SO+q} offen" for q in range(4)) + "\ns_mov_b64 exec, -1"

def ffn_map(sj, smb):
    SL = OPT.get("k4_sl", 1); lg = SL.bit_length() - 1
    return (f"s_and_b32 s46, s2, 7\ns_lshr_b32 s47, s2, 3\ns_and_b32 s{sj}, s46, {8//SL-1}\ns_lshl_b32 s{sj}, s{sj}, {lg}\ns_and_b32 s48, s47, {SL-1}\ns_add_u32 s{sj}, s{sj}, s48\n"
            f"s_lshr_b32 s{smb}, s46, {3-lg}\ns_lshl_b32 s{smb}, s{smb}, {5-lg}\ns_lshr_b32 s48, s47, {lg}\ns_add_u32 s{smb}, s{smb}, s48\n")

def poll(a, n, voff, srd_, soff, vt, slp=2):
    L = a.label("poll")
    a(f"s_mov_b32 s73, 0x8000\ns_mov_b64 exec, {(1 << n) - 1}")
    a(f"{L}:\nbuffer_load_dword v{vt}, v{voff}, s[{srd_}:{srd_+3}], s{soff} offen sc1\ns_waitcnt vmcnt(0)\nv_cmp_eq_u32 vcc, 1, v{vt}\ns_nop 1\ns_cmp_eq_u32 vcc_lo, {(1 << n) - 1}\ns_cbranch_scc1 {L}_ok\ns_sleep {slp}\ns_sub_u32 s73, s73, 1\ns_cbranch_scc0 {L}\n{L}_ok:")
    a("s_mov_b64 exec, -1")

K1_GRID = 256
K1_LDS = 159744 + 1280
def k1(a, stamp_k=-1):
    st = Stamps(a, stamp_k == 1, 1, 250, 251)
    XLQ, XLK = 73728, 86016
    KVI = 21504
    ST = OPT.get('k1_st', ' sc1')
    kernel_begin(a, "k1_kernel")
    if OPT["codepf"]:
        a(f"s_cmp_ge_u32 s2, {OPT.get('pfn', 64)}\ns_cbranch_scc1 K1_nopf")
        a("s_getpc_b64 s[58:59]\nK1_pc:\nv_lshlrev_b32 v252, 7, v0\nv_min_u32 v252, K2_out-K1_pc, v252\nglobal_load_dword v253, v252, s[58:59]")
        a("K1_nopf:")
    a(f"s_cmp_ge_u32 s2, {K1_GRID}\ns_cbranch_scc1 K1_end")
    a(f"s_load_dwordx4 s[4:7], s[0:1], {A_X}\ns_load_dwordx4 s[8:11], s[0:1], {A_WK}\ns_load_dwordx2 s[12:13], s[0:1], {A_WO}\ns_load_dwordx2 s[14:15], s[0:1], {K_WS}")
    st.start()
    wave_lane(a)
    a("v_and_b32 v1, 15, v0\nv_lshrrev_b32 v2, 4, v0")
    a("s_bfe_u32 s44, s2, 0x20001\ns_lshl_b32 s44, s44, 3\ns_bfe_u32 s61, s2, 0x30003\ns_add_u32 s44, s44, s61\ns_and_b32 s45, s2, 1\ns_lshl_b32 s45, s45, 2\ns_lshr_b32 s62, s2, 6\ns_add_u32 s45, s45, s62")
    a("s_mul_i32 s60, s62, 9\ns_lshr_b32 s60, s60, 2\ns_add_u32 s60, s60, s61\ns_and_b32 s61, s2, 7\ns_add_u32 s60, s60, s61")
    a("s_mul_i32 s61, s60, 57\ns_lshr_b32 s61, s61, 9\ns_mul_i32 s61, s61, 9\ns_sub_u32 s60, s60, s61")
    a(f"s_cmp_eq_u32 s45, 6\ns_cselect_b32 s60, 0, s60\ns_mov_b32 s63, {XLQ}\ns_cselect_b32 s63, {XLK}, s63")
    a("v_lshrrev_b32 v4, 3, v0\nv_and_b32 v5, 7, v0")
    EX = 159744
    X0 = 16
    AR = 172
    ACC, CS, RS, GR, WF, ON = 88, 192, 112, 116, 120, 168
    ONr = f"v[{ON}:{ON+3}]"
    def V4(b): return f"v[{b}:{b+3}]"
    def lane_rc():
        a("v_lshrrev_b32 v10, 2, v1\nv_and_b32 v11, 3, v1\nv_lshl_add_u32 v12, v2, 3, v10")
    def xaddr(sbase):
        a(f"v_and_b32 v7, 7, v1\nv_xor_b32 v8, v2, v7\nv_lshlrev_b32 v8, 4, v8\nv_lshl_add_u32 v8, v1, 7, v8\nv_add_u32 v8, s{sbase}, v8\nv_xor_b32 v9, 64, v8")
        a("v_add_u32 v190, 0x8000, v8\nv_add_u32 v191, 0x8000, v9")
    def xrd(reg, ks, extra=0):
        p, e = divmod(ks, 2)
        b, o = (8 + e, 8192 * p) if p < 4 else (190 + e, 8192 * (p - 4))
        return f"ds_read_b128 {V4(reg)}, v{b} offset:{o + extra}"
    def waddr(shalf):
        a("v_lshrrev_b32 v13, 1, v10\nv_and_b32 v14, 1, v2\nv_lshl_add_u32 v13, v14, 1, v13")
        a("v_lshlrev_b32 v15, 7, v12\nv_lshl_add_u32 v15, v11, 3, v15\nv_lshlrev_b32 v7, 6, v12\nv_lshl_add_u32 v7, v11, 3, v7\nv_add_u32 v7, 4096, v7")
        a(f"s_cmp_eq_u32 s{shalf}, 1\ns_cselect_b64 vcc, -1, 0\ns_mul_i32 s55, s{shalf}, 3")
        a(f"v_xor_b32 v184, s55, v13\nv_lshl_add_u32 v{AR}, v184, 5, v15\nv_add_u32 v{AR+3}, 512, v{AR}")
        for t in (1, 2):
            a(f"v_xor_b32 v184, {t}, v13\nv_lshl_add_u32 v184, v184, 5, v15\nv_xor_b32 v185, {t-1}, v14\nv_lshl_add_u32 v185, v185, 5, v7")
            a(f"v_cndmask_b32 v{AR+t}, v184, v185, vcc\nv_add_u32 v184, 512, v184\nv_add_u32 v185, 256, v185\nv_cndmask_b32 v{AR+3+t}, v184, v185, vcc")
        for i in range(6): a(f"v_add_u32 v{AR+6+i}, {9*6144}, v{AR+i}")
    def wrd(reg, ks, t):
        hi = ks >= 9
        off = (ks - 9 * hi) * 6144
        return [f"ds_read_b64_tr_b16 v[{reg}:{reg+1}], v{AR+6*hi+t} offset:{off}", f"ds_read_b64_tr_b16 v[{reg+2}:{reg+3}], v{AR+6*hi+3+t} offset:{off}"]
    def stat_mfma(x, first):
        return [f"v_mfma_f32_16x16x32_bf16 {V4(RS)}, {ONr}, {V4(x)}, {'0' if first else V4(RS)}",
                f"v_mfma_f32_16x16x32_bf16 {V4(GR)}, {V4(x)}, {V4(x)}, {'0' if first else V4(GR)}"]
    def stats_out():
        a("v_cmp_eq_u32 vcc, 1, v11\nv_cmp_eq_u32 s[54:55], 2, v11\nv_cmp_eq_u32 s[56:57], 3, v11\nv_cmp_eq_u32 s[58:59], v10, v2\ns_nop 3")
        a(f"v_mul_f32 v4, {f32bits(-1.0/DM)}, v{RS}")
        a(f"v_cndmask_b32 v5, v{GR}, v{GR+1}, vcc\nv_cndmask_b32 v5, v5, v{GR+2}, s[54:55]\nv_cndmask_b32 v5, v5, v{GR+3}, s[56:57]\nv_cndmask_b32 v5, 0, v5, s[58:59]")
        sum_g(a, 5, 7)
        a(f"v_mul_f32 v5, {f32bits(1.0/DM)}, v5\nv_fma_f32 v5, -v4, v4, v5\nv_max_f32 v5, 0, v5\nv_add_f32 v5, {f32bits(1e-5)}, v5\nv_rsq_f32 v5, v5")
        a(f"s_lshl_b32 s54, s3, 7\ns_add_u32 s54, s54, {EX + 768}\nv_lshlrev_b32 v7, 3, v1\nv_add_u32 v7, s54, v7\nds_write_b64 v7, v[4:5]")
    a("s_cmp_lt_u32 s3, 4\ns_cbranch_scc1 K1_comp")
    a("s_cmp_eq_u32 s45, 7\ns_cbranch_scc1 K1_worp")
    a("s_sub_u32 s3, s3, 4")
    a("s_cmp_eq_u32 s45, 6\ns_cbranch_scc1 K1_kvload")
    a("v_and_b32 v6, 1, v2\ns_and_b32 s48, s3, 1\ns_lshl_b32 s48, s48, 2\nv_lshlrev_b32 v6, 1, v6\nv_or_b32 v6, s48, v6\nv_xor_b32 v6, v6, v5")
    a(f"v_mul_u32_u24 v3, {DM*2}, v4\nv_lshl_add_u32 v3, v6, 4, v3")
    a("v_lshrrev_b32 v7, 5, v0\nv_lshlrev_b32 v7, 1, v7\nv_and_b32 v6, 3, v0\nv_xor_b32 v7, v7, v6\nv_lshrrev_b32 v6, 2, v0")
    a(f"v_mul_u32_u24 v6, {DM*2}, v6\nv_lshl_add_u32 v6, v7, 4, v6")
    a("s_mul_i32 s48, s45, 192\ns_and_b32 s53, s45, 1\ns_lshl_b32 s54, s53, 6\ns_add_u32 s49, s48, s54\ns_xor_b32 s53, s53, 1\ns_lshl_b32 s53, s53, 7\ns_add_u32 s50, s48, s53")
    a(f"s_mul_i32 s53, s3, {8*DM*2}\ns_add_u32 s49, s49, s53\ns_mul_i32 s53, s3, {16*DM*2}\ns_add_u32 s50, s50, s53")
    a("s_lshl_b32 s51, s3, 10")
    a("s_lshr_b32 s52, s3, 1\ns_mul_i32 s52, s52, 6144\ns_and_b32 s53, s3, 1\ns_lshl_b32 s53, s53, 10\ns_add_u32 s52, s52, s53\ns_add_u32 s52, s52, 4096")
    a(f"s_mul_i32 s61, s60, {64*DM*2}")
    a("s_waitcnt lgkmcnt(0)")
    srd(a, 20, 6, 0, DM*DM*2)
    def wdma():
        a(f"s_add_u32 s62, s49, s61\ns_add_u32 s65, s50, s61\ns_add_u32 s64, s62, {32*DM*2}")
        a(f"s_mov_b32 m0, s51\ns_add_u32 s51, s51, 6144\nbuffer_load_dwordx4 v3, s[20:23], s62 offen lds")
        a(f"s_mov_b32 m0, s52\ns_add_u32 s52, s52, 12288\nbuffer_load_dwordx4 v6, s[20:23], s65 offen lds")
        a(f"s_mov_b32 m0, s51\ns_add_u32 s51, s51, 6144\nbuffer_load_dwordx4 v3, s[20:23], s64 offen lds")
        a(f"s_add_u32 s61, s61, {64*DM*2}\ns_cmp_eq_u32 s61, {DM*DM*2}\ns_cselect_b32 s61, 0, s61")
    LA = OPT.get('k1_la', 3)
    for t in range(LA): wdma()
    lane_rc()
    a("s_lshl_b32 s66, s3, 11\ns_add_u32 s66, s66, s63\ns_lshr_b32 s67, s3, 1")
    xaddr(66); waddr(67)
    a("s_and_b32 s55, s3, 1\ns_mul_i32 s55, s55, 6144")
    for i in range(12): a(f"v_add_u32 v{AR+i}, s55, v{AR+i}")
    for r in range(4): a(f"v_mov_b32 v{ON+r}, {ONES}")
    for p in range(10):
        if p < 9:
            a(f"s_waitcnt vmcnt({3*(min(p + LA, 9) - p - 1)}) lgkmcnt(0)\ns_barrier")
            b = (p % 2) * 20
            a(xrd(X0 + b, 2*p)); a(xrd(X0 + b + 4, 2*p + 1))
            for t in range(3):
                for x in wrd(X0 + b + 8 + 4*t, 2*p if p != 4 else 8, t): a(x)
        else:
            a("s_waitcnt lgkmcnt(0)")
        if p > 0:
            b = ((p - 1) % 2) * 20
            for x in stat_mfma(X0 + b, p == 1) + stat_mfma(X0 + b + 4, False): a(x)
            for t in range(3):
                a(f"v_mfma_f32_16x16x32_bf16 {V4(CS+4*t)}, {V4(X0+b+8+4*t)}, {ONr}, {'0' if p == 1 else V4(CS+4*t)}")
        if p + LA < 9: wdma()
    stats_out()
    a(f"s_mul_i32 s54, s3, 192\ns_add_u32 s54, s54, {EX}\nv_lshlrev_b32 v7, 4, v2\nv_add_u32 v7, s54, v7")
    for t in range(3): a(f"ds_write_b128 v7, {V4(CS+4*t)} offset:{64*t}")
    a("s_waitcnt lgkmcnt(0)\ns_barrier\ns_branch K1_end")
    a("K1_comp:")
    a("s_cmp_eq_u32 s45, 7\ns_cbranch_scc1 K1_wbar")
    a("s_lshl_b32 s46, s44, 6\ns_lshl_b32 s47, s3, 4\ns_add_u32 s46, s46, s47")
    a(f"s_mul_i32 s47, s46, {DM*2}")
    a(f"v_xor_b32 v6, v4, v5\nv_mul_u32_u24 v3, {DM*2}, v4\nv_lshl_add_u32 v3, v6, 4, v3\nv_add_u32 v6, {8*DM*2 - 1024}, v3")
    a(f"s_lshl_b32 s61, s60, 7\ns_lshl_b32 s64, s3, 11\ns_add_u32 s64, s63, s64\ns_mov_b32 s66, s64")
    a("s_waitcnt lgkmcnt(0)")
    srd(a, 16, 4, 0, T*DM*2)
    def xdma():
        return ("s_mov_b32 m0, s64\ns_add_u32 s62, s47, s61\ns_add_u32 s64, s64, 8192\n"
                "buffer_load_dwordx4 v3, s[16:19], s62 offen lds\nbuffer_load_dwordx4 v6, s[16:19], s62 offen offset:1024 lds\n"
                f"s_add_u32 s61, s61, 128\ns_cmp_eq_u32 s61, {DM*2}\ns_cselect_b32 s61, 0, s61")
    XA = OPT.get("k1_xa", 4)
    for p in range(XA): a(xdma())
    st(0)
    lane_rc()
    a("s_cmp_eq_u32 s45, 6\ns_cbranch_scc1 K1_kvgemm")
    a("s_and_b32 s68, s3, 1\ns_lshl_b32 s66, s68, 12\ns_add_u32 s66, s66, s63\ns_lshr_b32 s67, s3, 1")
    xaddr(66); waddr(67)
    ws_srd(a, 32, "Q", 14)
    def frags(ks):
        b = X0 + (ks % 2) * 20
        L = [xrd(b, ks), xrd(b + 4, ks, 2048)]
        for t in range(3): L += wrd(b + 8 + 4*t, ks, t)
        return L
    nx = XA
    a(f"s_waitcnt vmcnt({2*XA-2})\ns_barrier")
    st(2)
    for x in frags(0): a(x)
    for ks in range(18):
        p = ks // 2
        if ks % 2 == 1 and ks < 17:
            a(f"s_waitcnt vmcnt({2*(nx - p - 2)})" + (" lgkmcnt(6)" if ks == 9 else "") + "\ns_barrier")
        b = X0 + (ks % 2) * 20
        nf = frags(ks + 1) if ks < 17 else []
        issued = 0
        for t in range(3):
            a(f"s_waitcnt lgkmcnt({4 - 2*t + issued})")
            for m in range(2):
                d = ACC + (t*2 + m) * 4
                a(f"v_mfma_f32_16x16x32_bf16 {V4(d)}, {V4(b+8+4*t)}, {V4(b+4*m)}, {'0' if ks == 0 else V4(d)}")
                for x in nf[:2]: a(x); issued += 1
                nf = nf[2:]
        if ks % 2 == 0 and nx < 9:
            a(xdma()); nx += 1
    st(3)
    a("v_lshlrev_b32 v3, 3, v0")
    a(f"s_lshl_b32 s48, s44, 1\ns_add_u32 s48, s48, s68\ns_mul_i32 s48, s48, {4*9216}")
    a("s_mul_i32 s49, s45, 6\ns_and_b32 s50, s45, 1\ns_lshl_b32 s51, s50, 1\ns_add_u32 s51, s51, s49\ns_lshl_b32 s50, s50, 2\ns_sub_u32 s52, s49, s50\ns_mul_i32 s69, s67, 3")
    a(f"s_mul_i32 s54, s67, 384\ns_add_u32 s54, s54, {EX}\nv_lshlrev_b32 v7, 4, v2\nv_add_u32 v7, s54, v7")
    a(f"s_lshl_b32 s54, s68, 8\ns_add_u32 s54, s54, {EX + 768}\nv_lshlrev_b32 v8, 3, v1\nv_add_u32 v8, s54, v8")
    a("s_barrier")
    a("ds_read_b64 v[12:13], v8\nds_read_b64 v[14:15], v8 offset:128")
    for i in range(6): a(f"ds_read_b128 {V4(CS+4*i)}, v7 offset:{64*i}")
    a(f"s_waitcnt lgkmcnt(0)\nv_mul_f32 v13, {f32bits(QSCALE)}, v13\nv_mul_f32 v15, {f32bits(QSCALE)}, v15")
    for t in range(3):
        a(f"s_add_u32 s53, s69, {t}\ns_cmp_lt_u32 s53, 4\ns_cselect_b32 s54, s51, s52\ns_add_u32 s53, s53, s54")
        a("s_mul_i32 s54, s53, 57\ns_lshr_b32 s54, s54, 9\ns_mul_i32 s54, s54, 4608\ns_lshl_b32 s53, s53, 9\ns_add_u32 s53, s53, s54\ns_add_u32 s53, s53, s48\ns_add_u32 s55, s53, 4608")
        for r in range(4): a(f"v_add_f32 v{CS+4*t+r}, v{CS+4*t+r}, v{CS+12+4*t+r}")
        for m in range(2):
            b = ACC + (t*2 + m) * 4
            for r in range(4): a(f"v_fmac_f32 v{b+r}, v{CS+4*t+r}, v{12+2*m}\nv_mul_f32 v{b+r}, v{b+r}, v{13+2*m}")
            a(f"v_cvt_pk_bf16_f32 v{b}, v{b}, v{b+1}\nv_cvt_pk_bf16_f32 v{b+1}, v{b+2}, v{b+3}")
            a(f"buffer_store_dwordx2 v[{b}:{b+1}], v3, s[32:35], s{53+2*m} offen{ST}")
    a("s_branch K1_fin")
    def kaddr():
        a(f"v_mul_u32_u24 v13, 36, v12\nv_lshl_add_u32 v13, v11, 3, v13\nv_and_b32 v14, 1, v10\nv_mul_u32_u24 v14, {KVI - 4}, v14\nv_add_u32 v{AR}, v13, v14")
    a("K1_kvload:")
    a(f"v_lshlrev_b32 v3, 4, v0\ns_and_b32 s48, s3, 1\ns_lshl_b32 s48, s48, 2\ns_mul_i32 s49, s3, {KVI}")
    a("s_waitcnt lgkmcnt(0)")
    a(f"s_cmp_lt_u32 s3, 2\ns_cselect_b32 s24, s8, s10\ns_cselect_b32 s25, s9, s11\ns_mov_b32 s26, {DM*DH*2}\ns_mov_b32 s27, 0x00020000")
    for i in range(21):
        if i % 4 == 0: a("s_mov_b32 m0, s49\ns_add_u32 s49, s49, 4096")
        a(f"buffer_load_dwordx4 v3, s[24:27], s48 offen offset:{(i%4)*1024} lds")
        if i % 4 == 3: a("s_add_u32 s48, s48, 4096")
    lane_rc()
    a("s_lshl_b32 s66, s3, 11\ns_add_u32 s66, s66, s63")
    xaddr(66); kaddr()
    a(f"s_and_b32 s55, s3, 1\ns_mul_i32 s55, s55, {2*KVI}\ns_lshr_b32 s56, s3, 1\ns_lshl_b32 s56, s56, 5\ns_add_u32 s55, s55, s56\nv_add_u32 v{AR}, s55, v{AR}")
    for r in range(4): a(f"v_mov_b32 v{ON+r}, {ONES}")
    ws_srd(a, 40, "MEAN1", 14)
    ws_srd(a, 68, "XC", 14)
    a(f"s_lshl_b32 s46, s44, 2\ns_add_u32 s46, s46, s3\ns_mul_i32 s48, s46, 18432")
    a("s_waitcnt vmcnt(0)\ns_barrier")
    def kl(ks):
        w = WF + (ks % 4) * 4
        return [xrd(X0 + 4*ks, ks), f"ds_read_b64_tr_b16 v[{w}:{w+1}], v{AR} offset:{ks*1152}", f"ds_read_b64_tr_b16 v[{w+2}:{w+3}], v{AR} offset:{ks*1152 + 144}"]
    for ks in range(3):
        for x in kl(ks): a(x)
    for ks in range(18):
        a(f"s_waitcnt lgkmcnt({3*min(2, 17-ks)})")
        for x in stat_mfma(X0 + 4*ks, ks == 0): a(x)
        a(f"v_mfma_f32_16x16x32_bf16 {V4(CS)}, {V4(WF + (ks % 4) * 4)}, {ONr}, {'0' if ks == 0 else V4(CS)}")
        if ks + 3 < 18:
            for x in kl(ks + 3): a(x)
        if ks and ks % 4 == 0: a("s_add_u32 s48, s48, 4096")
        a(f"buffer_store_dwordx4 {V4(X0+4*ks)}, v3, s[68:71], s48 offen offset:{(ks%4)*1024}{ST}")
    stats_out()
    a(f"s_lshl_b32 s54, s3, 6\ns_add_u32 s54, s54, {EX}\nv_lshlrev_b32 v7, 4, v2\nv_add_u32 v7, s54, v7\nds_write_b128 v7, {V4(CS)}")
    a("s_waitcnt lgkmcnt(0)\ns_barrier")
    a("v_sub_f32 v9, 0, v4\nv_lshlrev_b32 v7, 2, v1\nv_lshl_add_u32 v7, v2, 20, v7\ns_lshl_b32 s49, s46, 6\nbuffer_store_dword v9, v7, s[40:43], s49 offen")
    a("s_branch K1_end")
    a("K1_worp:\ns_waitcnt lgkmcnt(0)\nv_lshlrev_b32 v3, 4, v0")
    rp = Repack(a)
    a(rp.common())
    for rnd in range(2):
        a(f"s_lshl_b32 s47, s44, 2\ns_add_u32 s47, s47, s3\ns_add_u32 s47, s47, {128*rnd - 4 & 0xffffffff}")
        a(rp.setup_wo(rnd, 12))
        for n in range(8): a(rp.load(rnd, n))
    for rnd in range(2):
        a(f"s_waitcnt vmcnt({8 if rnd == 0 else 4})")
        for n in range(4): a(rp.store(rnd, n) + "\ns_nop 1")
    a("s_branch K1_end")
    a("K1_kvgemm:")
    for p in range(XA, 9): a(xdma())
    ws_srd(a, 36, "KV", 14)
    xaddr(66); kaddr()
    for ks in range(18):
        if ks % 2 == 0: a(f"s_waitcnt vmcnt({16 - ks})")
        a(xrd(X0 + 4*ks, ks))
    st(20)
    a("s_barrier")
    st(22)
    def kread(ks):
        L = []
        for j in range(4):
            w = WF + ((ks % 2) * 4 + j) * 4
            o = ks * 1152 + (j & 1) * 2 * KVI + (j >> 1) * 32
            L += [f"ds_read_b64_tr_b16 v[{w}:{w+1}], v{AR} offset:{o}", f"ds_read_b64_tr_b16 v[{w+2}:{w+3}], v{AR} offset:{o + 144}"]
        return L
    for x in kread(0): a(x)
    for ks in range(18):
        x = V4(X0 + 4*ks)
        fill = kread(ks + 1) if ks < 17 else []
        for j in range(4):
            w = V4(WF + ((ks % 2) * 4 + j) * 4)
            a(f"s_waitcnt lgkmcnt({6 if ks < 17 else 6 - 2*j})")
            A_, B_ = (w, x) if j % 2 == 0 else (x, w)
            a(f"v_mfma_f32_16x16x32_bf16 {V4(ACC+4*j)}, {A_}, {B_}, {'0' if ks == 0 else V4(ACC+4*j)}")
            for y in fill[:2]: a(y)
            fill = fill[2:]
    st(23)
    a(f"s_mul_i32 s48, s44, {PAIR}")
    a(f"s_lshl_b32 s54, s3, 7\ns_add_u32 s54, s54, {EX + 768}\nv_lshlrev_b32 v7, 3, v1\nv_add_u32 v7, s54, v7\nv_lshlrev_b32 v8, 5, v2\nv_add_u32 v8, s54, v8")
    a(f"v_lshlrev_b32 v9, 4, v2\nv_add_u32 v9, {EX}, v9\nv_lshlrev_b32 v10, 2, v1\nv_add_u32 v10, {EX}, v10\nv_mov_b32 v{ON}, {ONES}")
    a("s_barrier")
    a(f"ds_read_b64 v[4:5], v7\nds_read_b128 v[216:219], v8\nds_read_b128 v[220:223], v8 offset:16\nds_read_b128 {V4(CS)}, v9\nds_read_b128 {V4(CS+8)}, v9 offset:128")
    a(f"ds_read_b32 v{CS+4}, v10 offset:64\nds_read_b32 v{CS+12}, v10 offset:192")
    a("v_lshrrev_b32 v7, 1, v2\nv_lshlrev_b32 v7, 9, v7\nv_lshl_add_u32 v7, v1, 4, v7\nv_and_b32 v8, 1, v2\nv_lshl_add_u32 v7, v8, 3, v7")
    a("s_lshr_b32 s49, s3, 1\ns_lshl_b32 s49, s49, 10\ns_and_b32 s50, s3, 1\ns_lshl_b32 s50, s50, 8\ns_add_u32 s49, s49, s50\ns_add_u32 s49, s49, s48")
    a("s_waitcnt lgkmcnt(0)")
    b = ACC
    for r in range(4): a(f"v_fmac_f32 v{b+r}, v{CS+r}, v4\nv_mul_f32 v{b+r}, v{b+r}, v5")
    a(f"v_cvt_pk_bf16_f32 v{b}, v{b}, v{b+1}\nv_cvt_pk_bf16_f32 v{b+1}, v{b+2}, v{b+3}")
    a(f"buffer_store_dwordx2 v[{b}:{b+1}], v7, s[36:39], s49 offen")
    b = ACC + 8
    for r in range(2): a(f"v_fmac_f32 v{b+r}, v{CS+8+r}, v4\nv_mul_f32 v{b+r}, v{b+r}, v5")
    a(f"v_cvt_pk_bf16_f32 v{b}, v{b}, v{b+1}")
    a("v_lshlrev_b32 v7, 2, v1\nv_lshl_add_u32 v7, v2, 20, v7\ns_lshl_b32 s49, s3, 6\ns_add_u32 s49, s49, s48")
    a(f"buffer_store_dword v{b}, v7, s[36:39], s49 offen offset:2048")
    a("v_and_b32 v8, 1, v2\nv_mul_u32_u24 v8, 19, v8\nv_add_u32 v8, v8, v1\nv_lshlrev_b32 v8, 4, v8\nv_lshrrev_b32 v10, 1, v2\nv_lshl_add_u32 v8, v10, 3, v8")
    a("s_mul_i32 s49, s3, 608\ns_add_u32 s49, s49, s48")
    for i, b in enumerate((4, 12)):
        for r in range(4): a(f"v_fmac_f32 v{ACC+b+r}, v{CS+b}, v{216+2*r}\nv_mul_f32 v{ACC+b+r}, v{ACC+b+r}, v{217+2*r}")
        b += ACC
        a(f"v_cvt_pk_bf16_f32 v{b}, v{b}, v{b+1}\nv_cvt_pk_bf16_f32 v{b+1}, v{b+2}, v{b+3}")
        if i == 0:
            a(f"buffer_store_dwordx2 v[{b}:{b+1}], v8, s[36:39], s49 offen offset:2304")
        else:
            a(f"v_cmp_eq_u32 vcc, 2, v1\ns_nop 1\nv_cndmask_b32 v{b}, v{b}, v{ON}, vcc\nv_cndmask_b32 v{b+1}, v{b+1}, v{ON}, vcc")
            a("v_cmp_gt_u32 vcc, 3, v1\ns_and_saveexec_b64 s[54:55], vcc")
            a(f"buffer_store_dwordx2 v[{b}:{b+1}], v8, s[36:39], s49 offen offset:{2304 + 16*16}")
            a("s_mov_b64 exec, -1")
    a("s_branch K1_fin")
    a("K1_wbar:\ns_waitcnt lgkmcnt(0)")
    srd(a, 16, 12, 0, DM*DM*2)
    ws_srd(a, 20, "WBAR", 14)
    a("s_cmp_lt_u32 s44, 18\ns_cbranch_scc1 K1_wb0")
    ws_srd(a, 24, "FLAG", 14)
    a("s_sub_u32 s45, s44, 18\ns_lshl_b32 s45, s45, 2\ns_add_u32 s45, s45, s3\ns_lshl_b32 s46, s45, 13\nv_lshlrev_b32 v3, 7, v0")
    a(f"v_mov_b32 v8, 0\nv_mov_b32 v9, 0\nv_mov_b32 v10, 0\nv_mov_b32 v11, 0\nbuffer_store_dword v8, v3, s[24:27], s46 offen\ns_add_u32 s46, s46, {56*8192}\nbuffer_store_dword v8, v3, s[24:27], s46 offen")
    a(f"s_lshl_b32 s46, s45, 10\ns_add_u32 s46, s46, {FL_RF}\nv_lshlrev_b32 v3, 4, v0\nbuffer_store_dwordx4 v[8:11], v3, s[24:27], s46 offen\ns_branch K1_fin")
    a("K1_wb0:")
    a("v_lshrrev_b32 v3, 3, v0\nv_and_b32 v5, 7, v0")
    a("s_cmp_ge_u32 s44, 16\ns_cbranch_scc1 K1_wb_hi")
    a("s_mul_i32 s45, s44, 36\ns_lshr_b32 s46, s3, 1\ns_mul_i32 s46, s46, 18\ns_add_u32 s45, s45, s46\ns_and_b32 s46, s3, 1\ns_lshl_b32 s46, s46, 2\ns_add_u32 s45, s45, s46")
    a("v_lshrrev_b32 v4, 2, v3\nv_lshlrev_b32 v4, 3, v4\nv_and_b32 v6, 3, v3\nv_add_u32 v4, v4, v6")
    a("s_branch K1_wb_go")
    a("K1_wb_hi:")
    a("s_sub_u32 s45, s44, 16\ns_mul_i32 s45, s45, 288\ns_mul_i32 s46, s3, 72\ns_add_u32 s45, s45, s46\ns_add_u32 s45, s45, 16")
    a("v_lshrrev_b32 v4, 1, v3\nv_mul_u32_u24 v4, 18, v4\nv_and_b32 v6, 1, v3\nv_add_u32 v4, v4, v6")
    a("K1_wb_go:")
    a(f"s_mul_i32 s45, s45, {DM*2}\nv_mul_u32_u24 v4, {DM*2}, v4\nv_lshl_add_u32 v4, v5, 4, v4")
    for i in range(9):
        a(f"buffer_load_dwordx4 v[{16+4*i}:{19+4*i}], v4, s[16:19], s45 offen offset:{128*i}")
    a(f"s_mov_b32 s56, {ONES}\nv_mov_b32 v6, 0\nv_mov_b32 v7, 0\ns_waitcnt vmcnt(0)")
    for i in range(36):
        a(f"v_dot2_f32_bf16 v{6+i%2}, v{16+i}, s56, v{6+i%2}")
    a("s_nop 2\nv_add_f32 v6, v6, v7\ns_nop 1")
    for x in (1, 2, 4):
        a(f"ds_swizzle_b32 v7, v6 offset:{(x << 10) | 0x1f}\ns_waitcnt lgkmcnt(0)\nv_add_f32 v6, v6, v7")
    a(f"v_mul_f32 v6, {f32bits(1.0/DM)}, v6")
    a("v_cvt_pk_bf16_f32 v7, v6, v6\nv_lshlrev_b32 v8, 16, v7\nv_sub_f32 v8, v6, v8\nv_cvt_pk_bf16_f32 v8, v8, v8")
    a("v_lshlrev_b32 v9, 5, v5\nv_lshl_add_u32 v9, v3, 1, v9")
    a(f"s_lshl_b32 s46, s44, 10\ns_lshl_b32 s47, s3, 8\ns_add_u32 s46, s46, s47")
    a(f"buffer_store_short v7, v9, s[20:23], s46 offen\nbuffer_store_short v8, v9, s[20:23], s46 offen offset:16")
    a("K1_fin:")
    st.finish(14, 3, 4)
    a("K1_end:\ns_endpgm")
    return kernel_desc("k1_kernel", 256)

K2_GRID = 256
K2_LDS = 32 * PAIR + 9216
def k2(a, stamp_k=-1, force_fallback=False):
    st = Stamps(a, stamp_k == 2, 2, 255, 254)
    kernel_begin(a, "k2_kernel")
    a(f"s_cmp_ge_u32 s2, {K2_GRID}\ns_cbranch_scc1 K2_end")
    a(f"s_load_dwordx2 s[14:15], s[0:1], {K_WS}\ns_load_dwordx2 s[4:5], s[0:1], {K_OUT}\ns_load_dwordx4 s[8:11], s[0:1], {B_W1}")
    st.start()
    wave_lane(a)
    a("v_and_b32 v1, 31, v0\nv_lshrrev_b32 v2, 5, v0\nv_lshlrev_b32 v3, 4, v0")
    a("s_lshr_b32 s40, s2, 2\ns_and_b32 s41, s2, 3\ns_lshl_b32 s41, s41, 3\ns_add_u32 s41, s41, s3")
    a(f"s_mul_i32 s42, s2, 9216\ns_lshl_b32 s43, s3, 10\ns_add_u32 s42, s42, s43\ns_add_u32 s43, s43, {32*PAIR}")
    a("s_lshl_b32 s44, s3, 10")
    a("s_waitcnt lgkmcnt(0)")
    ws_srd(a, 16, "KV", 14)
    ws_srd(a, 20, "Q", 14)
    Q1, Q2 = 8, 12
    def dma(r):
        txt = f"s_mov_b32 m0, s44\ns_nop 0\nbuffer_load_dwordx4 v3, s[16:19], s44 offen lds\ns_add_u32 s44, s44, 8192"
        if r == 18:
            L = a.label("dm")
            txt = f"s_cmp_ge_u32 s3, 4\ns_cbranch_scc1 {L}\n{txt}\n{L}:"
        return txt
    a("s_cmp_lg_u32 s3, 0\ns_cbranch_scc1 K2_q1")
    a(f"s_mov_b32 m0, {32*PAIR + 8192}\ns_add_u32 s45, s42, 8192\nbuffer_load_dwordx4 v3, s[20:23], s45 offen lds")
    a("K2_q1:")
    a("s_mov_b32 m0, s43\ns_nop 0\nbuffer_load_dwordx4 v3, s[20:23], s42 offen lds")
    a(dma(0)); a(dma(1)); a(dma(2))
    a(f"v_mov_b32 v{Q2+1}, 0")
    ws_srd(a, 24, "O", 14)
    a(f"v_lshrrev_b32 v4, 4, v1\nv_mul_u32_u24 v4, 4608, v4\nv_and_b32 v5, 15, v1\nv_lshl_add_u32 v4, v5, 3, v4\nv_add_u32 v4, {32*PAIR}, v4")
    a("s_mul_i32 s45, s3, 9\nv_lshlrev_b32 v5, 2, v2\nv_add_u32 v5, s45, v5")
    for i in range(5):
        if i < 4: a(f"v_add_u32 v30, {i}, v5")
        else: a("s_add_u32 s45, s45, 8\nv_mov_b32 v30, s45")
        a(f"v_lshrrev_b32 v31, 1, v30\nv_lshl_add_u32 v31, v31, 7, v4\nv_and_b32 v30, 1, v30\nv_lshl_add_u32 v{25+i}, v30, 2, v31")
    SEG = 13
    VKA, VK2, VVA = 14, 17, 20
    a(f"v_mul_u32_u24 v23, 19, v2\nv_add_u32 v23, v23, v1\nv_lshlrev_b32 v23, 4, v23\nv_mov_b32 v24, 0x40000\nv_cmp_gt_u32 vcc, 19, v1\ns_nop 1\nv_cndmask_b32 v{VVA}, v24, v23, vcc")
    a(f"v_mov_b32 v{VKA}, v3\nv_lshlrev_b32 v{VK2}, 2, v0")
    for b in (VKA, VK2, VVA):
        a(f"v_add_u32 v{b+1}, {SEG*PAIR}, v{b}\nv_add_u32 v{b+2}, {2*SEG*PAIR}, v{b}")
    SA, SB, P, O, NM = 32, 64, 96, 112, 128
    KF, K2F, VF = 144, 160, 164
    a(f"v_mov_b32 v{K2F+1}, 0\nv_mov_b32 v{K2F+3}, 0")
    for r in range(16): a(f"v_mov_b32 v{O+r}, 0")
    rp = Repack(a)
    def w3(txt):
        L = a.label("w3")
        return (f"s_cmp_lt_u32 s3, 5" if OPT.get("w3hi", True) else f"s_cmp_ge_u32 s3, 3") + f"\ns_cbranch_scc1 {L}\n{txt}\n{L}:"
    def seg(p): return p // SEG, (p % SEG) * PAIR
    def rdK(i, p):
        sg, o = seg(p)
        return [f"ds_read_b128 v[{KF+8*i}:{KF+8*i+3}], v{VKA+sg} offset:{o}",
                f"ds_read_b128 v[{KF+8*i+4}:{KF+8*i+7}], v{VKA+sg} offset:{o+1024}",
                f"ds_read_b32 v{K2F+2*i}, v{VK2+sg} offset:{o+2048}"]
    def rdV(i, p):
        sg, o = seg(p)
        return [f"ds_read_b128 v[{VF+16*i+4*q}:{VF+16*i+4*q+3}], v{VVA+sg} offset:{o+2304+608*q}" for q in range(4)]
    def qk(S, i, c):
        return [f"v_mfma_f32_32x32x16_bf16 v[{S}:{S+15}], v[{KF+8*i}:{KF+8*i+3}], v[{Q1}:{Q1+3}], {c}",
                f"v_mfma_f32_32x32x16_bf16 v[{S+16}:{S+31}], v[{KF+8*i+4}:{KF+8*i+7}], v[{Q1}:{Q1+3}], {c}",
                f"v_mfma_f32_32x32x4_2b_bf16 v[{S}:{S+31}], v[{K2F+2*i}:{K2F+2*i+1}], v[{Q2}:{Q2+1}], v[{S}:{S+31}]"]
    def pvm(vs_, u):
        return f"v_mfma_f32_32x32x16_bf16 v[{O}:{O+15}], v[{VF+16*vs_+4*u}:{VF+16*vs_+4*u+3}], v[{P+4*u}:{P+4*u+3}], v[{O}:{O+15}]"
    def rowmax(S, dst, first):
        L = []; r = 0
        if first:
            L.append(f"v_max_f32 v{dst}, v{S}, v{S+1}"); r = 2
        while r < 32:
            L.append(f"v_max3_f32 v{dst}, v{S+r}, v{S+r+1}, v{dst}"); r += 2
        return L
    def set_nm(src):
        a(f"v_mov_b32 v25, v{src}\ns_nop 1\nv_permlane32_swap_b32 v{src}, v25\ns_nop 1\nv_max_f32 v{src}, v{src}, v25")
        for r in range(16): a(f"v_sub_f32 v{NM+r}, 0, v{src}")
    def E(cur, g):
        b = cur + 4 * g
        return [f"v_exp_f32 v{b+r}, v{b+r}" for r in range(4)] + \
               [f"v_cvt_pk_bf16_f32 v{P+2*g}, v{b}, v{b+1}", f"v_cvt_pk_bf16_f32 v{P+2*g+1}, v{b+2}, v{b+3}"]
    NMr = f"v[{NM}:{NM+15}]"
    if OPT["prio"]: a("s_setprio 1")
    st(0)
    a("s_waitcnt vmcnt(2)\ns_barrier")
    st(1)
    for i in range(5): a(f"ds_read_b32 v{Q1+i}, v{25+i}")
    for x in rdK(0, 0) + rdK(1, 1) + rdV(0, 0): a(x)
    a("s_waitcnt lgkmcnt(7)")
    q = qk(SA, 0, "0")
    a(q[0]); a(q[1]); a("s_nop 9"); a(q[2]); a("s_nop 15\ns_nop 3")
    for x in rowmax(SA, 24, True): a(x)
    if force_fallback:
        a(f"v_add_f32 v24, {f32bits(-100.0)}, v24")
    set_nm(24)
    for r in range(32): a(f"v_add_f32 v{SA+r}, v{SA+r}, v{NM}")
    st(2)
    extra = {i: [] for i in range(32)}
    pre = {i: [] for i in range(32)}
    r = 3
    for i in range(8):
        extra[i] += [dma(r), dma(r + 1)]; r += 2
    pre[0].append("s_waitcnt vmcnt(0)\ns_barrier"); pre[3].append("s_waitcnt vmcnt(2)\ns_barrier"); pre[9].append(f"v_mov_b32 v196, 0\nv_mov_b32 v197, 0\nv_mov_b32 v198, 0\nv_mov_b32 v199, 0\nv_mov_b32 v200, {ffn.CNT}\nds_write_b128 v200, v[196:199]\nds_write_b128 v200, v[196:199] offset:16\nds_write_b128 v200, v[196:199] offset:32\ns_waitcnt vmcnt(0) lgkmcnt(0)\ns_barrier")
    nt_ = " nt" if OPT["k2_nt"] else ""
    def uidx(rnd):
        t = ("" if rnd else ffn_map(34, 35)) + f"s_mov_b32 s45, s34\ns_mul_i32 s47, s35, 11\ns_add_u32 s47, s47, s3\n"
        if rnd and OPT.get("w3hi", True): t += "s_add_u32 s47, s47, 3\ns_cmp_lt_u32 s3, 5\ns_cselect_b32 s47, 400, s47\n"
        elif rnd: t += "s_add_u32 s47, s47, 8\ns_cmp_ge_u32 s3, 3\ns_cselect_b32 s47, 400, s47\n"
        return t
    pre[8].append(rp.common() + "\n" + uidx(0) + rp.setup_ffn(0, 8, 10)); pre[9].insert(0, uidx(1) + rp.setup_ffn(1, 8, 10))
    for n in range(8):
        extra[9 + n // 2].append(rp.load(0, n, nt_))
        extra[13 + n // 2].append(w3(rp.load(1, n, nt_)))
    ST0 = OPT.get("k2_st0", 21)
    pre[ST0].append("s_waitcnt vmcnt(0)")
    for n in range(4):
        extra[ST0 + n // 2].append(rp.store(0, n, " sc1"))
        extra[ST0 + 2 + n // 2].append(w3(rp.store(1, n, " sc1")))
    FB = WS["FLAG"][0]
    pre[ST0 + 7].append("s_waitcnt vmcnt(0)")
    extra[ST0 + 7].append(f"s_add_u32 s36, s14, {FB}\ns_addc_u32 s37, s15, 0\ns_mov_b32 s38, {FL_END}\ns_mov_b32 s39, 0x00020000\n"
                          f"s_lshl_b32 s45, s34, 8\ns_lshl_b32 s46, s35, 3\ns_add_u32 s45, s45, s46\ns_add_u32 s45, s45, s3\ns_lshl_b32 s45, s45, 2\ns_add_u32 s45, s45, {FL_RF}\n"
                          "v_mov_b32 v206, 1\nv_mov_b32 v207, 0\ns_mov_b64 exec, 1\nbuffer_store_dword v206, v207, s[36:39], s45 offen sc1\ns_mov_b64 exec, -1")
    if OPT.get("k2_touch", True):
        extra[ST0 + 7].append(rp.touch(0)); extra[ST0 + 8].append(w3(rp.touch(1)))
    if OPT.get("tlb", False):
        L = a.label("tl")
        extra[17].append(f"s_cmp_lg_u32 s3, 7\ns_cbranch_scc1 {L}\ns_mov_b32 s28, s14\ns_mov_b32 s29, s15\ns_mov_b32 s30, {WS['STAMP'][0]}\ns_mov_b32 s31, 0x00020000\n"
                         f"v_lshlrev_b32 v206, 20, v0\nbuffer_load_dword v205, v206, s[28:31], 0 offen\n"
                         f"s_mov_b32 s28, s4\ns_mov_b32 s29, s5\ns_mov_b32 s30, {T*DM*2}\nbuffer_load_dword v205, v206, s[28:31], 0 offen\n{L}:")
    EW = OPT.get("wo_early", 10)
    if EW:
        wo0, wosz = WS["WOF"]
        pre[22].append(f"s_lshr_b32 s77, s2, 5\ns_add_u32 s20, s14, {wo0}\ns_addc_u32 s21, s15, 0\ns_mov_b32 s22, {wosz}\ns_mov_b32 s23, 0x00020000\n"
                       f"s_lshl_b32 s32, s3, 10\ns_mul_i32 s33, s77, {108*1024}\ns_add_u32 s33, s33, s32\ns_waitcnt lgkmcnt(0)\ns_barrier")
        nb_ = 0
        for i in list(range(25, 32)) + list(range(22, 32)):
            if nb_ < EW and len(extra[i]) < 2:
                extra[i].append("s_mov_b32 m0, s32\ns_add_u32 s32, s32, 8192\nbuffer_load_dwordx4 v3, s[20:23], s33 offen lds\ns_add_u32 s33, s33, 8192"); nb_ += 1
        assert nb_ == EW
    if OPT.get("wo_touch", True):
        L = a.label("wt")
        wb0 = WS["WBAR"][0]; wsz = WS["WOF"][0] + WS["WOF"][1] - wb0
        extra[19].append(f"s_sub_u32 s56, s3, 3\ns_cmp_ge_u32 s56, 3\ns_cbranch_scc1 {L}\ns_lshr_b32 s57, s2, 3\ns_mul_i32 s57, s57, 3\ns_add_u32 s56, s56, s57\ns_lshl_b32 s56, s56, 13\n"
                         f"s_add_u32 s28, s14, {wb0}\ns_addc_u32 s29, s15, 0\ns_mov_b32 s30, {wsz}\ns_mov_b32 s31, 0x00020000\nv_lshlrev_b32 v206, 7, v0\nbuffer_load_dword v205, v206, s[28:31], s56 offen\n{L}:")
    if OPT["codepf"]:
        L = a.label("cp")
        extra[18].append(f"s_lshr_b32 s56, s2, 3\ns_cmp_ge_u32 s56, CODE_PF_N\ns_cbranch_scc1 {L}\ns_cmp_lg_u32 s3, 0\ns_cbranch_scc1 {L}\n"
                         f"s_getpc_b64 s[58:59]\n{L}_pc:\ns_add_u32 s58, s58, K2_out-{L}_pc\ns_addc_u32 s59, s59, 0\n"
                         f"s_lshl_b32 s56, s56, 13\nv_lshlrev_b32 v206, 7, v0\nv_add_u32 v206, s56, v206\nv_min_u32 v206, CODE_END-K2_out-4, v206\nglobal_load_dword v205, v206, s[58:59]\n{L}:")
    for i in range(32):
        cur, nxt = (SA, SB) if i % 2 == 0 else (SB, SA)
        q = qk(nxt, (i + 1) % 2, NMr) if i < 31 else ["", "", ""]
        vs_ = i % 2
        kr = rdK(i % 2, i + 2) if i + 2 < 32 else ["", "", ""]
        vrd = rdV((i + 1) % 2, i + 1) if i < 31 else [""] * 4
        e = [E(cur, g) for g in range(8)]
        ex = extra[i] + ["", ""]
        seq = list(pre[i])
        PP = OPT.get("pp", 4)
        if OPT["prio"] and i % PP in (0, OPT["prio"]):
            L = a.label("pr")
            seq.append(f"s_cmp_lt_u32 s3, 4\ns_cbranch_scc1 {L}\ns_setprio {2 if i % PP == 0 else 0}\n{L}:")
        seq += ["s_waitcnt lgkmcnt(0)", q[0]] + kr[0:2] + e[0]
        seq += [pvm(1 - vs_, 3) if i > 0 else ""] + kr[2:3] + vrd[0:1] + e[1]
        seq += [q[1]] + vrd[1:3] + e[2]
        seq += [pvm(vs_, 0)] + vrd[3:4] + e[3]
        seq += [q[2], ex[0]] + e[4] + e[5][:3]
        seq += [pvm(vs_, 1), ex[1]] + e[5][3:] + e[6][:2]
        seq += [pvm(vs_, 2)] + e[6][2:] + e[7]
        for x in seq:
            if x: a(x)
        if i % 8 == 7: st(3 + i // 8)
    a("s_nop 1"); a(pvm(1, 3))
    a("s_setprio 0\ns_nop 15")
    def bcast_l():
        a(f"v_mov_b32 v25, v{O+10}\nv_mov_b32 v26, v{O+10}\ns_nop 1\nv_permlane32_swap_b32 v25, v26\ns_nop 1")
    bcast_l()
    a(f"v_mov_b32 v26, {f32bits(2.0**60)}\nv_cmp_nle_f32 vcc, v25, v26\ns_nop 4\ns_cbranch_vccz K2_out")
    a("v_mov_b32 v24, 0xff800000")
    for ps in range(2):
        a(f"s_mov_b32 s52, 0\nv_mov_b32 v27, v{VKA}\nv_mov_b32 v28, v{VK2}\nv_mov_b32 v29, v{VVA}")
        a(f"K2_fb{ps}:")
        a(f"buffer_load_dwordx4 v[{KF}:{KF+3}], v27, s[16:19], 0 offen\nbuffer_load_dwordx4 v[{KF+4}:{KF+7}], v27, s[16:19], 0 offen offset:1024\nbuffer_load_dword v{K2F}, v28, s[16:19], 0 offen offset:2048")
        if ps:
            a("s_movk_i32 s53, 2304")
            for u in range(4): a(f"buffer_load_dwordx4 v[{VF+4*u}:{VF+4*u+3}], v29, s[16:19], s53 offen offset:{608*u}")
        a("s_waitcnt vmcnt(0)")
        q = qk(SA, 0, NMr if ps else "0")
        a(q[0]); a(q[1]); a("s_nop 9"); a(q[2]); a("s_nop 15\ns_nop 3")
        if ps == 0:
            for x in rowmax(SA, 24, False): a(x)
        else:
            for g in range(8):
                for x in E(SA, g): a(x)
            a("s_nop 1")
            for u in range(4): a(pvm(0, u))
        a(f"v_add_u32 v27, {PAIR}, v27\nv_add_u32 v28, {PAIR}, v28\nv_add_u32 v29, {PAIR}, v29")
        a(f"s_add_u32 s52, s52, 1\ns_cmp_lt_u32 s52, 32\ns_cbranch_scc1 K2_fb{ps}")
        if ps == 0:
            set_nm(24)
            for r in range(16): a(f"v_mov_b32 v{O+r}, 0")
    a("s_nop 15")
    bcast_l()
    a("K2_out:")
    WR, XR, ACC, XRES = 12, 40, 112, 140
    a("s_lshr_b32 s77, s2, 5\ns_and_b32 s78, s2, 7\ns_lshl_b32 s78, s78, 2\ns_bfe_u32 s43, s2, 0x20003\ns_add_u32 s78, s78, s43")
    a("s_cmp_ge_u32 s3, 4\ns_cbranch_scc1 K2_noearly")
    a("s_lshl_b32 s46, s78, 2\ns_add_u32 s46, s46, s3")
    ws_srd(a, 48, "MEAN1", 14)
    ws_srd(a, 52, "XC", 14)
    a(f"s_mul_i32 s47, s77, 3072\ns_mul_i32 s30, s46, 18432\ns_add_u32 s47, s47, s30")
    for u in range(3):
        a(f"buffer_load_dwordx4 v[{XRES+4*u}:{XRES+4*u+3}], v3, s[52:55], s47 offen offset:{1024*u}")
    a(f"v_and_b32 v166, 15, v0\nv_lshlrev_b32 v166, 2, v166\ns_lshl_b32 s65, s46, 6\nbuffer_load_dword v165, v166, s[48:51], s65 offen")
    a("K2_noearly:")
    a(f"s_lshl_b32 s43, s34, 10\ns_add_u32 s43, s43, {FL_RF}\nbuffer_load_dwordx4 v[160:163], v3, s[36:39], s43 offen sc1")
    a(f"v_rcp_f32 v25, v25\ns_nop 0")
    for r in range(10): a(f"v_mul_f32 v{O+r}, v{O+r}, v25")
    for r in range(5): a(f"v_cvt_pk_bf16_f32 v{P+r}, v{O+2*r}, v{O+2*r+1}")
    a(f"v_lshrrev_b32 v26, 4, v1\nv_mul_u32_u24 v27, {18*1024}, v26\nv_and_b32 v28, 15, v1\nv_lshl_add_u32 v27, v28, 4, v27\nv_lshl_add_u32 v27, v2, 8, v27")
    a(f"s_mul_i32 s42, s40, {36*1024}\ns_lshl_b32 s43, s41, 9\ns_add_u32 s43, s43, s42")
    a(f"buffer_store_dwordx4 v[{P}:{P+3}], v27, s[24:27], s43 offen sc1")
    OSC = 32 * PAIR + 1024
    a(f"s_lshr_b32 s43, s3, 2\ns_lshl_b32 s43, s43, 8\ns_and_b32 s44, s3, 3\ns_lshl_b32 s44, s44, 2\ns_add_u32 s43, s43, s44\ns_add_u32 s43, s43, {OSC}")
    a(f"v_lshlrev_b32 v26, 9, v26\nv_lshl_add_u32 v26, v28, 4, v26\nv_add_u32 v26, s43, v26\ns_mov_b64 exec, 0xffffffff\nds_write_b32 v26, v{P+4}\ns_mov_b64 exec, -1")
    a(f"v_mov_b32 v172, {ffn.CNT}\nv_mov_b32 v8, 1\nv_mov_b32 v9, 0\ns_lshl_b32 s79, s2, 7\ns_add_u32 s79, s79, {FL_OF}")
    a(f"v_add_u32 v4, {OSC}, v3\nv_mul_u32_u24 v5, {18*1024}, v2\nv_lshl_add_u32 v5, v1, 4, v5")
    a("s_and_b32 s43, s2, 3\ns_lshl_b32 s43, s43, 9\ns_add_u32 s43, s43, s42\ns_add_u32 s43, s43, 16384")
    a("s_waitcnt lgkmcnt(0)\ns_barrier")
    st(7)
    a("s_cmp_lg_u32 s3, 0\ns_cbranch_scc1 K3_norem")
    a("ds_read_b128 v[12:15], v4\ns_waitcnt lgkmcnt(0)\nbuffer_store_dwordx4 v[12:15], v5, s[24:27], s43 offen sc1")
    a("K3_norem:")
    a("v_lshlrev_b32 v2, 4, v0\ns_mov_b32 s40, s77\ns_mov_b32 s41, s78")
    a("s_waitcnt vmcnt(0)\ns_mov_b64 exec, 1\nds_add_rtn_u32 v168, v172, v8 offset:36\ns_waitcnt lgkmcnt(0)\nv_readfirstlane_b32 s70, v168\ns_cmp_lg_u32 s70, 7\ns_cbranch_scc1 K3_nofl")
    a("buffer_store_dword v8, v9, s[36:39], s79 offen sc1\nK3_nofl:\ns_mov_b64 exec, -1")
    a("s_cmp_ge_u32 s3, 4\ns_cbranch_scc1 K3_loader")
    a("v_add_u32 v3, 0x10000, v2\nv_add_u32 v4, 0x20000, v2\nv_and_b32 v5, 15, v0\nv_lshrrev_b32 v6, 4, v0\nv_lshlrev_b32 v7, 7, v0")
    a("v_lshlrev_b32 v11, 2, v5\nv_mov_b32 v10, v165")
    st(8)
    a("s_cmp_ge_u32 s40, 6\ns_cbranch_scc1 K4_compute")
    a(f"s_lshl_b32 s43, s41, 3\ns_lshr_b32 s44, s3, 1\ns_lshl_b32 s44, s44, 2\ns_add_u32 s43, s43, s44\ns_lshl_b32 s43, s43, 7\ns_add_u32 s43, s43, {FL_OF}")
    ws_srd(a, 52, "HC", 14)
    ws_srd(a, 56, "MU2", 14)
    ws_srd(a, 60, "SS", 14)
    a("s_barrier")
    st(13)
    for j in range(7):
        off = j * 1024 if j < 6 else 108 * 1024
        a(f"ds_read_b128 v[{12+4*j}:{15+4*j}], v{2 + off // 65536} offset:{off % 65536}")
    poll(a, 4, 7, 36, 43, 164, 1)
    st(9)
    def oload(ks):
        return ("s_add_u32 s30, s30, 4096\n" if ks and ks % 4 == 0 else "") + f"buffer_load_dwordx4 v[{XR+4*ks}:{XR+4*ks+3}], v2, s[24:27], s30 offen offset:{(ks%4)*1024} sc1"
    OD = OPT.get("k3_od", 6)
    for ks in range(OD): a(oload(ks))
    st(10)
    def wread(ks, j):
        off = (ks * 6 + j) * 1024 if j < 6 else (108 + ks) * 1024
        return f"ds_read_b128 v[{WR+4*j}:{WR+4*j+3}], v{2 + off // 65536} offset:{off % 65536}"
    nl = OD
    for ks in range(18):
        for j in range(7):
            a((f"s_waitcnt vmcnt({nl-1-ks}) " if j == 0 else "s_waitcnt ") + f"lgkmcnt({6 if ks < 17 else 6-j})")
            c = "0" if ks == 0 else f"v[{ACC+4*j}:{ACC+4*j+3}]"
            a(f"v_mfma_f32_16x16x32_bf16 v[{ACC+4*j}:{ACC+4*j+3}], v[{WR+4*j}:{WR+4*j+3}], v[{XR+4*ks}:{XR+4*ks+3}], {c}")
            if ks < 17: a(wread(ks + 1, j))
            if j in (1, 4) and nl < 18:
                a(oload(nl)); nl += 1
    a("s_barrier")
    st(11)
    e = ACC + 24
    a(f"s_nop 6\nv_add_f32 v10, v10, v{e}\nv_add_f32 v10, v10, v{e+1}\nv_mov_b32 v14, 0")
    for u in range(3):
        for r in range(4):
            x = XRES + 4 * u + r
            lo, hi = ACC + 8 * u + r, ACC + 8 * u + 4 + r
            a(f"v_lshlrev_b32 v12, 16, v{x}\nv_and_b32 v13, 0xffff0000, v{x}")
            a(f"v_add_f32 v{lo}, v{lo}, v12\nv_add_f32 v{hi}, v{hi}, v13")
            a(f"v_sub_f32 v{lo}, v{lo}, v10\nv_sub_f32 v{hi}, v{hi}, v10")
            a(f"v_cvt_pk_bf16_f32 v{XR+4*u+r}, v{lo}, v{hi}")
        a(f"buffer_store_dwordx4 v[{XR+4*u}:{XR+4*u+3}], v2, s[52:55], s47 offen offset:{1024*u} sc1")
    for i in range(12): a(f"v_dot2_f32_bf16 v14, v{XR+i}, v{XR+i}, v14")
    a("s_nop 2")
    sum_g(a, 14, 12)
    a("s_lshl_b32 s43, s41, 3\ns_add_u32 s43, s43, s40\ns_lshl_b32 s43, s43, 8\ns_lshl_b32 s44, s3, 6\ns_add_u32 s43, s43, s44\ns_mov_b64 exec, 0xffff")
    a("buffer_store_dword v14, v11, s[60:63], s43 offen sc1")
    a("s_cmp_lg_u32 s40, 0\ns_cbranch_scc1 K3_nomu\nbuffer_store_dword v10, v11, s[56:59], s65 offen sc1\nK3_nomu:")
    a(f"s_lshl_b32 s43, s46, 3\ns_add_u32 s43, s43, s40\ns_lshl_b32 s43, s43, 7\ns_add_u32 s43, s43, {FL_HF}")
    a("s_waitcnt vmcnt(0)\ns_mov_b64 exec, 1\nbuffer_store_dword v8, v9, s[36:39], s43 offen sc1\ns_mov_b64 exec, -1")
    st(12)
    a("s_branch K4_compute")
    a("K3_loader:")
    a(f"v_mov_b32 v4, {ffn.CNT}")
    a("s_sub_u32 s33, s3, 4\ns_cmp_ge_u32 s40, 6\ns_cbranch_scc1 K3_pf")
    ws_srd(a, 20, "WOF", 14)
    ws_srd(a, 68, "WBAR", 14)
    a(f"s_lshl_b32 s76, s33, 10\ns_mul_i32 s75, s40, {108*1024}\ns_add_u32 s74, s76, {EW*8192}\ns_add_u32 s75, s75, s74")
    for i in range(2*EW, 32):
        sd, so = ((20, 75) if i < 27 else (68, 76))
        a(f"s_mov_b32 m0, s74\ns_add_u32 s74, s74, 4096\nbuffer_load_dwordx4 v2, s[{sd}:{sd+3}], s{so} offen lds\ns_add_u32 s{so}, s{so}, 4096")
    a("s_waitcnt vmcnt(0)\ns_barrier")
    a("K3_pf:")
    a("s_cmp_ge_u32 s40, 6\ns_cbranch_scc1 K4_helper\ns_barrier\ns_branch K4_helper")
    k4(a, st)
    a("K2_end:\ns_endpgm\nCODE_END:")
    return kernel_desc("k2_kernel", 256)

def rf_check(a, first_loaded):
    L = a.label("rf")
    a(f"s_lshl_b32 s43, s34, 10\ns_add_u32 s43, s43, {FL_RF}\ns_mov_b32 s73, 0x8000" + (f"\ns_branch {L}_1" if first_loaded else ""))
    a(f"{L}:\nbuffer_load_dwordx4 v[160:163], v2, s[36:39], s43 offen sc1\ns_waitcnt vmcnt(0)\n{L}_1:\nv_and_b32 v12, v160, v161\nv_and_b32 v14, v162, v163\nv_and_b32 v12, v12, v14\nv_cmp_eq_u32 vcc, 1, v12\ns_nop 1")
    a(f"s_cmp_eq_u64 vcc, -1\ns_cbranch_scc1 {L}_ok\ns_sleep 2\ns_sub_u32 s73, s73, 1\ns_cbranch_scc0 {L}\n{L}_ok:")
def h_bases(a, sw):
    a("v_add_u32 v3, 0x10000, v2\nv_add_u32 v4, 0x20000, v2")
    a(f"s_mul_i32 s42, s{sw}, 3\ns_lshr_b32 s43, s42, 1\ns_lshl_b32 s43, s43, 12\ns_and_b32 s44, s42, 1\ns_lshl_b32 s45, s44, 3\ns_add_u32 s43, s43, s45\ns_add_u32 s43, s43, {ffn.HB}")
    a("v_add_u32 v5, s43, v2")
    a("s_mul_i32 s45, s44, 4080\ns_add_u32 s45, s45, 8\nv_add_u32 v6, s45, v5")
def k4(a, st0):
    st = lambda i: st0(20 + i)
    a("K4_compute:\ns_mov_b32 s40, s34\ns_mov_b32 s41, s35")
    rf_check(a, True)
    a(f"s_lshl_b32 s46, s40, 2\ns_add_u32 s46, s46, s3\ns_mul_i32 s31, s46, {324*1024}")
    ws_srd(a, 20, "WF", 14)
    cs = ffn.Stream(a, PAT(), srdW=20, sW=31, v_lane16=2, v_h8=5, v_p=7, v_one=10, ACC=16, XF=112, TMP=160, RB=176,
                    RINGF=(19 if st0.on else 20), stamp=st)
    cs.prefill(OPT.get("k4_pre", 18))
    a("s_setprio 2")
    h_bases(a, 3)
    a("v_and_b32 v12, 15, v0\nv_lshrrev_b32 v13, 4, v0\ns_lshr_b32 s45, s3, 1\nv_lshl_add_u32 v13, v13, 1, s45\nv_and_b32 v14, 7, v0\nv_xor_b32 v13, v13, v14")
    a("s_and_b32 s45, s3, 1\ns_lshl_b32 s45, s45, 3\nv_lshl_add_u32 v13, v13, 4, s45\nv_lshl_add_u32 v7, v12, 7, v13\nv_add_u32 v8, 0x8000, v7")
    a(f"v_mov_b32 v10, 1\nv_mov_b32 v11, {ffn.CNT}")
    cs.run()
    a("s_branch K4_work")
    PB, AC = 48, 112
    a("K4_helper:")
    a(f"s_setprio {OPT.get('k4_hprio', 0)}\ns_mov_b32 s40, s34\ns_mov_b32 s41, s35")
    a(f"s_mul_i32 s30, s41, 73728\ns_mul_i32 s90, s33, 18432\ns_add_u32 s30, s30, s90")
    ws_srd(a, 16, "HC", 14)
    a(f"s_lshl_b32 s43, s41, 2\ns_add_u32 s43, s43, s33\ns_lshl_b32 s43, s43, 10\ns_add_u32 s43, s43, {FL_HF}\nv_lshlrev_b32 v12, 7, v0")
    poll(a, 6, 12, 36, 43, 13, 1)
    st(9)
    for i in range(18):
        if i % 4 == 0: a("s_mov_b32 m0, s90\ns_add_u32 s90, s90, 4096")
        a(f"buffer_load_dwordx4 v2, s[16:19], s30 offen offset:{(i%4)*1024} sc1 lds")
        if i % 4 == 3: a("s_add_u32 s30, s30, 4096")
        if i >= 5 and i % 3 == 2: a("s_waitcnt vmcnt(3)\ns_barrier")
    a("s_waitcnt vmcnt(0)\ns_barrier")
    for i in range(ffn.N_BARRIERS_AFTER_X): a("s_barrier")
    NPUB = OPT.get("npub", 2)
    a(f"s_cmp_ge_u32 s33, {NPUB}\ns_cbranch_scc1 K4_work")
    def wait_cnt(L, slp):
        a(f"s_mov_b32 s72, 0x40000\n{L}:\nds_read_b32 v3, v4\ns_waitcnt lgkmcnt(0)\nv_readfirstlane_b32 s70, v3\ns_cmp_eq_u32 s70, 4\ns_cbranch_scc1 {L}_ok\ns_sleep {slp}\ns_sub_u32 s72, s72, 1\ns_cbranch_scc0 {L}\n{L}_ok:")
    SWZ = "v_lshrrev_b32 v5, 3, v0\nv_and_b32 v6, 7, v0\nv_xor_b32 v7, v5, v6\nv_lshlrev_b32 v7, 4, v7\nv_lshl_add_u32 v7, v5, 7, v7"
    ws_srd(a, 24, "PART", 14)
    a("s_mov_b32 s42, s33"); a(SWZ)
    a(f"s_lshl_b32 s44, s42, 13\nv_add_u32 v7, s44, v7\ns_lshl_b32 s44, s42, 2\ns_add_u32 s44, s44, {ffn.CNT}\nv_mov_b32 v4, s44")
    a("s_mul_i32 s49, s41, 9\ns_add_u32 s49, s49, s42\ns_lshl_b32 s47, s49, 16\ns_lshl_b32 s51, s49, 10")
    a("s_lshl_b32 s44, s40, 13\ns_add_u32 s47, s47, s44\ns_lshl_b32 s44, s40, 7\ns_add_u32 s51, s51, s44\nv_mov_b32 v13, 1\nv_mov_b32 v18, 0")
    a("K4_pub:")
    wait_cnt("K4_pw", 2)
    st0.dyn(34, 42)
    for i in range(8): a(f"ds_read_b128 v[{PB+4*i}:{PB+4*i+3}], v7 offset:{1024*i}")
    a("s_add_u32 s71, s47, 4096")
    for i in range(8):
        a(f"s_cmp_eq_u32 s40, {i}\ns_cbranch_scc1 K4_ps{i}\ns_waitcnt lgkmcnt({7-i})\nbuffer_store_dwordx4 v[{PB+4*i}:{PB+4*i+3}], v2, s[24:27], s{47 if i < 4 else 71} offen offset:{(i%4)*1024} sc1\nK4_ps{i}:")
    a("s_waitcnt vmcnt(0) lgkmcnt(0)\ns_mov_b64 exec, 1\nbuffer_store_dword v13, v18, s[36:39], s51 offen sc1\ns_mov_b64 exec, -1")
    st0.dyn(43, 42)
    a(f"s_add_u32 s42, s42, {NPUB}\ns_add_u32 s47, s47, {NPUB << 16}\ns_add_u32 s51, s51, {NPUB << 10}\nv_add_u32 v7, {NPUB << 13}, v7\nv_add_u32 v4, {4*NPUB}, v4\ns_cmp_lt_u32 s42, 9\ns_cbranch_scc1 K4_pub")
    a("K4_work:")
    a(f"v_mov_b32 v14, {ffn.CNT}\nv_mov_b32 v15, 1")
    TAKE = "s_mov_b64 exec, 1\nds_add_rtn_u32 v3, v14, v15 offset:40\ns_mov_b64 exec, -1\ns_waitcnt lgkmcnt(0)\nv_readfirstlane_b32 s42, v3\ns_cmp_ge_u32 s42, 9\ns_cbranch_scc1 K4_fin"
    a(TAKE)
    ws_srd(a, 16, "HC", 14)
    ws_srd(a, 24, "PART", 14)
    ws_srd(a, 52, "MU2", 14)
    ws_srd(a, 56, "SS", 14)
    srd(a, 60, 4, 0, T*DM*2)
    a(SWZ)
    a("s_lshl_b32 s43, s40, 3\nv_add_u32 v8, s43, v5")
    a("v_lshlrev_b32 v19, 2, v8\ns_lshl_b32 s44, s41, 8\ns_lshl_b32 s65, s41, 11\nbuffer_load_dword v140, v19, s[52:55], s44 offen sc1")
    for nb in range(6): a(f"buffer_load_dword v{144+nb}, v19, s[56:59], s65 offen offset:{256*nb} sc1")
    a("s_lshl_b32 s44, s40, 10\nv_add_u32 v9, s44, v7\nv_lshlrev_b32 v12, 7, v0")
    a("v_lshrrev_b32 v10, 4, v8\nv_mul_u32_u24 v10, 18432, v10\nv_lshl_add_u32 v10, v6, 8, v10\nv_and_b32 v11, 15, v8\nv_lshl_add_u32 v10, v11, 4, v10")
    a(f"v_mul_u32_u24 v11, {DM*2}, v8\nv_lshl_add_u32 v11, v6, 4, v11")
    a("v_and_b32 v19, 1, v0\nv_cmp_eq_u32 s[66:67], 1, v19\ns_mov_b32 s68, 0x00003f80\ns_mov_b32 s69, 0x3f800000\ns_mov_b32 s74, 0")
    a("K4_red:")
    a("s_mul_i32 s30, s41, 73728\ns_lshl_b32 s44, s42, 11\ns_add_u32 s30, s30, s44\nbuffer_load_dwordx4 v[20:23], v10, s[16:19], s30 offen sc1")
    a(f"s_mul_i32 s64, s41, {64*DM*2}\ns_lshl_b32 s44, s42, 7\ns_add_u32 s64, s64, s44")
    a(f"s_lshl_b32 s44, s42, 13\nv_add_u32 v7, s44, v9\ns_lshl_b32 s44, s42, 2\ns_add_u32 s44, s44, {ffn.CNT}\nv_mov_b32 v4, s44")
    a("s_mul_i32 s49, s41, 9\ns_add_u32 s49, s49, s42\ns_lshl_b32 s71, s49, 16\ns_lshl_b32 s51, s49, 10\ns_lshl_b32 s44, s40, 10\ns_add_u32 s71, s71, s44")
    wait_cnt("K4_rw", 4)
    poll(a, 8, 12, 36, 51, 3, OPT.get("red_slp", 2))
    st0.dyn(52, 42)
    for j in range(8):
        b = PB + 4*j
        a(f"s_cmp_eq_u32 s40, {j}\ns_cbranch_scc1 K4_ro{j}\nbuffer_load_dwordx4 v[{b}:{b+3}], v2, s[24:27], s71 offen sc1\ns_branch K4_rp{j}\nK4_ro{j}:\nds_read_b128 v[{b}:{b+3}], v7\nK4_rp{j}:\ns_add_u32 s71, s71, 8192")
    a("s_cmp_lg_u32 s74, 0\ns_cbranch_scc1 K4_hs\ns_mov_b32 s74, 1")
    a("v_add_f32 v144, v144, v145\nv_add_f32 v146, v146, v147\nv_add_f32 v148, v148, v149\nv_add_f32 v144, v144, v146\nv_add_f32 v144, v144, v148")
    a(f"v_mov_b32 v145, {f32bits(1e-5)}\nv_fmac_f32 v145, {f32bits(1.0/DM)}, v144\nv_rsq_f32 v142, v145\nK4_hs:")
    for i in range(4):
        a(f"v_lshlrev_b32 v{24+2*i}, 16, v{20+i}\nv_and_b32 v{25+2*i}, 0xffff0000, v{20+i}\nv_add_f32 v{24+2*i}, v{24+2*i}, v140\nv_add_f32 v{25+2*i}, v{25+2*i}, v140")
    a("s_waitcnt lgkmcnt(0)")
    for j in range(8):
        a(f"s_waitcnt vmcnt({max(0, 6-j)})")
        for qq in range(2):
            for p in range(2):
                src = PB + 4*j + 2*qq + p
                d0, d1 = AC + 4*p + qq, AC + 4*p + 2 + qq
                if OPT.get("red_dot", False):
                    for hh, d in ((0, d0), (1, d1)):
                        a(f"v_dot2_f32_bf16 v{d}, v{src}, s{68+hh}, {'0' if j == 0 else f'v{d}'}")
                elif j == 0:
                    a(f"v_lshlrev_b32 v{d0}, 16, v{src}\nv_and_b32 v{d1}, 0xffff0000, v{src}")
                else:
                    a(f"v_lshlrev_b32 v16, 16, v{src}\nv_and_b32 v{src}, 0xffff0000, v{src}\nv_add_f32 v{d0}, v{d0}, v16\nv_add_f32 v{d1}, v{d1}, v{src}")
    a("s_nop 2")
    for i in range(4):
        a(f"v_cndmask_b32 v{AC+8+i}, v{AC+4+i}, v{AC+i}, s[66:67]")
        a(f"v_cndmask_b32 v{AC+12+i}, v{AC+i}, v{AC+4+i}, s[66:67]")
    a("s_nop 1")
    for i in range(4):
        a(f"v_mov_b32_dpp v{AC+16+i}, v{AC+8+i} quad_perm:[1,0,3,2] row_mask:0xf bank_mask:0xf")
    for hlf in range(2):
        for e in range(2):
            k_, r_ = AC + 12 + 2*hlf + e, AC + 16 + 2*hlf + e
            a(f"v_cndmask_b32 v{AC+4*hlf+e}, v{k_}, v{r_}, s[66:67]\nv_cndmask_b32 v{AC+4*hlf+2+e}, v{r_}, v{k_}, s[66:67]")
    for i in range(4):
        a(f"v_fmac_f32 v{24+2*i}, v{AC+2*i}, v142\nv_fmac_f32 v{25+2*i}, v{AC+2*i+1}, v142\nv_cvt_pk_bf16_f32 v{40+i}, v{24+2*i}, v{25+2*i}")
    a("buffer_store_dwordx4 v[40:43], v11, s[60:63], s64 offen")
    st0.dyn(8, 42)
    a(TAKE + "\ns_branch K4_red")
    a("K4_fin:")
    st0.finish(14, 3, 8)

HEADER = open("cdna_kernels/" + NAME + ".s.ref").read().split("; Override launch geometry")[0]
def build(stamp_k=-1, force_fallback=False, light=False, **opt):
    LIGHT[0] = light
    OPT.update(opt)
    a = Asm()
    launches = [("k1_kernel", K1_GRID, 512, K1_LDS), ("k2_kernel", K2_GRID, 512, K2_LDS)]
    hdr = HEADER + "".join(f"; @launch kernel={k} grid=({g},1,1) block=({b},1,1) lds={l}\n" for k, g, b, l in launches)
    a('.amdgcn_target "amdgcn-amd-amdhsa--gfx950"\n.text')
    descs = [k1(a, stamp_k), k2(a, stamp_k, force_fallback)]
    a('.set CODE_PF_N, (CODE_END - K2_out + 8191) / 8192')
    a('.section .rodata,"a"')
    return hdr + a.text() + "".join(descs)

if __name__ == "__main__":
    out = sys.argv[1] if len(sys.argv) > 1 else "cdna_kernels/" + NAME + ".s"
    kw = eval("dict(" + (sys.argv[2] if len(sys.argv) > 2 else "") + ")")
    open(out, "w").write(build(**kw))
```

```python
import sys, math
from asmlib import *
from gemm import gemm_core
import ffn

T, DM, NH, DH, F = 2048, 576, 32, 18, 4608
NAME = "sequential_preLN__grouped_kv_mqa__dense_activation_relu__prompt"
A_X, A_WQ, A_WK, A_WV, A_WO, B_X, B_W1, B_W2, K_OUT, K_DBG, K_WS = [8 * i for i in range(11)]
def _al(x, a=4096): return (x + a - 1) // a * a
PAIR = 4736
FL_PF, FL_OF, FL_HF, FL_RF = 0, 294912, 294912 + 32768, 294912 + 32768 + 131072
FL_END = FL_RF + 8192
WS = {}
_o = 0
for nm, sz in [("Q", T*DM*2), ("KV", 32*PAIR), ("MEAN1", T*4), ("O", T*DM*2), ("HC", T*DM*2), ("MU2", T*4),
               ("SS", T*8*4), ("XC", T*DM*2), ("WBAR", 18*1024), ("WOF", 648*1024), ("WF", 2*DM*F*2),
               ("PART", 8*T*DM*2), ("FLAG", FL_END), ("STAMP", 16 << 20)]:
    WS[nm] = (_o, sz); _o += _al(sz)
WS_END = _o
QSCALE = math.log2(math.e) / math.sqrt(DH)
def f32bits(x):
    import struct
    return struct.unpack("<I", struct.pack("<f", x))[0]
ONES = 0x3f803f80

def ws_srd(a, d, nm, base):
    srd(a, d, base, WS[nm][0], WS[nm][1])

def wave_lane(a, s_wave=3):
    a(f"v_lshrrev_b32 v1, 6, v0\nv_and_b32 v0, 63, v0\ns_nop 0\nv_readfirstlane_b32 s{s_wave}, v1")

def sum_g(a, v, t):
    a(f"v_mov_b32 v{t}, v{v}\ns_nop 1\nv_permlane32_swap_b32 v{v}, v{t}\ns_nop 1\nv_add_f32 v{v}, v{v}, v{t}")
    a(f"v_mov_b32 v{t}, v{v}\ns_nop 1\nv_permlane16_swap_b32 v{v}, v{t}\ns_nop 1\nv_add_f32 v{v}, v{v}, v{t}")

LIGHT = [False]
OPT = dict(prio=3, k2_nt=True, codepf=True)
class Stamps:
    def __init__(self, a, on, kidx, vreg, vtmp):
        self.a, self.on, self.k, self.v, self.t = a, bool(on) or LIGHT[0], kidx, vreg, vtmp
        self.full = bool(on)
    def start(self):
        if OPT.get("dbgt"):
            self.a(f"s_load_dwordx2 s[100:101], s[0:1], {K_DBG}")
        if self.on:
            self.a(f"s_memrealtime s[96:97]\ns_memtime s[98:99]\nv_mov_b32 v{self.v}, 0\ns_waitcnt lgkmcnt(0)\nv_writelane_b32 v{self.v}, s96, 62")
    def __call__(self, i):
        if self.full or (self.on and i == 61):
            if OPT.get("rt") and i != 61:
                self.a(f"s_memrealtime s[96:97]\ns_waitcnt lgkmcnt(0)\nv_writelane_b32 v{self.v}, s96, {i}")
            else:
                self.a(f"s_memtime s[96:97]\ns_waitcnt lgkmcnt(0)\ns_sub_u32 s96, s96, s98\nv_writelane_b32 v{self.v}, s96, {i}")
    def dyn(self, base, sreg):
        if self.full:
            self.a(f"s_memrealtime s[96:97]\ns_add_u32 m0, s{sreg}, {base}\ns_waitcnt lgkmcnt(0)\nv_writelane_b32 v{self.v}, s96, m0")
    def finish(self, s_ws, s_wave, nw):
        if self.on:
            a = self.a
            a("s_waitcnt vmcnt(0)")
            self(61)
            a(f"s_memrealtime s[96:97]\ns_waitcnt lgkmcnt(0)\nv_writelane_b32 v{self.v}, s96, 63")
            ws_srd(a, 92, "STAMP", s_ws)
            a(f"s_lshl_b32 s96, s2, 3\ns_add_u32 s96, s96, s{s_wave}\ns_lshl_b32 s96, s96, 8\ns_add_u32 s96, s96, {self.k << 21}")
            a(f"v_mbcnt_lo_u32_b32 v{self.t}, -1, 0\nv_mbcnt_hi_u32_b32 v{self.t}, -1, v{self.t}\nv_lshlrev_b32 v{self.t}, 2, v{self.t}")
            a(f"buffer_store_dword v{self.v}, v{self.t}, s[92:95], s96 offen")
            if OPT.get("dbgt") and self.k == 2:
                L = a.label("dbg")
                a(f"s_cmp_lg_u32 s2, 8\ns_cbranch_scc1 {L}\ns_cmp_lg_u32 s{s_wave}, 0\ns_cbranch_scc1 {L}")
                a(f"s_mov_b32 s96, {1 << 21}\nbuffer_load_dword v20, v{self.t}, s[92:95], s96 offen\ns_mov_b32 s96, {(1 << 21) + 129*2048}\nbuffer_load_dword v21, v{self.t}, s[92:95], s96 offen\ns_waitcnt vmcnt(0)")
                items = [(20, 62), (20, 63), (21, 62), (21, 63), (self.v, 62), (self.v, 1), (self.v, 2), (self.v, 7), (self.v, 9), (self.v, 12), (self.v, 21), (self.v, 25), (self.v, 28), (self.v, 63)]
                a("v_mov_b32 v22, 0\ns_nop 1\nv_readlane_b32 s97, v20, 62\ns_nop 3")
                for i, (r, l) in enumerate(items):
                    a(f"v_readlane_b32 s96, v{r}, {l}\ns_nop 3\ns_sub_u32 s96, s96, s97\nv_writelane_b32 v22, s96, {i}")
                a(f"s_mov_b32 s92, s100\ns_mov_b32 s93, s101\ns_mov_b32 s94, 64\ns_mov_b32 s95, 0x00020000\nbuffer_store_dword v22, v{self.t}, s[92:95], 0 offen\n{L}:")


def PAT(): return OPT.get('pat', (3, 3, 2, 1))
class Repack:
    PR = 208
    def __init__(self, a): self.a = a
    def common(self):
        return (f"s_add_u32 s60, s14, {WS['WOF'][0]}\ns_addc_u32 s61, s15, 0\ns_mov_b32 s62, {WS['WF'][0] + WS['WF'][1] - WS['WOF'][0]}\ns_mov_b32 s63, 0x00020000\n"
                "v_and_b32 v6, 15, v0\nv_lshrrev_b32 v7, 4, v0\ns_mov_b32 s80, 0x05040100\ns_mov_b32 s81, 0x07060302")
    def regs(self, rnd): return 64 + 4 * rnd, 72 + 4 * rnd, 82 + 4 * rnd, 242 + rnd, 240 + rnd
    def setup_ffn(self, rnd, pw1, pw2):
        L = self.a.label("rp")
        SD, SB_, SO, vsrc, dst = self.regs(rnd)
        OWF = WS["WF"][0] - WS["WOF"][0]
        t = []; A = t.append
        A(f"s_mul_hi_u32 s46, s47, {(2**32 + 161)//162}\ns_mul_i32 s49, s46, 162\ns_sub_u32 s47, s47, s49")
        A(f"s_mul_hi_u32 s49, s47, {(2**32 + 8)//9}\ns_mul_i32 s50, s49, 9\ns_sub_u32 s50, s47, s50")
        A(f"s_mov_b32 s{SD+3}, 0x00020000\ns_lshl_b32 s54, s50, 7\nv_mov_b32 v{dst}, v3")
        A(f"s_cmp_lt_u32 s46, 2\ns_cselect_b32 s{SD+2}, {DM*F*2}, 0\ns_cselect_b32 s57, 0, 0x100000")
        A(f"s_mul_i32 s53, s45, 1296\ns_mul_i32 s55, s46, 162\ns_add_u32 s53, s53, s55\ns_add_u32 s53, s53, {OWF//1024}\ns_add_u32 s53, s53, s57")
        A(f"s_cmp_eq_u32 s46, 1\ns_cbranch_scc1 {L}_w2")
        A("s_mul_i32 s55, s49, 3\ns_add_u32 s53, s53, s55")
        for q in range(4):
            A(f"s_lshl_b32 s55, s50, 2\ns_add_u32 s55, s55, {q}\ns_mul_i32 s56, s55, 86\ns_lshr_b32 s56, s56, 8")
            A(f"s_lshr_b32 s58, s56, 2\ns_mul_i32 s58, s58, 1242\ns_mul_i32 s56, s56, 321\ns_sub_u32 s56, s56, s58")
            A(f"s_add_u32 s55, s55, s56\ns_add_u32 s55, s55, s53\ns_lshl_b32 s{SO+q}, s55, 10")
        A(f"s_mov_b32 s{SD}, s{pw1}\ns_mov_b32 s{SD+1}, s{pw1+1}\ns_mul_i32 s53, s49, {32*F*2}\ns_mul_i32 s55, s45, {DM*2}\ns_add_u32 s53, s53, s55\ns_add_u32 s{SB_}, s53, s54")
        A(f"s_mov_b32 s{SB_+1}, {4*F*2}\ns_mov_b32 s{SB_+2}, {2*F*2}\ns_mov_b32 s{SB_+3}, {F*2}")
        A(f"v_mul_u32_u24 v{vsrc}, {8*F*2}, v7\nv_lshl_add_u32 v{vsrc}, v6, 3, v{vsrc}\ns_branch {L}_done")
        A(f"{L}_w2:")
        idx, siz = 0, 0
        cb = 0
        for n in PAT():
            for i in range(n):
                idx |= i << (2 * (cb + i)); siz |= n << (2 * (cb + i))
            cb += n
        A(f"s_lshl_b32 s55, s50, 1\ns_lshr_b32 s56, {idx}, s55\ns_and_b32 s56, s56, 3\ns_lshr_b32 s58, {siz}, s55\ns_and_b32 s58, s58, 3")
        A("s_mul_i32 s58, s58, s49\ns_add_u32 s53, s53, s58\ns_mul_i32 s58, s50, 18\ns_add_u32 s53, s53, s58\ns_mul_i32 s56, s56, 17\ns_sub_u32 s53, s53, s56")
        A(f"s_lshl_b32 s{SO}, s53, 10\ns_add_u32 s{SO+1}, s{SO}, {324*1024}\ns_add_u32 s{SO+2}, s{SO}, {648*1024}\ns_add_u32 s{SO+3}, s{SO}, {972*1024}")
        A(f"s_mov_b32 s{SD}, s{pw2}\ns_mov_b32 s{SD+1}, s{pw2+1}\ns_lshr_b32 s53, s49, 1\ns_lshl_b32 s53, s53, 6\ns_and_b32 s55, s49, 1\ns_lshl_b32 s55, s55, 1\ns_add_u32 s53, s53, s55")
        A(f"s_mul_i32 s55, s45, {DM}\ns_add_u32 s53, s53, s55\ns_mul_i32 s53, s53, {DM*2}\ns_add_u32 s{SB_}, s53, s54")
        A(f"s_mov_b32 s{SB_+1}, {DM*2}\ns_mov_b32 s{SB_+2}, {8*DM*2}\ns_mov_b32 s{SB_+3}, {4*DM*2}")
        A(f"v_mul_u32_u24 v{vsrc}, {16*DM*2}, v7\nv_lshl_add_u32 v{vsrc}, v6, 3, v{vsrc}")
        A(f"{L}_done:")
        return "\n".join(t)
    def setup_wo(self, rnd, pwo):
        L = self.a.label("rp")
        SD, SB_, SO, vsrc, dst = self.regs(rnd)
        t = []; A = t.append
        A(f"s_mul_hi_u32 s49, s47, {(2**32 + 8)//9}\ns_mul_i32 s50, s49, 9\ns_sub_u32 s50, s47, s50")
        A(f"s_mov_b32 s{SD+3}, 0x00020000\ns_lshl_b32 s54, s50, 7")
        A(f"s_mov_b32 s{SD}, s{pwo}\ns_mov_b32 s{SD+1}, s{pwo+1}\ns_cmp_lt_u32 s47, 162\ns_cselect_b32 s{SD+2}, {DM*DM*2}, 0\ns_cselect_b32 s56, 0, 0x40000000")
        A(f"s_mul_i32 s55, s49, 6144\ns_add_u32 s{SO}, s56, s55\ns_add_u32 s{SO+1}, s{SO}, 1024\ns_add_u32 s{SO+2}, s{SO}, 16\ns_add_u32 s{SO+3}, s{SO}, 1040")
        A(f"s_lshl_b32 s55, s50, 1\nv_lshrrev_b32 v245, 3, v6\nv_add_u32 v245, s55, v245\nv_mul_u32_u24 v246, 86, v245\nv_lshrrev_b32 v246, 8, v246")
        A(f"v_mul_u32_u24 v246, 51, v246\nv_add_u32 v245, v245, v246\nv_lshlrev_b32 v245, 11, v245")
        A(f"v_and_b32 v246, 7, v6\nv_lshl_add_u32 v245, v246, 5, v245\nv_lshl_add_u32 v{dst}, v7, 8, v245")
        A(f"s_mov_b32 s{SB_+3}, {DM*2}\ns_cmp_ge_u32 s49, 16\ns_cbranch_scc1 {L}_wo2")
        A(f"s_mul_i32 s53, s49, {36*DM*2}\ns_mov_b32 s{SB_+1}, {8*DM*2}\ns_mov_b32 s{SB_+2}, {2*DM*2}")
        A(f"v_lshrrev_b32 v246, 1, v7\nv_mul_u32_u24 v246, 18, v246\nv_and_b32 v247, 1, v7\nv_lshl_add_u32 v246, v247, 2, v246\ns_branch {L}_wo3")
        A(f"{L}_wo2:")
        A(f"s_sub_u32 s53, s49, 16\ns_mul_i32 s53, s53, {288*DM*2}\ns_add_u32 s53, s53, {16*DM*2}\ns_mov_b32 s{SB_+1}, {36*DM*2}\ns_mov_b32 s{SB_+2}, {18*DM*2}")
        A(f"v_mul_u32_u24 v246, 72, v7")
        A(f"{L}_wo3:")
        A(f"s_add_u32 s{SB_}, s53, s54\nv_mul_u32_u24 v{vsrc}, {DM*2}, v246\nv_lshl_add_u32 v{vsrc}, v6, 3, v{vsrc}")
        return "\n".join(t)
    def load(self, rnd, s_, flag=""):
        SD, SB_, SO, vsrc, dst = self.regs(rnd)
        raw = self.PR + 16 * rnd
        t = f"s_mov_b32 s55, s{SB_}\n"
        if s_ & 4: t += f"s_add_u32 s55, s55, s{SB_+1}\n"
        if s_ & 2: t += f"s_add_u32 s55, s55, s{SB_+2}\n"
        if s_ & 1: t += f"s_add_u32 s55, s55, s{SB_+3}\n"
        return t + f"buffer_load_dwordx2 v[{raw+2*s_}:{raw+2*s_+1}], v{vsrc}, s[{SD}:{SD+3}], s55 offen{flag}"
    def store(self, rnd, q_, flag=""):
        SD, SB_, SO, vsrc, dst = self.regs(rnd)
        raw = self.PR + 16 * rnd
        t = 196 + 4 * (q_ % 2)
        L = [f"v_perm_b32 v{t+j}, v{raw+2*(2*j+1)+(q_>>1)}, v{raw+2*(2*j)+(q_>>1)}, s{80+(q_&1)}" for j in range(4)]
        L.append(f"buffer_store_dwordx4 v[{t}:{t+3}], v{dst}, s[60:63], s{SO+q_} offen{flag}")
        return "\n".join(L)
    def touch(self, rnd):
        SD, SB_, SO, vsrc, dst = self.regs(rnd)
        return "s_mov_b64 exec, 0xff\nv_lshlrev_b32 v204, 7, v0\n" + "\n".join(f"buffer_load_dword v205, v204, s[60:63], s{SO+q} offen" for q in range(4)) + "\ns_mov_b64 exec, -1"

def ffn_map(sj, smb):
    SL = OPT.get("k4_sl", 1); lg = SL.bit_length() - 1
    return (f"s_and_b32 s46, s2, 7\ns_lshr_b32 s47, s2, 3\ns_and_b32 s{sj}, s46, {8//SL-1}\ns_lshl_b32 s{sj}, s{sj}, {lg}\ns_and_b32 s48, s47, {SL-1}\ns_add_u32 s{sj}, s{sj}, s48\n"
            f"s_lshr_b32 s{smb}, s46, {3-lg}\ns_lshl_b32 s{smb}, s{smb}, {5-lg}\ns_lshr_b32 s48, s47, {lg}\ns_add_u32 s{smb}, s{smb}, s48\n")

def poll(a, n, voff, srd_, soff, vt, slp=2):
    L = a.label("poll")
    a(f"s_mov_b32 s73, 0x8000\ns_mov_b64 exec, {(1 << n) - 1}")
    a(f"{L}:\nbuffer_load_dword v{vt}, v{voff}, s[{srd_}:{srd_+3}], s{soff} offen sc1\ns_waitcnt vmcnt(0)\nv_cmp_eq_u32 vcc, 1, v{vt}\ns_nop 1\ns_cmp_eq_u32 vcc_lo, {(1 << n) - 1}\ns_cbranch_scc1 {L}_ok\ns_sleep {slp}\ns_sub_u32 s73, s73, 1\ns_cbranch_scc0 {L}\n{L}_ok:")
    a("s_mov_b64 exec, -1")

K1_GRID = 256
K1_LDS = 159744 + 1280
def k1(a, stamp_k=-1):
    st = Stamps(a, stamp_k == 1, 1, 250, 251)
    XLQ, XLK = 73728, 86016
    KVI = 21504
    ST = OPT.get('k1_st', ' sc1')
    kernel_begin(a, "k1_kernel")
    if OPT["codepf"]:
        a(f"s_cmp_ge_u32 s2, {OPT.get('pfn', 64)}\ns_cbranch_scc1 K1_nopf")
        a("s_getpc_b64 s[58:59]\nK1_pc:\nv_lshlrev_b32 v252, 7, v0\nv_min_u32 v252, K2_out-K1_pc, v252\nglobal_load_dword v253, v252, s[58:59]")
        a("K1_nopf:")
    a(f"s_cmp_ge_u32 s2, {K1_GRID}\ns_cbranch_scc1 K1_end")
    a(f"s_load_dwordx4 s[4:7], s[0:1], {A_X}\ns_load_dwordx4 s[8:11], s[0:1], {A_WK}\ns_load_dwordx2 s[12:13], s[0:1], {A_WO}\ns_load_dwordx2 s[14:15], s[0:1], {K_WS}")
    st.start()
    wave_lane(a)
    a("v_and_b32 v1, 15, v0\nv_lshrrev_b32 v2, 4, v0")
    a("s_bfe_u32 s44, s2, 0x20001\ns_lshl_b32 s44, s44, 3\ns_bfe_u32 s61, s2, 0x30003\ns_add_u32 s44, s44, s61\ns_and_b32 s45, s2, 1\ns_lshl_b32 s45, s45, 2\ns_lshr_b32 s62, s2, 6\ns_add_u32 s45, s45, s62")
    a("s_mul_i32 s60, s62, 9\ns_lshr_b32 s60, s60, 2\ns_add_u32 s60, s60, s61\ns_and_b32 s61, s2, 7\ns_add_u32 s60, s60, s61")
    a("s_mul_i32 s61, s60, 57\ns_lshr_b32 s61, s61, 9\ns_mul_i32 s61, s61, 9\ns_sub_u32 s60, s60, s61")
    a(f"s_cmp_eq_u32 s45, 6\ns_cselect_b32 s60, 0, s60\ns_mov_b32 s63, {XLQ}\ns_cselect_b32 s63, {XLK}, s63")
    a("v_lshrrev_b32 v4, 3, v0\nv_and_b32 v5, 7, v0")
    EX = 159744
    X0 = 16
    AR = 172
    ACC, CS, RS, GR, WF, ON = 88, 192, 112, 116, 120, 168
    ONr = f"v[{ON}:{ON+3}]"
    def V4(b): return f"v[{b}:{b+3}]"
    def lane_rc():
        a("v_lshrrev_b32 v10, 2, v1\nv_and_b32 v11, 3, v1\nv_lshl_add_u32 v12, v2, 3, v10")
    def xaddr(sbase):
        a(f"v_and_b32 v7, 7, v1\nv_xor_b32 v8, v2, v7\nv_lshlrev_b32 v8, 4, v8\nv_lshl_add_u32 v8, v1, 7, v8\nv_add_u32 v8, s{sbase}, v8\nv_xor_b32 v9, 64, v8")
        a("v_add_u32 v190, 0x8000, v8\nv_add_u32 v191, 0x8000, v9")
    def xrd(reg, ks, extra=0):
        p, e = divmod(ks, 2)
        b, o = (8 + e, 8192 * p) if p < 4 else (190 + e, 8192 * (p - 4))
        return f"ds_read_b128 {V4(reg)}, v{b} offset:{o + extra}"
    def waddr(shalf):
        a("v_lshrrev_b32 v13, 1, v10\nv_and_b32 v14, 1, v2\nv_lshl_add_u32 v13, v14, 1, v13")
        a("v_lshlrev_b32 v15, 7, v12\nv_lshl_add_u32 v15, v11, 3, v15\nv_lshlrev_b32 v7, 6, v12\nv_lshl_add_u32 v7, v11, 3, v7\nv_add_u32 v7, 4096, v7")
        a(f"s_cmp_eq_u32 s{shalf}, 1\ns_cselect_b64 vcc, -1, 0\ns_mul_i32 s55, s{shalf}, 3")
        a(f"v_xor_b32 v184, s55, v13\nv_lshl_add_u32 v{AR}, v184, 5, v15\nv_add_u32 v{AR+3}, 512, v{AR}")
        for t in (1, 2):
            a(f"v_xor_b32 v184, {t}, v13\nv_lshl_add_u32 v184, v184, 5, v15\nv_xor_b32 v185, {t-1}, v14\nv_lshl_add_u32 v185, v185, 5, v7")
            a(f"v_cndmask_b32 v{AR+t}, v184, v185, vcc\nv_add_u32 v184, 512, v184\nv_add_u32 v185, 256, v185\nv_cndmask_b32 v{AR+3+t}, v184, v185, vcc")
        for i in range(6): a(f"v_add_u32 v{AR+6+i}, {9*6144}, v{AR+i}")
    def wrd(reg, ks, t):
        hi = ks >= 9
        off = (ks - 9 * hi) * 6144
        return [f"ds_read_b64_tr_b16 v[{reg}:{reg+1}], v{AR+6*hi+t} offset:{off}", f"ds_read_b64_tr_b16 v[{reg+2}:{reg+3}], v{AR+6*hi+3+t} offset:{off}"]
    def stat_mfma(x, first):
        return [f"v_mfma_f32_16x16x32_bf16 {V4(RS)}, {ONr}, {V4(x)}, {'0' if first else V4(RS)}",
                f"v_mfma_f32_16x16x32_bf16 {V4(GR)}, {V4(x)}, {V4(x)}, {'0' if first else V4(GR)}"]
    def stats_out():
        a("v_cmp_eq_u32 vcc, 1, v11\nv_cmp_eq_u32 s[54:55], 2, v11\nv_cmp_eq_u32 s[56:57], 3, v11\nv_cmp_eq_u32 s[58:59], v10, v2\ns_nop 3")
        a(f"v_mul_f32 v4, {f32bits(-1.0/DM)}, v{RS}")
        a(f"v_cndmask_b32 v5, v{GR}, v{GR+1}, vcc\nv_cndmask_b32 v5, v5, v{GR+2}, s[54:55]\nv_cndmask_b32 v5, v5, v{GR+3}, s[56:57]\nv_cndmask_b32 v5, 0, v5, s[58:59]")
        sum_g(a, 5, 7)
        a(f"v_mul_f32 v5, {f32bits(1.0/DM)}, v5\nv_fma_f32 v5, -v4, v4, v5\nv_max_f32 v5, 0, v5\nv_add_f32 v5, {f32bits(1e-5)}, v5\nv_rsq_f32 v5, v5")
        a(f"s_lshl_b32 s54, s3, 7\ns_add_u32 s54, s54, {EX + 768}\nv_lshlrev_b32 v7, 3, v1\nv_add_u32 v7, s54, v7\nds_write_b64 v7, v[4:5]")
    a("s_cmp_lt_u32 s3, 4\ns_cbranch_scc1 K1_comp")
    a("s_cmp_eq_u32 s45, 7\ns_cbranch_scc1 K1_worp")
    a("s_sub_u32 s3, s3, 4")
    a("s_cmp_eq_u32 s45, 6\ns_cbranch_scc1 K1_kvload")
    a("v_and_b32 v6, 1, v2\ns_and_b32 s48, s3, 1\ns_lshl_b32 s48, s48, 2\nv_lshlrev_b32 v6, 1, v6\nv_or_b32 v6, s48, v6\nv_xor_b32 v6, v6, v5")
    a(f"v_mul_u32_u24 v3, {DM*2}, v4\nv_lshl_add_u32 v3, v6, 4, v3")
    a("v_lshrrev_b32 v7, 5, v0\nv_lshlrev_b32 v7, 1, v7\nv_and_b32 v6, 3, v0\nv_xor_b32 v7, v7, v6\nv_lshrrev_b32 v6, 2, v0")
    a(f"v_mul_u32_u24 v6, {DM*2}, v6\nv_lshl_add_u32 v6, v7, 4, v6")
    a("s_mul_i32 s48, s45, 192\ns_and_b32 s53, s45, 1\ns_lshl_b32 s54, s53, 6\ns_add_u32 s49, s48, s54\ns_xor_b32 s53, s53, 1\ns_lshl_b32 s53, s53, 7\ns_add_u32 s50, s48, s53")
    a(f"s_mul_i32 s53, s3, {8*DM*2}\ns_add_u32 s49, s49, s53\ns_mul_i32 s53, s3, {16*DM*2}\ns_add_u32 s50, s50, s53")
    a("s_lshl_b32 s51, s3, 10")
    a("s_lshr_b32 s52, s3, 1\ns_mul_i32 s52, s52, 6144\ns_and_b32 s53, s3, 1\ns_lshl_b32 s53, s53, 10\ns_add_u32 s52, s52, s53\ns_add_u32 s52, s52, 4096")
    a(f"s_mul_i32 s61, s60, {64*DM*2}")
    a("s_waitcnt lgkmcnt(0)")
    srd(a, 20, 6, 0, DM*DM*2)
    def wdma():
        a(f"s_add_u32 s62, s49, s61\ns_add_u32 s65, s50, s61\ns_add_u32 s64, s62, {32*DM*2}")
        a(f"s_mov_b32 m0, s51\ns_add_u32 s51, s51, 6144\nbuffer_load_dwordx4 v3, s[20:23], s62 offen lds")
        a(f"s_mov_b32 m0, s52\ns_add_u32 s52, s52, 12288\nbuffer_load_dwordx4 v6, s[20:23], s65 offen lds")
        a(f"s_mov_b32 m0, s51\ns_add_u32 s51, s51, 6144\nbuffer_load_dwordx4 v3, s[20:23], s64 offen lds")
        a(f"s_add_u32 s61, s61, {64*DM*2}\ns_cmp_eq_u32 s61, {DM*DM*2}\ns_cselect_b32 s61, 0, s61")
    LA = OPT.get('k1_la', 3)
    for t in range(LA): wdma()
    lane_rc()
    a("s_lshl_b32 s66, s3, 11\ns_add_u32 s66, s66, s63\ns_lshr_b32 s67, s3, 1")
    xaddr(66); waddr(67)
    a("s_and_b32 s55, s3, 1\ns_mul_i32 s55, s55, 6144")
    for i in range(12): a(f"v_add_u32 v{AR+i}, s55, v{AR+i}")
    for r in range(4): a(f"v_mov_b32 v{ON+r}, {ONES}")
    for p in range(10):
        if p < 9:
            a(f"s_waitcnt vmcnt({3*(min(p + LA, 9) - p - 1)}) lgkmcnt(0)\ns_barrier")
            b = (p % 2) * 20
            a(xrd(X0 + b, 2*p)); a(xrd(X0 + b + 4, 2*p + 1))
            for t in range(3):
                for x in wrd(X0 + b + 8 + 4*t, 2*p if p != 4 else 8, t): a(x)
        else:
            a("s_waitcnt lgkmcnt(0)")
        if p > 0:
            b = ((p - 1) % 2) * 20
            for x in stat_mfma(X0 + b, p == 1) + stat_mfma(X0 + b + 4, False): a(x)
            for t in range(3):
                a(f"v_mfma_f32_16x16x32_bf16 {V4(CS+4*t)}, {V4(X0+b+8+4*t)}, {ONr}, {'0' if p == 1 else V4(CS+4*t)}")
        if p + LA < 9: wdma()
    stats_out()
    a(f"s_mul_i32 s54, s3, 192\ns_add_u32 s54, s54, {EX}\nv_lshlrev_b32 v7, 4, v2\nv_add_u32 v7, s54, v7")
    for t in range(3): a(f"ds_write_b128 v7, {V4(CS+4*t)} offset:{64*t}")
    a("s_waitcnt lgkmcnt(0)\ns_barrier\ns_branch K1_end")
    a("K1_comp:")
    a("s_cmp_eq_u32 s45, 7\ns_cbranch_scc1 K1_wbar")
    a("s_lshl_b32 s46, s44, 6\ns_lshl_b32 s47, s3, 4\ns_add_u32 s46, s46, s47")
    a(f"s_mul_i32 s47, s46, {DM*2}")
    a(f"v_xor_b32 v6, v4, v5\nv_mul_u32_u24 v3, {DM*2}, v4\nv_lshl_add_u32 v3, v6, 4, v3\nv_add_u32 v6, {8*DM*2 - 1024}, v3")
    a(f"s_lshl_b32 s61, s60, 7\ns_lshl_b32 s64, s3, 11\ns_add_u32 s64, s63, s64\ns_mov_b32 s66, s64")
    a("s_waitcnt lgkmcnt(0)")
    srd(a, 16, 4, 0, T*DM*2)
    def xdma():
        return ("s_mov_b32 m0, s64\ns_add_u32 s62, s47, s61\ns_add_u32 s64, s64, 8192\n"
                "buffer_load_dwordx4 v3, s[16:19], s62 offen lds\nbuffer_load_dwordx4 v6, s[16:19], s62 offen offset:1024 lds\n"
                f"s_add_u32 s61, s61, 128\ns_cmp_eq_u32 s61, {DM*2}\ns_cselect_b32 s61, 0, s61")
    XA = OPT.get("k1_xa", 4)
    for p in range(XA): a(xdma())
    st(0)
    lane_rc()
    a("s_cmp_eq_u32 s45, 6\ns_cbranch_scc1 K1_kvgemm")
    a("s_and_b32 s68, s3, 1\ns_lshl_b32 s66, s68, 12\ns_add_u32 s66, s66, s63\ns_lshr_b32 s67, s3, 1")
    xaddr(66); waddr(67)
    ws_srd(a, 32, "Q", 14)
    def frags(ks):
        b = X0 + (ks % 2) * 20
        L = [xrd(b, ks), xrd(b + 4, ks, 2048)]
        for t in range(3): L += wrd(b + 8 + 4*t, ks, t)
        return L
    nx = XA
    a(f"s_waitcnt vmcnt({2*XA-2})\ns_barrier")
    st(2)
    for x in frags(0): a(x)
    for ks in range(18):
        p = ks // 2
        if ks % 2 == 1 and ks < 17:
            a(f"s_waitcnt vmcnt({2*(nx - p - 2)})" + (" lgkmcnt(6)" if ks == 9 else "") + "\ns_barrier")
        b = X0 + (ks % 2) * 20
        nf = frags(ks + 1) if ks < 17 else []
        issued = 0
        for t in range(3):
            a(f"s_waitcnt lgkmcnt({4 - 2*t + issued})")
            for m in range(2):
                d = ACC + (t*2 + m) * 4
                a(f"v_mfma_f32_16x16x32_bf16 {V4(d)}, {V4(b+8+4*t)}, {V4(b+4*m)}, {'0' if ks == 0 else V4(d)}")
                for x in nf[:2]: a(x); issued += 1
                nf = nf[2:]
        if ks % 2 == 0 and nx < 9:
            a(xdma()); nx += 1
    st(3)
    a("v_lshlrev_b32 v3, 3, v0")
    a(f"s_lshl_b32 s48, s44, 1\ns_add_u32 s48, s48, s68\ns_mul_i32 s48, s48, {4*9216}")
    a("s_mul_i32 s49, s45, 6\ns_and_b32 s50, s45, 1\ns_lshl_b32 s51, s50, 1\ns_add_u32 s51, s51, s49\ns_lshl_b32 s50, s50, 2\ns_sub_u32 s52, s49, s50\ns_mul_i32 s69, s67, 3")
    a(f"s_mul_i32 s54, s67, 384\ns_add_u32 s54, s54, {EX}\nv_lshlrev_b32 v7, 4, v2\nv_add_u32 v7, s54, v7")
    a(f"s_lshl_b32 s54, s68, 8\ns_add_u32 s54, s54, {EX + 768}\nv_lshlrev_b32 v8, 3, v1\nv_add_u32 v8, s54, v8")
    a("s_barrier")
    a("ds_read_b64 v[12:13], v8\nds_read_b64 v[14:15], v8 offset:128")
    for i in range(6): a(f"ds_read_b128 {V4(CS+4*i)}, v7 offset:{64*i}")
    a(f"s_waitcnt lgkmcnt(0)\nv_mul_f32 v13, {f32bits(QSCALE)}, v13\nv_mul_f32 v15, {f32bits(QSCALE)}, v15")
    for t in range(3):
        a(f"s_add_u32 s53, s69, {t}\ns_cmp_lt_u32 s53, 4\ns_cselect_b32 s54, s51, s52\ns_add_u32 s53, s53, s54")
        a("s_mul_i32 s54, s53, 57\ns_lshr_b32 s54, s54, 9\ns_mul_i32 s54, s54, 4608\ns_lshl_b32 s53, s53, 9\ns_add_u32 s53, s53, s54\ns_add_u32 s53, s53, s48\ns_add_u32 s55, s53, 4608")
        for r in range(4): a(f"v_add_f32 v{CS+4*t+r}, v{CS+4*t+r}, v{CS+12+4*t+r}")
        for m in range(2):
            b = ACC + (t*2 + m) * 4
            for r in range(4): a(f"v_fmac_f32 v{b+r}, v{CS+4*t+r}, v{12+2*m}\nv_mul_f32 v{b+r}, v{b+r}, v{13+2*m}")
            a(f"v_cvt_pk_bf16_f32 v{b}, v{b}, v{b+1}\nv_cvt_pk_bf16_f32 v{b+1}, v{b+2}, v{b+3}")
            a(f"buffer_store_dwordx2 v[{b}:{b+1}], v3, s[32:35], s{53+2*m} offen{ST}")
    a("s_branch K1_fin")
    def kaddr():
        a(f"v_mul_u32_u24 v13, 36, v12\nv_lshl_add_u32 v13, v11, 3, v13\nv_and_b32 v14, 1, v10\nv_mul_u32_u24 v14, {KVI - 4}, v14\nv_add_u32 v{AR}, v13, v14")
    a("K1_kvload:")
    a(f"v_lshlrev_b32 v3, 4, v0\ns_and_b32 s48, s3, 1\ns_lshl_b32 s48, s48, 2\ns_mul_i32 s49, s3, {KVI}")
    a("s_waitcnt lgkmcnt(0)")
    a(f"s_cmp_lt_u32 s3, 2\ns_cselect_b32 s24, s8, s10\ns_cselect_b32 s25, s9, s11\ns_mov_b32 s26, {DM*DH*2}\ns_mov_b32 s27, 0x00020000")
    for i in range(21):
        if i % 4 == 0: a("s_mov_b32 m0, s49\ns_add_u32 s49, s49, 4096")
        a(f"buffer_load_dwordx4 v3, s[24:27], s48 offen offset:{(i%4)*1024} lds")
        if i % 4 == 3: a("s_add_u32 s48, s48, 4096")
    lane_rc()
    a("s_lshl_b32 s66, s3, 11\ns_add_u32 s66, s66, s63")
    xaddr(66); kaddr()
    a(f"s_and_b32 s55, s3, 1\ns_mul_i32 s55, s55, {2*KVI}\ns_lshr_b32 s56, s3, 1\ns_lshl_b32 s56, s56, 5\ns_add_u32 s55, s55, s56\nv_add_u32 v{AR}, s55, v{AR}")
    for r in range(4): a(f"v_mov_b32 v{ON+r}, {ONES}")
    ws_srd(a, 40, "MEAN1", 14)
    ws_srd(a, 68, "XC", 14)
    a(f"s_lshl_b32 s46, s44, 2\ns_add_u32 s46, s46, s3\ns_mul_i32 s48, s46, 18432")
    a("s_waitcnt vmcnt(0)\ns_barrier")
    def kl(ks):
        w = WF + (ks % 4) * 4
        return [xrd(X0 + 4*ks, ks), f"ds_read_b64_tr_b16 v[{w}:{w+1}], v{AR} offset:{ks*1152}", f"ds_read_b64_tr_b16 v[{w+2}:{w+3}], v{AR} offset:{ks*1152 + 144}"]
    for ks in range(3):
        for x in kl(ks): a(x)
    for ks in range(18):
        a(f"s_waitcnt lgkmcnt({3*min(2, 17-ks)})")
        for x in stat_mfma(X0 + 4*ks, ks == 0): a(x)
        a(f"v_mfma_f32_16x16x32_bf16 {V4(CS)}, {V4(WF + (ks % 4) * 4)}, {ONr}, {'0' if ks == 0 else V4(CS)}")
        if ks + 3 < 18:
            for x in kl(ks + 3): a(x)
        if ks and ks % 4 == 0: a("s_add_u32 s48, s48, 4096")
        a(f"buffer_store_dwordx4 {V4(X0+4*ks)}, v3, s[68:71], s48 offen offset:{(ks%4)*1024}{ST}")
    stats_out()
    a(f"s_lshl_b32 s54, s3, 6\ns_add_u32 s54, s54, {EX}\nv_lshlrev_b32 v7, 4, v2\nv_add_u32 v7, s54, v7\nds_write_b128 v7, {V4(CS)}")
    a("s_waitcnt lgkmcnt(0)\ns_barrier")
    a("v_sub_f32 v9, 0, v4\nv_lshlrev_b32 v7, 2, v1\nv_lshl_add_u32 v7, v2, 20, v7\ns_lshl_b32 s49, s46, 6\nbuffer_store_dword v9, v7, s[40:43], s49 offen")
    a("s_branch K1_end")
    a("K1_worp:\ns_waitcnt lgkmcnt(0)\nv_lshlrev_b32 v3, 4, v0")
    rp = Repack(a)
    a(rp.common())
    for rnd in range(2):
        a(f"s_lshl_b32 s47, s44, 2\ns_add_u32 s47, s47, s3\ns_add_u32 s47, s47, {128*rnd - 4 & 0xffffffff}")
        a(rp.setup_wo(rnd, 12))
        for n in range(8): a(rp.load(rnd, n))
    for rnd in range(2):
        a(f"s_waitcnt vmcnt({8 if rnd == 0 else 4})")
        for n in range(4): a(rp.store(rnd, n) + "\ns_nop 1")
    a("s_branch K1_end")
    a("K1_kvgemm:")
    for p in range(XA, 9): a(xdma())
    ws_srd(a, 36, "KV", 14)
    xaddr(66); kaddr()
    for ks in range(18):
        if ks % 2 == 0: a(f"s_waitcnt vmcnt({16 - ks})")
        a(xrd(X0 + 4*ks, ks))
    st(20)
    a("s_barrier")
    st(22)
    def kread(ks):
        L = []
        for j in range(4):
            w = WF + ((ks % 2) * 4 + j) * 4
            o = ks * 1152 + (j & 1) * 2 * KVI + (j >> 1) * 32
            L += [f"ds_read_b64_tr_b16 v[{w}:{w+1}], v{AR} offset:{o}", f"ds_read_b64_tr_b16 v[{w+2}:{w+3}], v{AR} offset:{o + 144}"]
        return L
    for x in kread(0): a(x)
    for ks in range(18):
        x = V4(X0 + 4*ks)
        fill = kread(ks + 1) if ks < 17 else []
        for j in range(4):
            w = V4(WF + ((ks % 2) * 4 + j) * 4)
            a(f"s_waitcnt lgkmcnt({6 if ks < 17 else 6 - 2*j})")
            A_, B_ = (w, x) if j % 2 == 0 else (x, w)
            a(f"v_mfma_f32_16x16x32_bf16 {V4(ACC+4*j)}, {A_}, {B_}, {'0' if ks == 0 else V4(ACC+4*j)}")
            for y in fill[:2]: a(y)
            fill = fill[2:]
    st(23)
    a(f"s_mul_i32 s48, s44, {PAIR}")
    a(f"s_lshl_b32 s54, s3, 7\ns_add_u32 s54, s54, {EX + 768}\nv_lshlrev_b32 v7, 3, v1\nv_add_u32 v7, s54, v7\nv_lshlrev_b32 v8, 5, v2\nv_add_u32 v8, s54, v8")
    a(f"v_lshlrev_b32 v9, 4, v2\nv_add_u32 v9, {EX}, v9\nv_lshlrev_b32 v10, 2, v1\nv_add_u32 v10, {EX}, v10\nv_mov_b32 v{ON}, {ONES}")
    a("s_barrier")
    a(f"ds_read_b64 v[4:5], v7\nds_read_b128 v[216:219], v8\nds_read_b128 v[220:223], v8 offset:16\nds_read_b128 {V4(CS)}, v9\nds_read_b128 {V4(CS+8)}, v9 offset:128")
    a(f"ds_read_b32 v{CS+4}, v10 offset:64\nds_read_b32 v{CS+12}, v10 offset:192")
    a("v_lshrrev_b32 v7, 1, v2\nv_lshlrev_b32 v7, 9, v7\nv_lshl_add_u32 v7, v1, 4, v7\nv_and_b32 v8, 1, v2\nv_lshl_add_u32 v7, v8, 3, v7")
    a("s_lshr_b32 s49, s3, 1\ns_lshl_b32 s49, s49, 10\ns_and_b32 s50, s3, 1\ns_lshl_b32 s50, s50, 8\ns_add_u32 s49, s49, s50\ns_add_u32 s49, s49, s48")
    a("s_waitcnt lgkmcnt(0)")
    b = ACC
    for r in range(4): a(f"v_fmac_f32 v{b+r}, v{CS+r}, v4\nv_mul_f32 v{b+r}, v{b+r}, v5")
    a(f"v_cvt_pk_bf16_f32 v{b}, v{b}, v{b+1}\nv_cvt_pk_bf16_f32 v{b+1}, v{b+2}, v{b+3}")
    a(f"buffer_store_dwordx2 v[{b}:{b+1}], v7, s[36:39], s49 offen")
    b = ACC + 8
    for r in range(2): a(f"v_fmac_f32 v{b+r}, v{CS+8+r}, v4\nv_mul_f32 v{b+r}, v{b+r}, v5")
    a(f"v_cvt_pk_bf16_f32 v{b}, v{b}, v{b+1}")
    a("v_lshlrev_b32 v7, 2, v1\nv_lshl_add_u32 v7, v2, 20, v7\ns_lshl_b32 s49, s3, 6\ns_add_u32 s49, s49, s48")
    a(f"buffer_store_dword v{b}, v7, s[36:39], s49 offen offset:2048")
    a("v_and_b32 v8, 1, v2\nv_mul_u32_u24 v8, 19, v8\nv_add_u32 v8, v8, v1\nv_lshlrev_b32 v8, 4, v8\nv_lshrrev_b32 v10, 1, v2\nv_lshl_add_u32 v8, v10, 3, v8")
    a("s_mul_i32 s49, s3, 608\ns_add_u32 s49, s49, s48")
    for i, b in enumerate((4, 12)):
        for r in range(4): a(f"v_fmac_f32 v{ACC+b+r}, v{CS+b}, v{216+2*r}\nv_mul_f32 v{ACC+b+r}, v{ACC+b+r}, v{217+2*r}")
        b += ACC
        a(f"v_cvt_pk_bf16_f32 v{b}, v{b}, v{b+1}\nv_cvt_pk_bf16_f32 v{b+1}, v{b+2}, v{b+3}")
        if i == 0:
            a(f"buffer_store_dwordx2 v[{b}:{b+1}], v8, s[36:39], s49 offen offset:2304")
        else:
            a(f"v_cmp_eq_u32 vcc, 2, v1\ns_nop 1\nv_cndmask_b32 v{b}, v{b}, v{ON}, vcc\nv_cndmask_b32 v{b+1}, v{b+1}, v{ON}, vcc")
            a("v_cmp_gt_u32 vcc, 3, v1\ns_and_saveexec_b64 s[54:55], vcc")
            a(f"buffer_store_dwordx2 v[{b}:{b+1}], v8, s[36:39], s49 offen offset:{2304 + 16*16}")
            a("s_mov_b64 exec, -1")
    a("s_branch K1_fin")
    a("K1_wbar:\ns_waitcnt lgkmcnt(0)")
    srd(a, 16, 12, 0, DM*DM*2)
    ws_srd(a, 20, "WBAR", 14)
    a("s_cmp_lt_u32 s44, 18\ns_cbranch_scc1 K1_wb0")
    ws_srd(a, 24, "FLAG", 14)
    a("s_sub_u32 s45, s44, 18\ns_lshl_b32 s45, s45, 2\ns_add_u32 s45, s45, s3\ns_lshl_b32 s46, s45, 13\nv_lshlrev_b32 v3, 7, v0")
    a(f"v_mov_b32 v8, 0\nv_mov_b32 v9, 0\nv_mov_b32 v10, 0\nv_mov_b32 v11, 0\nbuffer_store_dword v8, v3, s[24:27], s46 offen\ns_add_u32 s46, s46, {56*8192}\nbuffer_store_dword v8, v3, s[24:27], s46 offen")
    a(f"s_lshl_b32 s46, s45, 10\ns_add_u32 s46, s46, {FL_RF}\nv_lshlrev_b32 v3, 4, v0\nbuffer_store_dwordx4 v[8:11], v3, s[24:27], s46 offen\ns_branch K1_fin")
    a("K1_wb0:")
    a("v_lshrrev_b32 v3, 3, v0\nv_and_b32 v5, 7, v0")
    a("s_cmp_ge_u32 s44, 16\ns_cbranch_scc1 K1_wb_hi")
    a("s_mul_i32 s45, s44, 36\ns_lshr_b32 s46, s3, 1\ns_mul_i32 s46, s46, 18\ns_add_u32 s45, s45, s46\ns_and_b32 s46, s3, 1\ns_lshl_b32 s46, s46, 2\ns_add_u32 s45, s45, s46")
    a("v_lshrrev_b32 v4, 2, v3\nv_lshlrev_b32 v4, 3, v4\nv_and_b32 v6, 3, v3\nv_add_u32 v4, v4, v6")
    a("s_branch K1_wb_go")
    a("K1_wb_hi:")
    a("s_sub_u32 s45, s44, 16\ns_mul_i32 s45, s45, 288\ns_mul_i32 s46, s3, 72\ns_add_u32 s45, s45, s46\ns_add_u32 s45, s45, 16")
    a("v_lshrrev_b32 v4, 1, v3\nv_mul_u32_u24 v4, 18, v4\nv_and_b32 v6, 1, v3\nv_add_u32 v4, v4, v6")
    a("K1_wb_go:")
    a(f"s_mul_i32 s45, s45, {DM*2}\nv_mul_u32_u24 v4, {DM*2}, v4\nv_lshl_add_u32 v4, v5, 4, v4")
    for i in range(9):
        a(f"buffer_load_dwordx4 v[{16+4*i}:{19+4*i}], v4, s[16:19], s45 offen offset:{128*i}")
    a(f"s_mov_b32 s56, {ONES}\nv_mov_b32 v6, 0\nv_mov_b32 v7, 0\ns_waitcnt vmcnt(0)")
    for i in range(36):
        a(f"v_dot2_f32_bf16 v{6+i%2}, v{16+i}, s56, v{6+i%2}")
    a("s_nop 2\nv_add_f32 v6, v6, v7\ns_nop 1")
    for x in (1, 2, 4):
        a(f"ds_swizzle_b32 v7, v6 offset:{(x << 10) | 0x1f}\ns_waitcnt lgkmcnt(0)\nv_add_f32 v6, v6, v7")
    a(f"v_mul_f32 v6, {f32bits(1.0/DM)}, v6")
    a("v_cvt_pk_bf16_f32 v7, v6, v6\nv_lshlrev_b32 v8, 16, v7\nv_sub_f32 v8, v6, v8\nv_cvt_pk_bf16_f32 v8, v8, v8")
    a("v_lshlrev_b32 v9, 5, v5\nv_lshl_add_u32 v9, v3, 1, v9")
    a(f"s_lshl_b32 s46, s44, 10\ns_lshl_b32 s47, s3, 8\ns_add_u32 s46, s46, s47")
    a(f"buffer_store_short v7, v9, s[20:23], s46 offen\nbuffer_store_short v8, v9, s[20:23], s46 offen offset:16")
    a("K1_fin:")
    if OPT.get("tlb1"):
        a(f"s_cmp_lg_u32 s3, 0\ns_cbranch_scc1 K1_ntl\ns_load_dwordx4 s[24:27], s[0:1], {B_W1}\ns_load_dwordx2 s[28:29], s[0:1], {K_OUT}\nv_lshlrev_b32 v20, {OPT['tlb1']}, v0")
        a(f"s_mov_b32 s32, s14\ns_mov_b32 s33, s15\ns_mov_b32 s34, {WS['STAMP'][0]}\ns_mov_b32 s35, 0x00020000\ns_mov_b32 s40, 0")
        n = max(1, (WS['STAMP'][0] >> OPT['tlb1']) // 64 + 1)
        for i in range(n): a(f"buffer_load_dword v21, v20, s[32:35], s40 offen sc1\ns_add_u32 s40, s40, {64 << OPT['tlb1']}")
        a("s_waitcnt lgkmcnt(0)")
        for b, sz in ((24, DM*F*2), (26, DM*F*2), (28, T*DM*2)):
            a(f"s_mov_b32 s32, s{b}\ns_mov_b32 s33, s{b+1}\ns_mov_b32 s34, {sz}\nbuffer_load_dword v21, v20, s[32:35], 0 offen sc1")
        a("K1_ntl:")
    st.finish(14, 3, 4)
    a("K1_end:\ns_endpgm")
    return kernel_desc("k1_kernel", 256)

K2_GRID = 256
K2_LDS = 32 * PAIR + 9216
def k2(a, stamp_k=-1, force_fallback=False):
    st = Stamps(a, stamp_k == 2, 2, 255, 254)
    kernel_begin(a, "k2_kernel")
    a(f"s_cmp_ge_u32 s2, {K2_GRID}\ns_cbranch_scc1 K2_end")
    a(f"s_load_dwordx2 s[14:15], s[0:1], {K_WS}\ns_load_dwordx2 s[4:5], s[0:1], {K_OUT}\ns_load_dwordx4 s[8:11], s[0:1], {B_W1}")
    st.start()
    wave_lane(a)
    a("v_and_b32 v1, 31, v0\nv_lshrrev_b32 v2, 5, v0\nv_lshlrev_b32 v3, 4, v0")
    a("s_lshr_b32 s40, s2, 2\ns_and_b32 s41, s2, 3\ns_lshl_b32 s41, s41, 3\ns_add_u32 s41, s41, s3")
    a(f"s_mul_i32 s42, s2, 9216\ns_lshl_b32 s43, s3, 10\ns_add_u32 s42, s42, s43\ns_add_u32 s43, s43, {32*PAIR}")
    a("s_lshl_b32 s44, s3, 10")
    a("s_waitcnt lgkmcnt(0)")
    ws_srd(a, 16, "KV", 14)
    ws_srd(a, 20, "Q", 14)
    Q1, Q2 = 8, 12
    def dma(r):
        txt = f"s_mov_b32 m0, s44\ns_nop 0\nbuffer_load_dwordx4 v3, s[16:19], s44 offen lds\ns_add_u32 s44, s44, 8192"
        if r == 18:
            L = a.label("dm")
            txt = f"s_cmp_ge_u32 s3, 4\ns_cbranch_scc1 {L}\n{txt}\n{L}:"
        return txt
    a("s_cmp_lg_u32 s3, 0\ns_cbranch_scc1 K2_q1")
    a(f"s_mov_b32 m0, {32*PAIR + 8192}\ns_add_u32 s45, s42, 8192\nbuffer_load_dwordx4 v3, s[20:23], s45 offen lds")
    a("K2_q1:")
    a("s_mov_b32 m0, s43\ns_nop 0\nbuffer_load_dwordx4 v3, s[20:23], s42 offen lds")
    a(dma(0)); a(dma(1)); a(dma(2))
    a(f"v_mov_b32 v{Q2+1}, 0")
    ws_srd(a, 24, "O", 14)
    a(f"v_lshrrev_b32 v4, 4, v1\nv_mul_u32_u24 v4, 4608, v4\nv_and_b32 v5, 15, v1\nv_lshl_add_u32 v4, v5, 3, v4\nv_add_u32 v4, {32*PAIR}, v4")
    a("s_mul_i32 s45, s3, 9\nv_lshlrev_b32 v5, 2, v2\nv_add_u32 v5, s45, v5")
    for i in range(5):
        if i < 4: a(f"v_add_u32 v30, {i}, v5")
        else: a("s_add_u32 s45, s45, 8\nv_mov_b32 v30, s45")
        a(f"v_lshrrev_b32 v31, 1, v30\nv_lshl_add_u32 v31, v31, 7, v4\nv_and_b32 v30, 1, v30\nv_lshl_add_u32 v{25+i}, v30, 2, v31")
    SEG = 13
    VKA, VK2, VVA = 14, 17, 20
    a(f"v_mul_u32_u24 v23, 19, v2\nv_add_u32 v23, v23, v1\nv_lshlrev_b32 v23, 4, v23\nv_mov_b32 v24, 0x40000\nv_cmp_gt_u32 vcc, 19, v1\ns_nop 1\nv_cndmask_b32 v{VVA}, v24, v23, vcc")
    a(f"v_mov_b32 v{VKA}, v3\nv_lshlrev_b32 v{VK2}, 2, v0")
    for b in (VKA, VK2, VVA):
        a(f"v_add_u32 v{b+1}, {SEG*PAIR}, v{b}\nv_add_u32 v{b+2}, {2*SEG*PAIR}, v{b}")
    SA, SB, P, O, NM = 32, 64, 96, 112, 128
    KF, K2F, VF = 144, 160, 164
    a(f"v_mov_b32 v{K2F+1}, 0\nv_mov_b32 v{K2F+3}, 0")
    for r in range(16): a(f"v_mov_b32 v{O+r}, 0")
    rp = Repack(a)
    def w3(txt):
        L = a.label("w3")
        return (f"s_cmp_lt_u32 s3, 5" if OPT.get("w3hi", True) else f"s_cmp_ge_u32 s3, 3") + f"\ns_cbranch_scc1 {L}\n{txt}\n{L}:"
    def seg(p): return p // SEG, (p % SEG) * PAIR
    def rdK(i, p):
        sg, o = seg(p)
        return [f"ds_read_b128 v[{KF+8*i}:{KF+8*i+3}], v{VKA+sg} offset:{o}",
                f"ds_read_b128 v[{KF+8*i+4}:{KF+8*i+7}], v{VKA+sg} offset:{o+1024}",
                f"ds_read_b32 v{K2F+2*i}, v{VK2+sg} offset:{o+2048}"]
    def rdV(i, p):
        sg, o = seg(p)
        return [f"ds_read_b128 v[{VF+16*i+4*q}:{VF+16*i+4*q+3}], v{VVA+sg} offset:{o+2304+608*q}" for q in range(4)]
    def qk(S, i, c):
        return [f"v_mfma_f32_32x32x16_bf16 v[{S}:{S+15}], v[{KF+8*i}:{KF+8*i+3}], v[{Q1}:{Q1+3}], {c}",
                f"v_mfma_f32_32x32x16_bf16 v[{S+16}:{S+31}], v[{KF+8*i+4}:{KF+8*i+7}], v[{Q1}:{Q1+3}], {c}",
                f"v_mfma_f32_32x32x4_2b_bf16 v[{S}:{S+31}], v[{K2F+2*i}:{K2F+2*i+1}], v[{Q2}:{Q2+1}], v[{S}:{S+31}]"]
    def pvm(vs_, u):
        return f"v_mfma_f32_32x32x16_bf16 v[{O}:{O+15}], v[{VF+16*vs_+4*u}:{VF+16*vs_+4*u+3}], v[{P+4*u}:{P+4*u+3}], v[{O}:{O+15}]"
    def rowmax(S, dst, first):
        L = []; r = 0
        if first:
            L.append(f"v_max_f32 v{dst}, v{S}, v{S+1}"); r = 2
        while r < 32:
            L.append(f"v_max3_f32 v{dst}, v{S+r}, v{S+r+1}, v{dst}"); r += 2
        return L
    def set_nm(src):
        a(f"v_mov_b32 v25, v{src}\ns_nop 1\nv_permlane32_swap_b32 v{src}, v25\ns_nop 1\nv_max_f32 v{src}, v{src}, v25")
        for r in range(16): a(f"v_sub_f32 v{NM+r}, 0, v{src}")
    def E(cur, g):
        b = cur + 4 * g
        return [f"v_exp_f32 v{b+r}, v{b+r}" for r in range(4)] + \
               [f"v_cvt_pk_bf16_f32 v{P+2*g}, v{b}, v{b+1}", f"v_cvt_pk_bf16_f32 v{P+2*g+1}, v{b+2}, v{b+3}"]
    NMr = f"v[{NM}:{NM+15}]"
    if OPT["prio"]: a("s_setprio 1")
    st(0)
    a("s_waitcnt vmcnt(2)\ns_barrier")
    st(1)
    for i in range(5): a(f"ds_read_b32 v{Q1+i}, v{25+i}")
    for x in rdK(0, 0) + rdK(1, 1) + rdV(0, 0): a(x)
    a("s_waitcnt lgkmcnt(7)")
    q = qk(SA, 0, "0")
    a(q[0]); a(q[1]); a("s_nop 9"); a(q[2]); a("s_nop 15\ns_nop 3")
    for x in rowmax(SA, 24, True): a(x)
    if force_fallback:
        a(f"v_add_f32 v24, {f32bits(-100.0)}, v24")
    set_nm(24)
    for r in range(32): a(f"v_add_f32 v{SA+r}, v{SA+r}, v{NM}")
    st(2)
    extra = {i: [] for i in range(32)}
    pre = {i: [] for i in range(32)}
    r = 3
    for i in range(8):
        extra[i] += [dma(r), dma(r + 1)]; r += 2
    pre[0].append("s_waitcnt vmcnt(0)\ns_barrier"); pre[3].append("s_waitcnt vmcnt(2)\ns_barrier"); pre[9].append(f"v_mov_b32 v196, 0\nv_mov_b32 v197, 0\nv_mov_b32 v198, 0\nv_mov_b32 v199, 0\nv_mov_b32 v200, {ffn.CNT}\nds_write_b128 v200, v[196:199]\nds_write_b128 v200, v[196:199] offset:16\nds_write_b128 v200, v[196:199] offset:32\ns_waitcnt vmcnt(0) lgkmcnt(0)\ns_barrier")
    nt_ = " nt" if OPT["k2_nt"] else ""
    def uidx(rnd):
        t = ("" if rnd else ffn_map(34, 35)) + f"s_mov_b32 s45, s34\ns_mul_i32 s47, s35, 11\ns_add_u32 s47, s47, s3\n"
        if rnd and OPT.get("w3hi", True): t += "s_add_u32 s47, s47, 3\ns_cmp_lt_u32 s3, 5\ns_cselect_b32 s47, 400, s47\n"
        elif rnd: t += "s_add_u32 s47, s47, 8\ns_cmp_ge_u32 s3, 3\ns_cselect_b32 s47, 400, s47\n"
        return t
    pre[8].append(rp.common() + "\n" + uidx(0) + rp.setup_ffn(0, 8, 10)); pre[9].insert(0, uidx(1) + rp.setup_ffn(1, 8, 10))
    for n in range(8):
        extra[9 + n // 2].append(rp.load(0, n, nt_))
        extra[13 + n // 2].append(w3(rp.load(1, n, nt_)))
    ST0 = OPT.get("k2_st0", 21)
    pre[ST0].append("s_waitcnt vmcnt(0)")
    for n in range(4):
        extra[ST0 + n // 2].append(rp.store(0, n, " sc1"))
        extra[ST0 + 2 + n // 2].append(w3(rp.store(1, n, " sc1")))
    FB = WS["FLAG"][0]
    pre[ST0 + 7].append("s_waitcnt vmcnt(0)")
    extra[ST0 + 7].append(f"s_add_u32 s36, s14, {FB}\ns_addc_u32 s37, s15, 0\ns_mov_b32 s38, {FL_END}\ns_mov_b32 s39, 0x00020000\n"
                          f"s_lshl_b32 s45, s34, 8\ns_lshl_b32 s46, s35, 3\ns_add_u32 s45, s45, s46\ns_add_u32 s45, s45, s3\ns_lshl_b32 s45, s45, 2\ns_add_u32 s45, s45, {FL_RF}\n"
                          "v_mov_b32 v206, 1\nv_mov_b32 v207, 0\ns_mov_b64 exec, 1\nbuffer_store_dword v206, v207, s[36:39], s45 offen sc1\ns_mov_b64 exec, -1")
    if OPT.get("k2_touch", True):
        extra[ST0 + 7].append(rp.touch(0)); extra[ST0 + 8].append(w3(rp.touch(1)))
    if OPT.get("tlb", False):
        L = a.label("tl")
        extra[17].append(f"s_cmp_lg_u32 s3, 7\ns_cbranch_scc1 {L}\ns_mov_b32 s28, s14\ns_mov_b32 s29, s15\ns_mov_b32 s30, {WS['STAMP'][0]}\ns_mov_b32 s31, 0x00020000\n"
                         f"v_lshlrev_b32 v206, 20, v0\nbuffer_load_dword v205, v206, s[28:31], 0 offen sc1\n"
                         f"s_mov_b32 s28, s4\ns_mov_b32 s29, s5\ns_mov_b32 s30, {T*DM*2}\nbuffer_load_dword v205, v206, s[28:31], 0 offen sc1\n{L}:")
    EW = OPT.get("wo_early", 10)
    if EW:
        wo0, wosz = WS["WOF"]
        pre[22].append(f"s_lshr_b32 s77, s2, 5\ns_add_u32 s20, s14, {wo0}\ns_addc_u32 s21, s15, 0\ns_mov_b32 s22, {wosz}\ns_mov_b32 s23, 0x00020000\n"
                       f"s_lshl_b32 s32, s3, 10\ns_mul_i32 s33, s77, {108*1024}\ns_add_u32 s33, s33, s32\ns_waitcnt lgkmcnt(0)\ns_barrier")
        nb_ = 0
        for i in list(range(25, 32)) + list(range(22, 32)):
            if nb_ < EW and len(extra[i]) < 2:
                extra[i].append("s_mov_b32 m0, s32\ns_add_u32 s32, s32, 8192\nbuffer_load_dwordx4 v3, s[20:23], s33 offen lds\ns_add_u32 s33, s33, 8192"); nb_ += 1
        assert nb_ == EW
    if OPT.get("wo_touch", True):
        L = a.label("wt")
        wb0 = WS["WBAR"][0]; wsz = WS["WOF"][0] + WS["WOF"][1] - wb0
        extra[19].append(f"s_sub_u32 s56, s3, 3\ns_cmp_ge_u32 s56, 3\ns_cbranch_scc1 {L}\ns_lshr_b32 s57, s2, 3\ns_mul_i32 s57, s57, 3\ns_add_u32 s56, s56, s57\ns_lshl_b32 s56, s56, 13\n"
                         f"s_add_u32 s28, s14, {wb0}\ns_addc_u32 s29, s15, 0\ns_mov_b32 s30, {wsz}\ns_mov_b32 s31, 0x00020000\nv_lshlrev_b32 v206, 7, v0\nbuffer_load_dword v205, v206, s[28:31], s56 offen\n{L}:")
    if OPT["codepf"]:
        L = a.label("cp")
        extra[18].append(f"s_lshr_b32 s56, s2, 3\ns_cmp_ge_u32 s56, CODE_PF_N\ns_cbranch_scc1 {L}\ns_cmp_lg_u32 s3, 0\ns_cbranch_scc1 {L}\n"
                         f"s_getpc_b64 s[58:59]\n{L}_pc:\ns_add_u32 s58, s58, K2_out-{L}_pc\ns_addc_u32 s59, s59, 0\n"
                         f"s_lshl_b32 s56, s56, 13\nv_lshlrev_b32 v206, 7, v0\nv_add_u32 v206, s56, v206\nv_min_u32 v206, CODE_END-K2_out-4, v206\nglobal_load_dword v205, v206, s[58:59]\n{L}:")
    for i in range(32):
        cur, nxt = (SA, SB) if i % 2 == 0 else (SB, SA)
        q = qk(nxt, (i + 1) % 2, NMr) if i < 31 else ["", "", ""]
        vs_ = i % 2
        kr = rdK(i % 2, i + 2) if i + 2 < 32 else ["", "", ""]
        vrd = rdV((i + 1) % 2, i + 1) if i < 31 else [""] * 4
        e = [E(cur, g) for g in range(8)]
        ex = extra[i] + ["", ""]
        seq = list(pre[i])
        PP = OPT.get("pp", 4)
        if OPT["prio"] and i % PP in (0, OPT["prio"]):
            L = a.label("pr")
            seq.append(f"s_cmp_lt_u32 s3, 4\ns_cbranch_scc1 {L}\ns_setprio {2 if i % PP == 0 else 0}\n{L}:")
        seq += ["s_waitcnt lgkmcnt(0)", q[0]] + kr[0:2] + e[0]
        seq += [pvm(1 - vs_, 3) if i > 0 else ""] + kr[2:3] + vrd[0:1] + e[1]
        seq += [q[1]] + vrd[1:3] + e[2]
        seq += [pvm(vs_, 0)] + vrd[3:4] + e[3]
        seq += [q[2], ex[0]] + e[4] + e[5][:3]
        seq += [pvm(vs_, 1), ex[1]] + e[5][3:] + e[6][:2]
        seq += [pvm(vs_, 2)] + e[6][2:] + e[7]
        for x in seq:
            if x: a(x)
        if i % 8 == 7: st(3 + i // 8)
    a("s_nop 1"); a(pvm(1, 3))
    a("s_setprio 0\ns_nop 15")
    def bcast_l():
        a(f"v_mov_b32 v25, v{O+10}\nv_mov_b32 v26, v{O+10}\ns_nop 1\nv_permlane32_swap_b32 v25, v26\ns_nop 1")
    bcast_l()
    a(f"v_mov_b32 v26, {f32bits(2.0**60)}\nv_cmp_nle_f32 vcc, v25, v26\ns_nop 4\ns_cbranch_vccz K2_out")
    a("v_mov_b32 v24, 0xff800000")
    for ps in range(2):
        a(f"s_mov_b32 s52, 0\nv_mov_b32 v27, v{VKA}\nv_mov_b32 v28, v{VK2}\nv_mov_b32 v29, v{VVA}")
        a(f"K2_fb{ps}:")
        a(f"buffer_load_dwordx4 v[{KF}:{KF+3}], v27, s[16:19], 0 offen\nbuffer_load_dwordx4 v[{KF+4}:{KF+7}], v27, s[16:19], 0 offen offset:1024\nbuffer_load_dword v{K2F}, v28, s[16:19], 0 offen offset:2048")
        if ps:
            a("s_movk_i32 s53, 2304")
            for u in range(4): a(f"buffer_load_dwordx4 v[{VF+4*u}:{VF+4*u+3}], v29, s[16:19], s53 offen offset:{608*u}")
        a("s_waitcnt vmcnt(0)")
        q = qk(SA, 0, NMr if ps else "0")
        a(q[0]); a(q[1]); a("s_nop 9"); a(q[2]); a("s_nop 15\ns_nop 3")
        if ps == 0:
            for x in rowmax(SA, 24, False): a(x)
        else:
            for g in range(8):
                for x in E(SA, g): a(x)
            a("s_nop 1")
            for u in range(4): a(pvm(0, u))
        a(f"v_add_u32 v27, {PAIR}, v27\nv_add_u32 v28, {PAIR}, v28\nv_add_u32 v29, {PAIR}, v29")
        a(f"s_add_u32 s52, s52, 1\ns_cmp_lt_u32 s52, 32\ns_cbranch_scc1 K2_fb{ps}")
        if ps == 0:
            set_nm(24)
            for r in range(16): a(f"v_mov_b32 v{O+r}, 0")
    a("s_nop 15")
    bcast_l()
    a("K2_out:")
    WR, XR, ACC, XRES = 12, 40, 112, 140
    a("s_lshr_b32 s77, s2, 5\ns_and_b32 s78, s2, 7\ns_lshl_b32 s78, s78, 2\ns_bfe_u32 s43, s2, 0x20003\ns_add_u32 s78, s78, s43")
    a("s_cmp_ge_u32 s3, 4\ns_cbranch_scc1 K2_noearly")
    a("s_lshl_b32 s46, s78, 2\ns_add_u32 s46, s46, s3")
    ws_srd(a, 48, "MEAN1", 14)
    ws_srd(a, 52, "XC", 14)
    a(f"s_mul_i32 s47, s77, 3072\ns_mul_i32 s30, s46, 18432\ns_add_u32 s47, s47, s30")
    for u in range(3):
        a(f"buffer_load_dwordx4 v[{XRES+4*u}:{XRES+4*u+3}], v3, s[52:55], s47 offen offset:{1024*u}")
    a(f"v_and_b32 v166, 15, v0\nv_lshlrev_b32 v166, 2, v166\ns_lshl_b32 s65, s46, 6\nbuffer_load_dword v165, v166, s[48:51], s65 offen")
    a("K2_noearly:")
    a(f"s_lshl_b32 s43, s34, 10\ns_add_u32 s43, s43, {FL_RF}\nbuffer_load_dwordx4 v[160:163], v3, s[36:39], s43 offen sc1")
    a(f"v_rcp_f32 v25, v25\ns_nop 0")
    for r in range(10): a(f"v_mul_f32 v{O+r}, v{O+r}, v25")
    for r in range(5): a(f"v_cvt_pk_bf16_f32 v{P+r}, v{O+2*r}, v{O+2*r+1}")
    a(f"v_lshrrev_b32 v26, 4, v1\nv_mul_u32_u24 v27, {18*1024}, v26\nv_and_b32 v28, 15, v1\nv_lshl_add_u32 v27, v28, 4, v27\nv_lshl_add_u32 v27, v2, 8, v27")
    a(f"s_mul_i32 s42, s40, {36*1024}\ns_lshl_b32 s43, s41, 9\ns_add_u32 s43, s43, s42")
    a(f"buffer_store_dwordx4 v[{P}:{P+3}], v27, s[24:27], s43 offen sc1")
    OSC = 32 * PAIR + 1024
    a(f"s_lshr_b32 s43, s3, 2\ns_lshl_b32 s43, s43, 8\ns_and_b32 s44, s3, 3\ns_lshl_b32 s44, s44, 2\ns_add_u32 s43, s43, s44\ns_add_u32 s43, s43, {OSC}")
    a(f"v_lshlrev_b32 v26, 9, v26\nv_lshl_add_u32 v26, v28, 4, v26\nv_add_u32 v26, s43, v26\ns_mov_b64 exec, 0xffffffff\nds_write_b32 v26, v{P+4}\ns_mov_b64 exec, -1")
    a(f"v_mov_b32 v172, {ffn.CNT}\nv_mov_b32 v8, 1\nv_mov_b32 v9, 0\ns_lshl_b32 s79, s2, 7\ns_add_u32 s79, s79, {FL_OF}")
    a(f"v_add_u32 v4, {OSC}, v3\nv_mul_u32_u24 v5, {18*1024}, v2\nv_lshl_add_u32 v5, v1, 4, v5")
    a("s_and_b32 s43, s2, 3\ns_lshl_b32 s43, s43, 9\ns_add_u32 s43, s43, s42\ns_add_u32 s43, s43, 16384")
    a("s_waitcnt lgkmcnt(0)\ns_barrier")
    st(7)
    a("s_cmp_lg_u32 s3, 0\ns_cbranch_scc1 K3_norem")
    a("ds_read_b128 v[12:15], v4\ns_waitcnt lgkmcnt(0)\nbuffer_store_dwordx4 v[12:15], v5, s[24:27], s43 offen sc1")
    a("K3_norem:")
    a("v_lshlrev_b32 v2, 4, v0\ns_mov_b32 s40, s77\ns_mov_b32 s41, s78")
    a("s_waitcnt vmcnt(0)\ns_mov_b64 exec, 1\nds_add_rtn_u32 v168, v172, v8 offset:36\ns_waitcnt lgkmcnt(0)\nv_readfirstlane_b32 s70, v168\ns_cmp_lg_u32 s70, 7\ns_cbranch_scc1 K3_nofl")
    a("buffer_store_dword v8, v9, s[36:39], s79 offen sc1\nK3_nofl:\ns_mov_b64 exec, -1")
    a("s_cmp_ge_u32 s3, 4\ns_cbranch_scc1 K3_loader")
    a("v_add_u32 v3, 0x10000, v2\nv_add_u32 v4, 0x20000, v2\nv_and_b32 v5, 15, v0\nv_lshrrev_b32 v6, 4, v0\nv_lshlrev_b32 v7, 7, v0")
    a("v_lshlrev_b32 v11, 2, v5\nv_mov_b32 v10, v165")
    st(8)
    a("s_cmp_ge_u32 s40, 6\ns_cbranch_scc1 K4_compute")
    a(f"s_lshl_b32 s43, s41, 3\ns_lshr_b32 s44, s3, 1\ns_lshl_b32 s44, s44, 2\ns_add_u32 s43, s43, s44\ns_lshl_b32 s43, s43, 7\ns_add_u32 s43, s43, {FL_OF}")
    ws_srd(a, 52, "HC", 14)
    ws_srd(a, 56, "MU2", 14)
    ws_srd(a, 60, "SS", 14)
    a("s_barrier")
    st(13)
    for j in range(7):
        off = j * 1024 if j < 6 else 108 * 1024
        a(f"ds_read_b128 v[{12+4*j}:{15+4*j}], v{2 + off // 65536} offset:{off % 65536}")
    poll(a, 4, 7, 36, 43, 164, 1)
    st(9)
    def oload(ks):
        return ("s_add_u32 s30, s30, 4096\n" if ks and ks % 4 == 0 else "") + f"buffer_load_dwordx4 v[{XR+4*ks}:{XR+4*ks+3}], v2, s[24:27], s30 offen offset:{(ks%4)*1024} sc1"
    OD = OPT.get("k3_od", 6)
    for ks in range(OD): a(oload(ks))
    st(10)
    def wread(ks, j):
        off = (ks * 6 + j) * 1024 if j < 6 else (108 + ks) * 1024
        return f"ds_read_b128 v[{WR+4*j}:{WR+4*j+3}], v{2 + off // 65536} offset:{off % 65536}"
    nl = OD
    for ks in range(18):
        for j in range(7):
            a((f"s_waitcnt vmcnt({nl-1-ks}) " if j == 0 else "s_waitcnt ") + f"lgkmcnt({6 if ks < 17 else 6-j})")
            c = "0" if ks == 0 else f"v[{ACC+4*j}:{ACC+4*j+3}]"
            a(f"v_mfma_f32_16x16x32_bf16 v[{ACC+4*j}:{ACC+4*j+3}], v[{WR+4*j}:{WR+4*j+3}], v[{XR+4*ks}:{XR+4*ks+3}], {c}")
            if ks < 17: a(wread(ks + 1, j))
            if j in (1, 4) and nl < 18:
                a(oload(nl)); nl += 1
    a("s_barrier")
    st(11)
    e = ACC + 24
    a(f"s_nop 6\nv_add_f32 v10, v10, v{e}\nv_add_f32 v10, v10, v{e+1}\nv_mov_b32 v14, 0")
    for u in range(3):
        for r in range(4):
            x = XRES + 4 * u + r
            lo, hi = ACC + 8 * u + r, ACC + 8 * u + 4 + r
            a(f"v_lshlrev_b32 v12, 16, v{x}\nv_and_b32 v13, 0xffff0000, v{x}")
            a(f"v_add_f32 v{lo}, v{lo}, v12\nv_add_f32 v{hi}, v{hi}, v13")
            a(f"v_sub_f32 v{lo}, v{lo}, v10\nv_sub_f32 v{hi}, v{hi}, v10")
            a(f"v_cvt_pk_bf16_f32 v{XR+4*u+r}, v{lo}, v{hi}")
        a(f"buffer_store_dwordx4 v[{XR+4*u}:{XR+4*u+3}], v2, s[52:55], s47 offen offset:{1024*u} sc1")
    for i in range(12): a(f"v_dot2_f32_bf16 v14, v{XR+i}, v{XR+i}, v14")
    a("s_nop 2")
    sum_g(a, 14, 12)
    a("s_lshl_b32 s43, s41, 3\ns_add_u32 s43, s43, s40\ns_lshl_b32 s43, s43, 8\ns_lshl_b32 s44, s3, 6\ns_add_u32 s43, s43, s44\ns_mov_b64 exec, 0xffff")
    a("buffer_store_dword v14, v11, s[60:63], s43 offen sc1")
    a("s_cmp_lg_u32 s40, 0\ns_cbranch_scc1 K3_nomu\nbuffer_store_dword v10, v11, s[56:59], s65 offen sc1\nK3_nomu:")
    a(f"s_lshl_b32 s43, s46, 3\ns_add_u32 s43, s43, s40\ns_lshl_b32 s43, s43, 7\ns_add_u32 s43, s43, {FL_HF}")
    a("s_waitcnt vmcnt(0)\ns_mov_b64 exec, 1\nbuffer_store_dword v8, v9, s[36:39], s43 offen sc1\ns_mov_b64 exec, -1")
    st(12)
    a("s_branch K4_compute")
    a("K3_loader:")
    a(f"v_mov_b32 v4, {ffn.CNT}")
    a("s_sub_u32 s33, s3, 4\ns_cmp_ge_u32 s40, 6\ns_cbranch_scc1 K3_pf")
    ws_srd(a, 20, "WOF", 14)
    ws_srd(a, 68, "WBAR", 14)
    a(f"s_lshl_b32 s76, s33, 10\ns_mul_i32 s75, s40, {108*1024}\ns_add_u32 s74, s76, {EW*8192}\ns_add_u32 s75, s75, s74")
    for i in range(2*EW, 32):
        sd, so = ((20, 75) if i < 27 else (68, 76))
        a(f"s_mov_b32 m0, s74\ns_add_u32 s74, s74, 4096\nbuffer_load_dwordx4 v2, s[{sd}:{sd+3}], s{so} offen lds\ns_add_u32 s{so}, s{so}, 4096")
    a("s_waitcnt vmcnt(0)\ns_barrier")
    a("K3_pf:")
    a("s_cmp_ge_u32 s40, 6\ns_cbranch_scc1 K4_helper\ns_barrier\ns_branch K4_helper")
    k4(a, st)
    a("K2_end:\ns_endpgm\nCODE_END:")
    return kernel_desc("k2_kernel", 256)

def rf_check(a, first_loaded):
    L = a.label("rf")
    a(f"s_lshl_b32 s43, s34, 10\ns_add_u32 s43, s43, {FL_RF}\ns_mov_b32 s73, 0x8000" + (f"\ns_branch {L}_1" if first_loaded else ""))
    a(f"{L}:\nbuffer_load_dwordx4 v[160:163], v2, s[36:39], s43 offen sc1\ns_waitcnt vmcnt(0)\n{L}_1:\nv_and_b32 v12, v160, v161\nv_and_b32 v14, v162, v163\nv_and_b32 v12, v12, v14\nv_cmp_eq_u32 vcc, 1, v12\ns_nop 1")
    a(f"s_cmp_eq_u64 vcc, -1\ns_cbranch_scc1 {L}_ok\ns_sleep 2\ns_sub_u32 s73, s73, 1\ns_cbranch_scc0 {L}\n{L}_ok:")
def h_bases(a, sw):
    a("v_add_u32 v3, 0x10000, v2\nv_add_u32 v4, 0x20000, v2")
    a(f"s_mul_i32 s42, s{sw}, 3\ns_lshr_b32 s43, s42, 1\ns_lshl_b32 s43, s43, 12\ns_and_b32 s44, s42, 1\ns_lshl_b32 s45, s44, 3\ns_add_u32 s43, s43, s45\ns_add_u32 s43, s43, {ffn.HB}")
    a("v_add_u32 v5, s43, v2")
    a("s_mul_i32 s45, s44, 4080\ns_add_u32 s45, s45, 8\nv_add_u32 v6, s45, v5")
def k4(a, st0):
    st = lambda i: st0(20 + i)
    a("K4_compute:\ns_mov_b32 s40, s34\ns_mov_b32 s41, s35")
    rf_check(a, True)
    a(f"s_lshl_b32 s46, s40, 2\ns_add_u32 s46, s46, s3\ns_mul_i32 s31, s46, {324*1024}")
    ws_srd(a, 20, "WF", 14)
    cs = ffn.Stream(a, PAT(), srdW=20, sW=31, v_lane16=2, v_h8=5, v_p=7, v_one=10, ACC=16, XF=112, TMP=160, RB=176,
                    RINGF=(19 if st0.on else 20), stamp=st)
    cs.prefill(OPT.get("k4_pre", 18))
    a("s_setprio 2")
    h_bases(a, 3)
    a("v_and_b32 v12, 15, v0\nv_lshrrev_b32 v13, 4, v0\ns_lshr_b32 s45, s3, 1\nv_lshl_add_u32 v13, v13, 1, s45\nv_and_b32 v14, 7, v0\nv_xor_b32 v13, v13, v14")
    a("s_and_b32 s45, s3, 1\ns_lshl_b32 s45, s45, 3\nv_lshl_add_u32 v13, v13, 4, s45\nv_lshl_add_u32 v7, v12, 7, v13\nv_add_u32 v8, 0x8000, v7")
    a(f"v_mov_b32 v10, 1\nv_mov_b32 v11, {ffn.CNT}")
    cs.run()
    a("s_branch K4_work")
    PB, AC = 48, 112
    a("K4_helper:")
    a(f"s_setprio {OPT.get('k4_hprio', 0)}\ns_mov_b32 s40, s34\ns_mov_b32 s41, s35")
    a(f"s_mul_i32 s30, s41, 73728\ns_mul_i32 s90, s33, 18432\ns_add_u32 s30, s30, s90")
    ws_srd(a, 16, "HC", 14)
    a(f"s_lshl_b32 s43, s41, 2\ns_add_u32 s43, s43, s33\ns_lshl_b32 s43, s43, 10\ns_add_u32 s43, s43, {FL_HF}\nv_lshlrev_b32 v12, 7, v0")
    poll(a, 6, 12, 36, 43, 13, 1)
    st(9)
    for i in range(18):
        if i % 4 == 0: a("s_mov_b32 m0, s90\ns_add_u32 s90, s90, 4096")
        a(f"buffer_load_dwordx4 v2, s[16:19], s30 offen offset:{(i%4)*1024} sc1 lds")
        if i % 4 == 3: a("s_add_u32 s30, s30, 4096")
        if i >= 5 and i % 3 == 2: a("s_waitcnt vmcnt(3)\ns_barrier")
    a("s_waitcnt vmcnt(0)\ns_barrier")
    for i in range(ffn.N_BARRIERS_AFTER_X): a("s_barrier")
    NPUB = OPT.get("npub", 2)
    a(f"s_cmp_ge_u32 s33, {NPUB}\ns_cbranch_scc1 K4_work")
    def wait_cnt(L, slp):
        a(f"s_mov_b32 s72, 0x40000\n{L}:\nds_read_b32 v3, v4\ns_waitcnt lgkmcnt(0)\nv_readfirstlane_b32 s70, v3\ns_cmp_eq_u32 s70, 4\ns_cbranch_scc1 {L}_ok\ns_sleep {slp}\ns_sub_u32 s72, s72, 1\ns_cbranch_scc0 {L}\n{L}_ok:")
    SWZ = "v_lshrrev_b32 v5, 3, v0\nv_and_b32 v6, 7, v0\nv_xor_b32 v7, v5, v6\nv_lshlrev_b32 v7, 4, v7\nv_lshl_add_u32 v7, v5, 7, v7"
    ws_srd(a, 24, "PART", 14)
    a("s_mov_b32 s42, s33"); a(SWZ)
    a(f"s_lshl_b32 s44, s42, 13\nv_add_u32 v7, s44, v7\ns_lshl_b32 s44, s42, 2\ns_add_u32 s44, s44, {ffn.CNT}\nv_mov_b32 v4, s44")
    a("s_mul_i32 s49, s41, 9\ns_add_u32 s49, s49, s42\ns_lshl_b32 s47, s49, 16\ns_lshl_b32 s51, s49, 10")
    a("s_lshl_b32 s44, s40, 13\ns_add_u32 s47, s47, s44\ns_lshl_b32 s44, s40, 7\ns_add_u32 s51, s51, s44\nv_mov_b32 v13, 1\nv_mov_b32 v18, 0")
    a("K4_pub:")
    wait_cnt("K4_pw", 2)
    st0.dyn(34, 42)
    for i in range(8): a(f"ds_read_b128 v[{PB+4*i}:{PB+4*i+3}], v7 offset:{1024*i}")
    a("s_add_u32 s71, s47, 4096")
    for i in range(8):
        a(f"s_cmp_eq_u32 s40, {i}\ns_cbranch_scc1 K4_ps{i}\ns_waitcnt lgkmcnt({7-i})\nbuffer_store_dwordx4 v[{PB+4*i}:{PB+4*i+3}], v2, s[24:27], s{47 if i < 4 else 71} offen offset:{(i%4)*1024} sc1\nK4_ps{i}:")
    a("s_waitcnt vmcnt(0) lgkmcnt(0)\ns_mov_b64 exec, 1\nbuffer_store_dword v13, v18, s[36:39], s51 offen sc1\ns_mov_b64 exec, -1")
    st0.dyn(43, 42)
    a(f"s_add_u32 s42, s42, {NPUB}\ns_add_u32 s47, s47, {NPUB << 16}\ns_add_u32 s51, s51, {NPUB << 10}\nv_add_u32 v7, {NPUB << 13}, v7\nv_add_u32 v4, {4*NPUB}, v4\ns_cmp_lt_u32 s42, 9\ns_cbranch_scc1 K4_pub")
    a("K4_work:")
    a(f"v_mov_b32 v14, {ffn.CNT}\nv_mov_b32 v15, 1")
    TAKE = "s_mov_b64 exec, 1\nds_add_rtn_u32 v3, v14, v15 offset:40\ns_mov_b64 exec, -1\ns_waitcnt lgkmcnt(0)\nv_readfirstlane_b32 s42, v3\ns_cmp_ge_u32 s42, 9\ns_cbranch_scc1 K4_fin"
    a(TAKE)
    ws_srd(a, 16, "HC", 14)
    ws_srd(a, 24, "PART", 14)
    ws_srd(a, 52, "MU2", 14)
    ws_srd(a, 56, "SS", 14)
    srd(a, 60, 4, 0, T*DM*2)
    a(SWZ)
    a("s_lshl_b32 s43, s40, 3\nv_add_u32 v8, s43, v5")
    a("v_lshlrev_b32 v19, 2, v8\ns_lshl_b32 s44, s41, 8\ns_lshl_b32 s65, s41, 11\nbuffer_load_dword v140, v19, s[52:55], s44 offen sc1")
    for nb in range(6): a(f"buffer_load_dword v{144+nb}, v19, s[56:59], s65 offen offset:{256*nb} sc1")
    a("s_lshl_b32 s44, s40, 10\nv_add_u32 v9, s44, v7\nv_lshlrev_b32 v12, 7, v0")
    a("v_lshrrev_b32 v10, 4, v8\nv_mul_u32_u24 v10, 18432, v10\nv_lshl_add_u32 v10, v6, 8, v10\nv_and_b32 v11, 15, v8\nv_lshl_add_u32 v10, v11, 4, v10")
    a(f"v_mul_u32_u24 v11, {DM*2}, v8\nv_lshl_add_u32 v11, v6, 4, v11")
    a("v_and_b32 v19, 1, v0\nv_cmp_eq_u32 s[66:67], 1, v19\ns_mov_b32 s68, 0x00003f80\ns_mov_b32 s69, 0x3f800000\ns_mov_b32 s74, 0")
    a("K4_red:")
    a("s_mul_i32 s30, s41, 73728\ns_lshl_b32 s44, s42, 11\ns_add_u32 s30, s30, s44\nbuffer_load_dwordx4 v[20:23], v10, s[16:19], s30 offen sc1")
    a(f"s_mul_i32 s64, s41, {64*DM*2}\ns_lshl_b32 s44, s42, 7\ns_add_u32 s64, s64, s44")
    a(f"s_lshl_b32 s44, s42, 13\nv_add_u32 v7, s44, v9\ns_lshl_b32 s44, s42, 2\ns_add_u32 s44, s44, {ffn.CNT}\nv_mov_b32 v4, s44")
    a("s_mul_i32 s49, s41, 9\ns_add_u32 s49, s49, s42\ns_lshl_b32 s71, s49, 16\ns_lshl_b32 s51, s49, 10\ns_lshl_b32 s44, s40, 10\ns_add_u32 s71, s71, s44")
    wait_cnt("K4_rw", 4)
    poll(a, 8, 12, 36, 51, 3, OPT.get("red_slp", 2))
    st0.dyn(52, 42)
    for j in range(8):
        b = PB + 4*j
        a(f"s_cmp_eq_u32 s40, {j}\ns_cbranch_scc1 K4_ro{j}\nbuffer_load_dwordx4 v[{b}:{b+3}], v2, s[24:27], s71 offen sc1\ns_branch K4_rp{j}\nK4_ro{j}:\nds_read_b128 v[{b}:{b+3}], v7\nK4_rp{j}:\ns_add_u32 s71, s71, 8192")
    a("s_cmp_lg_u32 s74, 0\ns_cbranch_scc1 K4_hs\ns_mov_b32 s74, 1")
    a("v_add_f32 v144, v144, v145\nv_add_f32 v146, v146, v147\nv_add_f32 v148, v148, v149\nv_add_f32 v144, v144, v146\nv_add_f32 v144, v144, v148")
    a(f"v_mov_b32 v145, {f32bits(1e-5)}\nv_fmac_f32 v145, {f32bits(1.0/DM)}, v144\nv_rsq_f32 v142, v145\nK4_hs:")
    for i in range(4):
        a(f"v_lshlrev_b32 v{24+2*i}, 16, v{20+i}\nv_and_b32 v{25+2*i}, 0xffff0000, v{20+i}\nv_add_f32 v{24+2*i}, v{24+2*i}, v140\nv_add_f32 v{25+2*i}, v{25+2*i}, v140")
    a("s_waitcnt lgkmcnt(0)")
    for j in range(8):
        a(f"s_waitcnt vmcnt({max(0, 6-j)})")
        for qq in range(2):
            for p in range(2):
                src = PB + 4*j + 2*qq + p
                d0, d1 = AC + 4*p + qq, AC + 4*p + 2 + qq
                if OPT.get("red_dot", False):
                    for hh, d in ((0, d0), (1, d1)):
                        a(f"v_dot2_f32_bf16 v{d}, v{src}, s{68+hh}, {'0' if j == 0 else f'v{d}'}")
                elif j == 0:
                    a(f"v_lshlrev_b32 v{d0}, 16, v{src}\nv_and_b32 v{d1}, 0xffff0000, v{src}")
                else:
                    a(f"v_lshlrev_b32 v16, 16, v{src}\nv_and_b32 v{src}, 0xffff0000, v{src}\nv_add_f32 v{d0}, v{d0}, v16\nv_add_f32 v{d1}, v{d1}, v{src}")
    a("s_nop 2")
    for i in range(4):
        a(f"v_cndmask_b32 v{AC+8+i}, v{AC+4+i}, v{AC+i}, s[66:67]")
        a(f"v_cndmask_b32 v{AC+12+i}, v{AC+i}, v{AC+4+i}, s[66:67]")
    a("s_nop 1")
    for i in range(4):
        a(f"v_mov_b32_dpp v{AC+16+i}, v{AC+8+i} quad_perm:[1,0,3,2] row_mask:0xf bank_mask:0xf")
    for hlf in range(2):
        for e in range(2):
            k_, r_ = AC + 12 + 2*hlf + e, AC + 16 + 2*hlf + e
            a(f"v_cndmask_b32 v{AC+4*hlf+e}, v{k_}, v{r_}, s[66:67]\nv_cndmask_b32 v{AC+4*hlf+2+e}, v{r_}, v{k_}, s[66:67]")
    for i in range(4):
        a(f"v_fmac_f32 v{24+2*i}, v{AC+2*i}, v142\nv_fmac_f32 v{25+2*i}, v{AC+2*i+1}, v142\nv_cvt_pk_bf16_f32 v{40+i}, v{24+2*i}, v{25+2*i}")
    a("buffer_store_dwordx4 v[40:43], v11, s[60:63], s64 offen")
    st0.dyn(8, 42)
    a(TAKE + "\ns_branch K4_red")
    a("K4_fin:")
    st0.finish(14, 3, 8)

HEADER = open("cdna_kernels/" + NAME + ".s.ref").read().split("; Override launch geometry")[0]
def build(stamp_k=-1, force_fallback=False, light=False, **opt):
    LIGHT[0] = light
    OPT.update(opt)
    a = Asm()
    launches = [("k1_kernel", K1_GRID, 512, K1_LDS), ("k2_kernel", K2_GRID, 512, K2_LDS)]
    hdr = HEADER + "".join(f"; @launch kernel={k} grid=({g},1,1) block=({b},1,1) lds={l}\n" for k, g, b, l in launches)
    a('.amdgcn_target "amdgcn-amd-amdhsa--gfx950"\n.text')
    descs = [k1(a, stamp_k), k2(a, stamp_k, force_fallback)]
    a('.set CODE_PF_N, (CODE_END - K2_out + 8191) / 8192')
    a('.section .rodata,"a"')
    return hdr + a.text() + "".join(descs)

if __name__ == "__main__":
    out = sys.argv[1] if len(sys.argv) > 1 else "cdna_kernels/" + NAME + ".s"
    kw = eval("dict(" + (sys.argv[2] if len(sys.argv) > 2 else "") + ")")
    open(out, "w").write(build(**kw))
```

```python
import sys, math
from asmlib import *
from gemm import gemm_core
import ffn

T, DM, NH, DH, F = 2048, 576, 32, 18, 4608
NAME = "sequential_preLN__grouped_kv_mqa__dense_activation_relu__prompt"
A_X, A_WQ, A_WK, A_WV, A_WO, B_X, B_W1, B_W2, K_OUT, K_DBG, K_WS = [8 * i for i in range(11)]
def _al(x, a=4096): return (x + a - 1) // a * a
PAIR = 4736
FL_PF, FL_OF, FL_HF, FL_RF = 0, 294912, 294912 + 32768, 294912 + 32768 + 131072
FL_AF = FL_RF + 8192
FL_END = FL_AF + 32768
SW, SE = 100, 101
WS = {}
_o = 0
for nm, sz in [("EP", 128), ("Q", T*DM*2), ("KV", 32*PAIR), ("MEAN1", T*4), ("O", T*DM*2), ("HC", T*DM*2), ("MU2", T*4),
               ("SS", T*8*4), ("XC", T*DM*2), ("WBAR", 18*1024), ("WOF", 648*1024), ("WF", 2*DM*F*2),
               ("PART", 8*T*DM*2), ("FLAG", FL_END), ("STAMP", 16 << 20)]:
    WS[nm] = (_o, sz); _o += _al(sz)
WS_END = _o
QSCALE = math.log2(math.e) / math.sqrt(DH)
def f32bits(x):
    import struct
    return struct.unpack("<I", struct.pack("<f", x))[0]
ONES = 0x3f803f80

def ws_srd(a, d, nm, base):
    srd(a, d, base, WS[nm][0], WS[nm][1])

def wave_lane(a, s_wave=3):
    a(f"v_lshrrev_b32 v1, 6, v0\nv_and_b32 v0, 63, v0\ns_nop 0\nv_readfirstlane_b32 s{s_wave}, v1")

def sum_g(a, v, t):
    a(f"v_mov_b32 v{t}, v{v}\ns_nop 1\nv_permlane32_swap_b32 v{v}, v{t}\ns_nop 1\nv_add_f32 v{v}, v{v}, v{t}")
    a(f"v_mov_b32 v{t}, v{v}\ns_nop 1\nv_permlane16_swap_b32 v{v}, v{t}\ns_nop 1\nv_add_f32 v{v}, v{v}, v{t}")

LIGHT = [False]
OPT = dict(prio=3, k2_nt=True, codepf=True)
class Stamps:
    def __init__(self, a, on, kidx, vreg, vtmp):
        self.a, self.on, self.k, self.v, self.t = a, bool(on) or LIGHT[0], kidx, vreg, vtmp
        self.full = bool(on)
    def start(self):
        if self.on:
            self.a(f"s_memrealtime s[96:97]\ns_memtime s[98:99]\nv_mov_b32 v{self.v}, 0\ns_waitcnt lgkmcnt(0)\nv_writelane_b32 v{self.v}, s96, 62")
    def __call__(self, i):
        if self.full or (self.on and i == 61):
            if OPT.get("rt") and i != 61:
                self.a(f"s_memrealtime s[96:97]\ns_waitcnt lgkmcnt(0)\nv_writelane_b32 v{self.v}, s96, {i}")
            else:
                self.a(f"s_memtime s[96:97]\ns_waitcnt lgkmcnt(0)\ns_sub_u32 s96, s96, s98\nv_writelane_b32 v{self.v}, s96, {i}")
    def dyn(self, base, sreg):
        if self.full:
            self.a(f"s_memrealtime s[96:97]\ns_add_u32 m0, s{sreg}, {base}\ns_waitcnt lgkmcnt(0)\nv_writelane_b32 v{self.v}, s96, m0")
    def finish(self, s_ws, s_wave, nw):
        if self.on:
            a = self.a
            a("s_waitcnt vmcnt(0)")
            self(61)
            a(f"s_memrealtime s[96:97]\ns_waitcnt lgkmcnt(0)\nv_writelane_b32 v{self.v}, s96, 63")
            ws_srd(a, 92, "STAMP", s_ws)
            a(f"s_lshl_b32 s96, s2, 3\ns_add_u32 s96, s96, s{s_wave}\ns_lshl_b32 s96, s96, 8\ns_add_u32 s96, s96, {self.k << 21}")
            a(f"v_mbcnt_lo_u32_b32 v{self.t}, -1, 0\nv_mbcnt_hi_u32_b32 v{self.t}, -1, v{self.t}\nv_lshlrev_b32 v{self.t}, 2, v{self.t}")
            a(f"buffer_store_dword v{self.v}, v{self.t}, s[92:95], s96 offen")


def PAT(): return OPT.get('pat', (3, 3, 2, 1))
class Repack:
    PR = 208
    def __init__(self, a): self.a = a
    def common(self):
        return (f"s_add_u32 s60, s14, {WS['WOF'][0]}\ns_addc_u32 s61, s15, 0\ns_mov_b32 s62, {WS['WF'][0] + WS['WF'][1] - WS['WOF'][0]}\ns_mov_b32 s63, 0x00020000\n"
                "v_and_b32 v6, 15, v0\nv_lshrrev_b32 v7, 4, v0\ns_mov_b32 s80, 0x05040100\ns_mov_b32 s81, 0x07060302")
    def regs(self, rnd): return 64 + 4 * rnd, 72 + 4 * rnd, 82 + 4 * rnd, 242 + rnd, 240 + rnd
    def setup_ffn(self, rnd, pw1, pw2):
        L = self.a.label("rp")
        SD, SB_, SO, vsrc, dst = self.regs(rnd)
        OWF = WS["WF"][0] - WS["WOF"][0]
        t = []; A = t.append
        A(f"s_mul_hi_u32 s46, s47, {(2**32 + 161)//162}\ns_mul_i32 s49, s46, 162\ns_sub_u32 s47, s47, s49")
        A(f"s_mul_hi_u32 s49, s47, {(2**32 + 8)//9}\ns_mul_i32 s50, s49, 9\ns_sub_u32 s50, s47, s50")
        A(f"s_mov_b32 s{SD+3}, 0x00020000\ns_lshl_b32 s54, s50, 7\nv_mov_b32 v{dst}, v3")
        A(f"s_cmp_lt_u32 s46, 2\ns_cselect_b32 s{SD+2}, {DM*F*2}, 0\ns_cselect_b32 s57, 0, 0x100000")
        A(f"s_mul_i32 s53, s45, 1296\ns_mul_i32 s55, s46, 162\ns_add_u32 s53, s53, s55\ns_add_u32 s53, s53, {OWF//1024}\ns_add_u32 s53, s53, s57")
        A(f"s_cmp_eq_u32 s46, 1\ns_cbranch_scc1 {L}_w2")
        A("s_mul_i32 s55, s49, 3\ns_add_u32 s53, s53, s55")
        for q in range(4):
            A(f"s_lshl_b32 s55, s50, 2\ns_add_u32 s55, s55, {q}\ns_mul_i32 s56, s55, 86\ns_lshr_b32 s56, s56, 8")
            A(f"s_lshr_b32 s58, s56, 2\ns_mul_i32 s58, s58, 1242\ns_mul_i32 s56, s56, 321\ns_sub_u32 s56, s56, s58")
            A(f"s_add_u32 s55, s55, s56\ns_add_u32 s55, s55, s53\ns_lshl_b32 s{SO+q}, s55, 10")
        A(f"s_mov_b32 s{SD}, s{pw1}\ns_mov_b32 s{SD+1}, s{pw1+1}\ns_mul_i32 s53, s49, {32*F*2}\ns_mul_i32 s55, s45, {DM*2}\ns_add_u32 s53, s53, s55\ns_add_u32 s{SB_}, s53, s54")
        A(f"s_mov_b32 s{SB_+1}, {4*F*2}\ns_mov_b32 s{SB_+2}, {2*F*2}\ns_mov_b32 s{SB_+3}, {F*2}")
        A(f"v_mul_u32_u24 v{vsrc}, {8*F*2}, v7\nv_lshl_add_u32 v{vsrc}, v6, 3, v{vsrc}\ns_branch {L}_done")
        A(f"{L}_w2:")
        idx, siz = 0, 0
        cb = 0
        for n in PAT():
            for i in range(n):
                idx |= i << (2 * (cb + i)); siz |= n << (2 * (cb + i))
            cb += n
        A(f"s_lshl_b32 s55, s50, 1\ns_lshr_b32 s56, {idx}, s55\ns_and_b32 s56, s56, 3\ns_lshr_b32 s58, {siz}, s55\ns_and_b32 s58, s58, 3")
        A("s_mul_i32 s58, s58, s49\ns_add_u32 s53, s53, s58\ns_mul_i32 s58, s50, 18\ns_add_u32 s53, s53, s58\ns_mul_i32 s56, s56, 17\ns_sub_u32 s53, s53, s56")
        A(f"s_lshl_b32 s{SO}, s53, 10\ns_add_u32 s{SO+1}, s{SO}, {324*1024}\ns_add_u32 s{SO+2}, s{SO}, {648*1024}\ns_add_u32 s{SO+3}, s{SO}, {972*1024}")
        A(f"s_mov_b32 s{SD}, s{pw2}\ns_mov_b32 s{SD+1}, s{pw2+1}\ns_lshr_b32 s53, s49, 1\ns_lshl_b32 s53, s53, 6\ns_and_b32 s55, s49, 1\ns_lshl_b32 s55, s55, 1\ns_add_u32 s53, s53, s55")
        A(f"s_mul_i32 s55, s45, {DM}\ns_add_u32 s53, s53, s55\ns_mul_i32 s53, s53, {DM*2}\ns_add_u32 s{SB_}, s53, s54")
        A(f"s_mov_b32 s{SB_+1}, {DM*2}\ns_mov_b32 s{SB_+2}, {8*DM*2}\ns_mov_b32 s{SB_+3}, {4*DM*2}")
        A(f"v_mul_u32_u24 v{vsrc}, {16*DM*2}, v7\nv_lshl_add_u32 v{vsrc}, v6, 3, v{vsrc}")
        A(f"{L}_done:")
        return "\n".join(t)
    def setup_wo(self, rnd, pwo):
        L = self.a.label("rp")
        SD, SB_, SO, vsrc, dst = self.regs(rnd)
        t = []; A = t.append
        A(f"s_mul_hi_u32 s49, s47, {(2**32 + 8)//9}\ns_mul_i32 s50, s49, 9\ns_sub_u32 s50, s47, s50")
        A(f"s_mov_b32 s{SD+3}, 0x00020000\ns_lshl_b32 s54, s50, 7")
        A(f"s_mov_b32 s{SD}, s{pwo}\ns_mov_b32 s{SD+1}, s{pwo+1}\ns_cmp_lt_u32 s47, 162\ns_cselect_b32 s{SD+2}, {DM*DM*2}, 0\ns_cselect_b32 s56, 0, 0x40000000")
        A(f"s_mul_i32 s55, s49, 6144\ns_add_u32 s{SO}, s56, s55\ns_add_u32 s{SO+1}, s{SO}, 1024\ns_add_u32 s{SO+2}, s{SO}, 16\ns_add_u32 s{SO+3}, s{SO}, 1040")
        A(f"s_lshl_b32 s55, s50, 1\nv_lshrrev_b32 v245, 3, v6\nv_add_u32 v245, s55, v245\nv_mul_u32_u24 v246, 86, v245\nv_lshrrev_b32 v246, 8, v246")
        A(f"v_mul_u32_u24 v246, 51, v246\nv_add_u32 v245, v245, v246\nv_lshlrev_b32 v245, 11, v245")
        A(f"v_and_b32 v246, 7, v6\nv_lshl_add_u32 v245, v246, 5, v245\nv_lshl_add_u32 v{dst}, v7, 8, v245")
        A(f"s_mov_b32 s{SB_+3}, {DM*2}\ns_cmp_ge_u32 s49, 16\ns_cbranch_scc1 {L}_wo2")
        A(f"s_mul_i32 s53, s49, {36*DM*2}\ns_mov_b32 s{SB_+1}, {8*DM*2}\ns_mov_b32 s{SB_+2}, {2*DM*2}")
        A(f"v_lshrrev_b32 v246, 1, v7\nv_mul_u32_u24 v246, 18, v246\nv_and_b32 v247, 1, v7\nv_lshl_add_u32 v246, v247, 2, v246\ns_branch {L}_wo3")
        A(f"{L}_wo2:")
        A(f"s_sub_u32 s53, s49, 16\ns_mul_i32 s53, s53, {288*DM*2}\ns_add_u32 s53, s53, {16*DM*2}\ns_mov_b32 s{SB_+1}, {36*DM*2}\ns_mov_b32 s{SB_+2}, {18*DM*2}")
        A(f"v_mul_u32_u24 v246, 72, v7")
        A(f"{L}_wo3:")
        A(f"s_add_u32 s{SB_}, s53, s54\nv_mul_u32_u24 v{vsrc}, {DM*2}, v246\nv_lshl_add_u32 v{vsrc}, v6, 3, v{vsrc}")
        return "\n".join(t)
    def load(self, rnd, s_, flag=""):
        SD, SB_, SO, vsrc, dst = self.regs(rnd)
        raw = self.PR + 16 * rnd
        t = f"s_mov_b32 s55, s{SB_}\n"
        if s_ & 4: t += f"s_add_u32 s55, s55, s{SB_+1}\n"
        if s_ & 2: t += f"s_add_u32 s55, s55, s{SB_+2}\n"
        if s_ & 1: t += f"s_add_u32 s55, s55, s{SB_+3}\n"
        return t + f"buffer_load_dwordx2 v[{raw+2*s_}:{raw+2*s_+1}], v{vsrc}, s[{SD}:{SD+3}], s55 offen{flag}"
    def store(self, rnd, q_, flag=""):
        SD, SB_, SO, vsrc, dst = self.regs(rnd)
        raw = self.PR + 16 * rnd
        t = 196 + 4 * (q_ % 2)
        L = [f"v_perm_b32 v{t+j}, v{raw+2*(2*j+1)+(q_>>1)}, v{raw+2*(2*j)+(q_>>1)}, s{80+(q_&1)}" for j in range(4)]
        L.append(f"buffer_store_dwordx4 v[{t}:{t+3}], v{dst}, s[60:63], s{SO+q_} offen{flag}")
        return "\n".join(L)
    def touch(self, rnd):
        SD, SB_, SO, vsrc, dst = self.regs(rnd)
        return "s_mov_b64 exec, 0xff\nv_lshlrev_b32 v204, 7, v0\n" + "\n".join(f"buffer_load_dword v205, v204, s[60:63], s{SO+q} offen" for q in range(4)) + "\ns_mov_b64 exec, -1"

def ffn_map(sj, smb):
    SL = OPT.get("k4_sl", 1); lg = SL.bit_length() - 1
    return (f"s_and_b32 s46, s2, 7\ns_lshr_b32 s47, s2, 3\ns_and_b32 s{sj}, s46, {8//SL-1}\ns_lshl_b32 s{sj}, s{sj}, {lg}\ns_and_b32 s48, s47, {SL-1}\ns_add_u32 s{sj}, s{sj}, s48\n"
            f"s_lshr_b32 s{smb}, s46, {3-lg}\ns_lshl_b32 s{smb}, s{smb}, {5-lg}\ns_lshr_b32 s48, s47, {lg}\ns_add_u32 s{smb}, s{smb}, s48\n")

def poll(a, n, voff, srd_, soff, vt, slp=2, first_loaded=False):
    L = a.label("poll")
    m = (1 << n) - 1
    a(f"s_mov_b32 s91, 0x10000\ns_mov_b32 exec_lo, {m & 0xffffffff}\ns_mov_b32 exec_hi, {m >> 32}" + (f"\ns_branch {L}_1" if first_loaded else ""))
    a(f"{L}:\nbuffer_load_dword v{vt}, v{voff}, s[{srd_}:{srd_+3}], s{soff} offen sc1\ns_waitcnt vmcnt(0)\n{L}_1:\nv_cmp_eq_u32 vcc, s{SE}, v{vt}\ns_nop 1\ns_cmp_eq_u64 vcc, exec\ns_cbranch_scc1 {L}_ok\ns_sleep {slp}\ns_sub_u32 s91, s91, 1\ns_cbranch_scc0 {L}\n{L}_ok:")
    a("s_mov_b64 exec, -1")

K1_GRID = 256
K1_LDS = 159744 + 1280
def k1(a, st0):
    st = lambda i: st0({3: 30, 22: 31, 23: 30, 2: 31}[i]) if i in (2, 3, 22, 23) else None
    XLQ, XLK = 73728, 86016
    KVI = 21504
    ST = OPT.get('k1_st', ' sc1')
    kernel_begin(a, NAME + "_kernel")
    if OPT["codepf"]:
        a(f"s_cmp_ge_u32 s2, {OPT.get('pfn', 64)}\ns_cbranch_scc1 K1_nopf")
        a("s_getpc_b64 s[58:59]\nK1_pc:\nv_lshlrev_b32 v252, 7, v0\nv_min_u32 v252, K2_out-K1_pc, v252\nglobal_load_dword v253, v252, s[58:59]")
        a("K1_nopf:")
    a(f"s_cmp_lt_u32 s2, {K1_GRID}\ns_cbranch_scc1 K1_go\ns_endpgm\nK1_go:")
    a(f"s_load_dwordx4 s[4:7], s[0:1], {A_X}\ns_load_dwordx4 s[8:11], s[0:1], {A_WK}\ns_load_dwordx2 s[12:13], s[0:1], {A_WO}\ns_load_dwordx2 s[14:15], s[0:1], {K_WS}")
    st0.start()
    wave_lane(a)
    a(f"v_and_b32 v1, 15, v0\nv_lshrrev_b32 v2, 4, v0\ns_mov_b32 s{SW}, s3")
    a("s_bfe_u32 s44, s2, 0x20001\ns_lshl_b32 s44, s44, 3\ns_bfe_u32 s61, s2, 0x30003\ns_add_u32 s44, s44, s61\ns_and_b32 s45, s2, 1\ns_lshl_b32 s45, s45, 2\ns_lshr_b32 s62, s2, 6\ns_add_u32 s45, s45, s62")
    a("s_mul_i32 s60, s62, 9\ns_lshr_b32 s60, s60, 2\ns_add_u32 s60, s60, s61\ns_and_b32 s61, s2, 7\ns_add_u32 s60, s60, s61")
    a("s_mul_i32 s61, s60, 57\ns_lshr_b32 s61, s61, 9\ns_mul_i32 s61, s61, 9\ns_sub_u32 s60, s60, s61")
    a(f"s_cmp_ge_u32 s45, 6\ns_cselect_b32 s60, 0, s60\ns_mov_b32 s63, {XLQ}\ns_cselect_b32 s63, {XLK}, s63")
    a("v_lshrrev_b32 v4, 3, v0\nv_and_b32 v5, 7, v0\ns_lshl_b32 s90, s45, 5\ns_add_u32 s90, s90, s44")
    EX = 159744
    X0 = 16
    AR = 172
    ACC, CS, RS, GR, WF, ON = 88, 192, 112, 116, 120, 168
    ONr = f"v[{ON}:{ON+3}]"
    def V4(b): return f"v[{b}:{b+3}]"
    def lane_rc():
        a("v_lshrrev_b32 v10, 2, v1\nv_and_b32 v11, 3, v1\nv_lshl_add_u32 v12, v2, 3, v10")
    def xaddr(sbase):
        a(f"v_and_b32 v7, 7, v1\nv_xor_b32 v8, v2, v7\nv_lshlrev_b32 v8, 4, v8\nv_lshl_add_u32 v8, v1, 7, v8\nv_add_u32 v8, s{sbase}, v8\nv_xor_b32 v9, 64, v8")
        a("v_add_u32 v190, 0x8000, v8\nv_add_u32 v191, 0x8000, v9")
    def xrd(reg, ks, extra=0):
        p, e = divmod(ks, 2)
        b, o = (8 + e, 8192 * p) if p < 4 else (190 + e, 8192 * (p - 4))
        return f"ds_read_b128 {V4(reg)}, v{b} offset:{o + extra}"
    def waddr(shalf):
        a("v_lshrrev_b32 v13, 1, v10\nv_and_b32 v14, 1, v2\nv_lshl_add_u32 v13, v14, 1, v13")
        a("v_lshlrev_b32 v15, 7, v12\nv_lshl_add_u32 v15, v11, 3, v15\nv_lshlrev_b32 v7, 6, v12\nv_lshl_add_u32 v7, v11, 3, v7\nv_add_u32 v7, 4096, v7")
        a(f"s_cmp_eq_u32 s{shalf}, 1\ns_cselect_b64 vcc, -1, 0\ns_mul_i32 s55, s{shalf}, 3")
        a(f"v_xor_b32 v184, s55, v13\nv_lshl_add_u32 v{AR}, v184, 5, v15\nv_add_u32 v{AR+3}, 512, v{AR}")
        for t in (1, 2):
            a(f"v_xor_b32 v184, {t}, v13\nv_lshl_add_u32 v184, v184, 5, v15\nv_xor_b32 v185, {t-1}, v14\nv_lshl_add_u32 v185, v185, 5, v7")
            a(f"v_cndmask_b32 v{AR+t}, v184, v185, vcc\nv_add_u32 v184, 512, v184\nv_add_u32 v185, 256, v185\nv_cndmask_b32 v{AR+3+t}, v184, v185, vcc")
        for i in range(6): a(f"v_add_u32 v{AR+6+i}, {9*6144}, v{AR+i}")
    def wrd(reg, ks, t):
        hi = ks >= 9
        off = (ks - 9 * hi) * 6144
        return [f"ds_read_b64_tr_b16 v[{reg}:{reg+1}], v{AR+6*hi+t} offset:{off}", f"ds_read_b64_tr_b16 v[{reg+2}:{reg+3}], v{AR+6*hi+3+t} offset:{off}"]
    def stat_mfma(x, first):
        return [f"v_mfma_f32_16x16x32_bf16 {V4(RS)}, {ONr}, {V4(x)}, {'0' if first else V4(RS)}",
                f"v_mfma_f32_16x16x32_bf16 {V4(GR)}, {V4(x)}, {V4(x)}, {'0' if first else V4(GR)}"]
    def stats_out():
        a("v_cmp_eq_u32 vcc, 1, v11\nv_cmp_eq_u32 s[54:55], 2, v11\nv_cmp_eq_u32 s[56:57], 3, v11\nv_cmp_eq_u32 s[58:59], v10, v2\ns_nop 3")
        a(f"v_mul_f32 v4, {f32bits(-1.0/DM)}, v{RS}")
        a(f"v_cndmask_b32 v5, v{GR}, v{GR+1}, vcc\nv_cndmask_b32 v5, v5, v{GR+2}, s[54:55]\nv_cndmask_b32 v5, v5, v{GR+3}, s[56:57]\nv_cndmask_b32 v5, 0, v5, s[58:59]")
        sum_g(a, 5, 7)
        a(f"v_mul_f32 v5, {f32bits(1.0/DM)}, v5\nv_fma_f32 v5, -v4, v4, v5\nv_max_f32 v5, 0, v5\nv_add_f32 v5, {f32bits(1e-5)}, v5\nv_rsq_f32 v5, v5")
        a(f"s_lshl_b32 s54, s3, 7\ns_add_u32 s54, s54, {EX + 768}\nv_lshlrev_b32 v7, 3, v1\nv_add_u32 v7, s54, v7\nds_write_b64 v7, v[4:5]")
    a("s_cmp_lt_u32 s3, 4\ns_cbranch_scc1 K1_comp")
    a("s_cmp_eq_u32 s45, 7\ns_cbranch_scc1 K1_worp")
    a("s_sub_u32 s3, s3, 4")
    a("s_cmp_eq_u32 s45, 6\ns_cbranch_scc1 K1_kvload")
    a("v_and_b32 v6, 1, v2\ns_and_b32 s48, s3, 1\ns_lshl_b32 s48, s48, 2\nv_lshlrev_b32 v6, 1, v6\nv_or_b32 v6, s48, v6\nv_xor_b32 v6, v6, v5")
    a(f"v_mul_u32_u24 v3, {DM*2}, v4\nv_lshl_add_u32 v3, v6, 4, v3")
    a("v_lshrrev_b32 v7, 5, v0\nv_lshlrev_b32 v7, 1, v7\nv_and_b32 v6, 3, v0\nv_xor_b32 v7, v7, v6\nv_lshrrev_b32 v6, 2, v0")
    a(f"v_mul_u32_u24 v6, {DM*2}, v6\nv_lshl_add_u32 v6, v7, 4, v6")
    a("s_mul_i32 s48, s45, 192\ns_and_b32 s53, s45, 1\ns_lshl_b32 s54, s53, 6\ns_add_u32 s49, s48, s54\ns_xor_b32 s53, s53, 1\ns_lshl_b32 s53, s53, 7\ns_add_u32 s50, s48, s53")
    a(f"s_mul_i32 s53, s3, {8*DM*2}\ns_add_u32 s49, s49, s53\ns_mul_i32 s53, s3, {16*DM*2}\ns_add_u32 s50, s50, s53")
    a("s_lshl_b32 s51, s3, 10")
    a("s_lshr_b32 s52, s3, 1\ns_mul_i32 s52, s52, 6144\ns_and_b32 s53, s3, 1\ns_lshl_b32 s53, s53, 10\ns_add_u32 s52, s52, s53\ns_add_u32 s52, s52, 4096")
    a(f"s_mul_i32 s61, s60, {64*DM*2}")
    a(f"s_waitcnt lgkmcnt(0)\ns_load_dword s{SE}, s[14:15], 0")
    srd(a, 20, 6, 0, DM*DM*2)
    def wdma():
        a(f"s_add_u32 s62, s49, s61\ns_add_u32 s65, s50, s61\ns_add_u32 s64, s62, {32*DM*2}")
        a(f"s_mov_b32 m0, s51\ns_add_u32 s51, s51, 6144\nbuffer_load_dwordx4 v3, s[20:23], s62 offen lds")
        a(f"s_mov_b32 m0, s52\ns_add_u32 s52, s52, 12288\nbuffer_load_dwordx4 v6, s[20:23], s65 offen lds")
        a(f"s_mov_b32 m0, s51\ns_add_u32 s51, s51, 6144\nbuffer_load_dwordx4 v3, s[20:23], s64 offen lds")
        a(f"s_add_u32 s61, s61, {64*DM*2}\ns_cmp_eq_u32 s61, {DM*DM*2}\ns_cselect_b32 s61, 0, s61")
    LA = OPT.get('k1_la', 3)
    for t in range(LA): wdma()
    lane_rc()
    a("s_lshl_b32 s66, s3, 11\ns_add_u32 s66, s66, s63\ns_lshr_b32 s67, s3, 1")
    xaddr(66); waddr(67)
    a("s_and_b32 s55, s3, 1\ns_mul_i32 s55, s55, 6144")
    for i in range(12): a(f"v_add_u32 v{AR+i}, s55, v{AR+i}")
    for r in range(4): a(f"v_mov_b32 v{ON+r}, {ONES}")
    XE = 56
    for p in range(10):
        if p < 9:
            a(f"s_waitcnt vmcnt({3*(min(p + LA, 9) - p - 1)}) lgkmcnt(0)\ns_barrier")
            b = (p % 2) * 20
            if p < 8:
                a(xrd(X0 + b, 2*p)); a(xrd(X0 + b + 4, 2*p + 1))
            if p == 7:
                a(xrd(XE, 16)); a(xrd(XE + 4, 17))
            for t in range(3):
                for x in wrd(X0 + b + 8 + 4*t, 2*p if p != 4 else 8, t): a(x)
        else:
            a("s_waitcnt lgkmcnt(0)")
        if p > 0:
            b = ((p - 1) % 2) * 20
            if p < 9:
                for x in stat_mfma(X0 + b, p == 1) + stat_mfma(X0 + b + 4, False): a(x)
            if p == 8:
                for x in stat_mfma(XE, False) + stat_mfma(XE + 4, False): a(x)
            for t in range(3):
                a(f"v_mfma_f32_16x16x32_bf16 {V4(CS+4*t)}, {V4(X0+b+8+4*t)}, {ONr}, {'0' if p == 1 else V4(CS+4*t)}")
            if p == 8: stats_out()
        if p + LA < 9: wdma()
    a(f"s_mul_i32 s54, s3, 192\ns_add_u32 s54, s54, {EX}\nv_lshlrev_b32 v7, 4, v2\nv_add_u32 v7, s54, v7\ns_nop 3")
    for t in range(3): a(f"ds_write_b128 v7, {V4(CS+4*t)} offset:{64*t}")
    a("s_waitcnt lgkmcnt(0)\ns_barrier\ns_branch K1_fin")
    a("K1_comp:")
    a("s_lshl_b32 s46, s44, 6\ns_lshl_b32 s47, s3, 4\ns_add_u32 s46, s46, s47")
    a(f"s_mul_i32 s47, s46, {DM*2}")
    a(f"v_xor_b32 v6, v4, v5\nv_mul_u32_u24 v3, {DM*2}, v4\nv_lshl_add_u32 v3, v6, 4, v3\nv_add_u32 v6, {8*DM*2 - 1024}, v3")
    a(f"s_lshl_b32 s61, s60, 7\ns_lshl_b32 s64, s3, 11\ns_add_u32 s64, s63, s64\ns_mov_b32 s66, s64")
    a(f"s_waitcnt lgkmcnt(0)\ns_load_dword s{SE}, s[14:15], 0")
    srd(a, 16, 4, 0, T*DM*2)
    def xdma():
        return ("s_mov_b32 m0, s64\ns_add_u32 s62, s47, s61\ns_add_u32 s64, s64, 8192\n"
                "buffer_load_dwordx4 v3, s[16:19], s62 offen lds\nbuffer_load_dwordx4 v6, s[16:19], s62 offen offset:1024 lds\n"
                f"s_add_u32 s61, s61, 128\ns_cmp_eq_u32 s61, {DM*2}\ns_cselect_b32 s61, 0, s61")
    XA = OPT.get("k1_xa", 4)
    for p in range(XA): a(xdma())
    st(0)
    lane_rc()
    a("s_cmp_ge_u32 s45, 6\ns_cbranch_scc1 K1_kvgemm")
    a("s_and_b32 s68, s3, 1\ns_lshl_b32 s66, s68, 12\ns_add_u32 s66, s66, s63\ns_lshr_b32 s67, s3, 1")
    xaddr(66); waddr(67)
    ws_srd(a, 32, "Q", 14)
    def frags(ks):
        b = X0 + (ks % 2) * 20
        L = [xrd(b, ks), xrd(b + 4, ks, 2048)]
        for t in range(3): L += wrd(b + 8 + 4*t, ks, t)
        return L
    nx = XA
    a(f"s_waitcnt vmcnt({2*XA-2})\ns_barrier")
    st(2)
    for x in frags(0): a(x)
    for ks in range(18):
        p = ks // 2
        if ks % 2 == 1 and ks < 17:
            a(f"s_waitcnt vmcnt({2*(nx - p - 2) if ks < 13 else 0})" + (" lgkmcnt(6)" if ks == 9 else "") + "\ns_barrier")
        b = X0 + (ks % 2) * 20
        nf = frags(ks + 1) if ks < 17 else []
        issued = 0
        for t in range(3):
            a(f"s_waitcnt lgkmcnt({4 - 2*t + issued})")
            for m in range(2):
                d = ACC + (t*2 + m) * 4
                a(f"v_mfma_f32_16x16x32_bf16 {V4(d)}, {V4(b+8+4*t)}, {V4(b+4*m)}, {'0' if ks == 0 else V4(d)}")
                for x in nf[:2]: a(x); issued += 1
                nf = nf[2:]
        if ks % 2 == 0 and nx < 9:
            a(xdma()); nx += 1
    st(3)
    a("v_lshlrev_b32 v3, 3, v0")
    a(f"s_lshl_b32 s48, s44, 1\ns_add_u32 s48, s48, s68\ns_mul_i32 s48, s48, {4*9216}")
    a("s_mul_i32 s49, s45, 6\ns_and_b32 s50, s45, 1\ns_lshl_b32 s51, s50, 1\ns_add_u32 s51, s51, s49\ns_lshl_b32 s50, s50, 2\ns_sub_u32 s52, s49, s50\ns_mul_i32 s69, s67, 3")
    a(f"s_mul_i32 s54, s67, 384\ns_add_u32 s54, s54, {EX}\nv_lshlrev_b32 v7, 4, v2\nv_add_u32 v7, s54, v7")
    a(f"s_lshl_b32 s54, s68, 8\ns_add_u32 s54, s54, {EX + 768}\nv_lshlrev_b32 v8, 3, v1\nv_add_u32 v8, s54, v8")
    a("s_barrier")
    a("ds_read_b64 v[12:13], v8\nds_read_b64 v[14:15], v8 offset:128")
    for i in range(6): a(f"ds_read_b128 {V4(CS+4*i)}, v7 offset:{64*i}")
    a(f"s_waitcnt lgkmcnt(0)\nv_mul_f32 v13, {f32bits(QSCALE)}, v13\nv_mul_f32 v15, {f32bits(QSCALE)}, v15")
    for t in range(3):
        a(f"s_add_u32 s53, s69, {t}\ns_cmp_lt_u32 s53, 4\ns_cselect_b32 s54, s51, s52\ns_add_u32 s53, s53, s54")
        a("s_mul_i32 s54, s53, 57\ns_lshr_b32 s54, s54, 9\ns_mul_i32 s54, s54, 4608\ns_lshl_b32 s53, s53, 9\ns_add_u32 s53, s53, s54\ns_add_u32 s53, s53, s48\ns_add_u32 s55, s53, 4608")
        for r in range(4): a(f"v_add_f32 v{CS+4*t+r}, v{CS+4*t+r}, v{CS+12+4*t+r}")
        for m in range(2):
            b = ACC + (t*2 + m) * 4
            for r in range(4): a(f"v_fmac_f32 v{b+r}, v{CS+4*t+r}, v{12+2*m}\nv_mul_f32 v{b+r}, v{b+r}, v{13+2*m}")
            a(f"v_cvt_pk_bf16_f32 v{b}, v{b}, v{b+1}\nv_cvt_pk_bf16_f32 v{b+1}, v{b+2}, v{b+3}")
            a(f"buffer_store_dwordx2 v[{b}:{b+1}], v3, s[32:35], s{53+2*m} offen{ST}")
    a("s_branch K1_fin")
    def kaddr():
        a(f"v_mul_u32_u24 v13, 36, v12\nv_lshl_add_u32 v13, v11, 3, v13\nv_and_b32 v14, 1, v10\nv_mul_u32_u24 v14, {KVI - 4}, v14\nv_add_u32 v{AR}, v13, v14")
    a("K1_kvload:")
    a(f"v_lshlrev_b32 v3, 4, v0\ns_and_b32 s48, s3, 1\ns_lshl_b32 s48, s48, 2\ns_mul_i32 s49, s3, {KVI}")
    a(f"s_waitcnt lgkmcnt(0)\ns_load_dword s{SE}, s[14:15], 0")
    a(f"s_cmp_lt_u32 s3, 2\ns_cselect_b32 s24, s8, s10\ns_cselect_b32 s25, s9, s11\ns_mov_b32 s26, {DM*DH*2}\ns_mov_b32 s27, 0x00020000")
    for i in range(21):
        if i % 4 == 0: a("s_mov_b32 m0, s49\ns_add_u32 s49, s49, 4096")
        a(f"buffer_load_dwordx4 v3, s[24:27], s48 offen offset:{(i%4)*1024} lds")
        if i % 4 == 3: a("s_add_u32 s48, s48, 4096")
    lane_rc()
    a("s_lshl_b32 s66, s3, 11\ns_add_u32 s66, s66, s63")
    xaddr(66); kaddr()
    a(f"s_and_b32 s55, s3, 1\ns_mul_i32 s55, s55, {2*KVI}\ns_lshr_b32 s56, s3, 1\ns_lshl_b32 s56, s56, 5\ns_add_u32 s55, s55, s56\nv_add_u32 v{AR}, s55, v{AR}")
    for r in range(4): a(f"v_mov_b32 v{ON+r}, {ONES}")
    ws_srd(a, 40, "MEAN1", 14)
    a(f"s_lshl_b32 s46, s44, 2\ns_add_u32 s46, s46, s3")
    a("s_waitcnt vmcnt(0)\ns_barrier")
    def kl(ks):
        w = WF + (ks % 4) * 4
        return [xrd(X0 + 4*ks, ks), f"ds_read_b64_tr_b16 v[{w}:{w+1}], v{AR} offset:{ks*1152}", f"ds_read_b64_tr_b16 v[{w+2}:{w+3}], v{AR} offset:{ks*1152 + 144}"]
    for ks in range(3):
        for x in kl(ks): a(x)
    for ks in range(18):
        a(f"s_waitcnt lgkmcnt({3*min(2, 17-ks)})")
        for x in stat_mfma(X0 + 4*ks, ks == 0): a(x)
        a(f"v_mfma_f32_16x16x32_bf16 {V4(CS)}, {V4(WF + (ks % 4) * 4)}, {ONr}, {'0' if ks == 0 else V4(CS)}")
        if ks + 3 < 18:
            for x in kl(ks + 3): a(x)
    stats_out()
    a(f"s_lshl_b32 s54, s3, 6\ns_add_u32 s54, s54, {EX}\nv_lshlrev_b32 v7, 4, v2\nv_add_u32 v7, s54, v7\nds_write_b128 v7, {V4(CS)}")
    a("s_waitcnt lgkmcnt(0)\ns_barrier")
    a("v_sub_f32 v9, 0, v4\nv_lshlrev_b32 v7, 2, v1\nv_lshl_add_u32 v7, v2, 20, v7\ns_lshl_b32 s49, s46, 6\nbuffer_store_dword v9, v7, s[40:43], s49 offen sc1")
    a("s_barrier\ns_branch K1_fin")
    a(f"K1_worp:\ns_waitcnt lgkmcnt(0)\ns_load_dword s{SE}, s[14:15], 0\nv_lshlrev_b32 v3, 4, v0")
    rp = Repack(a)
    a(rp.common())
    for rnd in range(2):
        a(f"s_lshl_b32 s47, s44, 2\ns_add_u32 s47, s47, s3\ns_add_u32 s47, s47, {128*rnd - 4 & 0xffffffff}")
        a(rp.setup_wo(rnd, 12))
        for n in range(8): a(rp.load(rnd, n))
    for rnd in range(2):
        a(f"s_waitcnt vmcnt({8 if rnd == 0 else 4})")
        for n in range(4): a(rp.store(rnd, n, " sc1") + "\ns_nop 1")
    a("s_branch K1_fin")
    a("K1_kvgemm:")
    for p in range(XA, 9): a(xdma())
    ws_srd(a, 36, "KV", 14)
    xaddr(66); kaddr()
    for ks in range(18):
        if ks % 2 == 0: a(f"s_waitcnt vmcnt({16 - ks})")
        a(xrd(X0 + 4*ks, ks))
    a("s_cmp_eq_u32 s45, 7\ns_cbranch_scc1 K1_wbar")
    a("s_barrier")
    st(22)
    def kread(ks):
        L = []
        for j in range(4):
            w = WF + ((ks % 2) * 4 + j) * 4
            o = ks * 1152 + (j & 1) * 2 * KVI + (j >> 1) * 32
            L += [f"ds_read_b64_tr_b16 v[{w}:{w+1}], v{AR} offset:{o}", f"ds_read_b64_tr_b16 v[{w+2}:{w+3}], v{AR} offset:{o + 144}"]
        return L
    for x in kread(0): a(x)
    for ks in range(18):
        x = V4(X0 + 4*ks)
        fill = kread(ks + 1) if ks < 17 else []
        for j in range(4):
            w = V4(WF + ((ks % 2) * 4 + j) * 4)
            a(f"s_waitcnt lgkmcnt({6 if ks < 17 else 6 - 2*j})")
            A_, B_ = (w, x) if j % 2 == 0 else (x, w)
            a(f"v_mfma_f32_16x16x32_bf16 {V4(ACC+4*j)}, {A_}, {B_}, {'0' if ks == 0 else V4(ACC+4*j)}")
            for y in fill[:2]: a(y)
            fill = fill[2:]
    st(23)
    a(f"s_mul_i32 s48, s44, {PAIR}")
    a(f"s_lshl_b32 s54, s3, 7\ns_add_u32 s54, s54, {EX + 768}\nv_lshlrev_b32 v7, 3, v1\nv_add_u32 v7, s54, v7\nv_lshlrev_b32 v8, 5, v2\nv_add_u32 v8, s54, v8")
    a(f"v_lshlrev_b32 v9, 4, v2\nv_add_u32 v9, {EX}, v9\nv_lshlrev_b32 v10, 2, v1\nv_add_u32 v10, {EX}, v10\nv_mov_b32 v{ON}, {ONES}")
    a("s_barrier")
    a(f"ds_read_b64 v[4:5], v7\nds_read_b128 v[216:219], v8\nds_read_b128 v[220:223], v8 offset:16\nds_read_b128 {V4(CS)}, v9\nds_read_b128 {V4(CS+8)}, v9 offset:128")
    a(f"ds_read_b32 v{CS+4}, v10 offset:64\nds_read_b32 v{CS+12}, v10 offset:192")
    a("v_lshrrev_b32 v7, 1, v2\nv_lshlrev_b32 v7, 9, v7\nv_lshl_add_u32 v7, v1, 4, v7\nv_and_b32 v8, 1, v2\nv_lshl_add_u32 v7, v8, 3, v7")
    a("s_lshr_b32 s49, s3, 1\ns_lshl_b32 s49, s49, 10\ns_and_b32 s50, s3, 1\ns_lshl_b32 s50, s50, 8\ns_add_u32 s49, s49, s50\nv_add_u32 v7, s49, v7")
    a("s_waitcnt lgkmcnt(0)")
    b = ACC
    for r in range(4): a(f"v_fmac_f32 v{b+r}, v{CS+r}, v4\nv_mul_f32 v{b+r}, v{b+r}, v5")
    a(f"v_cvt_pk_bf16_f32 v{b}, v{b}, v{b+1}\nv_cvt_pk_bf16_f32 v{b+1}, v{b+2}, v{b+3}")
    a(f"ds_write_b64 v7, v[{b}:{b+1}]")
    b = ACC + 8
    for r in range(2): a(f"v_fmac_f32 v{b+r}, v{CS+8+r}, v4\nv_mul_f32 v{b+r}, v{b+r}, v5")
    a(f"v_cvt_pk_bf16_f32 v{b}, v{b}, v{b+1}")
    a("v_lshlrev_b32 v7, 2, v1\ns_lshl_b32 s49, s3, 6\nv_add_u32 v7, s49, v7")
    a(f"s_mov_b64 exec, 0xffff\nds_write_b32 v7, v{b} offset:2048\ns_mov_b64 exec, -1")
    a("v_and_b32 v8, 1, v2\nv_mul_u32_u24 v8, 19, v8\nv_add_u32 v8, v8, v1\nv_lshlrev_b32 v8, 4, v8\nv_lshrrev_b32 v10, 1, v2\nv_lshl_add_u32 v8, v10, 3, v8")
    a("s_mul_i32 s49, s3, 608\nv_add_u32 v8, s49, v8")
    for i, b in enumerate((4, 12)):
        for r in range(4): a(f"v_fmac_f32 v{ACC+b+r}, v{CS+b}, v{216+2*r}\nv_mul_f32 v{ACC+b+r}, v{ACC+b+r}, v{217+2*r}")
        b += ACC
        a(f"v_cvt_pk_bf16_f32 v{b}, v{b}, v{b+1}\nv_cvt_pk_bf16_f32 v{b+1}, v{b+2}, v{b+3}")
        if i == 0:
            a(f"ds_write_b64 v8, v[{b}:{b+1}] offset:2304")
        else:
            a(f"v_cmp_eq_u32 vcc, 2, v1\ns_nop 1\nv_cndmask_b32 v{b}, v{b}, v{ON}, vcc\nv_cndmask_b32 v{b+1}, v{b+1}, v{ON}, vcc")
            a("v_cmp_gt_u32 vcc, 3, v1\ns_and_saveexec_b64 s[54:55], vcc")
            a(f"ds_write_b64 v8, v[{b}:{b+1}] offset:{2304 + 16*16}")
            a("s_mov_b64 exec, -1")
    a("s_mul_i32 s49, s3, 1184\nv_lshlrev_b32 v3, 4, v0\nv_add_u32 v3, s49, v3\ns_waitcnt lgkmcnt(0)\ns_barrier")
    a("ds_read_b128 v[16:19], v3\nds_read_b128 v[20:23], v3 offset:1024\ns_waitcnt lgkmcnt(1)\nbuffer_store_dwordx4 v[16:19], v3, s[36:39], s48 offen sc1")
    a("s_mov_b64 exec, 0x3ff\ns_waitcnt lgkmcnt(0)\nbuffer_store_dwordx4 v[20:23], v3, s[36:39], s48 offen offset:1024 sc1\ns_mov_b64 exec, -1")
    a("s_branch K1_fin")
    a("K1_wbar:\ns_waitcnt lgkmcnt(0)")
    ws_srd(a, 68, "XC", 14)
    a(f"v_lshlrev_b32 v3, 4, v0\ns_lshr_b32 s48, s46, 4\ns_mul_i32 s48, s48, 18432")
    for ks in range(18):
        if ks and ks % 4 == 0: a("s_add_u32 s48, s48, 4096")
        a(f"buffer_store_dwordx4 {V4(X0+4*ks)}, v3, s[68:71], s48 offen offset:{(ks%4)*1024}{ST}")
    srd(a, 16, 12, 0, DM*DM*2)
    ws_srd(a, 20, "WBAR", 14)
    a("s_cmp_ge_u32 s44, 18\ns_cbranch_scc1 K1_fin")
    a("v_lshrrev_b32 v3, 3, v0\nv_and_b32 v5, 7, v0")
    a("s_cmp_ge_u32 s44, 16\ns_cbranch_scc1 K1_wb_hi")
    a("s_mul_i32 s45, s44, 36\ns_lshr_b32 s46, s3, 1\ns_mul_i32 s46, s46, 18\ns_add_u32 s45, s45, s46\ns_and_b32 s46, s3, 1\ns_lshl_b32 s46, s46, 2\ns_add_u32 s45, s45, s46")
    a("v_lshrrev_b32 v4, 2, v3\nv_lshlrev_b32 v4, 3, v4\nv_and_b32 v6, 3, v3\nv_add_u32 v4, v4, v6")
    a("s_branch K1_wb_go")
    a("K1_wb_hi:")
    a("s_sub_u32 s45, s44, 16\ns_mul_i32 s45, s45, 288\ns_mul_i32 s46, s3, 72\ns_add_u32 s45, s45, s46\ns_add_u32 s45, s45, 16")
    a("v_lshrrev_b32 v4, 1, v3\nv_mul_u32_u24 v4, 18, v4\nv_and_b32 v6, 1, v3\nv_add_u32 v4, v4, v6")
    a("K1_wb_go:")
    a(f"s_mul_i32 s45, s45, {DM*2}\nv_mul_u32_u24 v4, {DM*2}, v4\nv_lshl_add_u32 v4, v5, 4, v4")
    for i in range(9):
        a(f"buffer_load_dwordx4 v[{100+4*i}:{103+4*i}], v4, s[16:19], s45 offen offset:{128*i}")
    a(f"s_mov_b32 s56, {ONES}\nv_mov_b32 v6, 0\nv_mov_b32 v7, 0\ns_waitcnt vmcnt(0)")
    for i in range(36):
        a(f"v_dot2_f32_bf16 v{6+i%2}, v{100+i}, s56, v{6+i%2}")
    a("s_nop 2\nv_add_f32 v6, v6, v7\ns_nop 1")
    for x in (1, 2, 4):
        a(f"ds_swizzle_b32 v7, v6 offset:{(x << 10) | 0x1f}\ns_waitcnt lgkmcnt(0)\nv_add_f32 v6, v6, v7")
    a(f"v_mul_f32 v6, {f32bits(1.0/DM)}, v6")
    a("v_cvt_pk_bf16_f32 v7, v6, v6\nv_lshlrev_b32 v8, 16, v7\nv_sub_f32 v8, v6, v8\nv_cvt_pk_bf16_f32 v8, v8, v8")
    a("v_lshlrev_b32 v9, 5, v5\nv_lshl_add_u32 v9, v3, 1, v9")
    a(f"s_lshl_b32 s46, s44, 10\ns_lshl_b32 s47, s3, 8\ns_add_u32 s46, s46, s47")
    a(f"buffer_store_short v7, v9, s[20:23], s46 offen sc1\nbuffer_store_short v8, v9, s[20:23], s46 offen offset:16 sc1")
    a("K1_fin:")

K2_GRID = 256
K2_LDS = 32 * PAIR + 9216
def k2(a, st, force_fallback=False):
    FB = WS["FLAG"][0]
    a(f"s_mov_b32 s3, s{SW}")
    a(f"s_load_dwordx2 s[4:5], s[0:1], {K_OUT}\ns_load_dwordx4 s[8:11], s[0:1], {B_W1}")
    a("v_and_b32 v1, 31, v0\nv_lshrrev_b32 v2, 5, v0\nv_lshlrev_b32 v3, 4, v0")
    a("s_waitcnt lgkmcnt(0)")
    ws_srd(a, 36, "FLAG", 14)
    a(f"s_mul_i32 s{SE}, s{SE}, 0x9e3779b1\ns_add_u32 s{SE}, s{SE}, 0x7f4a7c15\nv_mov_b32 v4, s{SE}\nv_mov_b32 v5, 0\ns_lshl_b32 s45, s90, 7\ns_add_u32 s45, s45, {FL_AF}")
    st(19)
    a("s_waitcnt vmcnt(0)\ns_barrier")
    a("s_cmp_lg_u32 s3, 0\ns_cbranch_scc1 K2_naf\ns_mov_b64 exec, 1\nbuffer_store_dword v4, v5, s[36:39], s45 offen sc1\ns_mov_b64 exec, -1\nK2_naf:")
    st(17)
    a("s_lshr_b32 s40, s2, 2\ns_and_b32 s41, s2, 3\ns_lshl_b32 s41, s41, 3\ns_add_u32 s41, s41, s3")
    a(f"s_mul_i32 s42, s2, 9216\ns_lshl_b32 s43, s3, 10\ns_add_u32 s42, s42, s43\ns_add_u32 s43, s43, {32*PAIR}")
    a("s_lshl_b32 s44, s3, 10")
    ws_srd(a, 16, "KV", 14)
    ws_srd(a, 20, "Q", 14)
    Q1, Q2 = 8, 12
    def dma(r):
        txt = f"s_mov_b32 m0, s44\ns_nop 0\nbuffer_load_dwordx4 v3, s[16:19], s44 offen sc1 lds\ns_add_u32 s44, s44, 8192"
        if r == 18:
            L = a.label("dm")
            txt = f"s_cmp_ge_u32 s3, 4\ns_cbranch_scc1 {L}\n{txt}\n{L}:"
        return txt
    a(f"v_mov_b32 v{Q2+1}, 0")
    ws_srd(a, 24, "O", 14)
    a(f"v_lshrrev_b32 v4, 4, v1\nv_mul_u32_u24 v4, 4608, v4\nv_and_b32 v5, 15, v1\nv_lshl_add_u32 v4, v5, 3, v4\nv_add_u32 v4, {32*PAIR}, v4")
    a("s_mul_i32 s45, s3, 9\nv_lshlrev_b32 v5, 2, v2\nv_add_u32 v5, s45, v5")
    for i in range(5):
        if i < 4: a(f"v_add_u32 v30, {i}, v5")
        else: a("s_add_u32 s45, s45, 8\nv_mov_b32 v30, s45")
        a(f"v_lshrrev_b32 v31, 1, v30\nv_lshl_add_u32 v31, v31, 7, v4\nv_and_b32 v30, 1, v30\nv_lshl_add_u32 v{25+i}, v30, 2, v31")
    SEG = 13
    VKA, VK2, VVA = 14, 17, 20
    a(f"v_mul_u32_u24 v23, 19, v2\nv_add_u32 v23, v23, v1\nv_lshlrev_b32 v23, 4, v23\nv_mov_b32 v24, 0x40000\nv_cmp_gt_u32 vcc, 19, v1\ns_nop 1\nv_cndmask_b32 v{VVA}, v24, v23, vcc")
    a(f"v_mov_b32 v{VKA}, v3\nv_lshlrev_b32 v{VK2}, 2, v0")
    for b in (VKA, VK2, VVA):
        a(f"v_add_u32 v{b+1}, {SEG*PAIR}, v{b}\nv_add_u32 v{b+2}, {2*SEG*PAIR}, v{b}")
    SA, SB, P, O, NM = 32, 64, 96, 112, 128
    KF, K2F, VF = 144, 160, 164
    a(f"v_mov_b32 v{K2F+1}, 0\nv_mov_b32 v{K2F+3}, 0")
    for r in range(16): a(f"v_mov_b32 v{O+r}, 0")
    rp = Repack(a)
    def w3(txt):
        L = a.label("w3")
        return (f"s_cmp_lt_u32 s3, 5" if OPT.get("w3hi", True) else f"s_cmp_ge_u32 s3, 3") + f"\ns_cbranch_scc1 {L}\n{txt}\n{L}:"
    def seg(p): return p // SEG, (p % SEG) * PAIR
    def rdK(i, p):
        sg, o = seg(p)
        return [f"ds_read_b128 v[{KF+8*i}:{KF+8*i+3}], v{VKA+sg} offset:{o}",
                f"ds_read_b128 v[{KF+8*i+4}:{KF+8*i+7}], v{VKA+sg} offset:{o+1024}",
                f"ds_read_b32 v{K2F+2*i}, v{VK2+sg} offset:{o+2048}"]
    def rdV(i, p):
        sg, o = seg(p)
        return [f"ds_read_b128 v[{VF+16*i+4*q}:{VF+16*i+4*q+3}], v{VVA+sg} offset:{o+2304+608*q}" for q in range(4)]
    def qk(S, i, c):
        return [f"v_mfma_f32_32x32x16_bf16 v[{S}:{S+15}], v[{KF+8*i}:{KF+8*i+3}], v[{Q1}:{Q1+3}], {c}",
                f"v_mfma_f32_32x32x16_bf16 v[{S+16}:{S+31}], v[{KF+8*i+4}:{KF+8*i+7}], v[{Q1}:{Q1+3}], {c}",
                f"v_mfma_f32_32x32x4_2b_bf16 v[{S}:{S+31}], v[{K2F+2*i}:{K2F+2*i+1}], v[{Q2}:{Q2+1}], v[{S}:{S+31}]"]
    def pvm(vs_, u):
        return f"v_mfma_f32_32x32x16_bf16 v[{O}:{O+15}], v[{VF+16*vs_+4*u}:{VF+16*vs_+4*u+3}], v[{P+4*u}:{P+4*u+3}], v[{O}:{O+15}]"
    def rowmax(S, dst, first):
        L = []; r = 0
        if first:
            L.append(f"v_max_f32 v{dst}, v{S}, v{S+1}"); r = 2
        while r < 32:
            L.append(f"v_max3_f32 v{dst}, v{S+r}, v{S+r+1}, v{dst}"); r += 2
        return L
    def set_nm(src):
        a(f"v_mov_b32 v25, v{src}\ns_nop 1\nv_permlane32_swap_b32 v{src}, v25\ns_nop 1\nv_max_f32 v{src}, v{src}, v25")
        for r in range(16): a(f"v_sub_f32 v{NM+r}, 0, v{src}")
    def E(cur, g):
        b = cur + 4 * g
        return [f"v_exp_f32 v{b+r}, v{b+r}" for r in range(4)] + \
               [f"v_cvt_pk_bf16_f32 v{P+2*g}, v{b}, v{b+1}", f"v_cvt_pk_bf16_f32 v{P+2*g+1}, v{b+2}, v{b+3}"]
    NMr = f"v[{NM}:{NM+15}]"
    nt_ = " nt" if OPT["k2_nt"] else ""
    def uidx(rnd):
        t = ("" if rnd else ffn_map(34, 35)) + f"s_mov_b32 s45, s34\ns_mul_i32 s47, s35, 11\ns_add_u32 s47, s47, s3\n"
        if rnd: t += "s_add_u32 s47, s47, 3\ns_cmp_lt_u32 s3, 5\ns_cselect_b32 s47, 400, s47\n"
        return t
    a(rp.common() + "\n" + uidx(0) + rp.setup_ffn(0, 8, 10)); a(uidx(1) + rp.setup_ffn(1, 8, 10))
    a("s_and_b32 s45, s2, 3\ns_mul_i32 s45, s45, 3\ns_lshr_b32 s45, s45, 1\ns_lshl_b32 s45, s45, 5\ns_lshr_b32 s46, s2, 3\ns_add_u32 s45, s45, s46")
    a("v_add_u32 v30, 192, v0\nv_lshlrev_b32 v31, 5, v1\nv_add_u32 v31, s45, v31\nv_cmp_gt_u32 vcc, 32, v0\ns_nop 1\nv_cndmask_b32 v30, v31, v30, vcc\nv_lshlrev_b32 v30, 7, v30")
    a(f"s_mov_b32 s45, {FL_AF}")
    if OPT.get("a_one", True):
        a("s_cmp_lg_u32 s3, 1\ns_cbranch_scc1 K2_np")
        poll(a, 34, 30, 36, 45, 31, OPT.get("a_slp", 2))
        a("K2_np:\ns_barrier")
    else:
        poll(a, 34, 30, 36, 45, 31, OPT.get("a_slp", 2))
    st(18)
    a("s_cmp_lg_u32 s3, 0\ns_cbranch_scc1 K2_q1")
    a(f"s_mov_b32 m0, {32*PAIR + 8192}\ns_add_u32 s45, s42, 8192\nbuffer_load_dwordx4 v3, s[20:23], s45 offen sc1 lds")
    a("K2_q1:")
    a("s_mov_b32 m0, s43\ns_nop 0\nbuffer_load_dwordx4 v3, s[20:23], s42 offen sc1 lds")
    a(dma(0)); a(dma(1)); a(dma(2))
    if OPT["prio"]: a("s_setprio 1")
    st(0)
    a("s_waitcnt vmcnt(2)\ns_barrier")
    st(1)
    for i in range(5): a(f"ds_read_b32 v{Q1+i}, v{25+i}")
    for x in rdK(0, 0) + rdK(1, 1) + rdV(0, 0): a(x)
    a("s_waitcnt lgkmcnt(7)")
    q = qk(SA, 0, "0")
    a(q[0]); a(q[1]); a("s_nop 9"); a(q[2]); a("s_nop 15\ns_nop 3")
    for x in rowmax(SA, 24, True): a(x)
    if force_fallback:
        a(f"v_add_f32 v24, {f32bits(-100.0)}, v24")
    set_nm(24)
    for r in range(32): a(f"v_add_f32 v{SA+r}, v{SA+r}, v{NM}")
    st(2)
    extra = {i: [] for i in range(32)}
    pre = {i: [] for i in range(32)}
    r = 3
    for i in range(8):
        extra[i] += [dma(r), dma(r + 1)]; r += 2
    pre[0].append("s_waitcnt vmcnt(0)\ns_barrier"); pre[3].append("s_waitcnt vmcnt(2)\ns_barrier"); pre[9].append(f"v_mov_b32 v196, 0\nv_mov_b32 v197, 0\nv_mov_b32 v198, 0\nv_mov_b32 v199, 0\nv_mov_b32 v200, {ffn.CNT}\nds_write_b128 v200, v[196:199]\nds_write_b128 v200, v[196:199] offset:16\nds_write_b128 v200, v[196:199] offset:32\ns_waitcnt vmcnt(0) lgkmcnt(0)\ns_barrier")
    for n in range(8):
        extra[9 + n // 2].append(rp.load(0, n, nt_))
        extra[13 + n // 2].append(w3(rp.load(1, n, nt_)))
    ST0 = OPT.get("k2_st0", 21)
    pre[ST0].append("s_waitcnt vmcnt(0)")
    for n in range(4):
        extra[ST0 + n // 2].append(rp.store(0, n, " sc1"))
        extra[ST0 + 2 + n // 2].append(w3(rp.store(1, n, " sc1")))
    pre[ST0 + 7].append("s_waitcnt vmcnt(0)")
    extra[ST0 + 7].append(f"s_lshl_b32 s45, s34, 8\ns_lshl_b32 s46, s35, 3\ns_add_u32 s45, s45, s46\ns_add_u32 s45, s45, s3\ns_lshl_b32 s45, s45, 2\ns_add_u32 s45, s45, {FL_RF}\n"
                          f"v_mov_b32 v206, s{SE}\nv_mov_b32 v207, 0\ns_mov_b64 exec, 1\nbuffer_store_dword v206, v207, s[36:39], s45 offen sc1\ns_mov_b64 exec, -1")
    if OPT.get("k2_touch", True):
        extra[ST0 + 7].append(rp.touch(0)); extra[ST0 + 8].append(w3(rp.touch(1)))
    extra[8].append(f"s_mov_b32 s45, {FL_AF + 224*128}\nv_lshlrev_b32 v206, 7, v1\nbuffer_load_dword v205, v206, s[36:39], s45 offen sc1")
    tmp = Asm(); tmp.uid = 9000
    poll(tmp, 32, 206, 36, 45, 205, 2, first_loaded=True)
    pre[9].append(tmp.text())
    EW = OPT.get("wo_early", 10)
    if EW:
        wo0, wosz = WS["WOF"]
        pre[22].append(f"s_lshr_b32 s77, s2, 5\ns_add_u32 s20, s14, {wo0}\ns_addc_u32 s21, s15, 0\ns_mov_b32 s22, {wosz}\ns_mov_b32 s23, 0x00020000\n"
                       f"s_lshl_b32 s32, s3, 10\ns_mul_i32 s33, s77, {108*1024}\ns_add_u32 s33, s33, s32\ns_waitcnt lgkmcnt(0)\ns_barrier")
        nb_ = 0
        for i in list(range(25, 32)) + list(range(22, 32)):
            if nb_ < EW and len(extra[i]) < 2:
                extra[i].append("s_mov_b32 m0, s32\ns_add_u32 s32, s32, 8192\nbuffer_load_dwordx4 v3, s[20:23], s33 offen lds\ns_add_u32 s33, s33, 8192"); nb_ += 1
        assert nb_ == EW
    if OPT.get("wo_touch", True):
        L = a.label("wt")
        wb0 = WS["WBAR"][0]; wsz = WS["WOF"][0] + WS["WOF"][1] - wb0
        extra[19].append(f"s_sub_u32 s56, s3, 3\ns_cmp_ge_u32 s56, 3\ns_cbranch_scc1 {L}\ns_lshr_b32 s57, s2, 3\ns_mul_i32 s57, s57, 3\ns_add_u32 s56, s56, s57\ns_lshl_b32 s56, s56, 13\n"
                         f"s_add_u32 s28, s14, {wb0}\ns_addc_u32 s29, s15, 0\ns_mov_b32 s30, {wsz}\ns_mov_b32 s31, 0x00020000\nv_lshlrev_b32 v206, 7, v0\nbuffer_load_dword v205, v206, s[28:31], s56 offen\n{L}:")
    if OPT["codepf"]:
        L = a.label("cp")
        extra[18].append(f"s_lshr_b32 s56, s2, 3\ns_cmp_ge_u32 s56, CODE_PF_N\ns_cbranch_scc1 {L}\ns_cmp_lg_u32 s3, 0\ns_cbranch_scc1 {L}\n"
                         f"s_getpc_b64 s[58:59]\n{L}_pc:\ns_add_u32 s58, s58, K2_out-{L}_pc\ns_addc_u32 s59, s59, 0\n"
                         f"s_lshl_b32 s56, s56, 13\nv_lshlrev_b32 v206, 7, v0\nv_add_u32 v206, s56, v206\nv_min_u32 v206, CODE_END-K2_out-4, v206\nglobal_load_dword v205, v206, s[58:59]\n{L}:")
    for i in range(32):
        cur, nxt = (SA, SB) if i % 2 == 0 else (SB, SA)
        q = qk(nxt, (i + 1) % 2, NMr) if i < 31 else ["", "", ""]
        vs_ = i % 2
        kr = rdK(i % 2, i + 2) if i + 2 < 32 else ["", "", ""]
        vrd = rdV((i + 1) % 2, i + 1) if i < 31 else [""] * 4
        e = [E(cur, g) for g in range(8)]
        ex = extra[i] + ["", ""]
        seq = list(pre[i])
        PP = OPT.get("pp", 4)
        if OPT["prio"] and i % PP in (0, OPT["prio"]):
            L = a.label("pr")
            seq.append(f"s_cmp_lt_u32 s3, 4\ns_cbranch_scc1 {L}\ns_setprio {2 if i % PP == 0 else 0}\n{L}:")
        seq += ["s_waitcnt lgkmcnt(0)", q[0]] + kr[0:2] + e[0]
        seq += [pvm(1 - vs_, 3) if i > 0 else ""] + kr[2:3] + vrd[0:1] + e[1]
        seq += [q[1]] + vrd[1:3] + e[2]
        seq += [pvm(vs_, 0)] + vrd[3:4] + e[3]
        seq += [q[2], ex[0]] + e[4] + e[5][:3]
        seq += [pvm(vs_, 1), ex[1]] + e[5][3:] + e[6][:2]
        seq += [pvm(vs_, 2)] + e[6][2:] + e[7]
        for x in seq:
            if x: a(x)
        if i % 8 == 7: st(3 + i // 8)
    a("s_nop 1"); a(pvm(1, 3))
    a("s_setprio 0\ns_nop 15")
    def bcast_l():
        a(f"v_mov_b32 v25, v{O+10}\nv_mov_b32 v26, v{O+10}\ns_nop 1\nv_permlane32_swap_b32 v25, v26\ns_nop 1")
    bcast_l()
    a(f"v_mov_b32 v26, {f32bits(2.0**60)}\nv_cmp_nle_f32 vcc, v25, v26\ns_nop 4\ns_cbranch_vccz K2_out")
    a("v_mov_b32 v24, 0xff800000")
    for ps in range(2):
        a(f"s_mov_b32 s52, 0\nv_mov_b32 v27, v{VKA}\nv_mov_b32 v28, v{VK2}\nv_mov_b32 v29, v{VVA}")
        a(f"K2_fb{ps}:")
        a(f"buffer_load_dwordx4 v[{KF}:{KF+3}], v27, s[16:19], 0 offen\nbuffer_load_dwordx4 v[{KF+4}:{KF+7}], v27, s[16:19], 0 offen offset:1024\nbuffer_load_dword v{K2F}, v28, s[16:19], 0 offen offset:2048")
        if ps:
            a("s_movk_i32 s53, 2304")
            for u in range(4): a(f"buffer_load_dwordx4 v[{VF+4*u}:{VF+4*u+3}], v29, s[16:19], s53 offen offset:{608*u}")
        a("s_waitcnt vmcnt(0)")
        q = qk(SA, 0, NMr if ps else "0")
        a(q[0]); a(q[1]); a("s_nop 9"); a(q[2]); a("s_nop 15\ns_nop 3")
        if ps == 0:
            for x in rowmax(SA, 24, False): a(x)
        else:
            for g in range(8):
                for x in E(SA, g): a(x)
            a("s_nop 1")
            for u in range(4): a(pvm(0, u))
        a(f"v_add_u32 v27, {PAIR}, v27\nv_add_u32 v28, {PAIR}, v28\nv_add_u32 v29, {PAIR}, v29")
        a(f"s_add_u32 s52, s52, 1\ns_cmp_lt_u32 s52, 32\ns_cbranch_scc1 K2_fb{ps}")
        if ps == 0:
            set_nm(24)
            for r in range(16): a(f"v_mov_b32 v{O+r}, 0")
    a("s_nop 15")
    bcast_l()
    a("K2_out:")
    WR, XR, ACC, XRES = 12, 40, 112, 140
    a("s_lshr_b32 s77, s2, 5\ns_and_b32 s78, s2, 7\ns_lshl_b32 s78, s78, 2\ns_bfe_u32 s43, s2, 0x20003\ns_add_u32 s78, s78, s43")
    a("s_cmp_ge_u32 s3, 4\ns_cbranch_scc1 K2_noearly")
    a("s_lshl_b32 s46, s78, 2\ns_add_u32 s46, s46, s3")
    ws_srd(a, 48, "MEAN1", 14)
    ws_srd(a, 52, "XC", 14)
    a(f"s_mul_i32 s47, s77, 3072\ns_mul_i32 s30, s46, 18432\ns_add_u32 s47, s47, s30")
    for u in range(3):
        a(f"buffer_load_dwordx4 v[{XRES+4*u}:{XRES+4*u+3}], v3, s[52:55], s47 offen offset:{1024*u} sc1")
    a(f"v_and_b32 v166, 15, v0\nv_lshlrev_b32 v166, 2, v166\ns_lshl_b32 s65, s46, 6\nbuffer_load_dword v165, v166, s[48:51], s65 offen sc1")
    a("K2_noearly:")
    a(f"s_lshl_b32 s43, s34, 10\ns_add_u32 s43, s43, {FL_RF}\nbuffer_load_dwordx4 v[160:163], v3, s[36:39], s43 offen sc1")
    a(f"v_rcp_f32 v25, v25\ns_nop 0")
    for r in range(10): a(f"v_mul_f32 v{O+r}, v{O+r}, v25")
    for r in range(5): a(f"v_cvt_pk_bf16_f32 v{P+r}, v{O+2*r}, v{O+2*r+1}")
    a(f"v_lshrrev_b32 v26, 4, v1\nv_mul_u32_u24 v27, {18*1024}, v26\nv_and_b32 v28, 15, v1\nv_lshl_add_u32 v27, v28, 4, v27\nv_lshl_add_u32 v27, v2, 8, v27")
    a(f"s_mul_i32 s42, s40, {36*1024}\ns_lshl_b32 s43, s41, 9\ns_add_u32 s43, s43, s42")
    a(f"buffer_store_dwordx4 v[{P}:{P+3}], v27, s[24:27], s43 offen sc1")
    OSC = 32 * PAIR + 1024
    a(f"s_lshr_b32 s43, s3, 2\ns_lshl_b32 s43, s43, 8\ns_and_b32 s44, s3, 3\ns_lshl_b32 s44, s44, 2\ns_add_u32 s43, s43, s44\ns_add_u32 s43, s43, {OSC}")
    a(f"v_lshlrev_b32 v26, 9, v26\nv_lshl_add_u32 v26, v28, 4, v26\nv_add_u32 v26, s43, v26\ns_mov_b64 exec, 0xffffffff\nds_write_b32 v26, v{P+4}\ns_mov_b64 exec, -1")
    a(f"v_mov_b32 v172, {ffn.CNT}\nv_mov_b32 v8, 1\nv_mov_b32 v9, 0\nv_mov_b32 v174, s{SE}\ns_lshl_b32 s79, s2, 7\ns_add_u32 s79, s79, {FL_OF}")
    a(f"v_add_u32 v4, {OSC}, v3\nv_mul_u32_u24 v5, {18*1024}, v2\nv_lshl_add_u32 v5, v1, 4, v5")
    a("s_and_b32 s43, s2, 3\ns_lshl_b32 s43, s43, 9\ns_add_u32 s43, s43, s42\ns_add_u32 s43, s43, 16384")
    a("s_waitcnt lgkmcnt(0)\ns_barrier")
    st(7)
    a("s_cmp_lg_u32 s3, 0\ns_cbranch_scc1 K3_norem")
    a("ds_read_b128 v[12:15], v4\ns_waitcnt lgkmcnt(0)\nbuffer_store_dwordx4 v[12:15], v5, s[24:27], s43 offen sc1")
    a("K3_norem:")
    a("v_lshlrev_b32 v2, 4, v0\ns_mov_b32 s40, s77\ns_mov_b32 s41, s78")
    a("s_waitcnt vmcnt(0)\ns_mov_b64 exec, 1\nds_add_rtn_u32 v168, v172, v8 offset:36\ns_waitcnt lgkmcnt(0)\nv_readfirstlane_b32 s70, v168\ns_cmp_lg_u32 s70, 7\ns_cbranch_scc1 K3_nofl")
    a("buffer_store_dword v174, v9, s[36:39], s79 offen sc1\nK3_nofl:\ns_mov_b64 exec, -1")
    a("s_cmp_ge_u32 s3, 4\ns_cbranch_scc1 K3_loader")
    a("v_add_u32 v3, 0x10000, v2\nv_add_u32 v4, 0x20000, v2\nv_and_b32 v5, 15, v0\nv_lshrrev_b32 v6, 4, v0\nv_lshlrev_b32 v7, 7, v0")
    a("v_lshlrev_b32 v11, 2, v5\nv_mov_b32 v10, v165")
    st(8)
    a("s_cmp_ge_u32 s40, 6\ns_cbranch_scc1 K4_compute")
    a(f"s_lshl_b32 s43, s41, 3\ns_lshr_b32 s44, s3, 1\ns_lshl_b32 s44, s44, 2\ns_add_u32 s43, s43, s44\ns_lshl_b32 s43, s43, 7\ns_add_u32 s43, s43, {FL_OF}")
    ws_srd(a, 52, "HC", 14)
    ws_srd(a, 56, "MU2", 14)
    ws_srd(a, 60, "SS", 14)
    a("s_barrier")
    st(13)
    for j in range(7):
        off = j * 1024 if j < 6 else 108 * 1024
        a(f"ds_read_b128 v[{12+4*j}:{15+4*j}], v{2 + off // 65536} offset:{off % 65536}")
    poll(a, 4, 7, 36, 43, 164, 1)
    st(9)
    def oload(ks):
        return ("s_add_u32 s30, s30, 4096\n" if ks and ks % 4 == 0 else "") + f"buffer_load_dwordx4 v[{XR+4*ks}:{XR+4*ks+3}], v2, s[24:27], s30 offen offset:{(ks%4)*1024} sc1"
    OD = OPT.get("k3_od", 6)
    for ks in range(OD): a(oload(ks))
    st(10)
    def wread(ks, j):
        off = (ks * 6 + j) * 1024 if j < 6 else (108 + ks) * 1024
        return f"ds_read_b128 v[{WR+4*j}:{WR+4*j+3}], v{2 + off // 65536} offset:{off % 65536}"
    nl = OD
    for ks in range(18):
        for j in range(7):
            a((f"s_waitcnt vmcnt({nl-1-ks}) " if j == 0 else "s_waitcnt ") + f"lgkmcnt({6 if ks < 17 else 6-j})")
            c = "0" if ks == 0 else f"v[{ACC+4*j}:{ACC+4*j+3}]"
            a(f"v_mfma_f32_16x16x32_bf16 v[{ACC+4*j}:{ACC+4*j+3}], v[{WR+4*j}:{WR+4*j+3}], v[{XR+4*ks}:{XR+4*ks+3}], {c}")
            if ks < 17: a(wread(ks + 1, j))
            if j in (1, 4) and nl < 18:
                a(oload(nl)); nl += 1
    a("s_barrier")
    st(11)
    e = ACC + 24
    a(f"s_nop 6\nv_add_f32 v10, v10, v{e}\nv_add_f32 v10, v10, v{e+1}\nv_mov_b32 v14, 0")
    for u in range(3):
        for r in range(4):
            x = XRES + 4 * u + r
            lo, hi = ACC + 8 * u + r, ACC + 8 * u + 4 + r
            a(f"v_lshlrev_b32 v12, 16, v{x}\nv_and_b32 v13, 0xffff0000, v{x}")
            a(f"v_add_f32 v{lo}, v{lo}, v12\nv_add_f32 v{hi}, v{hi}, v13")
            a(f"v_sub_f32 v{lo}, v{lo}, v10\nv_sub_f32 v{hi}, v{hi}, v10")
            a(f"v_cvt_pk_bf16_f32 v{XR+4*u+r}, v{lo}, v{hi}")
        a(f"buffer_store_dwordx4 v[{XR+4*u}:{XR+4*u+3}], v2, s[52:55], s47 offen offset:{1024*u} sc1")
    for i in range(12): a(f"v_dot2_f32_bf16 v14, v{XR+i}, v{XR+i}, v14")
    a("s_nop 2")
    sum_g(a, 14, 12)
    a("s_lshl_b32 s43, s41, 3\ns_add_u32 s43, s43, s40\ns_lshl_b32 s43, s43, 8\ns_lshl_b32 s44, s3, 6\ns_add_u32 s43, s43, s44\ns_mov_b64 exec, 0xffff")
    a("buffer_store_dword v14, v11, s[60:63], s43 offen sc1")
    a("s_cmp_lg_u32 s40, 0\ns_cbranch_scc1 K3_nomu\nbuffer_store_dword v10, v11, s[56:59], s65 offen sc1\nK3_nomu:")
    a(f"s_lshl_b32 s43, s46, 3\ns_add_u32 s43, s43, s40\ns_lshl_b32 s43, s43, 7\ns_add_u32 s43, s43, {FL_HF}")
    a("s_waitcnt vmcnt(0)\ns_mov_b64 exec, 1\nbuffer_store_dword v174, v9, s[36:39], s43 offen sc1\ns_mov_b64 exec, -1")
    st(12)
    a("s_branch K4_compute")
    a("K3_loader:")
    a(f"v_mov_b32 v4, {ffn.CNT}")
    a("s_sub_u32 s33, s3, 4\ns_cmp_ge_u32 s40, 6\ns_cbranch_scc1 K3_pf")
    ws_srd(a, 20, "WOF", 14)
    ws_srd(a, 68, "WBAR", 14)
    a(f"s_lshl_b32 s76, s33, 10\ns_mul_i32 s75, s40, {108*1024}\ns_add_u32 s74, s76, {EW*8192}\ns_add_u32 s75, s75, s74")
    for i in range(2*EW, 32):
        sd, so = ((20, 75) if i < 27 else (68, 76))
        a(f"s_mov_b32 m0, s74\ns_add_u32 s74, s74, 4096\nbuffer_load_dwordx4 v2, s[{sd}:{sd+3}], s{so} offen lds\ns_add_u32 s{so}, s{so}, 4096")
    a("s_waitcnt vmcnt(0)\ns_barrier")
    a("K3_pf:")
    a("s_cmp_ge_u32 s40, 6\ns_cbranch_scc1 K4_helper\ns_barrier\ns_branch K4_helper")
    k4(a, st)
    a("s_endpgm\nCODE_END:")
    return kernel_desc(NAME + "_kernel", 256)

def rf_check(a, first_loaded):
    L = a.label("rf")
    a(f"s_lshl_b32 s43, s34, 10\ns_add_u32 s43, s43, {FL_RF}\ns_mov_b32 s73, 0x8000" + (f"\ns_branch {L}_1" if first_loaded else ""))
    a(f"{L}:\nbuffer_load_dwordx4 v[160:163], v2, s[36:39], s43 offen sc1\ns_waitcnt vmcnt(0)\n{L}_1:\nv_xor_b32 v12, s{SE}, v160\nv_xor_b32 v13, s{SE}, v161\nv_xor_b32 v14, s{SE}, v162\nv_or3_b32 v12, v12, v13, v14\nv_xor_b32 v13, s{SE}, v163\nv_or_b32 v12, v12, v13\nv_cmp_eq_u32 vcc, 0, v12\ns_nop 1")
    a(f"s_cmp_eq_u64 vcc, -1\ns_cbranch_scc1 {L}_ok\ns_sleep 2\ns_sub_u32 s73, s73, 1\ns_cbranch_scc0 {L}\n{L}_ok:")
def h_bases(a, sw):
    a("v_add_u32 v3, 0x10000, v2\nv_add_u32 v4, 0x20000, v2")
    a(f"s_mul_i32 s42, s{sw}, 3\ns_lshr_b32 s43, s42, 1\ns_lshl_b32 s43, s43, 12\ns_and_b32 s44, s42, 1\ns_lshl_b32 s45, s44, 3\ns_add_u32 s43, s43, s45\ns_add_u32 s43, s43, {ffn.HB}")
    a("v_add_u32 v5, s43, v2")
    a("s_mul_i32 s45, s44, 4080\ns_add_u32 s45, s45, 8\nv_add_u32 v6, s45, v5")
def k4(a, st0):
    st = lambda i: st0(20 + i)
    a("K4_compute:\ns_mov_b32 s40, s34\ns_mov_b32 s41, s35")
    rf_check(a, True)
    a(f"s_lshl_b32 s46, s40, 2\ns_add_u32 s46, s46, s3\ns_mul_i32 s31, s46, {324*1024}")
    ws_srd(a, 20, "WF", 14)
    cs = ffn.Stream(a, PAT(), srdW=20, sW=31, v_lane16=2, v_h8=5, v_p=7, v_one=10, ACC=16, XF=112, TMP=160, RB=176,
                    RINGF=(19 if st0.on else 20), stamp=st)
    cs.prefill(OPT.get("k4_pre", 18))
    a("s_setprio 2")
    h_bases(a, 3)
    a("v_and_b32 v12, 15, v0\nv_lshrrev_b32 v13, 4, v0\ns_lshr_b32 s45, s3, 1\nv_lshl_add_u32 v13, v13, 1, s45\nv_and_b32 v14, 7, v0\nv_xor_b32 v13, v13, v14")
    a("s_and_b32 s45, s3, 1\ns_lshl_b32 s45, s45, 3\nv_lshl_add_u32 v13, v13, 4, s45\nv_lshl_add_u32 v7, v12, 7, v13\nv_add_u32 v8, 0x8000, v7")
    a(f"v_mov_b32 v10, 1\nv_mov_b32 v11, {ffn.CNT}")
    cs.run()
    a("s_branch K4_work")
    PB, AC = 48, 112
    a("K4_helper:")
    a(f"s_setprio {OPT.get('k4_hprio', 0)}\ns_mov_b32 s40, s34\ns_mov_b32 s41, s35")
    a(f"s_mul_i32 s30, s41, 73728\ns_mul_i32 s90, s33, 18432\ns_add_u32 s30, s30, s90")
    ws_srd(a, 16, "HC", 14)
    a(f"s_lshl_b32 s43, s41, 2\ns_add_u32 s43, s43, s33\ns_lshl_b32 s43, s43, 10\ns_add_u32 s43, s43, {FL_HF}\nv_lshlrev_b32 v12, 7, v0")
    poll(a, 6, 12, 36, 43, 13, 1)
    st(9)
    for i in range(18):
        if i % 4 == 0: a("s_mov_b32 m0, s90\ns_add_u32 s90, s90, 4096")
        a(f"buffer_load_dwordx4 v2, s[16:19], s30 offen offset:{(i%4)*1024} sc1 lds")
        if i % 4 == 3: a("s_add_u32 s30, s30, 4096")
        if i >= 5 and i % 3 == 2: a("s_waitcnt vmcnt(3)\ns_barrier")
    a("s_waitcnt vmcnt(0)\ns_barrier")
    a("s_cmp_lg_u32 s2, 0\ns_cbranch_scc1 K4_nep\ns_cmp_lg_u32 s33, 3\ns_cbranch_scc1 K4_nep\ns_mov_b32 s74, s34\ns_mov_b32 s34, 0\nK4_epl:")
    rf_check(a, False)
    a(f"s_add_u32 s34, s34, 1\ns_cmp_lt_u32 s34, 8\ns_cbranch_scc1 K4_epl\ns_mov_b32 s34, s74\nv_mov_b32 v13, s{SE}\nv_mov_b32 v14, 0")
    ws_srd(a, 52, "EP", 14)
    a("s_mov_b64 exec, 1\nbuffer_store_dword v13, v14, s[52:55], 0 offen sc1\ns_mov_b64 exec, -1\nK4_nep:")
    for i in range(ffn.N_BARRIERS_AFTER_X): a("s_barrier")
    NPUB = OPT.get("npub", 2)
    a(f"s_cmp_ge_u32 s33, {NPUB}\ns_cbranch_scc1 K4_work")
    def wait_cnt(L, slp):
        a(f"s_mov_b32 s72, 0x40000\n{L}:\nds_read_b32 v3, v4\ns_waitcnt lgkmcnt(0)\nv_readfirstlane_b32 s70, v3\ns_cmp_eq_u32 s70, 4\ns_cbranch_scc1 {L}_ok\ns_sleep {slp}\ns_sub_u32 s72, s72, 1\ns_cbranch_scc0 {L}\n{L}_ok:")
    SWZ = "v_lshrrev_b32 v5, 3, v0\nv_and_b32 v6, 7, v0\nv_xor_b32 v7, v5, v6\nv_lshlrev_b32 v7, 4, v7\nv_lshl_add_u32 v7, v5, 7, v7"
    ws_srd(a, 24, "PART", 14)
    a("s_mov_b32 s42, s33"); a(SWZ)
    a(f"s_lshl_b32 s44, s42, 13\nv_add_u32 v7, s44, v7\ns_lshl_b32 s44, s42, 2\ns_add_u32 s44, s44, {ffn.CNT}\nv_mov_b32 v4, s44")
    a("s_mul_i32 s49, s41, 9\ns_add_u32 s49, s49, s42\ns_lshl_b32 s47, s49, 16\ns_lshl_b32 s51, s49, 10")
    a("s_lshl_b32 s44, s40, 13\ns_add_u32 s47, s47, s44\ns_lshl_b32 s44, s40, 7\ns_add_u32 s51, s51, s44\nv_mov_b32 v18, 0")
    a(f"v_mov_b32 v13, s{SE}")
    a("K4_pub:")
    wait_cnt("K4_pw", 2)
    st0.dyn(34, 42)
    for i in range(8): a(f"ds_read_b128 v[{PB+4*i}:{PB+4*i+3}], v7 offset:{1024*i}")
    a("s_add_u32 s71, s47, 4096")
    for i in range(8):
        a(f"s_cmp_eq_u32 s40, {i}\ns_cbranch_scc1 K4_ps{i}\ns_waitcnt lgkmcnt({7-i})\nbuffer_store_dwordx4 v[{PB+4*i}:{PB+4*i+3}], v2, s[24:27], s{47 if i < 4 else 71} offen offset:{(i%4)*1024} sc1\nK4_ps{i}:")
    a("s_waitcnt vmcnt(0) lgkmcnt(0)\ns_mov_b64 exec, 1\nbuffer_store_dword v13, v18, s[36:39], s51 offen sc1\ns_mov_b64 exec, -1")
    st0.dyn(43, 42)
    a(f"s_add_u32 s42, s42, {NPUB}\ns_add_u32 s47, s47, {NPUB << 16}\ns_add_u32 s51, s51, {NPUB << 10}\nv_add_u32 v7, {NPUB << 13}, v7\nv_add_u32 v4, {4*NPUB}, v4\ns_cmp_lt_u32 s42, 9\ns_cbranch_scc1 K4_pub")
    a("K4_work:")
    a(f"v_mov_b32 v14, {ffn.CNT}\nv_mov_b32 v15, 1")
    TAKE = "s_mov_b64 exec, 1\nds_add_rtn_u32 v3, v14, v15 offset:40\ns_mov_b64 exec, -1\ns_waitcnt lgkmcnt(0)\nv_readfirstlane_b32 s42, v3\ns_cmp_ge_u32 s42, 9\ns_cbranch_scc1 K4_fin"
    a(TAKE)
    ws_srd(a, 16, "HC", 14)
    ws_srd(a, 24, "PART", 14)
    ws_srd(a, 52, "MU2", 14)
    ws_srd(a, 56, "SS", 14)
    srd(a, 60, 4, 0, T*DM*2)
    a(SWZ)
    a("s_lshl_b32 s43, s40, 3\nv_add_u32 v8, s43, v5")
    a("v_lshlrev_b32 v19, 2, v8\ns_lshl_b32 s44, s41, 8\ns_lshl_b32 s65, s41, 11\nbuffer_load_dword v140, v19, s[52:55], s44 offen sc1")
    for nb in range(6): a(f"buffer_load_dword v{144+nb}, v19, s[56:59], s65 offen offset:{256*nb} sc1")
    a("s_lshl_b32 s44, s40, 10\nv_add_u32 v9, s44, v7\nv_lshlrev_b32 v12, 7, v0")
    a("v_lshrrev_b32 v10, 4, v8\nv_mul_u32_u24 v10, 18432, v10\nv_lshl_add_u32 v10, v6, 8, v10\nv_and_b32 v11, 15, v8\nv_lshl_add_u32 v10, v11, 4, v10")
    a(f"v_mul_u32_u24 v11, {DM*2}, v8\nv_lshl_add_u32 v11, v6, 4, v11")
    a("v_and_b32 v19, 1, v0\nv_cmp_eq_u32 s[66:67], 1, v19\ns_mov_b32 s68, 0x00003f80\ns_mov_b32 s69, 0x3f800000\ns_mov_b32 s74, 0")
    a("K4_red:")
    a("s_mul_i32 s30, s41, 73728\ns_lshl_b32 s44, s42, 11\ns_add_u32 s30, s30, s44\nbuffer_load_dwordx4 v[20:23], v10, s[16:19], s30 offen sc1")
    a(f"s_mul_i32 s64, s41, {64*DM*2}\ns_lshl_b32 s44, s42, 7\ns_add_u32 s64, s64, s44")
    a(f"s_lshl_b32 s44, s42, 13\nv_add_u32 v7, s44, v9\ns_lshl_b32 s44, s42, 2\ns_add_u32 s44, s44, {ffn.CNT}\nv_mov_b32 v4, s44")
    a("s_mul_i32 s49, s41, 9\ns_add_u32 s49, s49, s42\ns_lshl_b32 s71, s49, 16\ns_lshl_b32 s51, s49, 10\ns_lshl_b32 s44, s40, 10\ns_add_u32 s71, s71, s44")
    wait_cnt("K4_rw", 4)
    poll(a, 8, 12, 36, 51, 3, OPT.get("red_slp", 2))
    st0.dyn(52, 42)
    for j in range(8):
        b = PB + 4*j
        a(f"s_cmp_eq_u32 s40, {j}\ns_cbranch_scc1 K4_ro{j}\nbuffer_load_dwordx4 v[{b}:{b+3}], v2, s[24:27], s71 offen sc1\ns_branch K4_rp{j}\nK4_ro{j}:\nds_read_b128 v[{b}:{b+3}], v7\nK4_rp{j}:\ns_add_u32 s71, s71, 8192")
    a("s_cmp_lg_u32 s74, 0\ns_cbranch_scc1 K4_hs\ns_mov_b32 s74, 1")
    a("v_add_f32 v144, v144, v145\nv_add_f32 v146, v146, v147\nv_add_f32 v148, v148, v149\nv_add_f32 v144, v144, v146\nv_add_f32 v144, v144, v148")
    a(f"v_mov_b32 v145, {f32bits(1e-5)}\nv_fmac_f32 v145, {f32bits(1.0/DM)}, v144\nv_rsq_f32 v142, v145\nK4_hs:")
    for i in range(4):
        a(f"v_lshlrev_b32 v{24+2*i}, 16, v{20+i}\nv_and_b32 v{25+2*i}, 0xffff0000, v{20+i}\nv_add_f32 v{24+2*i}, v{24+2*i}, v140\nv_add_f32 v{25+2*i}, v{25+2*i}, v140")
    a("s_waitcnt lgkmcnt(0)")
    for j in range(8):
        a(f"s_waitcnt vmcnt({max(0, 6-j)})")
        for qq in range(2):
            for p in range(2):
                src = PB + 4*j + 2*qq + p
                d0, d1 = AC + 4*p + qq, AC + 4*p + 2 + qq
                if OPT.get("red_dot", False):
                    for hh, d in ((0, d0), (1, d1)):
                        a(f"v_dot2_f32_bf16 v{d}, v{src}, s{68+hh}, {'0' if j == 0 else f'v{d}'}")
                elif j == 0:
                    a(f"v_lshlrev_b32 v{d0}, 16, v{src}\nv_and_b32 v{d1}, 0xffff0000, v{src}")
                else:
                    a(f"v_lshlrev_b32 v16, 16, v{src}\nv_and_b32 v{src}, 0xffff0000, v{src}\nv_add_f32 v{d0}, v{d0}, v16\nv_add_f32 v{d1}, v{d1}, v{src}")
    a("s_nop 2")
    for i in range(4):
        a(f"v_cndmask_b32 v{AC+8+i}, v{AC+4+i}, v{AC+i}, s[66:67]")
        a(f"v_cndmask_b32 v{AC+12+i}, v{AC+i}, v{AC+4+i}, s[66:67]")
    a("s_nop 1")
    for i in range(4):
        a(f"v_mov_b32_dpp v{AC+16+i}, v{AC+8+i} quad_perm:[1,0,3,2] row_mask:0xf bank_mask:0xf")
    for hlf in range(2):
        for e in range(2):
            k_, r_ = AC + 12 + 2*hlf + e, AC + 16 + 2*hlf + e
            a(f"v_cndmask_b32 v{AC+4*hlf+e}, v{k_}, v{r_}, s[66:67]\nv_cndmask_b32 v{AC+4*hlf+2+e}, v{r_}, v{k_}, s[66:67]")
    for i in range(4):
        a(f"v_fmac_f32 v{24+2*i}, v{AC+2*i}, v142\nv_fmac_f32 v{25+2*i}, v{AC+2*i+1}, v142\nv_cvt_pk_bf16_f32 v{40+i}, v{24+2*i}, v{25+2*i}")
    a("buffer_store_dwordx4 v[40:43], v11, s[60:63], s64 offen")
    st0.dyn(8, 42)
    a(TAKE + "\ns_branch K4_red")
    a("K4_fin:")
    st0.finish(14, 3, 8)

HEADER = open("cdna_kernels/" + NAME + ".s.ref").read().split("; Override launch geometry")[0]
def build(stamp_k=-1, force_fallback=False, light=False, **opt):
    LIGHT[0] = light
    OPT.update(opt)
    a = Asm()
    hdr = HEADER + f"; @launch grid=({K1_GRID},1,1) block=(512,1,1) lds={max(K1_LDS, K2_LDS)}\n"
    a('.amdgcn_target "amdgcn-amd-amdhsa--gfx950"\n.text')
    st = Stamps(a, stamp_k == 2, 2, 255, 254)
    k1(a, st)
    descs = [k2(a, st, force_fallback)]
    a('.set CODE_PF_N, (CODE_END - K2_out + 8191) / 8192')
    a('.section .rodata,"a"')
    return hdr + a.text() + "".join(descs)

if __name__ == "__main__":
    out = sys.argv[1] if len(sys.argv) > 1 else "cdna_kernels/" + NAME + ".s"
    kw = eval("dict(" + (sys.argv[2] if len(sys.argv) > 2 else "") + ")")
    open(out, "w").write(build(**kw))
```

```python
from asmlib import *

HB = 77824
STG = 8192
CNT = HB + 73728
FFN_LDS = CNT + 64
XC = 3
N_BARRIERS_AFTER_X = 2

class Stream:
    XB = 3
    def __init__(self, a, pat, *, srdW, sW, v_lane16, v_h8, v_p, v_one, ACC, XF, TMP, RB, RINGF, stamp=None, wflag='', al=0, fast=0, fastfrom=99):
        self.__dict__.update(locals())
        self.groups = [(0, g, 3) for g in range(3)]
        cb = 0
        for n in pat:
            self.groups.append((1, cb, n)); cb += n
        assert cb == 9
        self.NF = 324
        self.issued = 0; self.wpos = {}; self.wadv = 0; self.nw = 0
    def wreg(self, f): return self.RB + 4 * (f % self.RINGF)
    def wload(self):
        f = self.nw; self.nw += 1
        off = f * 1024 - self.wadv
        L = []
        if off >= 4096:
            L.append(f"s_add_u32 s{self.sW}, s{self.sW}, {off}"); self.wadv += off; off = 0
        L.append(f"buffer_load_dwordx4 {R(self.wreg(f),4)}, v{self.v_lane16}, s[{self.srdW}:{self.srdW+3}], s{self.sW} offen offset:{off}{self.wflag}")
        self.wpos[f] = self.issued; self.issued += 1
        return "\n".join(L)
    def prefill(self, n):
        for i in range(n): self.a(self.wload())
    def xread(self, step, mt):
        ph, ks = self.groups[step // 18][0], step % 18
        off = HB + (ks * 4 + mt) * 1024 if ph else (mt * 18 + ks) * 1024
        r = self.XF + 16 * (step % self.XB) + 4 * mt
        return f"ds_read_b128 v[{r}:{r+3}], v{self.v_lane16 + off // 65536} offset:{off % 65536}"
    def epilogue(self, gi):
        ph, g, nt = self.groups[gi]
        ac = self.ACC + 48 * (gi % 2)
        L = []
        for t in range(nt):
            for mt in range(4):
                b = ac + (t * 4 + mt) * 4
                tm = self.TMP + ((t * 4 + mt) % 8) * 2
                L.append((f"v_cvt_pk_bf16_f32 v{tm}, v{b}, v{b+1}", 0)); L.append((f"v_cvt_pk_bf16_f32 v{tm+1}, v{b+2}, v{b+3}", 0))
                if ph == 0:
                    L.append((f"v_pk_max_i16 v{tm}, v{tm}, 0", 0)); L.append((f"v_pk_max_i16 v{tm+1}, v{tm+1}, 0", 0))
                    L.append((f"ds_write_b64 v{self.v_h8 + (t & 1)}, v[{tm}:{tm+1}] offset:{mt*1024 + (6*g + (t >> 1))*4096}", 1))
                else:
                    off = (g + t) * STG + mt * 2048
                    hi = off >= 32768
                    L.append((f"ds_write_b64 v{self.v_p + hi}, v[{tm}:{tm+1}] offset:{off - 32768 * hi}", 1))
            if ph:
                L.append((f"s_mov_b64 exec, 1\nds_add_u32 v{self.v_one+1}, v{self.v_one} offset:{4*(g+t)}\ns_mov_b64 exec, -1", 1))
        return L
    def run(self):
        a, stamp, RINGF = self.a, self.stamp, self.RINGF
        if stamp: stamp(0)
        a("s_barrier")
        if stamp: stamp(1)
        lds_q = []
        def lds_wait(tag):
            if tag not in lds_q: return None
            i = len(lds_q) - 1 - lds_q[::-1].index(tag)
            n = len(lds_q) - 1 - i
            if n > 15:
                n = 15
                del lds_q[:len(lds_q) - 15]
            else:
                del lds_q[:i + 1]
            return f"s_waitcnt lgkmcnt({n})"
        NS = 18 * len(self.groups)
        for st_ in range(2):
            for mt in range(4):
                a(self.xread(st_, mt)); lds_q.append(("x", st_))
        pending = []
        f0 = 0
        since = 0
        for step in range(NS):
            gi, ks = divmod(step, 18)
            nt = self.groups[gi][2]
            ac = self.ACC + 48 * (gi % 2)
            if ks == 0 and gi > 0:
                assert not pending
                pending = self.epilogue(gi - 1)
                since = 0
                if stamp and gi < 6: stamp(2 + gi)
            ns = step + 2
            if ns < 18 and ns % XC == 0:
                a("s_barrier")
            if ns in (54, 54 + 12):
                assert not pending
                w = lds_wait(("w",))
                if w: a(w)
                a("s_barrier")
            vw = min(63, self.issued - 1 - self.wpos[f0 + nt - 1])
            lw = lds_wait(("x", step))
            a(f"s_waitcnt vmcnt({vw})" + (lw[len("s_waitcnt"):] if lw else ""))
            if self.al == 1: a(".p2align 3")
            if self.al == 2: a(".p2align 3\ns_nop 0")
            fills = [mt for mt in range(4)] if ns < NS else []
            for t in range(nt):
                f = f0 + t
                for mt in range(4):
                    d = ac + (t * 4 + mt) * 4
                    x = self.XF + 16 * (step % self.XB) + 4 * mt
                    c = "0" if ks == 0 else R(d, 4)
                    a(f"v_mfma_f32_16x16x32_bf16 {R(d,4)}, {R(self.wreg(f),4)}, v[{x}:{x+3}], {c}")
                    since += 1
                    slot = t * 4 + mt
                    used = 0
                    if mt in (0, 2) and self.nw < self.NF and self.nw < f + RINGF:
                        a(self.wload()); used += 1
                    if fills and (slot % 2 == 1 or nt == 1):
                        a(self.xread(ns, fills.pop(0))); lds_q.append(("x", ns)); used += 1
                    while pending and used < (1 if mt == 0 else 2) + (self.fast if gi >= self.fastfrom else 0) and since > (3 if gi >= self.fastfrom else 8):
                        txt, ld = pending.pop(0)
                        a(txt); used += 1
                        if ld: lds_q.append(("w",))
            assert not fills
            f0 += nt
        if stamp: stamp(8)
        a("s_nop 7")
        ep = self.epilogue(len(self.groups) - 1)
        for (txt, ld) in ep[:-1]:
            a(txt)
        a(ep[-1][0].replace(f"ds_add_u32 v{self.v_one+1}, v{self.v_one}", f"ds_add_rtn_u32 v{self.TMP+15}, v{self.v_one+1}, v{self.v_one}"))
```

```python
import sys, math
from asmlib import *
from gemm import gemm_core
import ffn

T, DM, NH, DH, F = 2048, 576, 32, 18, 4608
NAME = "sequential_preLN__grouped_kv_mqa__dense_activation_relu__prompt"
A_X, A_WQ, A_WK, A_WV, A_WO, B_X, B_W1, B_W2, K_OUT, K_DBG, K_WS = [8 * i for i in range(11)]
def _al(x, a=4096): return (x + a - 1) // a * a
PAIR = 4736
FL_PF, FL_OF, FL_HF, FL_RF = 0, 294912, 294912 + 32768, 294912 + 32768 + 131072
FL_AF = FL_RF + 8192
FL_END = FL_AF + 32768
SW, SE = 100, 101
WS = {}
_o = 0
for nm, sz in [("EP", 128), ("Q", T*DM*2), ("KV", 32*PAIR), ("MEAN1", T*4), ("O", T*DM*2), ("HC", T*DM*2), ("MU2", T*4),
               ("SS", T*8*4), ("XC", T*DM*2), ("WBAR", 36*1024), ("WOF", 648*1024), ("WF", 32*332*1024),
               ("PART", 8*T*DM*2), ("FLAG", FL_END), ("STAMP", 16 << 20)]:
    WS[nm] = (_o, sz); _o += _al(sz)
WS_END = _o
QSCALE = math.log2(math.e) / math.sqrt(DH)
def f32bits(x):
    import struct
    return struct.unpack("<I", struct.pack("<f", x))[0]
ONES = 0x3f803f80

def ws_srd(a, d, nm, base):
    srd(a, d, base, WS[nm][0], WS[nm][1])

def wave_lane(a, s_wave=3):
    a(f"v_lshrrev_b32 v1, 6, v0\nv_and_b32 v0, 63, v0\ns_nop 0\nv_readfirstlane_b32 s{s_wave}, v1")

def sum_g(a, v, t):
    a(f"v_mov_b32 v{t}, v{v}\ns_nop 1\nv_permlane32_swap_b32 v{v}, v{t}\ns_nop 1\nv_add_f32 v{v}, v{v}, v{t}")
    a(f"v_mov_b32 v{t}, v{v}\ns_nop 1\nv_permlane16_swap_b32 v{v}, v{t}\ns_nop 1\nv_add_f32 v{v}, v{v}, v{t}")

LIGHT = [False]
OPT = dict(prio=3, k2_nt=True, codepf=True)
class Stamps:
    def __init__(self, a, on, kidx, vreg, vtmp):
        self.a, self.on, self.k, self.v, self.t = a, bool(on) or LIGHT[0], kidx, vreg, vtmp
        self.full = bool(on)
    def start(self):
        if self.on:
            self.a(f"s_memrealtime s[96:97]\ns_memtime s[98:99]\nv_mov_b32 v{self.v}, 0\ns_waitcnt lgkmcnt(0)\nv_writelane_b32 v{self.v}, s96, 62")
    def __call__(self, i):
        if self.full or (self.on and i == 61):
            if OPT.get("rt") and i != 61:
                self.a(f"s_memrealtime s[96:97]\ns_waitcnt lgkmcnt(0)\nv_writelane_b32 v{self.v}, s96, {i}")
            else:
                self.a(f"s_memtime s[96:97]\ns_waitcnt lgkmcnt(0)\ns_sub_u32 s96, s96, s98\nv_writelane_b32 v{self.v}, s96, {i}")
    def dyn(self, base, sreg):
        if self.full:
            self.a(f"s_memrealtime s[96:97]\ns_add_u32 m0, s{sreg}, {base}\ns_waitcnt lgkmcnt(0)\nv_writelane_b32 v{self.v}, s96, m0")
    def finish(self, s_ws, s_wave, nw):
        if self.on:
            a = self.a
            a("s_waitcnt vmcnt(0)")
            self(61)
            a(f"s_memrealtime s[96:97]\ns_waitcnt lgkmcnt(0)\nv_writelane_b32 v{self.v}, s96, 63")
            ws_srd(a, 92, "STAMP", s_ws)
            a(f"s_lshl_b32 s96, s2, 3\ns_add_u32 s96, s96, s{s_wave}\ns_lshl_b32 s96, s96, 8\ns_add_u32 s96, s96, {self.k << 21}")
            a(f"v_mbcnt_lo_u32_b32 v{self.t}, -1, 0\nv_mbcnt_hi_u32_b32 v{self.t}, -1, v{self.t}\nv_lshlrev_b32 v{self.t}, 2, v{self.t}")
            a(f"buffer_store_dword v{self.v}, v{self.t}, s[92:95], s96 offen")


def WST(): return OPT.get('wst', 326)
def PAT(): return OPT.get('pat', (3, 3, 2, 1))
class Repack:
    PR = 208
    def __init__(self, a): self.a = a
    def common(self):
        return (f"s_add_u32 s60, s14, {WS['WOF'][0]}\ns_addc_u32 s61, s15, 0\ns_mov_b32 s62, {WS['WF'][0] + WS['WF'][1] - WS['WOF'][0]}\ns_mov_b32 s63, 0x00020000\n"
                "v_and_b32 v6, 15, v0\nv_lshrrev_b32 v7, 4, v0\ns_mov_b32 s80, 0x05040100\ns_mov_b32 s81, 0x07060302")
    def regs(self, rnd): return 64 + 4 * rnd, 72 + 4 * rnd, 82 + 4 * rnd, 242 + rnd, 240 + rnd
    def setup_ffn(self, rnd, pw1, pw2):
        L = self.a.label("rp")
        SD, SB_, SO, vsrc, dst = self.regs(rnd)
        OWF = WS["WF"][0] - WS["WOF"][0]
        t = []; A = t.append
        A(f"s_mul_hi_u32 s46, s47, {(2**32 + 161)//162}\ns_mul_i32 s49, s46, 162\ns_sub_u32 s47, s47, s49")
        A(f"s_mul_hi_u32 s49, s47, {(2**32 + 8)//9}\ns_mul_i32 s50, s49, 9\ns_sub_u32 s50, s47, s50")
        A(f"s_mov_b32 s{SD+3}, 0x00020000\ns_lshl_b32 s54, s50, 7\nv_mov_b32 v{dst}, v3")
        A(f"s_cmp_lt_u32 s46, 2\ns_cselect_b32 s{SD+2}, {DM*F*2}, 0\ns_cselect_b32 s57, 0, 0x100000")
        A(f"s_mul_i32 s53, s45, {4*WST()}\ns_mul_i32 s55, s46, 162\ns_add_u32 s53, s53, s55\ns_add_u32 s53, s53, {OWF//1024}\ns_add_u32 s53, s53, s57")
        A(f"s_cmp_eq_u32 s46, 1\ns_cbranch_scc1 {L}_w2")
        A("s_mul_i32 s55, s49, 3\ns_add_u32 s53, s53, s55")
        for q in range(4):
            A(f"s_lshl_b32 s55, s50, 2\ns_add_u32 s55, s55, {q}\ns_mul_i32 s56, s55, 86\ns_lshr_b32 s56, s56, 8")
            A(f"s_lshr_b32 s58, s56, 2\ns_mul_i32 s58, s58, {4*WST()-54}\ns_mul_i32 s56, s56, {WST()-3}\ns_sub_u32 s56, s56, s58")
            A(f"s_add_u32 s55, s55, s56\ns_add_u32 s55, s55, s53\ns_lshl_b32 s{SO+q}, s55, 10")
        A(f"s_mov_b32 s{SD}, s{pw1}\ns_mov_b32 s{SD+1}, s{pw1+1}\ns_mul_i32 s53, s49, {32*F*2}\ns_mul_i32 s55, s45, {DM*2}\ns_add_u32 s53, s53, s55\ns_add_u32 s{SB_}, s53, s54")
        A(f"s_mov_b32 s{SB_+1}, {4*F*2}\ns_mov_b32 s{SB_+2}, {2*F*2}\ns_mov_b32 s{SB_+3}, {F*2}")
        A(f"v_mul_u32_u24 v{vsrc}, {8*F*2}, v7\nv_lshl_add_u32 v{vsrc}, v6, 3, v{vsrc}\ns_branch {L}_done")
        A(f"{L}_w2:")
        idx, siz = 0, 0
        cb = 0
        for n in PAT():
            for i in range(n):
                idx |= i << (2 * (cb + i)); siz |= n << (2 * (cb + i))
            cb += n
        A(f"s_lshl_b32 s55, s50, 1\ns_lshr_b32 s56, {idx}, s55\ns_and_b32 s56, s56, 3\ns_lshr_b32 s58, {siz}, s55\ns_and_b32 s58, s58, 3")
        A("s_mul_i32 s58, s58, s49\ns_add_u32 s53, s53, s58\ns_mul_i32 s58, s50, 18\ns_add_u32 s53, s53, s58\ns_mul_i32 s56, s56, 17\ns_sub_u32 s53, s53, s56")
        A(f"s_lshl_b32 s{SO}, s53, 10\ns_add_u32 s{SO+1}, s{SO}, {WST()*1024}\ns_add_u32 s{SO+2}, s{SO}, {2*WST()*1024}\ns_add_u32 s{SO+3}, s{SO}, {3*WST()*1024}")
        A(f"s_mov_b32 s{SD}, s{pw2}\ns_mov_b32 s{SD+1}, s{pw2+1}\ns_lshr_b32 s53, s49, 1\ns_lshl_b32 s53, s53, 6\ns_and_b32 s55, s49, 1\ns_lshl_b32 s55, s55, 1\ns_add_u32 s53, s53, s55")
        A(f"s_mul_i32 s55, s45, {DM}\ns_add_u32 s53, s53, s55\ns_mul_i32 s53, s53, {DM*2}\ns_add_u32 s{SB_}, s53, s54")
        A(f"s_mov_b32 s{SB_+1}, {DM*2}\ns_mov_b32 s{SB_+2}, {8*DM*2}\ns_mov_b32 s{SB_+3}, {4*DM*2}")
        A(f"v_mul_u32_u24 v{vsrc}, {16*DM*2}, v7\nv_lshl_add_u32 v{vsrc}, v6, 3, v{vsrc}")
        A(f"{L}_done:")
        return "\n".join(t)
    def setup_wo(self, rnd, pwo, scr):
        L = self.a.label("rp")
        SD, SB_, SO, vsrc, dst = self.regs(rnd)
        t = []; A = t.append
        A(f"s_mul_hi_u32 s49, s47, {(2**32 + 8)//9}\ns_mul_i32 s50, s49, 9\ns_sub_u32 s50, s47, s50")
        A(f"s_mov_b32 s{SD+3}, 0x00020000\ns_lshl_b32 s54, s50, 7")
        A(f"s_mov_b32 s{SD}, s{pwo}\ns_mov_b32 s{SD+1}, s{pwo+1}\ns_cmp_lt_u32 s47, 162\ns_cselect_b32 s{SD+2}, {DM*DM*2}, 0\ns_cselect_b32 s56, 0, 0x40000000")
        for e in range(2):
            A(f"s_lshl_b32 s55, s50, 1\ns_add_u32 s55, s55, {e}\ns_mul_i32 s57, s55, 86\ns_lshr_b32 s57, s57, 8\ns_mul_i32 s58, s57, 3\ns_cmp_lt_u32 s49, s58\ns_cselect_b32 s58, 54, 0")
            A(f"s_mul_i32 s57, s57, 42\ns_add_u32 s55, s55, s57\ns_add_u32 s55, s55, s58\ns_mul_i32 s57, s49, 3\ns_add_u32 s55, s55, s57\ns_lshl_b32 s55, s55, 11\ns_add_u32 s{SO+e}, s55, s56")
        A(f"v_lshrrev_b32 v245, 3, v6\nv_lshlrev_b32 v245, 11, v245\nv_and_b32 v246, 7, v6\nv_lshl_add_u32 v245, v246, 5, v245\nv_lshl_add_u32 v245, v7, 8, v245\nv_add_u32 v{dst}, s{scr}, v245")
        A(f"s_mov_b32 s{SB_+3}, {DM*2}\ns_cmp_ge_u32 s49, 16\ns_cbranch_scc1 {L}_wo2")
        A(f"s_mul_i32 s53, s49, {36*DM*2}\ns_mov_b32 s{SB_+1}, {8*DM*2}\ns_mov_b32 s{SB_+2}, {2*DM*2}")
        A(f"v_lshrrev_b32 v246, 1, v7\nv_mul_u32_u24 v246, 18, v246\nv_and_b32 v247, 1, v7\nv_lshl_add_u32 v246, v247, 2, v246\ns_branch {L}_wo3")
        A(f"{L}_wo2:")
        A(f"s_sub_u32 s53, s49, 16\ns_mul_i32 s53, s53, {288*DM*2}\ns_add_u32 s53, s53, {16*DM*2}\ns_mov_b32 s{SB_+1}, {36*DM*2}\ns_mov_b32 s{SB_+2}, {18*DM*2}")
        A(f"v_mul_u32_u24 v246, 72, v7")
        A(f"{L}_wo3:")
        A(f"s_add_u32 s{SB_}, s53, s54\nv_mul_u32_u24 v{vsrc}, {DM*2}, v246\nv_lshl_add_u32 v{vsrc}, v6, 3, v{vsrc}")
        return "\n".join(t)
    def load(self, rnd, s_, flag=""):
        SD, SB_, SO, vsrc, dst = self.regs(rnd)
        raw = self.PR + 16 * rnd
        t = f"s_mov_b32 s55, s{SB_}\n"
        if s_ & 4: t += f"s_add_u32 s55, s55, s{SB_+1}\n"
        if s_ & 2: t += f"s_add_u32 s55, s55, s{SB_+2}\n"
        if s_ & 1: t += f"s_add_u32 s55, s55, s{SB_+3}\n"
        return t + f"buffer_load_dwordx2 v[{raw+2*s_}:{raw+2*s_+1}], v{vsrc}, s[{SD}:{SD+3}], s55 offen{flag}"
    def store(self, rnd, q_, flag=""):
        SD, SB_, SO, vsrc, dst = self.regs(rnd)
        raw = self.PR + 16 * rnd
        t = 196 + 4 * (q_ % 2)
        L = [f"v_perm_b32 v{t+j}, v{raw+2*(2*j+1)+(q_>>1)}, v{raw+2*(2*j)+(q_>>1)}, s{80+(q_&1)}" for j in range(4)]
        L.append(f"buffer_store_dwordx4 v[{t}:{t+3}], v{dst}, s[60:63], s{SO+q_} offen{flag}")
        return "\n".join(L)
    def touch(self, rnd):
        SD, SB_, SO, vsrc, dst = self.regs(rnd)
        return "s_mov_b64 exec, 0xff\nv_lshlrev_b32 v204, 7, v0\n" + "\n".join(f"buffer_load_dword v205, v204, s[60:63], s{SO+q} offen" for q in range(4)) + "\ns_mov_b64 exec, -1"

def ffn_map(sj, smb):
    SL = OPT.get("k4_sl", 1); lg = SL.bit_length() - 1
    return (f"s_and_b32 s46, s2, 7\ns_lshr_b32 s47, s2, 3\ns_and_b32 s{sj}, s46, {8//SL-1}\ns_lshl_b32 s{sj}, s{sj}, {lg}\ns_and_b32 s48, s47, {SL-1}\ns_add_u32 s{sj}, s{sj}, s48\n"
            f"s_lshr_b32 s{smb}, s46, {3-lg}\ns_lshl_b32 s{smb}, s{smb}, {5-lg}\ns_lshr_b32 s48, s47, {lg}\ns_add_u32 s{smb}, s{smb}, s48\n")

def poll(a, n, voff, srd_, soff, vt, slp=2, first_loaded=False):
    L = a.label("poll")
    m = (1 << n) - 1
    a(f"s_mov_b32 s91, 0x10000\ns_mov_b32 exec_lo, {m & 0xffffffff}\ns_mov_b32 exec_hi, {m >> 32}" + (f"\ns_branch {L}_1" if first_loaded else ""))
    a(f"{L}:\nbuffer_load_dword v{vt}, v{voff}, s[{srd_}:{srd_+3}], s{soff} offen sc1\ns_waitcnt vmcnt(0)\n{L}_1:\nv_cmp_eq_u32 vcc, s{SE}, v{vt}\ns_nop 1\ns_cmp_eq_u64 vcc, exec\ns_cbranch_scc1 {L}_ok\ns_sleep {slp}\ns_sub_u32 s91, s91, 1\ns_cbranch_scc0 {L}\n{L}_ok:")
    a("s_mov_b64 exec, -1")

K1_GRID = 256
K1_LDS = 159744 + 1280
def k1(a, st0):
    st = lambda i: st0({3: 30, 22: 31, 23: 30, 2: 31}[i]) if i in (2, 3, 22, 23) else None
    XLQ, XLK = 73728, 86016
    KVI = OPT.get('kvi', 21504)
    ST = OPT.get('k1_st', ' sc1')
    LATE = OPT.get('late', False)
    EPX = f's_load_dword s{SE}, s[14:15], 0'
    EP0 = '' if LATE else '\n' + EPX
    EP1 = EPX if LATE else ''
    kernel_begin(a, NAME + "_kernel")
    if OPT["codepf"]:
        a(f"s_cmp_ge_u32 s2, {OPT.get('pfn', 256)}\ns_cbranch_scc1 K1_nopf")
        a("s_getpc_b64 s[58:59]\nK1_pc:\nv_lshlrev_b32 v252, 7, v0\nv_min_u32 v252, K2_out-K1_pc, v252\nglobal_load_dword v253, v252, s[58:59]")
        a("K1_nopf:")
    a(f"s_cmp_lt_u32 s2, {K1_GRID}\ns_cbranch_scc1 K1_go\ns_endpgm\nK1_go:")
    a(f"s_load_dwordx4 s[4:7], s[0:1], {A_X}\ns_load_dwordx4 s[8:11], s[0:1], {A_WK}\ns_load_dwordx2 s[12:13], s[0:1], {A_WO}\ns_load_dwordx2 s[14:15], s[0:1], {K_WS}")
    st0.start()
    wave_lane(a)
    a(f"v_and_b32 v1, 15, v0\nv_lshrrev_b32 v2, 4, v0\ns_mov_b32 s{SW}, s3")
    a("s_bfe_u32 s44, s2, 0x20001\ns_lshl_b32 s44, s44, 3\ns_bfe_u32 s61, s2, 0x30003\ns_add_u32 s44, s44, s61\ns_and_b32 s45, s2, 1\ns_lshl_b32 s45, s45, 2\ns_lshr_b32 s62, s2, 6\ns_add_u32 s45, s45, s62")
    a("s_mul_i32 s60, s62, 9\ns_lshr_b32 s60, s60, 2\ns_add_u32 s60, s60, s61\ns_and_b32 s61, s2, 7\ns_add_u32 s60, s60, s61")
    a("s_mul_i32 s61, s60, 57\ns_lshr_b32 s61, s61, 9\ns_mul_i32 s61, s61, 9\ns_sub_u32 s60, s60, s61")
    a(f"s_cmp_ge_u32 s45, 6\ns_cselect_b32 s60, 0, s60\ns_mov_b32 s63, {XLQ}\ns_cselect_b32 s63, {XLK}, s63")
    a("v_lshrrev_b32 v4, 3, v0\nv_and_b32 v5, 7, v0\ns_lshl_b32 s90, s45, 5\ns_add_u32 s90, s90, s44")
    EX = 159744
    X0 = 16
    AR = 172
    ACC, CS, RS, GR, WF, ON = 88, 192, 112, 116, 120, 168
    ONr = f"v[{ON}:{ON+3}]"
    def V4(b): return f"v[{b}:{b+3}]"
    def lane_rc():
        a("v_lshrrev_b32 v10, 2, v1\nv_and_b32 v11, 3, v1\nv_lshl_add_u32 v12, v2, 3, v10")
    def xaddr(sbase):
        a(f"v_and_b32 v7, 7, v1\nv_xor_b32 v8, v2, v7\nv_lshlrev_b32 v8, 4, v8\nv_lshl_add_u32 v8, v1, 7, v8\nv_add_u32 v8, s{sbase}, v8\nv_xor_b32 v9, 64, v8")
        a("v_add_u32 v190, 0x8000, v8\nv_add_u32 v191, 0x8000, v9")
    def xrd(reg, ks, extra=0):
        p, e = divmod(ks, 2)
        b, o = (8 + e, 8192 * p) if p < 4 else (190 + e, 8192 * (p - 4))
        return f"ds_read_b128 {V4(reg)}, v{b} offset:{o + extra}"
    def waddr(shalf):
        a("v_lshrrev_b32 v13, 1, v10\nv_and_b32 v14, 1, v2\nv_lshl_add_u32 v13, v14, 1, v13")
        a("v_lshlrev_b32 v15, 7, v12\nv_lshl_add_u32 v15, v11, 3, v15\nv_lshlrev_b32 v7, 6, v12\nv_lshl_add_u32 v7, v11, 3, v7\nv_add_u32 v7, 4096, v7")
        a(f"s_cmp_eq_u32 s{shalf}, 1\ns_cselect_b64 vcc, -1, 0\ns_mul_i32 s55, s{shalf}, 3")
        a(f"v_xor_b32 v184, s55, v13\nv_lshl_add_u32 v{AR}, v184, 5, v15\nv_add_u32 v{AR+3}, 512, v{AR}")
        for t in (1, 2):
            a(f"v_xor_b32 v184, {t}, v13\nv_lshl_add_u32 v184, v184, 5, v15\nv_xor_b32 v185, {t-1}, v14\nv_lshl_add_u32 v185, v185, 5, v7")
            a(f"v_cndmask_b32 v{AR+t}, v184, v185, vcc\nv_add_u32 v184, 512, v184\nv_add_u32 v185, 256, v185\nv_cndmask_b32 v{AR+3+t}, v184, v185, vcc")
        for i in range(6): a(f"v_add_u32 v{AR+6+i}, {9*6144}, v{AR+i}")
    def wrd(reg, ks, t):
        hi = ks >= 9
        off = (ks - 9 * hi) * 6144
        return [f"ds_read_b64_tr_b16 v[{reg}:{reg+1}], v{AR+6*hi+t} offset:{off}", f"ds_read_b64_tr_b16 v[{reg+2}:{reg+3}], v{AR+6*hi+3+t} offset:{off}"]
    def stat_mfma(x, first):
        return [f"v_mfma_f32_16x16x32_bf16 {V4(RS)}, {ONr}, {V4(x)}, {'0' if first else V4(RS)}",
                f"v_mfma_f32_16x16x32_bf16 {V4(GR)}, {V4(x)}, {V4(x)}, {'0' if first else V4(GR)}"]
    def stats_out():
        a("v_cmp_eq_u32 vcc, 1, v11\nv_cmp_eq_u32 s[54:55], 2, v11\nv_cmp_eq_u32 s[56:57], 3, v11\nv_cmp_eq_u32 s[58:59], v10, v2\ns_nop 3")
        a(f"v_mul_f32 v4, {f32bits(-1.0/DM)}, v{RS}")
        a(f"v_cndmask_b32 v5, v{GR}, v{GR+1}, vcc\nv_cndmask_b32 v5, v5, v{GR+2}, s[54:55]\nv_cndmask_b32 v5, v5, v{GR+3}, s[56:57]\nv_cndmask_b32 v5, 0, v5, s[58:59]")
        sum_g(a, 5, 7)
        a(f"v_mul_f32 v5, {f32bits(1.0/DM)}, v5\nv_fma_f32 v5, -v4, v4, v5\nv_max_f32 v5, 0, v5\nv_add_f32 v5, {f32bits(1e-5)}, v5\nv_rsq_f32 v5, v5")
        a(f"s_lshl_b32 s54, s3, 7\ns_add_u32 s54, s54, {EX + 768}\nv_lshlrev_b32 v7, 3, v1\nv_add_u32 v7, s54, v7\nds_write_b64 v7, v[4:5]")
    if OPT.get("wtlb", False):
        a(f"s_cmp_lg_u32 s3, 7\ns_cbranch_scc1 K1_ntl\ns_load_dwordx4 s[24:27], s[0:1], {B_W1}\nv_lshlrev_b32 v250, 20, v0\ns_waitcnt lgkmcnt(0)")
        for b in (24, 26):
            a(f"s_mov_b32 s28, s{b}\ns_mov_b32 s29, s{b+1}\ns_mov_b32 s30, {DM*F*2}\ns_mov_b32 s31, 0x00020000\nbuffer_load_dword v251, v250, s[28:31], 0 offen nt")
        a("K1_ntl:")
    a("s_cmp_lt_u32 s3, 4\ns_cbranch_scc1 K1_comp")
    if OPT.get("lprio", 3): a(f"s_setprio {OPT.get('lprio', 3)}")
    a("s_cmp_eq_u32 s45, 7\ns_cbranch_scc1 K1_worp")
    a("s_sub_u32 s3, s3, 4")
    a("s_cmp_eq_u32 s45, 6\ns_cbranch_scc1 K1_kvload")
    a("v_and_b32 v6, 1, v2\ns_and_b32 s48, s3, 1\ns_lshl_b32 s48, s48, 2\nv_lshlrev_b32 v6, 1, v6\nv_or_b32 v6, s48, v6\nv_xor_b32 v6, v6, v5")
    a(f"v_mul_u32_u24 v3, {DM*2}, v4\nv_lshl_add_u32 v3, v6, 4, v3")
    a("v_lshrrev_b32 v7, 5, v0\nv_lshlrev_b32 v7, 1, v7\nv_and_b32 v6, 3, v0\nv_xor_b32 v7, v7, v6\nv_lshrrev_b32 v6, 2, v0")
    a(f"v_mul_u32_u24 v6, {DM*2}, v6\nv_lshl_add_u32 v6, v7, 4, v6")
    a("s_mul_i32 s48, s45, 192\ns_and_b32 s53, s45, 1\ns_lshl_b32 s54, s53, 6\ns_add_u32 s49, s48, s54\ns_xor_b32 s53, s53, 1\ns_lshl_b32 s53, s53, 7\ns_add_u32 s50, s48, s53")
    a(f"s_mul_i32 s53, s3, {8*DM*2}\ns_add_u32 s49, s49, s53\ns_mul_i32 s53, s3, {16*DM*2}\ns_add_u32 s50, s50, s53")
    a("s_lshl_b32 s51, s3, 10")
    a("s_lshr_b32 s52, s3, 1\ns_mul_i32 s52, s52, 6144\ns_and_b32 s53, s3, 1\ns_lshl_b32 s53, s53, 10\ns_add_u32 s52, s52, s53\ns_add_u32 s52, s52, 4096")
    a(f"s_mul_i32 s61, s60, {64*DM*2}")
    a(f"s_waitcnt lgkmcnt(0){EP0}")
    srd(a, 20, 6, 0, DM*DM*2)
    def wdma():
        a(f"s_add_u32 s62, s49, s61\ns_add_u32 s65, s50, s61\ns_add_u32 s64, s62, {32*DM*2}")
        a(f"s_mov_b32 m0, s51\ns_add_u32 s51, s51, 6144\nbuffer_load_dwordx4 v3, s[20:23], s62 offen lds")
        a(f"s_mov_b32 m0, s52\ns_add_u32 s52, s52, 12288\nbuffer_load_dwordx4 v6, s[20:23], s65 offen lds")
        a(f"s_mov_b32 m0, s51\ns_add_u32 s51, s51, 6144\nbuffer_load_dwordx4 v3, s[20:23], s64 offen lds")
        a(f"s_add_u32 s61, s61, {64*DM*2}\ns_cmp_eq_u32 s61, {DM*DM*2}\ns_cselect_b32 s61, 0, s61")
    LA = OPT.get('k1_la', 3)
    for t in range(LA): wdma()
    lane_rc()
    a("s_lshl_b32 s66, s3, 11\ns_add_u32 s66, s66, s63\ns_lshr_b32 s67, s3, 1")
    xaddr(66); waddr(67)
    a("s_and_b32 s55, s3, 1\ns_mul_i32 s55, s55, 6144")
    for i in range(12): a(f"v_add_u32 v{AR+i}, s55, v{AR+i}")
    for r in range(4): a(f"v_mov_b32 v{ON+r}, {ONES}")
    XE = 56
    for p in range(10):
        if p < 9:
            a(f"s_waitcnt vmcnt({3*(min(p + LA, 9) - p - 1)}) lgkmcnt(0)\ns_barrier")
            b = (p % 2) * 20
            if p == 0: a(EP1)
            if p < 8:
                a(xrd(X0 + b, 2*p)); a(xrd(X0 + b + 4, 2*p + 1))
            if p == 7:
                a(xrd(XE, 16)); a(xrd(XE + 4, 17))
            for t in range(3):
                for x in wrd(X0 + b + 8 + 4*t, 2*p if p != 4 else 8, t): a(x)
        else:
            a("s_waitcnt lgkmcnt(0)")
        if p > 0:
            b = ((p - 1) % 2) * 20
            if p < 9:
                for x in stat_mfma(X0 + b, p == 1) + stat_mfma(X0 + b + 4, False): a(x)
            if p == 8:
                for x in stat_mfma(XE, False) + stat_mfma(XE + 4, False): a(x)
            for t in range(3):
                a(f"v_mfma_f32_16x16x32_bf16 {V4(CS+4*t)}, {V4(X0+b+8+4*t)}, {ONr}, {'0' if p == 1 else V4(CS+4*t)}")
            if p == 8: stats_out()
        if p + LA < 9: wdma()
    a(f"s_mul_i32 s54, s3, 192\ns_add_u32 s54, s54, {EX}\nv_lshlrev_b32 v7, 4, v2\nv_add_u32 v7, s54, v7\ns_nop 3")
    for t in range(3): a(f"ds_write_b128 v7, {V4(CS+4*t)} offset:{64*t}")
    a("s_waitcnt lgkmcnt(0)\ns_barrier\ns_branch K1_fin")
    a("K1_comp:")
    a("s_lshl_b32 s46, s44, 6\ns_lshl_b32 s47, s3, 4\ns_add_u32 s46, s46, s47")
    a(f"s_mul_i32 s47, s46, {DM*2}")
    a(f"v_xor_b32 v6, v4, v5\nv_mul_u32_u24 v3, {DM*2}, v4\nv_lshl_add_u32 v3, v6, 4, v3\nv_add_u32 v6, {8*DM*2 - 1024}, v3")
    a(f"s_lshl_b32 s61, s60, 7\ns_lshl_b32 s64, s3, 11\ns_add_u32 s64, s63, s64\ns_mov_b32 s66, s64")
    a(f"s_waitcnt lgkmcnt(0){EP0}")
    srd(a, 16, 4, 0, T*DM*2)
    def xdma():
        return ("s_mov_b32 m0, s64\ns_add_u32 s62, s47, s61\ns_add_u32 s64, s64, 8192\n"
                "buffer_load_dwordx4 v3, s[16:19], s62 offen lds\nbuffer_load_dwordx4 v6, s[16:19], s62 offen offset:1024 lds\n"
                f"s_add_u32 s61, s61, 128\ns_cmp_eq_u32 s61, {DM*2}\ns_cselect_b32 s61, 0, s61")
    XA = OPT.get("k1_xa", 4)
    for p in range(XA): a(xdma())
    st(0)
    lane_rc()
    a("s_cmp_ge_u32 s45, 6\ns_cbranch_scc1 K1_kvgemm")
    a("s_and_b32 s68, s3, 1\ns_lshl_b32 s66, s68, 12\ns_add_u32 s66, s66, s63\ns_lshr_b32 s67, s3, 1")
    xaddr(66); waddr(67)
    ws_srd(a, 32, "Q", 14)
    def frags(ks):
        b = X0 + (ks % 2) * 20
        L = [xrd(b, ks), xrd(b + 4, ks, 2048)]
        for t in range(3): L += wrd(b + 8 + 4*t, ks, t)
        return L
    nx = XA
    a(f"s_waitcnt vmcnt({2*XA-2})\ns_barrier")
    st(2)
    a(EP1)
    for x in frags(0): a(x)
    for ks in range(18):
        p = ks // 2
        if ks % 2 == 1 and ks < 17:
            a(f"s_waitcnt vmcnt({2*(nx - p - 2) if ks < 13 else 0})" + (" lgkmcnt(6)" if ks == 9 else "") + "\ns_barrier")
        b = X0 + (ks % 2) * 20
        nf = frags(ks + 1) if ks < 17 else []
        issued = 0
        for t in range(3):
            a(f"s_waitcnt lgkmcnt({4 - 2*t + issued})")
            for m in range(2):
                d = ACC + (t*2 + m) * 4
                a(f"v_mfma_f32_16x16x32_bf16 {V4(d)}, {V4(b+8+4*t)}, {V4(b+4*m)}, {'0' if ks == 0 else V4(d)}")
                for x in nf[:2]: a(x); issued += 1
                nf = nf[2:]
        if ks % 2 == 0 and nx < 9:
            a(xdma()); nx += 1
    st(3)
    a("v_lshlrev_b32 v3, 3, v0")
    a(f"s_lshl_b32 s48, s44, 1\ns_add_u32 s48, s48, s68\ns_mul_i32 s48, s48, {4*9216}")
    a("s_mul_i32 s49, s45, 6\ns_and_b32 s50, s45, 1\ns_lshl_b32 s51, s50, 1\ns_add_u32 s51, s51, s49\ns_lshl_b32 s50, s50, 2\ns_sub_u32 s52, s49, s50\ns_mul_i32 s69, s67, 3")
    a(f"s_mul_i32 s54, s67, 384\ns_add_u32 s54, s54, {EX}\nv_lshlrev_b32 v7, 4, v2\nv_add_u32 v7, s54, v7")
    a(f"s_lshl_b32 s54, s68, 8\ns_add_u32 s54, s54, {EX + 768}\nv_lshlrev_b32 v8, 3, v1\nv_add_u32 v8, s54, v8")
    a("s_barrier")
    a("ds_read_b64 v[12:13], v8\nds_read_b64 v[14:15], v8 offset:128")
    for i in range(6): a(f"ds_read_b128 {V4(CS+4*i)}, v7 offset:{64*i}")
    a(f"s_waitcnt lgkmcnt(0)\nv_mul_f32 v13, {f32bits(QSCALE)}, v13\nv_mul_f32 v15, {f32bits(QSCALE)}, v15")
    for t in range(3):
        a(f"s_add_u32 s53, s69, {t}\ns_cmp_lt_u32 s53, 4\ns_cselect_b32 s54, s51, s52\ns_add_u32 s53, s53, s54")
        a("s_mul_i32 s54, s53, 57\ns_lshr_b32 s54, s54, 9\ns_mul_i32 s54, s54, 4608\ns_lshl_b32 s53, s53, 9\ns_add_u32 s53, s53, s54\ns_add_u32 s53, s53, s48\ns_add_u32 s55, s53, 4608")
        for r in range(4): a(f"v_add_f32 v{CS+4*t+r}, v{CS+4*t+r}, v{CS+12+4*t+r}")
        for m in range(2):
            b = ACC + (t*2 + m) * 4
            for r in range(4): a(f"v_fmac_f32 v{b+r}, v{CS+4*t+r}, v{12+2*m}\nv_mul_f32 v{b+r}, v{b+r}, v{13+2*m}")
            a(f"v_cvt_pk_bf16_f32 v{b}, v{b}, v{b+1}\nv_cvt_pk_bf16_f32 v{b+1}, v{b+2}, v{b+3}")
            a(f"buffer_store_dwordx2 v[{b}:{b+1}], v3, s[32:35], s{53+2*m} offen{ST}")
    a("s_branch K1_fin")
    def kaddr():
        a(f"v_mul_u32_u24 v13, 36, v12\nv_lshl_add_u32 v13, v11, 3, v13\nv_and_b32 v14, 1, v10\nv_mul_u32_u24 v14, {KVI - 4}, v14\nv_add_u32 v{AR}, v13, v14")
        a(f"v_mul_u32_u24 v13, 36, v12\nv_add_u32 v{AR+1}, v13, v14")
    a("K1_kvload:")
    a(f"v_lshlrev_b32 v3, 4, v0\ns_and_b32 s48, s3, 1\ns_lshl_b32 s48, s48, 2\ns_mul_i32 s49, s3, {KVI}")
    a(f"s_waitcnt lgkmcnt(0){EP0}")
    a(f"s_cmp_lt_u32 s3, 2\ns_cselect_b32 s24, s8, s10\ns_cselect_b32 s25, s9, s11\ns_mov_b32 s26, {DM*DH*2}\ns_mov_b32 s27, 0x00020000")
    def kdma(i):
        if i % 4 == 0: a("s_mov_b32 m0, s49\ns_add_u32 s49, s49, 4096")
        a(f"buffer_load_dwordx4 v3, s[24:27], s48 offen offset:{(i%4)*1024} lds")
        if i % 4 == 3: a("s_add_u32 s48, s48, 4096")
    for i in range(21): kdma(i)
    lane_rc()
    a("s_lshl_b32 s66, s3, 11\ns_add_u32 s66, s66, s63")
    xaddr(66)
    for r in range(4): a(f"v_mov_b32 v{ON+r}, {ONES}")
    ws_srd(a, 40, "MEAN1", 14)
    a(f"s_lshl_b32 s46, s44, 2\ns_add_u32 s46, s46, s3")
    a("s_waitcnt vmcnt(0)\ns_barrier")
    for ks in range(8): a(xrd(X0 + 4*ks, ks))
    for ks in range(18):
        a(f"s_waitcnt lgkmcnt({min(7, 17 - ks)})")
        for x in stat_mfma(X0 + 4*ks, ks == 0): a(x)
        if ks + 8 < 18: a(xrd(X0 + 4*(ks + 8), ks + 8))
    a("s_nop 3")
    stats_out()
    a("s_waitcnt lgkmcnt(0)\ns_barrier")
    a("v_sub_f32 v9, 0, v4\nv_lshlrev_b32 v7, 2, v1\nv_lshl_add_u32 v7, v2, 20, v7\ns_lshl_b32 s49, s46, 6\nbuffer_store_dword v9, v7, s[40:43], s49 offen sc1")
    a("s_barrier\ns_branch K1_fin")
    a(f"K1_worp:\ns_waitcnt lgkmcnt(0){EP0}\nv_lshlrev_b32 v3, 4, v0")
    rp = Repack(a)
    a(rp.common())
    for rnd in range(2):
        a(f"s_lshl_b32 s47, s44, 2\ns_add_u32 s47, s47, s3\ns_add_u32 s47, s47, {128*rnd - 4 & 0xffffffff}")
        a(f"s_lshl_b32 s59, s3, 13\ns_sub_u32 s59, s59, {32768 - 4096 - 4096*rnd}\nv_add_u32 v{16+rnd}, s59, v3")
        a(rp.setup_wo(rnd, 12, 59))
        for n in range(8): a(rp.load(rnd, n))
    for rnd in range(2):
        a(f"s_waitcnt vmcnt({8 if rnd == 0 else 4})")
        for n in range(4):
            t = rp.store(rnd, n).split("\n")[:4]
            a("\n".join(t) + f"\nds_write_b128 v{240+rnd}, v[{196+4*(n%2)}:{199+4*(n%2)}] offset:{(n&1)*1024 + (n>>1)*16}")
        for n in range(4): a(f"ds_read_b128 v[{32+16*rnd+4*n}:{35+16*rnd+4*n}], v{16+rnd} offset:{1024*n}")
        for n in range(4): a(f"s_waitcnt lgkmcnt({3-n})\nbuffer_store_dwordx4 v[{32+16*rnd+4*n}:{35+16*rnd+4*n}], v3, s[60:63], s{82+4*rnd+(n>>1)} offen offset:{1024*(n&1)} sc1")
    a("s_branch K1_fin")
    a("K1_kvgemm:")
    a("s_cmp_eq_u32 s45, 7\ns_cbranch_scc1 K1_wbar")
    for p in range(XA, 9): a(xdma())
    xaddr(63); kaddr()
    a(f"s_cmp_ge_u32 s3, 2\ns_cselect_b64 vcc, -1, 0\ns_and_b32 s55, s3, 1\ns_mul_i32 s55, s55, {2*KVI}\ns_lshr_b32 s56, s3, 1\ns_lshl_b32 s56, s56, 5\ns_add_u32 s55, s55, s56")
    a(f"v_cndmask_b32 v{AR}, v{AR}, v{AR+1}, vcc\nv_add_u32 v{AR}, s55, v{AR}")
    for r in range(4): a(f"v_mov_b32 v{ON+r}, {ONES}")
    ws_srd(a, 36, "KV", 14)
    a(f"s_mul_i32 s48, s44, {PAIR}")
    def kread(ks):
        b = X0 + (ks % 3) * 20
        return [f"ds_read_b64_tr_b16 v[{b}:{b+1}], v{AR} offset:{ks*1152}", f"ds_read_b64_tr_b16 v[{b+2}:{b+3}], v{AR} offset:{ks*1152 + 144}"] + \
               [xrd(b + 4 + 4*m, ks, 2048*m) for m in range(4)]
    a("s_waitcnt vmcnt(0)\ns_barrier")
    st(22)
    for x in kread(0) + kread(1): a(x)
    a("s_bitcmp1_b32 s3, 0\ns_cbranch_scc1 K1_vform")
    for form in range(2):
        if form: a("K1_vform:")
        for ks in range(18):
            b = X0 + (ks % 3) * 20
            fill = kread(ks + 2) if ks < 16 else []
            a(f"s_waitcnt lgkmcnt({6 if ks < 17 else 0})")
            for m in range(5):
                d, o = (ACC + 4*m, V4(b + 4 + 4*m)) if m < 4 else (CS, ONr)
                A_, B_ = (V4(b), o) if form == 0 else (o, V4(b))
                a(f"v_mfma_f32_16x16x32_bf16 {V4(d)}, {A_}, {B_}, {'0' if ks == 0 else V4(d)}")
                n = 2 if m == 0 else 1
                for y in fill[:n]: a(y)
                fill = fill[n:]
        st(23)
        if form == 0:
            a(f"v_lshlrev_b32 v7, 3, v1\nv_add_u32 v7, {EX + 768}, v7")
            a("v_lshrrev_b32 v8, 1, v2\nv_lshlrev_b32 v8, 9, v8\nv_lshl_add_u32 v8, v1, 4, v8\nv_and_b32 v9, 1, v2\nv_lshl_add_u32 v8, v9, 3, v8\nv_lshlrev_b32 v9, 2, v1")
            a("s_barrier")
            for m in range(4): a(f"ds_read_b64 v[{216+2*m}:{217+2*m}], v7 offset:{128*m}")
            a("s_waitcnt lgkmcnt(0)")
            for m in range(4):
                b = ACC + 4*m
                for r in range(4): a(f"v_fmac_f32 v{b+r}, v{CS+r}, v{216+2*m}\nv_mul_f32 v{b+r}, v{b+r}, v{217+2*m}")
                a(f"v_cvt_pk_bf16_f32 v{b}, v{b}, v{b+1}\nv_cvt_pk_bf16_f32 v{b+1}, v{b+2}, v{b+3}")
            a("s_cmp_lg_u32 s3, 0\ns_cbranch_scc1 K1_k2p")
            for m in range(4): a(f"ds_write_b64 v8, v[{ACC+4*m}:{ACC+4*m+1}] offset:{(m>>1)*1024 + (m&1)*256}")
            a("s_branch K1_kvst\nK1_k2p:\ns_mov_b64 exec, 0xffff")
            for m in range(4): a(f"ds_write_b32 v9, v{ACC+4*m} offset:{2048 + 64*m}")
            a("s_mov_b64 exec, -1\ns_branch K1_kvst")
        else:
            a(f"v_lshlrev_b32 v7, 5, v2\nv_add_u32 v7, {EX + 768}, v7")
            a("v_and_b32 v8, 1, v2\nv_mul_u32_u24 v8, 19, v8\nv_add_u32 v8, v8, v1\nv_lshlrev_b32 v8, 4, v8\nv_lshrrev_b32 v10, 1, v2\nv_lshl_add_u32 v8, v10, 3, v8")
            a("s_lshr_b32 s56, s3, 1\ns_lshl_b32 s56, s56, 8\nv_add_u32 v8, s56, v8\nv_cmp_eq_u32 s[54:55], 2, v1\nv_cmp_gt_u32 s[58:59], 3, v1\ns_nop 1")
            a("s_cmp_eq_u32 s3, 3\ns_cselect_b64 s[54:55], s[54:55], 0\ns_cselect_b64 s[58:59], s[58:59], -1")
            a("s_barrier")
            for m in range(4): a(f"ds_read_b128 v[{216+8*m}:{219+8*m}], v7 offset:{128*m}\nds_read_b128 v[{220+8*m}:{223+8*m}], v7 offset:{128*m+16}")
            a("s_waitcnt lgkmcnt(0)")
            for m in range(4):
                b = ACC + 4*m
                for r in range(4): a(f"v_fmac_f32 v{b+r}, v{CS}, v{216+8*m+2*r}\nv_mul_f32 v{b+r}, v{b+r}, v{217+8*m+2*r}")
                a(f"v_cvt_pk_bf16_f32 v{b}, v{b}, v{b+1}\nv_cvt_pk_bf16_f32 v{b+1}, v{b+2}, v{b+3}")
                a(f"v_cndmask_b32 v{b}, v{b}, v{ON}, s[54:55]\nv_cndmask_b32 v{b+1}, v{b+1}, v{ON}, s[54:55]")
            a("s_mov_b64 exec, s[58:59]")
            for m in range(4): a(f"ds_write_b64 v8, v[{ACC+4*m}:{ACC+4*m+1}] offset:{2304 + 608*m}")
            a("s_mov_b64 exec, -1")
    a("K1_kvst:")
    a("s_lshl_b32 s49, s3, 10\nv_lshlrev_b32 v3, 4, v0\nv_add_u32 v3, s49, v3\ns_waitcnt lgkmcnt(0)\ns_barrier")
    a("ds_read_b128 v[16:19], v3\nds_read_b128 v[20:23], v3 offset:1024\ns_waitcnt lgkmcnt(1)\nbuffer_store_dwordx4 v[16:19], v3, s[36:39], s48 offen sc1")
    a("s_waitcnt lgkmcnt(0)\ns_cmp_lg_u32 s3, 3\ns_cbranch_scc1 K1_fin\ns_mov_b32 exec_hi, 0xff\nbuffer_store_dwordx4 v[20:23], v3, s[36:39], s48 offen offset:1024 sc1\ns_mov_b64 exec, -1")
    a("s_branch K1_fin")
    a("K1_wbar:")
    for p in range(XA, 9): a(xdma())
    srd(a, 24, 12, 0, DM*DM*2)
    a("s_cmp_lt_u32 s44, 18\ns_cselect_b32 s26, s26, 0")
    a("s_cmp_ge_u32 s44, 16\ns_cbranch_scc1 K1_wb_hi")
    a("s_mul_i32 s50, s44, 36\ns_lshr_b32 s51, s3, 1\ns_mul_i32 s51, s51, 18\ns_add_u32 s50, s50, s51\ns_and_b32 s51, s3, 1\ns_lshl_b32 s51, s51, 2\ns_add_u32 s50, s50, s51")
    a("v_lshrrev_b32 v13, 2, v4\nv_lshlrev_b32 v13, 3, v13\nv_and_b32 v14, 3, v4\nv_add_u32 v13, v13, v14")
    a("s_branch K1_wb_go")
    a("K1_wb_hi:")
    a("s_sub_u32 s50, s44, 16\ns_mul_i32 s50, s50, 288\ns_mul_i32 s51, s3, 72\ns_add_u32 s50, s50, s51\ns_add_u32 s50, s50, 16")
    a("v_lshrrev_b32 v13, 1, v4\nv_mul_u32_u24 v13, 18, v13\nv_and_b32 v14, 1, v4\nv_add_u32 v13, v13, v14")
    a("K1_wb_go:")
    a(f"s_mul_i32 s50, s50, {DM*2}\nv_mul_u32_u24 v13, {DM*2}, v13\nv_lshl_add_u32 v13, v5, 4, v13")
    for i in range(9):
        a(f"buffer_load_dwordx4 v[{100+4*i}:{103+4*i}], v13, s[24:27], s50 offen offset:{128*i}")
    xaddr(66)
    ws_srd(a, 68, "XC", 14)
    ws_srd(a, 20, "WBAR", 14)
    a(f"v_lshlrev_b32 v3, 4, v0\ns_lshr_b32 s48, s46, 4\ns_mul_i32 s48, s48, 18432\ns_waitcnt vmcnt(9)")
    for ks in range(18): a(xrd(X0 + 4*ks, ks))
    a("s_waitcnt vmcnt(0)\ns_cmp_ge_u32 s44, 18\ns_cbranch_scc1 K1_xc")
    a(f"s_mov_b32 s56, {ONES}\nv_mov_b32 v6, 0\nv_mov_b32 v7, 0")
    for i in range(36):
        a(f"v_dot2_f32_bf16 v{6+i%2}, v{100+i}, s56, v{6+i%2}")
    a("s_nop 2\nv_add_f32 v6, v6, v7\ns_nop 1")
    for x in (1, 2, 4):
        a(f"ds_swizzle_b32 v7, v6 offset:{(x << 10) | 0x1f}\ns_waitcnt lgkmcnt(0)\nv_add_f32 v6, v6, v7")
    a(f"v_mul_f32 v6, {f32bits(1.0/DM)}, v6")
    a("v_cvt_pk_bf16_f32 v7, v6, v6\nv_lshlrev_b32 v8, 16, v7\nv_sub_f32 v8, v6, v8\nv_cvt_pk_bf16_f32 v8, v8, v8")
    a(f"s_lshl_b32 s47, s3, 8\nv_lshlrev_b32 v9, 5, v5\nv_lshl_add_u32 v9, v4, 1, v9\nv_add_u32 v9, s47, v9\nds_write_b16 v9, v7\nds_write_b16 v9, v8 offset:16")
    a("v_lshlrev_b32 v9, 2, v0\nv_add_u32 v10, s47, v9\nds_read_b32 v7, v10\ns_lshl_b32 s50, s44, 10\ns_add_u32 s50, s50, s47\ns_add_u32 s51, s50, 18432\ns_waitcnt lgkmcnt(0)")
    a("buffer_store_dword v7, v9, s[20:23], s50 offen sc1\nbuffer_store_dword v7, v9, s[20:23], s51 offen sc1")
    a("K1_xc:\ns_waitcnt lgkmcnt(0)")
    for ks in range(18):
        if ks and ks % 4 == 0: a("s_add_u32 s48, s48, 4096")
        a(f"buffer_store_dwordx4 {V4(X0+4*ks)}, v3, s[68:71], s48 offen offset:{(ks%4)*1024}{ST}")
    a("K1_fin:")

K2_GRID = 256
K2_LDS = 32 * PAIR + 9216
def k2(a, st, force_fallback=False):
    FB = WS["FLAG"][0]
    a(f"s_mov_b32 s3, s{SW}\ns_waitcnt lgkmcnt(0)")
    ws_srd(a, 36, "FLAG", 14)
    a(f"s_mul_i32 s{SE}, s{SE}, 0x9e3779b1\ns_add_u32 s{SE}, s{SE}, 0x7f4a7c15\nv_mov_b32 v4, s{SE}\nv_mov_b32 v5, 0\ns_lshl_b32 s45, s90, 7\ns_add_u32 s45, s45, {FL_AF}")
    st(19)
    a("s_waitcnt vmcnt(0)\ns_barrier")
    a("s_cmp_lg_u32 s3, 0\ns_cbranch_scc1 K2_naf\ns_mov_b64 exec, 1\nbuffer_store_dword v4, v5, s[36:39], s45 offen sc1\ns_mov_b64 exec, -1\nK2_naf:")
    a(f"s_setprio 0\ns_load_dwordx2 s[4:5], s[0:1], {K_OUT}\ns_load_dwordx4 s[8:11], s[0:1], {B_W1}")
    a("v_and_b32 v1, 31, v0\nv_lshrrev_b32 v2, 5, v0\nv_lshlrev_b32 v3, 4, v0")
    st(17)
    a("s_lshr_b32 s40, s2, 2\ns_and_b32 s41, s2, 3\ns_lshl_b32 s41, s41, 3\ns_add_u32 s41, s41, s3")
    a(f"s_mul_i32 s42, s2, 9216\ns_lshl_b32 s43, s3, 10\ns_add_u32 s42, s42, s43\ns_add_u32 s43, s43, {32*PAIR}")
    a("s_lshl_b32 s44, s3, 10")
    ws_srd(a, 16, "KV", 14)
    ws_srd(a, 20, "Q", 14)
    Q1, Q2 = 8, 12
    def dma(r):
        txt = f"s_mov_b32 m0, s44\ns_nop 0\nbuffer_load_dwordx4 v3, s[16:19], s44 offen sc1 lds\ns_add_u32 s44, s44, 8192"
        if r == 18:
            L = a.label("dm")
            txt = f"s_cmp_ge_u32 s3, 4\ns_cbranch_scc1 {L}\n{txt}\n{L}:"
        return txt
    a("s_and_b32 s45, s2, 3\ns_mul_i32 s45, s45, 3\ns_lshr_b32 s45, s45, 1\ns_lshl_b32 s45, s45, 5\ns_lshr_b32 s46, s2, 3\ns_add_u32 s45, s45, s46")
    a("v_add_u32 v30, 192, v0\nv_lshlrev_b32 v31, 5, v1\nv_add_u32 v31, s45, v31\nv_cmp_gt_u32 vcc, 32, v0\ns_nop 1\nv_cndmask_b32 v30, v31, v30, vcc\nv_lshlrev_b32 v30, 7, v30")
    a(f"s_mov_b32 s45, {FL_AF}")
    if OPT.get("a_one", True):
        a("s_cmp_lg_u32 s3, 1\ns_cbranch_scc1 K2_np")
        poll(a, 34, 30, 36, 45, 31, OPT.get("a_slp", 2))
        a("K2_np:\ns_barrier")
    else:
        poll(a, 34, 30, 36, 45, 31, OPT.get("a_slp", 2))
    st(18)
    a("s_cmp_lg_u32 s3, 0\ns_cbranch_scc1 K2_q1")
    a(f"s_mov_b32 m0, {32*PAIR + 8192}\ns_add_u32 s45, s42, 8192\nbuffer_load_dwordx4 v3, s[20:23], s45 offen sc1 lds")
    a("K2_q1:")
    a("s_mov_b32 m0, s43\ns_nop 0\nbuffer_load_dwordx4 v3, s[20:23], s42 offen sc1 lds")
    a(dma(0)); a(dma(1)); a(dma(2))
    a(f"v_mov_b32 v{Q2+1}, 0")
    ws_srd(a, 24, "O", 14)
    a(f"v_lshrrev_b32 v4, 4, v1\nv_mul_u32_u24 v4, 4608, v4\nv_and_b32 v5, 15, v1\nv_lshl_add_u32 v4, v5, 3, v4\nv_add_u32 v4, {32*PAIR}, v4")
    a("s_mul_i32 s45, s3, 9\nv_lshlrev_b32 v5, 2, v2\nv_add_u32 v5, s45, v5")
    for i in range(5):
        if i < 4: a(f"v_add_u32 v30, {i}, v5")
        else: a("s_add_u32 s45, s45, 8\nv_mov_b32 v30, s45")
        a(f"v_lshrrev_b32 v31, 1, v30\nv_lshl_add_u32 v31, v31, 7, v4\nv_and_b32 v30, 1, v30\nv_lshl_add_u32 v{25+i}, v30, 2, v31")
    SEG = 13
    VKA, VK2, VVA = 14, 17, 20
    a(f"v_mul_u32_u24 v23, 19, v2\nv_add_u32 v23, v23, v1\nv_lshlrev_b32 v23, 4, v23\nv_mov_b32 v24, 0x40000\nv_cmp_gt_u32 vcc, 19, v1\ns_nop 1\nv_cndmask_b32 v{VVA}, v24, v23, vcc")
    a(f"v_mov_b32 v{VKA}, v3\nv_lshlrev_b32 v{VK2}, 2, v0")
    for b in (VKA, VK2, VVA):
        a(f"v_add_u32 v{b+1}, {SEG*PAIR}, v{b}\nv_add_u32 v{b+2}, {2*SEG*PAIR}, v{b}")
    SA, SB, P, O, NM = 32, 64, 96, 112, 128
    KF, K2F, VF = 144, 160, 164
    FOLD = OPT.get("fold", True)
    a(f"v_mov_b32 v{K2F+1}, {ONES if FOLD else 0}\nv_mov_b32 v{K2F+3}, {ONES if FOLD else 0}")
    for r in range(16): a(f"v_mov_b32 v{O+r}, 0")
    rp = Repack(a)
    def w3(txt):
        L = a.label("w3")
        return (f"s_cmp_lt_u32 s3, 5" if OPT.get("w3hi", True) else f"s_cmp_ge_u32 s3, 3") + f"\ns_cbranch_scc1 {L}\n{txt}\n{L}:"
    def seg(p): return p // SEG, (p % SEG) * PAIR
    def rdK(i, p):
        sg, o = seg(p)
        return [f"ds_read_b128 v[{KF+8*i}:{KF+8*i+3}], v{VKA+sg} offset:{o}",
                f"ds_read_b128 v[{KF+8*i+4}:{KF+8*i+7}], v{VKA+sg} offset:{o+1024}",
                f"ds_read_b32 v{K2F+2*i}, v{VK2+sg} offset:{o+2048}"]
    def rdV(i, p):
        sg, o = seg(p)
        return [f"ds_read_b128 v[{VF+16*i+4*q}:{VF+16*i+4*q+3}], v{VVA+sg} offset:{o+2304+608*q}" for q in range(4)]
    def qk(S, i, c):
        return [f"v_mfma_f32_32x32x16_bf16 v[{S}:{S+15}], v[{KF+8*i}:{KF+8*i+3}], v[{Q1}:{Q1+3}], {c}",
                f"v_mfma_f32_32x32x16_bf16 v[{S+16}:{S+31}], v[{KF+8*i+4}:{KF+8*i+7}], v[{Q1}:{Q1+3}], {c}",
                f"v_mfma_f32_32x32x4_2b_bf16 v[{S}:{S+31}], v[{K2F+2*i}:{K2F+2*i+1}], v[{Q2}:{Q2+1}], v[{S}:{S+31}]"]
    def pvm(vs_, u):
        return f"v_mfma_f32_32x32x16_bf16 v[{O}:{O+15}], v[{VF+16*vs_+4*u}:{VF+16*vs_+4*u+3}], v[{P+4*u}:{P+4*u+3}], v[{O}:{O+15}]"
    def rowmax(S, dst, first):
        L = []; r = 0
        if first:
            L.append(f"v_max_f32 v{dst}, v{S}, v{S+1}"); r = 2
        while r < 32:
            L.append(f"v_max3_f32 v{dst}, v{S+r}, v{S+r+1}, v{dst}"); r += 2
        return L
    def set_nm(src):
        a(f"v_mov_b32 v25, v{src}\ns_nop 1\nv_permlane32_swap_b32 v{src}, v25\ns_nop 1\nv_max_f32 v{src}, v{src}, v25")
        for r in range(16): a(f"v_sub_f32 v{NM+r}, 0, v{src}")
    def E(cur, g):
        b = cur + 4 * g
        return [f"v_exp_f32 v{b+r}, v{b+r}" for r in range(4)] + \
               [f"v_cvt_pk_bf16_f32 v{P+2*g}, v{b}, v{b+1}", f"v_cvt_pk_bf16_f32 v{P+2*g+1}, v{b+2}, v{b+3}"]
    NMr = f"v[{NM}:{NM+15}]"
    nt_ = " nt" if OPT["k2_nt"] else ""
    def uidx(rnd):
        t = ("" if rnd else ffn_map(34, 35)) + f"s_mov_b32 s45, s34\ns_mul_i32 s47, s35, 11\ns_add_u32 s47, s47, s3\n"
        if rnd: t += "s_add_u32 s47, s47, 3\ns_cmp_lt_u32 s3, 5\ns_cselect_b32 s47, 400, s47\n"
        return t
    a("s_waitcnt lgkmcnt(0)")
    RPS = [rp.common() + "\n" + uidx(0) + rp.setup_ffn(0, 8, 10), uidx(1) + rp.setup_ffn(1, 8, 10)]
    if OPT.get("rps", 1) == 0: a(RPS[0]); a(RPS[1])
    if OPT["prio"]: a("s_setprio 1")
    st(0)
    a("s_waitcnt vmcnt(2)\ns_barrier")
    st(1)
    for i in range(5): a(f"ds_read_b32 v{Q1+i}, v{25+i}")
    for x in rdK(0, 0) + rdK(1, 1) + rdV(0, 0): a(x)
    a("s_waitcnt lgkmcnt(7)")
    q = qk(SA, 0, "0")
    a(q[0]); a(q[1]); a("s_nop 9"); a(q[2]); a("s_nop 15\ns_nop 3")
    for x in rowmax(SA, 24, True): a(x)
    if force_fallback:
        a(f"v_add_f32 v24, {f32bits(-100.0)}, v24")
    if FOLD:
        a("v_mov_b32 v25, v24\ns_nop 1\nv_permlane32_swap_b32 v24, v25\ns_nop 1\nv_max_f32 v24, v24, v25")
        a(f"v_cvt_pk_bf16_f32 v25, -v24, -v24\nv_mov_b32 v{NM}, 0\nv_lshlrev_b32 v26, 16, v25\nv_sub_f32 v26, -v24, v26\nv_cvt_pk_bf16_f32 v{Q2+1}, -v24, v26\nv_cvt_pk_bf16_f32 v{NM+1}, -v24, v26\ns_nop 1")
        a(f"v_mfma_f32_32x32x4_2b_bf16 v[{SA}:{SA+31}], v[{K2F}:{K2F+1}], v[{NM}:{NM+1}], v[{SA}:{SA+31}]\ns_nop 15\ns_nop 1")
    else:
        set_nm(24)
        for r in range(32): a(f"v_add_f32 v{SA+r}, v{SA+r}, v{NM}")
    st(2)
    extra = {i: [] for i in range(32)}
    pre = {i: [] for i in range(32)}
    r = 3
    for i in range(8):
        extra[i] += [dma(r), dma(r + 1)]; r += 2
    pre[0].append("s_waitcnt vmcnt(0)\ns_barrier"); pre[3].append("s_waitcnt vmcnt(2)\ns_barrier"); pre[9].append(f"v_mov_b32 v196, 0\nv_mov_b32 v197, 0\nv_mov_b32 v198, 0\nv_mov_b32 v199, 0\nv_mov_b32 v200, {ffn.CNT}\nds_write_b128 v200, v[196:199]\nds_write_b128 v200, v[196:199] offset:16\nds_write_b128 v200, v[196:199] offset:32\ns_waitcnt vmcnt(0) lgkmcnt(0)\ns_barrier")
    for n in range(8):
        if OPT.get("rp1", False):
            extra[9 + n].append(rp.load(0, n, nt_)); extra[9 + n].append(w3(rp.load(1, n, nt_)))
        else:
            extra[9 + n // 2].append(rp.load(0, n, nt_))
            extra[13 + n // 2].append(w3(rp.load(1, n, nt_)))
    if OPT.get("rps", 1) == 1: pre[6].append(RPS[0]); pre[7].append(RPS[1])
    ST0 = OPT.get("k2_st0", 21)
    pre[ST0].append("s_waitcnt vmcnt(0)")
    for n in range(4):
        extra[ST0 + n // 2].append(rp.store(0, n, " sc1"))
        extra[ST0 + 2 + n // 2].append(w3(rp.store(1, n, " sc1")))
    pre[ST0 + 7].append("s_waitcnt vmcnt(0)")
    extra[ST0 + 7].append(f"s_lshl_b32 s45, s34, 8\ns_lshl_b32 s46, s35, 3\ns_add_u32 s45, s45, s46\ns_add_u32 s45, s45, s3\ns_lshl_b32 s45, s45, 2\ns_add_u32 s45, s45, {FL_RF}\n"
                          f"v_mov_b32 v206, s{SE}\nv_mov_b32 v207, 0\ns_mov_b64 exec, 1\nbuffer_store_dword v206, v207, s[36:39], s45 offen sc1\ns_mov_b64 exec, -1")
    if OPT.get("k2_touch", True):
        extra[ST0 + 7].append(rp.touch(0)); extra[ST0 + 8].append(w3(rp.touch(1)))
    extra[8].append(f"s_mov_b32 s45, {FL_AF + 224*128}\nv_lshlrev_b32 v206, 7, v1\nbuffer_load_dword v205, v206, s[36:39], s45 offen sc1")
    tmp = Asm(); tmp.uid = 9000
    poll(tmp, 32, 206, 36, 45, 205, 2, first_loaded=True)
    pre[9].append(tmp.text())
    EW = OPT.get("wo_early", 10)
    if EW:
        wo0, wosz = WS["WOF"]
        pre[22].append(f"s_lshr_b32 s77, s2, 5\ns_add_u32 s20, s14, {wo0}\ns_addc_u32 s21, s15, 0\ns_mov_b32 s22, {wosz}\ns_mov_b32 s23, 0x00020000\n"
                       f"s_lshl_b32 s32, s3, 10\ns_mul_i32 s33, s77, {108*1024}\ns_add_u32 s33, s33, s32\ns_waitcnt lgkmcnt(0)\ns_barrier")
        nb_ = 0
        for i in list(range(25, 32)) + list(range(22, 32)):
            if nb_ < EW and len(extra[i]) < 2:
                extra[i].append("s_mov_b32 m0, s32\ns_add_u32 s32, s32, 8192\nbuffer_load_dwordx4 v3, s[20:23], s33 offen lds\ns_add_u32 s33, s33, 8192"); nb_ += 1
        assert nb_ == EW
    if OPT.get("wo_touch", True):
        L = a.label("wt")
        wb0 = WS["WBAR"][0]; wsz = WS["WOF"][0] + WS["WOF"][1] - wb0
        extra[19].append(f"s_sub_u32 s56, s3, 3\ns_cmp_ge_u32 s56, 3\ns_cbranch_scc1 {L}\ns_lshr_b32 s57, s2, 3\ns_mul_i32 s57, s57, 3\ns_add_u32 s56, s56, s57\ns_lshl_b32 s56, s56, 13\n"
                         f"s_add_u32 s28, s14, {wb0}\ns_addc_u32 s29, s15, 0\ns_mov_b32 s30, {wsz}\ns_mov_b32 s31, 0x00020000\nv_lshlrev_b32 v206, 7, v0\nbuffer_load_dword v205, v206, s[28:31], s56 offen\n{L}:")
    if OPT["codepf"]:
        L = a.label("cp")
        extra[18].append(f"s_lshr_b32 s56, s2, 3\ns_cmp_ge_u32 s56, CODE_PF_N\ns_cbranch_scc1 {L}\ns_cmp_lg_u32 s3, 0\ns_cbranch_scc1 {L}\n"
                         f"s_getpc_b64 s[58:59]\n{L}_pc:\ns_add_u32 s58, s58, K2_out-{L}_pc\ns_addc_u32 s59, s59, 0\n"
                         f"s_lshl_b32 s56, s56, 13\nv_lshlrev_b32 v206, 7, v0\nv_add_u32 v206, s56, v206\nv_min_u32 v206, CODE_END-K2_out-4, v206\nglobal_load_dword v205, v206, s[58:59]\n{L}:")
    for i in range(32):
        cur, nxt = (SA, SB) if i % 2 == 0 else (SB, SA)
        q = qk(nxt, (i + 1) % 2, "0" if FOLD else NMr) if i < 31 else ["", "", ""]
        vs_ = i % 2
        kr = rdK(i % 2, i + 2) if i + 2 < 32 else ["", "", ""]
        vrd = rdV((i + 1) % 2, i + 1) if i < 31 else [""] * 4
        e = [E(cur, g) for g in range(8)]
        ex = extra[i] + ["", ""]
        seq = list(pre[i])
        PP = OPT.get("pp", 4)
        if OPT["prio"] and i % PP in (0, OPT["prio"]):
            L = a.label("pr")
            seq.append(f"s_cmp_lt_u32 s3, 4\ns_cbranch_scc1 {L}\ns_setprio {2 if i % PP == 0 else 0}\n{L}:")
        seq += ["s_waitcnt lgkmcnt(0)", q[0]] + kr[0:2] + e[0]
        seq += [pvm(1 - vs_, 3) if i > 0 else ""] + kr[2:3] + vrd[0:1] + e[1]
        seq += [q[1]] + vrd[1:3] + e[2]
        seq += [pvm(vs_, 0)] + vrd[3:4] + e[3]
        seq += [q[2], ex[0]] + e[4] + e[5][:3]
        seq += [pvm(vs_, 1), ex[1]] + e[5][3:] + e[6][:2]
        seq += [pvm(vs_, 2)] + e[6][2:] + e[7]
        for x in seq:
            if x: a(x)
        if i % 8 == 7: st(3 + i // 8)
    a("s_nop 1"); a(pvm(1, 3))
    a("s_setprio 0\ns_nop 15")
    def bcast_l():
        a(f"v_mov_b32 v25, v{O+10}\nv_mov_b32 v26, v{O+10}\ns_nop 1\nv_permlane32_swap_b32 v25, v26\ns_nop 1")
    bcast_l()
    a(f"v_mov_b32 v26, {f32bits(2.0**60)}\nv_cmp_nle_f32 vcc, v25, v26\nv_mov_b32 v26, {f32bits(2.0**-60)}\nv_cmp_lt_f32 s[52:53], v25, v26\ns_nop 4\ns_or_b64 vcc, vcc, s[52:53]\ns_cbranch_scc0 K2_out")
    a(f"v_mov_b32 v24, 0xff800000\nv_mov_b32 v{Q2+1}, 0")
    for ps in range(2):
        a(f"s_mov_b32 s52, 0\nv_mov_b32 v27, v{VKA}\nv_mov_b32 v28, v{VK2}\nv_mov_b32 v29, v{VVA}")
        a(f"K2_fb{ps}:")
        a(f"buffer_load_dwordx4 v[{KF}:{KF+3}], v27, s[16:19], 0 offen\nbuffer_load_dwordx4 v[{KF+4}:{KF+7}], v27, s[16:19], 0 offen offset:1024\nbuffer_load_dword v{K2F}, v28, s[16:19], 0 offen offset:2048")
        if ps:
            a("s_movk_i32 s53, 2304")
            for u in range(4): a(f"buffer_load_dwordx4 v[{VF+4*u}:{VF+4*u+3}], v29, s[16:19], s53 offen offset:{608*u}")
        a("s_waitcnt vmcnt(0)")
        q = qk(SA, 0, NMr if ps else "0")
        a(q[0]); a(q[1]); a("s_nop 9"); a(q[2]); a("s_nop 15\ns_nop 3")
        if ps == 0:
            for x in rowmax(SA, 24, False): a(x)
        else:
            for g in range(8):
                for x in E(SA, g): a(x)
            a("s_nop 1")
            for u in range(4): a(pvm(0, u))
        a(f"v_add_u32 v27, {PAIR}, v27\nv_add_u32 v28, {PAIR}, v28\nv_add_u32 v29, {PAIR}, v29")
        a(f"s_add_u32 s52, s52, 1\ns_cmp_lt_u32 s52, 32\ns_cbranch_scc1 K2_fb{ps}")
        if ps == 0:
            set_nm(24)
            for r in range(16): a(f"v_mov_b32 v{O+r}, 0")
    a("s_nop 15")
    bcast_l()
    a("K2_out:")
    WR, XR, ACC, XRES = 12, 40, 112, 140
    a("s_lshr_b32 s77, s2, 5\ns_and_b32 s78, s2, 7\ns_lshl_b32 s78, s78, 2\ns_bfe_u32 s43, s2, 0x20003\ns_add_u32 s78, s78, s43")
    a("s_cmp_ge_u32 s3, 4\ns_cbranch_scc1 K2_noearly")
    a("s_lshl_b32 s46, s78, 2\ns_add_u32 s46, s46, s3")
    ws_srd(a, 48, "MEAN1", 14)
    ws_srd(a, 52, "XC", 14)
    a(f"s_mul_i32 s47, s77, 3072\ns_mul_i32 s30, s46, 18432\ns_add_u32 s47, s47, s30")
    for u in range(3):
        a(f"buffer_load_dwordx4 v[{XRES+4*u}:{XRES+4*u+3}], v3, s[52:55], s47 offen offset:{1024*u} sc1")
    a(f"v_and_b32 v166, 15, v0\nv_lshlrev_b32 v166, 2, v166\ns_lshl_b32 s65, s46, 6\nbuffer_load_dword v165, v166, s[48:51], s65 offen sc1")
    a("K2_noearly:")
    a(f"s_lshl_b32 s43, s34, 10\ns_add_u32 s43, s43, {FL_RF}\nbuffer_load_dwordx4 v[160:163], v3, s[36:39], s43 offen sc1")
    a(f"v_rcp_f32 v25, v25\ns_nop 0")
    for r in range(10): a(f"v_mul_f32 v{O+r}, v{O+r}, v25")
    for r in range(5): a(f"v_cvt_pk_bf16_f32 v{P+r}, v{O+2*r}, v{O+2*r+1}")
    a(f"v_lshrrev_b32 v26, 4, v1\nv_mul_u32_u24 v27, {18*1024}, v26\nv_and_b32 v28, 15, v1\nv_lshl_add_u32 v27, v28, 4, v27\nv_lshl_add_u32 v27, v2, 8, v27")
    a(f"s_mul_i32 s42, s40, {36*1024}\ns_lshl_b32 s43, s41, 9\ns_add_u32 s43, s43, s42")
    a(f"buffer_store_dwordx4 v[{P}:{P+3}], v27, s[24:27], s43 offen sc1")
    OSC = 32 * PAIR + 1024
    a(f"s_lshr_b32 s43, s3, 2\ns_lshl_b32 s43, s43, 8\ns_and_b32 s44, s3, 3\ns_lshl_b32 s44, s44, 2\ns_add_u32 s43, s43, s44\ns_add_u32 s43, s43, {OSC}")
    a(f"v_lshlrev_b32 v26, 9, v26\nv_lshl_add_u32 v26, v28, 4, v26\nv_add_u32 v26, s43, v26\ns_mov_b64 exec, 0xffffffff\nds_write_b32 v26, v{P+4}\ns_mov_b64 exec, -1")
    a(f"v_mov_b32 v172, {ffn.CNT}\nv_mov_b32 v8, 1\nv_mov_b32 v9, 0\nv_mov_b32 v174, s{SE}\ns_lshl_b32 s79, s2, 7\ns_add_u32 s79, s79, {FL_OF}")
    a(f"v_add_u32 v4, {OSC}, v3\nv_mul_u32_u24 v5, {18*1024}, v2\nv_lshl_add_u32 v5, v1, 4, v5")
    a("s_and_b32 s43, s2, 3\ns_lshl_b32 s43, s43, 9\ns_add_u32 s43, s43, s42\ns_add_u32 s43, s43, 16384")
    a("s_waitcnt lgkmcnt(0)\ns_barrier")
    st(7)
    a("s_cmp_lg_u32 s3, 0\ns_cbranch_scc1 K3_norem")
    a("ds_read_b128 v[12:15], v4\ns_waitcnt lgkmcnt(0)\nbuffer_store_dwordx4 v[12:15], v5, s[24:27], s43 offen sc1")
    a("K3_norem:")
    a("v_lshlrev_b32 v2, 4, v0\ns_mov_b32 s40, s77\ns_mov_b32 s41, s78")
    a("s_waitcnt vmcnt(0)\ns_mov_b64 exec, 1\nds_add_rtn_u32 v168, v172, v8 offset:36\ns_waitcnt lgkmcnt(0)\nv_readfirstlane_b32 s70, v168\ns_cmp_lg_u32 s70, 7\ns_cbranch_scc1 K3_nofl")
    a("buffer_store_dword v174, v9, s[36:39], s79 offen sc1\nK3_nofl:\ns_mov_b64 exec, -1")
    a("s_cmp_ge_u32 s3, 4\ns_cbranch_scc1 K3_loader")
    a("v_add_u32 v3, 0x10000, v2\nv_add_u32 v4, 0x20000, v2\nv_and_b32 v5, 15, v0\nv_lshrrev_b32 v6, 4, v0\nv_lshlrev_b32 v7, 7, v0")
    a("v_lshlrev_b32 v11, 2, v5\nv_mov_b32 v10, v165")
    st(8)
    a("s_cmp_ge_u32 s40, 6\ns_cbranch_scc1 K4_compute")
    a(f"s_lshl_b32 s43, s41, 3\ns_lshr_b32 s44, s3, 1\ns_lshl_b32 s44, s44, 2\ns_add_u32 s43, s43, s44\ns_lshl_b32 s43, s43, 7\ns_add_u32 s43, s43, {FL_OF}")
    ws_srd(a, 52, "HC", 14)
    ws_srd(a, 56, "MU2", 14)
    ws_srd(a, 60, "SS", 14)
    a("s_barrier")
    st(13)
    for j in range(7):
        off = j * 1024 if j < 6 else 108 * 1024
        a(f"ds_read_b128 v[{12+4*j}:{15+4*j}], v{2 + off // 65536} offset:{off % 65536}")
    poll(a, 4, 7, 36, 43, 164, 1)
    st(9)
    a("s_mul_i32 s44, s40, 3072")
    def oload(ks):
        t = ""
        if ks % 3 == 0:
            t = "s_add_u32 s45, s30, s44\ns_add_u32 s44, s44, 3072\ns_cmp_eq_u32 s44, 18432\ns_cselect_b32 s44, 0, s44\n"
        return t + f"buffer_load_dwordx4 v[{XR+4*ks}:{XR+4*ks+3}], v2, s[24:27], s45 offen offset:{(ks%3)*1024} sc1"
    OD = OPT.get("k3_od", 6)
    for ks in range(OD): a(oload(ks))
    st(10)
    def wread(ks, j):
        off = (ks * 6 + j) * 1024 if j < 6 else (108 + ks) * 1024
        return f"ds_read_b128 v[{WR+4*j}:{WR+4*j+3}], v{2 + off // 65536} offset:{off % 65536}"
    nl = OD
    for ks in range(18):
        for j in range(7):
            a((f"s_waitcnt vmcnt({nl-1-ks}) " if j == 0 else "s_waitcnt ") + f"lgkmcnt({6 if ks < 17 else 6-j})")
            c = "0" if ks == 0 else f"v[{ACC+4*j}:{ACC+4*j+3}]"
            a(f"v_mfma_f32_16x16x32_bf16 v[{ACC+4*j}:{ACC+4*j+3}], v[{WR+4*j}:{WR+4*j+3}], v[{XR+4*ks}:{XR+4*ks+3}], {c}")
            if ks < 17: a(wread(ks + 1, j))
            if j in (1, 4) and nl < 18:
                a(oload(nl)); nl += 1
    a("s_barrier")
    st(11)
    e = ACC + 24
    a(f"s_nop 6\nv_add_f32 v10, v10, v{e}\nv_add_f32 v10, v10, v{e+1}\nv_mov_b32 v14, 0")
    for u in range(3):
        for r in range(4):
            x = XRES + 4 * u + r
            lo, hi = ACC + 8 * u + r, ACC + 8 * u + 4 + r
            a(f"v_lshlrev_b32 v12, 16, v{x}\nv_and_b32 v13, 0xffff0000, v{x}")
            a(f"v_add_f32 v{lo}, v{lo}, v12\nv_add_f32 v{hi}, v{hi}, v13")
            a(f"v_sub_f32 v{lo}, v{lo}, v10\nv_sub_f32 v{hi}, v{hi}, v10")
            a(f"v_cvt_pk_bf16_f32 v{XR+4*u+r}, v{lo}, v{hi}")
        a(f"buffer_store_dwordx4 v[{XR+4*u}:{XR+4*u+3}], v2, s[52:55], s47 offen offset:{1024*u} sc1")
    for i in range(12): a(f"v_dot2_f32_bf16 v14, v{XR+i}, v{XR+i}, v14")
    a("s_nop 2")
    sum_g(a, 14, 12)
    a("s_lshl_b32 s43, s41, 3\ns_add_u32 s43, s43, s40\ns_lshl_b32 s43, s43, 8\ns_lshl_b32 s44, s3, 6\ns_add_u32 s43, s43, s44\ns_mov_b64 exec, 0xffff")
    a("buffer_store_dword v14, v11, s[60:63], s43 offen sc1")
    a("s_cmp_lg_u32 s40, 0\ns_cbranch_scc1 K3_nomu\nbuffer_store_dword v10, v11, s[56:59], s65 offen sc1\nK3_nomu:")
    a(f"s_lshl_b32 s43, s46, 3\ns_add_u32 s43, s43, s40\ns_lshl_b32 s43, s43, 7\ns_add_u32 s43, s43, {FL_HF}")
    a("s_waitcnt vmcnt(0)\ns_mov_b64 exec, 1\nbuffer_store_dword v174, v9, s[36:39], s43 offen sc1\ns_mov_b64 exec, -1")
    st(12)
    a("s_branch K4_compute")
    a("K3_loader:")
    a(f"v_mov_b32 v4, {ffn.CNT}")
    a("s_sub_u32 s33, s3, 4\ns_cmp_ge_u32 s40, 6\ns_cbranch_scc1 K3_pf")
    ws_srd(a, 20, "WOF", 14)
    ws_srd(a, 68, "WBAR", 14)
    a(f"s_lshl_b32 s76, s33, 10\ns_mul_i32 s75, s40, {108*1024}\ns_add_u32 s74, s76, {EW*8192}\ns_add_u32 s75, s75, s74")
    a("s_mul_i32 s77, s40, 3072\ns_add_u32 s76, s76, s77")
    for i in range(2*EW, 32):
        sd, so = ((20, 75) if i < 27 else (68, 76))
        a(f"s_mov_b32 m0, s74\ns_add_u32 s74, s74, 4096\nbuffer_load_dwordx4 v2, s[{sd}:{sd+3}], s{so} offen lds\ns_add_u32 s{so}, s{so}, 4096")
    a("s_waitcnt vmcnt(0)\ns_barrier")
    a("K3_pf:")
    a("s_cmp_ge_u32 s40, 6\ns_cbranch_scc1 K4_helper\ns_barrier\ns_branch K4_helper")
    k4(a, st)
    a("s_endpgm\nCODE_END:")
    return kernel_desc(NAME + "_kernel", 256)

def rf_check(a, first_loaded):
    L = a.label("rf")
    a(f"s_lshl_b32 s43, s34, 10\ns_add_u32 s43, s43, {FL_RF}\ns_mov_b32 s73, 0x8000" + (f"\ns_branch {L}_1" if first_loaded else ""))
    a(f"{L}:\nbuffer_load_dwordx4 v[160:163], v2, s[36:39], s43 offen sc1\ns_waitcnt vmcnt(0)\n{L}_1:\nv_xor_b32 v12, s{SE}, v160\nv_xor_b32 v13, s{SE}, v161\nv_xor_b32 v14, s{SE}, v162\nv_or3_b32 v12, v12, v13, v14\nv_xor_b32 v13, s{SE}, v163\nv_or_b32 v12, v12, v13\nv_cmp_eq_u32 vcc, 0, v12\ns_nop 1")
    a(f"s_cmp_eq_u64 vcc, -1\ns_cbranch_scc1 {L}_ok\ns_sleep 2\ns_sub_u32 s73, s73, 1\ns_cbranch_scc0 {L}\n{L}_ok:")
def h_bases(a, sw):
    a("v_add_u32 v3, 0x10000, v2\nv_add_u32 v4, 0x20000, v2")
    a(f"s_mul_i32 s42, s{sw}, 3\ns_lshr_b32 s43, s42, 1\ns_lshl_b32 s43, s43, 12\ns_and_b32 s44, s42, 1\ns_lshl_b32 s45, s44, 3\ns_add_u32 s43, s43, s45\ns_add_u32 s43, s43, {ffn.HB}")
    a("v_add_u32 v5, s43, v2")
    a("s_mul_i32 s45, s44, 4080\ns_add_u32 s45, s45, 8\nv_add_u32 v6, s45, v5")
def k4(a, st0):
    st = lambda i: st0(20 + i)
    a("K4_compute:\ns_mov_b32 s40, s34\ns_mov_b32 s41, s35")
    rf_check(a, True)
    a(f"s_lshl_b32 s46, s40, 2\ns_add_u32 s46, s46, s3\ns_mul_i32 s31, s46, {WST()*1024}")
    ws_srd(a, 20, "WF", 14)
    cs = ffn.Stream(a, PAT(), srdW=20, sW=31, v_lane16=2, v_h8=5, v_p=7, v_one=10, ACC=16, XF=112, TMP=160, RB=176,
                    RINGF=min(OPT.get('ring', 20), 19 if st0.on else 20), stamp=st)
    cs.prefill(min(cs.RINGF, OPT.get("k4_pre", 18)))
    a("s_setprio 2")
    h_bases(a, 3)
    a("v_and_b32 v12, 15, v0\nv_lshrrev_b32 v13, 4, v0\ns_lshr_b32 s45, s3, 1\nv_lshl_add_u32 v13, v13, 1, s45\nv_and_b32 v14, 7, v0\nv_xor_b32 v13, v13, v14")
    a("s_and_b32 s45, s3, 1\ns_lshl_b32 s45, s45, 3\nv_lshl_add_u32 v13, v13, 4, s45\nv_lshl_add_u32 v7, v12, 7, v13\nv_add_u32 v8, 0x8000, v7")
    a(f"v_mov_b32 v10, 1\nv_mov_b32 v11, {ffn.CNT}")
    cs.run()
    LASTP = OPT.get("lastp", True)
    if LASTP:
        a("s_waitcnt lgkmcnt(0)\nv_readfirstlane_b32 s70, v175\ns_mov_b32 s33, 8\ns_cmp_eq_u32 s70, 3\ns_cbranch_scc1 K4_pubs")
    a("s_branch K4_work")
    PB, AC = 48, 112
    a("K4_helper:")
    a(f"s_setprio {OPT.get('k4_hprio', 0)}\ns_mov_b32 s40, s34\ns_mov_b32 s41, s35")
    a(f"s_mul_i32 s30, s41, 73728\ns_mul_i32 s90, s33, 18432\ns_add_u32 s30, s30, s90")
    ws_srd(a, 16, "HC", 14)
    a(f"s_lshl_b32 s43, s41, 2\ns_add_u32 s43, s43, s33\ns_lshl_b32 s43, s43, 10\ns_add_u32 s43, s43, {FL_HF}\nv_lshlrev_b32 v12, 7, v0")
    poll(a, 6, 12, 36, 43, 13, 1)
    st(9)
    for i in range(18):
        if i % 4 == 0: a("s_mov_b32 m0, s90\ns_add_u32 s90, s90, 4096")
        a(f"buffer_load_dwordx4 v2, s[16:19], s30 offen offset:{(i%4)*1024} sc1 lds")
        if i % 4 == 3: a("s_add_u32 s30, s30, 4096")
        if i >= 5 and i % 3 == 2: a("s_waitcnt vmcnt(3)\ns_barrier")
    a("s_waitcnt vmcnt(0)\ns_barrier")
    a("s_cmp_lg_u32 s2, 0\ns_cbranch_scc1 K4_nep\ns_cmp_lg_u32 s33, 3\ns_cbranch_scc1 K4_nep\ns_mov_b32 s74, s34\ns_mov_b32 s34, 0\nK4_epl:")
    rf_check(a, False)
    a(f"s_add_u32 s34, s34, 1\ns_cmp_lt_u32 s34, 8\ns_cbranch_scc1 K4_epl\ns_mov_b32 s34, s74\nv_mov_b32 v13, s{SE}\nv_mov_b32 v14, 0")
    ws_srd(a, 52, "EP", 14)
    a("s_mov_b64 exec, 1\nbuffer_store_dword v13, v14, s[52:55], 0 offen sc1\ns_mov_b64 exec, -1\nK4_nep:")
    for i in range(ffn.N_BARRIERS_AFTER_X): a("s_barrier")
    NPUB = OPT.get("npub", 2)
    a(f"s_cmp_ge_u32 s33, {NPUB}\ns_cbranch_scc1 K4_work")
    def wait_cnt(L, slp):
        a(f"s_mov_b32 s72, 0x40000\n{L}:\nds_read_b32 v3, v4\ns_waitcnt lgkmcnt(0)\nv_readfirstlane_b32 s70, v3\ns_cmp_eq_u32 s70, 4\ns_cbranch_scc1 {L}_ok\ns_sleep {slp}\ns_sub_u32 s72, s72, 1\ns_cbranch_scc0 {L}\n{L}_ok:")
    SWZ = "v_lshrrev_b32 v5, 3, v0\nv_and_b32 v6, 7, v0\nv_xor_b32 v7, v5, v6\nv_lshlrev_b32 v7, 4, v7\nv_lshl_add_u32 v7, v5, 7, v7"
    a("K4_pubs:")
    ws_srd(a, 24, "PART", 14)
    a("s_mov_b32 s42, s33"); a(SWZ)
    a(f"s_lshl_b32 s44, s42, 13\nv_add_u32 v7, s44, v7\ns_lshl_b32 s44, s42, 2\ns_add_u32 s44, s44, {ffn.CNT}\nv_mov_b32 v4, s44")
    a("s_mul_i32 s49, s41, 9\ns_add_u32 s49, s49, s42\ns_lshl_b32 s47, s49, 16\ns_lshl_b32 s51, s49, 10")
    a("s_lshl_b32 s44, s40, 13\ns_add_u32 s47, s47, s44\ns_lshl_b32 s44, s40, 7\ns_add_u32 s51, s51, s44\nv_mov_b32 v18, 0")
    a(f"v_mov_b32 v13, s{SE}")
    a("K4_pub:")
    wait_cnt("K4_pw", 2)
    st0.dyn(34, 42)
    for i in range(8): a(f"ds_read_b128 v[{PB+4*i}:{PB+4*i+3}], v7 offset:{1024*i}")
    a("s_add_u32 s71, s47, 4096")
    for i in range(8):
        a(f"s_cmp_eq_u32 s40, {i}\ns_cbranch_scc1 K4_ps{i}\ns_waitcnt lgkmcnt({7-i})\nbuffer_store_dwordx4 v[{PB+4*i}:{PB+4*i+3}], v2, s[24:27], s{47 if i < 4 else 71} offen offset:{(i%4)*1024} sc1\nK4_ps{i}:")
    a("s_waitcnt vmcnt(0) lgkmcnt(0)\ns_mov_b64 exec, 1\nbuffer_store_dword v13, v18, s[36:39], s51 offen sc1\ns_mov_b64 exec, -1")
    st0.dyn(43, 42)
    a(f"s_add_u32 s42, s42, {NPUB}\ns_add_u32 s47, s47, {NPUB << 16}\ns_add_u32 s51, s51, {NPUB << 10}\nv_add_u32 v7, {NPUB << 13}, v7\nv_add_u32 v4, {4*NPUB}, v4\ns_cmp_lt_u32 s42, {8 if LASTP else 9}\ns_cbranch_scc1 K4_pub")
    a("K4_work:")
    a(f"v_mov_b32 v14, {ffn.CNT}\nv_mov_b32 v15, 1")
    TAKE = "s_mov_b64 exec, 1\nds_add_rtn_u32 v3, v14, v15 offset:40\ns_mov_b64 exec, -1\ns_waitcnt lgkmcnt(0)\nv_readfirstlane_b32 s42, v3\ns_cmp_ge_u32 s42, 9\ns_cbranch_scc1 K4_fin"
    a(TAKE)
    ws_srd(a, 16, "HC", 14)
    ws_srd(a, 24, "PART", 14)
    ws_srd(a, 52, "MU2", 14)
    ws_srd(a, 56, "SS", 14)
    srd(a, 60, 4, 0, T*DM*2)
    a(SWZ)
    a("s_lshl_b32 s43, s40, 3\nv_add_u32 v8, s43, v5")
    a("v_lshlrev_b32 v19, 2, v8\ns_lshl_b32 s44, s41, 8\ns_lshl_b32 s65, s41, 11\nbuffer_load_dword v140, v19, s[52:55], s44 offen sc1")
    for nb in range(6): a(f"buffer_load_dword v{144+nb}, v19, s[56:59], s65 offen offset:{256*nb} sc1")
    a("s_lshl_b32 s44, s40, 10\nv_add_u32 v9, s44, v7\nv_lshlrev_b32 v12, 7, v0")
    a("v_lshrrev_b32 v10, 4, v8\nv_mul_u32_u24 v10, 18432, v10\nv_lshl_add_u32 v10, v6, 8, v10\nv_and_b32 v11, 15, v8\nv_lshl_add_u32 v10, v11, 4, v10")
    a(f"v_mul_u32_u24 v11, {DM*2}, v8\nv_lshl_add_u32 v11, v6, 4, v11")
    a("v_and_b32 v19, 1, v0\nv_cmp_eq_u32 s[66:67], 1, v19\ns_mov_b32 s68, 0x00003f80\ns_mov_b32 s69, 0x3f800000\ns_mov_b32 s74, 0")
    a("K4_red:")
    a("s_mul_i32 s30, s41, 73728\ns_lshl_b32 s44, s42, 11\ns_add_u32 s30, s30, s44\nbuffer_load_dwordx4 v[20:23], v10, s[16:19], s30 offen sc1")
    a(f"s_mul_i32 s64, s41, {64*DM*2}\ns_lshl_b32 s44, s42, 7\ns_add_u32 s64, s64, s44")
    a(f"s_lshl_b32 s44, s42, 13\nv_add_u32 v7, s44, v9\ns_lshl_b32 s44, s42, 2\ns_add_u32 s44, s44, {ffn.CNT}\nv_mov_b32 v4, s44")
    a("s_mul_i32 s49, s41, 9\ns_add_u32 s49, s49, s42\ns_lshl_b32 s71, s49, 16\ns_lshl_b32 s51, s49, 10\ns_lshl_b32 s44, s40, 10\ns_add_u32 s71, s71, s44")
    wait_cnt("K4_rw", 4)
    poll(a, 8, 12, 36, 51, 3, OPT.get("red_slp", 2))
    st0.dyn(52, 42)
    for j in range(8):
        b = PB + 4*j
        a(f"s_cmp_eq_u32 s40, {j}\ns_cbranch_scc1 K4_ro{j}\nbuffer_load_dwordx4 v[{b}:{b+3}], v2, s[24:27], s71 offen sc1\ns_branch K4_rp{j}\nK4_ro{j}:\nds_read_b128 v[{b}:{b+3}], v7\nK4_rp{j}:\ns_add_u32 s71, s71, 8192")
    a("s_cmp_lg_u32 s74, 0\ns_cbranch_scc1 K4_hs\ns_mov_b32 s74, 1")
    a("v_add_f32 v144, v144, v145\nv_add_f32 v146, v146, v147\nv_add_f32 v148, v148, v149\nv_add_f32 v144, v144, v146\nv_add_f32 v144, v144, v148")
    a(f"v_mov_b32 v145, {f32bits(1e-5)}\nv_fmac_f32 v145, {f32bits(1.0/DM)}, v144\nv_rsq_f32 v142, v145\nK4_hs:")
    for i in range(4):
        a(f"v_lshlrev_b32 v{24+2*i}, 16, v{20+i}\nv_and_b32 v{25+2*i}, 0xffff0000, v{20+i}\nv_add_f32 v{24+2*i}, v{24+2*i}, v140\nv_add_f32 v{25+2*i}, v{25+2*i}, v140")
    a("s_waitcnt lgkmcnt(0)")
    for j in range(8):
        a(f"s_waitcnt vmcnt({max(0, 6-j)})")
        for qq in range(2):
            for p in range(2):
                src = PB + 4*j + 2*qq + p
                d0, d1 = AC + 4*p + qq, AC + 4*p + 2 + qq
                if OPT.get("red_dot", False):
                    for hh, d in ((0, d0), (1, d1)):
                        a(f"v_dot2_f32_bf16 v{d}, v{src}, s{68+hh}, {'0' if j == 0 else f'v{d}'}")
                elif j == 0:
                    a(f"v_lshlrev_b32 v{d0}, 16, v{src}\nv_and_b32 v{d1}, 0xffff0000, v{src}")
                else:
                    a(f"v_lshlrev_b32 v16, 16, v{src}\nv_and_b32 v{src}, 0xffff0000, v{src}\nv_add_f32 v{d0}, v{d0}, v16\nv_add_f32 v{d1}, v{d1}, v{src}")
    a("s_nop 2")
    for i in range(4):
        a(f"v_cndmask_b32 v{AC+8+i}, v{AC+4+i}, v{AC+i}, s[66:67]")
        a(f"v_cndmask_b32 v{AC+12+i}, v{AC+i}, v{AC+4+i}, s[66:67]")
    a("s_nop 1")
    for i in range(4):
        a(f"v_mov_b32_dpp v{AC+16+i}, v{AC+8+i} quad_perm:[1,0,3,2] row_mask:0xf bank_mask:0xf")
    for hlf in range(2):
        for e in range(2):
            k_, r_ = AC + 12 + 2*hlf + e, AC + 16 + 2*hlf + e
            a(f"v_cndmask_b32 v{AC+4*hlf+e}, v{k_}, v{r_}, s[66:67]\nv_cndmask_b32 v{AC+4*hlf+2+e}, v{r_}, v{k_}, s[66:67]")
    for i in range(4):
        a(f"v_fmac_f32 v{24+2*i}, v{AC+2*i}, v142\nv_fmac_f32 v{25+2*i}, v{AC+2*i+1}, v142\nv_cvt_pk_bf16_f32 v{40+i}, v{24+2*i}, v{25+2*i}")
    a("buffer_store_dwordx4 v[40:43], v11, s[60:63], s64 offen")
    st0.dyn(8, 42)
    a(TAKE + "\ns_branch K4_red")
    a("K4_fin:")
    st0.finish(14, 3, 8)

HEADER = open("cdna_kernels/" + NAME + ".s.ref").read().split("; Override launch geometry")[0]
def build(stamp_k=-1, force_fallback=False, light=False, **opt):
    LIGHT[0] = light
    OPT.update(opt)
    a = Asm()
    hdr = HEADER + f"; @launch grid=({K1_GRID},1,1) block=(512,1,1) lds={max(K1_LDS, K2_LDS)}\n"
    a('.amdgcn_target "amdgcn-amd-amdhsa--gfx950"\n.text')
    st = Stamps(a, stamp_k == 2, 2, 255, 254)
    k1(a, st)
    descs = [k2(a, st, force_fallback)]
    a('.set CODE_PF_N, (CODE_END - K2_out + 8191) / 8192')
    a('.section .rodata,"a"')
    return hdr + a.text() + "".join(descs)

if __name__ == "__main__":
    out = sys.argv[1] if len(sys.argv) > 1 else "cdna_kernels/" + NAME + ".s"
    kw = eval("dict(" + (sys.argv[2] if len(sys.argv) > 2 else "") + ")")
    open(out, "w").write(build(**kw))
```

```python
import sys, math
from asmlib import *
from gemm import gemm_core
import ffn

T, DM, NH, DH, F = 2048, 576, 32, 18, 4608
NAME = "sequential_preLN__grouped_kv_mqa__dense_activation_relu__prompt"
A_X, A_WQ, A_WK, A_WV, A_WO, B_X, B_W1, B_W2, K_OUT, K_DBG, K_WS = [8 * i for i in range(11)]
def _al(x, a=4096): return (x + a - 1) // a * a
PAIR = 4736
FL_PF, FL_OF, FL_HF, FL_RF = 0, 294912, 294912 + 32768, 294912 + 32768 + 131072
FL_AF = FL_RF + 8192
FL_END = FL_AF + 32768
SW, SE = 100, 101
WS = {}
_o = 0
for nm, sz in [("EP", 128), ("Q", T*DM*2), ("KV", 32*PAIR), ("MEAN1", T*4), ("O", T*DM*2), ("HC", T*DM*2), ("MU2", T*4),
               ("SS", T*8*4), ("XC", T*DM*2), ("WBAR", 36*1024), ("WOF", 648*1024), ("WF", 32*332*1024),
               ("PART", 8*T*DM*2), ("FLAG", FL_END), ("STAMP", 16 << 20)]:
    WS[nm] = (_o, sz); _o += _al(sz)
WS_END = _o
QSCALE = math.log2(math.e) / math.sqrt(DH)
def f32bits(x):
    import struct
    return struct.unpack("<I", struct.pack("<f", x))[0]
ONES = 0x3f803f80

def ws_srd(a, d, nm, base):
    srd(a, d, base, WS[nm][0], WS[nm][1])

def wave_lane(a, s_wave=3):
    a(f"v_lshrrev_b32 v1, 6, v0\nv_and_b32 v0, 63, v0\ns_nop 0\nv_readfirstlane_b32 s{s_wave}, v1")

def sum_g(a, v, t):
    a(f"v_mov_b32 v{t}, v{v}\ns_nop 1\nv_permlane32_swap_b32 v{v}, v{t}\ns_nop 1\nv_add_f32 v{v}, v{v}, v{t}")
    a(f"v_mov_b32 v{t}, v{v}\ns_nop 1\nv_permlane16_swap_b32 v{v}, v{t}\ns_nop 1\nv_add_f32 v{v}, v{v}, v{t}")

LIGHT = [False]
OPT = dict(prio=3, k2_nt=True, codepf=True)
class Stamps:
    def __init__(self, a, on, kidx, vreg, vtmp):
        self.a, self.on, self.k, self.v, self.t = a, bool(on) or LIGHT[0], kidx, vreg, vtmp
        self.full = bool(on)
    def start(self):
        if self.on:
            self.a(f"s_memrealtime s[96:97]\ns_memtime s[98:99]\nv_mov_b32 v{self.v}, 0\ns_waitcnt lgkmcnt(0)\nv_writelane_b32 v{self.v}, s96, 62")
    def __call__(self, i):
        if self.full or (self.on and i == 61):
            if OPT.get("rt") and i != 61:
                self.a(f"s_memrealtime s[96:97]\ns_waitcnt lgkmcnt(0)\nv_writelane_b32 v{self.v}, s96, {i}")
            else:
                self.a(f"s_memtime s[96:97]\ns_waitcnt lgkmcnt(0)\ns_sub_u32 s96, s96, s98\nv_writelane_b32 v{self.v}, s96, {i}")
    def dyn(self, base, sreg):
        if self.full:
            self.a(f"s_memrealtime s[96:97]\ns_add_u32 m0, s{sreg}, {base}\ns_waitcnt lgkmcnt(0)\nv_writelane_b32 v{self.v}, s96, m0")
    def finish(self, s_ws, s_wave, nw):
        if self.on:
            a = self.a
            a("s_waitcnt vmcnt(0)")
            self(61)
            a(f"s_memrealtime s[96:97]\ns_waitcnt lgkmcnt(0)\nv_writelane_b32 v{self.v}, s96, 63")
            ws_srd(a, 92, "STAMP", s_ws)
            a(f"s_lshl_b32 s96, s2, 3\ns_add_u32 s96, s96, s{s_wave}\ns_lshl_b32 s96, s96, 8\ns_add_u32 s96, s96, {self.k << 21}")
            a(f"v_mbcnt_lo_u32_b32 v{self.t}, -1, 0\nv_mbcnt_hi_u32_b32 v{self.t}, -1, v{self.t}\nv_lshlrev_b32 v{self.t}, 2, v{self.t}")
            a(f"buffer_store_dword v{self.v}, v{self.t}, s[92:95], s96 offen")


def WST(): return OPT.get('wst', 326)
def PAT(): return OPT.get('pat', (3, 3, 2, 1))
class Repack:
    PR = 208
    def __init__(self, a): self.a = a
    def common(self):
        return (f"s_add_u32 s60, s14, {WS['WOF'][0]}\ns_addc_u32 s61, s15, 0\ns_mov_b32 s62, {WS['WF'][0] + WS['WF'][1] - WS['WOF'][0]}\ns_mov_b32 s63, 0x00020000\n"
                "v_and_b32 v6, 15, v0\nv_lshrrev_b32 v7, 4, v0\ns_mov_b32 s80, 0x05040100\ns_mov_b32 s81, 0x07060302")
    def regs(self, rnd): return 64 + 4 * rnd, 72 + 4 * rnd, 82 + 4 * rnd, 242 + rnd, 240 + rnd
    def setup_ffn(self, rnd, pw1, pw2):
        L = self.a.label("rp")
        SD, SB_, SO, vsrc, dst = self.regs(rnd)
        OWF = WS["WF"][0] - WS["WOF"][0]
        t = []; A = t.append
        A(f"s_mul_hi_u32 s46, s47, {(2**32 + 161)//162}\ns_mul_i32 s49, s46, 162\ns_sub_u32 s47, s47, s49")
        A(f"s_mul_hi_u32 s49, s47, {(2**32 + 8)//9}\ns_mul_i32 s50, s49, 9\ns_sub_u32 s50, s47, s50")
        A(f"s_mov_b32 s{SD+3}, 0x00020000\ns_lshl_b32 s54, s50, 7\nv_mov_b32 v{dst}, v3")
        A(f"s_cmp_lt_u32 s46, 2\ns_cselect_b32 s{SD+2}, {DM*F*2}, 0\ns_cselect_b32 s57, 0, 0x100000")
        A(f"s_mul_i32 s53, s45, {4*WST()}\ns_mul_i32 s55, s46, 162\ns_add_u32 s53, s53, s55\ns_add_u32 s53, s53, {OWF//1024}\ns_add_u32 s53, s53, s57")
        A(f"s_cmp_eq_u32 s46, 1\ns_cbranch_scc1 {L}_w2")
        A("s_mul_i32 s55, s49, 3\ns_add_u32 s53, s53, s55")
        for q in range(4):
            A(f"s_lshl_b32 s55, s50, 2\ns_add_u32 s55, s55, {q}\ns_mul_i32 s56, s55, 86\ns_lshr_b32 s56, s56, 8")
            A(f"s_lshr_b32 s58, s56, 2\ns_mul_i32 s58, s58, {4*WST()-54}\ns_mul_i32 s56, s56, {WST()-3}\ns_sub_u32 s56, s56, s58")
            A(f"s_add_u32 s55, s55, s56\ns_add_u32 s55, s55, s53\ns_lshl_b32 s{SO+q}, s55, 10")
        A(f"s_mov_b32 s{SD}, s{pw1}\ns_mov_b32 s{SD+1}, s{pw1+1}\ns_mul_i32 s53, s49, {32*F*2}\ns_mul_i32 s55, s45, {DM*2}\ns_add_u32 s53, s53, s55\ns_add_u32 s{SB_}, s53, s54")
        A(f"s_mov_b32 s{SB_+1}, {4*F*2}\ns_mov_b32 s{SB_+2}, {2*F*2}\ns_mov_b32 s{SB_+3}, {F*2}")
        A(f"v_mul_u32_u24 v{vsrc}, {8*F*2}, v7\nv_lshl_add_u32 v{vsrc}, v6, 3, v{vsrc}\ns_branch {L}_done")
        A(f"{L}_w2:")
        idx, siz = 0, 0
        cb = 0
        for n in PAT():
            for i in range(n):
                idx |= i << (2 * (cb + i)); siz |= n << (2 * (cb + i))
            cb += n
        A(f"s_lshl_b32 s55, s50, 1\ns_lshr_b32 s56, {idx}, s55\ns_and_b32 s56, s56, 3\ns_lshr_b32 s58, {siz}, s55\ns_and_b32 s58, s58, 3")
        A("s_mul_i32 s58, s58, s49\ns_add_u32 s53, s53, s58\ns_mul_i32 s58, s50, 18\ns_add_u32 s53, s53, s58\ns_mul_i32 s56, s56, 17\ns_sub_u32 s53, s53, s56")
        A(f"s_lshl_b32 s{SO}, s53, 10\ns_add_u32 s{SO+1}, s{SO}, {WST()*1024}\ns_add_u32 s{SO+2}, s{SO}, {2*WST()*1024}\ns_add_u32 s{SO+3}, s{SO}, {3*WST()*1024}")
        A(f"s_mov_b32 s{SD}, s{pw2}\ns_mov_b32 s{SD+1}, s{pw2+1}\ns_lshr_b32 s53, s49, 1\ns_lshl_b32 s53, s53, 6\ns_and_b32 s55, s49, 1\ns_lshl_b32 s55, s55, 1\ns_add_u32 s53, s53, s55")
        A(f"s_mul_i32 s55, s45, {DM}\ns_add_u32 s53, s53, s55\ns_mul_i32 s53, s53, {DM*2}\ns_add_u32 s{SB_}, s53, s54")
        A(f"s_mov_b32 s{SB_+1}, {DM*2}\ns_mov_b32 s{SB_+2}, {8*DM*2}\ns_mov_b32 s{SB_+3}, {4*DM*2}")
        A(f"v_mul_u32_u24 v{vsrc}, {16*DM*2}, v7\nv_lshl_add_u32 v{vsrc}, v6, 3, v{vsrc}")
        A(f"{L}_done:")
        return "\n".join(t)
    def setup_wo(self, rnd, pwo, scr):
        L = self.a.label("rp")
        SD, SB_, SO, vsrc, dst = self.regs(rnd)
        t = []; A = t.append
        A(f"s_mul_hi_u32 s49, s47, {(2**32 + 8)//9}\ns_mul_i32 s50, s49, 9\ns_sub_u32 s50, s47, s50")
        A(f"s_mov_b32 s{SD+3}, 0x00020000\ns_lshl_b32 s54, s50, 7")
        A(f"s_mov_b32 s{SD}, s{pwo}\ns_mov_b32 s{SD+1}, s{pwo+1}\ns_cmp_lt_u32 s47, 162\ns_cselect_b32 s{SD+2}, {DM*DM*2}, 0\ns_cselect_b32 s56, 0, 0x40000000")
        for e in range(2):
            A(f"s_lshl_b32 s55, s50, 1\ns_add_u32 s55, s55, {e}\ns_mul_i32 s57, s55, 86\ns_lshr_b32 s57, s57, 8\ns_mul_i32 s58, s57, 3\ns_cmp_lt_u32 s49, s58\ns_cselect_b32 s58, 54, 0")
            A(f"s_mul_i32 s57, s57, 42\ns_add_u32 s55, s55, s57\ns_add_u32 s55, s55, s58\ns_mul_i32 s57, s49, 3\ns_add_u32 s55, s55, s57\ns_lshl_b32 s55, s55, 11\ns_add_u32 s{SO+e}, s55, s56")
        A(f"v_lshrrev_b32 v245, 3, v6\nv_lshlrev_b32 v245, 11, v245\nv_and_b32 v246, 7, v6\nv_lshl_add_u32 v245, v246, 5, v245\nv_lshl_add_u32 v245, v7, 8, v245\nv_add_u32 v{dst}, s{scr}, v245")
        A(f"s_mov_b32 s{SB_+3}, {DM*2}\ns_cmp_ge_u32 s49, 16\ns_cbranch_scc1 {L}_wo2")
        A(f"s_mul_i32 s53, s49, {36*DM*2}\ns_mov_b32 s{SB_+1}, {8*DM*2}\ns_mov_b32 s{SB_+2}, {2*DM*2}")
        A(f"v_lshrrev_b32 v246, 1, v7\nv_mul_u32_u24 v246, 18, v246\nv_and_b32 v247, 1, v7\nv_lshl_add_u32 v246, v247, 2, v246\ns_branch {L}_wo3")
        A(f"{L}_wo2:")
        A(f"s_sub_u32 s53, s49, 16\ns_mul_i32 s53, s53, {288*DM*2}\ns_add_u32 s53, s53, {16*DM*2}\ns_mov_b32 s{SB_+1}, {36*DM*2}\ns_mov_b32 s{SB_+2}, {18*DM*2}")
        A(f"v_mul_u32_u24 v246, 72, v7")
        A(f"{L}_wo3:")
        A(f"s_add_u32 s{SB_}, s53, s54\nv_mul_u32_u24 v{vsrc}, {DM*2}, v246\nv_lshl_add_u32 v{vsrc}, v6, 3, v{vsrc}")
        return "\n".join(t)
    def load(self, rnd, s_, flag=""):
        SD, SB_, SO, vsrc, dst = self.regs(rnd)
        raw = self.PR + 16 * rnd
        t = f"s_mov_b32 s55, s{SB_}\n"
        if s_ & 4: t += f"s_add_u32 s55, s55, s{SB_+1}\n"
        if s_ & 2: t += f"s_add_u32 s55, s55, s{SB_+2}\n"
        if s_ & 1: t += f"s_add_u32 s55, s55, s{SB_+3}\n"
        return t + f"buffer_load_dwordx2 v[{raw+2*s_}:{raw+2*s_+1}], v{vsrc}, s[{SD}:{SD+3}], s55 offen{flag}"
    def store(self, rnd, q_, flag=""):
        SD, SB_, SO, vsrc, dst = self.regs(rnd)
        raw = self.PR + 16 * rnd
        t = 196 + 4 * (q_ % 2)
        L = [f"v_perm_b32 v{t+j}, v{raw+2*(2*j+1)+(q_>>1)}, v{raw+2*(2*j)+(q_>>1)}, s{80+(q_&1)}" for j in range(4)]
        L.append(f"buffer_store_dwordx4 v[{t}:{t+3}], v{dst}, s[60:63], s{SO+q_} offen{flag}")
        return "\n".join(L)
    def touch(self, rnd):
        SD, SB_, SO, vsrc, dst = self.regs(rnd)
        return "s_mov_b64 exec, 0xff\nv_lshlrev_b32 v204, 7, v0\n" + "\n".join(f"buffer_load_dword v205, v204, s[60:63], s{SO+q} offen sc1" for q in range(4)) + "\ns_mov_b64 exec, -1"

def ffn_map(sj, smb):
    SL = OPT.get("k4_sl", 1); lg = SL.bit_length() - 1
    return (f"s_and_b32 s46, s2, 7\ns_lshr_b32 s47, s2, 3\ns_and_b32 s{sj}, s46, {8//SL-1}\ns_lshl_b32 s{sj}, s{sj}, {lg}\ns_and_b32 s48, s47, {SL-1}\ns_add_u32 s{sj}, s{sj}, s48\n"
            f"s_lshr_b32 s{smb}, s46, {3-lg}\ns_lshl_b32 s{smb}, s{smb}, {5-lg}\ns_lshr_b32 s48, s47, {lg}\ns_add_u32 s{smb}, s{smb}, s48\n")

def poll(a, n, voff, srd_, soff, vt, slp=2, first_loaded=False):
    L = a.label("poll")
    m = (1 << n) - 1
    a(f"s_mov_b32 s91, 0x10000\ns_mov_b32 exec_lo, {m & 0xffffffff}\ns_mov_b32 exec_hi, {m >> 32}" + (f"\ns_branch {L}_1" if first_loaded else ""))
    a(f"{L}:\nbuffer_load_dword v{vt}, v{voff}, s[{srd_}:{srd_+3}], s{soff} offen sc1\ns_waitcnt vmcnt(0)\n{L}_1:\nv_cmp_eq_u32 vcc, s{SE}, v{vt}\ns_nop 1\ns_cmp_eq_u64 vcc, exec\ns_cbranch_scc1 {L}_ok\ns_sleep {slp}\ns_sub_u32 s91, s91, 1\ns_cbranch_scc0 {L}\n{L}_ok:")
    a("s_mov_b64 exec, -1")

K1_GRID = 256
K1_LDS = 159744 + 1280
def k1(a, st0):
    st = lambda i: st0({3: 30, 22: 31, 23: 30, 2: 31}[i]) if i in (2, 3, 22, 23) else None
    XLQ, XLK = 73728, 86016
    KVI = OPT.get('kvi', 21504)
    ST = OPT.get('k1_st', ' sc1')
    LATE = OPT.get('late', False)
    EPX = f's_load_dword s{SE}, s[14:15], 0'
    EP0 = '' if LATE else '\n' + EPX
    EP1 = EPX if LATE else ''
    kernel_begin(a, NAME + "_kernel")
    if OPT["codepf"]:
        a(f"s_cmp_ge_u32 s2, {OPT.get('pfn', 256)}\ns_cbranch_scc1 K1_nopf")
        a("s_getpc_b64 s[58:59]\nK1_pc:\nv_lshlrev_b32 v252, 7, v0\nv_min_u32 v252, K2_out-K1_pc, v252\nglobal_load_dword v253, v252, s[58:59]")
        a("K1_nopf:")
    a(f"s_cmp_lt_u32 s2, {K1_GRID}\ns_cbranch_scc1 K1_go\ns_endpgm\nK1_go:")
    a(f"s_load_dwordx4 s[4:7], s[0:1], {A_X}\ns_load_dwordx4 s[8:11], s[0:1], {A_WK}\ns_load_dwordx2 s[12:13], s[0:1], {A_WO}\ns_load_dwordx2 s[14:15], s[0:1], {K_WS}")
    st0.start()
    wave_lane(a)
    a(f"v_and_b32 v1, 15, v0\nv_lshrrev_b32 v2, 4, v0\ns_mov_b32 s{SW}, s3")
    a("s_bfe_u32 s44, s2, 0x20001\ns_lshl_b32 s44, s44, 3\ns_bfe_u32 s61, s2, 0x30003\ns_add_u32 s44, s44, s61\ns_and_b32 s45, s2, 1\ns_lshl_b32 s45, s45, 2\ns_lshr_b32 s62, s2, 6\ns_add_u32 s45, s45, s62")
    a("s_mul_i32 s60, s62, 9\ns_lshr_b32 s60, s60, 2\ns_add_u32 s60, s60, s61\ns_and_b32 s61, s2, 7\ns_add_u32 s60, s60, s61")
    a("s_mul_i32 s61, s60, 57\ns_lshr_b32 s61, s61, 9\ns_mul_i32 s61, s61, 9\ns_sub_u32 s60, s60, s61")
    a(f"s_cmp_ge_u32 s45, 6\ns_cselect_b32 s60, 0, s60\ns_mov_b32 s63, {XLQ}\ns_cselect_b32 s63, {XLK}, s63")
    a("v_lshrrev_b32 v4, 3, v0\nv_and_b32 v5, 7, v0\ns_lshl_b32 s90, s45, 5\ns_add_u32 s90, s90, s44")
    EX = 159744
    X0 = 16
    AR = 172
    ACC, CS, RS, GR, WF, ON = 88, 192, 112, 116, 120, 168
    ONr = f"v[{ON}:{ON+3}]"
    def V4(b): return f"v[{b}:{b+3}]"
    def lane_rc():
        a("v_lshrrev_b32 v10, 2, v1\nv_and_b32 v11, 3, v1\nv_lshl_add_u32 v12, v2, 3, v10")
    def xaddr(sbase):
        a(f"v_and_b32 v7, 7, v1\nv_xor_b32 v8, v2, v7\nv_lshlrev_b32 v8, 4, v8\nv_lshl_add_u32 v8, v1, 7, v8\nv_add_u32 v8, s{sbase}, v8\nv_xor_b32 v9, 64, v8")
        a("v_add_u32 v190, 0x8000, v8\nv_add_u32 v191, 0x8000, v9")
    def xrd(reg, ks, extra=0):
        p, e = divmod(ks, 2)
        b, o = (8 + e, 8192 * p) if p < 4 else (190 + e, 8192 * (p - 4))
        return f"ds_read_b128 {V4(reg)}, v{b} offset:{o + extra}"
    def waddr(shalf):
        a("v_lshrrev_b32 v13, 1, v10\nv_and_b32 v14, 1, v2\nv_lshl_add_u32 v13, v14, 1, v13")
        a("v_lshlrev_b32 v15, 7, v12\nv_lshl_add_u32 v15, v11, 3, v15\nv_lshlrev_b32 v7, 6, v12\nv_lshl_add_u32 v7, v11, 3, v7\nv_add_u32 v7, 4096, v7")
        a(f"s_cmp_eq_u32 s{shalf}, 1\ns_cselect_b64 vcc, -1, 0\ns_mul_i32 s55, s{shalf}, 3")
        a(f"v_xor_b32 v184, s55, v13\nv_lshl_add_u32 v{AR}, v184, 5, v15\nv_add_u32 v{AR+3}, 512, v{AR}")
        for t in (1, 2):
            a(f"v_xor_b32 v184, {t}, v13\nv_lshl_add_u32 v184, v184, 5, v15\nv_xor_b32 v185, {t-1}, v14\nv_lshl_add_u32 v185, v185, 5, v7")
            a(f"v_cndmask_b32 v{AR+t}, v184, v185, vcc\nv_add_u32 v184, 512, v184\nv_add_u32 v185, 256, v185\nv_cndmask_b32 v{AR+3+t}, v184, v185, vcc")
        for i in range(6): a(f"v_add_u32 v{AR+6+i}, {9*6144}, v{AR+i}")
    def wrd(reg, ks, t):
        hi = ks >= 9
        off = (ks - 9 * hi) * 6144
        return [f"ds_read_b64_tr_b16 v[{reg}:{reg+1}], v{AR+6*hi+t} offset:{off}", f"ds_read_b64_tr_b16 v[{reg+2}:{reg+3}], v{AR+6*hi+3+t} offset:{off}"]
    def stat_mfma(x, first):
        return [f"v_mfma_f32_16x16x32_bf16 {V4(RS)}, {ONr}, {V4(x)}, {'0' if first else V4(RS)}",
                f"v_mfma_f32_16x16x32_bf16 {V4(GR)}, {V4(x)}, {V4(x)}, {'0' if first else V4(GR)}"]
    def stats_out():
        a("v_cmp_eq_u32 vcc, 1, v11\nv_cmp_eq_u32 s[54:55], 2, v11\nv_cmp_eq_u32 s[56:57], 3, v11\nv_cmp_eq_u32 s[58:59], v10, v2\ns_nop 3")
        a(f"v_mul_f32 v4, {f32bits(-1.0/DM)}, v{RS}")
        a(f"v_cndmask_b32 v5, v{GR}, v{GR+1}, vcc\nv_cndmask_b32 v5, v5, v{GR+2}, s[54:55]\nv_cndmask_b32 v5, v5, v{GR+3}, s[56:57]\nv_cndmask_b32 v5, 0, v5, s[58:59]")
        sum_g(a, 5, 7)
        a(f"v_mul_f32 v5, {f32bits(1.0/DM)}, v5\nv_fma_f32 v5, -v4, v4, v5\nv_max_f32 v5, 0, v5\nv_add_f32 v5, {f32bits(1e-5)}, v5\nv_rsq_f32 v5, v5")
        a(f"s_lshl_b32 s54, s3, 7\ns_add_u32 s54, s54, {EX + 768}\nv_lshlrev_b32 v7, 3, v1\nv_add_u32 v7, s54, v7\nds_write_b64 v7, v[4:5]")
    if OPT.get("wtlb", False):
        a(f"s_cmp_lg_u32 s3, 7\ns_cbranch_scc1 K1_ntl\ns_load_dwordx4 s[24:27], s[0:1], {B_W1}\nv_lshlrev_b32 v250, 20, v0\ns_waitcnt lgkmcnt(0)")
        for b in (24, 26):
            a(f"s_mov_b32 s28, s{b}\ns_mov_b32 s29, s{b+1}\ns_mov_b32 s30, {DM*F*2}\ns_mov_b32 s31, 0x00020000\nbuffer_load_dword v251, v250, s[28:31], 0 offen nt")
        a("K1_ntl:")
    a("s_cmp_lt_u32 s3, 4\ns_cbranch_scc1 K1_comp")
    if OPT.get("lprio", 3): a(f"s_setprio {OPT.get('lprio', 3)}")
    a("s_cmp_eq_u32 s45, 7\ns_cbranch_scc1 K1_worp")
    a("s_sub_u32 s3, s3, 4")
    a("s_cmp_eq_u32 s45, 6\ns_cbranch_scc1 K1_kvload")
    a("v_and_b32 v6, 1, v2\ns_and_b32 s48, s3, 1\ns_lshl_b32 s48, s48, 2\nv_lshlrev_b32 v6, 1, v6\nv_or_b32 v6, s48, v6\nv_xor_b32 v6, v6, v5")
    a(f"v_mul_u32_u24 v3, {DM*2}, v4\nv_lshl_add_u32 v3, v6, 4, v3")
    a("v_lshrrev_b32 v7, 5, v0\nv_lshlrev_b32 v7, 1, v7\nv_and_b32 v6, 3, v0\nv_xor_b32 v7, v7, v6\nv_lshrrev_b32 v6, 2, v0")
    a(f"v_mul_u32_u24 v6, {DM*2}, v6\nv_lshl_add_u32 v6, v7, 4, v6")
    a("s_mul_i32 s48, s45, 192\ns_and_b32 s53, s45, 1\ns_lshl_b32 s54, s53, 6\ns_add_u32 s49, s48, s54\ns_xor_b32 s53, s53, 1\ns_lshl_b32 s53, s53, 7\ns_add_u32 s50, s48, s53")
    a(f"s_mul_i32 s53, s3, {8*DM*2}\ns_add_u32 s49, s49, s53\ns_mul_i32 s53, s3, {16*DM*2}\ns_add_u32 s50, s50, s53")
    a("s_lshl_b32 s51, s3, 10")
    a("s_lshr_b32 s52, s3, 1\ns_mul_i32 s52, s52, 6144\ns_and_b32 s53, s3, 1\ns_lshl_b32 s53, s53, 10\ns_add_u32 s52, s52, s53\ns_add_u32 s52, s52, 4096")
    a(f"s_mul_i32 s61, s60, {64*DM*2}")
    a(f"s_waitcnt lgkmcnt(0){EP0}")
    srd(a, 20, 6, 0, DM*DM*2)
    def wdma():
        a(f"s_add_u32 s62, s49, s61\ns_add_u32 s65, s50, s61\ns_add_u32 s64, s62, {32*DM*2}")
        a(f"s_mov_b32 m0, s51\ns_add_u32 s51, s51, 6144\nbuffer_load_dwordx4 v3, s[20:23], s62 offen lds")
        a(f"s_mov_b32 m0, s52\ns_add_u32 s52, s52, 12288\nbuffer_load_dwordx4 v6, s[20:23], s65 offen lds")
        a(f"s_mov_b32 m0, s51\ns_add_u32 s51, s51, 6144\nbuffer_load_dwordx4 v3, s[20:23], s64 offen lds")
        a(f"s_add_u32 s61, s61, {64*DM*2}\ns_cmp_eq_u32 s61, {DM*DM*2}\ns_cselect_b32 s61, 0, s61")
    LA = OPT.get('k1_la', 3)
    for t in range(LA): wdma()
    lane_rc()
    a("s_lshl_b32 s66, s3, 11\ns_add_u32 s66, s66, s63\ns_lshr_b32 s67, s3, 1")
    xaddr(66); waddr(67)
    a("s_and_b32 s55, s3, 1\ns_mul_i32 s55, s55, 6144")
    for i in range(12): a(f"v_add_u32 v{AR+i}, s55, v{AR+i}")
    for r in range(4): a(f"v_mov_b32 v{ON+r}, {ONES}")
    XE = 56
    for p in range(10):
        if p < 9:
            a(f"s_waitcnt vmcnt({3*(min(p + LA, 9) - p - 1)}) lgkmcnt(0)\ns_barrier")
            b = (p % 2) * 20
            if p == 0: a(EP1)
            if p < 8:
                a(xrd(X0 + b, 2*p)); a(xrd(X0 + b + 4, 2*p + 1))
            if p == 7:
                a(xrd(XE, 16)); a(xrd(XE + 4, 17))
            for t in range(3):
                for x in wrd(X0 + b + 8 + 4*t, 2*p if p != 4 else 8, t): a(x)
        else:
            a("s_waitcnt lgkmcnt(0)")
        if p > 0:
            b = ((p - 1) % 2) * 20
            if p < 9:
                for x in stat_mfma(X0 + b, p == 1) + stat_mfma(X0 + b + 4, False): a(x)
            if p == 8:
                for x in stat_mfma(XE, False) + stat_mfma(XE + 4, False): a(x)
            for t in range(3):
                a(f"v_mfma_f32_16x16x32_bf16 {V4(CS+4*t)}, {V4(X0+b+8+4*t)}, {ONr}, {'0' if p == 1 else V4(CS+4*t)}")
            if p == 8: stats_out()
        if p + LA < 9: wdma()
    a(f"s_mul_i32 s54, s3, 192\ns_add_u32 s54, s54, {EX}\nv_lshlrev_b32 v7, 4, v2\nv_add_u32 v7, s54, v7\ns_nop 3")
    for t in range(3): a(f"ds_write_b128 v7, {V4(CS+4*t)} offset:{64*t}")
    a("s_waitcnt lgkmcnt(0)\ns_barrier\ns_branch K1_fin")
    a("K1_comp:")
    a("s_lshl_b32 s46, s44, 6\ns_lshl_b32 s47, s3, 4\ns_add_u32 s46, s46, s47")
    a(f"s_mul_i32 s47, s46, {DM*2}")
    a(f"v_xor_b32 v6, v4, v5\nv_mul_u32_u24 v3, {DM*2}, v4\nv_lshl_add_u32 v3, v6, 4, v3\nv_add_u32 v6, {8*DM*2 - 1024}, v3")
    a(f"s_lshl_b32 s61, s60, 7\ns_lshl_b32 s64, s3, 11\ns_add_u32 s64, s63, s64\ns_mov_b32 s66, s64")
    a(f"s_waitcnt lgkmcnt(0){EP0}")
    srd(a, 16, 4, 0, T*DM*2)
    def xdma():
        return ("s_mov_b32 m0, s64\ns_add_u32 s62, s47, s61\ns_add_u32 s64, s64, 8192\n"
                "buffer_load_dwordx4 v3, s[16:19], s62 offen lds\nbuffer_load_dwordx4 v6, s[16:19], s62 offen offset:1024 lds\n"
                f"s_add_u32 s61, s61, 128\ns_cmp_eq_u32 s61, {DM*2}\ns_cselect_b32 s61, 0, s61")
    XA = OPT.get("k1_xa", 4)
    for p in range(XA): a(xdma())
    st(0)
    lane_rc()
    a("s_cmp_ge_u32 s45, 6\ns_cbranch_scc1 K1_kvgemm")
    a("s_and_b32 s68, s3, 1\ns_lshl_b32 s66, s68, 12\ns_add_u32 s66, s66, s63\ns_lshr_b32 s67, s3, 1")
    xaddr(66); waddr(67)
    ws_srd(a, 32, "Q", 14)
    def frags(ks):
        b = X0 + (ks % 2) * 20
        L = [xrd(b, ks), xrd(b + 4, ks, 2048)]
        for t in range(3): L += wrd(b + 8 + 4*t, ks, t)
        return L
    nx = XA
    a(f"s_waitcnt vmcnt({2*XA-2})\ns_barrier")
    st(2)
    a(EP1)
    for x in frags(0): a(x)
    for ks in range(18):
        p = ks // 2
        if ks % 2 == 1 and ks < 17:
            a(f"s_waitcnt vmcnt({2*(nx - p - 2) if ks < 13 else 0})" + (" lgkmcnt(6)" if ks == 9 else "") + "\ns_barrier")
        b = X0 + (ks % 2) * 20
        nf = frags(ks + 1) if ks < 17 else []
        issued = 0
        for t in range(3):
            a(f"s_waitcnt lgkmcnt({4 - 2*t + issued})")
            for m in range(2):
                d = ACC + (t*2 + m) * 4
                a(f"v_mfma_f32_16x16x32_bf16 {V4(d)}, {V4(b+8+4*t)}, {V4(b+4*m)}, {'0' if ks == 0 else V4(d)}")
                for x in nf[:2]: a(x); issued += 1
                nf = nf[2:]
        if ks % 2 == 0 and nx < 9:
            a(xdma()); nx += 1
    st(3)
    a("v_lshlrev_b32 v3, 3, v0")
    a(f"s_lshl_b32 s48, s44, 1\ns_add_u32 s48, s48, s68\ns_mul_i32 s48, s48, {4*9216}")
    a("s_mul_i32 s49, s45, 6\ns_and_b32 s50, s45, 1\ns_lshl_b32 s51, s50, 1\ns_add_u32 s51, s51, s49\ns_lshl_b32 s50, s50, 2\ns_sub_u32 s52, s49, s50\ns_mul_i32 s69, s67, 3")
    a(f"s_mul_i32 s54, s67, 384\ns_add_u32 s54, s54, {EX}\nv_lshlrev_b32 v7, 4, v2\nv_add_u32 v7, s54, v7")
    a(f"s_lshl_b32 s54, s68, 8\ns_add_u32 s54, s54, {EX + 768}\nv_lshlrev_b32 v8, 3, v1\nv_add_u32 v8, s54, v8")
    a("s_barrier")
    a("ds_read_b64 v[12:13], v8\nds_read_b64 v[14:15], v8 offset:128")
    for i in range(6): a(f"ds_read_b128 {V4(CS+4*i)}, v7 offset:{64*i}")
    a(f"s_waitcnt lgkmcnt(0)\nv_mul_f32 v13, {f32bits(QSCALE)}, v13\nv_mul_f32 v15, {f32bits(QSCALE)}, v15")
    for t in range(3):
        a(f"s_add_u32 s53, s69, {t}\ns_cmp_lt_u32 s53, 4\ns_cselect_b32 s54, s51, s52\ns_add_u32 s53, s53, s54")
        a("s_mul_i32 s54, s53, 57\ns_lshr_b32 s54, s54, 9\ns_mul_i32 s54, s54, 4608\ns_lshl_b32 s53, s53, 9\ns_add_u32 s53, s53, s54\ns_add_u32 s53, s53, s48\ns_add_u32 s55, s53, 4608")
        for r in range(4): a(f"v_add_f32 v{CS+4*t+r}, v{CS+4*t+r}, v{CS+12+4*t+r}")
        for m in range(2):
            b = ACC + (t*2 + m) * 4
            for r in range(4): a(f"v_fmac_f32 v{b+r}, v{CS+4*t+r}, v{12+2*m}\nv_mul_f32 v{b+r}, v{b+r}, v{13+2*m}")
            a(f"v_cvt_pk_bf16_f32 v{b}, v{b}, v{b+1}\nv_cvt_pk_bf16_f32 v{b+1}, v{b+2}, v{b+3}")
            a(f"buffer_store_dwordx2 v[{b}:{b+1}], v3, s[32:35], s{53+2*m} offen{ST}")
    a("s_branch K1_fin")
    def kaddr():
        a(f"v_mul_u32_u24 v13, 36, v12\nv_lshl_add_u32 v13, v11, 3, v13\nv_and_b32 v14, 1, v10\nv_mul_u32_u24 v14, {KVI - 4}, v14\nv_add_u32 v{AR}, v13, v14")
        a(f"v_mul_u32_u24 v13, 36, v12\nv_add_u32 v{AR+1}, v13, v14")
    a("K1_kvload:")
    a(f"v_lshlrev_b32 v3, 4, v0\ns_and_b32 s48, s3, 1\ns_lshl_b32 s48, s48, 2\ns_mul_i32 s49, s3, {KVI}")
    a(f"s_waitcnt lgkmcnt(0){EP0}")
    a(f"s_cmp_lt_u32 s3, 2\ns_cselect_b32 s24, s8, s10\ns_cselect_b32 s25, s9, s11\ns_mov_b32 s26, {DM*DH*2}\ns_mov_b32 s27, 0x00020000")
    def kdma(i):
        if i % 4 == 0: a("s_mov_b32 m0, s49\ns_add_u32 s49, s49, 4096")
        a(f"buffer_load_dwordx4 v3, s[24:27], s48 offen offset:{(i%4)*1024} lds")
        if i % 4 == 3: a("s_add_u32 s48, s48, 4096")
    for i in range(21): kdma(i)
    lane_rc()
    a("s_lshl_b32 s66, s3, 11\ns_add_u32 s66, s66, s63")
    xaddr(66)
    for r in range(4): a(f"v_mov_b32 v{ON+r}, {ONES}")
    ws_srd(a, 40, "MEAN1", 14)
    a(f"s_lshl_b32 s46, s44, 2\ns_add_u32 s46, s46, s3")
    a("s_waitcnt vmcnt(0)\ns_barrier")
    for ks in range(8): a(xrd(X0 + 4*ks, ks))
    for ks in range(18):
        a(f"s_waitcnt lgkmcnt({min(7, 17 - ks)})")
        for x in stat_mfma(X0 + 4*ks, ks == 0): a(x)
        if ks + 8 < 18: a(xrd(X0 + 4*(ks + 8), ks + 8))
    a("s_nop 3")
    stats_out()
    a("s_waitcnt lgkmcnt(0)\ns_barrier")
    a("v_sub_f32 v9, 0, v4\nv_lshlrev_b32 v7, 2, v1\nv_lshl_add_u32 v7, v2, 20, v7\ns_lshl_b32 s49, s46, 6\nbuffer_store_dword v9, v7, s[40:43], s49 offen sc1")
    a("s_barrier\ns_branch K1_fin")
    a(f"K1_worp:\ns_waitcnt lgkmcnt(0){EP0}\nv_lshlrev_b32 v3, 4, v0")
    rp = Repack(a)
    a(rp.common())
    for rnd in range(2):
        a(f"s_lshl_b32 s47, s44, 2\ns_add_u32 s47, s47, s3\ns_add_u32 s47, s47, {128*rnd - 4 & 0xffffffff}")
        a(f"s_lshl_b32 s59, s3, 13\ns_sub_u32 s59, s59, {32768 - 4096 - 4096*rnd}\nv_add_u32 v{16+rnd}, s59, v3")
        a(rp.setup_wo(rnd, 12, 59))
        for n in range(8): a(rp.load(rnd, n))
    for rnd in range(2):
        a(f"s_waitcnt vmcnt({8 if rnd == 0 else 4})")
        for n in range(4):
            t = rp.store(rnd, n).split("\n")[:4]
            a("\n".join(t) + f"\nds_write_b128 v{240+rnd}, v[{196+4*(n%2)}:{199+4*(n%2)}] offset:{(n&1)*1024 + (n>>1)*16}")
        for n in range(4): a(f"ds_read_b128 v[{32+16*rnd+4*n}:{35+16*rnd+4*n}], v{16+rnd} offset:{1024*n}")
        for n in range(4): a(f"s_waitcnt lgkmcnt({3-n})\nbuffer_store_dwordx4 v[{32+16*rnd+4*n}:{35+16*rnd+4*n}], v3, s[60:63], s{82+4*rnd+(n>>1)} offen offset:{1024*(n&1)} sc1")
    a("s_branch K1_fin")
    a("K1_kvgemm:")
    a("s_cmp_eq_u32 s45, 7\ns_cbranch_scc1 K1_wbar")
    for p in range(XA, 9): a(xdma())
    xaddr(63); kaddr()
    a(f"s_cmp_ge_u32 s3, 2\ns_cselect_b64 vcc, -1, 0\ns_and_b32 s55, s3, 1\ns_mul_i32 s55, s55, {2*KVI}\ns_lshr_b32 s56, s3, 1\ns_lshl_b32 s56, s56, 5\ns_add_u32 s55, s55, s56")
    a(f"v_cndmask_b32 v{AR}, v{AR}, v{AR+1}, vcc\nv_add_u32 v{AR}, s55, v{AR}")
    for r in range(4): a(f"v_mov_b32 v{ON+r}, {ONES}")
    ws_srd(a, 36, "KV", 14)
    a(f"s_mul_i32 s48, s44, {PAIR}")
    def kread(ks):
        b = X0 + (ks % 3) * 20
        return [f"ds_read_b64_tr_b16 v[{b}:{b+1}], v{AR} offset:{ks*1152}", f"ds_read_b64_tr_b16 v[{b+2}:{b+3}], v{AR} offset:{ks*1152 + 144}"] + \
               [xrd(b + 4 + 4*m, ks, 2048*m) for m in range(4)]
    a("s_waitcnt vmcnt(0)\ns_barrier")
    st(22)
    for x in kread(0) + kread(1): a(x)
    a("s_bitcmp1_b32 s3, 0\ns_cbranch_scc1 K1_vform")
    for form in range(2):
        if form: a("K1_vform:")
        for ks in range(18):
            b = X0 + (ks % 3) * 20
            fill = kread(ks + 2) if ks < 16 else []
            a(f"s_waitcnt lgkmcnt({6 if ks < 17 else 0})")
            for m in range(5):
                d, o = (ACC + 4*m, V4(b + 4 + 4*m)) if m < 4 else (CS, ONr)
                A_, B_ = (V4(b), o) if form == 0 else (o, V4(b))
                a(f"v_mfma_f32_16x16x32_bf16 {V4(d)}, {A_}, {B_}, {'0' if ks == 0 else V4(d)}")
                n = 2 if m == 0 else 1
                for y in fill[:n]: a(y)
                fill = fill[n:]
        st(23)
        if form == 0:
            a(f"v_lshlrev_b32 v7, 3, v1\nv_add_u32 v7, {EX + 768}, v7")
            a("v_lshrrev_b32 v8, 1, v2\nv_lshlrev_b32 v8, 9, v8\nv_lshl_add_u32 v8, v1, 4, v8\nv_and_b32 v9, 1, v2\nv_lshl_add_u32 v8, v9, 3, v8\nv_lshlrev_b32 v9, 2, v1")
            a("s_barrier")
            for m in range(4): a(f"ds_read_b64 v[{216+2*m}:{217+2*m}], v7 offset:{128*m}")
            a("s_waitcnt lgkmcnt(0)")
            for m in range(4):
                b = ACC + 4*m
                for r in range(4): a(f"v_fmac_f32 v{b+r}, v{CS+r}, v{216+2*m}\nv_mul_f32 v{b+r}, v{b+r}, v{217+2*m}")
                a(f"v_cvt_pk_bf16_f32 v{b}, v{b}, v{b+1}\nv_cvt_pk_bf16_f32 v{b+1}, v{b+2}, v{b+3}")
            a("s_cmp_lg_u32 s3, 0\ns_cbranch_scc1 K1_k2p")
            for m in range(4): a(f"ds_write_b64 v8, v[{ACC+4*m}:{ACC+4*m+1}] offset:{(m>>1)*1024 + (m&1)*256}")
            a("s_branch K1_kvst\nK1_k2p:\ns_mov_b64 exec, 0xffff")
            for m in range(4): a(f"ds_write_b32 v9, v{ACC+4*m} offset:{2048 + 64*m}")
            a("s_mov_b64 exec, -1\ns_branch K1_kvst")
        else:
            a(f"v_lshlrev_b32 v7, 5, v2\nv_add_u32 v7, {EX + 768}, v7")
            a("v_and_b32 v8, 1, v2\nv_mul_u32_u24 v8, 19, v8\nv_add_u32 v8, v8, v1\nv_lshlrev_b32 v8, 4, v8\nv_lshrrev_b32 v10, 1, v2\nv_lshl_add_u32 v8, v10, 3, v8")
            a("s_lshr_b32 s56, s3, 1\ns_lshl_b32 s56, s56, 8\nv_add_u32 v8, s56, v8\nv_cmp_eq_u32 s[54:55], 2, v1\nv_cmp_gt_u32 s[58:59], 3, v1\ns_nop 1")
            a("s_cmp_eq_u32 s3, 3\ns_cselect_b64 s[54:55], s[54:55], 0\ns_cselect_b64 s[58:59], s[58:59], -1")
            a("s_barrier")
            for m in range(4): a(f"ds_read_b128 v[{216+8*m}:{219+8*m}], v7 offset:{128*m}\nds_read_b128 v[{220+8*m}:{223+8*m}], v7 offset:{128*m+16}")
            a("s_waitcnt lgkmcnt(0)")
            for m in range(4):
                b = ACC + 4*m
                for r in range(4): a(f"v_fmac_f32 v{b+r}, v{CS}, v{216+8*m+2*r}\nv_mul_f32 v{b+r}, v{b+r}, v{217+8*m+2*r}")
                a(f"v_cvt_pk_bf16_f32 v{b}, v{b}, v{b+1}\nv_cvt_pk_bf16_f32 v{b+1}, v{b+2}, v{b+3}")
                a(f"v_cndmask_b32 v{b}, v{b}, v{ON}, s[54:55]\nv_cndmask_b32 v{b+1}, v{b+1}, v{ON}, s[54:55]")
            a("s_mov_b64 exec, s[58:59]")
            for m in range(4): a(f"ds_write_b64 v8, v[{ACC+4*m}:{ACC+4*m+1}] offset:{2304 + 608*m}")
            a("s_mov_b64 exec, -1")
    a("K1_kvst:")
    a("s_lshl_b32 s49, s3, 10\nv_lshlrev_b32 v3, 4, v0\nv_add_u32 v3, s49, v3\ns_waitcnt lgkmcnt(0)\ns_barrier")
    a("ds_read_b128 v[16:19], v3\nds_read_b128 v[20:23], v3 offset:1024\ns_waitcnt lgkmcnt(1)\nbuffer_store_dwordx4 v[16:19], v3, s[36:39], s48 offen sc1")
    a("s_waitcnt lgkmcnt(0)\ns_cmp_lg_u32 s3, 3\ns_cbranch_scc1 K1_fin\ns_mov_b32 exec_hi, 0xff\nbuffer_store_dwordx4 v[20:23], v3, s[36:39], s48 offen offset:1024 sc1\ns_mov_b64 exec, -1")
    a("s_branch K1_fin")
    a("K1_wbar:")
    for p in range(XA, 9): a(xdma())
    srd(a, 24, 12, 0, DM*DM*2)
    a("s_cmp_lt_u32 s44, 18\ns_cselect_b32 s26, s26, 0")
    a("s_cmp_ge_u32 s44, 16\ns_cbranch_scc1 K1_wb_hi")
    a("s_mul_i32 s50, s44, 36\ns_lshr_b32 s51, s3, 1\ns_mul_i32 s51, s51, 18\ns_add_u32 s50, s50, s51\ns_and_b32 s51, s3, 1\ns_lshl_b32 s51, s51, 2\ns_add_u32 s50, s50, s51")
    a("v_lshrrev_b32 v13, 2, v4\nv_lshlrev_b32 v13, 3, v13\nv_and_b32 v14, 3, v4\nv_add_u32 v13, v13, v14")
    a("s_branch K1_wb_go")
    a("K1_wb_hi:")
    a("s_sub_u32 s50, s44, 16\ns_mul_i32 s50, s50, 288\ns_mul_i32 s51, s3, 72\ns_add_u32 s50, s50, s51\ns_add_u32 s50, s50, 16")
    a("v_lshrrev_b32 v13, 1, v4\nv_mul_u32_u24 v13, 18, v13\nv_and_b32 v14, 1, v4\nv_add_u32 v13, v13, v14")
    a("K1_wb_go:")
    a(f"s_mul_i32 s50, s50, {DM*2}\nv_mul_u32_u24 v13, {DM*2}, v13\nv_lshl_add_u32 v13, v5, 4, v13")
    for i in range(9):
        a(f"buffer_load_dwordx4 v[{100+4*i}:{103+4*i}], v13, s[24:27], s50 offen offset:{128*i}")
    xaddr(66)
    ws_srd(a, 68, "XC", 14)
    ws_srd(a, 20, "WBAR", 14)
    a(f"v_lshlrev_b32 v3, 4, v0\ns_lshr_b32 s48, s46, 4\ns_mul_i32 s48, s48, 18432\ns_waitcnt vmcnt(9)")
    for ks in range(18): a(xrd(X0 + 4*ks, ks))
    a("s_waitcnt vmcnt(0)\ns_cmp_ge_u32 s44, 18\ns_cbranch_scc1 K1_xc")
    a(f"s_mov_b32 s56, {ONES}\nv_mov_b32 v6, 0\nv_mov_b32 v7, 0")
    for i in range(36):
        a(f"v_dot2_f32_bf16 v{6+i%2}, v{100+i}, s56, v{6+i%2}")
    a("s_nop 2\nv_add_f32 v6, v6, v7\ns_nop 1")
    for x in (1, 2, 4):
        a(f"ds_swizzle_b32 v7, v6 offset:{(x << 10) | 0x1f}\ns_waitcnt lgkmcnt(0)\nv_add_f32 v6, v6, v7")
    a(f"v_mul_f32 v6, {f32bits(1.0/DM)}, v6")
    a("v_cvt_pk_bf16_f32 v7, v6, v6\nv_lshlrev_b32 v8, 16, v7\nv_sub_f32 v8, v6, v8\nv_cvt_pk_bf16_f32 v8, v8, v8")
    a(f"s_lshl_b32 s47, s3, 8\nv_lshlrev_b32 v9, 5, v5\nv_lshl_add_u32 v9, v4, 1, v9\nv_add_u32 v9, s47, v9\nds_write_b16 v9, v7\nds_write_b16 v9, v8 offset:16")
    a("v_lshlrev_b32 v9, 2, v0\nv_add_u32 v10, s47, v9\nds_read_b32 v7, v10\ns_lshl_b32 s50, s44, 10\ns_add_u32 s50, s50, s47\ns_add_u32 s51, s50, 18432\ns_waitcnt lgkmcnt(0)")
    a("buffer_store_dword v7, v9, s[20:23], s50 offen sc1\nbuffer_store_dword v7, v9, s[20:23], s51 offen sc1")
    a("K1_xc:\ns_waitcnt lgkmcnt(0)")
    for ks in range(18):
        if ks and ks % 4 == 0: a("s_add_u32 s48, s48, 4096")
        a(f"buffer_store_dwordx4 {V4(X0+4*ks)}, v3, s[68:71], s48 offen offset:{(ks%4)*1024}{ST}")
    a("K1_fin:")

K2_GRID = 256
K2_LDS = 32 * PAIR + 9216
def k2(a, st, force_fallback=False):
    FB = WS["FLAG"][0]
    a(f"s_mov_b32 s3, s{SW}\ns_waitcnt lgkmcnt(0)")
    ws_srd(a, 36, "FLAG", 14)
    a(f"s_mul_i32 s{SE}, s{SE}, 0x9e3779b1\ns_add_u32 s{SE}, s{SE}, 0x7f4a7c15\nv_mov_b32 v4, s{SE}\nv_mov_b32 v5, 0\ns_lshl_b32 s45, s90, 7\ns_add_u32 s45, s45, {FL_AF}")
    st(19)
    a("s_waitcnt vmcnt(0)\ns_barrier")
    a("s_cmp_lg_u32 s3, 0\ns_cbranch_scc1 K2_naf\ns_mov_b64 exec, 1\nbuffer_store_dword v4, v5, s[36:39], s45 offen sc1\ns_mov_b64 exec, -1\nK2_naf:")
    a(f"s_setprio 0\ns_load_dwordx2 s[4:5], s[0:1], {K_OUT}\ns_load_dwordx4 s[8:11], s[0:1], {B_W1}")
    a("v_and_b32 v1, 31, v0\nv_lshrrev_b32 v2, 5, v0\nv_lshlrev_b32 v3, 4, v0")
    st(17)
    a("s_lshr_b32 s40, s2, 2\ns_and_b32 s41, s2, 3\ns_lshl_b32 s41, s41, 3\ns_add_u32 s41, s41, s3")
    a(f"s_mul_i32 s42, s2, 9216\ns_lshl_b32 s43, s3, 10\ns_add_u32 s42, s42, s43\ns_add_u32 s43, s43, {32*PAIR}")
    a("s_lshl_b32 s44, s3, 10")
    ws_srd(a, 16, "KV", 14)
    ws_srd(a, 20, "Q", 14)
    Q1, Q2 = 8, 12
    def dma(r):
        txt = f"s_mov_b32 m0, s44\ns_nop 0\nbuffer_load_dwordx4 v3, s[16:19], s44 offen sc1 lds\ns_add_u32 s44, s44, 8192"
        if r == 18:
            L = a.label("dm")
            txt = f"s_cmp_ge_u32 s3, 4\ns_cbranch_scc1 {L}\n{txt}\n{L}:"
        return txt
    a("s_and_b32 s45, s2, 3\ns_mul_i32 s45, s45, 3\ns_lshr_b32 s45, s45, 1\ns_lshl_b32 s45, s45, 5\ns_lshr_b32 s46, s2, 3\ns_add_u32 s45, s45, s46")
    a("v_add_u32 v30, 192, v0\nv_lshlrev_b32 v31, 5, v1\nv_add_u32 v31, s45, v31\nv_cmp_gt_u32 vcc, 32, v0\ns_nop 1\nv_cndmask_b32 v30, v31, v30, vcc\nv_lshlrev_b32 v30, 7, v30")
    a(f"s_mov_b32 s45, {FL_AF}")
    if OPT.get("a_one", True):
        a("s_cmp_lg_u32 s3, 1\ns_cbranch_scc1 K2_np")
        poll(a, 34, 30, 36, 45, 31, OPT.get("a_slp", 2))
        a("K2_np:\ns_barrier")
    else:
        poll(a, 34, 30, 36, 45, 31, OPT.get("a_slp", 2))
    st(18)
    a("s_cmp_lg_u32 s3, 0\ns_cbranch_scc1 K2_q1")
    a(f"s_mov_b32 m0, {32*PAIR + 8192}\ns_add_u32 s45, s42, 8192\nbuffer_load_dwordx4 v3, s[20:23], s45 offen sc1 lds")
    a("K2_q1:")
    a("s_mov_b32 m0, s43\ns_nop 0\nbuffer_load_dwordx4 v3, s[20:23], s42 offen sc1 lds")
    a(dma(0)); a(dma(1)); a(dma(2))
    a(f"v_mov_b32 v{Q2+1}, 0")
    ws_srd(a, 24, "O", 14)
    a(f"v_lshrrev_b32 v4, 4, v1\nv_mul_u32_u24 v4, 4608, v4\nv_and_b32 v5, 15, v1\nv_lshl_add_u32 v4, v5, 3, v4\nv_add_u32 v4, {32*PAIR}, v4")
    a("s_mul_i32 s45, s3, 9\nv_lshlrev_b32 v5, 2, v2\nv_add_u32 v5, s45, v5")
    for i in range(5):
        if i < 4: a(f"v_add_u32 v30, {i}, v5")
        else: a("s_add_u32 s45, s45, 8\nv_mov_b32 v30, s45")
        a(f"v_lshrrev_b32 v31, 1, v30\nv_lshl_add_u32 v31, v31, 7, v4\nv_and_b32 v30, 1, v30\nv_lshl_add_u32 v{25+i}, v30, 2, v31")
    SEG = 13
    VKA, VK2, VVA = 14, 17, 20
    a(f"v_mul_u32_u24 v23, 19, v2\nv_add_u32 v23, v23, v1\nv_lshlrev_b32 v23, 4, v23\nv_mov_b32 v24, 0x40000\nv_cmp_gt_u32 vcc, 19, v1\ns_nop 1\nv_cndmask_b32 v{VVA}, v24, v23, vcc")
    a(f"v_mov_b32 v{VKA}, v3\nv_lshlrev_b32 v{VK2}, 2, v0")
    for b in (VKA, VK2, VVA):
        a(f"v_add_u32 v{b+1}, {SEG*PAIR}, v{b}\nv_add_u32 v{b+2}, {2*SEG*PAIR}, v{b}")
    SA, SB, P, O, NM = 32, 64, 96, 112, 128
    KF, K2F, VF = 144, 160, 164
    FOLD = OPT.get("fold", True)
    a(f"v_mov_b32 v{K2F+1}, {ONES if FOLD else 0}\nv_mov_b32 v{K2F+3}, {ONES if FOLD else 0}")
    for r in range(16): a(f"v_mov_b32 v{O+r}, 0")
    rp = Repack(a)
    def w3(txt):
        L = a.label("w3")
        return (f"s_cmp_lt_u32 s3, 5" if OPT.get("w3hi", True) else f"s_cmp_ge_u32 s3, 3") + f"\ns_cbranch_scc1 {L}\n{txt}\n{L}:"
    def seg(p): return p // SEG, (p % SEG) * PAIR
    def rdK(i, p):
        sg, o = seg(p)
        return [f"ds_read_b128 v[{KF+8*i}:{KF+8*i+3}], v{VKA+sg} offset:{o}",
                f"ds_read_b128 v[{KF+8*i+4}:{KF+8*i+7}], v{VKA+sg} offset:{o+1024}",
                f"ds_read_b32 v{K2F+2*i}, v{VK2+sg} offset:{o+2048}"]
    def rdV(i, p):
        sg, o = seg(p)
        return [f"ds_read_b128 v[{VF+16*i+4*q}:{VF+16*i+4*q+3}], v{VVA+sg} offset:{o+2304+608*q}" for q in range(4)]
    def qk(S, i, c):
        return [f"v_mfma_f32_32x32x16_bf16 v[{S}:{S+15}], v[{KF+8*i}:{KF+8*i+3}], v[{Q1}:{Q1+3}], {c}",
                f"v_mfma_f32_32x32x16_bf16 v[{S+16}:{S+31}], v[{KF+8*i+4}:{KF+8*i+7}], v[{Q1}:{Q1+3}], {c}",
                f"v_mfma_f32_32x32x4_2b_bf16 v[{S}:{S+31}], v[{K2F+2*i}:{K2F+2*i+1}], v[{Q2}:{Q2+1}], v[{S}:{S+31}]"]
    def pvm(vs_, u):
        return f"v_mfma_f32_32x32x16_bf16 v[{O}:{O+15}], v[{VF+16*vs_+4*u}:{VF+16*vs_+4*u+3}], v[{P+4*u}:{P+4*u+3}], v[{O}:{O+15}]"
    def rowmax(S, dst, first):
        L = []; r = 0
        if first:
            L.append(f"v_max_f32 v{dst}, v{S}, v{S+1}"); r = 2
        while r < 32:
            L.append(f"v_max3_f32 v{dst}, v{S+r}, v{S+r+1}, v{dst}"); r += 2
        return L
    def set_nm(src):
        a(f"v_mov_b32 v25, v{src}\ns_nop 1\nv_permlane32_swap_b32 v{src}, v25\ns_nop 1\nv_max_f32 v{src}, v{src}, v25")
        for r in range(16): a(f"v_sub_f32 v{NM+r}, 0, v{src}")
    def E(cur, g):
        b = cur + 4 * g
        return [f"v_exp_f32 v{b+r}, v{b+r}" for r in range(4)] + \
               [f"v_cvt_pk_bf16_f32 v{P+2*g}, v{b}, v{b+1}", f"v_cvt_pk_bf16_f32 v{P+2*g+1}, v{b+2}, v{b+3}"]
    NMr = f"v[{NM}:{NM+15}]"
    nt_ = " nt" if OPT["k2_nt"] else ""
    def uidx(rnd):
        t = ("" if rnd else ffn_map(34, 35)) + f"s_mov_b32 s45, s34\ns_mul_i32 s47, s35, 11\ns_add_u32 s47, s47, s3\n"
        if rnd: t += "s_add_u32 s47, s47, 3\ns_cmp_lt_u32 s3, 5\ns_cselect_b32 s47, 400, s47\n"
        return t
    a("s_waitcnt lgkmcnt(0)")
    RPS = [rp.common() + "\n" + uidx(0) + rp.setup_ffn(0, 8, 10), uidx(1) + rp.setup_ffn(1, 8, 10)]
    if OPT.get("rps", 1) == 0: a(RPS[0]); a(RPS[1])
    if OPT["prio"]: a("s_setprio 1")
    st(0)
    a("s_waitcnt vmcnt(2)\ns_barrier")
    st(1)
    for i in range(5): a(f"ds_read_b32 v{Q1+i}, v{25+i}")
    for x in rdK(0, 0) + rdK(1, 1) + rdV(0, 0): a(x)
    a("s_waitcnt lgkmcnt(7)")
    q = qk(SA, 0, "0")
    a(q[0]); a(q[1]); a("s_nop 9"); a(q[2]); a("s_nop 15\ns_nop 3")
    for x in rowmax(SA, 24, True): a(x)
    if force_fallback:
        a(f"v_add_f32 v24, {f32bits(-100.0)}, v24")
    if FOLD:
        a("v_mov_b32 v25, v24\ns_nop 1\nv_permlane32_swap_b32 v24, v25\ns_nop 1\nv_max_f32 v24, v24, v25")
        a(f"v_cvt_pk_bf16_f32 v25, -v24, -v24\nv_mov_b32 v{NM}, 0\nv_lshlrev_b32 v26, 16, v25\nv_sub_f32 v26, -v24, v26\nv_cvt_pk_bf16_f32 v{Q2+1}, -v24, v26\nv_cvt_pk_bf16_f32 v{NM+1}, -v24, v26\ns_nop 1")
        a(f"v_mfma_f32_32x32x4_2b_bf16 v[{SA}:{SA+31}], v[{K2F}:{K2F+1}], v[{NM}:{NM+1}], v[{SA}:{SA+31}]\ns_nop 15\ns_nop 1")
    else:
        set_nm(24)
        for r in range(32): a(f"v_add_f32 v{SA+r}, v{SA+r}, v{NM}")
    st(2)
    extra = {i: [] for i in range(32)}
    pre = {i: [] for i in range(32)}
    r = 3
    for i in range(8):
        extra[i] += [dma(r), dma(r + 1)]; r += 2
    pre[0].append("s_waitcnt vmcnt(0)\ns_barrier"); pre[3].append("s_waitcnt vmcnt(2)\ns_barrier"); pre[9].append(f"v_mov_b32 v196, 0\nv_mov_b32 v197, 0\nv_mov_b32 v198, 0\nv_mov_b32 v199, 0\nv_mov_b32 v200, {ffn.CNT}\nds_write_b128 v200, v[196:199]\nds_write_b128 v200, v[196:199] offset:16\nds_write_b128 v200, v[196:199] offset:32\ns_waitcnt vmcnt(0) lgkmcnt(0)\ns_barrier")
    for n in range(8):
        if OPT.get("rp1", False):
            extra[9 + n].append(rp.load(0, n, nt_)); extra[9 + n].append(w3(rp.load(1, n, nt_)))
        else:
            extra[9 + n // 2].append(rp.load(0, n, nt_))
            extra[13 + n // 2].append(w3(rp.load(1, n, nt_)))
    if OPT.get("rps", 1) == 1: pre[6].append(RPS[0]); pre[7].append(RPS[1])
    ST0 = OPT.get("k2_st0", 21)
    pre[ST0].append("s_waitcnt vmcnt(0)")
    for n in range(4):
        extra[ST0 + n // 2].append(rp.store(0, n, " sc1"))
        extra[ST0 + 2 + n // 2].append(w3(rp.store(1, n, " sc1")))
    pre[ST0 + 7].append("s_waitcnt vmcnt(0)")
    extra[ST0 + 7].append(f"s_lshl_b32 s45, s34, 8\ns_lshl_b32 s46, s35, 3\ns_add_u32 s45, s45, s46\ns_add_u32 s45, s45, s3\ns_lshl_b32 s45, s45, 2\ns_add_u32 s45, s45, {FL_RF}\n"
                          f"v_mov_b32 v206, s{SE}\nv_mov_b32 v207, 0\ns_mov_b64 exec, 1\nbuffer_store_dword v206, v207, s[36:39], s45 offen sc1\ns_mov_b64 exec, -1")
    if OPT.get("k2_touch", True):
        extra[ST0 + 7].append(rp.touch(0)); extra[ST0 + 8].append(w3(rp.touch(1)))
    extra[8].append(f"s_mov_b32 s45, {FL_AF + 224*128}\nv_lshlrev_b32 v206, 7, v1\nbuffer_load_dword v205, v206, s[36:39], s45 offen sc1")
    tmp = Asm(); tmp.uid = 9000
    poll(tmp, 32, 206, 36, 45, 205, 2, first_loaded=True)
    pre[9].append(tmp.text())
    EW = OPT.get("wo_early", 10)
    if EW:
        wo0, wosz = WS["WOF"]
        pre[22].append(f"s_lshr_b32 s77, s2, 5\ns_add_u32 s20, s14, {wo0}\ns_addc_u32 s21, s15, 0\ns_mov_b32 s22, {wosz}\ns_mov_b32 s23, 0x00020000\n"
                       f"s_lshl_b32 s32, s3, 10\ns_mul_i32 s33, s77, {108*1024}\ns_add_u32 s33, s33, s32\ns_waitcnt lgkmcnt(0)\ns_barrier")
        nb_ = 0
        for i in list(range(25, 32)) + list(range(22, 32)):
            if nb_ < EW and len(extra[i]) < 2:
                extra[i].append("s_mov_b32 m0, s32\ns_add_u32 s32, s32, 8192\nbuffer_load_dwordx4 v3, s[20:23], s33 offen sc1 lds\ns_add_u32 s33, s33, 8192"); nb_ += 1
        assert nb_ == EW
    if OPT.get("wo_touch", True):
        L = a.label("wt")
        wb0 = WS["WBAR"][0]; wsz = WS["WOF"][0] + WS["WOF"][1] - wb0
        extra[19].append(f"s_sub_u32 s56, s3, 3\ns_cmp_ge_u32 s56, 3\ns_cbranch_scc1 {L}\ns_lshr_b32 s57, s2, 3\ns_mul_i32 s57, s57, 3\ns_add_u32 s56, s56, s57\ns_lshl_b32 s56, s56, 13\n"
                         f"s_add_u32 s28, s14, {wb0}\ns_addc_u32 s29, s15, 0\ns_mov_b32 s30, {wsz}\ns_mov_b32 s31, 0x00020000\nv_lshlrev_b32 v206, 7, v0\nbuffer_load_dword v205, v206, s[28:31], s56 offen sc1\n{L}:")
    if OPT["codepf"]:
        L = a.label("cp")
        extra[18].append(f"s_lshr_b32 s56, s2, 3\ns_cmp_ge_u32 s56, CODE_PF_N\ns_cbranch_scc1 {L}\ns_cmp_lg_u32 s3, 0\ns_cbranch_scc1 {L}\n"
                         f"s_getpc_b64 s[58:59]\n{L}_pc:\ns_add_u32 s58, s58, K2_out-{L}_pc\ns_addc_u32 s59, s59, 0\n"
                         f"s_lshl_b32 s56, s56, 13\nv_lshlrev_b32 v206, 7, v0\nv_add_u32 v206, s56, v206\nv_min_u32 v206, CODE_END-K2_out-4, v206\nglobal_load_dword v205, v206, s[58:59]\n{L}:")
    for i in range(32):
        cur, nxt = (SA, SB) if i % 2 == 0 else (SB, SA)
        q = qk(nxt, (i + 1) % 2, "0" if FOLD else NMr) if i < 31 else ["", "", ""]
        vs_ = i % 2
        kr = rdK(i % 2, i + 2) if i + 2 < 32 else ["", "", ""]
        vrd = rdV((i + 1) % 2, i + 1) if i < 31 else [""] * 4
        e = [E(cur, g) for g in range(8)]
        ex = extra[i] + ["", ""]
        seq = list(pre[i])
        PP = OPT.get("pp", 4)
        if OPT["prio"] and i % PP in (0, OPT["prio"]):
            L = a.label("pr")
            seq.append(f"s_cmp_lt_u32 s3, 4\ns_cbranch_scc1 {L}\ns_setprio {2 if i % PP == 0 else 0}\n{L}:")
        seq += ["s_waitcnt lgkmcnt(0)", q[0]] + kr[0:2] + e[0]
        seq += [pvm(1 - vs_, 3) if i > 0 else ""] + kr[2:3] + vrd[0:1] + e[1]
        seq += [q[1]] + vrd[1:3] + e[2]
        seq += [pvm(vs_, 0)] + vrd[3:4] + e[3]
        seq += [q[2], ex[0]] + e[4] + e[5][:3]
        seq += [pvm(vs_, 1), ex[1]] + e[5][3:] + e[6][:2]
        seq += [pvm(vs_, 2)] + e[6][2:] + e[7]
        for x in seq:
            if x: a(x)
        if i % 8 == 7: st(3 + i // 8)
    a("s_nop 1"); a(pvm(1, 3))
    a("s_setprio 0\ns_nop 15")
    def bcast_l():
        a(f"v_mov_b32 v25, v{O+10}\nv_mov_b32 v26, v{O+10}\ns_nop 1\nv_permlane32_swap_b32 v25, v26\ns_nop 1")
    bcast_l()
    a(f"v_mov_b32 v26, {f32bits(2.0**60)}\nv_cmp_nle_f32 vcc, v25, v26\nv_mov_b32 v26, {f32bits(2.0**-60)}\nv_cmp_lt_f32 s[52:53], v25, v26\ns_nop 4\ns_or_b64 vcc, vcc, s[52:53]\ns_cbranch_scc0 K2_out")
    a(f"v_mov_b32 v24, 0xff800000\nv_mov_b32 v{Q2+1}, 0")
    for ps in range(2):
        a(f"s_mov_b32 s52, 0\nv_mov_b32 v27, v{VKA}\nv_mov_b32 v28, v{VK2}\nv_mov_b32 v29, v{VVA}")
        a(f"K2_fb{ps}:")
        a(f"buffer_load_dwordx4 v[{KF}:{KF+3}], v27, s[16:19], 0 offen sc1\nbuffer_load_dwordx4 v[{KF+4}:{KF+7}], v27, s[16:19], 0 offen offset:1024 sc1\nbuffer_load_dword v{K2F}, v28, s[16:19], 0 offen offset:2048 sc1")
        if ps:
            a("s_movk_i32 s53, 2304")
            for u in range(4): a(f"buffer_load_dwordx4 v[{VF+4*u}:{VF+4*u+3}], v29, s[16:19], s53 offen offset:{608*u} sc1")
        a("s_waitcnt vmcnt(0)")
        q = qk(SA, 0, NMr if ps else "0")
        a(q[0]); a(q[1]); a("s_nop 9"); a(q[2]); a("s_nop 15\ns_nop 3")
        if ps == 0:
            for x in rowmax(SA, 24, False): a(x)
        else:
            for g in range(8):
                for x in E(SA, g): a(x)
            a("s_nop 1")
            for u in range(4): a(pvm(0, u))
        a(f"v_add_u32 v27, {PAIR}, v27\nv_add_u32 v28, {PAIR}, v28\nv_add_u32 v29, {PAIR}, v29")
        a(f"s_add_u32 s52, s52, 1\ns_cmp_lt_u32 s52, 32\ns_cbranch_scc1 K2_fb{ps}")
        if ps == 0:
            set_nm(24)
            for r in range(16): a(f"v_mov_b32 v{O+r}, 0")
    a("s_nop 15")
    bcast_l()
    a("K2_out:")
    WR, XR, ACC, XRES = 12, 40, 112, 140
    a("s_lshr_b32 s77, s2, 5\ns_and_b32 s78, s2, 7\ns_lshl_b32 s78, s78, 2\ns_bfe_u32 s43, s2, 0x20003\ns_add_u32 s78, s78, s43")
    a("s_cmp_ge_u32 s3, 4\ns_cbranch_scc1 K2_noearly")
    a("s_lshl_b32 s46, s78, 2\ns_add_u32 s46, s46, s3")
    ws_srd(a, 48, "MEAN1", 14)
    ws_srd(a, 52, "XC", 14)
    a(f"s_mul_i32 s47, s77, 3072\ns_mul_i32 s30, s46, 18432\ns_add_u32 s47, s47, s30")
    for u in range(3):
        a(f"buffer_load_dwordx4 v[{XRES+4*u}:{XRES+4*u+3}], v3, s[52:55], s47 offen offset:{1024*u} sc1")
    a(f"v_and_b32 v166, 15, v0\nv_lshlrev_b32 v166, 2, v166\ns_lshl_b32 s65, s46, 6\nbuffer_load_dword v165, v166, s[48:51], s65 offen sc1")
    a("K2_noearly:")
    a(f"s_lshl_b32 s43, s34, 10\ns_add_u32 s43, s43, {FL_RF}\nbuffer_load_dwordx4 v[160:163], v3, s[36:39], s43 offen sc1")
    a(f"v_rcp_f32 v25, v25\ns_nop 0")
    for r in range(10): a(f"v_mul_f32 v{O+r}, v{O+r}, v25")
    for r in range(5): a(f"v_cvt_pk_bf16_f32 v{P+r}, v{O+2*r}, v{O+2*r+1}")
    a(f"v_lshrrev_b32 v26, 4, v1\nv_mul_u32_u24 v27, {18*1024}, v26\nv_and_b32 v28, 15, v1\nv_lshl_add_u32 v27, v28, 4, v27\nv_lshl_add_u32 v27, v2, 8, v27")
    a(f"s_mul_i32 s42, s40, {36*1024}\ns_lshl_b32 s43, s41, 9\ns_add_u32 s43, s43, s42")
    a(f"buffer_store_dwordx4 v[{P}:{P+3}], v27, s[24:27], s43 offen sc1")
    OSC = 32 * PAIR + 1024
    a(f"s_lshr_b32 s43, s3, 2\ns_lshl_b32 s43, s43, 8\ns_and_b32 s44, s3, 3\ns_lshl_b32 s44, s44, 2\ns_add_u32 s43, s43, s44\ns_add_u32 s43, s43, {OSC}")
    a(f"v_lshlrev_b32 v26, 9, v26\nv_lshl_add_u32 v26, v28, 4, v26\nv_add_u32 v26, s43, v26\ns_mov_b64 exec, 0xffffffff\nds_write_b32 v26, v{P+4}\ns_mov_b64 exec, -1")
    a(f"v_mov_b32 v172, {ffn.CNT}\nv_mov_b32 v8, 1\nv_mov_b32 v9, 0\nv_mov_b32 v174, s{SE}\ns_lshl_b32 s79, s2, 7\ns_add_u32 s79, s79, {FL_OF}")
    a(f"v_add_u32 v4, {OSC}, v3\nv_mul_u32_u24 v5, {18*1024}, v2\nv_lshl_add_u32 v5, v1, 4, v5")
    a("s_and_b32 s43, s2, 3\ns_lshl_b32 s43, s43, 9\ns_add_u32 s43, s43, s42\ns_add_u32 s43, s43, 16384")
    a("s_waitcnt lgkmcnt(0)\ns_barrier")
    st(7)
    a("s_cmp_lg_u32 s3, 0\ns_cbranch_scc1 K3_norem")
    a("ds_read_b128 v[12:15], v4\ns_waitcnt lgkmcnt(0)\nbuffer_store_dwordx4 v[12:15], v5, s[24:27], s43 offen sc1")
    a("K3_norem:")
    a("v_lshlrev_b32 v2, 4, v0\ns_mov_b32 s40, s77\ns_mov_b32 s41, s78")
    a("s_waitcnt vmcnt(0)\ns_mov_b64 exec, 1\nds_add_rtn_u32 v168, v172, v8 offset:36\ns_waitcnt lgkmcnt(0)\nv_readfirstlane_b32 s70, v168\ns_cmp_lg_u32 s70, 7\ns_cbranch_scc1 K3_nofl")
    a("buffer_store_dword v174, v9, s[36:39], s79 offen sc1\nK3_nofl:\ns_mov_b64 exec, -1")
    a("s_cmp_ge_u32 s3, 4\ns_cbranch_scc1 K3_loader")
    a("v_add_u32 v3, 0x10000, v2\nv_add_u32 v4, 0x20000, v2\nv_and_b32 v5, 15, v0\nv_lshrrev_b32 v6, 4, v0\nv_lshlrev_b32 v7, 7, v0")
    a("v_lshlrev_b32 v11, 2, v5\nv_mov_b32 v10, v165")
    st(8)
    a("s_cmp_ge_u32 s40, 6\ns_cbranch_scc1 K4_compute")
    a(f"s_lshl_b32 s43, s41, 3\ns_lshr_b32 s44, s3, 1\ns_lshl_b32 s44, s44, 2\ns_add_u32 s43, s43, s44\ns_lshl_b32 s43, s43, 7\ns_add_u32 s43, s43, {FL_OF}")
    ws_srd(a, 52, "HC", 14)
    ws_srd(a, 56, "MU2", 14)
    ws_srd(a, 60, "SS", 14)
    a("s_barrier")
    st(13)
    for j in range(7):
        off = j * 1024 if j < 6 else 108 * 1024
        a(f"ds_read_b128 v[{12+4*j}:{15+4*j}], v{2 + off // 65536} offset:{off % 65536}")
    poll(a, 4, 7, 36, 43, 164, 1)
    st(9)
    a("s_mul_i32 s44, s40, 3072")
    def oload(ks):
        t = ""
        if ks % 3 == 0:
            t = "s_add_u32 s45, s30, s44\ns_add_u32 s44, s44, 3072\ns_cmp_eq_u32 s44, 18432\ns_cselect_b32 s44, 0, s44\n"
        return t + f"buffer_load_dwordx4 v[{XR+4*ks}:{XR+4*ks+3}], v2, s[24:27], s45 offen offset:{(ks%3)*1024} sc1"
    OD = OPT.get("k3_od", 6)
    for ks in range(OD): a(oload(ks))
    st(10)
    def wread(ks, j):
        off = (ks * 6 + j) * 1024 if j < 6 else (108 + ks) * 1024
        return f"ds_read_b128 v[{WR+4*j}:{WR+4*j+3}], v{2 + off // 65536} offset:{off % 65536}"
    nl = OD
    for ks in range(18):
        for j in range(7):
            a((f"s_waitcnt vmcnt({nl-1-ks}) " if j == 0 else "s_waitcnt ") + f"lgkmcnt({6 if ks < 17 else 6-j})")
            c = "0" if ks == 0 else f"v[{ACC+4*j}:{ACC+4*j+3}]"
            a(f"v_mfma_f32_16x16x32_bf16 v[{ACC+4*j}:{ACC+4*j+3}], v[{WR+4*j}:{WR+4*j+3}], v[{XR+4*ks}:{XR+4*ks+3}], {c}")
            if ks < 17: a(wread(ks + 1, j))
            if j in (1, 4) and nl < 18:
                a(oload(nl)); nl += 1
    a("s_barrier")
    st(11)
    e = ACC + 24
    a(f"s_nop 6\nv_add_f32 v10, v10, v{e}\nv_add_f32 v10, v10, v{e+1}\nv_mov_b32 v14, 0")
    for u in range(3):
        for r in range(4):
            x = XRES + 4 * u + r
            lo, hi = ACC + 8 * u + r, ACC + 8 * u + 4 + r
            a(f"v_lshlrev_b32 v12, 16, v{x}\nv_and_b32 v13, 0xffff0000, v{x}")
            a(f"v_add_f32 v{lo}, v{lo}, v12\nv_add_f32 v{hi}, v{hi}, v13")
            a(f"v_sub_f32 v{lo}, v{lo}, v10\nv_sub_f32 v{hi}, v{hi}, v10")
            a(f"v_cvt_pk_bf16_f32 v{XR+4*u+r}, v{lo}, v{hi}")
        a(f"buffer_store_dwordx4 v[{XR+4*u}:{XR+4*u+3}], v2, s[52:55], s47 offen offset:{1024*u} sc1")
    for i in range(12): a(f"v_dot2_f32_bf16 v14, v{XR+i}, v{XR+i}, v14")
    a("s_nop 2")
    sum_g(a, 14, 12)
    a("s_lshl_b32 s43, s41, 3\ns_add_u32 s43, s43, s40\ns_lshl_b32 s43, s43, 8\ns_lshl_b32 s44, s3, 6\ns_add_u32 s43, s43, s44\ns_mov_b64 exec, 0xffff")
    a("buffer_store_dword v14, v11, s[60:63], s43 offen sc1")
    a("s_cmp_lg_u32 s40, 0\ns_cbranch_scc1 K3_nomu\nbuffer_store_dword v10, v11, s[56:59], s65 offen sc1\nK3_nomu:")
    a(f"s_lshl_b32 s43, s46, 3\ns_add_u32 s43, s43, s40\ns_lshl_b32 s43, s43, 7\ns_add_u32 s43, s43, {FL_HF}")
    a("s_waitcnt vmcnt(0)\ns_mov_b64 exec, 1\nbuffer_store_dword v174, v9, s[36:39], s43 offen sc1\ns_mov_b64 exec, -1")
    st(12)
    a("s_branch K4_compute")
    a("K3_loader:")
    a(f"v_mov_b32 v4, {ffn.CNT}")
    a("s_sub_u32 s33, s3, 4\ns_cmp_ge_u32 s40, 6\ns_cbranch_scc1 K3_pf")
    ws_srd(a, 20, "WOF", 14)
    ws_srd(a, 68, "WBAR", 14)
    a(f"s_lshl_b32 s76, s33, 10\ns_mul_i32 s75, s40, {108*1024}\ns_add_u32 s74, s76, {EW*8192}\ns_add_u32 s75, s75, s74")
    a("s_mul_i32 s77, s40, 3072\ns_add_u32 s76, s76, s77")
    for i in range(2*EW, 32):
        sd, so = ((20, 75) if i < 27 else (68, 76))
        a(f"s_mov_b32 m0, s74\ns_add_u32 s74, s74, 4096\nbuffer_load_dwordx4 v2, s[{sd}:{sd+3}], s{so} offen sc1 lds\ns_add_u32 s{so}, s{so}, 4096")
    a("s_waitcnt vmcnt(0)\ns_barrier")
    a("K3_pf:")
    a("s_cmp_ge_u32 s40, 6\ns_cbranch_scc1 K4_helper\ns_barrier\ns_branch K4_helper")
    k4(a, st)
    a("s_endpgm\nCODE_END:")
    return kernel_desc(NAME + "_kernel", 256)

def rf_check(a, first_loaded):
    L = a.label("rf")
    a(f"s_lshl_b32 s43, s34, 10\ns_add_u32 s43, s43, {FL_RF}\ns_mov_b32 s73, 0x8000" + (f"\ns_branch {L}_1" if first_loaded else ""))
    a(f"{L}:\nbuffer_load_dwordx4 v[160:163], v2, s[36:39], s43 offen sc1\ns_waitcnt vmcnt(0)\n{L}_1:\nv_xor_b32 v12, s{SE}, v160\nv_xor_b32 v13, s{SE}, v161\nv_xor_b32 v14, s{SE}, v162\nv_or3_b32 v12, v12, v13, v14\nv_xor_b32 v13, s{SE}, v163\nv_or_b32 v12, v12, v13\nv_cmp_eq_u32 vcc, 0, v12\ns_nop 1")
    a(f"s_cmp_eq_u64 vcc, -1\ns_cbranch_scc1 {L}_ok\ns_sleep 2\ns_sub_u32 s73, s73, 1\ns_cbranch_scc0 {L}\n{L}_ok:")
def h_bases(a, sw):
    a("v_add_u32 v3, 0x10000, v2\nv_add_u32 v4, 0x20000, v2")
    a(f"s_mul_i32 s42, s{sw}, 3\ns_lshr_b32 s43, s42, 1\ns_lshl_b32 s43, s43, 12\ns_and_b32 s44, s42, 1\ns_lshl_b32 s45, s44, 3\ns_add_u32 s43, s43, s45\ns_add_u32 s43, s43, {ffn.HB}")
    a("v_add_u32 v5, s43, v2")
    a("s_mul_i32 s45, s44, 4080\ns_add_u32 s45, s45, 8\nv_add_u32 v6, s45, v5")
def k4(a, st0):
    st = lambda i: st0(20 + i)
    a("K4_compute:\ns_mov_b32 s40, s34\ns_mov_b32 s41, s35")
    rf_check(a, True)
    a(f"s_lshl_b32 s46, s40, 2\ns_add_u32 s46, s46, s3\ns_mul_i32 s31, s46, {WST()*1024}")
    ws_srd(a, 20, "WF", 14)
    cs = ffn.Stream(a, PAT(), srdW=20, sW=31, v_lane16=2, v_h8=5, v_p=7, v_one=10, ACC=16, XF=112, TMP=160, RB=176,
                    RINGF=min(OPT.get('ring', 20), 19 if st0.on else 20), stamp=st, wflag=OPT.get('wflag', ' sc1'))
    cs.prefill(min(cs.RINGF, OPT.get("k4_pre", 18)))
    a("s_setprio 2")
    h_bases(a, 3)
    a("v_and_b32 v12, 15, v0\nv_lshrrev_b32 v13, 4, v0\ns_lshr_b32 s45, s3, 1\nv_lshl_add_u32 v13, v13, 1, s45\nv_and_b32 v14, 7, v0\nv_xor_b32 v13, v13, v14")
    a("s_and_b32 s45, s3, 1\ns_lshl_b32 s45, s45, 3\nv_lshl_add_u32 v13, v13, 4, s45\nv_lshl_add_u32 v7, v12, 7, v13\nv_add_u32 v8, 0x8000, v7")
    a(f"v_mov_b32 v10, 1\nv_mov_b32 v11, {ffn.CNT}")
    cs.run()
    LASTP = OPT.get("lastp", True)
    if LASTP:
        a("s_waitcnt lgkmcnt(0)\nv_readfirstlane_b32 s70, v175\ns_mov_b32 s33, 8\ns_cmp_eq_u32 s70, 3\ns_cbranch_scc1 K4_pubs")
    a("s_branch K4_work")
    PB, AC = 48, 112
    a("K4_helper:")
    a(f"s_setprio {OPT.get('k4_hprio', 0)}\ns_mov_b32 s40, s34\ns_mov_b32 s41, s35")
    a(f"s_mul_i32 s30, s41, 73728\ns_mul_i32 s90, s33, 18432\ns_add_u32 s30, s30, s90")
    ws_srd(a, 16, "HC", 14)
    a(f"s_lshl_b32 s43, s41, 2\ns_add_u32 s43, s43, s33\ns_lshl_b32 s43, s43, 10\ns_add_u32 s43, s43, {FL_HF}\nv_lshlrev_b32 v12, 7, v0")
    poll(a, 6, 12, 36, 43, 13, 1)
    st(9)
    for i in range(18):
        if i % 4 == 0: a("s_mov_b32 m0, s90\ns_add_u32 s90, s90, 4096")
        a(f"buffer_load_dwordx4 v2, s[16:19], s30 offen offset:{(i%4)*1024} sc1 lds")
        if i % 4 == 3: a("s_add_u32 s30, s30, 4096")
        if i >= 5 and i % 3 == 2: a("s_waitcnt vmcnt(3)\ns_barrier")
    a("s_waitcnt vmcnt(0)\ns_barrier")
    a("s_cmp_lg_u32 s2, 0\ns_cbranch_scc1 K4_nep\ns_cmp_lg_u32 s33, 3\ns_cbranch_scc1 K4_nep\ns_mov_b32 s74, s34\ns_mov_b32 s34, 0\nK4_epl:")
    rf_check(a, False)
    a(f"s_add_u32 s34, s34, 1\ns_cmp_lt_u32 s34, 8\ns_cbranch_scc1 K4_epl\ns_mov_b32 s34, s74\nv_mov_b32 v13, s{SE}\nv_mov_b32 v14, 0")
    ws_srd(a, 52, "EP", 14)
    a("s_mov_b64 exec, 1\nbuffer_store_dword v13, v14, s[52:55], 0 offen sc1\ns_mov_b64 exec, -1\nK4_nep:")
    for i in range(ffn.N_BARRIERS_AFTER_X): a("s_barrier")
    NPUB = OPT.get("npub", 2)
    a(f"s_cmp_ge_u32 s33, {NPUB}\ns_cbranch_scc1 K4_work")
    def wait_cnt(L, slp):
        a(f"s_mov_b32 s72, 0x40000\n{L}:\nds_read_b32 v3, v4\ns_waitcnt lgkmcnt(0)\nv_readfirstlane_b32 s70, v3\ns_cmp_eq_u32 s70, 4\ns_cbranch_scc1 {L}_ok\ns_sleep {slp}\ns_sub_u32 s72, s72, 1\ns_cbranch_scc0 {L}\n{L}_ok:")
    SWZ = "v_lshrrev_b32 v5, 3, v0\nv_and_b32 v6, 7, v0\nv_xor_b32 v7, v5, v6\nv_lshlrev_b32 v7, 4, v7\nv_lshl_add_u32 v7, v5, 7, v7"
    a("K4_pubs:")
    ws_srd(a, 24, "PART", 14)
    a("s_mov_b32 s42, s33"); a(SWZ)
    a(f"s_lshl_b32 s44, s42, 13\nv_add_u32 v7, s44, v7\ns_lshl_b32 s44, s42, 2\ns_add_u32 s44, s44, {ffn.CNT}\nv_mov_b32 v4, s44")
    a("s_mul_i32 s49, s41, 9\ns_add_u32 s49, s49, s42\ns_lshl_b32 s47, s49, 16\ns_lshl_b32 s51, s49, 10")
    a("s_lshl_b32 s44, s40, 13\ns_add_u32 s47, s47, s44\ns_lshl_b32 s44, s40, 7\ns_add_u32 s51, s51, s44\nv_mov_b32 v18, 0")
    a(f"v_mov_b32 v13, s{SE}")
    a("K4_pub:")
    wait_cnt("K4_pw", 2)
    st0.dyn(34, 42)
    for i in range(8): a(f"ds_read_b128 v[{PB+4*i}:{PB+4*i+3}], v7 offset:{1024*i}")
    a("s_add_u32 s71, s47, 4096")
    for i in range(8):
        a(f"s_cmp_eq_u32 s40, {i}\ns_cbranch_scc1 K4_ps{i}\ns_waitcnt lgkmcnt({7-i})\nbuffer_store_dwordx4 v[{PB+4*i}:{PB+4*i+3}], v2, s[24:27], s{47 if i < 4 else 71} offen offset:{(i%4)*1024} sc1\nK4_ps{i}:")
    a("s_waitcnt vmcnt(0) lgkmcnt(0)\ns_mov_b64 exec, 1\nbuffer_store_dword v13, v18, s[36:39], s51 offen sc1\ns_mov_b64 exec, -1")
    st0.dyn(43, 42)
    a(f"s_add_u32 s42, s42, {NPUB}\ns_add_u32 s47, s47, {NPUB << 16}\ns_add_u32 s51, s51, {NPUB << 10}\nv_add_u32 v7, {NPUB << 13}, v7\nv_add_u32 v4, {4*NPUB}, v4\ns_cmp_lt_u32 s42, {8 if LASTP else 9}\ns_cbranch_scc1 K4_pub")
    a("K4_work:")
    a(f"v_mov_b32 v14, {ffn.CNT}\nv_mov_b32 v15, 1")
    TAKE = "s_mov_b64 exec, 1\nds_add_rtn_u32 v3, v14, v15 offset:40\ns_mov_b64 exec, -1\ns_waitcnt lgkmcnt(0)\nv_readfirstlane_b32 s42, v3\ns_cmp_ge_u32 s42, 9\ns_cbranch_scc1 K4_fin"
    a(TAKE)
    ws_srd(a, 16, "HC", 14)
    ws_srd(a, 24, "PART", 14)
    ws_srd(a, 52, "MU2", 14)
    ws_srd(a, 56, "SS", 14)
    srd(a, 60, 4, 0, T*DM*2)
    a(SWZ)
    a("s_lshl_b32 s43, s40, 3\nv_add_u32 v8, s43, v5")
    a("v_lshlrev_b32 v19, 2, v8\ns_lshl_b32 s44, s41, 8\ns_lshl_b32 s65, s41, 11\nbuffer_load_dword v140, v19, s[52:55], s44 offen sc1")
    for nb in range(6): a(f"buffer_load_dword v{144+nb}, v19, s[56:59], s65 offen offset:{256*nb} sc1")
    a("s_lshl_b32 s44, s40, 10\nv_add_u32 v9, s44, v7\nv_lshlrev_b32 v12, 7, v0")
    a("v_lshrrev_b32 v10, 4, v8\nv_mul_u32_u24 v10, 18432, v10\nv_lshl_add_u32 v10, v6, 8, v10\nv_and_b32 v11, 15, v8\nv_lshl_add_u32 v10, v11, 4, v10")
    a(f"v_mul_u32_u24 v11, {DM*2}, v8\nv_lshl_add_u32 v11, v6, 4, v11")
    a("v_and_b32 v19, 1, v0\nv_cmp_eq_u32 s[66:67], 1, v19\ns_mov_b32 s68, 0x00003f80\ns_mov_b32 s69, 0x3f800000\ns_mov_b32 s74, 0")
    a("K4_red:")
    a("s_mul_i32 s30, s41, 73728\ns_lshl_b32 s44, s42, 11\ns_add_u32 s30, s30, s44\nbuffer_load_dwordx4 v[20:23], v10, s[16:19], s30 offen sc1")
    a(f"s_mul_i32 s64, s41, {64*DM*2}\ns_lshl_b32 s44, s42, 7\ns_add_u32 s64, s64, s44")
    a(f"s_lshl_b32 s44, s42, 13\nv_add_u32 v7, s44, v9\ns_lshl_b32 s44, s42, 2\ns_add_u32 s44, s44, {ffn.CNT}\nv_mov_b32 v4, s44")
    a("s_mul_i32 s49, s41, 9\ns_add_u32 s49, s49, s42\ns_lshl_b32 s71, s49, 16\ns_lshl_b32 s51, s49, 10\ns_lshl_b32 s44, s40, 10\ns_add_u32 s71, s71, s44")
    wait_cnt("K4_rw", 4)
    poll(a, 8, 12, 36, 51, 3, OPT.get("red_slp", 2))
    st0.dyn(52, 42)
    for j in range(8):
        b = PB + 4*j
        a(f"s_cmp_eq_u32 s40, {j}\ns_cbranch_scc1 K4_ro{j}\nbuffer_load_dwordx4 v[{b}:{b+3}], v2, s[24:27], s71 offen sc1\ns_branch K4_rp{j}\nK4_ro{j}:\nds_read_b128 v[{b}:{b+3}], v7\nK4_rp{j}:\ns_add_u32 s71, s71, 8192")
    a("s_cmp_lg_u32 s74, 0\ns_cbranch_scc1 K4_hs\ns_mov_b32 s74, 1")
    a("v_add_f32 v144, v144, v145\nv_add_f32 v146, v146, v147\nv_add_f32 v148, v148, v149\nv_add_f32 v144, v144, v146\nv_add_f32 v144, v144, v148")
    a(f"v_mov_b32 v145, {f32bits(1e-5)}\nv_fmac_f32 v145, {f32bits(1.0/DM)}, v144\nv_rsq_f32 v142, v145\nK4_hs:")
    for i in range(4):
        a(f"v_lshlrev_b32 v{24+2*i}, 16, v{20+i}\nv_and_b32 v{25+2*i}, 0xffff0000, v{20+i}\nv_add_f32 v{24+2*i}, v{24+2*i}, v140\nv_add_f32 v{25+2*i}, v{25+2*i}, v140")
    a("s_waitcnt lgkmcnt(0)")
    for j in range(8):
        a(f"s_waitcnt vmcnt({max(0, 6-j)})")
        for qq in range(2):
            for p in range(2):
                src = PB + 4*j + 2*qq + p
                d0, d1 = AC + 4*p + qq, AC + 4*p + 2 + qq
                if OPT.get("red_dot", False):
                    for hh, d in ((0, d0), (1, d1)):
                        a(f"v_dot2_f32_bf16 v{d}, v{src}, s{68+hh}, {'0' if j == 0 else f'v{d}'}")
                elif j == 0:
                    a(f"v_lshlrev_b32 v{d0}, 16, v{src}\nv_and_b32 v{d1}, 0xffff0000, v{src}")
                else:
                    a(f"v_lshlrev_b32 v16, 16, v{src}\nv_and_b32 v{src}, 0xffff0000, v{src}\nv_add_f32 v{d0}, v{d0}, v16\nv_add_f32 v{d1}, v{d1}, v{src}")
    a("s_nop 2")
    for i in range(4):
        a(f"v_cndmask_b32 v{AC+8+i}, v{AC+4+i}, v{AC+i}, s[66:67]")
        a(f"v_cndmask_b32 v{AC+12+i}, v{AC+i}, v{AC+4+i}, s[66:67]")
    a("s_nop 1")
    for i in range(4):
        a(f"v_mov_b32_dpp v{AC+16+i}, v{AC+8+i} quad_perm:[1,0,3,2] row_mask:0xf bank_mask:0xf")
    for hlf in range(2):
        for e in range(2):
            k_, r_ = AC + 12 + 2*hlf + e, AC + 16 + 2*hlf + e
            a(f"v_cndmask_b32 v{AC+4*hlf+e}, v{k_}, v{r_}, s[66:67]\nv_cndmask_b32 v{AC+4*hlf+2+e}, v{r_}, v{k_}, s[66:67]")
    for i in range(4):
        a(f"v_fmac_f32 v{24+2*i}, v{AC+2*i}, v142\nv_fmac_f32 v{25+2*i}, v{AC+2*i+1}, v142\nv_cvt_pk_bf16_f32 v{40+i}, v{24+2*i}, v{25+2*i}")
    a("buffer_store_dwordx4 v[40:43], v11, s[60:63], s64 offen" + OPT.get("oflag", " sc1"))
    st0.dyn(8, 42)
    a(TAKE + "\ns_branch K4_red")
    a("K4_fin:")
    st0.finish(14, 3, 8)

HEADER = open("cdna_kernels/" + NAME + ".s.ref").read().split("; Override launch geometry")[0]
def build(stamp_k=-1, force_fallback=False, light=False, **opt):
    LIGHT[0] = light
    OPT.update(opt)
    a = Asm()
    hdr = HEADER + f"; @launch grid=({K1_GRID},1,1) block=(512,1,1) lds={max(K1_LDS, K2_LDS)}\n"
    a('.amdgcn_target "amdgcn-amd-amdhsa--gfx950"\n.text')
    st = Stamps(a, stamp_k == 2, 2, 255, 254)
    k1(a, st)
    descs = [k2(a, st, force_fallback)]
    a('.set CODE_PF_N, (CODE_END - K2_out + 8191) / 8192')
    a('.section .rodata,"a"')
    return hdr + a.text() + "".join(descs)

if __name__ == "__main__":
    out = sys.argv[1] if len(sys.argv) > 1 else "cdna_kernels/" + NAME + ".s"
    kw = eval("dict(" + (sys.argv[2] if len(sys.argv) > 2 else "") + ")")
    open(out, "w").write(build(**kw))
```

```python
import sys, math
from asmlib import *
from gemm import gemm_core
import ffn

T, DM, NH, DH, F = 2048, 576, 32, 18, 4608
NAME = "sequential_preLN__grouped_kv_mqa__dense_activation_relu__prompt"
A_X, A_WQ, A_WK, A_WV, A_WO, B_X, B_W1, B_W2, K_OUT, K_DBG, K_WS = [8 * i for i in range(11)]
def _al(x, a=4096): return (x + a - 1) // a * a
PAIR = 4736
FL_PF, FL_OF, FL_HF, FL_RF = 0, 294912, 294912 + 32768, 294912 + 32768 + 131072
FL_AF = FL_RF + 32768
FL_END = FL_AF + 32768
SW, SE = 100, 101
WS = {}
_o = 0
for nm, sz in [("EP", 128), ("Q", T*DM*2), ("KV", 32*PAIR), ("MEAN1", T*8), ("O", T*DM*2), ("HC", T*DM*2),
               ("SS", 128*8*128), ("XC", T*DM*2), ("WBAR", 36*1024), ("WOF", 648*1024), ("WF", 32*332*1024),
               ("PART", 8*T*DM*2), ("FLAG", FL_END), ("STAMP", 16 << 20)]:
    WS[nm] = (_o, sz); _o += _al(sz)
WS_END = _o
QSCALE = math.log2(math.e) / math.sqrt(DH)
def f32bits(x):
    import struct
    return struct.unpack("<I", struct.pack("<f", x))[0]
ONES = 0x3f803f80

def ws_srd(a, d, nm, base):
    srd(a, d, base, WS[nm][0], WS[nm][1])

def wave_lane(a, s_wave=3):
    a(f"v_lshrrev_b32 v1, 6, v0\nv_and_b32 v0, 63, v0\ns_nop 0\nv_readfirstlane_b32 s{s_wave}, v1")

def sum_g(a, v, t):
    a(f"v_mov_b32 v{t}, v{v}\ns_nop 1\nv_permlane32_swap_b32 v{v}, v{t}\ns_nop 1\nv_add_f32 v{v}, v{v}, v{t}")
    a(f"v_mov_b32 v{t}, v{v}\ns_nop 1\nv_permlane16_swap_b32 v{v}, v{t}\ns_nop 1\nv_add_f32 v{v}, v{v}, v{t}")

LIGHT = [False]
OPT = dict(prio=3, k2_nt=True, codepf=True)
class Stamps:
    def __init__(self, a, on, kidx, vreg, vtmp):
        self.a, self.on, self.k, self.v, self.t = a, bool(on) or LIGHT[0], kidx, vreg, vtmp
        self.full = bool(on)
    def start(self):
        if self.on:
            self.a(f"s_memrealtime s[96:97]\ns_memtime s[98:99]\nv_mov_b32 v{self.v}, 0\ns_waitcnt lgkmcnt(0)\nv_writelane_b32 v{self.v}, s96, 62")
    def __call__(self, i):
        if self.full or (self.on and i == 61):
            if OPT.get("rt") and i != 61:
                self.a(f"s_memrealtime s[96:97]\ns_waitcnt lgkmcnt(0)\nv_writelane_b32 v{self.v}, s96, {i}")
            else:
                self.a(f"s_memtime s[96:97]\ns_waitcnt lgkmcnt(0)\ns_sub_u32 s96, s96, s98\nv_writelane_b32 v{self.v}, s96, {i}")
    def dyn(self, base, sreg):
        if self.full:
            self.a(f"s_memrealtime s[96:97]\ns_add_u32 m0, s{sreg}, {base}\ns_waitcnt lgkmcnt(0)\nv_writelane_b32 v{self.v}, s96, m0")
    def finish(self, s_ws, s_wave, nw):
        if self.on:
            a = self.a
            a("s_waitcnt vmcnt(0)")
            self(61)
            a(f"s_memrealtime s[96:97]\ns_waitcnt lgkmcnt(0)\nv_writelane_b32 v{self.v}, s96, 63")
            ws_srd(a, 92, "STAMP", s_ws)
            a(f"s_lshl_b32 s96, s2, 3\ns_add_u32 s96, s96, s{s_wave}\ns_lshl_b32 s96, s96, 8\ns_add_u32 s96, s96, {self.k << 21}")
            a(f"v_mbcnt_lo_u32_b32 v{self.t}, -1, 0\nv_mbcnt_hi_u32_b32 v{self.t}, -1, v{self.t}\nv_lshlrev_b32 v{self.t}, 2, v{self.t}")
            a(f"buffer_store_dword v{self.v}, v{self.t}, s[92:95], s96 offen")


def WST(): return OPT.get('wst', 326)
def PAT(): return OPT.get('pat', (3, 3, 2, 1))
class Repack:
    PR = 208
    def __init__(self, a): self.a = a
    def common(self):
        return (f"s_add_u32 s60, s14, {WS['WOF'][0]}\ns_addc_u32 s61, s15, 0\ns_mov_b32 s62, {WS['WF'][0] + WS['WF'][1] - WS['WOF'][0]}\ns_mov_b32 s63, 0x00020000\n"
                "v_and_b32 v6, 15, v0\nv_lshrrev_b32 v7, 4, v0\ns_mov_b32 s80, 0x05040100\ns_mov_b32 s81, 0x07060302")
    def regs(self, rnd): return 64 + 4 * rnd, 72 + 4 * rnd, 82 + 4 * rnd, 242 + rnd, 240 + rnd
    def setup_ffn(self, rnd, pw1, pw2):
        L = self.a.label("rp")
        SD, SB_, SO, vsrc, dst = self.regs(rnd)
        OWF = WS["WF"][0] - WS["WOF"][0]
        t = []; A = t.append
        A(f"s_mul_hi_u32 s46, s47, {(2**32 + 161)//162}\ns_mul_i32 s49, s46, 162\ns_sub_u32 s47, s47, s49")
        A(f"s_mul_hi_u32 s49, s47, {(2**32 + 8)//9}\ns_mul_i32 s50, s49, 9\ns_sub_u32 s50, s47, s50")
        A(f"s_mov_b32 s{SD+3}, 0x00020000\ns_lshl_b32 s54, s50, 7\nv_mov_b32 v{dst}, v3")
        A(f"s_cmp_lt_u32 s46, 2\ns_cselect_b32 s{SD+2}, {DM*F*2}, 0\ns_cselect_b32 s57, 0, 0x100000")
        A(f"s_mul_i32 s53, s45, {4*WST()}\ns_mul_i32 s55, s46, 162\ns_add_u32 s53, s53, s55\ns_add_u32 s53, s53, {OWF//1024}\ns_add_u32 s53, s53, s57")
        A(f"s_cmp_eq_u32 s46, 1\ns_cbranch_scc1 {L}_w2")
        A("s_mul_i32 s55, s49, 3\ns_add_u32 s53, s53, s55")
        for q in range(4):
            A(f"s_lshl_b32 s55, s50, 2\ns_add_u32 s55, s55, {q}\ns_mul_i32 s56, s55, 86\ns_lshr_b32 s56, s56, 8")
            A(f"s_lshr_b32 s58, s56, 2\ns_mul_i32 s58, s58, {4*WST()-54}\ns_mul_i32 s56, s56, {WST()-3}\ns_sub_u32 s56, s56, s58")
            A(f"s_add_u32 s55, s55, s56\ns_add_u32 s55, s55, s53\ns_lshl_b32 s{SO+q}, s55, 10")
        A(f"s_mov_b32 s{SD}, s{pw1}\ns_mov_b32 s{SD+1}, s{pw1+1}\ns_mul_i32 s53, s49, {32*F*2}\ns_mul_i32 s55, s45, {DM*2}\ns_add_u32 s53, s53, s55\ns_add_u32 s{SB_}, s53, s54")
        A(f"s_mov_b32 s{SB_+1}, {4*F*2}\ns_mov_b32 s{SB_+2}, {2*F*2}\ns_mov_b32 s{SB_+3}, {F*2}")
        A(f"v_mul_u32_u24 v{vsrc}, {8*F*2}, v7\nv_lshl_add_u32 v{vsrc}, v6, 3, v{vsrc}\ns_branch {L}_done")
        A(f"{L}_w2:")
        idx, siz = 0, 0
        cb = 0
        for n in PAT():
            for i in range(n):
                idx |= i << (2 * (cb + i)); siz |= n << (2 * (cb + i))
            cb += n
        A(f"s_lshl_b32 s55, s50, 1\ns_lshr_b32 s56, {idx}, s55\ns_and_b32 s56, s56, 3\ns_lshr_b32 s58, {siz}, s55\ns_and_b32 s58, s58, 3")
        A("s_mul_i32 s58, s58, s49\ns_add_u32 s53, s53, s58\ns_mul_i32 s58, s50, 18\ns_add_u32 s53, s53, s58\ns_mul_i32 s56, s56, 17\ns_sub_u32 s53, s53, s56")
        A(f"s_lshl_b32 s{SO}, s53, 10\ns_add_u32 s{SO+1}, s{SO}, {WST()*1024}\ns_add_u32 s{SO+2}, s{SO}, {2*WST()*1024}\ns_add_u32 s{SO+3}, s{SO}, {3*WST()*1024}")
        A(f"s_mov_b32 s{SD}, s{pw2}\ns_mov_b32 s{SD+1}, s{pw2+1}\ns_lshr_b32 s53, s49, 1\ns_lshl_b32 s53, s53, 6\ns_and_b32 s55, s49, 1\ns_lshl_b32 s55, s55, 1\ns_add_u32 s53, s53, s55")
        A(f"s_mul_i32 s55, s45, {DM}\ns_add_u32 s53, s53, s55\ns_mul_i32 s53, s53, {DM*2}\ns_add_u32 s{SB_}, s53, s54")
        A(f"s_mov_b32 s{SB_+1}, {DM*2}\ns_mov_b32 s{SB_+2}, {8*DM*2}\ns_mov_b32 s{SB_+3}, {4*DM*2}")
        A(f"v_mul_u32_u24 v{vsrc}, {16*DM*2}, v7\nv_lshl_add_u32 v{vsrc}, v6, 3, v{vsrc}")
        A(f"{L}_done:")
        return "\n".join(t)
    def setup_wo(self, rnd, pwo, scr):
        L = self.a.label("rp")
        SD, SB_, SO, vsrc, dst = self.regs(rnd)
        t = []; A = t.append
        A(f"s_mul_hi_u32 s49, s47, {(2**32 + 8)//9}\ns_mul_i32 s50, s49, 9\ns_sub_u32 s50, s47, s50")
        A(f"s_mov_b32 s{SD+3}, 0x00020000\ns_lshl_b32 s54, s50, 7")
        A(f"s_mov_b32 s{SD}, s{pwo}\ns_mov_b32 s{SD+1}, s{pwo+1}\ns_cmp_lt_u32 s47, 162\ns_cselect_b32 s{SD+2}, {DM*DM*2}, 0\ns_cselect_b32 s56, 0, 0x40000000")
        for e in range(2):
            A(f"s_lshl_b32 s55, s50, 1\ns_add_u32 s55, s55, {e}\ns_mul_i32 s57, s55, 86\ns_lshr_b32 s57, s57, 8\ns_mul_i32 s58, s57, 3\ns_cmp_lt_u32 s49, s58\ns_cselect_b32 s58, 54, 0")
            A(f"s_mul_i32 s57, s57, 42\ns_add_u32 s55, s55, s57\ns_add_u32 s55, s55, s58\ns_mul_i32 s57, s49, 3\ns_add_u32 s55, s55, s57\ns_lshl_b32 s55, s55, 11\ns_add_u32 s{SO+e}, s55, s56")
        A(f"v_lshrrev_b32 v245, 3, v6\nv_lshlrev_b32 v245, 11, v245\nv_and_b32 v246, 7, v6\nv_lshl_add_u32 v245, v246, 5, v245\nv_lshl_add_u32 v245, v7, 8, v245\nv_add_u32 v{dst}, s{scr}, v245")
        A(f"s_mov_b32 s{SB_+3}, {DM*2}\ns_cmp_ge_u32 s49, 16\ns_cbranch_scc1 {L}_wo2")
        A(f"s_mul_i32 s53, s49, {36*DM*2}\ns_mov_b32 s{SB_+1}, {8*DM*2}\ns_mov_b32 s{SB_+2}, {2*DM*2}")
        A(f"v_lshrrev_b32 v246, 1, v7\nv_mul_u32_u24 v246, 18, v246\nv_and_b32 v247, 1, v7\nv_lshl_add_u32 v246, v247, 2, v246\ns_branch {L}_wo3")
        A(f"{L}_wo2:")
        A(f"s_sub_u32 s53, s49, 16\ns_mul_i32 s53, s53, {288*DM*2}\ns_add_u32 s53, s53, {16*DM*2}\ns_mov_b32 s{SB_+1}, {36*DM*2}\ns_mov_b32 s{SB_+2}, {18*DM*2}")
        A(f"v_mul_u32_u24 v246, 72, v7")
        A(f"{L}_wo3:")
        A(f"s_add_u32 s{SB_}, s53, s54\nv_mul_u32_u24 v{vsrc}, {DM*2}, v246\nv_lshl_add_u32 v{vsrc}, v6, 3, v{vsrc}")
        return "\n".join(t)
    def load(self, rnd, s_, flag=""):
        SD, SB_, SO, vsrc, dst = self.regs(rnd)
        raw = self.PR + 16 * rnd
        t = f"s_mov_b32 s55, s{SB_}\n"
        if s_ & 4: t += f"s_add_u32 s55, s55, s{SB_+1}\n"
        if s_ & 2: t += f"s_add_u32 s55, s55, s{SB_+2}\n"
        if s_ & 1: t += f"s_add_u32 s55, s55, s{SB_+3}\n"
        return t + f"buffer_load_dwordx2 v[{raw+2*s_}:{raw+2*s_+1}], v{vsrc}, s[{SD}:{SD+3}], s55 offen{flag}"
    def store(self, rnd, q_, flag=""):
        SD, SB_, SO, vsrc, dst = self.regs(rnd)
        raw = self.PR + 16 * rnd
        t = 196 + 4 * (q_ % 2)
        L = [f"v_perm_b32 v{t+j}, v{raw+2*(2*j+1)+(q_>>1)}, v{raw+2*(2*j)+(q_>>1)}, s{80+(q_&1)}" for j in range(4)]
        L.append(f"buffer_store_dwordx4 v[{t}:{t+3}], v{dst}, s[60:63], s{SO+q_} offen{flag}")
        return "\n".join(L)
    def touch(self, rnd):
        SD, SB_, SO, vsrc, dst = self.regs(rnd)
        return "s_mov_b64 exec, 0xff\nv_lshlrev_b32 v204, 7, v0\n" + "\n".join(f"buffer_load_dword v205, v204, s[60:63], s{SO+q} offen sc1" for q in range(4)) + "\ns_mov_b64 exec, -1"

def ffn_map(sj, smb):
    SL = OPT.get("k4_sl", 1); lg = SL.bit_length() - 1
    return (f"s_and_b32 s46, s2, 7\ns_lshr_b32 s47, s2, 3\ns_and_b32 s{sj}, s46, {8//SL-1}\ns_lshl_b32 s{sj}, s{sj}, {lg}\ns_and_b32 s48, s47, {SL-1}\ns_add_u32 s{sj}, s{sj}, s48\n"
            f"s_lshr_b32 s{smb}, s46, {3-lg}\ns_lshl_b32 s{smb}, s{smb}, {5-lg}\ns_lshr_b32 s48, s47, {lg}\ns_add_u32 s{smb}, s{smb}, s48\n")

def poll(a, n, voff, srd_, soff, vt, slp=2, first_loaded=False):
    L = a.label("poll")
    m = (1 << n) - 1
    a(f"s_mov_b32 s91, 0x10000\ns_mov_b32 exec_lo, {m & 0xffffffff}\ns_mov_b32 exec_hi, {m >> 32}" + (f"\ns_branch {L}_1" if first_loaded else ""))
    a(f"{L}:\nbuffer_load_dword v{vt}, v{voff}, s[{srd_}:{srd_+3}], s{soff} offen{OPT.get('pollf', ' sc1')}\ns_waitcnt vmcnt(0)\n{L}_1:\nv_cmp_eq_u32 vcc, s{SE}, v{vt}\ns_nop 1\ns_cmp_eq_u64 vcc, exec\ns_cbranch_scc1 {L}_ok\ns_sleep {slp}\ns_sub_u32 s91, s91, 1\ns_cbranch_scc0 {L}\n{L}_ok:")
    a("s_mov_b64 exec, -1")

K1_GRID = 256
K1_LDS = 159744 + 1280
def k1(a, st0):
    st = lambda i: st0({3: 30, 22: 31, 23: 30, 2: 31}[i]) if i in (2, 3, 22, 23) else None
    XLQ, XLK = 73728, 86016
    KVI = OPT.get('kvi', 21504)
    ST = OPT.get('k1_st', ' sc1')
    LATE = OPT.get('late', False)
    EPX = f's_load_dword s{SE}, s[14:15], 0'
    EP0 = '' if LATE else '\n' + EPX
    EP1 = EPX if LATE else ''
    kernel_begin(a, NAME + "_kernel")
    if OPT["codepf"]:
        a(f"s_cmp_ge_u32 s2, {OPT.get('pfn', 256)}\ns_cbranch_scc1 K1_nopf")
        a("s_getpc_b64 s[58:59]\nK1_pc:\nv_lshlrev_b32 v252, 7, v0\nv_min_u32 v252, K2_out-K1_pc, v252\nglobal_load_dword v253, v252, s[58:59]")
        a("K1_nopf:")
    a(f"s_cmp_lt_u32 s2, {K1_GRID}\ns_cbranch_scc1 K1_go\ns_endpgm\nK1_go:")
    a(f"s_load_dwordx4 s[4:7], s[0:1], {A_X}\ns_load_dwordx4 s[8:11], s[0:1], {A_WK}\ns_load_dwordx2 s[12:13], s[0:1], {A_WO}\ns_load_dwordx2 s[14:15], s[0:1], {K_WS}")
    st0.start()
    wave_lane(a)
    a(f"v_and_b32 v1, 15, v0\nv_lshrrev_b32 v2, 4, v0\ns_mov_b32 s{SW}, s3")
    a("s_bfe_u32 s44, s2, 0x20001\ns_lshl_b32 s44, s44, 3\ns_bfe_u32 s61, s2, 0x30003\ns_add_u32 s44, s44, s61\ns_and_b32 s45, s2, 1\ns_lshl_b32 s45, s45, 2\ns_lshr_b32 s62, s2, 6\ns_add_u32 s45, s45, s62")
    a("s_mul_i32 s60, s62, 9\ns_lshr_b32 s60, s60, 2\ns_add_u32 s60, s60, s61\ns_and_b32 s61, s2, 7\ns_add_u32 s60, s60, s61")
    a("s_mul_i32 s61, s60, 57\ns_lshr_b32 s61, s61, 9\ns_mul_i32 s61, s61, 9\ns_sub_u32 s60, s60, s61")
    a(f"s_cmp_ge_u32 s45, 6\ns_cselect_b32 s60, 0, s60\ns_mov_b32 s63, {XLQ}\ns_cselect_b32 s63, {XLK}, s63")
    a("v_lshrrev_b32 v4, 3, v0\nv_and_b32 v5, 7, v0\ns_lshl_b32 s90, s45, 5\ns_add_u32 s90, s90, s44")
    EX = 159744
    X0 = 16
    AR = 172
    ACC, CS, RS, GR, WF, ON = 88, 192, 112, 116, 120, 168
    ONr = f"v[{ON}:{ON+3}]"
    def V4(b): return f"v[{b}:{b+3}]"
    def lane_rc():
        a("v_lshrrev_b32 v10, 2, v1\nv_and_b32 v11, 3, v1\nv_lshl_add_u32 v12, v2, 3, v10")
    def xaddr(sbase):
        a(f"v_and_b32 v7, 7, v1\nv_xor_b32 v8, v2, v7\nv_lshlrev_b32 v8, 4, v8\nv_lshl_add_u32 v8, v1, 7, v8\nv_add_u32 v8, s{sbase}, v8\nv_xor_b32 v9, 64, v8")
        a("v_add_u32 v190, 0x8000, v8\nv_add_u32 v191, 0x8000, v9")
    def xrd(reg, ks, extra=0):
        p, e = divmod(ks, 2)
        b, o = (8 + e, 8192 * p) if p < 4 else (190 + e, 8192 * (p - 4))
        return f"ds_read_b128 {V4(reg)}, v{b} offset:{o + extra}"
    def waddr(shalf):
        a("v_lshrrev_b32 v13, 1, v10\nv_and_b32 v14, 1, v2\nv_lshl_add_u32 v13, v14, 1, v13")
        a("v_lshlrev_b32 v15, 7, v12\nv_lshl_add_u32 v15, v11, 3, v15\nv_lshlrev_b32 v7, 6, v12\nv_lshl_add_u32 v7, v11, 3, v7\nv_add_u32 v7, 4096, v7")
        a(f"s_cmp_eq_u32 s{shalf}, 1\ns_cselect_b64 vcc, -1, 0\ns_mul_i32 s55, s{shalf}, 3")
        a(f"v_xor_b32 v184, s55, v13\nv_lshl_add_u32 v{AR}, v184, 5, v15\nv_add_u32 v{AR+3}, 512, v{AR}")
        for t in (1, 2):
            a(f"v_xor_b32 v184, {t}, v13\nv_lshl_add_u32 v184, v184, 5, v15\nv_xor_b32 v185, {t-1}, v14\nv_lshl_add_u32 v185, v185, 5, v7")
            a(f"v_cndmask_b32 v{AR+t}, v184, v185, vcc\nv_add_u32 v184, 512, v184\nv_add_u32 v185, 256, v185\nv_cndmask_b32 v{AR+3+t}, v184, v185, vcc")
        for i in range(6): a(f"v_add_u32 v{AR+6+i}, {9*6144}, v{AR+i}")
    def wrd(reg, ks, t):
        hi = ks >= 9
        off = (ks - 9 * hi) * 6144
        return [f"ds_read_b64_tr_b16 v[{reg}:{reg+1}], v{AR+6*hi+t} offset:{off}", f"ds_read_b64_tr_b16 v[{reg+2}:{reg+3}], v{AR+6*hi+3+t} offset:{off}"]
    def stat_mfma(x, first):
        return [f"v_mfma_f32_16x16x32_bf16 {V4(RS)}, {ONr}, {V4(x)}, {'0' if first else V4(RS)}",
                f"v_mfma_f32_16x16x32_bf16 {V4(GR)}, {V4(x)}, {V4(x)}, {'0' if first else V4(GR)}"]
    def stats_out():
        a("v_cmp_eq_u32 vcc, 1, v11\nv_cmp_eq_u32 s[54:55], 2, v11\nv_cmp_eq_u32 s[56:57], 3, v11\nv_cmp_eq_u32 s[58:59], v10, v2\ns_nop 3")
        a(f"v_mul_f32 v4, {f32bits(-1.0/DM)}, v{RS}")
        a(f"v_cndmask_b32 v5, v{GR}, v{GR+1}, vcc\nv_cndmask_b32 v5, v5, v{GR+2}, s[54:55]\nv_cndmask_b32 v5, v5, v{GR+3}, s[56:57]\nv_cndmask_b32 v5, 0, v5, s[58:59]")
        sum_g(a, 5, 7)
        a(f"v_mul_f32 v5, {f32bits(1.0/DM)}, v5\nv_fma_f32 v5, -v4, v4, v5\nv_max_f32 v5, 0, v5\nv_add_f32 v5, {f32bits(1e-5)}, v5\nv_rsq_f32 v5, v5")
        a(f"s_lshl_b32 s54, s3, 7\ns_add_u32 s54, s54, {EX + 768}\nv_lshlrev_b32 v7, 3, v1\nv_add_u32 v7, s54, v7\nds_write_b64 v7, v[4:5]")
    if OPT.get("wtlb", False):
        a(f"s_cmp_lg_u32 s3, 7\ns_cbranch_scc1 K1_ntl\ns_load_dwordx4 s[24:27], s[0:1], {B_W1}\nv_lshlrev_b32 v250, 20, v0\ns_waitcnt lgkmcnt(0)")
        for b in (24, 26):
            a(f"s_mov_b32 s28, s{b}\ns_mov_b32 s29, s{b+1}\ns_mov_b32 s30, {DM*F*2}\ns_mov_b32 s31, 0x00020000\nbuffer_load_dword v251, v250, s[28:31], 0 offen nt")
        a("K1_ntl:")
    a("s_cmp_lt_u32 s3, 4\ns_cbranch_scc1 K1_comp")
    if OPT.get("lprio", 3): a(f"s_setprio {OPT.get('lprio', 3)}")
    a("s_cmp_eq_u32 s45, 7\ns_cbranch_scc1 K1_worp")
    a("s_sub_u32 s3, s3, 4")
    a("s_cmp_eq_u32 s45, 6\ns_cbranch_scc1 K1_kvload")
    a("v_and_b32 v6, 1, v2\ns_and_b32 s48, s3, 1\ns_lshl_b32 s48, s48, 2\nv_lshlrev_b32 v6, 1, v6\nv_or_b32 v6, s48, v6\nv_xor_b32 v6, v6, v5")
    a(f"v_mul_u32_u24 v3, {DM*2}, v4\nv_lshl_add_u32 v3, v6, 4, v3")
    a("v_lshrrev_b32 v7, 5, v0\nv_lshlrev_b32 v7, 1, v7\nv_and_b32 v6, 3, v0\nv_xor_b32 v7, v7, v6\nv_lshrrev_b32 v6, 2, v0")
    a(f"v_mul_u32_u24 v6, {DM*2}, v6\nv_lshl_add_u32 v6, v7, 4, v6")
    a("s_mul_i32 s48, s45, 192\ns_and_b32 s53, s45, 1\ns_lshl_b32 s54, s53, 6\ns_add_u32 s49, s48, s54\ns_xor_b32 s53, s53, 1\ns_lshl_b32 s53, s53, 7\ns_add_u32 s50, s48, s53")
    a(f"s_mul_i32 s53, s3, {8*DM*2}\ns_add_u32 s49, s49, s53\ns_mul_i32 s53, s3, {16*DM*2}\ns_add_u32 s50, s50, s53")
    a("s_lshl_b32 s51, s3, 10")
    a("s_lshr_b32 s52, s3, 1\ns_mul_i32 s52, s52, 6144\ns_and_b32 s53, s3, 1\ns_lshl_b32 s53, s53, 10\ns_add_u32 s52, s52, s53\ns_add_u32 s52, s52, 4096")
    a(f"s_mul_i32 s61, s60, {64*DM*2}")
    a(f"s_waitcnt lgkmcnt(0){EP0}")
    srd(a, 20, 6, 0, DM*DM*2)
    def wdma():
        a(f"s_add_u32 s62, s49, s61\ns_add_u32 s65, s50, s61\ns_add_u32 s64, s62, {32*DM*2}")
        a(f"s_mov_b32 m0, s51\ns_add_u32 s51, s51, 6144\nbuffer_load_dwordx4 v3, s[20:23], s62 offen lds")
        a(f"s_mov_b32 m0, s52\ns_add_u32 s52, s52, 12288\nbuffer_load_dwordx4 v6, s[20:23], s65 offen lds")
        a(f"s_mov_b32 m0, s51\ns_add_u32 s51, s51, 6144\nbuffer_load_dwordx4 v3, s[20:23], s64 offen lds")
        a(f"s_add_u32 s61, s61, {64*DM*2}\ns_cmp_eq_u32 s61, {DM*DM*2}\ns_cselect_b32 s61, 0, s61")
    LA = OPT.get('k1_la', 3)
    for t in range(LA): wdma()
    lane_rc()
    a("s_lshl_b32 s66, s3, 11\ns_add_u32 s66, s66, s63\ns_lshr_b32 s67, s3, 1")
    xaddr(66); waddr(67)
    a("s_and_b32 s55, s3, 1\ns_mul_i32 s55, s55, 6144")
    for i in range(12): a(f"v_add_u32 v{AR+i}, s55, v{AR+i}")
    for r in range(4): a(f"v_mov_b32 v{ON+r}, {ONES}")
    XE = 56
    for p in range(10):
        if p < 9:
            a(f"s_waitcnt vmcnt({3*(min(p + LA, 9) - p - 1)}) lgkmcnt(0)\ns_barrier")
            b = (p % 2) * 20
            if p == 0: a(EP1)
            if p < 8:
                a(xrd(X0 + b, 2*p)); a(xrd(X0 + b + 4, 2*p + 1))
            if p == 7:
                a(xrd(XE, 16)); a(xrd(XE + 4, 17))
            for t in range(3):
                for x in wrd(X0 + b + 8 + 4*t, 2*p if p != 4 else 8, t): a(x)
        else:
            a("s_waitcnt lgkmcnt(0)")
        if p > 0:
            b = ((p - 1) % 2) * 20
            if p < 9:
                for x in stat_mfma(X0 + b, p == 1) + stat_mfma(X0 + b + 4, False): a(x)
            if p == 8:
                for x in stat_mfma(XE, False) + stat_mfma(XE + 4, False): a(x)
            for t in range(3):
                a(f"v_mfma_f32_16x16x32_bf16 {V4(CS+4*t)}, {V4(X0+b+8+4*t)}, {ONr}, {'0' if p == 1 else V4(CS+4*t)}")
            if p == 8: stats_out()
        if p + LA < 9: wdma()
    a(f"s_mul_i32 s54, s3, 192\ns_add_u32 s54, s54, {EX}\nv_lshlrev_b32 v7, 4, v2\nv_add_u32 v7, s54, v7\ns_nop 3")
    for t in range(3): a(f"ds_write_b128 v7, {V4(CS+4*t)} offset:{64*t}")
    a("s_waitcnt lgkmcnt(0)\ns_barrier\ns_branch K1_fin")
    a("K1_comp:")
    a("s_lshl_b32 s46, s44, 6\ns_lshl_b32 s47, s3, 4\ns_add_u32 s46, s46, s47")
    a(f"s_mul_i32 s47, s46, {DM*2}")
    a(f"v_xor_b32 v6, v4, v5\nv_mul_u32_u24 v3, {DM*2}, v4\nv_lshl_add_u32 v3, v6, 4, v3\nv_add_u32 v6, {8*DM*2 - 1024}, v3")
    a(f"s_lshl_b32 s61, s60, 7\ns_lshl_b32 s64, s3, 11\ns_add_u32 s64, s63, s64\ns_mov_b32 s66, s64")
    a(f"s_waitcnt lgkmcnt(0){EP0}")
    srd(a, 16, 4, 0, T*DM*2)
    def xdma():
        return ("s_mov_b32 m0, s64\ns_add_u32 s62, s47, s61\ns_add_u32 s64, s64, 8192\n"
                "buffer_load_dwordx4 v3, s[16:19], s62 offen lds\nbuffer_load_dwordx4 v6, s[16:19], s62 offen offset:1024 lds\n"
                f"s_add_u32 s61, s61, 128\ns_cmp_eq_u32 s61, {DM*2}\ns_cselect_b32 s61, 0, s61")
    XA = OPT.get("k1_xa", 4)
    for p in range(XA): a(xdma())
    st(0)
    lane_rc()
    a("s_cmp_ge_u32 s45, 6\ns_cbranch_scc1 K1_kvgemm")
    a("s_and_b32 s68, s3, 1\ns_lshl_b32 s66, s68, 12\ns_add_u32 s66, s66, s63\ns_lshr_b32 s67, s3, 1")
    xaddr(66); waddr(67)
    ws_srd(a, 32, "Q", 14)
    def frags(ks):
        b = X0 + (ks % 2) * 20
        L = [xrd(b, ks), xrd(b + 4, ks, 2048)]
        for t in range(3): L += wrd(b + 8 + 4*t, ks, t)
        return L
    nx = XA
    a(f"s_waitcnt vmcnt({2*XA-2})\ns_barrier")
    st(2)
    a(EP1)
    for x in frags(0): a(x)
    for ks in range(18):
        p = ks // 2
        if ks % 2 == 1 and ks < 17:
            a(f"s_waitcnt vmcnt({2*(nx - p - 2) if ks < 13 else 0})" + (" lgkmcnt(6)" if ks == 9 else "") + "\ns_barrier")
        b = X0 + (ks % 2) * 20
        nf = frags(ks + 1) if ks < 17 else []
        issued = 0
        for t in range(3):
            a(f"s_waitcnt lgkmcnt({4 - 2*t + issued})")
            for m in range(2):
                d = ACC + (t*2 + m) * 4
                a(f"v_mfma_f32_16x16x32_bf16 {V4(d)}, {V4(b+8+4*t)}, {V4(b+4*m)}, {'0' if ks == 0 else V4(d)}")
                for x in nf[:2]: a(x); issued += 1
                nf = nf[2:]
        if ks % 2 == 0 and nx < 9:
            a(xdma()); nx += 1
    st(3)
    a("v_lshlrev_b32 v3, 3, v0")
    a(f"s_lshl_b32 s48, s44, 1\ns_add_u32 s48, s48, s68\ns_mul_i32 s48, s48, {4*9216}")
    a("s_mul_i32 s49, s45, 6\ns_and_b32 s50, s45, 1\ns_lshl_b32 s51, s50, 1\ns_add_u32 s51, s51, s49\ns_lshl_b32 s50, s50, 2\ns_sub_u32 s52, s49, s50\ns_mul_i32 s69, s67, 3")
    a(f"s_mul_i32 s54, s67, 384\ns_add_u32 s54, s54, {EX}\nv_lshlrev_b32 v7, 4, v2\nv_add_u32 v7, s54, v7")
    a(f"s_lshl_b32 s54, s68, 8\ns_add_u32 s54, s54, {EX + 768}\nv_lshlrev_b32 v8, 3, v1\nv_add_u32 v8, s54, v8")
    a("s_barrier")
    a("ds_read_b64 v[12:13], v8\nds_read_b64 v[14:15], v8 offset:128")
    for i in range(6): a(f"ds_read_b128 {V4(CS+4*i)}, v7 offset:{64*i}")
    a(f"s_waitcnt lgkmcnt(0)\nv_mul_f32 v13, {f32bits(QSCALE)}, v13\nv_mul_f32 v15, {f32bits(QSCALE)}, v15")
    for t in range(3):
        a(f"s_add_u32 s53, s69, {t}\ns_cmp_lt_u32 s53, 4\ns_cselect_b32 s54, s51, s52\ns_add_u32 s53, s53, s54")
        a("s_mul_i32 s54, s53, 57\ns_lshr_b32 s54, s54, 9\ns_mul_i32 s54, s54, 4608\ns_lshl_b32 s53, s53, 9\ns_add_u32 s53, s53, s54\ns_add_u32 s53, s53, s48\ns_add_u32 s55, s53, 4608")
        for r in range(4): a(f"v_add_f32 v{CS+4*t+r}, v{CS+4*t+r}, v{CS+12+4*t+r}")
        for m in range(2):
            b = ACC + (t*2 + m) * 4
            for r in range(4): a(f"v_fmac_f32 v{b+r}, v{CS+4*t+r}, v{12+2*m}\nv_mul_f32 v{b+r}, v{b+r}, v{13+2*m}")
            a(f"v_cvt_pk_bf16_f32 v{b}, v{b}, v{b+1}\nv_cvt_pk_bf16_f32 v{b+1}, v{b+2}, v{b+3}")
            a(f"buffer_store_dwordx2 v[{b}:{b+1}], v3, s[32:35], s{53+2*m} offen{ST}")
    a("s_branch K1_fin")
    def kaddr():
        a(f"v_mul_u32_u24 v13, 36, v12\nv_lshl_add_u32 v13, v11, 3, v13\nv_and_b32 v14, 1, v10\nv_mul_u32_u24 v14, {KVI - 4}, v14\nv_add_u32 v{AR}, v13, v14")
        a(f"v_mul_u32_u24 v13, 36, v12\nv_add_u32 v{AR+1}, v13, v14")
    a("K1_kvload:")
    a(f"v_lshlrev_b32 v3, 4, v0\ns_and_b32 s48, s3, 1\ns_lshl_b32 s48, s48, 2\ns_mul_i32 s49, s3, {KVI}")
    a(f"s_waitcnt lgkmcnt(0){EP0}")
    a(f"s_cmp_lt_u32 s3, 2\ns_cselect_b32 s24, s8, s10\ns_cselect_b32 s25, s9, s11\ns_mov_b32 s26, {DM*DH*2}\ns_mov_b32 s27, 0x00020000")
    def kdma(i):
        if i % 4 == 0: a("s_mov_b32 m0, s49\ns_add_u32 s49, s49, 4096")
        a(f"buffer_load_dwordx4 v3, s[24:27], s48 offen offset:{(i%4)*1024} lds")
        if i % 4 == 3: a("s_add_u32 s48, s48, 4096")
    for i in range(21): kdma(i)
    lane_rc()
    a("s_lshl_b32 s66, s3, 11\ns_add_u32 s66, s66, s63")
    xaddr(66)
    for r in range(4): a(f"v_mov_b32 v{ON+r}, {ONES}")
    ws_srd(a, 40, "MEAN1", 14)
    a(f"s_lshl_b32 s46, s44, 2\ns_add_u32 s46, s46, s3")
    a("s_waitcnt vmcnt(0)\ns_barrier")
    for ks in range(8): a(xrd(X0 + 4*ks, ks))
    for ks in range(18):
        a(f"s_waitcnt lgkmcnt({min(7, 17 - ks)})")
        for x in stat_mfma(X0 + 4*ks, ks == 0): a(x)
        if ks + 8 < 18: a(xrd(X0 + 4*(ks + 8), ks + 8))
    a("s_nop 3")
    stats_out()
    a("s_waitcnt lgkmcnt(0)\ns_barrier")
    a("v_sub_f32 v9, 0, v4\nv_lshlrev_b32 v7, 2, v0\ns_lshl_b32 s49, s46, 7\ns_mov_b32 exec_lo, -1\ns_mov_b32 exec_hi, 0\nbuffer_store_dword v9, v7, s[40:43], s49 offen sc1\ns_mov_b64 exec, -1")
    a("s_barrier\ns_branch K1_fin")
    a(f"K1_worp:\ns_waitcnt lgkmcnt(0){EP0}\nv_lshlrev_b32 v3, 4, v0")
    rp = Repack(a)
    a(rp.common())
    for rnd in range(2):
        a(f"s_lshl_b32 s47, s44, 2\ns_add_u32 s47, s47, s3\ns_add_u32 s47, s47, {128*rnd - 4 & 0xffffffff}")
        a(f"s_lshl_b32 s59, s3, 13\ns_sub_u32 s59, s59, {32768 - 4096 - 4096*rnd}\nv_add_u32 v{16+rnd}, s59, v3")
        a(rp.setup_wo(rnd, 12, 59))
        for n in range(8): a(rp.load(rnd, n))
    for rnd in range(2):
        a(f"s_waitcnt vmcnt({8 if rnd == 0 else 4})")
        for n in range(4):
            t = rp.store(rnd, n).split("\n")[:4]
            a("\n".join(t) + f"\nds_write_b128 v{240+rnd}, v[{196+4*(n%2)}:{199+4*(n%2)}] offset:{(n&1)*1024 + (n>>1)*16}")
        for n in range(4): a(f"ds_read_b128 v[{32+16*rnd+4*n}:{35+16*rnd+4*n}], v{16+rnd} offset:{1024*n}")
        for n in range(4): a(f"s_waitcnt lgkmcnt({3-n})\nbuffer_store_dwordx4 v[{32+16*rnd+4*n}:{35+16*rnd+4*n}], v3, s[60:63], s{82+4*rnd+(n>>1)} offen offset:{1024*(n&1)} sc1")
    a("s_branch K1_fin")
    a("K1_kvgemm:")
    a("s_cmp_eq_u32 s45, 7\ns_cbranch_scc1 K1_wbar")
    for p in range(XA, 9): a(xdma())
    xaddr(63); kaddr()
    a(f"s_cmp_ge_u32 s3, 2\ns_cselect_b64 vcc, -1, 0\ns_and_b32 s55, s3, 1\ns_mul_i32 s55, s55, {2*KVI}\ns_lshr_b32 s56, s3, 1\ns_lshl_b32 s56, s56, 5\ns_add_u32 s55, s55, s56")
    a(f"v_cndmask_b32 v{AR}, v{AR}, v{AR+1}, vcc\nv_add_u32 v{AR}, s55, v{AR}")
    for r in range(4): a(f"v_mov_b32 v{ON+r}, {ONES}")
    ws_srd(a, 36, "KV", 14)
    a(f"s_mul_i32 s48, s44, {PAIR}")
    def kread(ks):
        b = X0 + (ks % 3) * 20
        return [f"ds_read_b64_tr_b16 v[{b}:{b+1}], v{AR} offset:{ks*1152}", f"ds_read_b64_tr_b16 v[{b+2}:{b+3}], v{AR} offset:{ks*1152 + 144}"] + \
               [xrd(b + 4 + 4*m, ks, 2048*m) for m in range(4)]
    a("s_waitcnt vmcnt(0)\ns_barrier")
    st(22)
    for x in kread(0) + kread(1): a(x)
    a("s_bitcmp1_b32 s3, 0\ns_cbranch_scc1 K1_vform")
    for form in range(2):
        if form: a("K1_vform:")
        for ks in range(18):
            b = X0 + (ks % 3) * 20
            fill = kread(ks + 2) if ks < 16 else []
            a(f"s_waitcnt lgkmcnt({6 if ks < 17 else 0})")
            for m in range(5):
                d, o = (ACC + 4*m, V4(b + 4 + 4*m)) if m < 4 else (CS, ONr)
                A_, B_ = (V4(b), o) if form == 0 else (o, V4(b))
                a(f"v_mfma_f32_16x16x32_bf16 {V4(d)}, {A_}, {B_}, {'0' if ks == 0 else V4(d)}")
                n = 2 if m == 0 else 1
                for y in fill[:n]: a(y)
                fill = fill[n:]
        st(23)
        if form == 0:
            a(f"v_lshlrev_b32 v7, 3, v1\nv_add_u32 v7, {EX + 768}, v7")
            a("v_lshrrev_b32 v8, 1, v2\nv_lshlrev_b32 v8, 9, v8\nv_lshl_add_u32 v8, v1, 4, v8\nv_and_b32 v9, 1, v2\nv_lshl_add_u32 v8, v9, 3, v8\nv_lshlrev_b32 v9, 2, v1")
            a("s_barrier")
            for m in range(4): a(f"ds_read_b64 v[{216+2*m}:{217+2*m}], v7 offset:{128*m}")
            a("s_waitcnt lgkmcnt(0)")
            for m in range(4):
                b = ACC + 4*m
                for r in range(4): a(f"v_fmac_f32 v{b+r}, v{CS+r}, v{216+2*m}\nv_mul_f32 v{b+r}, v{b+r}, v{217+2*m}")
                a(f"v_cvt_pk_bf16_f32 v{b}, v{b}, v{b+1}\nv_cvt_pk_bf16_f32 v{b+1}, v{b+2}, v{b+3}")
            a("s_cmp_lg_u32 s3, 0\ns_cbranch_scc1 K1_k2p")
            for m in range(4): a(f"ds_write_b64 v8, v[{ACC+4*m}:{ACC+4*m+1}] offset:{(m>>1)*1024 + (m&1)*256}")
            a("s_branch K1_kvst\nK1_k2p:\ns_mov_b64 exec, 0xffff")
            for m in range(4): a(f"ds_write_b32 v9, v{ACC+4*m} offset:{2048 + 64*m}")
            a("s_mov_b64 exec, -1\ns_branch K1_kvst")
        else:
            a(f"v_lshlrev_b32 v7, 5, v2\nv_add_u32 v7, {EX + 768}, v7")
            a("v_and_b32 v8, 1, v2\nv_mul_u32_u24 v8, 19, v8\nv_add_u32 v8, v8, v1\nv_lshlrev_b32 v8, 4, v8\nv_lshrrev_b32 v10, 1, v2\nv_lshl_add_u32 v8, v10, 3, v8")
            a("s_lshr_b32 s56, s3, 1\ns_lshl_b32 s56, s56, 8\nv_add_u32 v8, s56, v8\nv_cmp_eq_u32 s[54:55], 2, v1\nv_cmp_gt_u32 s[58:59], 3, v1\ns_nop 1")
            a("s_cmp_eq_u32 s3, 3\ns_cselect_b64 s[54:55], s[54:55], 0\ns_cselect_b64 s[58:59], s[58:59], -1")
            a("s_barrier")
            for m in range(4): a(f"ds_read_b128 v[{216+8*m}:{219+8*m}], v7 offset:{128*m}\nds_read_b128 v[{220+8*m}:{223+8*m}], v7 offset:{128*m+16}")
            a("s_waitcnt lgkmcnt(0)")
            for m in range(4):
                b = ACC + 4*m
                for r in range(4): a(f"v_fmac_f32 v{b+r}, v{CS}, v{216+8*m+2*r}\nv_mul_f32 v{b+r}, v{b+r}, v{217+8*m+2*r}")
                a(f"v_cvt_pk_bf16_f32 v{b}, v{b}, v{b+1}\nv_cvt_pk_bf16_f32 v{b+1}, v{b+2}, v{b+3}")
                a(f"v_cndmask_b32 v{b}, v{b}, v{ON}, s[54:55]\nv_cndmask_b32 v{b+1}, v{b+1}, v{ON}, s[54:55]")
            a("s_mov_b64 exec, s[58:59]")
            for m in range(4): a(f"ds_write_b64 v8, v[{ACC+4*m}:{ACC+4*m+1}] offset:{2304 + 608*m}")
            a("s_mov_b64 exec, -1")
    a("K1_kvst:")
    a("s_lshl_b32 s49, s3, 10\nv_lshlrev_b32 v3, 4, v0\nv_add_u32 v3, s49, v3\ns_waitcnt lgkmcnt(0)\ns_barrier")
    a("ds_read_b128 v[16:19], v3\nds_read_b128 v[20:23], v3 offset:1024\ns_waitcnt lgkmcnt(1)\nbuffer_store_dwordx4 v[16:19], v3, s[36:39], s48 offen sc1")
    a("s_waitcnt lgkmcnt(0)\ns_cmp_lg_u32 s3, 3\ns_cbranch_scc1 K1_fin\ns_mov_b32 exec_hi, 0xff\nbuffer_store_dwordx4 v[20:23], v3, s[36:39], s48 offen offset:1024 sc1\ns_mov_b64 exec, -1")
    a("s_branch K1_fin")
    a("K1_wbar:")
    for p in range(XA, 9): a(xdma())
    srd(a, 24, 12, 0, DM*DM*2)
    a("s_cmp_lt_u32 s44, 18\ns_cselect_b32 s26, s26, 0")
    a("s_cmp_ge_u32 s44, 16\ns_cbranch_scc1 K1_wb_hi")
    a("s_mul_i32 s50, s44, 36\ns_lshr_b32 s51, s3, 1\ns_mul_i32 s51, s51, 18\ns_add_u32 s50, s50, s51\ns_and_b32 s51, s3, 1\ns_lshl_b32 s51, s51, 2\ns_add_u32 s50, s50, s51")
    a("v_lshrrev_b32 v13, 2, v4\nv_lshlrev_b32 v13, 3, v13\nv_and_b32 v14, 3, v4\nv_add_u32 v13, v13, v14")
    a("s_branch K1_wb_go")
    a("K1_wb_hi:")
    a("s_sub_u32 s50, s44, 16\ns_mul_i32 s50, s50, 288\ns_mul_i32 s51, s3, 72\ns_add_u32 s50, s50, s51\ns_add_u32 s50, s50, 16")
    a("v_lshrrev_b32 v13, 1, v4\nv_mul_u32_u24 v13, 18, v13\nv_and_b32 v14, 1, v4\nv_add_u32 v13, v13, v14")
    a("K1_wb_go:")
    a(f"s_mul_i32 s50, s50, {DM*2}\nv_mul_u32_u24 v13, {DM*2}, v13\nv_lshl_add_u32 v13, v5, 4, v13")
    for i in range(9):
        a(f"buffer_load_dwordx4 v[{100+4*i}:{103+4*i}], v13, s[24:27], s50 offen offset:{128*i}")
    xaddr(66)
    ws_srd(a, 68, "XC", 14)
    ws_srd(a, 20, "WBAR", 14)
    a(f"v_lshlrev_b32 v3, 4, v0\ns_lshr_b32 s48, s46, 4\ns_mul_i32 s48, s48, 18432\ns_waitcnt vmcnt(9)")
    for ks in range(18): a(xrd(X0 + 4*ks, ks))
    a("s_waitcnt vmcnt(0)\ns_cmp_ge_u32 s44, 18\ns_cbranch_scc1 K1_xc")
    a(f"s_mov_b32 s56, {ONES}\nv_mov_b32 v6, 0\nv_mov_b32 v7, 0")
    for i in range(36):
        a(f"v_dot2_f32_bf16 v{6+i%2}, v{100+i}, s56, v{6+i%2}")
    a("s_nop 2\nv_add_f32 v6, v6, v7\ns_nop 1")
    for x in (1, 2, 4):
        a(f"ds_swizzle_b32 v7, v6 offset:{(x << 10) | 0x1f}\ns_waitcnt lgkmcnt(0)\nv_add_f32 v6, v6, v7")
    a(f"v_mul_f32 v6, {f32bits(1.0/DM)}, v6")
    a("v_cvt_pk_bf16_f32 v7, v6, v6\nv_lshlrev_b32 v8, 16, v7\nv_sub_f32 v8, v6, v8\nv_cvt_pk_bf16_f32 v8, v8, v8")
    a(f"s_lshl_b32 s47, s3, 8\nv_lshlrev_b32 v9, 5, v5\nv_lshl_add_u32 v9, v4, 1, v9\nv_add_u32 v9, s47, v9\nds_write_b16 v9, v7\nds_write_b16 v9, v8 offset:16")
    a("v_lshlrev_b32 v9, 2, v0\nv_add_u32 v10, s47, v9\nds_read_b32 v7, v10\ns_lshl_b32 s50, s44, 10\ns_add_u32 s50, s50, s47\ns_add_u32 s51, s50, 18432\ns_waitcnt lgkmcnt(0)")
    a("buffer_store_dword v7, v9, s[20:23], s50 offen sc1\nbuffer_store_dword v7, v9, s[20:23], s51 offen sc1")
    a("K1_xc:\ns_waitcnt lgkmcnt(0)")
    for ks in range(18):
        if ks and ks % 4 == 0: a("s_add_u32 s48, s48, 4096")
        a(f"buffer_store_dwordx4 {V4(X0+4*ks)}, v3, s[68:71], s48 offen offset:{(ks%4)*1024}{ST}")
    a("K1_fin:")

K2_GRID = 256
K2_LDS = 32 * PAIR + 9216
def k2(a, st, force_fallback=False):
    FB = WS["FLAG"][0]
    a(f"s_mov_b32 s3, s{SW}\ns_waitcnt lgkmcnt(0)")
    ws_srd(a, 36, "FLAG", 14)
    a(f"s_mul_i32 s{SE}, s{SE}, 0x9e3779b1\ns_add_u32 s{SE}, s{SE}, 0x7f4a7c15\nv_mov_b32 v4, s{SE}\nv_lshlrev_b32 v5, 2, v0\ns_lshl_b32 s45, s90, 7\ns_add_u32 s45, s45, {FL_AF}")
    st(19)
    a("s_waitcnt vmcnt(0)\ns_barrier")
    a("s_cmp_lg_u32 s3, 0\ns_cbranch_scc1 K2_naf\ns_mov_b32 exec_lo, -1\ns_mov_b32 exec_hi, 0\nbuffer_store_dword v4, v5, s[36:39], s45 offen sc1\ns_mov_b64 exec, -1\nK2_naf:")
    a(f"s_setprio 0\ns_load_dwordx2 s[4:5], s[0:1], {K_OUT}\ns_load_dwordx4 s[8:11], s[0:1], {B_W1}")
    a("v_and_b32 v1, 31, v0\nv_lshrrev_b32 v2, 5, v0\nv_lshlrev_b32 v3, 4, v0")
    st(17)
    a("s_lshr_b32 s40, s2, 2\ns_and_b32 s41, s2, 3\ns_lshl_b32 s41, s41, 3\ns_add_u32 s41, s41, s3")
    a(f"s_mul_i32 s42, s2, 9216\ns_lshl_b32 s43, s3, 10\ns_add_u32 s42, s42, s43\ns_add_u32 s43, s43, {32*PAIR}")
    a("s_lshl_b32 s44, s3, 10")
    ws_srd(a, 16, "KV", 14)
    ws_srd(a, 20, "Q", 14)
    Q1, Q2 = 8, 12
    def dma(r):
        txt = f"s_mov_b32 m0, s44\ns_nop 0\nbuffer_load_dwordx4 v3, s[16:19], s44 offen sc1 lds\ns_add_u32 s44, s44, 8192"
        if r == 18:
            L = a.label("dm")
            txt = f"s_cmp_ge_u32 s3, 4\ns_cbranch_scc1 {L}\n{txt}\n{L}:"
        return txt
    a("s_and_b32 s45, s2, 3\ns_mul_i32 s45, s45, 3\ns_lshr_b32 s45, s45, 1\ns_lshl_b32 s45, s45, 5\ns_lshr_b32 s46, s2, 3\ns_add_u32 s45, s45, s46")
    a("v_add_u32 v30, 192, v0\nv_lshlrev_b32 v31, 5, v1\nv_add_u32 v31, s45, v31\nv_cmp_gt_u32 vcc, 32, v0\ns_nop 1\nv_cndmask_b32 v30, v31, v30, vcc\nv_lshlrev_b32 v30, 7, v30")
    a(f"s_mov_b32 s45, {FL_AF}")
    if OPT.get("a_one", True):
        a("s_cmp_lg_u32 s3, 1\ns_cbranch_scc1 K2_np")
        poll(a, 34, 30, 36, 45, 31, OPT.get("a_slp", 2))
        a("K2_np:\ns_barrier")
    else:
        poll(a, 34, 30, 36, 45, 31, OPT.get("a_slp", 2))
    st(18)
    a("s_cmp_lg_u32 s3, 0\ns_cbranch_scc1 K2_q1")
    a(f"s_mov_b32 m0, {32*PAIR + 8192}\ns_add_u32 s45, s42, 8192\nbuffer_load_dwordx4 v3, s[20:23], s45 offen sc1 lds")
    a("K2_q1:")
    a("s_mov_b32 m0, s43\ns_nop 0\nbuffer_load_dwordx4 v3, s[20:23], s42 offen sc1 lds")
    a(dma(0)); a(dma(1)); a(dma(2))
    a(f"v_mov_b32 v{Q2+1}, 0")
    ws_srd(a, 24, "O", 14)
    a(f"v_lshrrev_b32 v4, 4, v1\nv_mul_u32_u24 v4, 4608, v4\nv_and_b32 v5, 15, v1\nv_lshl_add_u32 v4, v5, 3, v4\nv_add_u32 v4, {32*PAIR}, v4")
    a("s_mul_i32 s45, s3, 9\nv_lshlrev_b32 v5, 2, v2\nv_add_u32 v5, s45, v5")
    for i in range(5):
        if i < 4: a(f"v_add_u32 v30, {i}, v5")
        else: a("s_add_u32 s45, s45, 8\nv_mov_b32 v30, s45")
        a(f"v_lshrrev_b32 v31, 1, v30\nv_lshl_add_u32 v31, v31, 7, v4\nv_and_b32 v30, 1, v30\nv_lshl_add_u32 v{25+i}, v30, 2, v31")
    SEG = 13
    VKA, VK2, VVA = 14, 17, 20
    a(f"v_mul_u32_u24 v23, 19, v2\nv_add_u32 v23, v23, v1\nv_lshlrev_b32 v23, 4, v23\nv_mov_b32 v24, 0x40000\nv_cmp_gt_u32 vcc, 19, v1\ns_nop 1\nv_cndmask_b32 v{VVA}, v24, v23, vcc")
    a(f"v_mov_b32 v{VKA}, v3\nv_lshlrev_b32 v{VK2}, 2, v0")
    for b in (VKA, VK2, VVA):
        a(f"v_add_u32 v{b+1}, {SEG*PAIR}, v{b}\nv_add_u32 v{b+2}, {2*SEG*PAIR}, v{b}")
    SA, SB, P, O, NM = 32, 64, 96, 112, 128
    KF, K2F, VF = 144, 160, 164
    FOLD = OPT.get("fold", True)
    a(f"v_mov_b32 v{K2F+1}, {ONES if FOLD else 0}\nv_mov_b32 v{K2F+3}, {ONES if FOLD else 0}")
    for r in range(16): a(f"v_mov_b32 v{O+r}, 0")
    rp = Repack(a)
    def w3(txt):
        L = a.label("w3")
        return (f"s_cmp_lt_u32 s3, 5" if OPT.get("w3hi", True) else f"s_cmp_ge_u32 s3, 3") + f"\ns_cbranch_scc1 {L}\n{txt}\n{L}:"
    def seg(p): return p // SEG, (p % SEG) * PAIR
    def rdK(i, p):
        sg, o = seg(p)
        return [f"ds_read_b128 v[{KF+8*i}:{KF+8*i+3}], v{VKA+sg} offset:{o}",
                f"ds_read_b128 v[{KF+8*i+4}:{KF+8*i+7}], v{VKA+sg} offset:{o+1024}",
                f"ds_read_b32 v{K2F+2*i}, v{VK2+sg} offset:{o+2048}"]
    def rdV(i, p):
        sg, o = seg(p)
        return [f"ds_read_b128 v[{VF+16*i+4*q}:{VF+16*i+4*q+3}], v{VVA+sg} offset:{o+2304+608*q}" for q in range(4)]
    def qk(S, i, c):
        return [f"v_mfma_f32_32x32x16_bf16 v[{S}:{S+15}], v[{KF+8*i}:{KF+8*i+3}], v[{Q1}:{Q1+3}], {c}",
                f"v_mfma_f32_32x32x16_bf16 v[{S+16}:{S+31}], v[{KF+8*i+4}:{KF+8*i+7}], v[{Q1}:{Q1+3}], {c}",
                f"v_mfma_f32_32x32x4_2b_bf16 v[{S}:{S+31}], v[{K2F+2*i}:{K2F+2*i+1}], v[{Q2}:{Q2+1}], v[{S}:{S+31}]"]
    def pvm(vs_, u):
        return f"v_mfma_f32_32x32x16_bf16 v[{O}:{O+15}], v[{VF+16*vs_+4*u}:{VF+16*vs_+4*u+3}], v[{P+4*u}:{P+4*u+3}], v[{O}:{O+15}]"
    def rowmax(S, dst, first):
        L = []; r = 0
        if first:
            L.append(f"v_max_f32 v{dst}, v{S}, v{S+1}"); r = 2
        while r < 32:
            L.append(f"v_max3_f32 v{dst}, v{S+r}, v{S+r+1}, v{dst}"); r += 2
        return L
    def set_nm(src):
        a(f"v_mov_b32 v25, v{src}\ns_nop 1\nv_permlane32_swap_b32 v{src}, v25\ns_nop 1\nv_max_f32 v{src}, v{src}, v25")
        for r in range(16): a(f"v_sub_f32 v{NM+r}, 0, v{src}")
    def E(cur, g):
        b = cur + 4 * g
        return [f"v_exp_f32 v{b+r}, v{b+r}" for r in range(4)] + \
               [f"v_cvt_pk_bf16_f32 v{P+2*g}, v{b}, v{b+1}", f"v_cvt_pk_bf16_f32 v{P+2*g+1}, v{b+2}, v{b+3}"]
    NMr = f"v[{NM}:{NM+15}]"
    nt_ = " nt" if OPT["k2_nt"] else ""
    def uidx(rnd):
        t = ("" if rnd else ffn_map(34, 35)) + f"s_mov_b32 s45, s34\ns_mul_i32 s47, s35, 11\ns_add_u32 s47, s47, s3\n"
        if rnd: t += "s_add_u32 s47, s47, 3\ns_cmp_lt_u32 s3, 5\ns_cselect_b32 s47, 400, s47\n"
        return t
    a("s_waitcnt lgkmcnt(0)")
    RPS = [rp.common() + "\n" + uidx(0) + rp.setup_ffn(0, 8, 10), uidx(1) + rp.setup_ffn(1, 8, 10)]
    if OPT.get("rps", 1) == 0: a(RPS[0]); a(RPS[1])
    if OPT["prio"]: a("s_setprio 1")
    st(0)
    a("s_waitcnt vmcnt(2)\ns_barrier")
    st(1)
    for i in range(5): a(f"ds_read_b32 v{Q1+i}, v{25+i}")
    for x in rdK(0, 0) + rdK(1, 1) + rdV(0, 0): a(x)
    a("s_waitcnt lgkmcnt(7)")
    q = qk(SA, 0, "0")
    a(q[0]); a(q[1]); a("s_nop 9"); a(q[2]); a("s_nop 15\ns_nop 3")
    for x in rowmax(SA, 24, True): a(x)
    if force_fallback:
        a(f"v_add_f32 v24, {f32bits(-100.0)}, v24")
    if FOLD:
        a("v_mov_b32 v25, v24\ns_nop 1\nv_permlane32_swap_b32 v24, v25\ns_nop 1\nv_max_f32 v24, v24, v25")
        a(f"v_cvt_pk_bf16_f32 v25, -v24, -v24\nv_mov_b32 v{NM}, 0\nv_lshlrev_b32 v26, 16, v25\nv_sub_f32 v26, -v24, v26\nv_cvt_pk_bf16_f32 v{Q2+1}, -v24, v26\nv_cvt_pk_bf16_f32 v{NM+1}, -v24, v26\ns_nop 1")
        a(f"v_mfma_f32_32x32x4_2b_bf16 v[{SA}:{SA+31}], v[{K2F}:{K2F+1}], v[{NM}:{NM+1}], v[{SA}:{SA+31}]\ns_nop 15\ns_nop 1")
    else:
        set_nm(24)
        for r in range(32): a(f"v_add_f32 v{SA+r}, v{SA+r}, v{NM}")
    st(2)
    extra = {i: [] for i in range(32)}
    pre = {i: [] for i in range(32)}
    r = 3
    for i in range(8):
        extra[i] += [dma(r), dma(r + 1)]; r += 2
    pre[0].append("s_waitcnt vmcnt(0)\ns_barrier"); pre[3].append("s_waitcnt vmcnt(2)\ns_barrier"); pre[9].append(f"v_mov_b32 v196, 0\nv_mov_b32 v197, 0\nv_mov_b32 v198, 0\nv_mov_b32 v199, 0\nv_mov_b32 v200, {ffn.CNT}\nds_write_b128 v200, v[196:199]\nds_write_b128 v200, v[196:199] offset:16\nds_write_b128 v200, v[196:199] offset:32\ns_waitcnt vmcnt(0) lgkmcnt(0)\ns_barrier")
    for n in range(8):
        if OPT.get("rp1", False):
            extra[9 + n].append(rp.load(0, n, nt_)); extra[9 + n].append(w3(rp.load(1, n, nt_)))
        else:
            extra[9 + n // 2].append(rp.load(0, n, nt_))
            extra[13 + n // 2].append(w3(rp.load(1, n, nt_)))
    if OPT.get("rps", 1) == 1: pre[6].append(RPS[0]); pre[7].append(RPS[1])
    ST0 = OPT.get("k2_st0", 21)
    pre[ST0].append("s_waitcnt vmcnt(0)")
    for n in range(4):
        extra[ST0 + n // 2].append(rp.store(0, n, " sc1"))
        extra[ST0 + 2 + n // 2].append(w3(rp.store(1, n, " sc1")))
    pre[ST0 + 7].append("s_waitcnt vmcnt(0)")
    extra[ST0 + 7].append(f"v_mov_b32 v206, {ffn.CNT}\nv_mov_b32 v207, 1\ns_mov_b64 exec, 1\nds_add_rtn_u32 v205, v206, v207 offset:44\ns_mov_b64 exec, -1")
    extra[ST0 + 8].append(f"v_readfirstlane_b32 s45, v205\ns_cmp_lg_u32 s45, 7\ns_cbranch_scc1 K2_nrf\ns_lshl_b32 s45, s34, 5\ns_add_u32 s45, s45, s35\ns_lshl_b32 s45, s45, 7\ns_add_u32 s45, s45, {FL_RF}\n"
                          f"v_mov_b32 v206, s{SE}\nv_lshlrev_b32 v207, 2, v0\ns_mov_b32 exec_lo, -1\ns_mov_b32 exec_hi, 0\nbuffer_store_dword v206, v207, s[36:39], s45 offen sc1\ns_mov_b64 exec, -1\nK2_nrf:")
    if OPT.get("k2_touch", False):
        extra[ST0 + 7].append(rp.touch(0)); extra[ST0 + 8].append(w3(rp.touch(1)))
    extra[8].append(f"s_mov_b32 s45, {FL_AF + 224*128}\nv_lshlrev_b32 v206, 7, v1\nbuffer_load_dword v205, v206, s[36:39], s45 offen sc1")
    tmp = Asm(); tmp.uid = 9000
    poll(tmp, 32, 206, 36, 45, 205, 2, first_loaded=True)
    pre[9].append(tmp.text())
    EW = OPT.get("wo_early", 10)
    if EW:
        wo0, wosz = WS["WOF"]
        pre[22].append(f"s_lshr_b32 s77, s2, 5\ns_add_u32 s20, s14, {wo0}\ns_addc_u32 s21, s15, 0\ns_mov_b32 s22, {wosz}\ns_mov_b32 s23, 0x00020000\n"
                       f"s_lshl_b32 s32, s3, 10\ns_mul_i32 s33, s77, {108*1024}\ns_add_u32 s33, s33, s32\ns_waitcnt lgkmcnt(0)\ns_barrier")
        nb_ = 0
        for i in list(range(25, 32)) + list(range(22, 32)):
            if nb_ < EW and len(extra[i]) < 2:
                extra[i].append("s_mov_b32 m0, s32\ns_add_u32 s32, s32, 8192\nbuffer_load_dwordx4 v3, s[20:23], s33 offen sc1 lds\ns_add_u32 s33, s33, 8192"); nb_ += 1
        assert nb_ == EW
    if OPT.get("wo_touch", True):
        L = a.label("wt")
        wb0 = WS["WBAR"][0]; wsz = WS["WOF"][0] + WS["WOF"][1] - wb0
        extra[19].append(f"s_sub_u32 s56, s3, 3\ns_cmp_ge_u32 s56, 3\ns_cbranch_scc1 {L}\ns_lshr_b32 s57, s2, 3\ns_mul_i32 s57, s57, 3\ns_add_u32 s56, s56, s57\ns_lshl_b32 s56, s56, 13\n"
                         f"s_add_u32 s28, s14, {wb0}\ns_addc_u32 s29, s15, 0\ns_mov_b32 s30, {wsz}\ns_mov_b32 s31, 0x00020000\nv_lshlrev_b32 v206, 7, v0\nbuffer_load_dword v205, v206, s[28:31], s56 offen sc1\n{L}:")
    if OPT["codepf"]:
        L = a.label("cp")
        extra[18].append(f"s_lshr_b32 s56, s2, 3\ns_cmp_ge_u32 s56, CODE_PF_N\ns_cbranch_scc1 {L}\ns_cmp_lg_u32 s3, 0\ns_cbranch_scc1 {L}\n"
                         f"s_getpc_b64 s[58:59]\n{L}_pc:\ns_add_u32 s58, s58, K2_out-{L}_pc\ns_addc_u32 s59, s59, 0\n"
                         f"s_lshl_b32 s56, s56, 13\nv_lshlrev_b32 v206, 7, v0\nv_add_u32 v206, s56, v206\nv_min_u32 v206, CODE_END-K2_out-4, v206\nglobal_load_dword v205, v206, s[58:59]\n{L}:")
    for i in range(32):
        cur, nxt = (SA, SB) if i % 2 == 0 else (SB, SA)
        q = qk(nxt, (i + 1) % 2, "0" if FOLD else NMr) if i < 31 else ["", "", ""]
        vs_ = i % 2
        kr = rdK(i % 2, i + 2) if i + 2 < 32 else ["", "", ""]
        vrd = rdV((i + 1) % 2, i + 1) if i < 31 else [""] * 4
        e = [E(cur, g) for g in range(8)]
        assert len(extra[i]) <= 3
        ex = extra[i] + ["", "", ""]
        seq = list(pre[i])
        PP = OPT.get("pp", 4)
        if OPT["prio"] and i % PP in (0, OPT["prio"]):
            L = a.label("pr")
            seq.append(f"s_cmp_lt_u32 s3, 4\ns_cbranch_scc1 {L}\ns_setprio {2 if i % PP == 0 else 0}\n{L}:")
        seq += ["s_waitcnt lgkmcnt(0)", q[0]] + kr[0:2] + e[0]
        seq += [pvm(1 - vs_, 3) if i > 0 else ""] + kr[2:3] + vrd[0:1] + e[1]
        seq += [q[1]] + vrd[1:3] + e[2]
        seq += [pvm(vs_, 0)] + vrd[3:4] + e[3]
        seq += [q[2], ex[0]] + e[4] + e[5][:3]
        seq += [pvm(vs_, 1), ex[1]] + e[5][3:] + e[6][:2]
        seq += [pvm(vs_, 2), ex[2]] + e[6][2:] + e[7]
        for x in seq:
            if x: a(x)
        if i % 8 == 7: st(3 + i // 8)
    a("s_nop 1"); a(pvm(1, 3))
    a("s_setprio 0\ns_nop 15")
    def bcast_l():
        a(f"v_mov_b32 v25, v{O+10}\nv_mov_b32 v26, v{O+10}\ns_nop 1\nv_permlane32_swap_b32 v25, v26\ns_nop 1")
    bcast_l()
    a(f"v_mov_b32 v26, {f32bits(2.0**60)}\nv_cmp_nle_f32 vcc, v25, v26\nv_mov_b32 v26, {f32bits(2.0**-60)}\nv_cmp_lt_f32 s[52:53], v25, v26\ns_nop 4\ns_or_b64 vcc, vcc, s[52:53]\ns_cbranch_scc0 K2_out")
    a(f"v_mov_b32 v24, 0xff800000\nv_mov_b32 v{Q2+1}, 0")
    for ps in range(2):
        a(f"s_mov_b32 s52, 0\nv_mov_b32 v27, v{VKA}\nv_mov_b32 v28, v{VK2}\nv_mov_b32 v29, v{VVA}")
        a(f"K2_fb{ps}:")
        a(f"buffer_load_dwordx4 v[{KF}:{KF+3}], v27, s[16:19], 0 offen sc1\nbuffer_load_dwordx4 v[{KF+4}:{KF+7}], v27, s[16:19], 0 offen offset:1024 sc1\nbuffer_load_dword v{K2F}, v28, s[16:19], 0 offen offset:2048 sc1")
        if ps:
            a("s_movk_i32 s53, 2304")
            for u in range(4): a(f"buffer_load_dwordx4 v[{VF+4*u}:{VF+4*u+3}], v29, s[16:19], s53 offen offset:{608*u} sc1")
        a("s_waitcnt vmcnt(0)")
        q = qk(SA, 0, NMr if ps else "0")
        a(q[0]); a(q[1]); a("s_nop 9"); a(q[2]); a("s_nop 15\ns_nop 3")
        if ps == 0:
            for x in rowmax(SA, 24, False): a(x)
        else:
            for g in range(8):
                for x in E(SA, g): a(x)
            a("s_nop 1")
            for u in range(4): a(pvm(0, u))
        a(f"v_add_u32 v27, {PAIR}, v27\nv_add_u32 v28, {PAIR}, v28\nv_add_u32 v29, {PAIR}, v29")
        a(f"s_add_u32 s52, s52, 1\ns_cmp_lt_u32 s52, 32\ns_cbranch_scc1 K2_fb{ps}")
        if ps == 0:
            set_nm(24)
            for r in range(16): a(f"v_mov_b32 v{O+r}, 0")
    a("s_nop 15")
    bcast_l()
    a("K2_out:")
    WR, XR, ACC, XRES = 12, 40, 112, 140
    a("s_lshr_b32 s77, s2, 5\ns_and_b32 s78, s2, 7\ns_lshl_b32 s78, s78, 2\ns_bfe_u32 s43, s2, 0x20003\ns_add_u32 s78, s78, s43")
    a("s_cmp_ge_u32 s3, 4\ns_cbranch_scc1 K2_noearly")
    a("s_lshl_b32 s46, s78, 2\ns_add_u32 s46, s46, s3")
    ws_srd(a, 48, "MEAN1", 14)
    ws_srd(a, 52, "XC", 14)
    a(f"s_mul_i32 s47, s77, 3072\ns_mul_i32 s30, s46, 18432\ns_add_u32 s47, s47, s30")
    for u in range(3):
        a(f"buffer_load_dwordx4 v[{XRES+4*u}:{XRES+4*u+3}], v3, s[52:55], s47 offen offset:{1024*u} sc1")
    a(f"v_and_b32 v166, 15, v0\nv_lshlrev_b32 v166, 2, v166\ns_lshl_b32 s65, s46, 7\nbuffer_load_dword v165, v166, s[48:51], s65 offen sc1")
    a("K2_noearly:")
    a(f"s_lshl_b32 s43, s34, 12\ns_add_u32 s43, s43, {FL_RF}\nv_lshlrev_b32 v161, 7, v1\nbuffer_load_dword v160, v161, s[36:39], s43 offen sc1")
    a(f"v_rcp_f32 v25, v25\ns_nop 0")
    for r in range(10): a(f"v_mul_f32 v{O+r}, v{O+r}, v25")
    for r in range(5): a(f"v_cvt_pk_bf16_f32 v{P+r}, v{O+2*r}, v{O+2*r+1}")
    a(f"v_lshrrev_b32 v26, 4, v1\nv_mul_u32_u24 v27, {18*1024}, v26\nv_and_b32 v28, 15, v1\nv_lshl_add_u32 v27, v28, 4, v27\nv_lshl_add_u32 v27, v2, 8, v27")
    a(f"s_mul_i32 s42, s40, {36*1024}\ns_lshl_b32 s43, s41, 9\ns_add_u32 s43, s43, s42")
    a(f"buffer_store_dwordx4 v[{P}:{P+3}], v27, s[24:27], s43 offen sc1")
    OSC = 32 * PAIR + 1024
    a(f"s_lshr_b32 s43, s3, 2\ns_lshl_b32 s43, s43, 8\ns_and_b32 s44, s3, 3\ns_lshl_b32 s44, s44, 2\ns_add_u32 s43, s43, s44\ns_add_u32 s43, s43, {OSC}")
    a(f"v_lshlrev_b32 v26, 9, v26\nv_lshl_add_u32 v26, v28, 4, v26\nv_add_u32 v26, s43, v26\ns_mov_b32 exec_lo, -1\ns_mov_b32 exec_hi, 0\nds_write_b32 v26, v{P+4}\ns_mov_b64 exec, -1")
    a(f"v_mov_b32 v172, {ffn.CNT}\nv_mov_b32 v8, 1\nv_lshlrev_b32 v9, 2, v0\nv_mov_b32 v174, s{SE}\ns_lshl_b32 s79, s2, 7\ns_add_u32 s79, s79, {FL_OF}")
    a(f"v_add_u32 v4, {OSC}, v3\nv_mul_u32_u24 v5, {18*1024}, v2\nv_lshl_add_u32 v5, v1, 4, v5")
    a("s_and_b32 s43, s2, 3\ns_lshl_b32 s43, s43, 9\ns_add_u32 s43, s43, s42\ns_add_u32 s43, s43, 16384")
    a("s_waitcnt lgkmcnt(0)\ns_barrier")
    st(7)
    a("s_cmp_lg_u32 s3, 0\ns_cbranch_scc1 K3_norem")
    a("ds_read_b128 v[12:15], v4\ns_waitcnt lgkmcnt(0)\nbuffer_store_dwordx4 v[12:15], v5, s[24:27], s43 offen sc1")
    a("K3_norem:")
    a("v_lshlrev_b32 v2, 4, v0\ns_mov_b32 s40, s77\ns_mov_b32 s41, s78")
    a("s_waitcnt vmcnt(0)\ns_mov_b64 exec, 1\nds_add_rtn_u32 v168, v172, v8 offset:36\ns_waitcnt lgkmcnt(0)\nv_readfirstlane_b32 s70, v168\ns_cmp_lg_u32 s70, 7\ns_cbranch_scc1 K3_nofl")
    a("s_mov_b32 exec_lo, -1\ns_mov_b32 exec_hi, 0\nbuffer_store_dword v174, v9, s[36:39], s79 offen sc1\nK3_nofl:\ns_mov_b64 exec, -1")
    a("s_cmp_ge_u32 s3, 4\ns_cbranch_scc1 K3_loader")
    a("v_add_u32 v3, 0x10000, v2\nv_add_u32 v4, 0x20000, v2\nv_and_b32 v5, 15, v0\nv_lshrrev_b32 v6, 4, v0\nv_lshlrev_b32 v7, 7, v0")
    a("v_lshlrev_b32 v11, 2, v5\nv_mov_b32 v10, v165")
    st(8)
    a("s_cmp_ge_u32 s40, 6\ns_cbranch_scc1 K4_compute")
    a(f"s_lshl_b32 s43, s41, 3\ns_lshr_b32 s44, s3, 1\ns_lshl_b32 s44, s44, 2\ns_add_u32 s43, s43, s44\ns_lshl_b32 s43, s43, 7\ns_add_u32 s43, s43, {FL_OF}")
    ws_srd(a, 52, "HC", 14)
    ws_srd(a, 60, "SS", 14)
    a("s_barrier")
    st(13)
    for j in range(7):
        off = j * 1024 if j < 6 else 108 * 1024
        a(f"ds_read_b128 v[{12+4*j}:{15+4*j}], v{2 + off // 65536} offset:{off % 65536}")
    poll(a, 4, 7, 36, 43, 164, 1)
    st(9)
    a("s_mul_i32 s44, s40, 3072")
    def oload(ks):
        t = ""
        if ks % 3 == 0:
            t = "s_add_u32 s45, s30, s44\ns_add_u32 s44, s44, 3072\ns_cmp_eq_u32 s44, 18432\ns_cselect_b32 s44, 0, s44\n"
        return t + f"buffer_load_dwordx4 v[{XR+4*ks}:{XR+4*ks+3}], v2, s[24:27], s45 offen offset:{(ks%3)*1024} sc1"
    OD = OPT.get("k3_od", 6)
    for ks in range(OD): a(oload(ks))
    st(10)
    def wread(ks, j):
        off = (ks * 6 + j) * 1024 if j < 6 else (108 + ks) * 1024
        return f"ds_read_b128 v[{WR+4*j}:{WR+4*j+3}], v{2 + off // 65536} offset:{off % 65536}"
    nl = OD
    for ks in range(18):
        for j in range(7):
            a((f"s_waitcnt vmcnt({nl-1-ks}) " if j == 0 else "s_waitcnt ") + f"lgkmcnt({6 if ks < 17 else 6-j})")
            c = "0" if ks == 0 else f"v[{ACC+4*j}:{ACC+4*j+3}]"
            a(f"v_mfma_f32_16x16x32_bf16 v[{ACC+4*j}:{ACC+4*j+3}], v[{WR+4*j}:{WR+4*j+3}], v[{XR+4*ks}:{XR+4*ks+3}], {c}")
            if ks < 17: a(wread(ks + 1, j))
            if j in (1, 4) and nl < 18:
                a(oload(nl)); nl += 1
    a("s_barrier")
    st(11)
    e = ACC + 24
    a(f"s_nop 6\nv_add_f32 v10, v10, v{e}\nv_add_f32 v10, v10, v{e+1}\nv_mov_b32 v14, 0")
    for u in range(3):
        for r in range(4):
            x = XRES + 4 * u + r
            lo, hi = ACC + 8 * u + r, ACC + 8 * u + 4 + r
            a(f"v_lshlrev_b32 v12, 16, v{x}\nv_and_b32 v13, 0xffff0000, v{x}")
            a(f"v_add_f32 v{lo}, v{lo}, v12\nv_add_f32 v{hi}, v{hi}, v13")
            a(f"v_sub_f32 v{lo}, v{lo}, v10\nv_sub_f32 v{hi}, v{hi}, v10")
            a(f"v_cvt_pk_bf16_f32 v{XR+4*u+r}, v{lo}, v{hi}")
        a(f"buffer_store_dwordx4 v[{XR+4*u}:{XR+4*u+3}], v2, s[52:55], s47 offen offset:{1024*u} sc1")
    for i in range(12): a(f"v_dot2_f32_bf16 v14, v{XR+i}, v{XR+i}, v14")
    a("s_nop 2")
    sum_g(a, 14, 12)
    a("v_cmp_eq_u32 vcc, 1, v6\ns_lshl_b32 s43, s46, 3\ns_add_u32 s43, s43, s40\ns_lshl_b32 s43, s43, 7\nv_cndmask_b32 v14, v14, v10, vcc\ns_mov_b32 exec_lo, -1\ns_mov_b32 exec_hi, 0")
    a("buffer_store_dword v14, v9, s[60:63], s43 offen sc1")
    a(f"s_lshl_b32 s43, s46, 3\ns_add_u32 s43, s43, s40\ns_lshl_b32 s43, s43, 7\ns_add_u32 s43, s43, {FL_HF}")
    a("s_waitcnt vmcnt(0)\nbuffer_store_dword v174, v9, s[36:39], s43 offen sc1\ns_mov_b64 exec, -1")
    st(12)
    a("s_branch K4_compute")
    a("K3_loader:")
    a(f"v_mov_b32 v4, {ffn.CNT}")
    a("s_sub_u32 s33, s3, 4\ns_cmp_ge_u32 s40, 6\ns_cbranch_scc1 K3_pf")
    ws_srd(a, 20, "WOF", 14)
    ws_srd(a, 68, "WBAR", 14)
    a(f"s_lshl_b32 s76, s33, 10\ns_mul_i32 s75, s40, {108*1024}\ns_add_u32 s74, s76, {EW*8192}\ns_add_u32 s75, s75, s74")
    a("s_mul_i32 s77, s40, 3072\ns_add_u32 s76, s76, s77")
    for i in range(2*EW, 32):
        sd, so = ((20, 75) if i < 27 else (68, 76))
        a(f"s_mov_b32 m0, s74\ns_add_u32 s74, s74, 4096\nbuffer_load_dwordx4 v2, s[{sd}:{sd+3}], s{so} offen sc1 lds\ns_add_u32 s{so}, s{so}, 4096")
    a("s_waitcnt vmcnt(0)\ns_barrier")
    a("K3_pf:")
    a("s_cmp_ge_u32 s40, 6\ns_cbranch_scc1 K4_helper\ns_barrier\ns_branch K4_helper")
    k4(a, st)
    a("s_endpgm\nCODE_END:")
    return kernel_desc(NAME + "_kernel", 256)

def rf_check(a, first_loaded):
    a(f"s_lshl_b32 s43, s34, 12\ns_add_u32 s43, s43, {FL_RF}")
    poll(a, 32, 161, 36, 43, 160, 2, first_loaded)
def h_bases(a, sw):
    a("v_add_u32 v3, 0x10000, v2\nv_add_u32 v4, 0x20000, v2")
    a(f"s_mul_i32 s42, s{sw}, 3\ns_lshr_b32 s43, s42, 1\ns_lshl_b32 s43, s43, 12\ns_and_b32 s44, s42, 1\ns_lshl_b32 s45, s44, 3\ns_add_u32 s43, s43, s45\ns_add_u32 s43, s43, {ffn.HB}")
    a("v_add_u32 v5, s43, v2")
    a("s_mul_i32 s45, s44, 4080\ns_add_u32 s45, s45, 8\nv_add_u32 v6, s45, v5")
def k4(a, st0):
    st = lambda i: st0(20 + i)
    a("K4_compute:\ns_mov_b32 s40, s34\ns_mov_b32 s41, s35")
    rf_check(a, True)
    a(f"s_lshl_b32 s46, s40, 2\ns_add_u32 s46, s46, s3\ns_mul_i32 s31, s46, {WST()*1024}")
    ws_srd(a, 20, "WF", 14)
    cs = ffn.Stream(a, PAT(), srdW=20, sW=31, v_lane16=2, v_h8=5, v_p=7, v_one=10, ACC=16, XF=112, TMP=160, RB=176,
                    RINGF=min(OPT.get('ring', 20), 19 if st0.on else 20), stamp=st, wflag=OPT.get('wflag', ' sc1'))
    cs.prefill(min(cs.RINGF, OPT.get("k4_pre", 18)))
    a("s_setprio 2")
    h_bases(a, 3)
    a("v_and_b32 v12, 15, v0\nv_lshrrev_b32 v13, 4, v0\ns_lshr_b32 s45, s3, 1\nv_lshl_add_u32 v13, v13, 1, s45\nv_and_b32 v14, 7, v0\nv_xor_b32 v13, v13, v14")
    a("s_and_b32 s45, s3, 1\ns_lshl_b32 s45, s45, 3\nv_lshl_add_u32 v13, v13, 4, s45\nv_lshl_add_u32 v7, v12, 7, v13\nv_add_u32 v8, 0x8000, v7")
    a(f"v_mov_b32 v10, 1\nv_mov_b32 v11, {ffn.CNT}")
    cs.run()
    LASTP = OPT.get("lastp", True)
    if LASTP:
        a("s_waitcnt lgkmcnt(0)\nv_readfirstlane_b32 s70, v175\ns_mov_b32 s33, 8\ns_cmp_eq_u32 s70, 3\ns_cbranch_scc1 K4_pubs")
    a("s_branch K4_work")
    PB, AC = 48, 112
    a("K4_helper:")
    a(f"s_setprio {OPT.get('k4_hprio', 0)}\ns_mov_b32 s40, s34\ns_mov_b32 s41, s35")
    a(f"s_mul_i32 s30, s41, 73728\ns_mul_i32 s90, s33, 18432\ns_add_u32 s30, s30, s90")
    ws_srd(a, 16, "HC", 14)
    a(f"s_lshl_b32 s43, s41, 2\ns_add_u32 s43, s43, s33\ns_lshl_b32 s43, s43, 10\ns_add_u32 s43, s43, {FL_HF}\nv_lshlrev_b32 v12, 7, v0")
    poll(a, 6, 12, 36, 43, 13, 1)
    st(9)
    for i in range(18):
        if i % 4 == 0: a("s_mov_b32 m0, s90\ns_add_u32 s90, s90, 4096")
        a(f"buffer_load_dwordx4 v2, s[16:19], s30 offen offset:{(i%4)*1024} sc1 lds")
        if i % 4 == 3: a("s_add_u32 s30, s30, 4096")
        if i >= 5 and i % 3 == 2: a("s_waitcnt vmcnt(3)\ns_barrier")
    a("s_waitcnt vmcnt(0)\ns_barrier")
    a("s_cmp_lg_u32 s2, 0\ns_cbranch_scc1 K4_nep\ns_cmp_lg_u32 s33, 3\ns_cbranch_scc1 K4_nep\ns_mov_b32 s74, s34\ns_mov_b32 s34, 0\nK4_epl:")
    rf_check(a, False)
    a(f"s_add_u32 s34, s34, 1\ns_cmp_lt_u32 s34, 8\ns_cbranch_scc1 K4_epl\ns_mov_b32 s34, s74\nv_mov_b32 v13, s{SE}\nv_mov_b32 v14, 0")
    ws_srd(a, 52, "EP", 14)
    a("s_mov_b64 exec, 1\nbuffer_store_dword v13, v14, s[52:55], 0 offen sc1\ns_mov_b64 exec, -1\nK4_nep:")
    for i in range(ffn.N_BARRIERS_AFTER_X): a("s_barrier")
    NPUB = OPT.get("npub", 2)
    a(f"s_cmp_ge_u32 s33, {NPUB}\ns_cbranch_scc1 K4_work")
    def wait_cnt(L, slp):
        a(f"s_mov_b32 s72, 0x40000\n{L}:\nds_read_b32 v3, v4\ns_waitcnt lgkmcnt(0)\nv_readfirstlane_b32 s70, v3\ns_cmp_eq_u32 s70, 4\ns_cbranch_scc1 {L}_ok\ns_sleep {slp}\ns_sub_u32 s72, s72, 1\ns_cbranch_scc0 {L}\n{L}_ok:")
    SWZ = "v_lshrrev_b32 v5, 3, v0\nv_and_b32 v6, 7, v0\nv_xor_b32 v7, v5, v6\nv_lshlrev_b32 v7, 4, v7\nv_lshl_add_u32 v7, v5, 7, v7"
    a("K4_pubs:")
    ws_srd(a, 24, "PART", 14)
    a("s_mov_b32 s42, s33"); a(SWZ)
    a(f"s_lshl_b32 s44, s42, 13\nv_add_u32 v7, s44, v7\ns_lshl_b32 s44, s42, 2\ns_add_u32 s44, s44, {ffn.CNT}\nv_mov_b32 v4, s44")
    a("s_mul_i32 s49, s41, 9\ns_add_u32 s49, s49, s42\ns_lshl_b32 s47, s49, 16\ns_lshl_b32 s51, s49, 10")
    a("s_lshl_b32 s44, s40, 13\ns_add_u32 s47, s47, s44\ns_lshl_b32 s44, s40, 7\ns_add_u32 s51, s51, s44\nv_lshlrev_b32 v18, 2, v0")
    a(f"v_mov_b32 v13, s{SE}")
    a("K4_pub:")
    wait_cnt("K4_pw", 2)
    st0.dyn(34, 42)
    for i in range(8): a(f"ds_read_b128 v[{PB+4*i}:{PB+4*i+3}], v7 offset:{1024*i}")
    a("s_add_u32 s71, s47, 4096")
    for i in range(8):
        a(f"s_cmp_eq_u32 s40, {i}\ns_cbranch_scc1 K4_ps{i}\ns_waitcnt lgkmcnt({7-i})\nbuffer_store_dwordx4 v[{PB+4*i}:{PB+4*i+3}], v2, s[24:27], s{47 if i < 4 else 71} offen offset:{(i%4)*1024} sc1\nK4_ps{i}:")
    a("s_waitcnt vmcnt(0) lgkmcnt(0)\ns_mov_b32 exec_lo, -1\ns_mov_b32 exec_hi, 0\nbuffer_store_dword v13, v18, s[36:39], s51 offen sc1\ns_mov_b64 exec, -1")
    st0.dyn(43, 42)
    a(f"s_add_u32 s42, s42, {NPUB}\ns_add_u32 s47, s47, {NPUB << 16}\ns_add_u32 s51, s51, {NPUB << 10}\nv_add_u32 v7, {NPUB << 13}, v7\nv_add_u32 v4, {4*NPUB}, v4\ns_cmp_lt_u32 s42, {8 if LASTP else 9}\ns_cbranch_scc1 K4_pub")
    a("K4_work:")
    a(f"v_mov_b32 v14, {ffn.CNT}\nv_mov_b32 v15, 1")
    TAKE = "s_mov_b64 exec, 1\nds_add_rtn_u32 v3, v14, v15 offset:40\ns_mov_b64 exec, -1\ns_waitcnt lgkmcnt(0)\nv_readfirstlane_b32 s42, v3\ns_cmp_ge_u32 s42, 9\ns_cbranch_scc1 K4_fin"
    a(TAKE)
    ws_srd(a, 16, "HC", 14)
    ws_srd(a, 24, "PART", 14)
    ws_srd(a, 56, "SS", 14)
    srd(a, 60, 4, 0, T*DM*2)
    a(SWZ)
    a("s_lshl_b32 s43, s40, 3\nv_add_u32 v8, s43, v5")
    a("v_lshrrev_b32 v19, 4, v8\nv_lshlrev_b32 v19, 10, v19\nv_and_b32 v16, 15, v8\nv_lshl_add_u32 v19, v16, 2, v19\ns_lshl_b32 s65, s41, 12\nbuffer_load_dword v140, v19, s[56:59], s65 offen offset:64 sc1")
    for nb in range(6): a(f"buffer_load_dword v{144+nb}, v19, s[56:59], s65 offen offset:{128*nb} sc1")
    a("s_lshl_b32 s44, s40, 10\nv_add_u32 v9, s44, v7\nv_lshlrev_b32 v12, 7, v0")
    a("v_lshrrev_b32 v10, 4, v8\nv_mul_u32_u24 v10, 18432, v10\nv_lshl_add_u32 v10, v6, 8, v10\nv_and_b32 v11, 15, v8\nv_lshl_add_u32 v10, v11, 4, v10")
    a(f"v_mul_u32_u24 v11, {DM*2}, v8\nv_lshl_add_u32 v11, v6, 4, v11")
    a("v_and_b32 v19, 1, v0\nv_cmp_eq_u32 s[66:67], 1, v19\ns_mov_b32 s68, 0x00003f80\ns_mov_b32 s69, 0x3f800000\ns_mov_b32 s74, 0")
    a("K4_red:")
    a("s_mul_i32 s30, s41, 73728\ns_lshl_b32 s44, s42, 11\ns_add_u32 s30, s30, s44\nbuffer_load_dwordx4 v[20:23], v10, s[16:19], s30 offen sc1")
    a(f"s_mul_i32 s64, s41, {64*DM*2}\ns_lshl_b32 s44, s42, 7\ns_add_u32 s64, s64, s44")
    a(f"s_lshl_b32 s44, s42, 13\nv_add_u32 v7, s44, v9\ns_lshl_b32 s44, s42, 2\ns_add_u32 s44, s44, {ffn.CNT}\nv_mov_b32 v4, s44")
    a("s_mul_i32 s49, s41, 9\ns_add_u32 s49, s49, s42\ns_lshl_b32 s71, s49, 16\ns_lshl_b32 s51, s49, 10\ns_lshl_b32 s44, s40, 10\ns_add_u32 s71, s71, s44")
    wait_cnt("K4_rw", 4)
    poll(a, 8, 12, 36, 51, 3, OPT.get("red_slp", 2))
    st0.dyn(52, 42)
    for j in range(8):
        b = PB + 4*j
        a(f"s_cmp_eq_u32 s40, {j}\ns_cbranch_scc1 K4_ro{j}\nbuffer_load_dwordx4 v[{b}:{b+3}], v2, s[24:27], s71 offen sc1\ns_branch K4_rp{j}\nK4_ro{j}:\nds_read_b128 v[{b}:{b+3}], v7\nK4_rp{j}:\ns_add_u32 s71, s71, 8192")
    a("s_cmp_lg_u32 s74, 0\ns_cbranch_scc1 K4_hs\ns_mov_b32 s74, 1")
    a("v_add_f32 v144, v144, v145\nv_add_f32 v146, v146, v147\nv_add_f32 v148, v148, v149\nv_add_f32 v144, v144, v146\nv_add_f32 v144, v144, v148")
    a(f"v_mov_b32 v145, {f32bits(1e-5)}\nv_fmac_f32 v145, {f32bits(1.0/DM)}, v144\nv_rsq_f32 v142, v145\nK4_hs:")
    for i in range(4):
        a(f"v_lshlrev_b32 v{24+2*i}, 16, v{20+i}\nv_and_b32 v{25+2*i}, 0xffff0000, v{20+i}\nv_add_f32 v{24+2*i}, v{24+2*i}, v140\nv_add_f32 v{25+2*i}, v{25+2*i}, v140")
    a("s_waitcnt lgkmcnt(0)")
    for j in range(8):
        a(f"s_waitcnt vmcnt({max(0, 6-j)})")
        for qq in range(2):
            for p in range(2):
                src = PB + 4*j + 2*qq + p
                d0, d1 = AC + 4*p + qq, AC + 4*p + 2 + qq
                if OPT.get("red_dot", False):
                    for hh, d in ((0, d0), (1, d1)):
                        a(f"v_dot2_f32_bf16 v{d}, v{src}, s{68+hh}, {'0' if j == 0 else f'v{d}'}")
                elif j == 0:
                    a(f"v_lshlrev_b32 v{d0}, 16, v{src}\nv_and_b32 v{d1}, 0xffff0000, v{src}")
                else:
                    a(f"v_lshlrev_b32 v16, 16, v{src}\nv_and_b32 v{src}, 0xffff0000, v{src}\nv_add_f32 v{d0}, v{d0}, v16\nv_add_f32 v{d1}, v{d1}, v{src}")
    a("s_nop 2")
    for i in range(4):
        a(f"v_cndmask_b32 v{AC+8+i}, v{AC+4+i}, v{AC+i}, s[66:67]")
        a(f"v_cndmask_b32 v{AC+12+i}, v{AC+i}, v{AC+4+i}, s[66:67]")
    a("s_nop 1")
    for i in range(4):
        a(f"v_mov_b32_dpp v{AC+16+i}, v{AC+8+i} quad_perm:[1,0,3,2] row_mask:0xf bank_mask:0xf")
    for hlf in range(2):
        for e in range(2):
            k_, r_ = AC + 12 + 2*hlf + e, AC + 16 + 2*hlf + e
            a(f"v_cndmask_b32 v{AC+4*hlf+e}, v{k_}, v{r_}, s[66:67]\nv_cndmask_b32 v{AC+4*hlf+2+e}, v{r_}, v{k_}, s[66:67]")
    for i in range(4):
        a(f"v_fmac_f32 v{24+2*i}, v{AC+2*i}, v142\nv_fmac_f32 v{25+2*i}, v{AC+2*i+1}, v142\nv_cvt_pk_bf16_f32 v{40+i}, v{24+2*i}, v{25+2*i}")
    a("buffer_store_dwordx4 v[40:43], v11, s[60:63], s64 offen" + OPT.get("oflag", ""))
    st0.dyn(8, 42)
    a(TAKE + "\ns_branch K4_red")
    a("K4_fin:")
    st0.finish(14, 3, 8)

HEADER = open("cdna_kernels/" + NAME + ".s.ref").read().split("; Override launch geometry")[0]
def build(stamp_k=-1, force_fallback=False, light=False, **opt):
    LIGHT[0] = light
    OPT.update(opt)
    a = Asm()
    hdr = HEADER + f"; @launch grid=({K1_GRID},1,1) block=(512,1,1) lds={max(K1_LDS, K2_LDS)}\n"
    a('.amdgcn_target "amdgcn-amd-amdhsa--gfx950"\n.text')
    st = Stamps(a, stamp_k == 2, 2, 255, 254)
    k1(a, st)
    descs = [k2(a, st, force_fallback)]
    a('.set CODE_PF_N, (CODE_END - K2_out + 8191) / 8192')
    a('.section .rodata,"a"')
    txt = a.text()
    if OPT.get("stf"):
        txt = "\n".join(ln.replace(" sc1", OPT["stf"]) if "buffer_store" in ln else ln for ln in txt.split("\n"))
    if OPT.get("ldf"):
        txt = "\n".join(ln.replace(" sc1", OPT["ldf"]) if ("buffer_load" in ln and "s[24:27]" in ln) else ln for ln in txt.split("\n"))
    return hdr + txt + "".join(descs)

if __name__ == "__main__":
    out = sys.argv[1] if len(sys.argv) > 1 else "cdna_kernels/" + NAME + ".s"
    kw = eval("dict(" + (sys.argv[2] if len(sys.argv) > 2 else "") + ")")
    open(out, "w").write(build(**kw))
```

```python
import sys, math
from asmlib import *
from gemm import gemm_core
import ffn

T, DM, NH, DH, F = 2048, 576, 32, 18, 4608
NAME = "sequential_preLN__grouped_kv_mqa__dense_activation_relu__prompt"
A_X, A_WQ, A_WK, A_WV, A_WO, B_X, B_W1, B_W2, K_OUT, K_DBG, K_WS = [8 * i for i in range(11)]
def _al(x, a=4096): return (x + a - 1) // a * a
PAIR = 4736
FL_PF, FL_OF, FL_HF, FL_RF = 0, 294912, 294912 + 32768, 294912 + 32768 + 131072
FL_AF = FL_RF + 32768
FL_END = FL_AF + 32768
SW, SE = 100, 101
WS = {}
_o = 0
for nm, sz in [("EP", 128), ("Q", T*DM*2), ("KV", 32*PAIR), ("MEAN1", T*8), ("O", T*DM*2), ("HC", T*DM*2),
               ("SS", 128*8*128), ("XC", T*DM*2), ("WBAR", 36*1024), ("WOF", 648*1024), ("WF", 32*332*1024),
               ("PART", 8*T*DM*2), ("FLAG", FL_END), ("STAMP", 16 << 20)]:
    WS[nm] = (_o, sz); _o += _al(sz)
WS_END = _o
QSCALE = math.log2(math.e) / math.sqrt(DH)
def f32bits(x):
    import struct
    return struct.unpack("<I", struct.pack("<f", x))[0]
ONES = 0x3f803f80

def ws_srd(a, d, nm, base):
    srd(a, d, base, WS[nm][0], WS[nm][1])

def wave_lane(a, s_wave=3):
    a(f"v_lshrrev_b32 v1, 6, v0\nv_and_b32 v0, 63, v0\ns_nop 0\nv_readfirstlane_b32 s{s_wave}, v1")

def sum_g(a, v, t):
    a(f"v_mov_b32 v{t}, v{v}\ns_nop 1\nv_permlane32_swap_b32 v{v}, v{t}\ns_nop 1\nv_add_f32 v{v}, v{v}, v{t}")
    a(f"v_mov_b32 v{t}, v{v}\ns_nop 1\nv_permlane16_swap_b32 v{v}, v{t}\ns_nop 1\nv_add_f32 v{v}, v{v}, v{t}")

LIGHT = [False]
OPT = dict(prio=3, k2_nt=True, codepf=True)
class Stamps:
    def __init__(self, a, on, kidx, vreg, vtmp):
        self.a, self.on, self.k, self.v, self.t = a, bool(on) or LIGHT[0], kidx, vreg, vtmp
        self.full = bool(on)
    def start(self):
        if self.on:
            self.a(f"s_memrealtime s[96:97]\ns_memtime s[98:99]\nv_mov_b32 v{self.v}, 0\ns_waitcnt lgkmcnt(0)\nv_writelane_b32 v{self.v}, s96, 62")
    def __call__(self, i):
        if self.full or (self.on and i == 61):
            if OPT.get("rt") and i != 61:
                self.a(f"s_memrealtime s[96:97]\ns_waitcnt lgkmcnt(0)\nv_writelane_b32 v{self.v}, s96, {i}")
            else:
                self.a(f"s_memtime s[96:97]\ns_waitcnt lgkmcnt(0)\ns_sub_u32 s96, s96, s98\nv_writelane_b32 v{self.v}, s96, {i}")
    def dyn(self, base, sreg):
        if self.full:
            self.a(f"s_memrealtime s[96:97]\ns_add_u32 m0, s{sreg}, {base}\ns_waitcnt lgkmcnt(0)\nv_writelane_b32 v{self.v}, s96, m0")
    def finish(self, s_ws, s_wave, nw):
        if self.on:
            a = self.a
            a("s_waitcnt vmcnt(0)")
            self(61)
            a(f"s_memrealtime s[96:97]\ns_waitcnt lgkmcnt(0)\nv_writelane_b32 v{self.v}, s96, 63")
            ws_srd(a, 92, "STAMP", s_ws)
            a(f"s_lshl_b32 s96, s2, 3\ns_add_u32 s96, s96, s{s_wave}\ns_lshl_b32 s96, s96, 8\ns_add_u32 s96, s96, {self.k << 21}")
            a(f"v_mbcnt_lo_u32_b32 v{self.t}, -1, 0\nv_mbcnt_hi_u32_b32 v{self.t}, -1, v{self.t}\nv_lshlrev_b32 v{self.t}, 2, v{self.t}")
            a(f"buffer_store_dword v{self.v}, v{self.t}, s[92:95], s96 offen")


def WST(): return OPT.get('wst', 326)
def PAT(): return OPT.get('pat', (3, 3, 2, 1))
class Repack:
    PR = 208
    def __init__(self, a): self.a = a
    def common(self):
        return (f"s_add_u32 s60, s14, {WS['WOF'][0]}\ns_addc_u32 s61, s15, 0\ns_mov_b32 s62, {WS['WF'][0] + WS['WF'][1] - WS['WOF'][0]}\ns_mov_b32 s63, 0x00020000\n"
                "v_and_b32 v6, 15, v0\nv_lshrrev_b32 v7, 4, v0\ns_mov_b32 s80, 0x05040100\ns_mov_b32 s81, 0x07060302")
    def regs(self, rnd): return 64 + 4 * rnd, 72 + 4 * rnd, 82 + 4 * rnd, 242 + rnd, 240 + rnd
    def setup_ffn(self, rnd, pw1, pw2):
        L = self.a.label("rp")
        SD, SB_, SO, vsrc, dst = self.regs(rnd)
        OWF = WS["WF"][0] - WS["WOF"][0]
        t = []; A = t.append
        A(f"s_mul_hi_u32 s46, s47, {(2**32 + 161)//162}\ns_mul_i32 s49, s46, 162\ns_sub_u32 s47, s47, s49")
        A(f"s_mul_hi_u32 s49, s47, {(2**32 + 8)//9}\ns_mul_i32 s50, s49, 9\ns_sub_u32 s50, s47, s50")
        A(f"s_mov_b32 s{SD+3}, 0x00020000\ns_lshl_b32 s54, s50, 7\nv_mov_b32 v{dst}, v3")
        A(f"s_cmp_lt_u32 s46, 2\ns_cselect_b32 s{SD+2}, {DM*F*2}, 0\ns_cselect_b32 s57, 0, 0x100000")
        A(f"s_mul_i32 s53, s45, {4*WST()}\ns_mul_i32 s55, s46, 162\ns_add_u32 s53, s53, s55\ns_add_u32 s53, s53, {OWF//1024}\ns_add_u32 s53, s53, s57")
        A(f"s_cmp_eq_u32 s46, 1\ns_cbranch_scc1 {L}_w2")
        A("s_mul_i32 s55, s49, 3\ns_add_u32 s53, s53, s55")
        for q in range(4):
            A(f"s_lshl_b32 s55, s50, 2\ns_add_u32 s55, s55, {q}\ns_mul_i32 s56, s55, 86\ns_lshr_b32 s56, s56, 8")
            A(f"s_lshr_b32 s58, s56, 2\ns_mul_i32 s58, s58, {4*WST()-54}\ns_mul_i32 s56, s56, {WST()-3}\ns_sub_u32 s56, s56, s58")
            A(f"s_add_u32 s55, s55, s56\ns_add_u32 s55, s55, s53\ns_lshl_b32 s{SO+q}, s55, 10")
        A(f"s_mov_b32 s{SD}, s{pw1}\ns_mov_b32 s{SD+1}, s{pw1+1}\ns_mul_i32 s53, s49, {32*F*2}\ns_mul_i32 s55, s45, {DM*2}\ns_add_u32 s53, s53, s55\ns_add_u32 s{SB_}, s53, s54")
        A(f"s_mov_b32 s{SB_+1}, {4*F*2}\ns_mov_b32 s{SB_+2}, {2*F*2}\ns_mov_b32 s{SB_+3}, {F*2}")
        A(f"v_mul_u32_u24 v{vsrc}, {8*F*2}, v7\nv_lshl_add_u32 v{vsrc}, v6, 3, v{vsrc}\ns_branch {L}_done")
        A(f"{L}_w2:")
        idx, siz = 0, 0
        cb = 0
        for n in PAT():
            for i in range(n):
                idx |= i << (2 * (cb + i)); siz |= n << (2 * (cb + i))
            cb += n
        A(f"s_lshl_b32 s55, s50, 1\ns_lshr_b32 s56, {idx}, s55\ns_and_b32 s56, s56, 3\ns_lshr_b32 s58, {siz}, s55\ns_and_b32 s58, s58, 3")
        A("s_mul_i32 s58, s58, s49\ns_add_u32 s53, s53, s58\ns_mul_i32 s58, s50, 18\ns_add_u32 s53, s53, s58\ns_mul_i32 s56, s56, 17\ns_sub_u32 s53, s53, s56")
        A(f"s_lshl_b32 s{SO}, s53, 10\ns_add_u32 s{SO+1}, s{SO}, {WST()*1024}\ns_add_u32 s{SO+2}, s{SO}, {2*WST()*1024}\ns_add_u32 s{SO+3}, s{SO}, {3*WST()*1024}")
        A(f"s_mov_b32 s{SD}, s{pw2}\ns_mov_b32 s{SD+1}, s{pw2+1}\ns_lshr_b32 s53, s49, 1\ns_lshl_b32 s53, s53, 6\ns_and_b32 s55, s49, 1\ns_lshl_b32 s55, s55, 1\ns_add_u32 s53, s53, s55")
        A(f"s_mul_i32 s55, s45, {DM}\ns_add_u32 s53, s53, s55\ns_mul_i32 s53, s53, {DM*2}\ns_add_u32 s{SB_}, s53, s54")
        A(f"s_mov_b32 s{SB_+1}, {DM*2}\ns_mov_b32 s{SB_+2}, {8*DM*2}\ns_mov_b32 s{SB_+3}, {4*DM*2}")
        A(f"v_mul_u32_u24 v{vsrc}, {16*DM*2}, v7\nv_lshl_add_u32 v{vsrc}, v6, 3, v{vsrc}")
        A(f"{L}_done:")
        return "\n".join(t)
    def setup_wo(self, rnd, pwo, scr):
        L = self.a.label("rp")
        SD, SB_, SO, vsrc, dst = self.regs(rnd)
        t = []; A = t.append
        A(f"s_mul_hi_u32 s49, s47, {(2**32 + 8)//9}\ns_mul_i32 s50, s49, 9\ns_sub_u32 s50, s47, s50")
        A(f"s_mov_b32 s{SD+3}, 0x00020000\ns_lshl_b32 s54, s50, 7")
        A(f"s_mov_b32 s{SD}, s{pwo}\ns_mov_b32 s{SD+1}, s{pwo+1}\ns_cmp_lt_u32 s47, 162\ns_cselect_b32 s{SD+2}, {DM*DM*2}, 0\ns_cselect_b32 s56, 0, 0x40000000")
        for e in range(2):
            A(f"s_lshl_b32 s55, s50, 1\ns_add_u32 s55, s55, {e}\ns_mul_i32 s57, s55, 86\ns_lshr_b32 s57, s57, 8\ns_mul_i32 s58, s57, 3\ns_cmp_lt_u32 s49, s58\ns_cselect_b32 s58, 54, 0")
            A(f"s_mul_i32 s57, s57, 42\ns_add_u32 s55, s55, s57\ns_add_u32 s55, s55, s58\ns_mul_i32 s57, s49, 3\ns_add_u32 s55, s55, s57\ns_lshl_b32 s55, s55, 11\ns_add_u32 s{SO+e}, s55, s56")
        A(f"v_lshrrev_b32 v245, 3, v6\nv_lshlrev_b32 v245, 11, v245\nv_and_b32 v246, 7, v6\nv_lshl_add_u32 v245, v246, 5, v245\nv_lshl_add_u32 v245, v7, 8, v245\nv_add_u32 v{dst}, s{scr}, v245")
        A(f"s_mov_b32 s{SB_+3}, {DM*2}\ns_cmp_ge_u32 s49, 16\ns_cbranch_scc1 {L}_wo2")
        A(f"s_mul_i32 s53, s49, {36*DM*2}\ns_mov_b32 s{SB_+1}, {8*DM*2}\ns_mov_b32 s{SB_+2}, {2*DM*2}")
        A(f"v_lshrrev_b32 v246, 1, v7\nv_mul_u32_u24 v246, 18, v246\nv_and_b32 v247, 1, v7\nv_lshl_add_u32 v246, v247, 2, v246\ns_branch {L}_wo3")
        A(f"{L}_wo2:")
        A(f"s_sub_u32 s53, s49, 16\ns_mul_i32 s53, s53, {288*DM*2}\ns_add_u32 s53, s53, {16*DM*2}\ns_mov_b32 s{SB_+1}, {36*DM*2}\ns_mov_b32 s{SB_+2}, {18*DM*2}")
        A(f"v_mul_u32_u24 v246, 72, v7")
        A(f"{L}_wo3:")
        A(f"s_add_u32 s{SB_}, s53, s54\nv_mul_u32_u24 v{vsrc}, {DM*2}, v246\nv_lshl_add_u32 v{vsrc}, v6, 3, v{vsrc}")
        return "\n".join(t)
    def load(self, rnd, s_, flag=""):
        SD, SB_, SO, vsrc, dst = self.regs(rnd)
        raw = self.PR + 16 * rnd
        t = f"s_mov_b32 s55, s{SB_}\n"
        if s_ & 4: t += f"s_add_u32 s55, s55, s{SB_+1}\n"
        if s_ & 2: t += f"s_add_u32 s55, s55, s{SB_+2}\n"
        if s_ & 1: t += f"s_add_u32 s55, s55, s{SB_+3}\n"
        return t + f"buffer_load_dwordx2 v[{raw+2*s_}:{raw+2*s_+1}], v{vsrc}, s[{SD}:{SD+3}], s55 offen{flag}"
    def store(self, rnd, q_, flag=""):
        SD, SB_, SO, vsrc, dst = self.regs(rnd)
        raw = self.PR + 16 * rnd
        t = 196 + 4 * (q_ % 2)
        L = [f"v_perm_b32 v{t+j}, v{raw+2*(2*j+1)+(q_>>1)}, v{raw+2*(2*j)+(q_>>1)}, s{80+(q_&1)}" for j in range(4)]
        L.append(f"buffer_store_dwordx4 v[{t}:{t+3}], v{dst}, s[60:63], s{SO+q_} offen{flag}")
        return "\n".join(L)
    def touch(self, rnd):
        SD, SB_, SO, vsrc, dst = self.regs(rnd)
        return "s_mov_b64 exec, 0xff\nv_lshlrev_b32 v204, 7, v0\n" + "\n".join(f"buffer_load_dword v205, v204, s[60:63], s{SO+q} offen sc1" for q in range(4)) + "\ns_mov_b64 exec, -1"

def ffn_map(sj, smb):
    SL = OPT.get("k4_sl", 1); lg = SL.bit_length() - 1
    return (f"s_and_b32 s46, s2, 7\ns_lshr_b32 s47, s2, 3\ns_and_b32 s{sj}, s46, {8//SL-1}\ns_lshl_b32 s{sj}, s{sj}, {lg}\ns_and_b32 s48, s47, {SL-1}\ns_add_u32 s{sj}, s{sj}, s48\n"
            f"s_lshr_b32 s{smb}, s46, {3-lg}\ns_lshl_b32 s{smb}, s{smb}, {5-lg}\ns_lshr_b32 s48, s47, {lg}\ns_add_u32 s{smb}, s{smb}, s48\n")

def poll(a, n, voff, srd_, soff, vt, slp=2, first_loaded=False):
    L = a.label("poll")
    m = (1 << n) - 1
    a(f"s_mov_b32 s91, 0x10000\ns_mov_b32 exec_lo, {m & 0xffffffff}\ns_mov_b32 exec_hi, {m >> 32}" + (f"\ns_branch {L}_1" if first_loaded else ""))
    a(f"{L}:\nbuffer_load_dword v{vt}, v{voff}, s[{srd_}:{srd_+3}], s{soff} offen{OPT.get('pollf', ' sc1')}\ns_waitcnt vmcnt(0)\n{L}_1:\nv_cmp_eq_u32 vcc, s{SE}, v{vt}\ns_nop 1\ns_cmp_eq_u64 vcc, exec\ns_cbranch_scc1 {L}_ok\ns_sleep {slp}\ns_sub_u32 s91, s91, 1\ns_cbranch_scc0 {L}\n{L}_ok:")
    a("s_mov_b64 exec, -1")

K1_GRID = 256
K1_LDS = 159744 + 1280
def k1(a, st0):
    st = lambda i: st0({3: 30, 22: 31, 23: 30, 2: 31}[i]) if i in (2, 3, 22, 23) else None
    XLQ, XLK = 73728, 86016
    KVI = OPT.get('kvi', 21504)
    ST = OPT.get('k1_st', ' sc1')
    LATE = OPT.get('late', False)
    EPX = f's_load_dword s{SE}, s[14:15], 0'
    EP0 = '' if LATE else '\n' + EPX
    EP1 = EPX if LATE else ''
    kernel_begin(a, NAME + "_kernel")
    if OPT["codepf"]:
        a(f"s_cmp_ge_u32 s2, {OPT.get('pfn', 256)}\ns_cbranch_scc1 K1_nopf")
        a("s_getpc_b64 s[58:59]\nK1_pc:\nv_lshlrev_b32 v252, 7, v0\nv_min_u32 v252, K2_out-K1_pc, v252\nglobal_load_dword v253, v252, s[58:59]")
        a("K1_nopf:")
    a(f"s_cmp_lt_u32 s2, {K1_GRID}\ns_cbranch_scc1 K1_go\ns_endpgm\nK1_go:")
    a(f"s_load_dwordx4 s[4:7], s[0:1], {A_X}\ns_load_dwordx4 s[8:11], s[0:1], {A_WK}\ns_load_dwordx2 s[12:13], s[0:1], {A_WO}\ns_load_dwordx2 s[14:15], s[0:1], {K_WS}")
    st0.start()
    wave_lane(a)
    a(f"v_and_b32 v1, 15, v0\nv_lshrrev_b32 v2, 4, v0\ns_mov_b32 s{SW}, s3")
    a("s_bfe_u32 s44, s2, 0x20001\ns_lshl_b32 s44, s44, 3\ns_bfe_u32 s61, s2, 0x30003\ns_add_u32 s44, s44, s61\ns_and_b32 s45, s2, 1\ns_lshl_b32 s45, s45, 2\ns_lshr_b32 s62, s2, 6\ns_add_u32 s45, s45, s62")
    a("s_mul_i32 s60, s62, 9\ns_lshr_b32 s60, s60, 2\ns_add_u32 s60, s60, s61\ns_and_b32 s61, s2, 7\ns_add_u32 s60, s60, s61")
    S1 = OPT.get("seg", 5)
    if S1 < 9:
        S2 = 9 - S1
        a(f"s_mul_i32 s61, s60, {(4096 + S2 - 1)//S2}\ns_lshr_b32 s61, s61, 12\ns_mul_i32 s61, s61, {S2}\ns_sub_u32 s71, s60, s61")
        a(f"s_cmp_ge_u32 s45, 6\ns_cselect_b32 s71, 0, s71\ns_add_u32 s71, s71, {S1}")
    a(f"s_mul_i32 s61, s60, {(4096 + S1 - 1)//S1}\ns_lshr_b32 s61, s61, 12\ns_mul_i32 s61, s61, {S1}\ns_sub_u32 s60, s60, s61")
    def adv(slot, unit):
        if slot == S1 - 1 and S1 < 9: return f"s_mul_i32 s61, s71, {unit}"
        if slot < S1: return f"s_add_u32 s61, s61, {unit}\ns_cmp_eq_u32 s61, {S1*unit}\ns_cselect_b32 s61, 0, s61"
        return f"s_add_u32 s61, s61, {unit}\ns_cmp_eq_u32 s61, {9*unit}\ns_cselect_b32 s61, {S1*unit}, s61"
    a(f"s_cmp_ge_u32 s45, 6\ns_cselect_b32 s60, 0, s60\ns_mov_b32 s63, {XLQ}\ns_cselect_b32 s63, {XLK}, s63")
    a("v_lshrrev_b32 v4, 3, v0\nv_and_b32 v5, 7, v0\ns_lshl_b32 s90, s45, 5\ns_add_u32 s90, s90, s44")
    EX = 159744
    X0 = 16
    AR = 172
    ACC, CS, RS, GR, WF, ON = 88, 192, 112, 116, 120, 168
    ONr = f"v[{ON}:{ON+3}]"
    def V4(b): return f"v[{b}:{b+3}]"
    def lane_rc():
        a("v_lshrrev_b32 v10, 2, v1\nv_and_b32 v11, 3, v1\nv_lshl_add_u32 v12, v2, 3, v10")
    def xaddr(sbase):
        a(f"v_and_b32 v7, 7, v1\nv_xor_b32 v8, v2, v7\nv_lshlrev_b32 v8, 4, v8\nv_lshl_add_u32 v8, v1, 7, v8\nv_add_u32 v8, s{sbase}, v8\nv_xor_b32 v9, 64, v8")
        a("v_add_u32 v190, 0x8000, v8\nv_add_u32 v191, 0x8000, v9")
    def xrd(reg, ks, extra=0):
        p, e = divmod(ks, 2)
        b, o = (8 + e, 8192 * p) if p < 4 else (190 + e, 8192 * (p - 4))
        return f"ds_read_b128 {V4(reg)}, v{b} offset:{o + extra}"
    def waddr(shalf):
        a("v_lshrrev_b32 v13, 1, v10\nv_and_b32 v14, 1, v2\nv_lshl_add_u32 v13, v14, 1, v13")
        a("v_lshlrev_b32 v15, 7, v12\nv_lshl_add_u32 v15, v11, 3, v15\nv_lshlrev_b32 v7, 6, v12\nv_lshl_add_u32 v7, v11, 3, v7\nv_add_u32 v7, 4096, v7")
        a(f"s_cmp_eq_u32 s{shalf}, 1\ns_cselect_b64 vcc, -1, 0\ns_mul_i32 s55, s{shalf}, 3")
        a(f"v_xor_b32 v184, s55, v13\nv_lshl_add_u32 v{AR}, v184, 5, v15\nv_add_u32 v{AR+3}, 512, v{AR}")
        for t in (1, 2):
            a(f"v_xor_b32 v184, {t}, v13\nv_lshl_add_u32 v184, v184, 5, v15\nv_xor_b32 v185, {t-1}, v14\nv_lshl_add_u32 v185, v185, 5, v7")
            a(f"v_cndmask_b32 v{AR+t}, v184, v185, vcc\nv_add_u32 v184, 512, v184\nv_add_u32 v185, 256, v185\nv_cndmask_b32 v{AR+3+t}, v184, v185, vcc")
        for i in range(6): a(f"v_add_u32 v{AR+6+i}, {9*6144}, v{AR+i}")
    def wrd(reg, ks, t):
        hi = ks >= 9
        off = (ks - 9 * hi) * 6144
        return [f"ds_read_b64_tr_b16 v[{reg}:{reg+1}], v{AR+6*hi+t} offset:{off}", f"ds_read_b64_tr_b16 v[{reg+2}:{reg+3}], v{AR+6*hi+3+t} offset:{off}"]
    def stat_mfma(x, first):
        return [f"v_mfma_f32_16x16x32_bf16 {V4(RS)}, {ONr}, {V4(x)}, {'0' if first else V4(RS)}",
                f"v_mfma_f32_16x16x32_bf16 {V4(GR)}, {V4(x)}, {V4(x)}, {'0' if first else V4(GR)}"]
    def stats_out():
        a("v_cmp_eq_u32 vcc, 1, v11\nv_cmp_eq_u32 s[54:55], 2, v11\nv_cmp_eq_u32 s[56:57], 3, v11\nv_cmp_eq_u32 s[58:59], v10, v2\ns_nop 3")
        a(f"v_mul_f32 v4, {f32bits(-1.0/DM)}, v{RS}")
        a(f"v_cndmask_b32 v5, v{GR}, v{GR+1}, vcc\nv_cndmask_b32 v5, v5, v{GR+2}, s[54:55]\nv_cndmask_b32 v5, v5, v{GR+3}, s[56:57]\nv_cndmask_b32 v5, 0, v5, s[58:59]")
        sum_g(a, 5, 7)
        a(f"v_mul_f32 v5, {f32bits(1.0/DM)}, v5\nv_fma_f32 v5, -v4, v4, v5\nv_max_f32 v5, 0, v5\nv_add_f32 v5, {f32bits(1e-5)}, v5\nv_rsq_f32 v5, v5")
        a(f"s_lshl_b32 s54, s3, 7\ns_add_u32 s54, s54, {EX + 768}\nv_lshlrev_b32 v7, 3, v1\nv_add_u32 v7, s54, v7\nds_write_b64 v7, v[4:5]")
    if OPT.get("wtlb", False):
        a(f"s_cmp_lg_u32 s3, 7\ns_cbranch_scc1 K1_ntl\ns_load_dwordx4 s[24:27], s[0:1], {B_W1}\nv_lshlrev_b32 v250, 20, v0\ns_waitcnt lgkmcnt(0)")
        for b in (24, 26):
            a(f"s_mov_b32 s28, s{b}\ns_mov_b32 s29, s{b+1}\ns_mov_b32 s30, {DM*F*2}\ns_mov_b32 s31, 0x00020000\nbuffer_load_dword v251, v250, s[28:31], 0 offen nt")
        a("K1_ntl:")
    a("s_cmp_ge_u32 s3, 4\ns_cbranch_scc1 K1_ld")
    a("s_lshl_b32 s46, s44, 6\ns_lshl_b32 s47, s3, 4\ns_add_u32 s46, s46, s47")
    a(f"s_mul_i32 s47, s46, {DM*2}")
    a(f"v_xor_b32 v6, v4, v5\nv_mul_u32_u24 v3, {DM*2}, v4\nv_lshl_add_u32 v3, v6, 4, v3\nv_add_u32 v6, {8*DM*2 - 1024}, v3")
    a(f"s_lshl_b32 s61, s60, 7\ns_lshl_b32 s64, s3, 11\ns_add_u32 s64, s63, s64\ns_mov_b32 s66, s64")
    a(f"s_waitcnt lgkmcnt(0){EP0}")
    srd(a, 16, 4, 0, T*DM*2)
    def xdma(slot):
        return ("s_mov_b32 m0, s64\ns_add_u32 s62, s47, s61\ns_add_u32 s64, s64, 8192\n"
                "buffer_load_dwordx4 v3, s[16:19], s62 offen lds\nbuffer_load_dwordx4 v6, s[16:19], s62 offen offset:1024 lds\n"
                + adv(slot, 128))
    XA = OPT.get("k1_xa", 4)
    a(f"s_mov_b32 s70, {XA}\nK1_xl:"); assert XA < S1; a(xdma(0)); a("s_sub_u32 s70, s70, 1\ns_cmp_lg_u32 s70, 0\ns_cbranch_scc1 K1_xl\ns_branch K1_comp")
    a("K1_ld:")
    if OPT.get("lprio", 3): a(f"s_setprio {OPT.get('lprio', 3)}")
    a("s_cmp_eq_u32 s45, 7\ns_cbranch_scc1 K1_worp")
    a("s_sub_u32 s3, s3, 4")
    a("s_cmp_lg_u32 s45, 6\ns_cbranch_scc1 K1_qld")
    a(f"v_lshlrev_b32 v3, 4, v0\ns_and_b32 s48, s3, 1\ns_lshl_b32 s48, s48, 2\ns_mul_i32 s49, s3, {KVI}")
    a(f"s_waitcnt lgkmcnt(0){EP0}")
    a(f"s_cmp_lt_u32 s3, 2\ns_cselect_b32 s24, s8, s10\ns_cselect_b32 s25, s9, s11\ns_mov_b32 s26, {DM*DH*2}\ns_mov_b32 s27, 0x00020000")
    a(f"s_add_u32 s70, s49, {21*1024}\nK1_kl:\ns_mov_b32 m0, s49\ns_add_u32 s49, s49, 1024\nbuffer_load_dwordx4 v3, s[24:27], s48 offen lds\ns_add_u32 s48, s48, 1024\ns_cmp_lg_u32 s49, s70\ns_cbranch_scc1 K1_kl\ns_branch K1_kvload")
    a("K1_qld:")
    a("v_and_b32 v6, 1, v2\ns_and_b32 s48, s3, 1\ns_lshl_b32 s48, s48, 2\nv_lshlrev_b32 v6, 1, v6\nv_or_b32 v6, s48, v6\nv_xor_b32 v6, v6, v5")
    a(f"v_mul_u32_u24 v3, {DM*2}, v4\nv_lshl_add_u32 v3, v6, 4, v3")
    a("v_lshrrev_b32 v7, 5, v0\nv_lshlrev_b32 v7, 1, v7\nv_and_b32 v6, 3, v0\nv_xor_b32 v7, v7, v6\nv_lshrrev_b32 v6, 2, v0")
    a(f"v_mul_u32_u24 v6, {DM*2}, v6\nv_lshl_add_u32 v6, v7, 4, v6")
    a("s_mul_i32 s48, s45, 192\ns_and_b32 s53, s45, 1\ns_lshl_b32 s54, s53, 6\ns_add_u32 s49, s48, s54\ns_xor_b32 s53, s53, 1\ns_lshl_b32 s53, s53, 7\ns_add_u32 s50, s48, s53")
    a(f"s_mul_i32 s53, s3, {8*DM*2}\ns_add_u32 s49, s49, s53\ns_mul_i32 s53, s3, {16*DM*2}\ns_add_u32 s50, s50, s53")
    a("s_lshl_b32 s51, s3, 10")
    a("s_lshr_b32 s52, s3, 1\ns_mul_i32 s52, s52, 6144\ns_and_b32 s53, s3, 1\ns_lshl_b32 s53, s53, 10\ns_add_u32 s52, s52, s53\ns_add_u32 s52, s52, 4096")
    a(f"s_mul_i32 s61, s60, {64*DM*2}")
    a(f"s_waitcnt lgkmcnt(0){EP0}")
    srd(a, 20, 6, 0, DM*DM*2)
    def wdma(slot):
        a(f"s_add_u32 s62, s49, s61\ns_add_u32 s65, s50, s61\ns_add_u32 s64, s62, {32*DM*2}")
        a(f"s_mov_b32 m0, s51\ns_add_u32 s51, s51, 6144\nbuffer_load_dwordx4 v3, s[20:23], s62 offen lds")
        a(f"s_mov_b32 m0, s52\ns_add_u32 s52, s52, 12288\nbuffer_load_dwordx4 v6, s[20:23], s65 offen lds")
        a(f"s_mov_b32 m0, s51\ns_add_u32 s51, s51, 6144\nbuffer_load_dwordx4 v3, s[20:23], s64 offen lds")
        a(adv(slot, 64*DM*2))
    LA = OPT.get('k1_la', 3)
    a(f"s_mov_b32 s70, {LA}\nK1_wl:"); assert LA < S1; wdma(0); a("s_sub_u32 s70, s70, 1\ns_cmp_lg_u32 s70, 0\ns_cbranch_scc1 K1_wl")
    lane_rc()
    a("s_lshl_b32 s66, s3, 11\ns_add_u32 s66, s66, s63\ns_lshr_b32 s67, s3, 1")
    xaddr(66); waddr(67)
    a("s_and_b32 s55, s3, 1\ns_mul_i32 s55, s55, 6144")
    for i in range(12): a(f"v_add_u32 v{AR+i}, s55, v{AR+i}")
    for r in range(4): a(f"v_mov_b32 v{ON+r}, {ONES}")
    XE = 56
    for p in range(10):
        if p < 9:
            a(f"s_waitcnt vmcnt({3*(min(p + LA, 9) - p - 1)}) lgkmcnt(0)\ns_barrier")
            b = (p % 2) * 20
            if p == 0: a(EP1)
            if p < 8:
                a(xrd(X0 + b, 2*p)); a(xrd(X0 + b + 4, 2*p + 1))
            if p == 7:
                a(xrd(XE, 16)); a(xrd(XE + 4, 17))
            for t in range(3):
                for x in wrd(X0 + b + 8 + 4*t, 2*p if p != 4 else 8, t): a(x)
        else:
            a("s_waitcnt lgkmcnt(0)")
        if p > 0:
            b = ((p - 1) % 2) * 20
            if p < 9:
                for x in stat_mfma(X0 + b, p == 1) + stat_mfma(X0 + b + 4, False): a(x)
            if p == 8:
                for x in stat_mfma(XE, False) + stat_mfma(XE + 4, False): a(x)
            for t in range(3):
                a(f"v_mfma_f32_16x16x32_bf16 {V4(CS+4*t)}, {V4(X0+b+8+4*t)}, {ONr}, {'0' if p == 1 else V4(CS+4*t)}")
            if p == 8: stats_out()
        if p + LA < 9: wdma(p + LA)
    a(f"s_mul_i32 s54, s3, 192\ns_add_u32 s54, s54, {EX}\nv_lshlrev_b32 v7, 4, v2\nv_add_u32 v7, s54, v7\ns_nop 3")
    for t in range(3): a(f"ds_write_b128 v7, {V4(CS+4*t)} offset:{64*t}")
    a("s_waitcnt lgkmcnt(0)\ns_barrier\ns_branch K1_fin")
    a("K1_comp:")
    st(0)
    lane_rc()
    a("s_cmp_ge_u32 s45, 6\ns_cbranch_scc1 K1_kvgemm")
    a("s_and_b32 s68, s3, 1\ns_lshl_b32 s66, s68, 12\ns_add_u32 s66, s66, s63\ns_lshr_b32 s67, s3, 1")
    xaddr(66); waddr(67)
    ws_srd(a, 32, "Q", 14)
    def frags(ks):
        b = X0 + (ks % 2) * 20
        L = [xrd(b, ks), xrd(b + 4, ks, 2048)]
        for t in range(3): L += wrd(b + 8 + 4*t, ks, t)
        return L
    nx = XA
    a(f"s_waitcnt vmcnt({2*XA-2})\ns_barrier")
    st(2)
    a(EP1)
    for x in frags(0): a(x)
    for ks in range(18):
        p = ks // 2
        if ks % 2 == 1 and ks < 17:
            a(f"s_waitcnt vmcnt({2*(nx - p - 2) if ks < 13 else 0})" + (" lgkmcnt(6)" if ks == 9 else "") + "\ns_barrier")
        b = X0 + (ks % 2) * 20
        nf = frags(ks + 1) if ks < 17 else []
        issued = 0
        for t in range(3):
            a(f"s_waitcnt lgkmcnt({4 - 2*t + issued})")
            for m in range(2):
                d = ACC + (t*2 + m) * 4
                a(f"v_mfma_f32_16x16x32_bf16 {V4(d)}, {V4(b+8+4*t)}, {V4(b+4*m)}, {'0' if ks == 0 else V4(d)}")
                for x in nf[:2]: a(x); issued += 1
                nf = nf[2:]
        if ks % 2 == 0 and nx < 9:
            a(xdma(nx)); nx += 1
    st(3)
    a("v_lshlrev_b32 v3, 3, v0")
    a(f"s_lshl_b32 s48, s44, 1\ns_add_u32 s48, s48, s68\ns_mul_i32 s48, s48, {4*9216}")
    a("s_mul_i32 s49, s45, 6\ns_and_b32 s50, s45, 1\ns_lshl_b32 s51, s50, 1\ns_add_u32 s51, s51, s49\ns_lshl_b32 s50, s50, 2\ns_sub_u32 s52, s49, s50\ns_mul_i32 s69, s67, 3")
    a(f"s_mul_i32 s54, s67, 384\ns_add_u32 s54, s54, {EX}\nv_lshlrev_b32 v7, 4, v2\nv_add_u32 v7, s54, v7")
    a(f"s_lshl_b32 s54, s68, 8\ns_add_u32 s54, s54, {EX + 768}\nv_lshlrev_b32 v8, 3, v1\nv_add_u32 v8, s54, v8")
    a("s_barrier")
    a("ds_read_b64 v[12:13], v8\nds_read_b64 v[14:15], v8 offset:128")
    for i in range(6): a(f"ds_read_b128 {V4(CS+4*i)}, v7 offset:{64*i}")
    a(f"s_waitcnt lgkmcnt(0)\nv_mul_f32 v13, {f32bits(QSCALE)}, v13\nv_mul_f32 v15, {f32bits(QSCALE)}, v15")
    for t in range(3):
        a(f"s_add_u32 s53, s69, {t}\ns_cmp_lt_u32 s53, 4\ns_cselect_b32 s54, s51, s52\ns_add_u32 s53, s53, s54")
        a("s_mul_i32 s54, s53, 57\ns_lshr_b32 s54, s54, 9\ns_mul_i32 s54, s54, 4608\ns_lshl_b32 s53, s53, 9\ns_add_u32 s53, s53, s54\ns_add_u32 s53, s53, s48\ns_add_u32 s55, s53, 4608")
        for r in range(4): a(f"v_add_f32 v{CS+4*t+r}, v{CS+4*t+r}, v{CS+12+4*t+r}")
        for m in range(2):
            b = ACC + (t*2 + m) * 4
            for r in range(4): a(f"v_fmac_f32 v{b+r}, v{CS+4*t+r}, v{12+2*m}\nv_mul_f32 v{b+r}, v{b+r}, v{13+2*m}")
            a(f"v_cvt_pk_bf16_f32 v{b}, v{b}, v{b+1}\nv_cvt_pk_bf16_f32 v{b+1}, v{b+2}, v{b+3}")
            a(f"buffer_store_dwordx2 v[{b}:{b+1}], v3, s[32:35], s{53+2*m} offen{ST}")
    a("s_branch K1_fin")
    def kaddr():
        a(f"v_mul_u32_u24 v13, 36, v12\nv_lshl_add_u32 v13, v11, 3, v13\nv_and_b32 v14, 1, v10\nv_mul_u32_u24 v14, {KVI - 4}, v14\nv_add_u32 v{AR}, v13, v14")
        a(f"v_mul_u32_u24 v13, 36, v12\nv_add_u32 v{AR+1}, v13, v14")
    a("K1_kvload:")
    lane_rc()
    a("s_lshl_b32 s66, s3, 11\ns_add_u32 s66, s66, s63")
    xaddr(66)
    for r in range(4): a(f"v_mov_b32 v{ON+r}, {ONES}")
    ws_srd(a, 40, "MEAN1", 14)
    a(f"s_lshl_b32 s46, s44, 2\ns_add_u32 s46, s46, s3")
    a("s_waitcnt vmcnt(0)\ns_barrier")
    for ks in range(8): a(xrd(X0 + 4*ks, ks))
    for ks in range(18):
        a(f"s_waitcnt lgkmcnt({min(7, 17 - ks)})")
        for x in stat_mfma(X0 + 4*ks, ks == 0): a(x)
        if ks + 8 < 18: a(xrd(X0 + 4*(ks + 8), ks + 8))
    a("s_nop 3")
    stats_out()
    a("s_waitcnt lgkmcnt(0)\ns_barrier")
    a("v_sub_f32 v9, 0, v4\nv_lshlrev_b32 v7, 2, v0\ns_lshl_b32 s49, s46, 7\ns_mov_b32 exec_lo, -1\ns_mov_b32 exec_hi, 0\nbuffer_store_dword v9, v7, s[40:43], s49 offen sc1\ns_mov_b64 exec, -1")
    a("s_barrier\ns_branch K1_fin")
    a(f"K1_worp:\ns_waitcnt lgkmcnt(0){EP0}\nv_lshlrev_b32 v3, 4, v0")
    rp = Repack(a)
    a(rp.common())
    if OPT.get("wolate", True): a("s_barrier")
    for rnd in range(2):
        a(f"s_lshl_b32 s47, s44, 2\ns_add_u32 s47, s47, s3\ns_add_u32 s47, s47, {128*rnd - 4 & 0xffffffff}")
        a(f"s_lshl_b32 s59, s3, 13\ns_sub_u32 s59, s59, {32768 - 4096 - 4096*rnd}\nv_add_u32 v{16+rnd}, s59, v3")
        a(rp.setup_wo(rnd, 12, 59))
        for n in range(8): a(rp.load(rnd, n))
    for rnd in range(2):
        a(f"s_waitcnt vmcnt({8 if rnd == 0 else 4})")
        for n in range(4):
            t = rp.store(rnd, n).split("\n")[:4]
            a("\n".join(t) + f"\nds_write_b128 v{240+rnd}, v[{196+4*(n%2)}:{199+4*(n%2)}] offset:{(n&1)*1024 + (n>>1)*16}")
        for n in range(4): a(f"ds_read_b128 v[{32+16*rnd+4*n}:{35+16*rnd+4*n}], v{16+rnd} offset:{1024*n}")
        for n in range(4): a(f"s_waitcnt lgkmcnt({3-n})\nbuffer_store_dwordx4 v[{32+16*rnd+4*n}:{35+16*rnd+4*n}], v3, s[60:63], s{82+4*rnd+(n>>1)} offen offset:{1024*(n&1)} sc1")
    a("s_branch K1_fin")
    a("K1_kvgemm:")
    a("s_cmp_eq_u32 s45, 7\ns_cbranch_scc1 K1_wbar")
    for p in range(XA, 9): a(xdma(p))
    xaddr(63); kaddr()
    a(f"s_cmp_ge_u32 s3, 2\ns_cselect_b64 vcc, -1, 0\ns_and_b32 s55, s3, 1\ns_mul_i32 s55, s55, {2*KVI}\ns_lshr_b32 s56, s3, 1\ns_lshl_b32 s56, s56, 5\ns_add_u32 s55, s55, s56")
    a(f"v_cndmask_b32 v{AR}, v{AR}, v{AR+1}, vcc\nv_add_u32 v{AR}, s55, v{AR}")
    for r in range(4): a(f"v_mov_b32 v{ON+r}, {ONES}")
    ws_srd(a, 36, "KV", 14)
    a(f"s_mul_i32 s48, s44, {PAIR}")
    def kread(ks):
        b = X0 + (ks % 3) * 20
        return [f"ds_read_b64_tr_b16 v[{b}:{b+1}], v{AR} offset:{ks*1152}", f"ds_read_b64_tr_b16 v[{b+2}:{b+3}], v{AR} offset:{ks*1152 + 144}"] + \
               [xrd(b + 4 + 4*m, ks, 2048*m) for m in range(4)]
    a("s_waitcnt vmcnt(0)\ns_barrier")
    st(22)
    for x in kread(0) + kread(1): a(x)
    a("s_bitcmp1_b32 s3, 0\ns_cbranch_scc1 K1_vform")
    for form in range(2):
        if form: a("K1_vform:")
        for ks in range(18):
            b = X0 + (ks % 3) * 20
            fill = kread(ks + 2) if ks < 16 else []
            a(f"s_waitcnt lgkmcnt({6 if ks < 17 else 0})")
            for m in range(5):
                d, o = (ACC + 4*m, V4(b + 4 + 4*m)) if m < 4 else (CS, ONr)
                A_, B_ = (V4(b), o) if form == 0 else (o, V4(b))
                a(f"v_mfma_f32_16x16x32_bf16 {V4(d)}, {A_}, {B_}, {'0' if ks == 0 else V4(d)}")
                n = 2 if m == 0 else 1
                for y in fill[:n]: a(y)
                fill = fill[n:]
        st(23)
        if form == 0:
            a(f"v_lshlrev_b32 v7, 3, v1\nv_add_u32 v7, {EX + 768}, v7")
            a("v_lshrrev_b32 v8, 1, v2\nv_lshlrev_b32 v8, 9, v8\nv_lshl_add_u32 v8, v1, 4, v8\nv_and_b32 v9, 1, v2\nv_lshl_add_u32 v8, v9, 3, v8\nv_lshlrev_b32 v9, 2, v1")
            a("s_barrier")
            for m in range(4): a(f"ds_read_b64 v[{216+2*m}:{217+2*m}], v7 offset:{128*m}")
            a("s_waitcnt lgkmcnt(0)")
            for m in range(4):
                b = ACC + 4*m
                for r in range(4): a(f"v_fmac_f32 v{b+r}, v{CS+r}, v{216+2*m}\nv_mul_f32 v{b+r}, v{b+r}, v{217+2*m}")
                a(f"v_cvt_pk_bf16_f32 v{b}, v{b}, v{b+1}\nv_cvt_pk_bf16_f32 v{b+1}, v{b+2}, v{b+3}")
            a("s_cmp_lg_u32 s3, 0\ns_cbranch_scc1 K1_k2p")
            for m in range(4): a(f"ds_write_b64 v8, v[{ACC+4*m}:{ACC+4*m+1}] offset:{(m>>1)*1024 + (m&1)*256}")
            a("s_branch K1_kvst\nK1_k2p:\ns_mov_b64 exec, 0xffff")
            for m in range(4): a(f"ds_write_b32 v9, v{ACC+4*m} offset:{2048 + 64*m}")
            a("s_mov_b64 exec, -1\ns_branch K1_kvst")
        else:
            a(f"v_lshlrev_b32 v7, 5, v2\nv_add_u32 v7, {EX + 768}, v7")
            a("v_and_b32 v8, 1, v2\nv_mul_u32_u24 v8, 19, v8\nv_add_u32 v8, v8, v1\nv_lshlrev_b32 v8, 4, v8\nv_lshrrev_b32 v10, 1, v2\nv_lshl_add_u32 v8, v10, 3, v8")
            a("s_lshr_b32 s56, s3, 1\ns_lshl_b32 s56, s56, 8\nv_add_u32 v8, s56, v8\nv_cmp_eq_u32 s[54:55], 2, v1\nv_cmp_gt_u32 s[58:59], 3, v1\ns_nop 1")
            a("s_cmp_eq_u32 s3, 3\ns_cselect_b64 s[54:55], s[54:55], 0\ns_cselect_b64 s[58:59], s[58:59], -1")
            a("s_barrier")
            for m in range(4): a(f"ds_read_b128 v[{216+8*m}:{219+8*m}], v7 offset:{128*m}\nds_read_b128 v[{220+8*m}:{223+8*m}], v7 offset:{128*m+16}")
            a("s_waitcnt lgkmcnt(0)")
            for m in range(4):
                b = ACC + 4*m
                for r in range(4): a(f"v_fmac_f32 v{b+r}, v{CS}, v{216+8*m+2*r}\nv_mul_f32 v{b+r}, v{b+r}, v{217+8*m+2*r}")
                a(f"v_cvt_pk_bf16_f32 v{b}, v{b}, v{b+1}\nv_cvt_pk_bf16_f32 v{b+1}, v{b+2}, v{b+3}")
                a(f"v_cndmask_b32 v{b}, v{b}, v{ON}, s[54:55]\nv_cndmask_b32 v{b+1}, v{b+1}, v{ON}, s[54:55]")
            a("s_mov_b64 exec, s[58:59]")
            for m in range(4): a(f"ds_write_b64 v8, v[{ACC+4*m}:{ACC+4*m+1}] offset:{2304 + 608*m}")
            a("s_mov_b64 exec, -1")
    a("K1_kvst:")
    a("s_lshl_b32 s49, s3, 10\nv_lshlrev_b32 v3, 4, v0\nv_add_u32 v3, s49, v3\ns_waitcnt lgkmcnt(0)\ns_barrier")
    a("ds_read_b128 v[16:19], v3\nds_read_b128 v[20:23], v3 offset:1024\ns_waitcnt lgkmcnt(1)\nbuffer_store_dwordx4 v[16:19], v3, s[36:39], s48 offen sc1")
    a("s_waitcnt lgkmcnt(0)\ns_cmp_lg_u32 s3, 3\ns_cbranch_scc1 K1_fin\ns_mov_b32 exec_hi, 0xff\nbuffer_store_dwordx4 v[20:23], v3, s[36:39], s48 offen offset:1024 sc1\ns_mov_b64 exec, -1")
    a("s_branch K1_fin")
    a("K1_wbar:")
    for p in range(XA, 9): a(xdma(p))
    if OPT.get("wolate", True): a("s_waitcnt vmcnt(12)\ns_barrier")
    srd(a, 24, 12, 0, DM*DM*2)
    a("s_cmp_lt_u32 s44, 18\ns_cselect_b32 s26, s26, 0")
    a("s_cmp_ge_u32 s44, 16\ns_cbranch_scc1 K1_wb_hi")
    a("s_mul_i32 s50, s44, 36\ns_lshr_b32 s51, s3, 1\ns_mul_i32 s51, s51, 18\ns_add_u32 s50, s50, s51\ns_and_b32 s51, s3, 1\ns_lshl_b32 s51, s51, 2\ns_add_u32 s50, s50, s51")
    a("v_lshrrev_b32 v13, 2, v4\nv_lshlrev_b32 v13, 3, v13\nv_and_b32 v14, 3, v4\nv_add_u32 v13, v13, v14")
    a("s_branch K1_wb_go")
    a("K1_wb_hi:")
    a("s_sub_u32 s50, s44, 16\ns_mul_i32 s50, s50, 288\ns_mul_i32 s51, s3, 72\ns_add_u32 s50, s50, s51\ns_add_u32 s50, s50, 16")
    a("v_lshrrev_b32 v13, 1, v4\nv_mul_u32_u24 v13, 18, v13\nv_and_b32 v14, 1, v4\nv_add_u32 v13, v13, v14")
    a("K1_wb_go:")
    a(f"s_mul_i32 s50, s50, {DM*2}\nv_mul_u32_u24 v13, {DM*2}, v13\nv_lshl_add_u32 v13, v5, 4, v13")
    for i in range(9):
        a(f"buffer_load_dwordx4 v[{100+4*i}:{103+4*i}], v13, s[24:27], s50 offen offset:{128*i}")
    xaddr(66)
    ws_srd(a, 68, "XC", 14)
    ws_srd(a, 20, "WBAR", 14)
    a(f"v_lshlrev_b32 v3, 4, v0\ns_lshr_b32 s48, s46, 4\ns_mul_i32 s48, s48, 18432\ns_waitcnt vmcnt(9)")
    for ks in range(18): a(xrd(X0 + 4*ks, ks))
    a("s_waitcnt vmcnt(0)\ns_cmp_ge_u32 s44, 18\ns_cbranch_scc1 K1_xc")
    a(f"s_mov_b32 s56, {ONES}\nv_mov_b32 v6, 0\nv_mov_b32 v7, 0")
    for i in range(36):
        a(f"v_dot2_f32_bf16 v{6+i%2}, v{100+i}, s56, v{6+i%2}")
    a("s_nop 2\nv_add_f32 v6, v6, v7\ns_nop 1")
    for x in (1, 2, 4):
        a(f"ds_swizzle_b32 v7, v6 offset:{(x << 10) | 0x1f}\ns_waitcnt lgkmcnt(0)\nv_add_f32 v6, v6, v7")
    a(f"v_mul_f32 v6, {f32bits(1.0/DM)}, v6")
    a("v_cvt_pk_bf16_f32 v7, v6, v6\nv_lshlrev_b32 v8, 16, v7\nv_sub_f32 v8, v6, v8\nv_cvt_pk_bf16_f32 v8, v8, v8")
    a(f"s_lshl_b32 s47, s3, 8\nv_lshlrev_b32 v9, 5, v5\nv_lshl_add_u32 v9, v4, 1, v9\nv_add_u32 v9, s47, v9\nds_write_b16 v9, v7\nds_write_b16 v9, v8 offset:16")
    a("v_lshlrev_b32 v9, 2, v0\nv_add_u32 v10, s47, v9\nds_read_b32 v7, v10\ns_lshl_b32 s50, s44, 10\ns_add_u32 s50, s50, s47\ns_add_u32 s51, s50, 18432\ns_waitcnt lgkmcnt(0)")
    a("buffer_store_dword v7, v9, s[20:23], s50 offen sc1\nbuffer_store_dword v7, v9, s[20:23], s51 offen sc1")
    a("K1_xc:\ns_waitcnt lgkmcnt(0)")
    for ks in range(18):
        if ks and ks % 4 == 0: a("s_add_u32 s48, s48, 4096")
        a(f"buffer_store_dwordx4 {V4(X0+4*ks)}, v3, s[68:71], s48 offen offset:{(ks%4)*1024}{ST}")
    a("K1_fin:")

K2_GRID = 256
K2_LDS = 32 * PAIR + 9216
def k2(a, st, force_fallback=False):
    FB = WS["FLAG"][0]
    a(f"s_mov_b32 s3, s{SW}\ns_waitcnt lgkmcnt(0)")
    ws_srd(a, 36, "FLAG", 14)
    a(f"s_mul_i32 s{SE}, s{SE}, 0x9e3779b1\ns_add_u32 s{SE}, s{SE}, 0x7f4a7c15\nv_mov_b32 v4, s{SE}\nv_lshlrev_b32 v5, 2, v0\ns_lshl_b32 s45, s90, 7\ns_add_u32 s45, s45, {FL_AF}")
    st(19)
    a("s_waitcnt vmcnt(0)\ns_barrier")
    a("s_cmp_lg_u32 s3, 0\ns_cbranch_scc1 K2_naf\ns_mov_b32 exec_lo, -1\ns_mov_b32 exec_hi, 0\nbuffer_store_dword v4, v5, s[36:39], s45 offen sc1\ns_mov_b64 exec, -1\nK2_naf:")
    a(f"s_setprio 0\ns_load_dwordx2 s[4:5], s[0:1], {K_OUT}\ns_load_dwordx4 s[8:11], s[0:1], {B_W1}")
    a("v_and_b32 v1, 31, v0\nv_lshrrev_b32 v2, 5, v0\nv_lshlrev_b32 v3, 4, v0")
    st(17)
    a("s_lshr_b32 s40, s2, 2\ns_and_b32 s41, s2, 3\ns_lshl_b32 s41, s41, 3\ns_add_u32 s41, s41, s3")
    a(f"s_mul_i32 s42, s2, 9216\ns_lshl_b32 s43, s3, 10\ns_add_u32 s42, s42, s43\ns_add_u32 s43, s43, {32*PAIR}")
    a("s_lshl_b32 s44, s3, 10")
    ws_srd(a, 16, "KV", 14)
    ws_srd(a, 20, "Q", 14)
    Q1, Q2 = 8, 12
    def dma(r):
        txt = f"s_mov_b32 m0, s44\ns_nop 0\nbuffer_load_dwordx4 v3, s[16:19], s44 offen sc1 lds\ns_add_u32 s44, s44, 8192"
        if r == 18:
            L = a.label("dm")
            txt = f"s_cmp_ge_u32 s3, 4\ns_cbranch_scc1 {L}\n{txt}\n{L}:"
        return txt
    a("s_and_b32 s45, s2, 3\ns_mul_i32 s45, s45, 3\ns_lshr_b32 s45, s45, 1\ns_lshl_b32 s45, s45, 5\ns_lshr_b32 s46, s2, 3\ns_add_u32 s45, s45, s46")
    a("v_add_u32 v30, 192, v0\nv_lshlrev_b32 v31, 5, v1\nv_add_u32 v31, s45, v31\nv_cmp_gt_u32 vcc, 32, v0\ns_nop 1\nv_cndmask_b32 v30, v31, v30, vcc\nv_lshlrev_b32 v30, 7, v30")
    a(f"s_mov_b32 s45, {FL_AF}")
    if OPT.get("a_one", True):
        a("s_cmp_lg_u32 s3, 1\ns_cbranch_scc1 K2_np")
        poll(a, 34, 30, 36, 45, 31, OPT.get("a_slp", 2))
        a("K2_np:\ns_barrier")
    else:
        poll(a, 34, 30, 36, 45, 31, OPT.get("a_slp", 2))
    st(18)
    a("s_cmp_lg_u32 s3, 0\ns_cbranch_scc1 K2_q1")
    a(f"s_mov_b32 m0, {32*PAIR + 8192}\ns_add_u32 s45, s42, 8192\nbuffer_load_dwordx4 v3, s[20:23], s45 offen sc1 lds")
    a("K2_q1:")
    a("s_mov_b32 m0, s43\ns_nop 0\nbuffer_load_dwordx4 v3, s[20:23], s42 offen sc1 lds")
    a(dma(0)); a(dma(1)); a(dma(2))
    a(f"v_mov_b32 v{Q2+1}, 0")
    ws_srd(a, 24, "O", 14)
    a(f"v_lshrrev_b32 v4, 4, v1\nv_mul_u32_u24 v4, 4608, v4\nv_and_b32 v5, 15, v1\nv_lshl_add_u32 v4, v5, 3, v4\nv_add_u32 v4, {32*PAIR}, v4")
    a("s_mul_i32 s45, s3, 9\nv_lshlrev_b32 v5, 2, v2\nv_add_u32 v5, s45, v5")
    for i in range(5):
        if i < 4: a(f"v_add_u32 v30, {i}, v5")
        else: a("s_add_u32 s45, s45, 8\nv_mov_b32 v30, s45")
        a(f"v_lshrrev_b32 v31, 1, v30\nv_lshl_add_u32 v31, v31, 7, v4\nv_and_b32 v30, 1, v30\nv_lshl_add_u32 v{25+i}, v30, 2, v31")
    SEG = 13
    VKA, VK2, VVA = 14, 17, 20
    a(f"v_mul_u32_u24 v23, 19, v2\nv_add_u32 v23, v23, v1\nv_lshlrev_b32 v23, 4, v23\nv_mov_b32 v24, 0x40000\nv_cmp_gt_u32 vcc, 19, v1\ns_nop 1\nv_cndmask_b32 v{VVA}, v24, v23, vcc")
    a(f"v_mov_b32 v{VKA}, v3\nv_lshlrev_b32 v{VK2}, 2, v0")
    for b in (VKA, VK2, VVA):
        a(f"v_add_u32 v{b+1}, {SEG*PAIR}, v{b}\nv_add_u32 v{b+2}, {2*SEG*PAIR}, v{b}")
    SA, SB, P, O, NM = 32, 64, 96, 112, 128
    KF, K2F, VF = 144, 160, 164
    FOLD = OPT.get("fold", True)
    a(f"v_mov_b32 v{K2F+1}, {ONES if FOLD else 0}\nv_mov_b32 v{K2F+3}, {ONES if FOLD else 0}")
    for r in range(16): a(f"v_mov_b32 v{O+r}, 0")
    rp = Repack(a)
    def w3(txt):
        L = a.label("w3")
        return (f"s_cmp_lt_u32 s3, 5" if OPT.get("w3hi", True) else f"s_cmp_ge_u32 s3, 3") + f"\ns_cbranch_scc1 {L}\n{txt}\n{L}:"
    def seg(p): return p // SEG, (p % SEG) * PAIR
    def rdK(i, p):
        sg, o = seg(p)
        return [f"ds_read_b128 v[{KF+8*i}:{KF+8*i+3}], v{VKA+sg} offset:{o}",
                f"ds_read_b128 v[{KF+8*i+4}:{KF+8*i+7}], v{VKA+sg} offset:{o+1024}",
                f"ds_read_b32 v{K2F+2*i}, v{VK2+sg} offset:{o+2048}"]
    def rdV(i, p):
        sg, o = seg(p)
        return [f"ds_read_b128 v[{VF+16*i+4*q}:{VF+16*i+4*q+3}], v{VVA+sg} offset:{o+2304+608*q}" for q in range(4)]
    def qk(S, i, c):
        return [f"v_mfma_f32_32x32x16_bf16 v[{S}:{S+15}], v[{KF+8*i}:{KF+8*i+3}], v[{Q1}:{Q1+3}], {c}",
                f"v_mfma_f32_32x32x16_bf16 v[{S+16}:{S+31}], v[{KF+8*i+4}:{KF+8*i+7}], v[{Q1}:{Q1+3}], {c}",
                f"v_mfma_f32_32x32x4_2b_bf16 v[{S}:{S+31}], v[{K2F+2*i}:{K2F+2*i+1}], v[{Q2}:{Q2+1}], v[{S}:{S+31}]"]
    def pvm(vs_, u):
        return f"v_mfma_f32_32x32x16_bf16 v[{O}:{O+15}], v[{VF+16*vs_+4*u}:{VF+16*vs_+4*u+3}], v[{P+4*u}:{P+4*u+3}], v[{O}:{O+15}]"
    def rowmax(S, dst, first):
        L = []; r = 0
        if first:
            L.append(f"v_max_f32 v{dst}, v{S}, v{S+1}"); r = 2
        while r < 32:
            L.append(f"v_max3_f32 v{dst}, v{S+r}, v{S+r+1}, v{dst}"); r += 2
        return L
    def set_nm(src):
        a(f"v_mov_b32 v25, v{src}\ns_nop 1\nv_permlane32_swap_b32 v{src}, v25\ns_nop 1\nv_max_f32 v{src}, v{src}, v25")
        for r in range(16): a(f"v_sub_f32 v{NM+r}, 0, v{src}")
    def E(cur, g):
        b = cur + 4 * g
        return [f"v_exp_f32 v{b+r}, v{b+r}" for r in range(4)] + \
               [f"v_cvt_pk_bf16_f32 v{P+2*g}, v{b}, v{b+1}", f"v_cvt_pk_bf16_f32 v{P+2*g+1}, v{b+2}, v{b+3}"]
    NMr = f"v[{NM}:{NM+15}]"
    nt_ = " nt" if OPT["k2_nt"] else ""
    def uidx(rnd):
        t = ("" if rnd else ffn_map(34, 35)) + f"s_mov_b32 s45, s34\ns_mul_i32 s47, s35, 11\ns_add_u32 s47, s47, s3\n"
        if rnd: t += "s_add_u32 s47, s47, 3\ns_cmp_lt_u32 s3, 5\ns_cselect_b32 s47, 400, s47\n"
        return t
    a("s_waitcnt lgkmcnt(0)")
    RPS = [rp.common() + "\n" + uidx(0) + rp.setup_ffn(0, 8, 10), uidx(1) + rp.setup_ffn(1, 8, 10)]
    if OPT.get("rps", 1) == 0: a(RPS[0]); a(RPS[1])
    if OPT["prio"]: a("s_setprio 1")
    st(0)
    a("s_waitcnt vmcnt(2)\ns_barrier")
    st(1)
    for i in range(5): a(f"ds_read_b32 v{Q1+i}, v{25+i}")
    for x in rdK(0, 0) + rdK(1, 1) + rdV(0, 0): a(x)
    a("s_waitcnt lgkmcnt(7)")
    q = qk(SA, 0, "0")
    a(q[0]); a(q[1]); a("s_nop 9"); a(q[2]); a("s_nop 15\ns_nop 3")
    for x in rowmax(SA, 24, True): a(x)
    if force_fallback:
        a(f"v_add_f32 v24, {f32bits(-100.0)}, v24")
    if FOLD:
        a("v_mov_b32 v25, v24\ns_nop 1\nv_permlane32_swap_b32 v24, v25\ns_nop 1\nv_max_f32 v24, v24, v25")
        a(f"v_cvt_pk_bf16_f32 v25, -v24, -v24\nv_mov_b32 v{NM}, 0\nv_lshlrev_b32 v26, 16, v25\nv_sub_f32 v26, -v24, v26\nv_cvt_pk_bf16_f32 v{Q2+1}, -v24, v26\nv_cvt_pk_bf16_f32 v{NM+1}, -v24, v26\ns_nop 1")
        a(f"v_mfma_f32_32x32x4_2b_bf16 v[{SA}:{SA+31}], v[{K2F}:{K2F+1}], v[{NM}:{NM+1}], v[{SA}:{SA+31}]\ns_nop 15\ns_nop 1")
    else:
        set_nm(24)
        for r in range(32): a(f"v_add_f32 v{SA+r}, v{SA+r}, v{NM}")
    st(2)
    extra = {i: [] for i in range(32)}
    pre = {i: [] for i in range(32)}
    r = 3
    for i in range(8):
        extra[i] += [dma(r), dma(r + 1)]; r += 2
    pre[0].append("s_waitcnt vmcnt(0)\ns_barrier"); pre[3].append("s_waitcnt vmcnt(2)\ns_barrier"); pre[9].append(f"v_mov_b32 v196, 0\nv_mov_b32 v197, 0\nv_mov_b32 v198, 0\nv_mov_b32 v199, 0\nv_mov_b32 v200, {ffn.CNT}\nds_write_b128 v200, v[196:199]\nds_write_b128 v200, v[196:199] offset:16\nds_write_b128 v200, v[196:199] offset:32\ns_waitcnt vmcnt(0) lgkmcnt(0)\ns_barrier")
    for n in range(8):
        if OPT.get("rp1", False):
            extra[9 + n].append(rp.load(0, n, nt_)); extra[9 + n].append(w3(rp.load(1, n, nt_)))
        else:
            extra[9 + n // 2].append(rp.load(0, n, nt_))
            extra[13 + n // 2].append(w3(rp.load(1, n, nt_)))
    if OPT.get("rps", 1) == 1: pre[6].append(RPS[0]); pre[7].append(RPS[1])
    ST0 = OPT.get("k2_st0", 21)
    pre[ST0].append("s_waitcnt vmcnt(0)")
    for n in range(4):
        extra[ST0 + n // 2].append(rp.store(0, n, " sc1"))
        extra[ST0 + 2 + n // 2].append(w3(rp.store(1, n, " sc1")))
    pre[ST0 + 7].append("s_waitcnt vmcnt(0)")
    extra[ST0 + 7].append(f"v_mov_b32 v206, {ffn.CNT}\nv_mov_b32 v207, 1\ns_mov_b64 exec, 1\nds_add_rtn_u32 v205, v206, v207 offset:44\ns_mov_b64 exec, -1")
    extra[ST0 + 8].append(f"v_readfirstlane_b32 s45, v205\ns_cmp_lg_u32 s45, 7\ns_cbranch_scc1 K2_nrf\ns_lshl_b32 s45, s34, 5\ns_add_u32 s45, s45, s35\ns_lshl_b32 s45, s45, 7\ns_add_u32 s45, s45, {FL_RF}\n"
                          f"v_mov_b32 v206, s{SE}\nv_lshlrev_b32 v207, 2, v0\ns_mov_b32 exec_lo, -1\ns_mov_b32 exec_hi, 0\nbuffer_store_dword v206, v207, s[36:39], s45 offen sc1\ns_mov_b64 exec, -1\nK2_nrf:")
    if OPT.get("k2_touch", False):
        extra[ST0 + 7].append(rp.touch(0)); extra[ST0 + 8].append(w3(rp.touch(1)))
    extra[8].append(f"s_mov_b32 s45, {FL_AF + 224*128}\nv_lshlrev_b32 v206, 7, v1\nbuffer_load_dword v205, v206, s[36:39], s45 offen sc1")
    tmp = Asm(); tmp.uid = 9000
    poll(tmp, 32, 206, 36, 45, 205, 2, first_loaded=True)
    pre[9].append(tmp.text())
    EW = OPT.get("wo_early", 10)
    if EW:
        wo0, wosz = WS["WOF"]
        pre[22].append(f"s_lshr_b32 s77, s2, 5\ns_add_u32 s20, s14, {wo0}\ns_addc_u32 s21, s15, 0\ns_mov_b32 s22, {wosz}\ns_mov_b32 s23, 0x00020000\n"
                       f"s_lshl_b32 s32, s3, 10\ns_mul_i32 s33, s77, {108*1024}\ns_add_u32 s33, s33, s32\ns_waitcnt lgkmcnt(0)\ns_barrier")
        nb_ = 0
        for i in list(range(25, 32)) + list(range(22, 32)):
            if nb_ < EW and len(extra[i]) < 2:
                extra[i].append("s_mov_b32 m0, s32\ns_add_u32 s32, s32, 8192\nbuffer_load_dwordx4 v3, s[20:23], s33 offen sc1 lds\ns_add_u32 s33, s33, 8192"); nb_ += 1
        assert nb_ == EW
    if OPT.get("wo_touch", True):
        L = a.label("wt")
        wb0 = WS["WBAR"][0]; wsz = WS["WOF"][0] + WS["WOF"][1] - wb0
        extra[19].append(f"s_sub_u32 s56, s3, 3\ns_cmp_ge_u32 s56, 3\ns_cbranch_scc1 {L}\ns_lshr_b32 s57, s2, 3\ns_mul_i32 s57, s57, 3\ns_add_u32 s56, s56, s57\ns_lshl_b32 s56, s56, 13\n"
                         f"s_add_u32 s28, s14, {wb0}\ns_addc_u32 s29, s15, 0\ns_mov_b32 s30, {wsz}\ns_mov_b32 s31, 0x00020000\nv_lshlrev_b32 v206, 7, v0\nbuffer_load_dword v205, v206, s[28:31], s56 offen sc1\n{L}:")
    if OPT["codepf"]:
        L = a.label("cp")
        extra[18].append(f"s_lshr_b32 s56, s2, 3\ns_cmp_ge_u32 s56, CODE_PF_N\ns_cbranch_scc1 {L}\ns_cmp_lg_u32 s3, 0\ns_cbranch_scc1 {L}\n"
                         f"s_getpc_b64 s[58:59]\n{L}_pc:\ns_add_u32 s58, s58, K2_out-{L}_pc\ns_addc_u32 s59, s59, 0\n"
                         f"s_lshl_b32 s56, s56, 13\nv_lshlrev_b32 v206, 7, v0\nv_add_u32 v206, s56, v206\nv_min_u32 v206, CODE_END-K2_out-4, v206\nglobal_load_dword v205, v206, s[58:59]\n{L}:")
    for i in range(32):
        cur, nxt = (SA, SB) if i % 2 == 0 else (SB, SA)
        q = qk(nxt, (i + 1) % 2, "0" if FOLD else NMr) if i < 31 else ["", "", ""]
        vs_ = i % 2
        kr = rdK(i % 2, i + 2) if i + 2 < 32 else ["", "", ""]
        vrd = rdV((i + 1) % 2, i + 1) if i < 31 else [""] * 4
        e = [E(cur, g) for g in range(8)]
        assert len(extra[i]) <= 3
        ex = extra[i] + ["", "", ""]
        seq = list(pre[i])
        PP = OPT.get("pp", 4)
        if OPT["prio"] and i % PP in (0, OPT["prio"]):
            L = a.label("pr")
            seq.append(f"s_cmp_lt_u32 s3, 4\ns_cbranch_scc1 {L}\ns_setprio {2 if i % PP == 0 else 0}\n{L}:")
        AL = OPT.get("aal", 0)
        P3 = {0: "", 1: ".p2align 3", 2: ".p2align 3\ns_nop 0"}[AL]
        if AL: ex = [x + "\n" + P3 if x else x for x in ex]
        sp = 2 if AL else 3
        seq += ["s_waitcnt lgkmcnt(0)", P3, q[0]] + kr[0:2] + e[0]
        seq += [pvm(1 - vs_, 3) if i > 0 else ""] + kr[2:3] + vrd[0:1] + e[1]
        seq += [q[1]] + vrd[1:3] + e[2]
        seq += [pvm(vs_, 0)] + vrd[3:4] + e[3]
        seq += [q[2], ex[0]] + e[4] + e[5][:sp]
        seq += [pvm(vs_, 1), ex[1]] + e[5][sp:] + e[6][:2]
        seq += [pvm(vs_, 2), ex[2]] + e[6][2:] + e[7]
        for x in seq:
            if x: a(x)
        if i % 8 == 7: st(3 + i // 8)
    a("s_nop 1"); a(pvm(1, 3))
    a("s_setprio 0\ns_nop 15")
    def bcast_l():
        a(f"v_mov_b32 v25, v{O+10}\nv_mov_b32 v26, v{O+10}\ns_nop 1\nv_permlane32_swap_b32 v25, v26\ns_nop 1")
    bcast_l()
    a(f"v_mov_b32 v26, {f32bits(2.0**60)}\nv_cmp_nle_f32 vcc, v25, v26\nv_mov_b32 v26, {f32bits(2.0**-60)}\nv_cmp_lt_f32 s[52:53], v25, v26\ns_nop 4\ns_or_b64 vcc, vcc, s[52:53]\ns_cbranch_scc0 K2_out")
    a(f"v_mov_b32 v24, 0xff800000\nv_mov_b32 v{Q2+1}, 0")
    for ps in range(2):
        a(f"s_mov_b32 s52, 0\nv_mov_b32 v27, v{VKA}\nv_mov_b32 v28, v{VK2}\nv_mov_b32 v29, v{VVA}")
        a(f"K2_fb{ps}:")
        a(f"buffer_load_dwordx4 v[{KF}:{KF+3}], v27, s[16:19], 0 offen sc1\nbuffer_load_dwordx4 v[{KF+4}:{KF+7}], v27, s[16:19], 0 offen offset:1024 sc1\nbuffer_load_dword v{K2F}, v28, s[16:19], 0 offen offset:2048 sc1")
        if ps:
            a("s_movk_i32 s53, 2304")
            for u in range(4): a(f"buffer_load_dwordx4 v[{VF+4*u}:{VF+4*u+3}], v29, s[16:19], s53 offen offset:{608*u} sc1")
        a("s_waitcnt vmcnt(0)")
        q = qk(SA, 0, NMr if ps else "0")
        a(q[0]); a(q[1]); a("s_nop 9"); a(q[2]); a("s_nop 15\ns_nop 3")
        if ps == 0:
            for x in rowmax(SA, 24, False): a(x)
        else:
            for g in range(8):
                for x in E(SA, g): a(x)
            a("s_nop 1")
            for u in range(4): a(pvm(0, u))
        a(f"v_add_u32 v27, {PAIR}, v27\nv_add_u32 v28, {PAIR}, v28\nv_add_u32 v29, {PAIR}, v29")
        a(f"s_add_u32 s52, s52, 1\ns_cmp_lt_u32 s52, 32\ns_cbranch_scc1 K2_fb{ps}")
        if ps == 0:
            set_nm(24)
            for r in range(16): a(f"v_mov_b32 v{O+r}, 0")
    a("s_nop 15")
    bcast_l()
    a("K2_out:")
    WR, XR, ACC, XRES = 12, 40, 112, 140
    a("s_lshr_b32 s77, s2, 5\ns_and_b32 s78, s2, 7\ns_lshl_b32 s78, s78, 2\ns_bfe_u32 s43, s2, 0x20003\ns_add_u32 s78, s78, s43")
    a("s_cmp_ge_u32 s3, 4\ns_cbranch_scc1 K2_noearly")
    a("s_lshl_b32 s46, s78, 2\ns_add_u32 s46, s46, s3")
    ws_srd(a, 48, "MEAN1", 14)
    ws_srd(a, 52, "XC", 14)
    a(f"s_mul_i32 s47, s77, 3072\ns_mul_i32 s30, s46, 18432\ns_add_u32 s47, s47, s30")
    for u in range(3):
        a(f"buffer_load_dwordx4 v[{XRES+4*u}:{XRES+4*u+3}], v3, s[52:55], s47 offen offset:{1024*u} sc1")
    a(f"v_and_b32 v166, 15, v0\nv_lshlrev_b32 v166, 2, v166\ns_lshl_b32 s65, s46, 7\nbuffer_load_dword v165, v166, s[48:51], s65 offen sc1")
    a("K2_noearly:")
    a(f"s_lshl_b32 s43, s34, 12\ns_add_u32 s43, s43, {FL_RF}\nv_lshlrev_b32 v161, 7, v1\nbuffer_load_dword v160, v161, s[36:39], s43 offen sc1")
    a(f"v_rcp_f32 v25, v25\ns_nop 0")
    for r in range(10): a(f"v_mul_f32 v{O+r}, v{O+r}, v25")
    for r in range(5): a(f"v_cvt_pk_bf16_f32 v{P+r}, v{O+2*r}, v{O+2*r+1}")
    a(f"v_lshrrev_b32 v26, 4, v1\nv_mul_u32_u24 v27, {18*1024}, v26\nv_and_b32 v28, 15, v1\nv_lshl_add_u32 v27, v28, 4, v27\nv_lshl_add_u32 v27, v2, 8, v27")
    a(f"s_mul_i32 s42, s40, {36*1024}\ns_lshl_b32 s43, s41, 9\ns_add_u32 s43, s43, s42")
    a(f"buffer_store_dwordx4 v[{P}:{P+3}], v27, s[24:27], s43 offen sc1")
    OSC = 32 * PAIR + 1024
    a(f"s_lshr_b32 s43, s3, 2\ns_lshl_b32 s43, s43, 8\ns_and_b32 s44, s3, 3\ns_lshl_b32 s44, s44, 2\ns_add_u32 s43, s43, s44\ns_add_u32 s43, s43, {OSC}")
    a(f"v_lshlrev_b32 v26, 9, v26\nv_lshl_add_u32 v26, v28, 4, v26\nv_add_u32 v26, s43, v26\ns_mov_b32 exec_lo, -1\ns_mov_b32 exec_hi, 0\nds_write_b32 v26, v{P+4}\ns_mov_b64 exec, -1")
    a(f"v_mov_b32 v172, {ffn.CNT}\nv_mov_b32 v8, 1\nv_lshlrev_b32 v9, 2, v0\nv_mov_b32 v174, s{SE}\ns_lshl_b32 s79, s2, 7\ns_add_u32 s79, s79, {FL_OF}")
    a(f"v_add_u32 v4, {OSC}, v3\nv_mul_u32_u24 v5, {18*1024}, v2\nv_lshl_add_u32 v5, v1, 4, v5")
    a("s_and_b32 s43, s2, 3\ns_lshl_b32 s43, s43, 9\ns_add_u32 s43, s43, s42\ns_add_u32 s43, s43, 16384")
    a("s_waitcnt lgkmcnt(0)\ns_barrier")
    st(7)
    a("s_cmp_lg_u32 s3, 0\ns_cbranch_scc1 K3_norem")
    a("ds_read_b128 v[12:15], v4\ns_waitcnt lgkmcnt(0)\nbuffer_store_dwordx4 v[12:15], v5, s[24:27], s43 offen sc1")
    a("K3_norem:")
    a("v_lshlrev_b32 v2, 4, v0\ns_mov_b32 s40, s77\ns_mov_b32 s41, s78")
    a("s_waitcnt vmcnt(0)\ns_mov_b64 exec, 1\nds_add_rtn_u32 v168, v172, v8 offset:36\ns_waitcnt lgkmcnt(0)\nv_readfirstlane_b32 s70, v168\ns_cmp_lg_u32 s70, 7\ns_cbranch_scc1 K3_nofl")
    a("s_mov_b32 exec_lo, -1\ns_mov_b32 exec_hi, 0\nbuffer_store_dword v174, v9, s[36:39], s79 offen sc1\nK3_nofl:\ns_mov_b64 exec, -1")
    a("s_cmp_ge_u32 s3, 4\ns_cbranch_scc1 K3_loader")
    a("v_add_u32 v3, 0x10000, v2\nv_add_u32 v4, 0x20000, v2\nv_and_b32 v5, 15, v0\nv_lshrrev_b32 v6, 4, v0\nv_lshlrev_b32 v7, 7, v0")
    a("v_lshlrev_b32 v11, 2, v5\nv_mov_b32 v10, v165")
    st(8)
    a("s_cmp_ge_u32 s40, 6\ns_cbranch_scc1 K4_compute")
    a(f"s_lshl_b32 s43, s41, 3\ns_lshr_b32 s44, s3, 1\ns_lshl_b32 s44, s44, 2\ns_add_u32 s43, s43, s44\ns_lshl_b32 s43, s43, 7\ns_add_u32 s43, s43, {FL_OF}")
    ws_srd(a, 52, "HC", 14)
    ws_srd(a, 60, "SS", 14)
    a("s_barrier")
    st(13)
    for j in range(7):
        off = j * 1024 if j < 6 else 108 * 1024
        a(f"ds_read_b128 v[{12+4*j}:{15+4*j}], v{2 + off // 65536} offset:{off % 65536}")
    poll(a, 4, 7, 36, 43, 164, 1)
    st(9)
    a("s_mul_i32 s44, s40, 3072")
    def oload(ks):
        t = ""
        if ks % 3 == 0:
            t = "s_add_u32 s45, s30, s44\ns_add_u32 s44, s44, 3072\ns_cmp_eq_u32 s44, 18432\ns_cselect_b32 s44, 0, s44\n"
        return t + f"buffer_load_dwordx4 v[{XR+4*ks}:{XR+4*ks+3}], v2, s[24:27], s45 offen offset:{(ks%3)*1024} sc1"
    OD = OPT.get("k3_od", 6)
    for ks in range(OD): a(oload(ks))
    st(10)
    def wread(ks, j):
        off = (ks * 6 + j) * 1024 if j < 6 else (108 + ks) * 1024
        return f"ds_read_b128 v[{WR+4*j}:{WR+4*j+3}], v{2 + off // 65536} offset:{off % 65536}"
    nl = OD
    for ks in range(18):
        for j in range(7):
            a((f"s_waitcnt vmcnt({nl-1-ks}) " if j == 0 else "s_waitcnt ") + f"lgkmcnt({6 if ks < 17 else 6-j})")
            c = "0" if ks == 0 else f"v[{ACC+4*j}:{ACC+4*j+3}]"
            a(f"v_mfma_f32_16x16x32_bf16 v[{ACC+4*j}:{ACC+4*j+3}], v[{WR+4*j}:{WR+4*j+3}], v[{XR+4*ks}:{XR+4*ks+3}], {c}")
            if ks < 17: a(wread(ks + 1, j))
            if j in (1, 4) and nl < 18:
                a(oload(nl)); nl += 1
    a("s_barrier")
    st(11)
    e = ACC + 24
    a(f"s_nop 6\nv_add_f32 v10, v10, v{e}\nv_add_f32 v10, v10, v{e+1}\nv_mov_b32 v14, 0")
    for u in range(3):
        for r in range(4):
            x = XRES + 4 * u + r
            lo, hi = ACC + 8 * u + r, ACC + 8 * u + 4 + r
            a(f"v_lshlrev_b32 v12, 16, v{x}\nv_and_b32 v13, 0xffff0000, v{x}")
            a(f"v_add_f32 v{lo}, v{lo}, v12\nv_add_f32 v{hi}, v{hi}, v13")
            a(f"v_sub_f32 v{lo}, v{lo}, v10\nv_sub_f32 v{hi}, v{hi}, v10")
            a(f"v_cvt_pk_bf16_f32 v{XR+4*u+r}, v{lo}, v{hi}")
        a(f"buffer_store_dwordx4 v[{XR+4*u}:{XR+4*u+3}], v2, s[52:55], s47 offen offset:{1024*u} sc1")
    for i in range(12): a(f"v_dot2_f32_bf16 v14, v{XR+i}, v{XR+i}, v14")
    a("s_nop 2")
    sum_g(a, 14, 12)
    a("v_cmp_eq_u32 vcc, 1, v6\ns_lshl_b32 s43, s46, 3\ns_add_u32 s43, s43, s40\ns_lshl_b32 s43, s43, 7\nv_cndmask_b32 v14, v14, v10, vcc\ns_mov_b32 exec_lo, -1\ns_mov_b32 exec_hi, 0")
    a("buffer_store_dword v14, v9, s[60:63], s43 offen sc1")
    a(f"s_lshl_b32 s43, s46, 3\ns_add_u32 s43, s43, s40\ns_lshl_b32 s43, s43, 7\ns_add_u32 s43, s43, {FL_HF}")
    a("s_waitcnt vmcnt(0)\nbuffer_store_dword v174, v9, s[36:39], s43 offen sc1\ns_mov_b64 exec, -1")
    st(12)
    a("s_branch K4_compute")
    a("K3_loader:")
    a(f"v_mov_b32 v4, {ffn.CNT}")
    a("s_sub_u32 s33, s3, 4\ns_cmp_ge_u32 s40, 6\ns_cbranch_scc1 K3_pf")
    ws_srd(a, 20, "WOF", 14)
    ws_srd(a, 68, "WBAR", 14)
    a(f"s_lshl_b32 s76, s33, 10\ns_mul_i32 s75, s40, {108*1024}\ns_add_u32 s74, s76, {EW*8192}\ns_add_u32 s75, s75, s74")
    a("s_mul_i32 s77, s40, 3072\ns_add_u32 s76, s76, s77")
    for i in range(2*EW, 32):
        sd, so = ((20, 75) if i < 27 else (68, 76))
        a(f"s_mov_b32 m0, s74\ns_add_u32 s74, s74, 4096\nbuffer_load_dwordx4 v2, s[{sd}:{sd+3}], s{so} offen sc1 lds\ns_add_u32 s{so}, s{so}, 4096")
    a("s_waitcnt vmcnt(0)\ns_barrier")
    a("K3_pf:")
    a("s_cmp_ge_u32 s40, 6\ns_cbranch_scc1 K4_helper\ns_barrier\ns_branch K4_helper")
    k4(a, st)
    a("s_endpgm\nCODE_END:")
    return kernel_desc(NAME + "_kernel", 256)

def rf_check(a, first_loaded):
    a(f"s_lshl_b32 s43, s34, 12\ns_add_u32 s43, s43, {FL_RF}")
    poll(a, 32, 161, 36, 43, 160, 2, first_loaded)
def h_bases(a, sw):
    a("v_add_u32 v3, 0x10000, v2\nv_add_u32 v4, 0x20000, v2")
    a(f"s_mul_i32 s42, s{sw}, 3\ns_lshr_b32 s43, s42, 1\ns_lshl_b32 s43, s43, 12\ns_and_b32 s44, s42, 1\ns_lshl_b32 s45, s44, 3\ns_add_u32 s43, s43, s45\ns_add_u32 s43, s43, {ffn.HB}")
    a("v_add_u32 v5, s43, v2")
    a("s_mul_i32 s45, s44, 4080\ns_add_u32 s45, s45, 8\nv_add_u32 v6, s45, v5")
def k4(a, st0):
    st = lambda i: st0(20 + i)
    a("K4_compute:\ns_mov_b32 s40, s34\ns_mov_b32 s41, s35")
    rf_check(a, True)
    a(f"s_lshl_b32 s46, s40, 2\ns_add_u32 s46, s46, s3\ns_mul_i32 s31, s46, {WST()*1024}")
    ws_srd(a, 20, "WF", 14)
    cs = ffn.Stream(a, PAT(), srdW=20, sW=31, v_lane16=2, v_h8=5, v_p=7, v_one=10, ACC=16, XF=112, TMP=160, RB=176,
                    RINGF=min(OPT.get('ring', 20), 19 if st0.on else 20), stamp=st, wflag=OPT.get('wflag', ' sc1'), al=OPT.get('al', 0))
    cs.prefill(min(cs.RINGF, OPT.get("k4_pre", 18)))
    a("s_setprio 2")
    h_bases(a, 3)
    a("v_and_b32 v12, 15, v0\nv_lshrrev_b32 v13, 4, v0\ns_lshr_b32 s45, s3, 1\nv_lshl_add_u32 v13, v13, 1, s45\nv_and_b32 v14, 7, v0\nv_xor_b32 v13, v13, v14")
    a("s_and_b32 s45, s3, 1\ns_lshl_b32 s45, s45, 3\nv_lshl_add_u32 v13, v13, 4, s45\nv_lshl_add_u32 v7, v12, 7, v13\nv_add_u32 v8, 0x8000, v7")
    a(f"v_mov_b32 v10, 1\nv_mov_b32 v11, {ffn.CNT}")
    cs.run()
    LASTP = OPT.get("lastp", True)
    if LASTP:
        a("s_waitcnt lgkmcnt(0)\nv_readfirstlane_b32 s70, v175\ns_mov_b32 s33, 8\ns_cmp_eq_u32 s70, 3\ns_cbranch_scc1 K4_pubs")
    a("s_branch K4_work")
    PB, AC = 48, 112
    a("K4_helper:")
    a(f"s_setprio {OPT.get('k4_hprio', 0)}\ns_mov_b32 s40, s34\ns_mov_b32 s41, s35")
    a(f"s_mul_i32 s30, s41, 73728\ns_mul_i32 s90, s33, 18432\ns_add_u32 s30, s30, s90")
    ws_srd(a, 16, "HC", 14)
    a(f"s_lshl_b32 s43, s41, 2\ns_add_u32 s43, s43, s33\ns_lshl_b32 s43, s43, 10\ns_add_u32 s43, s43, {FL_HF}\nv_lshlrev_b32 v12, 7, v0")
    poll(a, 6, 12, 36, 43, 13, 1)
    st(9)
    for i in range(18):
        if i % 4 == 0: a("s_mov_b32 m0, s90\ns_add_u32 s90, s90, 4096")
        a(f"buffer_load_dwordx4 v2, s[16:19], s30 offen offset:{(i%4)*1024} sc1 lds")
        if i % 4 == 3: a("s_add_u32 s30, s30, 4096")
        if i >= 5 and i % 3 == 2: a("s_waitcnt vmcnt(3)\ns_barrier")
    a("s_waitcnt vmcnt(0)\ns_barrier")
    a("s_cmp_lg_u32 s2, 0\ns_cbranch_scc1 K4_nep\ns_cmp_lg_u32 s33, 3\ns_cbranch_scc1 K4_nep\ns_mov_b32 s74, s34\ns_mov_b32 s34, 0\nK4_epl:")
    rf_check(a, False)
    a(f"s_add_u32 s34, s34, 1\ns_cmp_lt_u32 s34, 8\ns_cbranch_scc1 K4_epl\ns_mov_b32 s34, s74\nv_mov_b32 v13, s{SE}\nv_mov_b32 v14, 0")
    ws_srd(a, 52, "EP", 14)
    a("s_mov_b64 exec, 1\nbuffer_store_dword v13, v14, s[52:55], 0 offen sc1\ns_mov_b64 exec, -1\nK4_nep:")
    for i in range(ffn.N_BARRIERS_AFTER_X): a("s_barrier")
    NPUB = OPT.get("npub", 2)
    a(f"s_cmp_ge_u32 s33, {NPUB}\ns_cbranch_scc1 K4_work")
    def wait_cnt(L, slp):
        a(f"s_mov_b32 s72, 0x40000\n{L}:\nds_read_b32 v3, v4\ns_waitcnt lgkmcnt(0)\nv_readfirstlane_b32 s70, v3\ns_cmp_eq_u32 s70, 4\ns_cbranch_scc1 {L}_ok\ns_sleep {slp}\ns_sub_u32 s72, s72, 1\ns_cbranch_scc0 {L}\n{L}_ok:")
    SWZ = "v_lshrrev_b32 v5, 3, v0\nv_and_b32 v6, 7, v0\nv_xor_b32 v7, v5, v6\nv_lshlrev_b32 v7, 4, v7\nv_lshl_add_u32 v7, v5, 7, v7"
    a("K4_pubs:")
    ws_srd(a, 24, "PART", 14)
    a("s_mov_b32 s42, s33"); a(SWZ)
    a(f"s_lshl_b32 s44, s42, 13\nv_add_u32 v7, s44, v7\ns_lshl_b32 s44, s42, 2\ns_add_u32 s44, s44, {ffn.CNT}\nv_mov_b32 v4, s44")
    a("s_mul_i32 s49, s41, 9\ns_add_u32 s49, s49, s42\ns_lshl_b32 s47, s49, 16\ns_lshl_b32 s51, s49, 10")
    a("s_lshl_b32 s44, s40, 13\ns_add_u32 s47, s47, s44\ns_lshl_b32 s44, s40, 7\ns_add_u32 s51, s51, s44\nv_lshlrev_b32 v18, 2, v0")
    a(f"v_mov_b32 v13, s{SE}")
    a("K4_pub:")
    wait_cnt("K4_pw", 2)
    st0.dyn(34, 42)
    for i in range(8): a(f"ds_read_b128 v[{PB+4*i}:{PB+4*i+3}], v7 offset:{1024*i}")
    a("s_add_u32 s71, s47, 4096")
    for i in range(8):
        a(f"s_cmp_eq_u32 s40, {i}\ns_cbranch_scc1 K4_ps{i}\ns_waitcnt lgkmcnt({7-i})\nbuffer_store_dwordx4 v[{PB+4*i}:{PB+4*i+3}], v2, s[24:27], s{47 if i < 4 else 71} offen offset:{(i%4)*1024} sc1\nK4_ps{i}:")
    a("s_waitcnt vmcnt(0) lgkmcnt(0)\ns_mov_b32 exec_lo, -1\ns_mov_b32 exec_hi, 0\nbuffer_store_dword v13, v18, s[36:39], s51 offen sc1\ns_mov_b64 exec, -1")
    st0.dyn(43, 42)
    a(f"s_add_u32 s42, s42, {NPUB}\ns_add_u32 s47, s47, {NPUB << 16}\ns_add_u32 s51, s51, {NPUB << 10}\nv_add_u32 v7, {NPUB << 13}, v7\nv_add_u32 v4, {4*NPUB}, v4\ns_cmp_lt_u32 s42, {8 if LASTP else 9}\ns_cbranch_scc1 K4_pub")
    a("K4_work:")
    a(f"v_mov_b32 v14, {ffn.CNT}\nv_mov_b32 v15, 1")
    TAKE = "s_mov_b64 exec, 1\nds_add_rtn_u32 v3, v14, v15 offset:40\ns_mov_b64 exec, -1\ns_waitcnt lgkmcnt(0)\nv_readfirstlane_b32 s42, v3\ns_cmp_ge_u32 s42, 9\ns_cbranch_scc1 K4_fin"
    a(TAKE)
    ws_srd(a, 16, "HC", 14)
    ws_srd(a, 24, "PART", 14)
    ws_srd(a, 56, "SS", 14)
    srd(a, 60, 4, 0, T*DM*2)
    a(SWZ)
    a("s_lshl_b32 s43, s40, 3\nv_add_u32 v8, s43, v5")
    a("v_lshrrev_b32 v19, 4, v8\nv_lshlrev_b32 v19, 10, v19\nv_and_b32 v16, 15, v8\nv_lshl_add_u32 v19, v16, 2, v19\ns_lshl_b32 s65, s41, 12\nbuffer_load_dword v140, v19, s[56:59], s65 offen offset:64 sc1")
    for nb in range(6): a(f"buffer_load_dword v{144+nb}, v19, s[56:59], s65 offen offset:{128*nb} sc1")
    a("s_lshl_b32 s44, s40, 10\nv_add_u32 v9, s44, v7\nv_lshlrev_b32 v12, 7, v0")
    a("v_lshrrev_b32 v10, 4, v8\nv_mul_u32_u24 v10, 18432, v10\nv_lshl_add_u32 v10, v6, 8, v10\nv_and_b32 v11, 15, v8\nv_lshl_add_u32 v10, v11, 4, v10")
    a(f"v_mul_u32_u24 v11, {DM*2}, v8\nv_lshl_add_u32 v11, v6, 4, v11")
    a("v_and_b32 v19, 1, v0\nv_cmp_eq_u32 s[66:67], 1, v19\ns_mov_b32 s68, 0x00003f80\ns_mov_b32 s69, 0x3f800000\ns_mov_b32 s74, 0")
    a("K4_red:")
    a("s_mul_i32 s30, s41, 73728\ns_lshl_b32 s44, s42, 11\ns_add_u32 s30, s30, s44\nbuffer_load_dwordx4 v[20:23], v10, s[16:19], s30 offen sc1")
    a(f"s_mul_i32 s64, s41, {64*DM*2}\ns_lshl_b32 s44, s42, 7\ns_add_u32 s64, s64, s44")
    a(f"s_lshl_b32 s44, s42, 13\nv_add_u32 v7, s44, v9\ns_lshl_b32 s44, s42, 2\ns_add_u32 s44, s44, {ffn.CNT}\nv_mov_b32 v4, s44")
    a("s_mul_i32 s49, s41, 9\ns_add_u32 s49, s49, s42\ns_lshl_b32 s71, s49, 16\ns_lshl_b32 s51, s49, 10\ns_lshl_b32 s44, s40, 10\ns_add_u32 s71, s71, s44")
    wait_cnt("K4_rw", 4)
    poll(a, 8, 12, 36, 51, 3, OPT.get("red_slp", 2))
    st0.dyn(52, 42)
    for j in range(8):
        b = PB + 4*j
        a(f"s_cmp_eq_u32 s40, {j}\ns_cbranch_scc1 K4_ro{j}\nbuffer_load_dwordx4 v[{b}:{b+3}], v2, s[24:27], s71 offen sc1\ns_branch K4_rp{j}\nK4_ro{j}:\nds_read_b128 v[{b}:{b+3}], v7\nK4_rp{j}:\ns_add_u32 s71, s71, 8192")
    a("s_cmp_lg_u32 s74, 0\ns_cbranch_scc1 K4_hs\ns_mov_b32 s74, 1")
    a("v_add_f32 v144, v144, v145\nv_add_f32 v146, v146, v147\nv_add_f32 v148, v148, v149\nv_add_f32 v144, v144, v146\nv_add_f32 v144, v144, v148")
    a(f"v_mov_b32 v145, {f32bits(1e-5)}\nv_fmac_f32 v145, {f32bits(1.0/DM)}, v144\nv_rsq_f32 v142, v145\nK4_hs:")
    for i in range(4):
        a(f"v_lshlrev_b32 v{24+2*i}, 16, v{20+i}\nv_and_b32 v{25+2*i}, 0xffff0000, v{20+i}\nv_add_f32 v{24+2*i}, v{24+2*i}, v140\nv_add_f32 v{25+2*i}, v{25+2*i}, v140")
    a("s_waitcnt lgkmcnt(0)")
    for j in range(8):
        a(f"s_waitcnt vmcnt({max(0, 6-j)})")
        for qq in range(2):
            for p in range(2):
                src = PB + 4*j + 2*qq + p
                d0, d1 = AC + 4*p + qq, AC + 4*p + 2 + qq
                if OPT.get("red_dot", False):
                    for hh, d in ((0, d0), (1, d1)):
                        a(f"v_dot2_f32_bf16 v{d}, v{src}, s{68+hh}, {'0' if j == 0 else f'v{d}'}")
                elif j == 0:
                    a(f"v_lshlrev_b32 v{d0}, 16, v{src}\nv_and_b32 v{d1}, 0xffff0000, v{src}")
                else:
                    a(f"v_lshlrev_b32 v16, 16, v{src}\nv_and_b32 v{src}, 0xffff0000, v{src}\nv_add_f32 v{d0}, v{d0}, v16\nv_add_f32 v{d1}, v{d1}, v{src}")
    a("s_nop 2")
    for i in range(4):
        a(f"v_cndmask_b32 v{AC+8+i}, v{AC+4+i}, v{AC+i}, s[66:67]")
        a(f"v_cndmask_b32 v{AC+12+i}, v{AC+i}, v{AC+4+i}, s[66:67]")
    a("s_nop 1")
    for i in range(4):
        a(f"v_mov_b32_dpp v{AC+16+i}, v{AC+8+i} quad_perm:[1,0,3,2] row_mask:0xf bank_mask:0xf")
    for hlf in range(2):
        for e in range(2):
            k_, r_ = AC + 12 + 2*hlf + e, AC + 16 + 2*hlf + e
            a(f"v_cndmask_b32 v{AC+4*hlf+e}, v{k_}, v{r_}, s[66:67]\nv_cndmask_b32 v{AC+4*hlf+2+e}, v{r_}, v{k_}, s[66:67]")
    for i in range(4):
        a(f"v_fmac_f32 v{24+2*i}, v{AC+2*i}, v142\nv_fmac_f32 v{25+2*i}, v{AC+2*i+1}, v142\nv_cvt_pk_bf16_f32 v{40+i}, v{24+2*i}, v{25+2*i}")
    a("buffer_store_dwordx4 v[40:43], v11, s[60:63], s64 offen" + OPT.get("oflag", ""))
    st0.dyn(8, 42)
    a(TAKE + "\ns_branch K4_red")
    a("K4_fin:")
    st0.finish(14, 3, 8)

HEADER = open("cdna_kernels/" + NAME + ".s.ref").read().split("; Override launch geometry")[0]
DOC = """; Generated by a Python script (hand-designed schedule). One persistent launch, 256 workgroups x 8 waves, one per CU:
"""
def build(stamp_k=-1, force_fallback=False, light=False, **opt):
    LIGHT[0] = light
    OPT.update(opt)
    a = Asm()
    hdr = HEADER + f"; @launch grid=({K1_GRID},1,1) block=(512,1,1) lds={max(K1_LDS, K2_LDS)}\n"
    hdr += DOC
    a('.amdgcn_target "amdgcn-amd-amdhsa--gfx950"\n.text')
    st = Stamps(a, stamp_k == 2, 2, 255, 254)
    k1(a, st)
    descs = [k2(a, st, force_fallback)]
    a('.set CODE_PF_N, (CODE_END - K2_out + 8191) / 8192')
    a('.section .rodata,"a"')
    txt = a.text()
    if OPT.get("stf"):
        txt = "\n".join(ln.replace(" sc1", OPT["stf"]) if "buffer_store" in ln else ln for ln in txt.split("\n"))
    if OPT.get("ldf"):
        txt = "\n".join(ln.replace(" sc1", OPT["ldf"]) if ("buffer_load" in ln and "s[24:27]" in ln) else ln for ln in txt.split("\n"))
    return hdr + txt + "".join(descs)

if __name__ == "__main__":
    out = sys.argv[1] if len(sys.argv) > 1 else "cdna_kernels/" + NAME + ".s"
    kw = eval("dict(" + (sys.argv[2] if len(sys.argv) > 2 else "") + ")")
    open(out, "w").write(build(**kw))
```

```python
import sys, math
from asmlib import *
from gemm import gemm_core
import ffn

T, DM, NH, DH, F = 2048, 576, 32, 18, 4608
NAME = "sequential_preLN__grouped_kv_mqa__dense_activation_relu__prompt"
A_X, A_WQ, A_WK, A_WV, A_WO, B_X, B_W1, B_W2, K_OUT, K_DBG, K_WS = [8 * i for i in range(11)]
def _al(x, a=4096): return (x + a - 1) // a * a
PAIR = 4736
FL_PF, FL_OF, FL_HF, FL_RF = 0, 294912, 294912 + 32768, 294912 + 32768 + 131072
FL_AF = FL_RF + 32768
FL_END = FL_AF + 32768
SW, SE = 100, 101
WS = {}
_o = 0
for nm, sz in [("EP", 128), ("Q", T*DM*2), ("KV", 32*PAIR), ("MEAN1", T*8), ("O", T*DM*2), ("HC", T*DM*2),
               ("SS", 128*8*128), ("XC", T*DM*2), ("WBAR", 36*1024), ("WOF", 648*1024), ("WF", 32*332*1024),
               ("PART", 8*T*DM*2), ("FLAG", FL_END), ("STAMP", 16 << 20)]:
    WS[nm] = (_o, sz); _o += _al(sz)
WS_END = _o
QSCALE = math.log2(math.e) / math.sqrt(DH)
def f32bits(x):
    import struct
    return struct.unpack("<I", struct.pack("<f", x))[0]
ONES = 0x3f803f80

def ws_srd(a, d, nm, base):
    srd(a, d, base, WS[nm][0], WS[nm][1])

def wave_lane(a, s_wave=3):
    a(f"v_lshrrev_b32 v1, 6, v0\nv_and_b32 v0, 63, v0\ns_nop 0\nv_readfirstlane_b32 s{s_wave}, v1")

def sum_g(a, v, t):
    a(f"v_mov_b32 v{t}, v{v}\ns_nop 1\nv_permlane32_swap_b32 v{v}, v{t}\ns_nop 1\nv_add_f32 v{v}, v{v}, v{t}")
    a(f"v_mov_b32 v{t}, v{v}\ns_nop 1\nv_permlane16_swap_b32 v{v}, v{t}\ns_nop 1\nv_add_f32 v{v}, v{v}, v{t}")

LIGHT = [False]
OPT = dict(prio=3, k2_nt=True, codepf=True)
class Stamps:
    def __init__(self, a, on, kidx, vreg, vtmp):
        self.a, self.on, self.k, self.v, self.t = a, bool(on) or LIGHT[0], kidx, vreg, vtmp
        self.full = bool(on)
    def start(self):
        if OPT.get("probe") is not None:
            self.a("s_memrealtime s[96:97]\ns_waitcnt lgkmcnt(0)\ns_mov_b32 s99, s96\ns_mov_b32 s98, s96")
        if self.on:
            self.a(f"s_memrealtime s[96:97]\ns_memtime s[98:99]\nv_mov_b32 v{self.v}, 0\ns_waitcnt lgkmcnt(0)\nv_writelane_b32 v{self.v}, s96, 62")
    def __call__(self, i):
        if OPT.get("probe") == i:
            self.a("s_memrealtime s[96:97]\ns_waitcnt lgkmcnt(0)\ns_mov_b32 s98, s96")
        if self.full or (self.on and i == 61):
            if OPT.get("rt") and i != 61:
                self.a(f"s_memrealtime s[96:97]\ns_waitcnt lgkmcnt(0)\nv_writelane_b32 v{self.v}, s96, {i}")
            else:
                self.a(f"s_memtime s[96:97]\ns_waitcnt lgkmcnt(0)\ns_sub_u32 s96, s96, s98\nv_writelane_b32 v{self.v}, s96, {i}")
    def dyn(self, base, sreg):
        if self.full:
            self.a(f"s_memrealtime s[96:97]\ns_add_u32 m0, s{sreg}, {base}\ns_waitcnt lgkmcnt(0)\nv_writelane_b32 v{self.v}, s96, m0")
    def finish(self, s_ws, s_wave, nw):
        if OPT.get("probe") is not None:
            a = self.a
            a(f"s_cmp_lg_u32 s2, 8\ns_cbranch_scc1 PB_e\ns_cmp_lg_u32 s{s_wave}, 0\ns_cbranch_scc1 PB_e\ns_memrealtime s[96:97]\ns_waitcnt lgkmcnt(0)")
            if OPT["probe"] == 63: a("s_mov_b32 s98, s96")
            a("s_sub_u32 s98, s98, s99\ns_mul_i32 s98, s98, " + str(OPT.get("pk", 2)) + "\ns_mov_b32 s99, s96\nPB_l:\ns_memrealtime s[96:97]\ns_waitcnt lgkmcnt(0)\ns_sub_u32 s96, s96, s99\ns_cmp_lt_u32 s96, s98\ns_cbranch_scc1 PB_l\nPB_e:")
        if self.on:
            a = self.a
            a("s_waitcnt vmcnt(0)")
            self(61)
            a(f"s_memrealtime s[96:97]\ns_waitcnt lgkmcnt(0)\nv_writelane_b32 v{self.v}, s96, 63")
            ws_srd(a, 92, "STAMP", s_ws)
            a(f"s_lshl_b32 s96, s2, 3\ns_add_u32 s96, s96, s{s_wave}\ns_lshl_b32 s96, s96, 8\ns_add_u32 s96, s96, {self.k << 21}")
            a(f"v_mbcnt_lo_u32_b32 v{self.t}, -1, 0\nv_mbcnt_hi_u32_b32 v{self.t}, -1, v{self.t}\nv_lshlrev_b32 v{self.t}, 2, v{self.t}")
            a(f"buffer_store_dword v{self.v}, v{self.t}, s[92:95], s96 offen")


def WST(): return OPT.get('wst', 326)
def PAT(): return OPT.get('pat', (3, 3, 2, 1))
class Repack:
    PR = 208
    def __init__(self, a): self.a = a
    def common(self):
        return (f"s_add_u32 s60, s14, {WS['WOF'][0]}\ns_addc_u32 s61, s15, 0\ns_mov_b32 s62, {WS['WF'][0] + WS['WF'][1] - WS['WOF'][0]}\ns_mov_b32 s63, 0x00020000\n"
                "v_and_b32 v6, 15, v0\nv_lshrrev_b32 v7, 4, v0\ns_mov_b32 s80, 0x05040100\ns_mov_b32 s81, 0x07060302")
    def regs(self, rnd): return 64 + 4 * rnd, 72 + 4 * rnd, 82 + 4 * rnd, 242 + rnd, 240 + rnd
    def setup_ffn(self, rnd, pw1, pw2):
        L = self.a.label("rp")
        SD, SB_, SO, vsrc, dst = self.regs(rnd)
        OWF = WS["WF"][0] - WS["WOF"][0]
        t = []; A = t.append
        A(f"s_mul_hi_u32 s46, s47, {(2**32 + 161)//162}\ns_mul_i32 s49, s46, 162\ns_sub_u32 s47, s47, s49")
        A(f"s_mul_hi_u32 s49, s47, {(2**32 + 8)//9}\ns_mul_i32 s50, s49, 9\ns_sub_u32 s50, s47, s50")
        A(f"s_mov_b32 s{SD+3}, 0x00020000\ns_lshl_b32 s54, s50, 7\nv_mov_b32 v{dst}, v3")
        A(f"s_cmp_lt_u32 s46, 2\ns_cselect_b32 s{SD+2}, {DM*F*2}, 0\ns_cselect_b32 s57, 0, 0x100000")
        A(f"s_mul_i32 s53, s45, {4*WST()}\ns_mul_i32 s55, s46, 162\ns_add_u32 s53, s53, s55\ns_add_u32 s53, s53, {OWF//1024}\ns_add_u32 s53, s53, s57")
        A(f"s_cmp_eq_u32 s46, 1\ns_cbranch_scc1 {L}_w2")
        A("s_mul_i32 s55, s49, 3\ns_add_u32 s53, s53, s55")
        for q in range(4):
            A(f"s_lshl_b32 s55, s50, 2\ns_add_u32 s55, s55, {q}\ns_mul_i32 s56, s55, 86\ns_lshr_b32 s56, s56, 8")
            A(f"s_lshr_b32 s58, s56, 2\ns_mul_i32 s58, s58, {4*WST()-54}\ns_mul_i32 s56, s56, {WST()-3}\ns_sub_u32 s56, s56, s58")
            A(f"s_add_u32 s55, s55, s56\ns_add_u32 s55, s55, s53\ns_lshl_b32 s{SO+q}, s55, 10")
        A(f"s_mov_b32 s{SD}, s{pw1}\ns_mov_b32 s{SD+1}, s{pw1+1}\ns_mul_i32 s53, s49, {32*F*2}\ns_mul_i32 s55, s45, {DM*2}\ns_add_u32 s53, s53, s55\ns_add_u32 s{SB_}, s53, s54")
        A(f"s_mov_b32 s{SB_+1}, {4*F*2}\ns_mov_b32 s{SB_+2}, {2*F*2}\ns_mov_b32 s{SB_+3}, {F*2}")
        A(f"v_mul_u32_u24 v{vsrc}, {8*F*2}, v7\nv_lshl_add_u32 v{vsrc}, v6, 3, v{vsrc}\ns_branch {L}_done")
        A(f"{L}_w2:")
        idx, siz = 0, 0
        cb = 0
        for n in PAT():
            for i in range(n):
                idx |= i << (2 * (cb + i)); siz |= n << (2 * (cb + i))
            cb += n
        A(f"s_lshl_b32 s55, s50, 1\ns_lshr_b32 s56, {idx}, s55\ns_and_b32 s56, s56, 3\ns_lshr_b32 s58, {siz}, s55\ns_and_b32 s58, s58, 3")
        A("s_mul_i32 s58, s58, s49\ns_add_u32 s53, s53, s58\ns_mul_i32 s58, s50, 18\ns_add_u32 s53, s53, s58\ns_mul_i32 s56, s56, 17\ns_sub_u32 s53, s53, s56")
        A(f"s_lshl_b32 s{SO}, s53, 10\ns_add_u32 s{SO+1}, s{SO}, {WST()*1024}\ns_add_u32 s{SO+2}, s{SO}, {2*WST()*1024}\ns_add_u32 s{SO+3}, s{SO}, {3*WST()*1024}")
        A(f"s_mov_b32 s{SD}, s{pw2}\ns_mov_b32 s{SD+1}, s{pw2+1}\ns_lshr_b32 s53, s49, 1\ns_lshl_b32 s53, s53, 6\ns_and_b32 s55, s49, 1\ns_lshl_b32 s55, s55, 1\ns_add_u32 s53, s53, s55")
        A(f"s_mul_i32 s55, s45, {DM}\ns_add_u32 s53, s53, s55\ns_mul_i32 s53, s53, {DM*2}\ns_add_u32 s{SB_}, s53, s54")
        A(f"s_mov_b32 s{SB_+1}, {DM*2}\ns_mov_b32 s{SB_+2}, {8*DM*2}\ns_mov_b32 s{SB_+3}, {4*DM*2}")
        A(f"v_mul_u32_u24 v{vsrc}, {16*DM*2}, v7\nv_lshl_add_u32 v{vsrc}, v6, 3, v{vsrc}")
        A(f"{L}_done:")
        return "\n".join(t)
    def setup_wo(self, rnd, pwo, scr):
        L = self.a.label("rp")
        SD, SB_, SO, vsrc, dst = self.regs(rnd)
        t = []; A = t.append
        A(f"s_mul_hi_u32 s49, s47, {(2**32 + 8)//9}\ns_mul_i32 s50, s49, 9\ns_sub_u32 s50, s47, s50")
        A(f"s_mov_b32 s{SD+3}, 0x00020000\ns_lshl_b32 s54, s50, 7")
        A(f"s_mov_b32 s{SD}, s{pwo}\ns_mov_b32 s{SD+1}, s{pwo+1}\ns_cmp_lt_u32 s47, 162\ns_cselect_b32 s{SD+2}, {DM*DM*2}, 0\ns_cselect_b32 s56, 0, 0x40000000")
        for e in range(2):
            A(f"s_lshl_b32 s55, s50, 1\ns_add_u32 s55, s55, {e}\ns_mul_i32 s57, s55, 86\ns_lshr_b32 s57, s57, 8\ns_mul_i32 s58, s57, 3\ns_cmp_lt_u32 s49, s58\ns_cselect_b32 s58, 54, 0")
            A(f"s_mul_i32 s57, s57, 42\ns_add_u32 s55, s55, s57\ns_add_u32 s55, s55, s58\ns_mul_i32 s57, s49, 3\ns_add_u32 s55, s55, s57\ns_lshl_b32 s55, s55, 11\ns_add_u32 s{SO+e}, s55, s56")
        A(f"v_lshrrev_b32 v245, 3, v6\nv_lshlrev_b32 v245, 11, v245\nv_and_b32 v246, 7, v6\nv_lshl_add_u32 v245, v246, 5, v245\nv_lshl_add_u32 v245, v7, 8, v245\nv_add_u32 v{dst}, s{scr}, v245")
        A(f"s_mov_b32 s{SB_+3}, {DM*2}\ns_cmp_ge_u32 s49, 16\ns_cbranch_scc1 {L}_wo2")
        A(f"s_mul_i32 s53, s49, {36*DM*2}\ns_mov_b32 s{SB_+1}, {8*DM*2}\ns_mov_b32 s{SB_+2}, {2*DM*2}")
        A(f"v_lshrrev_b32 v246, 1, v7\nv_mul_u32_u24 v246, 18, v246\nv_and_b32 v247, 1, v7\nv_lshl_add_u32 v246, v247, 2, v246\ns_branch {L}_wo3")
        A(f"{L}_wo2:")
        A(f"s_sub_u32 s53, s49, 16\ns_mul_i32 s53, s53, {288*DM*2}\ns_add_u32 s53, s53, {16*DM*2}\ns_mov_b32 s{SB_+1}, {36*DM*2}\ns_mov_b32 s{SB_+2}, {18*DM*2}")
        A(f"v_mul_u32_u24 v246, 72, v7")
        A(f"{L}_wo3:")
        A(f"s_add_u32 s{SB_}, s53, s54\nv_mul_u32_u24 v{vsrc}, {DM*2}, v246\nv_lshl_add_u32 v{vsrc}, v6, 3, v{vsrc}")
        return "\n".join(t)
    def load(self, rnd, s_, flag=""):
        SD, SB_, SO, vsrc, dst = self.regs(rnd)
        raw = self.PR + 16 * rnd
        t = f"s_mov_b32 s55, s{SB_}\n"
        if s_ & 4: t += f"s_add_u32 s55, s55, s{SB_+1}\n"
        if s_ & 2: t += f"s_add_u32 s55, s55, s{SB_+2}\n"
        if s_ & 1: t += f"s_add_u32 s55, s55, s{SB_+3}\n"
        return t + f"buffer_load_dwordx2 v[{raw+2*s_}:{raw+2*s_+1}], v{vsrc}, s[{SD}:{SD+3}], s55 offen{flag}"
    def store(self, rnd, q_, flag=""):
        SD, SB_, SO, vsrc, dst = self.regs(rnd)
        raw = self.PR + 16 * rnd
        t = 196 + 4 * (q_ % 2)
        L = [f"v_perm_b32 v{t+j}, v{raw+2*(2*j+1)+(q_>>1)}, v{raw+2*(2*j)+(q_>>1)}, s{80+(q_&1)}" for j in range(4)]
        L.append(f"buffer_store_dwordx4 v[{t}:{t+3}], v{dst}, s[60:63], s{SO+q_} offen{flag}")
        return "\n".join(L)
    def touch(self, rnd):
        SD, SB_, SO, vsrc, dst = self.regs(rnd)
        return "s_mov_b64 exec, 0xff\nv_lshlrev_b32 v204, 7, v0\n" + "\n".join(f"buffer_load_dword v205, v204, s[60:63], s{SO+q} offen sc1" for q in range(4)) + "\ns_mov_b64 exec, -1"

def ffn_map(sj, smb):
    SL = OPT.get("k4_sl", 1); lg = SL.bit_length() - 1
    return (f"s_and_b32 s46, s2, 7\ns_lshr_b32 s47, s2, 3\ns_and_b32 s{sj}, s46, {8//SL-1}\ns_lshl_b32 s{sj}, s{sj}, {lg}\ns_and_b32 s48, s47, {SL-1}\ns_add_u32 s{sj}, s{sj}, s48\n"
            f"s_lshr_b32 s{smb}, s46, {3-lg}\ns_lshl_b32 s{smb}, s{smb}, {5-lg}\ns_lshr_b32 s48, s47, {lg}\ns_add_u32 s{smb}, s{smb}, s48\n")

def poll(a, n, voff, srd_, soff, vt, slp=2, first_loaded=False):
    L = a.label("poll")
    m = (1 << n) - 1
    a(f"s_mov_b32 s91, 0x10000\ns_mov_b32 exec_lo, {m & 0xffffffff}\ns_mov_b32 exec_hi, {m >> 32}" + (f"\ns_branch {L}_1" if first_loaded else ""))
    a(f"{L}:\nbuffer_load_dword v{vt}, v{voff}, s[{srd_}:{srd_+3}], s{soff} offen{OPT.get('pollf', ' sc1')}\ns_waitcnt vmcnt(0)\n{L}_1:\nv_cmp_eq_u32 vcc, s{SE}, v{vt}\ns_nop 1\ns_cmp_eq_u64 vcc, exec\ns_cbranch_scc1 {L}_ok\ns_sleep {slp}\ns_sub_u32 s91, s91, 1\ns_cbranch_scc0 {L}\n{L}_ok:")
    a("s_mov_b64 exec, -1")

K1_GRID = 256
K1_LDS = 159744 + 1280
def k1(a, st0):
    st = lambda i: st0({3: 30, 22: 31, 23: 30, 2: 31}[i]) if i in (2, 3, 22, 23) else None
    XLQ, XLK = 73728, 86016
    KVI = OPT.get('kvi', 21504)
    ST = OPT.get('k1_st', ' sc1')
    LATE = OPT.get('late', False)
    EPX = f's_load_dword s{SE}, s[14:15], 0'
    EP0 = '' if LATE else '\n' + EPX
    EP1 = EPX if LATE else ''
    kernel_begin(a, NAME + "_kernel")
    if OPT["codepf"]:
        a(f"s_cmp_ge_u32 s2, {OPT.get('pfn', 256)}\ns_cbranch_scc1 K1_nopf")
        a("s_getpc_b64 s[58:59]\nK1_pc:\nv_lshlrev_b32 v252, 7, v0\nv_min_u32 v252, K2_out-K1_pc, v252\nglobal_load_dword v253, v252, s[58:59]")
        a("K1_nopf:")
    a(f"s_cmp_lt_u32 s2, {K1_GRID}\ns_cbranch_scc1 K1_go\ns_endpgm\nK1_go:")
    a(f"s_load_dwordx4 s[4:7], s[0:1], {A_X}\ns_load_dwordx4 s[8:11], s[0:1], {A_WK}\ns_load_dwordx2 s[12:13], s[0:1], {A_WO}\ns_load_dwordx2 s[14:15], s[0:1], {K_WS}")
    st0.start()
    wave_lane(a)
    a(f"v_and_b32 v1, 15, v0\nv_lshrrev_b32 v2, 4, v0\ns_mov_b32 s{SW}, s3")
    a("s_bfe_u32 s44, s2, 0x20001\ns_lshl_b32 s44, s44, 3\ns_bfe_u32 s61, s2, 0x30003\ns_add_u32 s44, s44, s61\ns_and_b32 s45, s2, 1\ns_lshl_b32 s45, s45, 2\ns_lshr_b32 s62, s2, 6\ns_add_u32 s45, s45, s62")
    a("s_mul_i32 s60, s62, 9\ns_lshr_b32 s60, s60, 2\ns_add_u32 s60, s60, s61\ns_and_b32 s61, s2, 7\ns_add_u32 s60, s60, s61")
    S1 = OPT.get("seg", 5)
    if S1 < 9:
        S2 = 9 - S1
        a(f"s_mul_i32 s61, s60, {(4096 + S2 - 1)//S2}\ns_lshr_b32 s61, s61, 12\ns_mul_i32 s61, s61, {S2}\ns_sub_u32 s71, s60, s61")
        a(f"s_cmp_ge_u32 s45, 6\ns_cselect_b32 s71, 0, s71\ns_add_u32 s71, s71, {S1}")
    a(f"s_mul_i32 s61, s60, {(4096 + S1 - 1)//S1}\ns_lshr_b32 s61, s61, 12\ns_mul_i32 s61, s61, {S1}\ns_sub_u32 s60, s60, s61")
    def adv(slot, unit):
        if slot == S1 - 1 and S1 < 9: return f"s_mul_i32 s61, s71, {unit}"
        if slot < S1: return f"s_add_u32 s61, s61, {unit}\ns_cmp_eq_u32 s61, {S1*unit}\ns_cselect_b32 s61, 0, s61"
        return f"s_add_u32 s61, s61, {unit}\ns_cmp_eq_u32 s61, {9*unit}\ns_cselect_b32 s61, {S1*unit}, s61"
    a(f"s_cmp_ge_u32 s45, 6\ns_cselect_b32 s60, 0, s60\ns_mov_b32 s63, {XLQ}\ns_cselect_b32 s63, {XLK}, s63")
    a("v_lshrrev_b32 v4, 3, v0\nv_and_b32 v5, 7, v0\ns_lshl_b32 s90, s45, 5\ns_add_u32 s90, s90, s44")
    EX = 159744
    X0 = 16
    AR = 172
    ACC, CS, RS, GR, WF, ON = 88, 192, 112, 116, 120, 168
    ONr = f"v[{ON}:{ON+3}]"
    def V4(b): return f"v[{b}:{b+3}]"
    def lane_rc():
        a("v_lshrrev_b32 v10, 2, v1\nv_and_b32 v11, 3, v1\nv_lshl_add_u32 v12, v2, 3, v10")
    def xaddr(sbase):
        a(f"v_and_b32 v7, 7, v1\nv_xor_b32 v8, v2, v7\nv_lshlrev_b32 v8, 4, v8\nv_lshl_add_u32 v8, v1, 7, v8\nv_add_u32 v8, s{sbase}, v8\nv_xor_b32 v9, 64, v8")
        a("v_add_u32 v190, 0x8000, v8\nv_add_u32 v191, 0x8000, v9")
    def xrd(reg, ks, extra=0):
        p, e = divmod(ks, 2)
        b, o = (8 + e, 8192 * p) if p < 4 else (190 + e, 8192 * (p - 4))
        return f"ds_read_b128 {V4(reg)}, v{b} offset:{o + extra}"
    def waddr(shalf):
        a("v_lshrrev_b32 v13, 1, v10\nv_and_b32 v14, 1, v2\nv_lshl_add_u32 v13, v14, 1, v13")
        a("v_lshlrev_b32 v15, 7, v12\nv_lshl_add_u32 v15, v11, 3, v15\nv_lshlrev_b32 v7, 6, v12\nv_lshl_add_u32 v7, v11, 3, v7\nv_add_u32 v7, 4096, v7")
        a(f"s_cmp_eq_u32 s{shalf}, 1\ns_cselect_b64 vcc, -1, 0\ns_mul_i32 s55, s{shalf}, 3")
        a(f"v_xor_b32 v184, s55, v13\nv_lshl_add_u32 v{AR}, v184, 5, v15\nv_add_u32 v{AR+3}, 512, v{AR}")
        for t in (1, 2):
            a(f"v_xor_b32 v184, {t}, v13\nv_lshl_add_u32 v184, v184, 5, v15\nv_xor_b32 v185, {t-1}, v14\nv_lshl_add_u32 v185, v185, 5, v7")
            a(f"v_cndmask_b32 v{AR+t}, v184, v185, vcc\nv_add_u32 v184, 512, v184\nv_add_u32 v185, 256, v185\nv_cndmask_b32 v{AR+3+t}, v184, v185, vcc")
        for i in range(6): a(f"v_add_u32 v{AR+6+i}, {9*6144}, v{AR+i}")
    def wrd(reg, ks, t):
        hi = ks >= 9
        off = (ks - 9 * hi) * 6144
        return [f"ds_read_b64_tr_b16 v[{reg}:{reg+1}], v{AR+6*hi+t} offset:{off}", f"ds_read_b64_tr_b16 v[{reg+2}:{reg+3}], v{AR+6*hi+3+t} offset:{off}"]
    def stat_mfma(x, first):
        return [f"v_mfma_f32_16x16x32_bf16 {V4(RS)}, {ONr}, {V4(x)}, {'0' if first else V4(RS)}",
                f"v_mfma_f32_16x16x32_bf16 {V4(GR)}, {V4(x)}, {V4(x)}, {'0' if first else V4(GR)}"]
    def stats_out():
        a("v_cmp_eq_u32 vcc, 1, v11\nv_cmp_eq_u32 s[54:55], 2, v11\nv_cmp_eq_u32 s[56:57], 3, v11\nv_cmp_eq_u32 s[58:59], v10, v2\ns_nop 3")
        a(f"v_mul_f32 v4, {f32bits(-1.0/DM)}, v{RS}")
        a(f"v_cndmask_b32 v5, v{GR}, v{GR+1}, vcc\nv_cndmask_b32 v5, v5, v{GR+2}, s[54:55]\nv_cndmask_b32 v5, v5, v{GR+3}, s[56:57]\nv_cndmask_b32 v5, 0, v5, s[58:59]")
        sum_g(a, 5, 7)
        a(f"v_mul_f32 v5, {f32bits(1.0/DM)}, v5\nv_fma_f32 v5, -v4, v4, v5\nv_max_f32 v5, 0, v5\nv_add_f32 v5, {f32bits(1e-5)}, v5\nv_rsq_f32 v5, v5")
        a(f"s_lshl_b32 s54, s3, 7\ns_add_u32 s54, s54, {EX + 768}\nv_lshlrev_b32 v7, 3, v1\nv_add_u32 v7, s54, v7\nds_write_b64 v7, v[4:5]")
    if OPT.get("wtlb", False):
        a(f"s_cmp_lg_u32 s3, 7\ns_cbranch_scc1 K1_ntl\ns_load_dwordx4 s[24:27], s[0:1], {B_W1}\nv_lshlrev_b32 v250, 20, v0\ns_waitcnt lgkmcnt(0)")
        for b in (24, 26):
            a(f"s_mov_b32 s28, s{b}\ns_mov_b32 s29, s{b+1}\ns_mov_b32 s30, {DM*F*2}\ns_mov_b32 s31, 0x00020000\nbuffer_load_dword v251, v250, s[28:31], 0 offen nt")
        a("K1_ntl:")
    a("s_cmp_ge_u32 s3, 4\ns_cbranch_scc1 K1_ld")
    a("s_lshl_b32 s46, s44, 6\ns_lshl_b32 s47, s3, 4\ns_add_u32 s46, s46, s47")
    a(f"s_mul_i32 s47, s46, {DM*2}")
    a(f"v_xor_b32 v6, v4, v5\nv_mul_u32_u24 v3, {DM*2}, v4\nv_lshl_add_u32 v3, v6, 4, v3\nv_add_u32 v6, {8*DM*2 - 1024}, v3")
    a(f"s_lshl_b32 s61, s60, 7\ns_lshl_b32 s64, s3, 11\ns_add_u32 s64, s63, s64\ns_mov_b32 s66, s64")
    a(f"s_waitcnt lgkmcnt(0){EP0}")
    srd(a, 16, 4, 0, T*DM*2)
    def xdma(slot):
        return ("s_mov_b32 m0, s64\ns_add_u32 s62, s47, s61\ns_add_u32 s64, s64, 8192\n"
                "buffer_load_dwordx4 v3, s[16:19], s62 offen lds\nbuffer_load_dwordx4 v6, s[16:19], s62 offen offset:1024 lds\n"
                + adv(slot, 128))
    XA = OPT.get("k1_xa", 3)
    a(f"s_mov_b32 s70, {XA}\nK1_xl:"); assert XA < S1; a(xdma(0)); a("s_sub_u32 s70, s70, 1\ns_cmp_lg_u32 s70, 0\ns_cbranch_scc1 K1_xl\ns_branch K1_comp")
    a("K1_ld:")
    if OPT.get("lprio", 3): a(f"s_setprio {OPT.get('lprio', 3)}")
    a("s_cmp_eq_u32 s45, 7\ns_cbranch_scc1 K1_worp")
    a("s_sub_u32 s3, s3, 4")
    a("s_cmp_lg_u32 s45, 6\ns_cbranch_scc1 K1_qld")
    a(f"v_lshlrev_b32 v3, 4, v0\ns_and_b32 s48, s3, 1\ns_lshl_b32 s48, s48, 2\ns_mul_i32 s49, s3, {KVI}")
    a(f"s_waitcnt lgkmcnt(0){EP0}")
    a(f"s_cmp_lt_u32 s3, 2\ns_cselect_b32 s24, s8, s10\ns_cselect_b32 s25, s9, s11\ns_mov_b32 s26, {DM*DH*2}\ns_mov_b32 s27, 0x00020000")
    a(f"s_add_u32 s70, s49, {21*1024}\nK1_kl:\ns_mov_b32 m0, s49\ns_add_u32 s49, s49, 1024\nbuffer_load_dwordx4 v3, s[24:27], s48 offen lds\ns_add_u32 s48, s48, 1024\ns_cmp_lg_u32 s49, s70\ns_cbranch_scc1 K1_kl\ns_branch K1_kvload")
    a("K1_qld:")
    a("v_and_b32 v6, 1, v2\ns_and_b32 s48, s3, 1\ns_lshl_b32 s48, s48, 2\nv_lshlrev_b32 v6, 1, v6\nv_or_b32 v6, s48, v6\nv_xor_b32 v6, v6, v5")
    a(f"v_mul_u32_u24 v3, {DM*2}, v4\nv_lshl_add_u32 v3, v6, 4, v3")
    a("v_lshrrev_b32 v7, 5, v0\nv_lshlrev_b32 v7, 1, v7\nv_and_b32 v6, 3, v0\nv_xor_b32 v7, v7, v6\nv_lshrrev_b32 v6, 2, v0")
    a(f"v_mul_u32_u24 v6, {DM*2}, v6\nv_lshl_add_u32 v6, v7, 4, v6")
    a("s_mul_i32 s48, s45, 192\ns_and_b32 s53, s45, 1\ns_lshl_b32 s54, s53, 6\ns_add_u32 s49, s48, s54\ns_xor_b32 s53, s53, 1\ns_lshl_b32 s53, s53, 7\ns_add_u32 s50, s48, s53")
    a(f"s_mul_i32 s53, s3, {8*DM*2}\ns_add_u32 s49, s49, s53\ns_mul_i32 s53, s3, {16*DM*2}\ns_add_u32 s50, s50, s53")
    a("s_lshl_b32 s51, s3, 10")
    a("s_lshr_b32 s52, s3, 1\ns_mul_i32 s52, s52, 6144\ns_and_b32 s53, s3, 1\ns_lshl_b32 s53, s53, 10\ns_add_u32 s52, s52, s53\ns_add_u32 s52, s52, 4096")
    a(f"s_mul_i32 s61, s60, {64*DM*2}")
    a(f"s_waitcnt lgkmcnt(0){EP0}")
    srd(a, 20, 6, 0, DM*DM*2)
    def wdma(slot):
        a(f"s_add_u32 s62, s49, s61\ns_add_u32 s65, s50, s61\ns_add_u32 s64, s62, {32*DM*2}")
        a(f"s_mov_b32 m0, s51\ns_add_u32 s51, s51, 6144\nbuffer_load_dwordx4 v3, s[20:23], s62 offen lds")
        a(f"s_mov_b32 m0, s52\ns_add_u32 s52, s52, 12288\nbuffer_load_dwordx4 v6, s[20:23], s65 offen lds")
        a(f"s_mov_b32 m0, s51\ns_add_u32 s51, s51, 6144\nbuffer_load_dwordx4 v3, s[20:23], s64 offen lds")
        a(adv(slot, 64*DM*2))
    LA = OPT.get('k1_la', 2)
    a(f"s_mov_b32 s70, {LA}\nK1_wl:"); assert LA < S1; wdma(0); a("s_sub_u32 s70, s70, 1\ns_cmp_lg_u32 s70, 0\ns_cbranch_scc1 K1_wl")
    lane_rc()
    a("s_lshl_b32 s66, s3, 11\ns_add_u32 s66, s66, s63\ns_lshr_b32 s67, s3, 1")
    xaddr(66); waddr(67)
    a("s_and_b32 s55, s3, 1\ns_mul_i32 s55, s55, 6144")
    for i in range(12): a(f"v_add_u32 v{AR+i}, s55, v{AR+i}")
    for r in range(4): a(f"v_mov_b32 v{ON+r}, {ONES}")
    XE = 56
    for p in range(10):
        if p < 9:
            a(f"s_waitcnt vmcnt({3*(min(p + LA, 9) - p - 1)}) lgkmcnt(0)\ns_barrier")
            b = (p % 2) * 20
            if p == 0: a(EP1)
            if p < 8:
                a(xrd(X0 + b, 2*p)); a(xrd(X0 + b + 4, 2*p + 1))
            if p == 7:
                a(xrd(XE, 16)); a(xrd(XE + 4, 17))
            for t in range(3):
                for x in wrd(X0 + b + 8 + 4*t, 2*p if p != 4 else 8, t): a(x)
        else:
            a("s_waitcnt lgkmcnt(0)")
        if p > 0:
            b = ((p - 1) % 2) * 20
            if p < 9:
                for x in stat_mfma(X0 + b, p == 1) + stat_mfma(X0 + b + 4, False): a(x)
            if p == 8:
                for x in stat_mfma(XE, False) + stat_mfma(XE + 4, False): a(x)
            for t in range(3):
                a(f"v_mfma_f32_16x16x32_bf16 {V4(CS+4*t)}, {V4(X0+b+8+4*t)}, {ONr}, {'0' if p == 1 else V4(CS+4*t)}")
            if p == 8: stats_out()
        if p + LA < 9: wdma(p + LA)
    a(f"s_mul_i32 s54, s3, 192\ns_add_u32 s54, s54, {EX}\nv_lshlrev_b32 v7, 4, v2\nv_add_u32 v7, s54, v7\ns_nop 3")
    for t in range(3): a(f"ds_write_b128 v7, {V4(CS+4*t)} offset:{64*t}")
    a("s_waitcnt lgkmcnt(0)\ns_barrier\ns_branch K1_fin")
    a("K1_comp:")
    st(0)
    lane_rc()
    a("s_cmp_ge_u32 s45, 6\ns_cbranch_scc1 K1_kvgemm")
    a("s_and_b32 s68, s3, 1\ns_lshl_b32 s66, s68, 12\ns_add_u32 s66, s66, s63\ns_lshr_b32 s67, s3, 1")
    xaddr(66); waddr(67)
    ws_srd(a, 32, "Q", 14)
    def frags(ks):
        b = X0 + (ks % 2) * 20
        L = [xrd(b, ks), xrd(b + 4, ks, 2048)]
        for t in range(3): L += wrd(b + 8 + 4*t, ks, t)
        return L
    nx = XA
    a(f"s_waitcnt vmcnt({2*XA-2})\ns_barrier")
    st(2)
    a(EP1)
    for x in frags(0): a(x)
    for ks in range(18):
        p = ks // 2
        if ks % 2 == 1 and ks < 17:
            a(f"s_waitcnt vmcnt({2*(nx - p - 2) if ks < 13 else 0})" + (" lgkmcnt(6)" if ks == 9 else "") + "\ns_barrier")
        b = X0 + (ks % 2) * 20
        nf = frags(ks + 1) if ks < 17 else []
        issued = 0
        for t in range(3):
            a(f"s_waitcnt lgkmcnt({4 - 2*t + issued})")
            for m in range(2):
                d = ACC + (t*2 + m) * 4
                a(f"v_mfma_f32_16x16x32_bf16 {V4(d)}, {V4(b+8+4*t)}, {V4(b+4*m)}, {'0' if ks == 0 else V4(d)}")
                for x in nf[:2]: a(x); issued += 1
                nf = nf[2:]
        if ks % 2 == 0 and nx < 9:
            a(xdma(nx)); nx += 1
    st(3)
    a("v_lshlrev_b32 v3, 3, v0")
    a(f"s_lshl_b32 s48, s44, 1\ns_add_u32 s48, s48, s68\ns_mul_i32 s48, s48, {4*9216}")
    a("s_mul_i32 s49, s45, 6\ns_and_b32 s50, s45, 1\ns_lshl_b32 s51, s50, 1\ns_add_u32 s51, s51, s49\ns_lshl_b32 s50, s50, 2\ns_sub_u32 s52, s49, s50\ns_mul_i32 s69, s67, 3")
    a(f"s_mul_i32 s54, s67, 384\ns_add_u32 s54, s54, {EX}\nv_lshlrev_b32 v7, 4, v2\nv_add_u32 v7, s54, v7")
    a(f"s_lshl_b32 s54, s68, 8\ns_add_u32 s54, s54, {EX + 768}\nv_lshlrev_b32 v8, 3, v1\nv_add_u32 v8, s54, v8")
    a("s_barrier")
    a("ds_read_b64 v[12:13], v8\nds_read_b64 v[14:15], v8 offset:128")
    for i in range(6): a(f"ds_read_b128 {V4(CS+4*i)}, v7 offset:{64*i}")
    a(f"s_waitcnt lgkmcnt(0)\nv_mul_f32 v13, {f32bits(QSCALE)}, v13\nv_mul_f32 v15, {f32bits(QSCALE)}, v15")
    for t in range(3):
        a(f"s_add_u32 s53, s69, {t}\ns_cmp_lt_u32 s53, 4\ns_cselect_b32 s54, s51, s52\ns_add_u32 s53, s53, s54")
        a("s_mul_i32 s54, s53, 57\ns_lshr_b32 s54, s54, 9\ns_mul_i32 s54, s54, 4608\ns_lshl_b32 s53, s53, 9\ns_add_u32 s53, s53, s54\ns_add_u32 s53, s53, s48\ns_add_u32 s55, s53, 4608")
        for r in range(4): a(f"v_add_f32 v{CS+4*t+r}, v{CS+4*t+r}, v{CS+12+4*t+r}")
        for m in range(2):
            b = ACC + (t*2 + m) * 4
            for r in range(4): a(f"v_fmac_f32 v{b+r}, v{CS+4*t+r}, v{12+2*m}\nv_mul_f32 v{b+r}, v{b+r}, v{13+2*m}")
            a(f"v_cvt_pk_bf16_f32 v{b}, v{b}, v{b+1}\nv_cvt_pk_bf16_f32 v{b+1}, v{b+2}, v{b+3}")
            a(f"buffer_store_dwordx2 v[{b}:{b+1}], v3, s[32:35], s{53+2*m} offen{ST}")
    a("s_branch K1_fin")
    def kaddr():
        a(f"v_mul_u32_u24 v13, 36, v12\nv_lshl_add_u32 v13, v11, 3, v13\nv_and_b32 v14, 1, v10\nv_mul_u32_u24 v14, {KVI - 4}, v14\nv_add_u32 v{AR}, v13, v14")
        a(f"v_mul_u32_u24 v13, 36, v12\nv_add_u32 v{AR+1}, v13, v14")
    a("K1_kvload:")
    lane_rc()
    a("s_lshl_b32 s66, s3, 11\ns_add_u32 s66, s66, s63")
    xaddr(66)
    for r in range(4): a(f"v_mov_b32 v{ON+r}, {ONES}")
    ws_srd(a, 40, "MEAN1", 14)
    a(f"s_lshl_b32 s46, s44, 2\ns_add_u32 s46, s46, s3")
    a("s_waitcnt vmcnt(0)\ns_barrier")
    for ks in range(8): a(xrd(X0 + 4*ks, ks))
    for ks in range(18):
        a(f"s_waitcnt lgkmcnt({min(7, 17 - ks)})")
        for x in stat_mfma(X0 + 4*ks, ks == 0): a(x)
        if ks + 8 < 18: a(xrd(X0 + 4*(ks + 8), ks + 8))
    a("s_nop 3")
    stats_out()
    a("s_waitcnt lgkmcnt(0)\ns_barrier")
    a("v_sub_f32 v9, 0, v4\nv_lshlrev_b32 v7, 2, v0\ns_lshl_b32 s49, s46, 7\ns_mov_b32 exec_lo, -1\ns_mov_b32 exec_hi, 0\nbuffer_store_dword v9, v7, s[40:43], s49 offen sc1\ns_mov_b64 exec, -1")
    a("s_barrier\ns_branch K1_fin")
    a(f"K1_worp:\ns_waitcnt lgkmcnt(0){EP0}\nv_lshlrev_b32 v3, 4, v0")
    rp = Repack(a)
    a(rp.common())
    if OPT.get("wolate", True): a("s_barrier")
    for rnd in range(2):
        a(f"s_lshl_b32 s47, s44, 2\ns_add_u32 s47, s47, s3\ns_add_u32 s47, s47, {128*rnd - 4 & 0xffffffff}")
        a(f"s_lshl_b32 s59, s3, 13\ns_sub_u32 s59, s59, {32768 - 4096 - 4096*rnd}\nv_add_u32 v{16+rnd}, s59, v3")
        a(rp.setup_wo(rnd, 12, 59))
        for n in range(8): a(rp.load(rnd, n))
    for rnd in range(2):
        a(f"s_waitcnt vmcnt({8 if rnd == 0 else 4})")
        for n in range(4):
            t = rp.store(rnd, n).split("\n")[:4]
            a("\n".join(t) + f"\nds_write_b128 v{240+rnd}, v[{196+4*(n%2)}:{199+4*(n%2)}] offset:{(n&1)*1024 + (n>>1)*16}")
        for n in range(4): a(f"ds_read_b128 v[{32+16*rnd+4*n}:{35+16*rnd+4*n}], v{16+rnd} offset:{1024*n}")
        for n in range(4): a(f"s_waitcnt lgkmcnt({3-n})\nbuffer_store_dwordx4 v[{32+16*rnd+4*n}:{35+16*rnd+4*n}], v3, s[60:63], s{82+4*rnd+(n>>1)} offen offset:{1024*(n&1)} sc1")
    a("s_branch K1_fin")
    a("K1_kvgemm:")
    a("s_cmp_eq_u32 s45, 7\ns_cbranch_scc1 K1_wbar")
    for p in range(XA, 9): a(xdma(p))
    xaddr(63); kaddr()
    a(f"s_cmp_ge_u32 s3, 2\ns_cselect_b64 vcc, -1, 0\ns_and_b32 s55, s3, 1\ns_mul_i32 s55, s55, {2*KVI}\ns_lshr_b32 s56, s3, 1\ns_lshl_b32 s56, s56, 5\ns_add_u32 s55, s55, s56")
    a(f"v_cndmask_b32 v{AR}, v{AR}, v{AR+1}, vcc\nv_add_u32 v{AR}, s55, v{AR}")
    for r in range(4): a(f"v_mov_b32 v{ON+r}, {ONES}")
    ws_srd(a, 36, "KV", 14)
    a(f"s_mul_i32 s48, s44, {PAIR}")
    def kread(ks):
        b = X0 + (ks % 3) * 20
        return [f"ds_read_b64_tr_b16 v[{b}:{b+1}], v{AR} offset:{ks*1152}", f"ds_read_b64_tr_b16 v[{b+2}:{b+3}], v{AR} offset:{ks*1152 + 144}"] + \
               [xrd(b + 4 + 4*m, ks, 2048*m) for m in range(4)]
    a("s_waitcnt vmcnt(0)\ns_barrier")
    st(22)
    for x in kread(0) + kread(1): a(x)
    a("s_bitcmp1_b32 s3, 0\ns_cbranch_scc1 K1_vform")
    for form in range(2):
        if form: a("K1_vform:")
        for ks in range(18):
            b = X0 + (ks % 3) * 20
            fill = kread(ks + 2) if ks < 16 else []
            a(f"s_waitcnt lgkmcnt({6 if ks < 17 else 0})")
            for m in range(5):
                d, o = (ACC + 4*m, V4(b + 4 + 4*m)) if m < 4 else (CS, ONr)
                A_, B_ = (V4(b), o) if form == 0 else (o, V4(b))
                a(f"v_mfma_f32_16x16x32_bf16 {V4(d)}, {A_}, {B_}, {'0' if ks == 0 else V4(d)}")
                n = 2 if m == 0 else 1
                for y in fill[:n]: a(y)
                fill = fill[n:]
        st(23)
        if form == 0:
            a(f"v_lshlrev_b32 v7, 3, v1\nv_add_u32 v7, {EX + 768}, v7")
            a("v_lshrrev_b32 v8, 1, v2\nv_lshlrev_b32 v8, 9, v8\nv_lshl_add_u32 v8, v1, 4, v8\nv_and_b32 v9, 1, v2\nv_lshl_add_u32 v8, v9, 3, v8\nv_lshlrev_b32 v9, 2, v1")
            a("s_barrier")
            for m in range(4): a(f"ds_read_b64 v[{216+2*m}:{217+2*m}], v7 offset:{128*m}")
            a("s_waitcnt lgkmcnt(0)")
            for m in range(4):
                b = ACC + 4*m
                for r in range(4): a(f"v_fmac_f32 v{b+r}, v{CS+r}, v{216+2*m}\nv_mul_f32 v{b+r}, v{b+r}, v{217+2*m}")
                a(f"v_cvt_pk_bf16_f32 v{b}, v{b}, v{b+1}\nv_cvt_pk_bf16_f32 v{b+1}, v{b+2}, v{b+3}")
            a("s_cmp_lg_u32 s3, 0\ns_cbranch_scc1 K1_k2p")
            for m in range(4): a(f"ds_write_b64 v8, v[{ACC+4*m}:{ACC+4*m+1}] offset:{(m>>1)*1024 + (m&1)*256}")
            a("s_branch K1_kvst\nK1_k2p:\ns_mov_b64 exec, 0xffff")
            for m in range(4): a(f"ds_write_b32 v9, v{ACC+4*m} offset:{2048 + 64*m}")
            a("s_mov_b64 exec, -1\ns_branch K1_kvst")
        else:
            a(f"v_lshlrev_b32 v7, 5, v2\nv_add_u32 v7, {EX + 768}, v7")
            a("v_and_b32 v8, 1, v2\nv_mul_u32_u24 v8, 19, v8\nv_add_u32 v8, v8, v1\nv_lshlrev_b32 v8, 4, v8\nv_lshrrev_b32 v10, 1, v2\nv_lshl_add_u32 v8, v10, 3, v8")
            a("s_lshr_b32 s56, s3, 1\ns_lshl_b32 s56, s56, 8\nv_add_u32 v8, s56, v8\nv_cmp_eq_u32 s[54:55], 2, v1\nv_cmp_gt_u32 s[58:59], 3, v1\ns_nop 1")
            a("s_cmp_eq_u32 s3, 3\ns_cselect_b64 s[54:55], s[54:55], 0\ns_cselect_b64 s[58:59], s[58:59], -1")
            a("s_barrier")
            for m in range(4): a(f"ds_read_b128 v[{216+8*m}:{219+8*m}], v7 offset:{128*m}\nds_read_b128 v[{220+8*m}:{223+8*m}], v7 offset:{128*m+16}")
            a("s_waitcnt lgkmcnt(0)")
            for m in range(4):
                b = ACC + 4*m
                for r in range(4): a(f"v_fmac_f32 v{b+r}, v{CS}, v{216+8*m+2*r}\nv_mul_f32 v{b+r}, v{b+r}, v{217+8*m+2*r}")
                a(f"v_cvt_pk_bf16_f32 v{b}, v{b}, v{b+1}\nv_cvt_pk_bf16_f32 v{b+1}, v{b+2}, v{b+3}")
                a(f"v_cndmask_b32 v{b}, v{b}, v{ON}, s[54:55]\nv_cndmask_b32 v{b+1}, v{b+1}, v{ON}, s[54:55]")
            a("s_mov_b64 exec, s[58:59]")
            for m in range(4): a(f"ds_write_b64 v8, v[{ACC+4*m}:{ACC+4*m+1}] offset:{2304 + 608*m}")
            a("s_mov_b64 exec, -1")
    a("K1_kvst:")
    a("s_lshl_b32 s49, s3, 10\nv_lshlrev_b32 v3, 4, v0\nv_add_u32 v3, s49, v3\ns_waitcnt lgkmcnt(0)\ns_barrier")
    a("ds_read_b128 v[16:19], v3\nds_read_b128 v[20:23], v3 offset:1024\ns_waitcnt lgkmcnt(1)\nbuffer_store_dwordx4 v[16:19], v3, s[36:39], s48 offen sc1")
    a("s_waitcnt lgkmcnt(0)\ns_cmp_lg_u32 s3, 3\ns_cbranch_scc1 K1_fin\ns_mov_b32 exec_hi, 0xff\nbuffer_store_dwordx4 v[20:23], v3, s[36:39], s48 offen offset:1024 sc1\ns_mov_b64 exec, -1")
    a("s_branch K1_fin")
    a("K1_wbar:")
    for p in range(XA, 9): a(xdma(p))
    if OPT.get("wolate", True): a("s_waitcnt vmcnt(12)\ns_barrier")
    srd(a, 24, 12, 0, DM*DM*2)
    a("s_cmp_lt_u32 s44, 18\ns_cselect_b32 s26, s26, 0")
    a("s_cmp_ge_u32 s44, 16\ns_cbranch_scc1 K1_wb_hi")
    a("s_mul_i32 s50, s44, 36\ns_lshr_b32 s51, s3, 1\ns_mul_i32 s51, s51, 18\ns_add_u32 s50, s50, s51\ns_and_b32 s51, s3, 1\ns_lshl_b32 s51, s51, 2\ns_add_u32 s50, s50, s51")
    a("v_lshrrev_b32 v13, 2, v4\nv_lshlrev_b32 v13, 3, v13\nv_and_b32 v14, 3, v4\nv_add_u32 v13, v13, v14")
    a("s_branch K1_wb_go")
    a("K1_wb_hi:")
    a("s_sub_u32 s50, s44, 16\ns_mul_i32 s50, s50, 288\ns_mul_i32 s51, s3, 72\ns_add_u32 s50, s50, s51\ns_add_u32 s50, s50, 16")
    a("v_lshrrev_b32 v13, 1, v4\nv_mul_u32_u24 v13, 18, v13\nv_and_b32 v14, 1, v4\nv_add_u32 v13, v13, v14")
    a("K1_wb_go:")
    a(f"s_mul_i32 s50, s50, {DM*2}\nv_mul_u32_u24 v13, {DM*2}, v13\nv_lshl_add_u32 v13, v5, 4, v13")
    for i in range(9):
        a(f"buffer_load_dwordx4 v[{100+4*i}:{103+4*i}], v13, s[24:27], s50 offen offset:{128*i}")
    xaddr(66)
    ws_srd(a, 68, "XC", 14)
    ws_srd(a, 20, "WBAR", 14)
    a(f"v_lshlrev_b32 v3, 4, v0\ns_lshr_b32 s48, s46, 4\ns_mul_i32 s48, s48, 18432\ns_waitcnt vmcnt(9)")
    for ks in range(18): a(xrd(X0 + 4*ks, ks))
    a("s_waitcnt vmcnt(0)\ns_cmp_ge_u32 s44, 18\ns_cbranch_scc1 K1_xc")
    a(f"s_mov_b32 s56, {ONES}\nv_mov_b32 v6, 0\nv_mov_b32 v7, 0")
    for i in range(36):
        a(f"v_dot2_f32_bf16 v{6+i%2}, v{100+i}, s56, v{6+i%2}")
    a("s_nop 2\nv_add_f32 v6, v6, v7\ns_nop 1")
    for x in (1, 2, 4):
        a(f"ds_swizzle_b32 v7, v6 offset:{(x << 10) | 0x1f}\ns_waitcnt lgkmcnt(0)\nv_add_f32 v6, v6, v7")
    a(f"v_mul_f32 v6, {f32bits(1.0/DM)}, v6")
    a("v_cvt_pk_bf16_f32 v7, v6, v6\nv_lshlrev_b32 v8, 16, v7\nv_sub_f32 v8, v6, v8\nv_cvt_pk_bf16_f32 v8, v8, v8")
    a(f"s_lshl_b32 s47, s3, 8\nv_lshlrev_b32 v9, 5, v5\nv_lshl_add_u32 v9, v4, 1, v9\nv_add_u32 v9, s47, v9\nds_write_b16 v9, v7\nds_write_b16 v9, v8 offset:16")
    a("v_lshlrev_b32 v9, 2, v0\nv_add_u32 v10, s47, v9\nds_read_b32 v7, v10\ns_lshl_b32 s50, s44, 10\ns_add_u32 s50, s50, s47\ns_add_u32 s51, s50, 18432\ns_waitcnt lgkmcnt(0)")
    a("buffer_store_dword v7, v9, s[20:23], s50 offen sc1\nbuffer_store_dword v7, v9, s[20:23], s51 offen sc1")
    a("K1_xc:\ns_waitcnt lgkmcnt(0)")
    for ks in range(18):
        if ks and ks % 4 == 0: a("s_add_u32 s48, s48, 4096")
        a(f"buffer_store_dwordx4 {V4(X0+4*ks)}, v3, s[68:71], s48 offen offset:{(ks%4)*1024}{ST}")
    a("K1_fin:")

K2_GRID = 256
K2_LDS = 32 * PAIR + 9216
def k2(a, st, force_fallback=False):
    FB = WS["FLAG"][0]
    a(f"s_mov_b32 s3, s{SW}\ns_waitcnt lgkmcnt(0)")
    ws_srd(a, 36, "FLAG", 14)
    a(f"s_mul_i32 s{SE}, s{SE}, 0x9e3779b1\ns_add_u32 s{SE}, s{SE}, 0x7f4a7c15\nv_mov_b32 v4, s{SE}\nv_lshlrev_b32 v5, 2, v0\ns_lshl_b32 s45, s90, 7\ns_add_u32 s45, s45, {FL_AF}")
    st(19)
    a("s_waitcnt vmcnt(0)\ns_barrier")
    a("s_cmp_lg_u32 s3, 0\ns_cbranch_scc1 K2_naf\ns_mov_b32 exec_lo, -1\ns_mov_b32 exec_hi, 0\nbuffer_store_dword v4, v5, s[36:39], s45 offen sc1\ns_mov_b64 exec, -1\nK2_naf:")
    a(f"s_setprio 0\ns_load_dwordx2 s[4:5], s[0:1], {K_OUT}\ns_load_dwordx4 s[8:11], s[0:1], {B_W1}")
    a("v_and_b32 v1, 31, v0\nv_lshrrev_b32 v2, 5, v0\nv_lshlrev_b32 v3, 4, v0")
    st(17)
    a("s_lshr_b32 s40, s2, 2\ns_and_b32 s41, s2, 3\ns_lshl_b32 s41, s41, 3\ns_add_u32 s41, s41, s3")
    a(f"s_mul_i32 s42, s2, 9216\ns_lshl_b32 s43, s3, 10\ns_add_u32 s42, s42, s43\ns_add_u32 s43, s43, {32*PAIR}")
    a("s_lshl_b32 s44, s3, 10")
    ws_srd(a, 16, "KV", 14)
    ws_srd(a, 20, "Q", 14)
    Q1, Q2 = 8, 12
    def dma(r):
        txt = f"s_mov_b32 m0, s44\ns_nop 0\nbuffer_load_dwordx4 v3, s[16:19], s44 offen sc1 lds\ns_add_u32 s44, s44, 8192"
        if r == 18:
            L = a.label("dm")
            txt = f"s_cmp_ge_u32 s3, 4\ns_cbranch_scc1 {L}\n{txt}\n{L}:"
        return txt
    rp = Repack(a)
    nt_ = " nt" if OPT["k2_nt"] else ""
    def uidx(rnd):
        t = ("" if rnd else ffn_map(34, 35)) + f"s_mov_b32 s45, s34\ns_mul_i32 s47, s35, 11\ns_add_u32 s47, s47, s3\n"
        if rnd: t += "s_add_u32 s47, s47, 3\ns_cmp_lt_u32 s3, 5\ns_cselect_b32 s47, 400, s47\n"
        return t
    def RPS(): return [rp.common() + "\n" + uidx(0) + rp.setup_ffn(0, 8, 10), uidx(1) + rp.setup_ffn(1, 8, 10)]
    for d in (60, 64, 68):
        a(f"s_mov_b32 s{d}, s14\ns_mov_b32 s{d+1}, s15\ns_mov_b32 s{d+2}, 0\ns_mov_b32 s{d+3}, 0x00020000")
    a("v_mov_b32 v240, 0\nv_mov_b32 v241, 0\nv_mov_b32 v242, 0\nv_mov_b32 v243, 0")
    a("s_and_b32 s45, s2, 3\ns_mul_i32 s45, s45, 3\ns_lshr_b32 s45, s45, 1\ns_lshl_b32 s45, s45, 5\ns_lshr_b32 s46, s2, 3\ns_add_u32 s45, s45, s46")
    a("v_add_u32 v30, 192, v0\nv_lshlrev_b32 v31, 5, v1\nv_add_u32 v31, s45, v31\nv_cmp_gt_u32 vcc, 32, v0\ns_nop 1\nv_cndmask_b32 v30, v31, v30, vcc\nv_lshlrev_b32 v30, 7, v30")
    a(f"s_mov_b32 s45, {FL_AF}")
    if OPT.get("a_one", True):
        a("s_cmp_lg_u32 s3, 1\ns_cbranch_scc1 K2_np")
        poll(a, 34, 30, 36, 45, 31, OPT.get("a_slp", 2))
        if OPT.get("rps", 2) == 2:
            r_ = RPS()
            a("s_branch K2_nb\nK2_np:\ns_waitcnt lgkmcnt(0)"); a(r_[0]); a("s_cmp_lt_u32 s3, 5\ns_cbranch_scc1 K2_nb"); a(r_[1]); a("K2_nb:\ns_barrier")
        else:
            a("K2_np:\ns_barrier")
    else:
        poll(a, 34, 30, 36, 45, 31, OPT.get("a_slp", 2))
    st(18)
    a("s_cmp_lg_u32 s3, 0\ns_cbranch_scc1 K2_q1")
    a(f"s_mov_b32 m0, {32*PAIR + 8192}\ns_add_u32 s45, s42, 8192\nbuffer_load_dwordx4 v3, s[20:23], s45 offen sc1 lds")
    a("K2_q1:")
    a("s_mov_b32 m0, s43\ns_nop 0\nbuffer_load_dwordx4 v3, s[20:23], s42 offen sc1 lds")
    a(dma(0)); a(dma(1)); a(dma(2))
    if OPT.get('sync4', True): a(dma(3))
    a(f"v_mov_b32 v{Q2+1}, 0")
    ws_srd(a, 24, "O", 14)
    a(f"v_lshrrev_b32 v4, 4, v1\nv_mul_u32_u24 v4, 4608, v4\nv_and_b32 v5, 15, v1\nv_lshl_add_u32 v4, v5, 3, v4\nv_add_u32 v4, {32*PAIR}, v4")
    a("s_mul_i32 s45, s3, 9\nv_lshlrev_b32 v5, 2, v2\nv_add_u32 v5, s45, v5")
    for i in range(5):
        if i < 4: a(f"v_add_u32 v30, {i}, v5")
        else: a("s_add_u32 s45, s45, 8\nv_mov_b32 v30, s45")
        a(f"v_lshrrev_b32 v31, 1, v30\nv_lshl_add_u32 v31, v31, 7, v4\nv_and_b32 v30, 1, v30\nv_lshl_add_u32 v{25+i}, v30, 2, v31")
    SEG = 13
    VKA, VK2, VVA = 14, 17, 20
    a(f"v_mul_u32_u24 v23, 19, v2\nv_add_u32 v23, v23, v1\nv_lshlrev_b32 v23, 4, v23\nv_mov_b32 v24, 0x40000\nv_cmp_gt_u32 vcc, 19, v1\ns_nop 1\nv_cndmask_b32 v{VVA}, v24, v23, vcc")
    a(f"v_mov_b32 v{VKA}, v3\nv_lshlrev_b32 v{VK2}, 2, v0")
    for b in (VKA, VK2, VVA):
        a(f"v_add_u32 v{b+1}, {SEG*PAIR}, v{b}\nv_add_u32 v{b+2}, {2*SEG*PAIR}, v{b}")
    SA, SB, P, O, NM = 32, 64, 96, 112, 128
    KF, K2F, VF = 144, 160, 164
    FOLD = OPT.get("fold", True)
    a(f"v_mov_b32 v{K2F+1}, {ONES if FOLD else 0}\nv_mov_b32 v{K2F+3}, {ONES if FOLD else 0}")
    for r in range(16): a(f"v_mov_b32 v{O+r}, 0")
    def w3(txt):
        L = a.label("w3")
        return (f"s_cmp_lt_u32 s3, 5" if OPT.get("w3hi", True) else f"s_cmp_ge_u32 s3, 3") + f"\ns_cbranch_scc1 {L}\n{txt}\n{L}:"
    def seg(p): return p // SEG, (p % SEG) * PAIR
    def rdK(i, p):
        sg, o = seg(p)
        return [f"ds_read_b128 v[{KF+8*i}:{KF+8*i+3}], v{VKA+sg} offset:{o}",
                f"ds_read_b128 v[{KF+8*i+4}:{KF+8*i+7}], v{VKA+sg} offset:{o+1024}",
                f"ds_read_b32 v{K2F+2*i}, v{VK2+sg} offset:{o+2048}"]
    def rdV(i, p):
        sg, o = seg(p)
        return [f"ds_read_b128 v[{VF+16*i+4*q}:{VF+16*i+4*q+3}], v{VVA+sg} offset:{o+2304+608*q}" for q in range(4)]
    def qk(S, i, c):
        return [f"v_mfma_f32_32x32x16_bf16 v[{S}:{S+15}], v[{KF+8*i}:{KF+8*i+3}], v[{Q1}:{Q1+3}], {c}",
                f"v_mfma_f32_32x32x16_bf16 v[{S+16}:{S+31}], v[{KF+8*i+4}:{KF+8*i+7}], v[{Q1}:{Q1+3}], {c}",
                f"v_mfma_f32_32x32x4_2b_bf16 v[{S}:{S+31}], v[{K2F+2*i}:{K2F+2*i+1}], v[{Q2}:{Q2+1}], v[{S}:{S+31}]"]
    def pvm(vs_, u):
        return f"v_mfma_f32_32x32x16_bf16 v[{O}:{O+15}], v[{VF+16*vs_+4*u}:{VF+16*vs_+4*u+3}], v[{P+4*u}:{P+4*u+3}], v[{O}:{O+15}]"
    def rowmax(S, dst, first):
        L = []; r = 0
        if first:
            L.append(f"v_max_f32 v{dst}, v{S}, v{S+1}"); r = 2
        while r < 32:
            L.append(f"v_max3_f32 v{dst}, v{S+r}, v{S+r+1}, v{dst}"); r += 2
        return L
    def set_nm(src):
        a(f"v_mov_b32 v25, v{src}\ns_nop 1\nv_permlane32_swap_b32 v{src}, v25\ns_nop 1\nv_max_f32 v{src}, v{src}, v25")
        for r in range(16): a(f"v_sub_f32 v{NM+r}, 0, v{src}")
    def E(cur, g):
        b = cur + 4 * g
        return [f"v_exp_f32 v{b+r}, v{b+r}" for r in range(4)] + \
               [f"v_cvt_pk_bf16_f32 v{P+2*g}, v{b}, v{b+1}", f"v_cvt_pk_bf16_f32 v{P+2*g+1}, v{b+2}, v{b+3}"]
    NMr = f"v[{NM}:{NM+15}]"
    a("s_waitcnt lgkmcnt(0)")
    if OPT.get("rps", 2) == 0: a(RPS()[0]); a(RPS()[1])
    if OPT["prio"]: a("s_setprio 1")
    st(0)
    a(f"s_waitcnt vmcnt({3 if OPT.get('sync4', True) else 2})\ns_barrier")
    st(1)
    for i in range(5): a(f"ds_read_b32 v{Q1+i}, v{25+i}")
    for x in rdK(0, 0) + rdK(1, 1) + rdV(0, 0): a(x)
    a("s_waitcnt lgkmcnt(7)")
    q = qk(SA, 0, "0")
    a(q[0]); a(q[1]); a("s_nop 9"); a(q[2]); a("s_nop 15\ns_nop 3")
    for x in rowmax(SA, 24, True): a(x)
    if force_fallback:
        a(f"v_add_f32 v24, {f32bits(-100.0)}, v24")
    if FOLD:
        a("v_mov_b32 v25, v24\ns_nop 1\nv_permlane32_swap_b32 v24, v25\ns_nop 1\nv_max_f32 v24, v24, v25")
        a(f"v_cvt_pk_bf16_f32 v25, -v24, -v24\nv_mov_b32 v{NM}, 0\nv_lshlrev_b32 v26, 16, v25\nv_sub_f32 v26, -v24, v26\nv_cvt_pk_bf16_f32 v{Q2+1}, -v24, v26\nv_cvt_pk_bf16_f32 v{NM+1}, -v24, v26\ns_nop 1")
        a(f"v_mfma_f32_32x32x4_2b_bf16 v[{SA}:{SA+31}], v[{K2F}:{K2F+1}], v[{NM}:{NM+1}], v[{SA}:{SA+31}]\ns_nop 15\ns_nop 1")
    else:
        set_nm(24)
        for r in range(32): a(f"v_add_f32 v{SA+r}, v{SA+r}, v{NM}")
    st(2)
    extra = {i: [] for i in range(32)}
    pre = {i: [] for i in range(32)}
    SYNC = OPT.get("sync4", True)
    B3 = 8 if SYNC else 9
    if SYNC:
        r = 4
        for i in range(5):
            extra[i] += [dma(r), dma(r + 1), dma(r + 2)]; r += 3
        pre[0].append("s_waitcnt vmcnt(0)\ns_barrier"); pre[4].append("s_waitcnt vmcnt(3)\ns_barrier")
    else:
        r = 3
        for i in range(8):
            extra[i] += [dma(r), dma(r + 1)]; r += 2
        pre[0].append("s_waitcnt vmcnt(0)\ns_barrier"); pre[3].append("s_waitcnt vmcnt(2)\ns_barrier")
    pre[B3].append(f"v_mov_b32 v196, 0\nv_mov_b32 v197, 0\nv_mov_b32 v198, 0\nv_mov_b32 v199, 0\nv_mov_b32 v200, {ffn.CNT}\nds_write_b128 v200, v[196:199]\nds_write_b128 v200, v[196:199] offset:16\nds_write_b128 v200, v[196:199] offset:32\ns_waitcnt vmcnt(0) lgkmcnt(0)\ns_barrier")
    for n in range(8):
        if OPT.get("rp1", False):
            extra[9 + n].append(rp.load(0, n, nt_)); extra[9 + n].append(w3(rp.load(1, n, nt_)))
        else:
            extra[9 + n // 2].append(rp.load(0, n, nt_))
            extra[13 + n // 2].append(w3(rp.load(1, n, nt_)))
    if OPT.get("rps", 2) == 1: pre[6].append(RPS()[0]); pre[7].append(RPS()[1])
    if OPT.get("rps", 2) == 2: pre[5].append("s_cmp_lg_u32 s3, 1\ns_cbranch_scc1 K2_s1\n" + RPS()[0] + "\nK2_s1:")
    ST0 = OPT.get("k2_st0", 21)
    pre[ST0].append("s_waitcnt vmcnt(0)")
    for n in range(4):
        extra[ST0 + n // 2].append(rp.store(0, n, " sc1"))
        extra[ST0 + 2 + n // 2].append(w3(rp.store(1, n, " sc1")))
    pre[ST0 + 7].append("s_waitcnt vmcnt(0)")
    extra[ST0 + 7].append(f"v_mov_b32 v206, {ffn.CNT}\nv_mov_b32 v207, 1\ns_mov_b64 exec, 1\nds_add_rtn_u32 v205, v206, v207 offset:44\ns_mov_b64 exec, -1")
    extra[ST0 + 8].append(f"v_readfirstlane_b32 s45, v205\ns_cmp_lg_u32 s45, 7\ns_cbranch_scc1 K2_nrf\ns_lshl_b32 s45, s34, 5\ns_add_u32 s45, s45, s35\ns_lshl_b32 s45, s45, 7\ns_add_u32 s45, s45, {FL_RF}\n"
                          f"v_mov_b32 v206, s{SE}\nv_lshlrev_b32 v207, 2, v0\ns_mov_b32 exec_lo, -1\ns_mov_b32 exec_hi, 0\nbuffer_store_dword v206, v207, s[36:39], s45 offen sc1\ns_mov_b64 exec, -1\nK2_nrf:")
    if OPT.get("k2_touch", False):
        extra[ST0 + 7].append(rp.touch(0)); extra[ST0 + 8].append(w3(rp.touch(1)))
    extra[B3 - 1].append(f"s_mov_b32 s45, {FL_AF + 224*128}\nv_lshlrev_b32 v206, 7, v1\nbuffer_load_dword v205, v206, s[36:39], s45 offen sc1")
    tmp = Asm(); tmp.uid = 9000
    poll(tmp, 32, 206, 36, 45, 205, 2, first_loaded=True)
    pre[B3].append(tmp.text())
    EW = OPT.get("wo_early", 10)
    if EW:
        wo0, wosz = WS["WOF"]
        pre[OPT.get('wob', 24)].append(f"s_lshr_b32 s77, s2, 5\ns_add_u32 s20, s14, {wo0}\ns_addc_u32 s21, s15, 0\ns_mov_b32 s22, {wosz}\ns_mov_b32 s23, 0x00020000\n"
                       f"s_lshl_b32 s32, s3, 10\ns_mul_i32 s33, s77, {108*1024}\ns_add_u32 s33, s33, s32\ns_waitcnt lgkmcnt(0)\ns_barrier")
        nb_ = 0
        for i in list(range(25, 32)) + list(range(25, 32)):
            if nb_ < EW and len(extra[i]) < 2:
                extra[i].append("s_mov_b32 m0, s32\ns_add_u32 s32, s32, 8192\nbuffer_load_dwordx4 v3, s[20:23], s33 offen sc1 lds\ns_add_u32 s33, s33, 8192"); nb_ += 1
        assert nb_ == EW
    if OPT.get("wo_touch", True):
        L = a.label("wt")
        wb0 = WS["WBAR"][0]; wsz = WS["WOF"][0] + WS["WOF"][1] - wb0
        extra[19].append(f"s_sub_u32 s56, s3, 3\ns_cmp_ge_u32 s56, 3\ns_cbranch_scc1 {L}\ns_lshr_b32 s57, s2, 3\ns_mul_i32 s57, s57, 3\ns_add_u32 s56, s56, s57\ns_lshl_b32 s56, s56, 13\n"
                         f"s_add_u32 s28, s14, {wb0}\ns_addc_u32 s29, s15, 0\ns_mov_b32 s30, {wsz}\ns_mov_b32 s31, 0x00020000\nv_lshlrev_b32 v206, 7, v0\nbuffer_load_dword v205, v206, s[28:31], s56 offen sc1\n{L}:")
    if OPT["codepf"]:
        L = a.label("cp")
        extra[18].append(f"s_lshr_b32 s56, s2, 3\ns_cmp_ge_u32 s56, CODE_PF_N\ns_cbranch_scc1 {L}\ns_cmp_lg_u32 s3, 0\ns_cbranch_scc1 {L}\n"
                         f"s_getpc_b64 s[58:59]\n{L}_pc:\ns_add_u32 s58, s58, K2_out-{L}_pc\ns_addc_u32 s59, s59, 0\n"
                         f"s_lshl_b32 s56, s56, 13\nv_lshlrev_b32 v206, 7, v0\nv_add_u32 v206, s56, v206\nv_min_u32 v206, CODE_END-K2_out-4, v206\nglobal_load_dword v205, v206, s[58:59]\n{L}:")
    ABL = OPT.get("abl", "")
    if "l" in ABL:
        for i in range(9, 17): extra[i] = []
    if "s" in ABL:
        for i in range(ST0, ST0 + 4): extra[i] = []
    if "u" in ABL:
        pre[6] = [ffn_map(34, 35)]; pre[7] = []
    if "m" in ABL:
        extra[18] = []; extra[19] = []; extra[8] = []; pre[9] = pre[9][:1]
    for i in range(32):
        cur, nxt = (SA, SB) if i % 2 == 0 else (SB, SA)
        q = qk(nxt, (i + 1) % 2, "0" if FOLD else NMr) if i < 31 else ["", "", ""]
        vs_ = i % 2
        kr = rdK(i % 2, i + 2) if i + 2 < 32 else ["", "", ""]
        vrd = rdV((i + 1) % 2, i + 1) if i < 31 else [""] * 4
        e = [E(cur, g) for g in range(8)]
        assert len(extra[i]) <= 3
        ex = extra[i] + ["", "", ""]
        seq = list(pre[i])
        PP = OPT.get("pp", 4)
        if OPT["prio"] and i % PP in (0, OPT["prio"]):
            L = a.label("pr")
            seq.append(f"s_cmp_lt_u32 s3, 4\ns_cbranch_scc1 {L}\ns_setprio {2 if i % PP == 0 else 0}\n{L}:")
        AL = OPT.get("aal", 0)
        P3 = {0: "", 1: ".p2align 3", 2: ".p2align 3\ns_nop 0"}[AL]
        if AL: ex = [x + "\n" + P3 if x else x for x in ex]
        sp = 2 if AL else 3
        seq += ["s_waitcnt lgkmcnt(0)", P3, q[0]] + kr[0:2] + e[0]
        seq += [pvm(1 - vs_, 3) if i > 0 else ""] + kr[2:3] + vrd[0:1] + e[1]
        seq += [q[1]] + vrd[1:3] + e[2]
        seq += [pvm(vs_, 0)] + vrd[3:4] + e[3]
        seq += [q[2], ex[0]] + e[4] + e[5][:sp]
        seq += [pvm(vs_, 1), ex[1]] + e[5][sp:] + e[6][:2]
        seq += [pvm(vs_, 2), ex[2]] + e[6][2:] + e[7]
        for x in seq:
            if x: a(x)
        if i % 8 == 7: st(3 + i // 8)
    a("s_nop 1"); a(pvm(1, 3))
    a("s_setprio 0\ns_nop 15")
    def bcast_l():
        a(f"v_mov_b32 v25, v{O+10}\nv_mov_b32 v26, v{O+10}\ns_nop 1\nv_permlane32_swap_b32 v25, v26\ns_nop 1")
    bcast_l()
    a(f"v_mov_b32 v26, {f32bits(2.0**60)}\nv_cmp_nle_f32 vcc, v25, v26\nv_mov_b32 v26, {f32bits(2.0**-60)}\nv_cmp_lt_f32 s[52:53], v25, v26\ns_nop 4\ns_or_b64 vcc, vcc, s[52:53]\ns_cbranch_scc0 K2_out")
    a(f"v_mov_b32 v24, 0xff800000\nv_mov_b32 v{Q2+1}, 0")
    for ps in range(2):
        a(f"s_mov_b32 s52, 0\nv_mov_b32 v27, v{VKA}\nv_mov_b32 v28, v{VK2}\nv_mov_b32 v29, v{VVA}")
        a(f"K2_fb{ps}:")
        a(f"buffer_load_dwordx4 v[{KF}:{KF+3}], v27, s[16:19], 0 offen sc1\nbuffer_load_dwordx4 v[{KF+4}:{KF+7}], v27, s[16:19], 0 offen offset:1024 sc1\nbuffer_load_dword v{K2F}, v28, s[16:19], 0 offen offset:2048 sc1")
        if ps:
            a("s_movk_i32 s53, 2304")
            for u in range(4): a(f"buffer_load_dwordx4 v[{VF+4*u}:{VF+4*u+3}], v29, s[16:19], s53 offen offset:{608*u} sc1")
        a("s_waitcnt vmcnt(0)")
        q = qk(SA, 0, NMr if ps else "0")
        a(q[0]); a(q[1]); a("s_nop 9"); a(q[2]); a("s_nop 15\ns_nop 3")
        if ps == 0:
            for x in rowmax(SA, 24, False): a(x)
        else:
            for g in range(8):
                for x in E(SA, g): a(x)
            a("s_nop 1")
            for u in range(4): a(pvm(0, u))
        a(f"v_add_u32 v27, {PAIR}, v27\nv_add_u32 v28, {PAIR}, v28\nv_add_u32 v29, {PAIR}, v29")
        a(f"s_add_u32 s52, s52, 1\ns_cmp_lt_u32 s52, 32\ns_cbranch_scc1 K2_fb{ps}")
        if ps == 0:
            set_nm(24)
            for r in range(16): a(f"v_mov_b32 v{O+r}, 0")
    a("s_nop 15")
    bcast_l()
    a("K2_out:")
    WR, XR, ACC, XRES = 12, 40, 112, 140
    a("s_lshr_b32 s77, s2, 5\ns_and_b32 s78, s2, 7\ns_lshl_b32 s78, s78, 2\ns_bfe_u32 s43, s2, 0x20003\ns_add_u32 s78, s78, s43")
    a("s_cmp_ge_u32 s3, 4\ns_cbranch_scc1 K2_noearly")
    a("s_lshl_b32 s46, s78, 2\ns_add_u32 s46, s46, s3")
    ws_srd(a, 48, "MEAN1", 14)
    ws_srd(a, 52, "XC", 14)
    a(f"s_mul_i32 s47, s77, 3072\ns_mul_i32 s30, s46, 18432\ns_add_u32 s47, s47, s30")
    for u in range(3):
        a(f"buffer_load_dwordx4 v[{XRES+4*u}:{XRES+4*u+3}], v3, s[52:55], s47 offen offset:{1024*u} sc1")
    a(f"v_and_b32 v166, 15, v0\nv_lshlrev_b32 v166, 2, v166\ns_lshl_b32 s65, s46, 7\nbuffer_load_dword v165, v166, s[48:51], s65 offen sc1")
    a("K2_noearly:")
    a(f"s_lshl_b32 s43, s34, 12\ns_add_u32 s43, s43, {FL_RF}\nv_lshlrev_b32 v161, 7, v1\nbuffer_load_dword v160, v161, s[36:39], s43 offen sc1")
    a(f"v_rcp_f32 v25, v25\ns_nop 0")
    for r in range(10): a(f"v_mul_f32 v{O+r}, v{O+r}, v25")
    for r in range(5): a(f"v_cvt_pk_bf16_f32 v{P+r}, v{O+2*r}, v{O+2*r+1}")
    a(f"v_lshrrev_b32 v26, 4, v1\nv_mul_u32_u24 v27, {18*1024}, v26\nv_and_b32 v28, 15, v1\nv_lshl_add_u32 v27, v28, 4, v27\nv_lshl_add_u32 v27, v2, 8, v27")
    a(f"s_mul_i32 s42, s40, {36*1024}\ns_lshl_b32 s43, s41, 9\ns_add_u32 s43, s43, s42")
    a(f"buffer_store_dwordx4 v[{P}:{P+3}], v27, s[24:27], s43 offen sc1")
    OSC = 32 * PAIR + 1024
    a(f"s_lshr_b32 s43, s3, 2\ns_lshl_b32 s43, s43, 8\ns_and_b32 s44, s3, 3\ns_lshl_b32 s44, s44, 2\ns_add_u32 s43, s43, s44\ns_add_u32 s43, s43, {OSC}")
    a(f"v_lshlrev_b32 v26, 9, v26\nv_lshl_add_u32 v26, v28, 4, v26\nv_add_u32 v26, s43, v26\ns_mov_b32 exec_lo, -1\ns_mov_b32 exec_hi, 0\nds_write_b32 v26, v{P+4}\ns_mov_b64 exec, -1")
    a(f"v_mov_b32 v172, {ffn.CNT}\nv_mov_b32 v8, 1\nv_lshlrev_b32 v9, 2, v0\nv_mov_b32 v174, s{SE}\ns_lshl_b32 s79, s2, 7\ns_add_u32 s79, s79, {FL_OF}")
    a(f"v_add_u32 v4, {OSC}, v3\nv_mul_u32_u24 v5, {18*1024}, v2\nv_lshl_add_u32 v5, v1, 4, v5")
    a("s_and_b32 s43, s2, 3\ns_lshl_b32 s43, s43, 9\ns_add_u32 s43, s43, s42\ns_add_u32 s43, s43, 16384")
    a("s_waitcnt lgkmcnt(0)\ns_barrier")
    st(7)
    a("s_cmp_lg_u32 s3, 0\ns_cbranch_scc1 K3_norem")
    a("ds_read_b128 v[12:15], v4\ns_waitcnt lgkmcnt(0)\nbuffer_store_dwordx4 v[12:15], v5, s[24:27], s43 offen sc1")
    a("K3_norem:")
    a("v_lshlrev_b32 v2, 4, v0\ns_mov_b32 s40, s77\ns_mov_b32 s41, s78")
    a("s_waitcnt vmcnt(0)\ns_mov_b64 exec, 1\nds_add_rtn_u32 v168, v172, v8 offset:36\ns_waitcnt lgkmcnt(0)\nv_readfirstlane_b32 s70, v168\ns_cmp_lg_u32 s70, 7\ns_cbranch_scc1 K3_nofl")
    a("s_mov_b32 exec_lo, -1\ns_mov_b32 exec_hi, 0\nbuffer_store_dword v174, v9, s[36:39], s79 offen sc1\nK3_nofl:\ns_mov_b64 exec, -1")
    a("s_cmp_ge_u32 s3, 4\ns_cbranch_scc1 K3_loader")
    a("v_add_u32 v3, 0x10000, v2\nv_add_u32 v4, 0x20000, v2\nv_and_b32 v5, 15, v0\nv_lshrrev_b32 v6, 4, v0\nv_lshlrev_b32 v7, 7, v0")
    a("v_lshlrev_b32 v11, 2, v5\nv_mov_b32 v10, v165")
    st(8)
    a("s_cmp_ge_u32 s40, 6\ns_cbranch_scc1 K4_compute")
    a(f"s_lshl_b32 s43, s41, 3\ns_lshr_b32 s44, s3, 1\ns_lshl_b32 s44, s44, 2\ns_add_u32 s43, s43, s44\ns_lshl_b32 s43, s43, 7\ns_add_u32 s43, s43, {FL_OF}")
    ws_srd(a, 52, "HC", 14)
    ws_srd(a, 60, "SS", 14)
    a("s_barrier")
    st(13)
    for j in range(7):
        off = j * 1024 if j < 6 else 108 * 1024
        a(f"ds_read_b128 v[{12+4*j}:{15+4*j}], v{2 + off // 65536} offset:{off % 65536}")
    poll(a, 4, 7, 36, 43, 164, 1)
    st(9)
    a("s_mul_i32 s44, s40, 3072")
    def oload(ks):
        t = ""
        if ks % 3 == 0:
            t = "s_add_u32 s45, s30, s44\ns_add_u32 s44, s44, 3072\ns_cmp_eq_u32 s44, 18432\ns_cselect_b32 s44, 0, s44\n"
        return t + f"buffer_load_dwordx4 v[{XR+4*ks}:{XR+4*ks+3}], v2, s[24:27], s45 offen offset:{(ks%3)*1024} sc1"
    OD = OPT.get("k3_od", 6)
    for ks in range(OD): a(oload(ks))
    st(10)
    def wread(ks, j):
        off = (ks * 6 + j) * 1024 if j < 6 else (108 + ks) * 1024
        return f"ds_read_b128 v[{WR+4*j}:{WR+4*j+3}], v{2 + off // 65536} offset:{off % 65536}"
    nl = OD
    for ks in range(18):
        for j in range(7):
            a((f"s_waitcnt vmcnt({nl-1-ks}) " if j == 0 else "s_waitcnt ") + f"lgkmcnt({6 if ks < 17 else 6-j})")
            c = "0" if ks == 0 else f"v[{ACC+4*j}:{ACC+4*j+3}]"
            a(f"v_mfma_f32_16x16x32_bf16 v[{ACC+4*j}:{ACC+4*j+3}], v[{WR+4*j}:{WR+4*j+3}], v[{XR+4*ks}:{XR+4*ks+3}], {c}")
            if ks < 17: a(wread(ks + 1, j))
            if j in (1, 4) and nl < 18:
                a(oload(nl)); nl += 1
    a("s_barrier")
    st(11)
    e = ACC + 24
    a(f"s_nop 6\nv_add_f32 v10, v10, v{e}\nv_add_f32 v10, v10, v{e+1}\nv_mov_b32 v14, 0")
    for u in range(3):
        for r in range(4):
            x = XRES + 4 * u + r
            lo, hi = ACC + 8 * u + r, ACC + 8 * u + 4 + r
            a(f"v_lshlrev_b32 v12, 16, v{x}\nv_and_b32 v13, 0xffff0000, v{x}")
            a(f"v_add_f32 v{lo}, v{lo}, v12\nv_add_f32 v{hi}, v{hi}, v13")
            a(f"v_sub_f32 v{lo}, v{lo}, v10\nv_sub_f32 v{hi}, v{hi}, v10")
            a(f"v_cvt_pk_bf16_f32 v{XR+4*u+r}, v{lo}, v{hi}")
        a(f"buffer_store_dwordx4 v[{XR+4*u}:{XR+4*u+3}], v2, s[52:55], s47 offen offset:{1024*u} sc1")
    for i in range(12): a(f"v_dot2_f32_bf16 v14, v{XR+i}, v{XR+i}, v14")
    a("s_nop 2")
    sum_g(a, 14, 12)
    a("v_cmp_eq_u32 vcc, 1, v6\ns_lshl_b32 s43, s46, 3\ns_add_u32 s43, s43, s40\ns_lshl_b32 s43, s43, 7\nv_cndmask_b32 v14, v14, v10, vcc\ns_mov_b32 exec_lo, -1\ns_mov_b32 exec_hi, 0")
    a("buffer_store_dword v14, v9, s[60:63], s43 offen sc1")
    a(f"s_lshl_b32 s43, s46, 3\ns_add_u32 s43, s43, s40\ns_lshl_b32 s43, s43, 7\ns_add_u32 s43, s43, {FL_HF}")
    a("s_waitcnt vmcnt(0)\nbuffer_store_dword v174, v9, s[36:39], s43 offen sc1\ns_mov_b64 exec, -1")
    st(12)
    a("s_branch K4_compute")
    a("K3_loader:")
    a(f"v_mov_b32 v4, {ffn.CNT}")
    a("s_sub_u32 s33, s3, 4\ns_cmp_ge_u32 s40, 6\ns_cbranch_scc1 K3_pf")
    ws_srd(a, 20, "WOF", 14)
    ws_srd(a, 68, "WBAR", 14)
    a(f"s_lshl_b32 s76, s33, 10\ns_mul_i32 s75, s40, {108*1024}\ns_add_u32 s74, s76, {EW*8192}\ns_add_u32 s75, s75, s74")
    a("s_mul_i32 s77, s40, 3072\ns_add_u32 s76, s76, s77")
    for i in range(2*EW, 32):
        sd, so = ((20, 75) if i < 27 else (68, 76))
        a(f"s_mov_b32 m0, s74\ns_add_u32 s74, s74, 4096\nbuffer_load_dwordx4 v2, s[{sd}:{sd+3}], s{so} offen sc1 lds\ns_add_u32 s{so}, s{so}, 4096")
    a("s_waitcnt vmcnt(0)\ns_barrier")
    a("K3_pf:")
    a("s_cmp_ge_u32 s40, 6\ns_cbranch_scc1 K4_helper\ns_barrier\ns_branch K4_helper")
    k4(a, st)
    a("s_endpgm\nCODE_END:")
    return kernel_desc(NAME + "_kernel", 256)

def rf_check(a, first_loaded):
    a(f"s_lshl_b32 s43, s34, 12\ns_add_u32 s43, s43, {FL_RF}")
    poll(a, 32, 161, 36, 43, 160, 2, first_loaded)
def h_bases(a, sw):
    a("v_add_u32 v3, 0x10000, v2\nv_add_u32 v4, 0x20000, v2")
    a(f"s_mul_i32 s42, s{sw}, 3\ns_lshr_b32 s43, s42, 1\ns_lshl_b32 s43, s43, 12\ns_and_b32 s44, s42, 1\ns_lshl_b32 s45, s44, 3\ns_add_u32 s43, s43, s45\ns_add_u32 s43, s43, {ffn.HB}")
    a("v_add_u32 v5, s43, v2")
    a("s_mul_i32 s45, s44, 4080\ns_add_u32 s45, s45, 8\nv_add_u32 v6, s45, v5")
def k4(a, st0):
    st = lambda i: st0(20 + i)
    a("K4_compute:\ns_mov_b32 s40, s34\ns_mov_b32 s41, s35")
    rf_check(a, True)
    a(f"s_lshl_b32 s46, s40, 2\ns_add_u32 s46, s46, s3\ns_mul_i32 s31, s46, {WST()*1024}")
    ws_srd(a, 20, "WF", 14)
    cs = ffn.Stream(a, PAT(), srdW=20, sW=31, v_lane16=2, v_h8=5, v_p=7, v_one=10, ACC=16, XF=112, TMP=160, RB=176,
                    RINGF=min(OPT.get('ring', 20), 19 if st0.on else 20), stamp=st, wflag=OPT.get('wflag', ' sc1'), al=OPT.get('al', 0))
    cs.prefill(min(cs.RINGF, OPT.get("k4_pre", 18)))
    a("s_setprio 2")
    h_bases(a, 3)
    a("v_and_b32 v12, 15, v0\nv_lshrrev_b32 v13, 4, v0\ns_lshr_b32 s45, s3, 1\nv_lshl_add_u32 v13, v13, 1, s45\nv_and_b32 v14, 7, v0\nv_xor_b32 v13, v13, v14")
    a("s_and_b32 s45, s3, 1\ns_lshl_b32 s45, s45, 3\nv_lshl_add_u32 v13, v13, 4, s45\nv_lshl_add_u32 v7, v12, 7, v13\nv_add_u32 v8, 0x8000, v7")
    a(f"v_mov_b32 v10, 1\nv_mov_b32 v11, {ffn.CNT}")
    cs.run()
    LASTP = OPT.get("lastp", True)
    if LASTP:
        a("s_waitcnt lgkmcnt(0)\nv_readfirstlane_b32 s70, v175\ns_mov_b32 s33, 8\ns_cmp_eq_u32 s70, 3\ns_cbranch_scc1 K4_pubs")
    a("s_branch K4_work")
    PB, AC = 48, 112
    a("K4_helper:")
    a(f"s_setprio {OPT.get('k4_hprio', 0)}\ns_mov_b32 s40, s34\ns_mov_b32 s41, s35")
    a(f"s_mul_i32 s30, s41, 73728\ns_mul_i32 s90, s33, 18432\ns_add_u32 s30, s30, s90")
    ws_srd(a, 16, "HC", 14)
    a(f"s_lshl_b32 s43, s41, 2\ns_add_u32 s43, s43, s33\ns_lshl_b32 s43, s43, 10\ns_add_u32 s43, s43, {FL_HF}\nv_lshlrev_b32 v12, 7, v0")
    poll(a, 6, 12, 36, 43, 13, 1)
    st(9)
    for i in range(18):
        if i % 4 == 0: a("s_mov_b32 m0, s90\ns_add_u32 s90, s90, 4096")
        a(f"buffer_load_dwordx4 v2, s[16:19], s30 offen offset:{(i%4)*1024} sc1 lds")
        if i % 4 == 3: a("s_add_u32 s30, s30, 4096")
        if i >= 5 and i % 3 == 2: a("s_waitcnt vmcnt(3)\ns_barrier")
    a("s_waitcnt vmcnt(0)\ns_barrier")
    a("s_cmp_lg_u32 s2, 0\ns_cbranch_scc1 K4_nep\ns_cmp_lg_u32 s33, 3\ns_cbranch_scc1 K4_nep\ns_mov_b32 s74, s34\ns_mov_b32 s34, 0\nK4_epl:")
    rf_check(a, False)
    a(f"s_add_u32 s34, s34, 1\ns_cmp_lt_u32 s34, 8\ns_cbranch_scc1 K4_epl\ns_mov_b32 s34, s74\nv_mov_b32 v13, s{SE}\nv_mov_b32 v14, 0")
    ws_srd(a, 52, "EP", 14)
    a("s_mov_b64 exec, 1\nbuffer_store_dword v13, v14, s[52:55], 0 offen sc1\ns_mov_b64 exec, -1\nK4_nep:")
    for i in range(ffn.N_BARRIERS_AFTER_X): a("s_barrier")
    NPUB = OPT.get("npub", 2)
    a(f"s_cmp_ge_u32 s33, {NPUB}\ns_cbranch_scc1 K4_work")
    def wait_cnt(L, slp):
        a(f"s_mov_b32 s72, 0x40000\n{L}:\nds_read_b32 v3, v4\ns_waitcnt lgkmcnt(0)\nv_readfirstlane_b32 s70, v3\ns_cmp_eq_u32 s70, 4\ns_cbranch_scc1 {L}_ok\ns_sleep {slp}\ns_sub_u32 s72, s72, 1\ns_cbranch_scc0 {L}\n{L}_ok:")
    SWZ = "v_lshrrev_b32 v5, 3, v0\nv_and_b32 v6, 7, v0\nv_xor_b32 v7, v5, v6\nv_lshlrev_b32 v7, 4, v7\nv_lshl_add_u32 v7, v5, 7, v7"
    a("K4_pubs:")
    ws_srd(a, 24, "PART", 14)
    a("s_mov_b32 s42, s33"); a(SWZ)
    a(f"s_lshl_b32 s44, s42, 13\nv_add_u32 v7, s44, v7\ns_lshl_b32 s44, s42, 2\ns_add_u32 s44, s44, {ffn.CNT}\nv_mov_b32 v4, s44")
    a("s_mul_i32 s49, s41, 9\ns_add_u32 s49, s49, s42\ns_lshl_b32 s47, s49, 16\ns_lshl_b32 s51, s49, 10")
    a("s_lshl_b32 s44, s40, 13\ns_add_u32 s47, s47, s44\ns_lshl_b32 s44, s40, 7\ns_add_u32 s51, s51, s44\nv_lshlrev_b32 v18, 2, v0")
    a(f"v_mov_b32 v13, s{SE}")
    a("K4_pub:")
    wait_cnt("K4_pw", 2)
    st0.dyn(34, 42)
    for i in range(8): a(f"ds_read_b128 v[{PB+4*i}:{PB+4*i+3}], v7 offset:{1024*i}")
    a("s_add_u32 s71, s47, 4096")
    for i in range(8):
        a(f"s_cmp_eq_u32 s40, {i}\ns_cbranch_scc1 K4_ps{i}\ns_waitcnt lgkmcnt({7-i})\nbuffer_store_dwordx4 v[{PB+4*i}:{PB+4*i+3}], v2, s[24:27], s{47 if i < 4 else 71} offen offset:{(i%4)*1024} sc1\nK4_ps{i}:")
    a("s_waitcnt vmcnt(0) lgkmcnt(0)\ns_mov_b32 exec_lo, -1\ns_mov_b32 exec_hi, 0\nbuffer_store_dword v13, v18, s[36:39], s51 offen sc1\ns_mov_b64 exec, -1")
    st0.dyn(43, 42)
    a(f"s_add_u32 s42, s42, {NPUB}\ns_add_u32 s47, s47, {NPUB << 16}\ns_add_u32 s51, s51, {NPUB << 10}\nv_add_u32 v7, {NPUB << 13}, v7\nv_add_u32 v4, {4*NPUB}, v4\ns_cmp_lt_u32 s42, {8 if LASTP else 9}\ns_cbranch_scc1 K4_pub")
    a("K4_work:")
    a(f"v_mov_b32 v14, {ffn.CNT}\nv_mov_b32 v15, 1")
    TAKE = "s_mov_b64 exec, 1\nds_add_rtn_u32 v3, v14, v15 offset:40\ns_mov_b64 exec, -1\ns_waitcnt lgkmcnt(0)\nv_readfirstlane_b32 s42, v3\ns_cmp_ge_u32 s42, 9\ns_cbranch_scc1 K4_fin"
    a(TAKE)
    ws_srd(a, 16, "HC", 14)
    ws_srd(a, 24, "PART", 14)
    ws_srd(a, 56, "SS", 14)
    srd(a, 60, 4, 0, T*DM*2)
    a(SWZ)
    a("s_lshl_b32 s43, s40, 3\nv_add_u32 v8, s43, v5")
    a("v_lshrrev_b32 v19, 4, v8\nv_lshlrev_b32 v19, 10, v19\nv_and_b32 v16, 15, v8\nv_lshl_add_u32 v19, v16, 2, v19\ns_lshl_b32 s65, s41, 12\nbuffer_load_dword v140, v19, s[56:59], s65 offen offset:64 sc1")
    for nb in range(6): a(f"buffer_load_dword v{144+nb}, v19, s[56:59], s65 offen offset:{128*nb} sc1")
    a("s_lshl_b32 s44, s40, 10\nv_add_u32 v9, s44, v7\nv_lshlrev_b32 v12, 7, v0")
    a("v_lshrrev_b32 v10, 4, v8\nv_mul_u32_u24 v10, 18432, v10\nv_lshl_add_u32 v10, v6, 8, v10\nv_and_b32 v11, 15, v8\nv_lshl_add_u32 v10, v11, 4, v10")
    a(f"v_mul_u32_u24 v11, {DM*2}, v8\nv_lshl_add_u32 v11, v6, 4, v11")
    a("v_and_b32 v19, 1, v0\nv_cmp_eq_u32 s[66:67], 1, v19\ns_mov_b32 s68, 0x00003f80\ns_mov_b32 s69, 0x3f800000\ns_mov_b32 s74, 0")
    a("K4_red:")
    a("s_mul_i32 s30, s41, 73728\ns_lshl_b32 s44, s42, 11\ns_add_u32 s30, s30, s44\nbuffer_load_dwordx4 v[20:23], v10, s[16:19], s30 offen sc1")
    a(f"s_mul_i32 s64, s41, {64*DM*2}\ns_lshl_b32 s44, s42, 7\ns_add_u32 s64, s64, s44")
    a(f"s_lshl_b32 s44, s42, 13\nv_add_u32 v7, s44, v9\ns_lshl_b32 s44, s42, 2\ns_add_u32 s44, s44, {ffn.CNT}\nv_mov_b32 v4, s44")
    a("s_mul_i32 s49, s41, 9\ns_add_u32 s49, s49, s42\ns_lshl_b32 s71, s49, 16\ns_lshl_b32 s51, s49, 10\ns_lshl_b32 s44, s40, 10\ns_add_u32 s71, s71, s44")
    wait_cnt("K4_rw", 4)
    poll(a, 8, 12, 36, 51, 3, OPT.get("red_slp", 2))
    st0.dyn(52, 42)
    for j in range(8):
        b = PB + 4*j
        a(f"s_cmp_eq_u32 s40, {j}\ns_cbranch_scc1 K4_ro{j}\nbuffer_load_dwordx4 v[{b}:{b+3}], v2, s[24:27], s71 offen sc1\ns_branch K4_rp{j}\nK4_ro{j}:\nds_read_b128 v[{b}:{b+3}], v7\nK4_rp{j}:\ns_add_u32 s71, s71, 8192")
    a("s_cmp_lg_u32 s74, 0\ns_cbranch_scc1 K4_hs\ns_mov_b32 s74, 1")
    a("v_add_f32 v144, v144, v145\nv_add_f32 v146, v146, v147\nv_add_f32 v148, v148, v149\nv_add_f32 v144, v144, v146\nv_add_f32 v144, v144, v148")
    a(f"v_mov_b32 v145, {f32bits(1e-5)}\nv_fmac_f32 v145, {f32bits(1.0/DM)}, v144\nv_rsq_f32 v142, v145\nK4_hs:")
    for i in range(4):
        a(f"v_lshlrev_b32 v{24+2*i}, 16, v{20+i}\nv_and_b32 v{25+2*i}, 0xffff0000, v{20+i}\nv_add_f32 v{24+2*i}, v{24+2*i}, v140\nv_add_f32 v{25+2*i}, v{25+2*i}, v140")
    a("s_waitcnt lgkmcnt(0)")
    for j in range(8):
        a(f"s_waitcnt vmcnt({max(0, 6-j)})")
        for qq in range(2):
            for p in range(2):
                src = PB + 4*j + 2*qq + p
                d0, d1 = AC + 4*p + qq, AC + 4*p + 2 + qq
                if OPT.get("red_dot", False):
                    for hh, d in ((0, d0), (1, d1)):
                        a(f"v_dot2_f32_bf16 v{d}, v{src}, s{68+hh}, {'0' if j == 0 else f'v{d}'}")
                elif j == 0:
                    a(f"v_lshlrev_b32 v{d0}, 16, v{src}\nv_and_b32 v{d1}, 0xffff0000, v{src}")
                else:
                    a(f"v_lshlrev_b32 v16, 16, v{src}\nv_and_b32 v{src}, 0xffff0000, v{src}\nv_add_f32 v{d0}, v{d0}, v16\nv_add_f32 v{d1}, v{d1}, v{src}")
    a("s_nop 2")
    for i in range(4):
        a(f"v_cndmask_b32 v{AC+8+i}, v{AC+4+i}, v{AC+i}, s[66:67]")
        a(f"v_cndmask_b32 v{AC+12+i}, v{AC+i}, v{AC+4+i}, s[66:67]")
    a("s_nop 1")
    for i in range(4):
        a(f"v_mov_b32_dpp v{AC+16+i}, v{AC+8+i} quad_perm:[1,0,3,2] row_mask:0xf bank_mask:0xf")
    for hlf in range(2):
        for e in range(2):
            k_, r_ = AC + 12 + 2*hlf + e, AC + 16 + 2*hlf + e
            a(f"v_cndmask_b32 v{AC+4*hlf+e}, v{k_}, v{r_}, s[66:67]\nv_cndmask_b32 v{AC+4*hlf+2+e}, v{r_}, v{k_}, s[66:67]")
    for i in range(4):
        a(f"v_fmac_f32 v{24+2*i}, v{AC+2*i}, v142\nv_fmac_f32 v{25+2*i}, v{AC+2*i+1}, v142\nv_cvt_pk_bf16_f32 v{40+i}, v{24+2*i}, v{25+2*i}")
    a("buffer_store_dwordx4 v[40:43], v11, s[60:63], s64 offen" + OPT.get("oflag", ""))
    st0.dyn(8, 42)
    a(TAKE + "\ns_branch K4_red")
    a("K4_fin:")
    st0.finish(14, 3, 8)

HEADER = open("cdna_kernels/" + NAME + ".s.ref").read().split("; Override launch geometry")[0]
DOC = """; Generated by a Python script (hand-designed schedule). One persistent launch, 256 workgroups x 8 waves, one per CU:
"""
def build(stamp_k=-1, force_fallback=False, light=False, **opt):
    LIGHT[0] = light
    OPT.update(opt)
    a = Asm()
    hdr = HEADER + f"; @launch grid=({K1_GRID},1,1) block=(512,1,1) lds={max(K1_LDS, K2_LDS)}\n"
    hdr += DOC
    a('.amdgcn_target "amdgcn-amd-amdhsa--gfx950"\n.text')
    st = Stamps(a, stamp_k == 2, 2, 255, 254)
    k1(a, st)
    descs = [k2(a, st, force_fallback)]
    a('.set CODE_PF_N, (CODE_END - K2_out + 8191) / 8192')
    a('.section .rodata,"a"')
    txt = a.text()
    if OPT.get("stf"):
        txt = "\n".join(ln.replace(" sc1", OPT["stf"]) if "buffer_store" in ln else ln for ln in txt.split("\n"))
    if OPT.get("ldf"):
        txt = "\n".join(ln.replace(" sc1", OPT["ldf"]) if ("buffer_load" in ln and "s[24:27]" in ln) else ln for ln in txt.split("\n"))
    return hdr + txt + "".join(descs)

if __name__ == "__main__":
    out = sys.argv[1] if len(sys.argv) > 1 else "cdna_kernels/" + NAME + ".s"
    kw = eval("dict(" + (sys.argv[2] if len(sys.argv) > 2 else "") + ")")
    open(out, "w").write(build(**kw))
```

```python
import sys, math
from asmlib import *
from gemm import gemm_core
import ffn

T, DM, NH, DH, F = 2048, 576, 32, 18, 4608
NAME = "sequential_preLN__grouped_kv_mqa__dense_activation_relu__prompt"
A_X, A_WQ, A_WK, A_WV, A_WO, B_X, B_W1, B_W2, K_OUT, K_DBG, K_WS = [8 * i for i in range(11)]
def _al(x, a=4096): return (x + a - 1) // a * a
PAIR = 4736
FL_PF, FL_OF, FL_HF, FL_RF = 0, 294912, 294912 + 32768, 294912 + 32768 + 131072
FL_AF = FL_RF + 32768
FL_END = FL_AF + 32768
SW, SE = 100, 101
WS = {}
_o = 0
for nm, sz in [("EP", 128), ("Q", T*DM*2), ("KV", 32*PAIR), ("MEAN1", T*8), ("O", T*DM*2), ("HC", T*DM*2),
               ("SS", 128*8*128), ("XC", T*DM*2), ("WBAR", 36*1024), ("WOF", 648*1024), ("WF", 32*332*1024),
               ("PART", 8*T*DM*2), ("FLAG", FL_END), ("STAMP", 16 << 20)]:
    WS[nm] = (_o, sz); _o += _al(sz)
WS_END = _o
QSCALE = math.log2(math.e) / math.sqrt(DH)
def f32bits(x):
    import struct
    return struct.unpack("<I", struct.pack("<f", x))[0]
ONES = 0x3f803f80

def ws_srd(a, d, nm, base):
    srd(a, d, base, WS[nm][0], WS[nm][1])

def wave_lane(a, s_wave=3):
    a(f"v_lshrrev_b32 v1, 6, v0\nv_and_b32 v0, 63, v0\ns_nop 0\nv_readfirstlane_b32 s{s_wave}, v1")

def sum_g(a, v, t):
    a(f"v_mov_b32 v{t}, v{v}\ns_nop 1\nv_permlane32_swap_b32 v{v}, v{t}\ns_nop 1\nv_add_f32 v{v}, v{v}, v{t}")
    a(f"v_mov_b32 v{t}, v{v}\ns_nop 1\nv_permlane16_swap_b32 v{v}, v{t}\ns_nop 1\nv_add_f32 v{v}, v{v}, v{t}")

LIGHT = [False]
OPT = dict(prio=3, k2_nt=True, codepf=True)
class Stamps:
    def __init__(self, a, on, kidx, vreg, vtmp):
        self.a, self.on, self.k, self.v, self.t = a, bool(on) or LIGHT[0], kidx, vreg, vtmp
        self.full = bool(on)
    def start(self):
        if OPT.get("probe") is not None:
            self.a("s_memrealtime s[96:97]\ns_waitcnt lgkmcnt(0)\ns_mov_b32 s99, s96\ns_mov_b32 s98, s96")
        if self.on:
            self.a(f"s_memrealtime s[96:97]\ns_memtime s[98:99]\nv_mov_b32 v{self.v}, 0\ns_waitcnt lgkmcnt(0)\nv_writelane_b32 v{self.v}, s96, 62")
    def __call__(self, i):
        if OPT.get("probe") == i:
            self.a("s_memrealtime s[96:97]\ns_waitcnt lgkmcnt(0)\ns_mov_b32 s98, s96")
        if self.full or (self.on and i == 61):
            if OPT.get("rt") and i != 61:
                self.a(f"s_memrealtime s[96:97]\ns_waitcnt lgkmcnt(0)\nv_writelane_b32 v{self.v}, s96, {i}")
            else:
                self.a(f"s_memtime s[96:97]\ns_waitcnt lgkmcnt(0)\ns_sub_u32 s96, s96, s98\nv_writelane_b32 v{self.v}, s96, {i}")
    def dyn(self, base, sreg):
        if self.full:
            self.a(f"s_memrealtime s[96:97]\ns_add_u32 m0, s{sreg}, {base}\ns_waitcnt lgkmcnt(0)\nv_writelane_b32 v{self.v}, s96, m0")
    def finish(self, s_ws, s_wave, nw):
        if OPT.get("probe") is not None:
            a = self.a
            a(f"s_cmp_lg_u32 s2, 8\ns_cbranch_scc1 PB_e\ns_cmp_lg_u32 s{s_wave}, 0\ns_cbranch_scc1 PB_e\ns_memrealtime s[96:97]\ns_waitcnt lgkmcnt(0)")
            if OPT["probe"] == 63: a("s_mov_b32 s98, s96")
            a("s_sub_u32 s98, s98, s99\ns_mul_i32 s98, s98, " + str(OPT.get("pk", 2)) + "\ns_mov_b32 s99, s96\nPB_l:\ns_memrealtime s[96:97]\ns_waitcnt lgkmcnt(0)\ns_sub_u32 s96, s96, s99\ns_cmp_lt_u32 s96, s98\ns_cbranch_scc1 PB_l\nPB_e:")
        if self.on:
            a = self.a
            a("s_waitcnt vmcnt(0)")
            self(61)
            a(f"s_memrealtime s[96:97]\ns_waitcnt lgkmcnt(0)\nv_writelane_b32 v{self.v}, s96, 63")
            ws_srd(a, 92, "STAMP", s_ws)
            a(f"s_lshl_b32 s96, s2, 3\ns_add_u32 s96, s96, s{s_wave}\ns_lshl_b32 s96, s96, 8\ns_add_u32 s96, s96, {self.k << 21}")
            a(f"v_mbcnt_lo_u32_b32 v{self.t}, -1, 0\nv_mbcnt_hi_u32_b32 v{self.t}, -1, v{self.t}\nv_lshlrev_b32 v{self.t}, 2, v{self.t}")
            a(f"buffer_store_dword v{self.v}, v{self.t}, s[92:95], s96 offen")


def WST(): return OPT.get('wst', 326)
def RING(): return OPT.get('own', True)
def PAT(): return OPT.get('pat', (2, 2, 2, 1, 1, 1) if RING() else (3, 3, 2, 1))
class Repack:
    PR = 208
    def __init__(self, a): self.a = a
    def common(self):
        return (f"s_add_u32 s60, s14, {WS['WOF'][0]}\ns_addc_u32 s61, s15, 0\ns_mov_b32 s62, {WS['WF'][0] + WS['WF'][1] - WS['WOF'][0]}\ns_mov_b32 s63, 0x00020000\n"
                "v_and_b32 v6, 15, v0\nv_lshrrev_b32 v7, 4, v0\ns_mov_b32 s80, 0x05040100\ns_mov_b32 s81, 0x07060302")
    def regs(self, rnd): return 64 + 4 * rnd, 72 + 4 * rnd, 82 + 4 * rnd, 242 + rnd, 240 + rnd
    def setup_ffn(self, rnd, pw1, pw2):
        L = self.a.label("rp")
        SD, SB_, SO, vsrc, dst = self.regs(rnd)
        OWF = WS["WF"][0] - WS["WOF"][0]
        t = []; A = t.append
        A(f"s_mul_hi_u32 s46, s47, {(2**32 + 161)//162}\ns_mul_i32 s49, s46, 162\ns_sub_u32 s47, s47, s49")
        A(f"s_mul_hi_u32 s49, s47, {(2**32 + 8)//9}\ns_mul_i32 s50, s49, 9\ns_sub_u32 s50, s47, s50")
        A(f"s_mov_b32 s{SD+3}, 0x00020000\ns_lshl_b32 s54, s50, 7\nv_mov_b32 v{dst}, v3")
        A(f"s_cmp_lt_u32 s46, 2\ns_cselect_b32 s{SD+2}, {DM*F*2}, 0\ns_cselect_b32 s57, 0, 0x100000")
        A(f"s_mul_i32 s53, s45, {4*WST()}\ns_mul_i32 s55, s46, 162\ns_add_u32 s53, s53, s55\ns_add_u32 s53, s53, {OWF//1024}\ns_add_u32 s53, s53, s57")
        A(f"s_cmp_eq_u32 s46, 1\ns_cbranch_scc1 {L}_w2")
        A("s_mul_i32 s55, s49, 3\ns_add_u32 s53, s53, s55")
        for q in range(4):
            A(f"s_lshl_b32 s55, s50, 2\ns_add_u32 s55, s55, {q}\ns_mul_i32 s56, s55, 86\ns_lshr_b32 s56, s56, 8")
            A(f"s_lshr_b32 s58, s56, 2\ns_mul_i32 s58, s58, {4*WST()-54}\ns_mul_i32 s56, s56, {WST()-3}\ns_sub_u32 s56, s56, s58")
            A(f"s_add_u32 s55, s55, s56\ns_add_u32 s55, s55, s53\ns_lshl_b32 s{SO+q}, s55, 10")
        A(f"s_mov_b32 s{SD}, s{pw1}\ns_mov_b32 s{SD+1}, s{pw1+1}\ns_mul_i32 s53, s49, {32*F*2}\ns_mul_i32 s55, s45, {DM*2}\ns_add_u32 s53, s53, s55\ns_add_u32 s{SB_}, s53, s54")
        A(f"s_mov_b32 s{SB_+1}, {4*F*2}\ns_mov_b32 s{SB_+2}, {2*F*2}\ns_mov_b32 s{SB_+3}, {F*2}")
        A(f"v_mul_u32_u24 v{vsrc}, {8*F*2}, v7\nv_lshl_add_u32 v{vsrc}, v6, 3, v{vsrc}\ns_branch {L}_done")
        A(f"{L}_w2:")
        idx, siz = 0, 0
        cb = 0
        for n in PAT():
            for i in range(n):
                idx |= i << (2 * (cb + i)); siz |= n << (2 * (cb + i))
            cb += n
        if RING():
            A("s_sub_u32 s55, s50, s45\ns_sub_u32 s55, s55, 1\ns_and_b32 s55, s55, 7\ns_add_u32 s55, s55, 1\ns_cmp_eq_u32 s50, 8\ns_cselect_b32 s50, 0, s55")
        A(f"s_lshl_b32 s55, s50, 1\ns_lshr_b32 s56, {idx}, s55\ns_and_b32 s56, s56, 3\ns_lshr_b32 s58, {siz}, s55\ns_and_b32 s58, s58, 3")
        A("s_mul_i32 s58, s58, s49\ns_add_u32 s53, s53, s58\ns_mul_i32 s58, s50, 18\ns_add_u32 s53, s53, s58\ns_mul_i32 s56, s56, 17\ns_sub_u32 s53, s53, s56")
        A(f"s_lshl_b32 s{SO}, s53, 10\ns_add_u32 s{SO+1}, s{SO}, {WST()*1024}\ns_add_u32 s{SO+2}, s{SO}, {2*WST()*1024}\ns_add_u32 s{SO+3}, s{SO}, {3*WST()*1024}")
        A(f"s_mov_b32 s{SD}, s{pw2}\ns_mov_b32 s{SD+1}, s{pw2+1}\ns_lshr_b32 s53, s49, 1\ns_lshl_b32 s53, s53, 6\ns_and_b32 s55, s49, 1\ns_lshl_b32 s55, s55, 1\ns_add_u32 s53, s53, s55")
        A(f"s_mul_i32 s55, s45, {DM}\ns_add_u32 s53, s53, s55\ns_mul_i32 s53, s53, {DM*2}\ns_add_u32 s{SB_}, s53, s54")
        A(f"s_mov_b32 s{SB_+1}, {DM*2}\ns_mov_b32 s{SB_+2}, {8*DM*2}\ns_mov_b32 s{SB_+3}, {4*DM*2}")
        A(f"v_mul_u32_u24 v{vsrc}, {16*DM*2}, v7\nv_lshl_add_u32 v{vsrc}, v6, 3, v{vsrc}")
        A(f"{L}_done:")
        return "\n".join(t)
    def setup_wo(self, rnd, pwo, scr):
        L = self.a.label("rp")
        SD, SB_, SO, vsrc, dst = self.regs(rnd)
        t = []; A = t.append
        A(f"s_mul_hi_u32 s49, s47, {(2**32 + 8)//9}\ns_mul_i32 s50, s49, 9\ns_sub_u32 s50, s47, s50")
        A(f"s_mov_b32 s{SD+3}, 0x00020000\ns_lshl_b32 s54, s50, 7")
        A(f"s_mov_b32 s{SD}, s{pwo}\ns_mov_b32 s{SD+1}, s{pwo+1}\ns_cmp_lt_u32 s47, 162\ns_cselect_b32 s{SD+2}, {DM*DM*2}, 0\ns_cselect_b32 s56, 0, 0x40000000")
        for e in range(2):
            A(f"s_lshl_b32 s55, s50, 1\ns_add_u32 s55, s55, {e}\ns_mul_i32 s57, s55, 86\ns_lshr_b32 s57, s57, 8\ns_mul_i32 s58, s57, 3\ns_cmp_lt_u32 s49, s58\ns_cselect_b32 s58, 54, 0")
            A(f"s_mul_i32 s57, s57, 42\ns_add_u32 s55, s55, s57\ns_add_u32 s55, s55, s58\ns_mul_i32 s57, s49, 3\ns_add_u32 s55, s55, s57\ns_lshl_b32 s55, s55, 11\ns_add_u32 s{SO+e}, s55, s56")
        A(f"v_lshrrev_b32 v245, 3, v6\nv_lshlrev_b32 v245, 11, v245\nv_and_b32 v246, 7, v6\nv_lshl_add_u32 v245, v246, 5, v245\nv_lshl_add_u32 v245, v7, 8, v245\nv_add_u32 v{dst}, s{scr}, v245")
        A(f"s_mov_b32 s{SB_+3}, {DM*2}\ns_cmp_ge_u32 s49, 16\ns_cbranch_scc1 {L}_wo2")
        A(f"s_mul_i32 s53, s49, {36*DM*2}\ns_mov_b32 s{SB_+1}, {8*DM*2}\ns_mov_b32 s{SB_+2}, {2*DM*2}")
        A(f"v_lshrrev_b32 v246, 1, v7\nv_mul_u32_u24 v246, 18, v246\nv_and_b32 v247, 1, v7\nv_lshl_add_u32 v246, v247, 2, v246\ns_branch {L}_wo3")
        A(f"{L}_wo2:")
        A(f"s_sub_u32 s53, s49, 16\ns_mul_i32 s53, s53, {288*DM*2}\ns_add_u32 s53, s53, {16*DM*2}\ns_mov_b32 s{SB_+1}, {36*DM*2}\ns_mov_b32 s{SB_+2}, {18*DM*2}")
        A(f"v_mul_u32_u24 v246, 72, v7")
        A(f"{L}_wo3:")
        A(f"s_add_u32 s{SB_}, s53, s54\nv_mul_u32_u24 v{vsrc}, {DM*2}, v246\nv_lshl_add_u32 v{vsrc}, v6, 3, v{vsrc}")
        return "\n".join(t)
    def load(self, rnd, s_, flag=""):
        SD, SB_, SO, vsrc, dst = self.regs(rnd)
        raw = self.PR + 16 * rnd
        t = f"s_mov_b32 s55, s{SB_}\n"
        if s_ & 4: t += f"s_add_u32 s55, s55, s{SB_+1}\n"
        if s_ & 2: t += f"s_add_u32 s55, s55, s{SB_+2}\n"
        if s_ & 1: t += f"s_add_u32 s55, s55, s{SB_+3}\n"
        return t + f"buffer_load_dwordx2 v[{raw+2*s_}:{raw+2*s_+1}], v{vsrc}, s[{SD}:{SD+3}], s55 offen{flag}"
    def store(self, rnd, q_, flag=""):
        SD, SB_, SO, vsrc, dst = self.regs(rnd)
        raw = self.PR + 16 * rnd
        t = 196 + 4 * (q_ % 2)
        L = [f"v_perm_b32 v{t+j}, v{raw+2*(2*j+1)+(q_>>1)}, v{raw+2*(2*j)+(q_>>1)}, s{80+(q_&1)}" for j in range(4)]
        L.append(f"buffer_store_dwordx4 v[{t}:{t+3}], v{dst}, s[60:63], s{SO+q_} offen{flag}")
        return "\n".join(L)
    def touch(self, rnd):
        SD, SB_, SO, vsrc, dst = self.regs(rnd)
        return "s_mov_b64 exec, 0xff\nv_lshlrev_b32 v204, 7, v0\n" + "\n".join(f"buffer_load_dword v205, v204, s[60:63], s{SO+q} offen sc1" for q in range(4)) + "\ns_mov_b64 exec, -1"

def ffn_map(sj, smb):
    SL = OPT.get("k4_sl", 1); lg = SL.bit_length() - 1
    return (f"s_and_b32 s46, s2, 7\ns_lshr_b32 s47, s2, 3\ns_and_b32 s{sj}, s46, {8//SL-1}\ns_lshl_b32 s{sj}, s{sj}, {lg}\ns_and_b32 s48, s47, {SL-1}\ns_add_u32 s{sj}, s{sj}, s48\n"
            f"s_lshr_b32 s{smb}, s46, {3-lg}\ns_lshl_b32 s{smb}, s{smb}, {5-lg}\ns_lshr_b32 s48, s47, {lg}\ns_add_u32 s{smb}, s{smb}, s48\n")

def poll(a, n, voff, srd_, soff, vt, slp=2, first_loaded=False):
    L = a.label("poll")
    m = (1 << n) - 1
    a(f"s_mov_b32 s91, 0x10000\ns_mov_b32 exec_lo, {m & 0xffffffff}\ns_mov_b32 exec_hi, {m >> 32}" + (f"\ns_branch {L}_1" if first_loaded else ""))
    a(f"{L}:\nbuffer_load_dword v{vt}, v{voff}, s[{srd_}:{srd_+3}], s{soff} offen{OPT.get('pollf', ' sc1')}\ns_waitcnt vmcnt(0)\n{L}_1:\nv_cmp_eq_u32 vcc, s{SE}, v{vt}\ns_nop 1\ns_cmp_eq_u64 vcc, exec\ns_cbranch_scc1 {L}_ok\ns_sleep {slp}\ns_sub_u32 s91, s91, 1\ns_cbranch_scc0 {L}\n{L}_ok:")
    a("s_mov_b64 exec, -1")

K1_GRID = 256
K1_LDS = 159744 + 1280
def k1(a, st0):
    st = lambda i: st0({3: 30, 22: 31, 23: 30, 2: 31}[i]) if i in (2, 3, 22, 23) else None
    XLQ, XLK = 73728, 86016
    KVI = OPT.get('kvi', 21504)
    ST = OPT.get('k1_st', ' sc1')
    LATE = OPT.get('late', False)
    EPX = f's_load_dword s{SE}, s[14:15], 0'
    EP0 = '' if LATE else '\n' + EPX
    EP1 = EPX if LATE else ''
    kernel_begin(a, NAME + "_kernel")
    if OPT["codepf"]:
        a(f"s_cmp_ge_u32 s2, {OPT.get('pfn', 256)}\ns_cbranch_scc1 K1_nopf")
        a("s_getpc_b64 s[58:59]\nK1_pc:\nv_lshlrev_b32 v252, 7, v0\nv_min_u32 v252, K2_out-K1_pc, v252\nglobal_load_dword v253, v252, s[58:59]")
        a("K1_nopf:")
    a(f"s_cmp_lt_u32 s2, {K1_GRID}\ns_cbranch_scc1 K1_go\ns_endpgm\nK1_go:")
    a(f"s_load_dwordx4 s[4:7], s[0:1], {A_X}\ns_load_dwordx4 s[8:11], s[0:1], {A_WK}\ns_load_dwordx2 s[12:13], s[0:1], {A_WO}\ns_load_dwordx2 s[14:15], s[0:1], {K_WS}")
    st0.start()
    wave_lane(a)
    a(f"v_and_b32 v1, 15, v0\nv_lshrrev_b32 v2, 4, v0\ns_mov_b32 s{SW}, s3")
    a("s_bfe_u32 s44, s2, 0x20001\ns_lshl_b32 s44, s44, 3\ns_bfe_u32 s61, s2, 0x30003\ns_add_u32 s44, s44, s61\ns_and_b32 s45, s2, 1\ns_lshl_b32 s45, s45, 2\ns_lshr_b32 s62, s2, 6\ns_add_u32 s45, s45, s62")
    a("s_mul_i32 s60, s62, 9\ns_lshr_b32 s60, s60, 2\ns_add_u32 s60, s60, s61\ns_and_b32 s61, s2, 7\ns_add_u32 s60, s60, s61")
    S1 = OPT.get("seg", 5)
    if S1 < 9:
        S2 = 9 - S1
        a(f"s_mul_i32 s61, s60, {(4096 + S2 - 1)//S2}\ns_lshr_b32 s61, s61, 12\ns_mul_i32 s61, s61, {S2}\ns_sub_u32 s71, s60, s61")
        a(f"s_cmp_ge_u32 s45, 6\ns_cselect_b32 s71, 0, s71\ns_add_u32 s71, s71, {S1}")
    a(f"s_mul_i32 s61, s60, {(4096 + S1 - 1)//S1}\ns_lshr_b32 s61, s61, 12\ns_mul_i32 s61, s61, {S1}\ns_sub_u32 s60, s60, s61")
    def adv(slot, unit):
        if slot == S1 - 1 and S1 < 9: return f"s_mul_i32 s61, s71, {unit}"
        if slot < S1: return f"s_add_u32 s61, s61, {unit}\ns_cmp_eq_u32 s61, {S1*unit}\ns_cselect_b32 s61, 0, s61"
        return f"s_add_u32 s61, s61, {unit}\ns_cmp_eq_u32 s61, {9*unit}\ns_cselect_b32 s61, {S1*unit}, s61"
    a(f"s_cmp_ge_u32 s45, 6\ns_cselect_b32 s60, 0, s60\ns_mov_b32 s63, {XLQ}\ns_cselect_b32 s63, {XLK}, s63")
    a("v_lshrrev_b32 v4, 3, v0\nv_and_b32 v5, 7, v0\ns_lshl_b32 s90, s45, 5\ns_add_u32 s90, s90, s44")
    EX = 159744
    X0 = 16
    AR = 172
    ACC, CS, RS, GR, WF, ON = 88, 192, 112, 116, 120, 168
    ONr = f"v[{ON}:{ON+3}]"
    def V4(b): return f"v[{b}:{b+3}]"
    def lane_rc():
        a("v_lshrrev_b32 v10, 2, v1\nv_and_b32 v11, 3, v1\nv_lshl_add_u32 v12, v2, 3, v10")
    def xaddr(sbase):
        a(f"v_and_b32 v7, 7, v1\nv_xor_b32 v8, v2, v7\nv_lshlrev_b32 v8, 4, v8\nv_lshl_add_u32 v8, v1, 7, v8\nv_add_u32 v8, s{sbase}, v8\nv_xor_b32 v9, 64, v8")
        a("v_add_u32 v190, 0x8000, v8\nv_add_u32 v191, 0x8000, v9")
    def xrd(reg, ks, extra=0):
        p, e = divmod(ks, 2)
        b, o = (8 + e, 8192 * p) if p < 4 else (190 + e, 8192 * (p - 4))
        return f"ds_read_b128 {V4(reg)}, v{b} offset:{o + extra}"
    def waddr(shalf):
        a("v_lshrrev_b32 v13, 1, v10\nv_and_b32 v14, 1, v2\nv_lshl_add_u32 v13, v14, 1, v13")
        a("v_lshlrev_b32 v15, 7, v12\nv_lshl_add_u32 v15, v11, 3, v15\nv_lshlrev_b32 v7, 6, v12\nv_lshl_add_u32 v7, v11, 3, v7\nv_add_u32 v7, 4096, v7")
        a(f"s_cmp_eq_u32 s{shalf}, 1\ns_cselect_b64 vcc, -1, 0\ns_mul_i32 s55, s{shalf}, 3")
        a(f"v_xor_b32 v184, s55, v13\nv_lshl_add_u32 v{AR}, v184, 5, v15\nv_add_u32 v{AR+3}, 512, v{AR}")
        for t in (1, 2):
            a(f"v_xor_b32 v184, {t}, v13\nv_lshl_add_u32 v184, v184, 5, v15\nv_xor_b32 v185, {t-1}, v14\nv_lshl_add_u32 v185, v185, 5, v7")
            a(f"v_cndmask_b32 v{AR+t}, v184, v185, vcc\nv_add_u32 v184, 512, v184\nv_add_u32 v185, 256, v185\nv_cndmask_b32 v{AR+3+t}, v184, v185, vcc")
        for i in range(6): a(f"v_add_u32 v{AR+6+i}, {9*6144}, v{AR+i}")
    def wrd(reg, ks, t):
        hi = ks >= 9
        off = (ks - 9 * hi) * 6144
        return [f"ds_read_b64_tr_b16 v[{reg}:{reg+1}], v{AR+6*hi+t} offset:{off}", f"ds_read_b64_tr_b16 v[{reg+2}:{reg+3}], v{AR+6*hi+3+t} offset:{off}"]
    def stat_mfma(x, first):
        return [f"v_mfma_f32_16x16x32_bf16 {V4(RS)}, {ONr}, {V4(x)}, {'0' if first else V4(RS)}",
                f"v_mfma_f32_16x16x32_bf16 {V4(GR)}, {V4(x)}, {V4(x)}, {'0' if first else V4(GR)}"]
    def stats_out():
        a("v_cmp_eq_u32 vcc, 1, v11\nv_cmp_eq_u32 s[54:55], 2, v11\nv_cmp_eq_u32 s[56:57], 3, v11\nv_cmp_eq_u32 s[58:59], v10, v2\ns_nop 3")
        a(f"v_mul_f32 v4, {f32bits(-1.0/DM)}, v{RS}")
        a(f"v_cndmask_b32 v5, v{GR}, v{GR+1}, vcc\nv_cndmask_b32 v5, v5, v{GR+2}, s[54:55]\nv_cndmask_b32 v5, v5, v{GR+3}, s[56:57]\nv_cndmask_b32 v5, 0, v5, s[58:59]")
        sum_g(a, 5, 7)
        a(f"v_mul_f32 v5, {f32bits(1.0/DM)}, v5\nv_fma_f32 v5, -v4, v4, v5\nv_max_f32 v5, 0, v5\nv_add_f32 v5, {f32bits(1e-5)}, v5\nv_rsq_f32 v5, v5")
        a(f"s_lshl_b32 s54, s3, 7\ns_add_u32 s54, s54, {EX + 768}\nv_lshlrev_b32 v7, 3, v1\nv_add_u32 v7, s54, v7\nds_write_b64 v7, v[4:5]")
    if OPT.get("wtlb", False):
        a(f"s_cmp_lg_u32 s3, 7\ns_cbranch_scc1 K1_ntl\ns_load_dwordx4 s[24:27], s[0:1], {B_W1}\nv_lshlrev_b32 v250, 20, v0\ns_waitcnt lgkmcnt(0)")
        for b in (24, 26):
            a(f"s_mov_b32 s28, s{b}\ns_mov_b32 s29, s{b+1}\ns_mov_b32 s30, {DM*F*2}\ns_mov_b32 s31, 0x00020000\nbuffer_load_dword v251, v250, s[28:31], 0 offen nt")
        a("K1_ntl:")
    a("s_cmp_ge_u32 s3, 4\ns_cbranch_scc1 K1_ld")
    a("s_lshl_b32 s46, s44, 6\ns_lshl_b32 s47, s3, 4\ns_add_u32 s46, s46, s47")
    a(f"s_mul_i32 s47, s46, {DM*2}")
    a(f"v_xor_b32 v6, v4, v5\nv_mul_u32_u24 v3, {DM*2}, v4\nv_lshl_add_u32 v3, v6, 4, v3\nv_add_u32 v6, {8*DM*2 - 1024}, v3")
    a(f"s_lshl_b32 s61, s60, 7\ns_lshl_b32 s64, s3, 11\ns_add_u32 s64, s63, s64\ns_mov_b32 s66, s64")
    a(f"s_waitcnt lgkmcnt(0){EP0}")
    srd(a, 16, 4, 0, T*DM*2)
    def xdma(slot):
        return ("s_mov_b32 m0, s64\ns_add_u32 s62, s47, s61\ns_add_u32 s64, s64, 8192\n"
                "buffer_load_dwordx4 v3, s[16:19], s62 offen lds\nbuffer_load_dwordx4 v6, s[16:19], s62 offen offset:1024 lds\n"
                + adv(slot, 128))
    XA = OPT.get("k1_xa", 3)
    a(f"s_mov_b32 s70, {XA}\nK1_xl:"); assert XA < S1; a(xdma(0)); a("s_sub_u32 s70, s70, 1\ns_cmp_lg_u32 s70, 0\ns_cbranch_scc1 K1_xl\ns_branch K1_comp")
    a("K1_ld:")
    if OPT.get("lprio", 3): a(f"s_setprio {OPT.get('lprio', 3)}")
    a("s_cmp_eq_u32 s45, 7\ns_cbranch_scc1 K1_worp")
    a("s_sub_u32 s3, s3, 4")
    a("s_cmp_lg_u32 s45, 6\ns_cbranch_scc1 K1_qld")
    a(f"v_lshlrev_b32 v3, 4, v0\ns_and_b32 s48, s3, 1\ns_lshl_b32 s48, s48, 2\ns_mul_i32 s49, s3, {KVI}")
    a(f"s_waitcnt lgkmcnt(0){EP0}")
    a(f"s_cmp_lt_u32 s3, 2\ns_cselect_b32 s24, s8, s10\ns_cselect_b32 s25, s9, s11\ns_mov_b32 s26, {DM*DH*2}\ns_mov_b32 s27, 0x00020000")
    a(f"s_add_u32 s70, s49, {21*1024}\nK1_kl:\ns_mov_b32 m0, s49\ns_add_u32 s49, s49, 1024\nbuffer_load_dwordx4 v3, s[24:27], s48 offen lds\ns_add_u32 s48, s48, 1024\ns_cmp_lg_u32 s49, s70\ns_cbranch_scc1 K1_kl\ns_branch K1_kvload")
    a("K1_qld:")
    a("v_and_b32 v6, 1, v2\ns_and_b32 s48, s3, 1\ns_lshl_b32 s48, s48, 2\nv_lshlrev_b32 v6, 1, v6\nv_or_b32 v6, s48, v6\nv_xor_b32 v6, v6, v5")
    a(f"v_mul_u32_u24 v3, {DM*2}, v4\nv_lshl_add_u32 v3, v6, 4, v3")
    a("v_lshrrev_b32 v7, 5, v0\nv_lshlrev_b32 v7, 1, v7\nv_and_b32 v6, 3, v0\nv_xor_b32 v7, v7, v6\nv_lshrrev_b32 v6, 2, v0")
    a(f"v_mul_u32_u24 v6, {DM*2}, v6\nv_lshl_add_u32 v6, v7, 4, v6")
    a("s_mul_i32 s48, s45, 192\ns_and_b32 s53, s45, 1\ns_lshl_b32 s54, s53, 6\ns_add_u32 s49, s48, s54\ns_xor_b32 s53, s53, 1\ns_lshl_b32 s53, s53, 7\ns_add_u32 s50, s48, s53")
    a(f"s_mul_i32 s53, s3, {8*DM*2}\ns_add_u32 s49, s49, s53\ns_mul_i32 s53, s3, {16*DM*2}\ns_add_u32 s50, s50, s53")
    a("s_lshl_b32 s51, s3, 10")
    a("s_lshr_b32 s52, s3, 1\ns_mul_i32 s52, s52, 6144\ns_and_b32 s53, s3, 1\ns_lshl_b32 s53, s53, 10\ns_add_u32 s52, s52, s53\ns_add_u32 s52, s52, 4096")
    a(f"s_mul_i32 s61, s60, {64*DM*2}")
    a(f"s_waitcnt lgkmcnt(0){EP0}")
    srd(a, 20, 6, 0, DM*DM*2)
    def wdma(slot):
        a(f"s_add_u32 s62, s49, s61\ns_add_u32 s65, s50, s61\ns_add_u32 s64, s62, {32*DM*2}")
        a(f"s_mov_b32 m0, s51\ns_add_u32 s51, s51, 6144\nbuffer_load_dwordx4 v3, s[20:23], s62 offen lds")
        a(f"s_mov_b32 m0, s52\ns_add_u32 s52, s52, 12288\nbuffer_load_dwordx4 v6, s[20:23], s65 offen lds")
        a(f"s_mov_b32 m0, s51\ns_add_u32 s51, s51, 6144\nbuffer_load_dwordx4 v3, s[20:23], s64 offen lds")
        a(adv(slot, 64*DM*2))
    LA = OPT.get('k1_la', 2)
    a(f"s_mov_b32 s70, {LA}\nK1_wl:"); assert LA < S1; wdma(0); a("s_sub_u32 s70, s70, 1\ns_cmp_lg_u32 s70, 0\ns_cbranch_scc1 K1_wl")
    lane_rc()
    a("s_lshl_b32 s66, s3, 11\ns_add_u32 s66, s66, s63\ns_lshr_b32 s67, s3, 1")
    xaddr(66); waddr(67)
    a("s_and_b32 s55, s3, 1\ns_mul_i32 s55, s55, 6144")
    for i in range(12): a(f"v_add_u32 v{AR+i}, s55, v{AR+i}")
    for r in range(4): a(f"v_mov_b32 v{ON+r}, {ONES}")
    XE = 56
    for p in range(10):
        if p < 9:
            a(f"s_waitcnt vmcnt({3*(min(p + LA, 9) - p - 1)}) lgkmcnt(0)\ns_barrier")
            b = (p % 2) * 20
            if p == 0: a(EP1)
            if p < 8:
                a(xrd(X0 + b, 2*p)); a(xrd(X0 + b + 4, 2*p + 1))
            if p == 7:
                a(xrd(XE, 16)); a(xrd(XE + 4, 17))
            for t in range(3):
                for x in wrd(X0 + b + 8 + 4*t, 2*p if p != 4 else 8, t): a(x)
        else:
            a("s_waitcnt lgkmcnt(0)")
        if p > 0:
            b = ((p - 1) % 2) * 20
            if p < 9:
                for x in stat_mfma(X0 + b, p == 1) + stat_mfma(X0 + b + 4, False): a(x)
            if p == 8:
                for x in stat_mfma(XE, False) + stat_mfma(XE + 4, False): a(x)
            for t in range(3):
                a(f"v_mfma_f32_16x16x32_bf16 {V4(CS+4*t)}, {V4(X0+b+8+4*t)}, {ONr}, {'0' if p == 1 else V4(CS+4*t)}")
            if p == 8: stats_out()
        if p + LA < 9: wdma(p + LA)
    a(f"s_mul_i32 s54, s3, 192\ns_add_u32 s54, s54, {EX}\nv_lshlrev_b32 v7, 4, v2\nv_add_u32 v7, s54, v7\ns_nop 3")
    for t in range(3): a(f"ds_write_b128 v7, {V4(CS+4*t)} offset:{64*t}")
    a("s_waitcnt lgkmcnt(0)\ns_barrier\ns_branch K1_fin")
    a("K1_comp:")
    st(0)
    lane_rc()
    a("s_cmp_ge_u32 s45, 6\ns_cbranch_scc1 K1_kvgemm")
    a("s_and_b32 s68, s3, 1\ns_lshl_b32 s66, s68, 12\ns_add_u32 s66, s66, s63\ns_lshr_b32 s67, s3, 1")
    xaddr(66); waddr(67)
    ws_srd(a, 32, "Q", 14)
    def frags(ks):
        b = X0 + (ks % 2) * 20
        L = [xrd(b, ks), xrd(b + 4, ks, 2048)]
        for t in range(3): L += wrd(b + 8 + 4*t, ks, t)
        return L
    nx = XA
    a(f"s_waitcnt vmcnt({2*XA-2})\ns_barrier")
    st(2)
    a(EP1)
    for x in frags(0): a(x)
    for ks in range(18):
        p = ks // 2
        if ks % 2 == 1 and ks < 17:
            a(f"s_waitcnt vmcnt({2*(nx - p - 2) if ks < 13 else 0})" + (" lgkmcnt(6)" if ks == 9 else "") + "\ns_barrier")
        b = X0 + (ks % 2) * 20
        nf = frags(ks + 1) if ks < 17 else []
        issued = 0
        for t in range(3):
            a(f"s_waitcnt lgkmcnt({4 - 2*t + issued})")
            for m in range(2):
                d = ACC + (t*2 + m) * 4
                a(f"v_mfma_f32_16x16x32_bf16 {V4(d)}, {V4(b+8+4*t)}, {V4(b+4*m)}, {'0' if ks == 0 else V4(d)}")
                for x in nf[:2]: a(x); issued += 1
                nf = nf[2:]
        if ks % 2 == 0 and nx < 9:
            a(xdma(nx)); nx += 1
    st(3)
    a("v_lshlrev_b32 v3, 3, v0")
    a(f"s_lshl_b32 s48, s44, 1\ns_add_u32 s48, s48, s68\ns_mul_i32 s48, s48, {4*9216}")
    a("s_mul_i32 s49, s45, 6\ns_and_b32 s50, s45, 1\ns_lshl_b32 s51, s50, 1\ns_add_u32 s51, s51, s49\ns_lshl_b32 s50, s50, 2\ns_sub_u32 s52, s49, s50\ns_mul_i32 s69, s67, 3")
    a(f"s_mul_i32 s54, s67, 384\ns_add_u32 s54, s54, {EX}\nv_lshlrev_b32 v7, 4, v2\nv_add_u32 v7, s54, v7")
    a(f"s_lshl_b32 s54, s68, 8\ns_add_u32 s54, s54, {EX + 768}\nv_lshlrev_b32 v8, 3, v1\nv_add_u32 v8, s54, v8")
    a("s_barrier")
    a("ds_read_b64 v[12:13], v8\nds_read_b64 v[14:15], v8 offset:128")
    for i in range(6): a(f"ds_read_b128 {V4(CS+4*i)}, v7 offset:{64*i}")
    a(f"s_waitcnt lgkmcnt(0)\nv_mul_f32 v13, {f32bits(QSCALE)}, v13\nv_mul_f32 v15, {f32bits(QSCALE)}, v15")
    for t in range(3):
        a(f"s_add_u32 s53, s69, {t}\ns_cmp_lt_u32 s53, 4\ns_cselect_b32 s54, s51, s52\ns_add_u32 s53, s53, s54")
        a("s_mul_i32 s54, s53, 57\ns_lshr_b32 s54, s54, 9\ns_mul_i32 s54, s54, 4608\ns_lshl_b32 s53, s53, 9\ns_add_u32 s53, s53, s54\ns_add_u32 s53, s53, s48\ns_add_u32 s55, s53, 4608")
        for r in range(4): a(f"v_add_f32 v{CS+4*t+r}, v{CS+4*t+r}, v{CS+12+4*t+r}")
        for m in range(2):
            b = ACC + (t*2 + m) * 4
            for r in range(4): a(f"v_fmac_f32 v{b+r}, v{CS+4*t+r}, v{12+2*m}\nv_mul_f32 v{b+r}, v{b+r}, v{13+2*m}")
            a(f"v_cvt_pk_bf16_f32 v{b}, v{b}, v{b+1}\nv_cvt_pk_bf16_f32 v{b+1}, v{b+2}, v{b+3}")
            a(f"buffer_store_dwordx2 v[{b}:{b+1}], v3, s[32:35], s{53+2*m} offen{ST}")
    a("s_branch K1_fin")
    def kaddr():
        a(f"v_mul_u32_u24 v13, 36, v12\nv_lshl_add_u32 v13, v11, 3, v13\nv_and_b32 v14, 1, v10\nv_mul_u32_u24 v14, {KVI - 4}, v14\nv_add_u32 v{AR}, v13, v14")
        a(f"v_mul_u32_u24 v13, 36, v12\nv_add_u32 v{AR+1}, v13, v14")
    a("K1_kvload:")
    lane_rc()
    a("s_lshl_b32 s66, s3, 11\ns_add_u32 s66, s66, s63")
    xaddr(66)
    for r in range(4): a(f"v_mov_b32 v{ON+r}, {ONES}")
    ws_srd(a, 40, "MEAN1", 14)
    a(f"s_lshl_b32 s46, s44, 2\ns_add_u32 s46, s46, s3")
    a("s_waitcnt vmcnt(0)\ns_barrier")
    for ks in range(8): a(xrd(X0 + 4*ks, ks))
    for ks in range(18):
        a(f"s_waitcnt lgkmcnt({min(7, 17 - ks)})")
        for x in stat_mfma(X0 + 4*ks, ks == 0): a(x)
        if ks + 8 < 18: a(xrd(X0 + 4*(ks + 8), ks + 8))
    a("s_nop 3")
    stats_out()
    a("s_waitcnt lgkmcnt(0)\ns_barrier")
    a("v_sub_f32 v9, 0, v4\nv_lshlrev_b32 v7, 2, v0\ns_lshl_b32 s49, s46, 7\ns_mov_b32 exec_lo, -1\ns_mov_b32 exec_hi, 0\nbuffer_store_dword v9, v7, s[40:43], s49 offen sc1\ns_mov_b64 exec, -1")
    a("s_barrier\ns_branch K1_fin")
    a(f"K1_worp:\ns_waitcnt lgkmcnt(0){EP0}\nv_lshlrev_b32 v3, 4, v0")
    rp = Repack(a)
    a(rp.common())
    if OPT.get("wolate", True): a("s_barrier")
    for rnd in range(2):
        a(f"s_lshl_b32 s47, s44, 2\ns_add_u32 s47, s47, s3\ns_add_u32 s47, s47, {128*rnd - 4 & 0xffffffff}")
        a(f"s_lshl_b32 s59, s3, 13\ns_sub_u32 s59, s59, {32768 - 4096 - 4096*rnd}\nv_add_u32 v{16+rnd}, s59, v3")
        a(rp.setup_wo(rnd, 12, 59))
        for n in range(8): a(rp.load(rnd, n))
    for rnd in range(2):
        a(f"s_waitcnt vmcnt({8 if rnd == 0 else 4})")
        for n in range(4):
            t = rp.store(rnd, n).split("\n")[:4]
            a("\n".join(t) + f"\nds_write_b128 v{240+rnd}, v[{196+4*(n%2)}:{199+4*(n%2)}] offset:{(n&1)*1024 + (n>>1)*16}")
        for n in range(4): a(f"ds_read_b128 v[{32+16*rnd+4*n}:{35+16*rnd+4*n}], v{16+rnd} offset:{1024*n}")
        for n in range(4): a(f"s_waitcnt lgkmcnt({3-n})\nbuffer_store_dwordx4 v[{32+16*rnd+4*n}:{35+16*rnd+4*n}], v3, s[60:63], s{82+4*rnd+(n>>1)} offen offset:{1024*(n&1)} sc1")
    a("s_branch K1_fin")
    a("K1_kvgemm:")
    a("s_cmp_eq_u32 s45, 7\ns_cbranch_scc1 K1_wbar")
    for p in range(XA, 9): a(xdma(p))
    xaddr(63); kaddr()
    a(f"s_cmp_ge_u32 s3, 2\ns_cselect_b64 vcc, -1, 0\ns_and_b32 s55, s3, 1\ns_mul_i32 s55, s55, {2*KVI}\ns_lshr_b32 s56, s3, 1\ns_lshl_b32 s56, s56, 5\ns_add_u32 s55, s55, s56")
    a(f"v_cndmask_b32 v{AR}, v{AR}, v{AR+1}, vcc\nv_add_u32 v{AR}, s55, v{AR}")
    for r in range(4): a(f"v_mov_b32 v{ON+r}, {ONES}")
    ws_srd(a, 36, "KV", 14)
    a(f"s_mul_i32 s48, s44, {PAIR}")
    def kread(ks):
        b = X0 + (ks % 3) * 20
        return [f"ds_read_b64_tr_b16 v[{b}:{b+1}], v{AR} offset:{ks*1152}", f"ds_read_b64_tr_b16 v[{b+2}:{b+3}], v{AR} offset:{ks*1152 + 144}"] + \
               [xrd(b + 4 + 4*m, ks, 2048*m) for m in range(4)]
    a("s_waitcnt vmcnt(0)\ns_barrier")
    st(22)
    for x in kread(0) + kread(1): a(x)
    a("s_bitcmp1_b32 s3, 0\ns_cbranch_scc1 K1_vform")
    for form in range(2):
        if form: a("K1_vform:")
        for ks in range(18):
            b = X0 + (ks % 3) * 20
            fill = kread(ks + 2) if ks < 16 else []
            a(f"s_waitcnt lgkmcnt({6 if ks < 17 else 0})")
            for m in range(5):
                d, o = (ACC + 4*m, V4(b + 4 + 4*m)) if m < 4 else (CS, ONr)
                A_, B_ = (V4(b), o) if form == 0 else (o, V4(b))
                a(f"v_mfma_f32_16x16x32_bf16 {V4(d)}, {A_}, {B_}, {'0' if ks == 0 else V4(d)}")
                n = 2 if m == 0 else 1
                for y in fill[:n]: a(y)
                fill = fill[n:]
        st(23)
        if form == 0:
            a(f"v_lshlrev_b32 v7, 3, v1\nv_add_u32 v7, {EX + 768}, v7")
            a("v_lshrrev_b32 v8, 1, v2\nv_lshlrev_b32 v8, 9, v8\nv_lshl_add_u32 v8, v1, 4, v8\nv_and_b32 v9, 1, v2\nv_lshl_add_u32 v8, v9, 3, v8\nv_lshlrev_b32 v9, 2, v1")
            a("s_barrier")
            for m in range(4): a(f"ds_read_b64 v[{216+2*m}:{217+2*m}], v7 offset:{128*m}")
            a("s_waitcnt lgkmcnt(0)")
            for m in range(4):
                b = ACC + 4*m
                for r in range(4): a(f"v_fmac_f32 v{b+r}, v{CS+r}, v{216+2*m}\nv_mul_f32 v{b+r}, v{b+r}, v{217+2*m}")
                a(f"v_cvt_pk_bf16_f32 v{b}, v{b}, v{b+1}\nv_cvt_pk_bf16_f32 v{b+1}, v{b+2}, v{b+3}")
            a("s_cmp_lg_u32 s3, 0\ns_cbranch_scc1 K1_k2p")
            for m in range(4): a(f"ds_write_b64 v8, v[{ACC+4*m}:{ACC+4*m+1}] offset:{(m>>1)*1024 + (m&1)*256}")
            a("s_branch K1_kvst\nK1_k2p:\ns_mov_b64 exec, 0xffff")
            for m in range(4): a(f"ds_write_b32 v9, v{ACC+4*m} offset:{2048 + 64*m}")
            a("s_mov_b64 exec, -1\ns_branch K1_kvst")
        else:
            a(f"v_lshlrev_b32 v7, 5, v2\nv_add_u32 v7, {EX + 768}, v7")
            a("v_and_b32 v8, 1, v2\nv_mul_u32_u24 v8, 19, v8\nv_add_u32 v8, v8, v1\nv_lshlrev_b32 v8, 4, v8\nv_lshrrev_b32 v10, 1, v2\nv_lshl_add_u32 v8, v10, 3, v8")
            a("s_lshr_b32 s56, s3, 1\ns_lshl_b32 s56, s56, 8\nv_add_u32 v8, s56, v8\nv_cmp_eq_u32 s[54:55], 2, v1\nv_cmp_gt_u32 s[58:59], 3, v1\ns_nop 1")
            a("s_cmp_eq_u32 s3, 3\ns_cselect_b64 s[54:55], s[54:55], 0\ns_cselect_b64 s[58:59], s[58:59], -1")
            a("s_barrier")
            for m in range(4): a(f"ds_read_b128 v[{216+8*m}:{219+8*m}], v7 offset:{128*m}\nds_read_b128 v[{220+8*m}:{223+8*m}], v7 offset:{128*m+16}")
            a("s_waitcnt lgkmcnt(0)")
            for m in range(4):
                b = ACC + 4*m
                for r in range(4): a(f"v_fmac_f32 v{b+r}, v{CS}, v{216+8*m+2*r}\nv_mul_f32 v{b+r}, v{b+r}, v{217+8*m+2*r}")
                a(f"v_cvt_pk_bf16_f32 v{b}, v{b}, v{b+1}\nv_cvt_pk_bf16_f32 v{b+1}, v{b+2}, v{b+3}")
                a(f"v_cndmask_b32 v{b}, v{b}, v{ON}, s[54:55]\nv_cndmask_b32 v{b+1}, v{b+1}, v{ON}, s[54:55]")
            a("s_mov_b64 exec, s[58:59]")
            for m in range(4): a(f"ds_write_b64 v8, v[{ACC+4*m}:{ACC+4*m+1}] offset:{2304 + 608*m}")
            a("s_mov_b64 exec, -1")
    a("K1_kvst:")
    a("s_lshl_b32 s49, s3, 10\nv_lshlrev_b32 v3, 4, v0\nv_add_u32 v3, s49, v3\ns_waitcnt lgkmcnt(0)\ns_barrier")
    a("ds_read_b128 v[16:19], v3\nds_read_b128 v[20:23], v3 offset:1024\ns_waitcnt lgkmcnt(1)\nbuffer_store_dwordx4 v[16:19], v3, s[36:39], s48 offen sc1")
    a("s_waitcnt lgkmcnt(0)\ns_cmp_lg_u32 s3, 3\ns_cbranch_scc1 K1_fin\ns_mov_b32 exec_hi, 0xff\nbuffer_store_dwordx4 v[20:23], v3, s[36:39], s48 offen offset:1024 sc1\ns_mov_b64 exec, -1")
    a("s_branch K1_fin")
    a("K1_wbar:")
    for p in range(XA, 9): a(xdma(p))
    if OPT.get("wolate", True): a("s_waitcnt vmcnt(12)\ns_barrier")
    srd(a, 24, 12, 0, DM*DM*2)
    a("s_cmp_lt_u32 s44, 18\ns_cselect_b32 s26, s26, 0")
    a("s_cmp_ge_u32 s44, 16\ns_cbranch_scc1 K1_wb_hi")
    a("s_mul_i32 s50, s44, 36\ns_lshr_b32 s51, s3, 1\ns_mul_i32 s51, s51, 18\ns_add_u32 s50, s50, s51\ns_and_b32 s51, s3, 1\ns_lshl_b32 s51, s51, 2\ns_add_u32 s50, s50, s51")
    a("v_lshrrev_b32 v13, 2, v4\nv_lshlrev_b32 v13, 3, v13\nv_and_b32 v14, 3, v4\nv_add_u32 v13, v13, v14")
    a("s_branch K1_wb_go")
    a("K1_wb_hi:")
    a("s_sub_u32 s50, s44, 16\ns_mul_i32 s50, s50, 288\ns_mul_i32 s51, s3, 72\ns_add_u32 s50, s50, s51\ns_add_u32 s50, s50, 16")
    a("v_lshrrev_b32 v13, 1, v4\nv_mul_u32_u24 v13, 18, v13\nv_and_b32 v14, 1, v4\nv_add_u32 v13, v13, v14")
    a("K1_wb_go:")
    a(f"s_mul_i32 s50, s50, {DM*2}\nv_mul_u32_u24 v13, {DM*2}, v13\nv_lshl_add_u32 v13, v5, 4, v13")
    for i in range(9):
        a(f"buffer_load_dwordx4 v[{100+4*i}:{103+4*i}], v13, s[24:27], s50 offen offset:{128*i}")
    xaddr(66)
    ws_srd(a, 68, "XC", 14)
    ws_srd(a, 20, "WBAR", 14)
    a(f"v_lshlrev_b32 v3, 4, v0\ns_lshr_b32 s48, s46, 4\ns_mul_i32 s48, s48, 18432\ns_waitcnt vmcnt(9)")
    for ks in range(18): a(xrd(X0 + 4*ks, ks))
    a("s_waitcnt vmcnt(0)\ns_cmp_ge_u32 s44, 18\ns_cbranch_scc1 K1_xc")
    a(f"s_mov_b32 s56, {ONES}\nv_mov_b32 v6, 0\nv_mov_b32 v7, 0")
    for i in range(36):
        a(f"v_dot2_f32_bf16 v{6+i%2}, v{100+i}, s56, v{6+i%2}")
    a("s_nop 2\nv_add_f32 v6, v6, v7\ns_nop 1")
    for x in (1, 2, 4):
        a(f"ds_swizzle_b32 v7, v6 offset:{(x << 10) | 0x1f}\ns_waitcnt lgkmcnt(0)\nv_add_f32 v6, v6, v7")
    a(f"v_mul_f32 v6, {f32bits(1.0/DM)}, v6")
    a("v_cvt_pk_bf16_f32 v7, v6, v6\nv_lshlrev_b32 v8, 16, v7\nv_sub_f32 v8, v6, v8\nv_cvt_pk_bf16_f32 v8, v8, v8")
    a(f"s_lshl_b32 s47, s3, 8\nv_lshlrev_b32 v9, 5, v5\nv_lshl_add_u32 v9, v4, 1, v9\nv_add_u32 v9, s47, v9\nds_write_b16 v9, v7\nds_write_b16 v9, v8 offset:16")
    a("v_lshlrev_b32 v9, 2, v0\nv_add_u32 v10, s47, v9\nds_read_b32 v7, v10\ns_lshl_b32 s50, s44, 10\ns_add_u32 s50, s50, s47\ns_add_u32 s51, s50, 18432\ns_waitcnt lgkmcnt(0)")
    a("buffer_store_dword v7, v9, s[20:23], s50 offen sc1\nbuffer_store_dword v7, v9, s[20:23], s51 offen sc1")
    a("K1_xc:\ns_waitcnt lgkmcnt(0)")
    for ks in range(18):
        if ks and ks % 4 == 0: a("s_add_u32 s48, s48, 4096")
        a(f"buffer_store_dwordx4 {V4(X0+4*ks)}, v3, s[68:71], s48 offen offset:{(ks%4)*1024}{ST}")
    a("K1_fin:")

K2_GRID = 256
K2_LDS = 32 * PAIR + 9216
def k2(a, st, force_fallback=False):
    FB = WS["FLAG"][0]
    a(f"s_mov_b32 s3, s{SW}\ns_waitcnt lgkmcnt(0)")
    ws_srd(a, 36, "FLAG", 14)
    a(f"s_mul_i32 s{SE}, s{SE}, 0x9e3779b1\ns_add_u32 s{SE}, s{SE}, 0x7f4a7c15\nv_mov_b32 v4, s{SE}\nv_lshlrev_b32 v5, 2, v0\ns_lshl_b32 s45, s90, 7\ns_add_u32 s45, s45, {FL_AF}")
    st(19)
    a("s_waitcnt vmcnt(0)\ns_barrier")
    a("s_cmp_lg_u32 s3, 0\ns_cbranch_scc1 K2_naf\ns_mov_b32 exec_lo, -1\ns_mov_b32 exec_hi, 0\nbuffer_store_dword v4, v5, s[36:39], s45 offen sc1\ns_mov_b64 exec, -1\nK2_naf:")
    a(f"s_setprio 0\ns_load_dwordx2 s[4:5], s[0:1], {K_OUT}\ns_load_dwordx4 s[8:11], s[0:1], {B_W1}")
    a("v_and_b32 v1, 31, v0\nv_lshrrev_b32 v2, 5, v0\nv_lshlrev_b32 v3, 4, v0")
    st(17)
    a("s_lshr_b32 s40, s2, 2\ns_and_b32 s41, s2, 3\ns_lshl_b32 s41, s41, 3\ns_add_u32 s41, s41, s3")
    a(f"s_mul_i32 s42, s2, 9216\ns_lshl_b32 s43, s3, 10\ns_add_u32 s42, s42, s43\ns_add_u32 s43, s43, {32*PAIR}")
    a("s_lshl_b32 s44, s3, 10")
    ws_srd(a, 16, "KV", 14)
    ws_srd(a, 20, "Q", 14)
    Q1, Q2 = 8, 12
    def dma(r):
        txt = f"s_mov_b32 m0, s44\ns_nop 0\nbuffer_load_dwordx4 v3, s[16:19], s44 offen sc1 lds\ns_add_u32 s44, s44, 8192"
        if r == 18:
            L = a.label("dm")
            txt = f"s_cmp_ge_u32 s3, 4\ns_cbranch_scc1 {L}\n{txt}\n{L}:"
        return txt
    rp = Repack(a)
    nt_ = " nt" if OPT["k2_nt"] else ""
    def uidx(rnd):
        t = ("" if rnd else ffn_map(34, 35)) + f"s_mov_b32 s45, s34\ns_mul_i32 s47, s35, 11\ns_add_u32 s47, s47, s3\n"
        if rnd: t += "s_add_u32 s47, s47, 3\ns_cmp_lt_u32 s3, 5\ns_cselect_b32 s47, 400, s47\n"
        return t
    def RPS(): return [rp.common() + "\n" + uidx(0) + rp.setup_ffn(0, 8, 10), uidx(1) + rp.setup_ffn(1, 8, 10)]
    for d in (60, 64, 68):
        a(f"s_mov_b32 s{d}, s14\ns_mov_b32 s{d+1}, s15\ns_mov_b32 s{d+2}, 0\ns_mov_b32 s{d+3}, 0x00020000")
    a("v_mov_b32 v240, 0\nv_mov_b32 v241, 0\nv_mov_b32 v242, 0\nv_mov_b32 v243, 0")
    a("s_and_b32 s45, s2, 3\ns_mul_i32 s45, s45, 3\ns_lshr_b32 s45, s45, 1\ns_lshl_b32 s45, s45, 5\ns_lshr_b32 s46, s2, 3\ns_add_u32 s45, s45, s46")
    a("v_add_u32 v30, 192, v0\nv_lshlrev_b32 v31, 5, v1\nv_add_u32 v31, s45, v31\nv_cmp_gt_u32 vcc, 32, v0\ns_nop 1\nv_cndmask_b32 v30, v31, v30, vcc\nv_lshlrev_b32 v30, 7, v30")
    a(f"s_mov_b32 s45, {FL_AF}")
    if OPT.get("a_one", True):
        a("s_cmp_lg_u32 s3, 1\ns_cbranch_scc1 K2_np")
        poll(a, 34, 30, 36, 45, 31, OPT.get("a_slp", 2))
        if OPT.get("rps", 2) == 2:
            r_ = RPS()
            a("s_branch K2_nb\nK2_np:\ns_waitcnt lgkmcnt(0)"); a(r_[0]); a("s_cmp_lt_u32 s3, 5\ns_cbranch_scc1 K2_nb"); a(r_[1]); a("K2_nb:\ns_barrier")
        else:
            a("K2_np:\ns_barrier")
    else:
        poll(a, 34, 30, 36, 45, 31, OPT.get("a_slp", 2))
    st(18)
    a("s_cmp_lg_u32 s3, 0\ns_cbranch_scc1 K2_q1")
    a(f"s_mov_b32 m0, {32*PAIR + 8192}\ns_add_u32 s45, s42, 8192\nbuffer_load_dwordx4 v3, s[20:23], s45 offen sc1 lds")
    a("K2_q1:")
    a("s_mov_b32 m0, s43\ns_nop 0\nbuffer_load_dwordx4 v3, s[20:23], s42 offen sc1 lds")
    a(dma(0)); a(dma(1)); a(dma(2))
    if OPT.get('sync4', True): a(dma(3))
    a(f"v_mov_b32 v{Q2+1}, 0")
    ws_srd(a, 24, "O", 14)
    a(f"v_lshrrev_b32 v4, 4, v1\nv_mul_u32_u24 v4, 4608, v4\nv_and_b32 v5, 15, v1\nv_lshl_add_u32 v4, v5, 3, v4\nv_add_u32 v4, {32*PAIR}, v4")
    a("s_mul_i32 s45, s3, 9\nv_lshlrev_b32 v5, 2, v2\nv_add_u32 v5, s45, v5")
    for i in range(5):
        if i < 4: a(f"v_add_u32 v30, {i}, v5")
        else: a("s_add_u32 s45, s45, 8\nv_mov_b32 v30, s45")
        a(f"v_lshrrev_b32 v31, 1, v30\nv_lshl_add_u32 v31, v31, 7, v4\nv_and_b32 v30, 1, v30\nv_lshl_add_u32 v{25+i}, v30, 2, v31")
    SEG = 13
    VKA, VK2, VVA = 14, 17, 20
    a(f"v_mul_u32_u24 v23, 19, v2\nv_add_u32 v23, v23, v1\nv_lshlrev_b32 v23, 4, v23\nv_mov_b32 v24, 0x40000\nv_cmp_gt_u32 vcc, 19, v1\ns_nop 1\nv_cndmask_b32 v{VVA}, v24, v23, vcc")
    a(f"v_mov_b32 v{VKA}, v3\nv_lshlrev_b32 v{VK2}, 2, v0")
    for b in (VKA, VK2, VVA):
        a(f"v_add_u32 v{b+1}, {SEG*PAIR}, v{b}\nv_add_u32 v{b+2}, {2*SEG*PAIR}, v{b}")
    SA, SB, P, O, NM = 32, 64, 96, 112, 128
    KF, K2F, VF = 144, 160, 164
    FOLD = OPT.get("fold", True)
    a(f"v_mov_b32 v{K2F+1}, {ONES if FOLD else 0}\nv_mov_b32 v{K2F+3}, {ONES if FOLD else 0}")
    for r in range(16): a(f"v_mov_b32 v{O+r}, 0")
    def w3(txt):
        L = a.label("w3")
        return (f"s_cmp_lt_u32 s3, 5" if OPT.get("w3hi", True) else f"s_cmp_ge_u32 s3, 3") + f"\ns_cbranch_scc1 {L}\n{txt}\n{L}:"
    def seg(p): return p // SEG, (p % SEG) * PAIR
    def rdK(i, p):
        sg, o = seg(p)
        return [f"ds_read_b128 v[{KF+8*i}:{KF+8*i+3}], v{VKA+sg} offset:{o}",
                f"ds_read_b128 v[{KF+8*i+4}:{KF+8*i+7}], v{VKA+sg} offset:{o+1024}",
                f"ds_read_b32 v{K2F+2*i}, v{VK2+sg} offset:{o+2048}"]
    def rdV(i, p):
        sg, o = seg(p)
        return [f"ds_read_b128 v[{VF+16*i+4*q}:{VF+16*i+4*q+3}], v{VVA+sg} offset:{o+2304+608*q}" for q in range(4)]
    def qk(S, i, c):
        return [f"v_mfma_f32_32x32x16_bf16 v[{S}:{S+15}], v[{KF+8*i}:{KF+8*i+3}], v[{Q1}:{Q1+3}], {c}",
                f"v_mfma_f32_32x32x16_bf16 v[{S+16}:{S+31}], v[{KF+8*i+4}:{KF+8*i+7}], v[{Q1}:{Q1+3}], {c}",
                f"v_mfma_f32_32x32x4_2b_bf16 v[{S}:{S+31}], v[{K2F+2*i}:{K2F+2*i+1}], v[{Q2}:{Q2+1}], v[{S}:{S+31}]"]
    def pvm(vs_, u):
        return f"v_mfma_f32_32x32x16_bf16 v[{O}:{O+15}], v[{VF+16*vs_+4*u}:{VF+16*vs_+4*u+3}], v[{P+4*u}:{P+4*u+3}], v[{O}:{O+15}]"
    def rowmax(S, dst, first):
        L = []; r = 0
        if first:
            L.append(f"v_max_f32 v{dst}, v{S}, v{S+1}"); r = 2
        while r < 32:
            L.append(f"v_max3_f32 v{dst}, v{S+r}, v{S+r+1}, v{dst}"); r += 2
        return L
    def set_nm(src):
        a(f"v_mov_b32 v25, v{src}\ns_nop 1\nv_permlane32_swap_b32 v{src}, v25\ns_nop 1\nv_max_f32 v{src}, v{src}, v25")
        for r in range(16): a(f"v_sub_f32 v{NM+r}, 0, v{src}")
    def E(cur, g):
        b = cur + 4 * g
        return [f"v_exp_f32 v{b+r}, v{b+r}" for r in range(4)] + \
               [f"v_cvt_pk_bf16_f32 v{P+2*g}, v{b}, v{b+1}", f"v_cvt_pk_bf16_f32 v{P+2*g+1}, v{b+2}, v{b+3}"]
    NMr = f"v[{NM}:{NM+15}]"
    a("s_waitcnt lgkmcnt(0)")
    if OPT.get("rps", 2) == 0: a(RPS()[0]); a(RPS()[1])
    if OPT["prio"]: a("s_setprio 1")
    st(0)
    a(f"s_waitcnt vmcnt({3 if OPT.get('sync4', True) else 2})\ns_barrier")
    st(1)
    for i in range(5): a(f"ds_read_b32 v{Q1+i}, v{25+i}")
    for x in rdK(0, 0) + rdK(1, 1) + rdV(0, 0): a(x)
    a("s_waitcnt lgkmcnt(7)")
    q = qk(SA, 0, "0")
    a(q[0]); a(q[1]); a("s_nop 9"); a(q[2]); a("s_nop 15\ns_nop 3")
    for x in rowmax(SA, 24, True): a(x)
    if force_fallback:
        a(f"v_add_f32 v24, {f32bits(-100.0)}, v24")
    if FOLD:
        a("v_mov_b32 v25, v24\ns_nop 1\nv_permlane32_swap_b32 v24, v25\ns_nop 1\nv_max_f32 v24, v24, v25")
        a(f"v_cvt_pk_bf16_f32 v25, -v24, -v24\nv_mov_b32 v{NM}, 0\nv_lshlrev_b32 v26, 16, v25\nv_sub_f32 v26, -v24, v26\nv_cvt_pk_bf16_f32 v{Q2+1}, -v24, v26\nv_cvt_pk_bf16_f32 v{NM+1}, -v24, v26\ns_nop 1")
        a(f"v_mfma_f32_32x32x4_2b_bf16 v[{SA}:{SA+31}], v[{K2F}:{K2F+1}], v[{NM}:{NM+1}], v[{SA}:{SA+31}]\ns_nop 15\ns_nop 1")
    else:
        set_nm(24)
        for r in range(32): a(f"v_add_f32 v{SA+r}, v{SA+r}, v{NM}")
    st(2)
    extra = {i: [] for i in range(32)}
    pre = {i: [] for i in range(32)}
    SYNC = OPT.get("sync4", True)
    B3 = 8 if SYNC else 9
    if SYNC:
        r = 4
        for i in range(5):
            extra[i] += [dma(r), dma(r + 1), dma(r + 2)]; r += 3
        pre[0].append("s_waitcnt vmcnt(0)\ns_barrier"); pre[4].append("s_waitcnt vmcnt(3)\ns_barrier")
    else:
        r = 3
        for i in range(8):
            extra[i] += [dma(r), dma(r + 1)]; r += 2
        pre[0].append("s_waitcnt vmcnt(0)\ns_barrier"); pre[3].append("s_waitcnt vmcnt(2)\ns_barrier")
    pre[B3].append(f"v_mov_b32 v196, 0\nv_mov_b32 v197, 0\nv_mov_b32 v198, 0\nv_mov_b32 v199, 0\nv_mov_b32 v200, {ffn.CNT}\nds_write_b128 v200, v[196:199]\nds_write_b128 v200, v[196:199] offset:16\nds_write_b128 v200, v[196:199] offset:32\nds_write_b128 v200, v[196:199] offset:48\ns_waitcnt vmcnt(0) lgkmcnt(0)\ns_barrier")
    for n in range(8):
        if OPT.get("rp1", False):
            extra[9 + n].append(rp.load(0, n, nt_)); extra[9 + n].append(w3(rp.load(1, n, nt_)))
        else:
            extra[9 + n // 2].append(rp.load(0, n, nt_))
            extra[13 + n // 2].append(w3(rp.load(1, n, nt_)))
    if OPT.get("rps", 2) == 1: pre[6].append(RPS()[0]); pre[7].append(RPS()[1])
    if OPT.get("rps", 2) == 2: pre[5].append("s_cmp_lg_u32 s3, 1\ns_cbranch_scc1 K2_s1\n" + RPS()[0] + "\nK2_s1:")
    ST0 = OPT.get("k2_st0", 21)
    pre[ST0].append("s_waitcnt vmcnt(0)")
    for n in range(4):
        extra[ST0 + n // 2].append(rp.store(0, n, " sc1"))
        extra[ST0 + 2 + n // 2].append(w3(rp.store(1, n, " sc1")))
    pre[ST0 + 7].append("s_waitcnt vmcnt(0)")
    extra[ST0 + 7].append(f"v_mov_b32 v206, {ffn.CNT}\nv_mov_b32 v207, 1\ns_mov_b64 exec, 1\nds_add_rtn_u32 v205, v206, v207 offset:44\ns_mov_b64 exec, -1")
    extra[ST0 + 8].append(f"v_readfirstlane_b32 s45, v205\ns_cmp_lg_u32 s45, 7\ns_cbranch_scc1 K2_nrf\ns_lshl_b32 s45, s34, 5\ns_add_u32 s45, s45, s35\ns_lshl_b32 s45, s45, 7\ns_add_u32 s45, s45, {FL_RF}\n"
                          f"v_mov_b32 v206, s{SE}\nv_lshlrev_b32 v207, 2, v0\ns_mov_b32 exec_lo, -1\ns_mov_b32 exec_hi, 0\nbuffer_store_dword v206, v207, s[36:39], s45 offen sc1\ns_mov_b64 exec, -1\nK2_nrf:")
    if OPT.get("k2_touch", False):
        extra[ST0 + 7].append(rp.touch(0)); extra[ST0 + 8].append(w3(rp.touch(1)))
    extra[B3 - 1].append(f"s_mov_b32 s45, {FL_AF + 224*128}\nv_lshlrev_b32 v206, 7, v1\nbuffer_load_dword v205, v206, s[36:39], s45 offen sc1")
    tmp = Asm(); tmp.uid = 9000
    poll(tmp, 32, 206, 36, 45, 205, 2, first_loaded=True)
    pre[B3].append(tmp.text())
    EW = OPT.get("wo_early", 10)
    if EW:
        wo0, wosz = WS["WOF"]
        pre[OPT.get('wob', 24)].append(f"s_lshr_b32 s77, s2, 5\ns_add_u32 s20, s14, {wo0}\ns_addc_u32 s21, s15, 0\ns_mov_b32 s22, {wosz}\ns_mov_b32 s23, 0x00020000\n"
                       f"s_lshl_b32 s32, s3, 10\ns_mul_i32 s33, s77, {108*1024}\ns_add_u32 s33, s33, s32\ns_waitcnt lgkmcnt(0)\ns_barrier")
        nb_ = 0
        for i in list(range(25, 32)) + list(range(25, 32)):
            if nb_ < EW and len(extra[i]) < 2:
                extra[i].append("s_mov_b32 m0, s32\ns_add_u32 s32, s32, 8192\nbuffer_load_dwordx4 v3, s[20:23], s33 offen sc1 lds\ns_add_u32 s33, s33, 8192"); nb_ += 1
        assert nb_ == EW
    if OPT.get("wo_touch", True):
        L = a.label("wt")
        wb0 = WS["WBAR"][0]; wsz = WS["WOF"][0] + WS["WOF"][1] - wb0
        extra[19].append(f"s_sub_u32 s56, s3, 3\ns_cmp_ge_u32 s56, 3\ns_cbranch_scc1 {L}\ns_lshr_b32 s57, s2, 3\ns_mul_i32 s57, s57, 3\ns_add_u32 s56, s56, s57\ns_lshl_b32 s56, s56, 13\n"
                         f"s_add_u32 s28, s14, {wb0}\ns_addc_u32 s29, s15, 0\ns_mov_b32 s30, {wsz}\ns_mov_b32 s31, 0x00020000\nv_lshlrev_b32 v206, 7, v0\nbuffer_load_dword v205, v206, s[28:31], s56 offen sc1\n{L}:")
    if OPT["codepf"]:
        L = a.label("cp")
        extra[18].append(f"s_lshr_b32 s56, s2, 3\ns_cmp_ge_u32 s56, CODE_PF_N\ns_cbranch_scc1 {L}\ns_cmp_lg_u32 s3, 0\ns_cbranch_scc1 {L}\n"
                         f"s_getpc_b64 s[58:59]\n{L}_pc:\ns_add_u32 s58, s58, K2_out-{L}_pc\ns_addc_u32 s59, s59, 0\n"
                         f"s_lshl_b32 s56, s56, 13\nv_lshlrev_b32 v206, 7, v0\nv_add_u32 v206, s56, v206\nv_min_u32 v206, CODE_END-K2_out-4, v206\nglobal_load_dword v205, v206, s[58:59]\n{L}:")
    ABL = OPT.get("abl", "")
    if "l" in ABL:
        for i in range(9, 17): extra[i] = []
    if "s" in ABL:
        for i in range(ST0, ST0 + 4): extra[i] = []
    if "u" in ABL:
        pre[6] = [ffn_map(34, 35)]; pre[7] = []
    if "m" in ABL:
        extra[18] = []; extra[19] = []; extra[8] = []; pre[9] = pre[9][:1]
    for i in range(32):
        cur, nxt = (SA, SB) if i % 2 == 0 else (SB, SA)
        q = qk(nxt, (i + 1) % 2, "0" if FOLD else NMr) if i < 31 else ["", "", ""]
        vs_ = i % 2
        kr = rdK(i % 2, i + 2) if i + 2 < 32 else ["", "", ""]
        vrd = rdV((i + 1) % 2, i + 1) if i < 31 else [""] * 4
        e = [E(cur, g) for g in range(8)]
        assert len(extra[i]) <= 3
        ex = extra[i] + ["", "", ""]
        seq = list(pre[i])
        PP = OPT.get("pp", 4)
        if OPT["prio"] and i % PP in (0, OPT["prio"]):
            L = a.label("pr")
            seq.append(f"s_cmp_lt_u32 s3, 4\ns_cbranch_scc1 {L}\ns_setprio {2 if i % PP == 0 else 0}\n{L}:")
        AL = OPT.get("aal", 0)
        P3 = {0: "", 1: ".p2align 3", 2: ".p2align 3\ns_nop 0"}[AL]
        if AL: ex = [x + "\n" + P3 if x else x for x in ex]
        sp = 2 if AL else 3
        seq += ["s_waitcnt lgkmcnt(0)", P3, q[0]] + kr[0:2] + e[0]
        seq += [pvm(1 - vs_, 3) if i > 0 else ""] + kr[2:3] + vrd[0:1] + e[1]
        seq += [q[1]] + vrd[1:3] + e[2]
        seq += [pvm(vs_, 0)] + vrd[3:4] + e[3]
        seq += [q[2], ex[0]] + e[4] + e[5][:sp]
        seq += [pvm(vs_, 1), ex[1]] + e[5][sp:] + e[6][:2]
        seq += [pvm(vs_, 2), ex[2]] + e[6][2:] + e[7]
        for x in seq:
            if x: a(x)
        if i % 8 == 7: st(3 + i // 8)
    a("s_nop 1"); a(pvm(1, 3))
    a("s_setprio 0\ns_nop 15")
    def bcast_l():
        a(f"v_mov_b32 v25, v{O+10}\nv_mov_b32 v26, v{O+10}\ns_nop 1\nv_permlane32_swap_b32 v25, v26\ns_nop 1")
    bcast_l()
    a(f"v_mov_b32 v26, {f32bits(2.0**60)}\nv_cmp_nle_f32 vcc, v25, v26\nv_mov_b32 v26, {f32bits(2.0**-60)}\nv_cmp_lt_f32 s[52:53], v25, v26\ns_nop 4\ns_or_b64 vcc, vcc, s[52:53]\ns_cbranch_scc0 K2_out")
    a(f"v_mov_b32 v24, 0xff800000\nv_mov_b32 v{Q2+1}, 0")
    for ps in range(2):
        a(f"s_mov_b32 s52, 0\nv_mov_b32 v27, v{VKA}\nv_mov_b32 v28, v{VK2}\nv_mov_b32 v29, v{VVA}")
        a(f"K2_fb{ps}:")
        a(f"buffer_load_dwordx4 v[{KF}:{KF+3}], v27, s[16:19], 0 offen sc1\nbuffer_load_dwordx4 v[{KF+4}:{KF+7}], v27, s[16:19], 0 offen offset:1024 sc1\nbuffer_load_dword v{K2F}, v28, s[16:19], 0 offen offset:2048 sc1")
        if ps:
            a("s_movk_i32 s53, 2304")
            for u in range(4): a(f"buffer_load_dwordx4 v[{VF+4*u}:{VF+4*u+3}], v29, s[16:19], s53 offen offset:{608*u} sc1")
        a("s_waitcnt vmcnt(0)")
        q = qk(SA, 0, NMr if ps else "0")
        a(q[0]); a(q[1]); a("s_nop 9"); a(q[2]); a("s_nop 15\ns_nop 3")
        if ps == 0:
            for x in rowmax(SA, 24, False): a(x)
        else:
            for g in range(8):
                for x in E(SA, g): a(x)
            a("s_nop 1")
            for u in range(4): a(pvm(0, u))
        a(f"v_add_u32 v27, {PAIR}, v27\nv_add_u32 v28, {PAIR}, v28\nv_add_u32 v29, {PAIR}, v29")
        a(f"s_add_u32 s52, s52, 1\ns_cmp_lt_u32 s52, 32\ns_cbranch_scc1 K2_fb{ps}")
        if ps == 0:
            set_nm(24)
            for r in range(16): a(f"v_mov_b32 v{O+r}, 0")
    a("s_nop 15")
    bcast_l()
    a("K2_out:")
    WR, XR, ACC, XRES = 12, 40, 112, 140
    a("s_lshr_b32 s77, s2, 5\ns_and_b32 s78, s2, 7\ns_lshl_b32 s78, s78, 2\ns_bfe_u32 s43, s2, 0x20003\ns_add_u32 s78, s78, s43")
    a("s_cmp_ge_u32 s3, 4\ns_cbranch_scc1 K2_noearly")
    a("s_lshl_b32 s46, s78, 2\ns_add_u32 s46, s46, s3")
    ws_srd(a, 48, "MEAN1", 14)
    ws_srd(a, 52, "XC", 14)
    a(f"s_mul_i32 s47, s77, 3072\ns_mul_i32 s30, s46, 18432\ns_add_u32 s47, s47, s30")
    for u in range(3):
        a(f"buffer_load_dwordx4 v[{XRES+4*u}:{XRES+4*u+3}], v3, s[52:55], s47 offen offset:{1024*u} sc1")
    a(f"v_and_b32 v166, 15, v0\nv_lshlrev_b32 v166, 2, v166\ns_lshl_b32 s65, s46, 7\nbuffer_load_dword v165, v166, s[48:51], s65 offen sc1")
    a("K2_noearly:")
    a(f"s_lshl_b32 s43, s34, 12\ns_add_u32 s43, s43, {FL_RF}\nv_lshlrev_b32 v161, 7, v1\nbuffer_load_dword v160, v161, s[36:39], s43 offen sc1")
    a(f"v_rcp_f32 v25, v25\ns_nop 0")
    for r in range(10): a(f"v_mul_f32 v{O+r}, v{O+r}, v25")
    for r in range(5): a(f"v_cvt_pk_bf16_f32 v{P+r}, v{O+2*r}, v{O+2*r+1}")
    a(f"v_lshrrev_b32 v26, 4, v1\nv_mul_u32_u24 v27, {18*1024}, v26\nv_and_b32 v28, 15, v1\nv_lshl_add_u32 v27, v28, 4, v27\nv_lshl_add_u32 v27, v2, 8, v27")
    a(f"s_mul_i32 s42, s40, {36*1024}\ns_lshl_b32 s43, s41, 9\ns_add_u32 s43, s43, s42")
    a(f"buffer_store_dwordx4 v[{P}:{P+3}], v27, s[24:27], s43 offen sc1")
    OSC = 32 * PAIR + 1024
    a(f"s_lshr_b32 s43, s3, 2\ns_lshl_b32 s43, s43, 8\ns_and_b32 s44, s3, 3\ns_lshl_b32 s44, s44, 2\ns_add_u32 s43, s43, s44\ns_add_u32 s43, s43, {OSC}")
    a(f"v_lshlrev_b32 v26, 9, v26\nv_lshl_add_u32 v26, v28, 4, v26\nv_add_u32 v26, s43, v26\ns_mov_b32 exec_lo, -1\ns_mov_b32 exec_hi, 0\nds_write_b32 v26, v{P+4}\ns_mov_b64 exec, -1")
    a(f"v_mov_b32 v172, {ffn.CNT}\nv_mov_b32 v8, 1\nv_lshlrev_b32 v9, 2, v0\nv_mov_b32 v174, s{SE}\ns_lshl_b32 s79, s2, 7\ns_add_u32 s79, s79, {FL_OF}")
    a(f"v_add_u32 v4, {OSC}, v3\nv_mul_u32_u24 v5, {18*1024}, v2\nv_lshl_add_u32 v5, v1, 4, v5")
    a("s_and_b32 s43, s2, 3\ns_lshl_b32 s43, s43, 9\ns_add_u32 s43, s43, s42\ns_add_u32 s43, s43, 16384")
    a("s_waitcnt lgkmcnt(0)\ns_barrier")
    st(7)
    a("s_cmp_lg_u32 s3, 0\ns_cbranch_scc1 K3_norem")
    a("ds_read_b128 v[12:15], v4\ns_waitcnt lgkmcnt(0)\nbuffer_store_dwordx4 v[12:15], v5, s[24:27], s43 offen sc1")
    a("K3_norem:")
    a("v_lshlrev_b32 v2, 4, v0\ns_mov_b32 s40, s77\ns_mov_b32 s41, s78")
    a("s_waitcnt vmcnt(0)\ns_mov_b64 exec, 1\nds_add_rtn_u32 v168, v172, v8 offset:36\ns_waitcnt lgkmcnt(0)\nv_readfirstlane_b32 s70, v168\ns_cmp_lg_u32 s70, 7\ns_cbranch_scc1 K3_nofl")
    a("s_mov_b32 exec_lo, -1\ns_mov_b32 exec_hi, 0\nbuffer_store_dword v174, v9, s[36:39], s79 offen sc1\nK3_nofl:\ns_mov_b64 exec, -1")
    a("s_cmp_ge_u32 s3, 4\ns_cbranch_scc1 K3_loader")
    a("v_add_u32 v3, 0x10000, v2\nv_add_u32 v4, 0x20000, v2\nv_and_b32 v5, 15, v0\nv_lshrrev_b32 v6, 4, v0\nv_lshlrev_b32 v7, 7, v0")
    a("v_lshlrev_b32 v11, 2, v5\nv_mov_b32 v10, v165")
    st(8)
    a("s_cmp_ge_u32 s40, 6\ns_cbranch_scc1 K4_compute")
    a(f"s_lshl_b32 s43, s41, 3\ns_lshr_b32 s44, s3, 1\ns_lshl_b32 s44, s44, 2\ns_add_u32 s43, s43, s44\ns_lshl_b32 s43, s43, 7\ns_add_u32 s43, s43, {FL_OF}")
    ws_srd(a, 52, "HC", 14)
    ws_srd(a, 60, "SS", 14)
    a("s_barrier")
    st(13)
    for j in range(7):
        off = j * 1024 if j < 6 else 108 * 1024
        a(f"ds_read_b128 v[{12+4*j}:{15+4*j}], v{2 + off // 65536} offset:{off % 65536}")
    poll(a, 4, 7, 36, 43, 164, 1)
    st(9)
    a("s_mul_i32 s44, s40, 3072")
    def oload(ks):
        t = ""
        if ks % 3 == 0:
            t = "s_add_u32 s45, s30, s44\ns_add_u32 s44, s44, 3072\ns_cmp_eq_u32 s44, 18432\ns_cselect_b32 s44, 0, s44\n"
        return t + f"buffer_load_dwordx4 v[{XR+4*ks}:{XR+4*ks+3}], v2, s[24:27], s45 offen offset:{(ks%3)*1024} sc1"
    OD = OPT.get("k3_od", 6)
    for ks in range(OD): a(oload(ks))
    st(10)
    def wread(ks, j):
        off = (ks * 6 + j) * 1024 if j < 6 else (108 + ks) * 1024
        return f"ds_read_b128 v[{WR+4*j}:{WR+4*j+3}], v{2 + off // 65536} offset:{off % 65536}"
    nl = OD
    for ks in range(18):
        for j in range(7):
            a((f"s_waitcnt vmcnt({nl-1-ks}) " if j == 0 else "s_waitcnt ") + f"lgkmcnt({6 if ks < 17 else 6-j})")
            c = "0" if ks == 0 else f"v[{ACC+4*j}:{ACC+4*j+3}]"
            a(f"v_mfma_f32_16x16x32_bf16 v[{ACC+4*j}:{ACC+4*j+3}], v[{WR+4*j}:{WR+4*j+3}], v[{XR+4*ks}:{XR+4*ks+3}], {c}")
            if ks < 17: a(wread(ks + 1, j))
            if j in (1, 4) and nl < 18:
                a(oload(nl)); nl += 1
    a("s_barrier")
    st(11)
    e = ACC + 24
    a(f"s_nop 6\nv_add_f32 v10, v10, v{e}\nv_add_f32 v10, v10, v{e+1}\nv_mov_b32 v14, 0")
    for u in range(3):
        for r in range(4):
            x = XRES + 4 * u + r
            lo, hi = ACC + 8 * u + r, ACC + 8 * u + 4 + r
            a(f"v_lshlrev_b32 v12, 16, v{x}\nv_and_b32 v13, 0xffff0000, v{x}")
            a(f"v_add_f32 v{lo}, v{lo}, v12\nv_add_f32 v{hi}, v{hi}, v13")
            a(f"v_sub_f32 v{lo}, v{lo}, v10\nv_sub_f32 v{hi}, v{hi}, v10")
            a(f"v_cvt_pk_bf16_f32 v{XR+4*u+r}, v{lo}, v{hi}")
        a(f"buffer_store_dwordx4 v[{XR+4*u}:{XR+4*u+3}], v2, s[52:55], s47 offen offset:{1024*u} sc1")
    for i in range(12): a(f"v_dot2_f32_bf16 v14, v{XR+i}, v{XR+i}, v14")
    a("s_nop 2")
    sum_g(a, 14, 12)
    a("v_cmp_eq_u32 vcc, 1, v6\ns_lshl_b32 s43, s46, 3\ns_add_u32 s43, s43, s40\ns_lshl_b32 s43, s43, 7\nv_cndmask_b32 v14, v14, v10, vcc\ns_mov_b32 exec_lo, -1\ns_mov_b32 exec_hi, 0")
    a("buffer_store_dword v14, v9, s[60:63], s43 offen sc1")
    a(f"s_lshl_b32 s43, s46, 3\ns_add_u32 s43, s43, s40\ns_lshl_b32 s43, s43, 7\ns_add_u32 s43, s43, {FL_HF}")
    a("s_waitcnt vmcnt(0)\nbuffer_store_dword v174, v9, s[36:39], s43 offen sc1\ns_mov_b64 exec, -1")
    st(12)
    a("s_branch K4_compute")
    a("K3_loader:")
    a(f"v_mov_b32 v4, {ffn.CNT}")
    a("s_sub_u32 s33, s3, 4\ns_cmp_ge_u32 s40, 6\ns_cbranch_scc1 K3_pf")
    ws_srd(a, 20, "WOF", 14)
    ws_srd(a, 68, "WBAR", 14)
    a(f"s_lshl_b32 s76, s33, 10\ns_mul_i32 s75, s40, {108*1024}\ns_add_u32 s74, s76, {EW*8192}\ns_add_u32 s75, s75, s74")
    a("s_mul_i32 s77, s40, 3072\ns_add_u32 s76, s76, s77")
    for i in range(2*EW, 32):
        sd, so = ((20, 75) if i < 27 else (68, 76))
        a(f"s_mov_b32 m0, s74\ns_add_u32 s74, s74, 4096\nbuffer_load_dwordx4 v2, s[{sd}:{sd+3}], s{so} offen sc1 lds\ns_add_u32 s{so}, s{so}, 4096")
    a("s_waitcnt vmcnt(0)\ns_barrier")
    a("K3_pf:")
    a("s_cmp_ge_u32 s40, 6\ns_cbranch_scc1 K4_helper\ns_barrier\ns_branch K4_helper")
    k4(a, st)
    a("s_endpgm\nCODE_END:")
    return kernel_desc(NAME + "_kernel", 256)

def rf_check(a, first_loaded):
    a(f"s_lshl_b32 s43, s34, 12\ns_add_u32 s43, s43, {FL_RF}")
    poll(a, 32, 161, 36, 43, 160, 2, first_loaded)
def h_bases(a, sw):
    a("v_add_u32 v3, 0x10000, v2\nv_add_u32 v4, 0x20000, v2")
    a(f"s_mul_i32 s42, s{sw}, 3\ns_lshr_b32 s43, s42, 1\ns_lshl_b32 s43, s43, 12\ns_and_b32 s44, s42, 1\ns_lshl_b32 s45, s44, 3\ns_add_u32 s43, s43, s45\ns_add_u32 s43, s43, {ffn.HB}")
    a("v_add_u32 v5, s43, v2")
    a("s_mul_i32 s45, s44, 4080\ns_add_u32 s45, s45, 8\nv_add_u32 v6, s45, v5")
def k4(a, st0):
    st = lambda i: st0(20 + i)
    a("K4_compute:\ns_mov_b32 s40, s34\ns_mov_b32 s41, s35")
    rf_check(a, True)
    a(f"s_lshl_b32 s46, s40, 2\ns_add_u32 s46, s46, s3\ns_mul_i32 s31, s46, {WST()*1024}")
    ws_srd(a, 20, "WF", 14)
    cs = ffn.Stream(a, PAT(), srdW=20, sW=31, v_lane16=2, v_h8=5, v_p=7, v_one=10, ACC=16, XF=112, TMP=160, RB=176,
                    RINGF=min(OPT.get('ring', 20), 19 if st0.on else 20), stamp=st, wflag=OPT.get('wflag', ' sc1'), al=OPT.get('al', 0))
    cs.prefill(min(cs.RINGF, OPT.get("k4_pre", 18)))
    a("s_setprio 2")
    h_bases(a, 3)
    a("v_and_b32 v12, 15, v0\nv_lshrrev_b32 v13, 4, v0\ns_lshr_b32 s45, s3, 1\nv_lshl_add_u32 v13, v13, 1, s45\nv_and_b32 v14, 7, v0\nv_xor_b32 v13, v13, v14")
    a("s_and_b32 s45, s3, 1\ns_lshl_b32 s45, s45, 3\nv_lshl_add_u32 v13, v13, 4, s45\nv_lshl_add_u32 v7, v12, 7, v13\nv_add_u32 v8, 0x8000, v7")
    a(f"v_mov_b32 v10, 1\nv_mov_b32 v11, {ffn.CNT}")
    cs.run()
    LASTP = OPT.get("lastp", True) and not RING()
    if LASTP:
        a("s_waitcnt lgkmcnt(0)\nv_readfirstlane_b32 s70, v175\ns_mov_b32 s33, 8\ns_cmp_eq_u32 s70, 3\ns_cbranch_scc1 K4_pubs")
    a("s_branch " + ("K4_last" if RING() else "K4_work"))
    PB, AC = 48, 112
    a("K4_helper:")
    a(f"s_setprio {OPT.get('k4_hprio', 0)}\ns_mov_b32 s40, s34\ns_mov_b32 s41, s35")
    a(f"s_mul_i32 s30, s41, 73728\ns_mul_i32 s90, s33, 18432\ns_add_u32 s30, s30, s90")
    ws_srd(a, 16, "HC", 14)
    a(f"s_lshl_b32 s43, s41, 2\ns_add_u32 s43, s43, s33\ns_lshl_b32 s43, s43, 10\ns_add_u32 s43, s43, {FL_HF}\nv_lshlrev_b32 v12, 7, v0")
    poll(a, 6, 12, 36, 43, 13, 1)
    st(9)
    for i in range(18):
        if i % 4 == 0: a("s_mov_b32 m0, s90\ns_add_u32 s90, s90, 4096")
        a(f"buffer_load_dwordx4 v2, s[16:19], s30 offen offset:{(i%4)*1024} sc1 lds")
        if i % 4 == 3: a("s_add_u32 s30, s30, 4096")
        if i >= 5 and i % 3 == 2: a("s_waitcnt vmcnt(3)\ns_barrier")
    a("s_waitcnt vmcnt(0)\ns_barrier")
    a("s_cmp_lg_u32 s2, 0\ns_cbranch_scc1 K4_nep\ns_cmp_lg_u32 s33, 3\ns_cbranch_scc1 K4_nep\ns_mov_b32 s74, s34\ns_mov_b32 s34, 0\nK4_epl:")
    rf_check(a, False)
    a(f"s_add_u32 s34, s34, 1\ns_cmp_lt_u32 s34, 8\ns_cbranch_scc1 K4_epl\ns_mov_b32 s34, s74\nv_mov_b32 v13, s{SE}\nv_mov_b32 v14, 0")
    ws_srd(a, 52, "EP", 14)
    a("s_mov_b64 exec, 1\nbuffer_store_dword v13, v14, s[52:55], 0 offen sc1\ns_mov_b64 exec, -1\nK4_nep:")
    NPUB = OPT.get("npub", 2)
    EARLY = RING() and OPT.get("own_early", True)
    if EARLY: a(f"s_cmp_ge_u32 s33, {NPUB}\ns_cbranch_scc1 K4_own")
    for i in range(ffn.N_BARRIERS_AFTER_X): a("s_barrier")
    if not EARLY: a(f"s_cmp_ge_u32 s33, {NPUB}\ns_cbranch_scc1 " + ("K4_own" if RING() else "K4_work"))
    def wait_cnt(L, slp, n=4):
        a(f"s_mov_b32 s72, 0x40000\n{L}:\nds_read_b32 v3, v4\ns_waitcnt lgkmcnt(0)\nv_readfirstlane_b32 s70, v3\ns_cmp_ge_u32 s70, {n}\ns_cbranch_scc1 {L}_ok\ns_sleep {slp}\ns_sub_u32 s72, s72, 1\ns_cbranch_scc0 {L}\n{L}_ok:")
    SWZ = "v_lshrrev_b32 v5, 3, v0\nv_and_b32 v6, 7, v0\nv_xor_b32 v7, v5, v6\nv_lshlrev_b32 v7, 4, v7\nv_lshl_add_u32 v7, v5, 7, v7"
    a("K4_pubs:")
    ws_srd(a, 24, "PART", 14)
    a("s_mov_b32 s42, s33"); a(SWZ)
    a(f"s_lshl_b32 s44, s42, 13\nv_add_u32 v7, s44, v7\ns_lshl_b32 s44, s42, 2\ns_add_u32 s44, s44, {ffn.CNT}\nv_mov_b32 v4, s44")
    a("s_mul_i32 s49, s41, 9\ns_add_u32 s49, s49, s42\ns_lshl_b32 s47, s49, 16\ns_lshl_b32 s51, s49, 10")
    a("s_lshl_b32 s44, s40, 13\ns_add_u32 s47, s47, s44\ns_lshl_b32 s44, s40, 7\ns_add_u32 s51, s51, s44\nv_lshlrev_b32 v18, 2, v0")
    a(f"v_mov_b32 v13, s{SE}")
    a("s_mov_b32 s75, s40\nK4_pub:")
    if RING():
        a("s_add_u32 s44, s40, s42\ns_and_b32 s44, s44, 7\ns_cmp_eq_u32 s42, 0\ns_cselect_b32 s44, 8, s44\ns_cselect_b32 s45, s40, s42\ns_cselect_b32 s75, s40, 64")
        a("s_mul_i32 s49, s41, 9\ns_add_u32 s49, s49, s44\ns_lshl_b32 s49, s49, 3\ns_add_u32 s49, s49, s45\ns_lshl_b32 s47, s49, 13\ns_lshl_b32 s51, s49, 7")
    wait_cnt("K4_pw", 2)
    st0.dyn(34, 42)
    for i in range(8): a(f"ds_read_b128 v[{PB+4*i}:{PB+4*i+3}], v7 offset:{1024*i}")
    a("s_add_u32 s71, s47, 4096")
    for i in range(8):
        a(f"s_cmp_eq_u32 s75, {i}\ns_cbranch_scc1 K4_ps{i}\ns_waitcnt lgkmcnt({7-i})\nbuffer_store_dwordx4 v[{PB+4*i}:{PB+4*i+3}], v2, s[24:27], s{47 if i < 4 else 71} offen offset:{(i%4)*1024} sc1\nK4_ps{i}:")
    if RING(): a("v_mov_b32 v3, 4\ns_mov_b64 exec, 1\nds_add_u32 v4, v3\ns_mov_b64 exec, -1")
    a("s_waitcnt vmcnt(0) lgkmcnt(0)\ns_mov_b32 exec_lo, -1\ns_mov_b32 exec_hi, 0\nbuffer_store_dword v13, v18, s[36:39], s51 offen sc1\ns_mov_b64 exec, -1")
    st0.dyn(43, 42)
    a(f"s_add_u32 s42, s42, {NPUB}\ns_add_u32 s47, s47, {NPUB << 16}\ns_add_u32 s51, s51, {NPUB << 10}\nv_add_u32 v7, {NPUB << 13}, v7\nv_add_u32 v4, {4*NPUB}, v4\ns_cmp_lt_u32 s42, {8 if (LASTP or RING()) else 9}\ns_cbranch_scc1 K4_pub")
    a("K4_work:")
    a(f"v_mov_b32 v14, {ffn.CNT}\nv_mov_b32 v15, 1")
    TAKE = "s_mov_b64 exec, 1\nds_add_rtn_u32 v3, v14, v15 offset:40\ns_mov_b64 exec, -1\ns_waitcnt lgkmcnt(0)\nv_readfirstlane_b32 s42, v3\ns_cmp_ge_u32 s42, " + ("1" if RING() else "9") + "\ns_cbranch_scc1 K4_fin\ns_mov_b32 s76, s42" + ("\ns_mov_b32 s42, 8" if RING() else "")
    a(TAKE)
    ws_srd(a, 16, "HC", 14)
    ws_srd(a, 24, "PART", 14)
    ws_srd(a, 56, "SS", 14)
    srd(a, 60, 4, 0, T*DM*2)
    a(SWZ)
    a("s_lshl_b32 s43, s40, 3\nv_add_u32 v8, s43, v5")
    a("v_lshrrev_b32 v19, 4, v8\nv_lshlrev_b32 v19, 10, v19\nv_and_b32 v16, 15, v8\nv_lshl_add_u32 v19, v16, 2, v19\ns_lshl_b32 s65, s41, 12\nbuffer_load_dword v140, v19, s[56:59], s65 offen offset:64 sc1")
    for nb in range(6): a(f"buffer_load_dword v{144+nb}, v19, s[56:59], s65 offen offset:{128*nb} sc1")
    a("s_lshl_b32 s44, s40, 10\nv_add_u32 v9, s44, v7\nv_lshlrev_b32 v12, 7, v0")
    a("v_lshrrev_b32 v10, 4, v8\nv_mul_u32_u24 v10, 18432, v10\nv_lshl_add_u32 v10, v6, 8, v10\nv_and_b32 v11, 15, v8\nv_lshl_add_u32 v10, v11, 4, v10")
    a(f"v_mul_u32_u24 v11, {DM*2}, v8\nv_lshl_add_u32 v11, v6, 4, v11")
    a("v_and_b32 v19, 1, v0\nv_cmp_eq_u32 s[66:67], 1, v19\ns_mov_b32 s68, 0x00003f80\ns_mov_b32 s69, 0x3f800000\ns_mov_b32 s74, 0")
    a("K4_red:")
    a("s_mul_i32 s30, s41, 73728\ns_lshl_b32 s44, s42, 11\ns_add_u32 s30, s30, s44\nbuffer_load_dwordx4 v[20:23], v10, s[16:19], s30 offen sc1")
    a(f"s_mul_i32 s64, s41, {64*DM*2}\ns_lshl_b32 s44, s42, 7\ns_add_u32 s64, s64, s44")
    a(f"s_lshl_b32 s44, s76, 13\nv_add_u32 v7, s44, v9\ns_lshl_b32 s44, s76, 2\ns_add_u32 s44, s44, {ffn.CNT}\nv_mov_b32 v4, s44")
    a("s_mul_i32 s49, s41, 9\ns_add_u32 s49, s49, s42\ns_lshl_b32 s71, s49, 16\ns_lshl_b32 s51, s49, 10\ns_lshl_b32 s44, s40, 10\ns_add_u32 s71, s71, s44")
    wait_cnt("K4_rw", 4)
    poll(a, 8, 12, 36, 51, 3, OPT.get("red_slp", 2))
    st0.dyn(52, 42)
    for j in range(8):
        b = PB + 4*j
        a(f"s_cmp_eq_u32 s40, {j}\ns_cbranch_scc1 K4_ro{j}\nbuffer_load_dwordx4 v[{b}:{b+3}], v2, s[24:27], s71 offen sc1\ns_branch K4_rp{j}\nK4_ro{j}:\nds_read_b128 v[{b}:{b+3}], v7\nK4_rp{j}:\ns_add_u32 s71, s71, 8192")
    a("s_cmp_lg_u32 s74, 0\ns_cbranch_scc1 K4_hs\ns_mov_b32 s74, 1")
    a("v_add_f32 v144, v144, v145\nv_add_f32 v146, v146, v147\nv_add_f32 v148, v148, v149\nv_add_f32 v144, v144, v146\nv_add_f32 v144, v144, v148")
    a(f"v_mov_b32 v145, {f32bits(1e-5)}\nv_fmac_f32 v145, {f32bits(1.0/DM)}, v144\nv_rsq_f32 v142, v145\nK4_hs:")
    for i in range(4):
        a(f"v_lshlrev_b32 v{24+2*i}, 16, v{20+i}\nv_and_b32 v{25+2*i}, 0xffff0000, v{20+i}\nv_add_f32 v{24+2*i}, v{24+2*i}, v140\nv_add_f32 v{25+2*i}, v{25+2*i}, v140")
    a("s_waitcnt lgkmcnt(0)")
    for j in range(8):
        a(f"s_waitcnt vmcnt({max(0, 6-j)})")
        for qq in range(2):
            for p in range(2):
                src = PB + 4*j + 2*qq + p
                d0, d1 = AC + 4*p + qq, AC + 4*p + 2 + qq
                if OPT.get("red_dot", False):
                    for hh, d in ((0, d0), (1, d1)):
                        a(f"v_dot2_f32_bf16 v{d}, v{src}, s{68+hh}, {'0' if j == 0 else f'v{d}'}")
                elif j == 0:
                    a(f"v_lshlrev_b32 v{d0}, 16, v{src}\nv_and_b32 v{d1}, 0xffff0000, v{src}")
                else:
                    a(f"v_lshlrev_b32 v16, 16, v{src}\nv_and_b32 v{src}, 0xffff0000, v{src}\nv_add_f32 v{d0}, v{d0}, v16\nv_add_f32 v{d1}, v{d1}, v{src}")
    a("s_nop 2")
    for i in range(4):
        a(f"v_cndmask_b32 v{AC+8+i}, v{AC+4+i}, v{AC+i}, s[66:67]")
        a(f"v_cndmask_b32 v{AC+12+i}, v{AC+i}, v{AC+4+i}, s[66:67]")
    a("s_nop 1")
    for i in range(4):
        a(f"v_mov_b32_dpp v{AC+16+i}, v{AC+8+i} quad_perm:[1,0,3,2] row_mask:0xf bank_mask:0xf")
    for hlf in range(2):
        for e in range(2):
            k_, r_ = AC + 12 + 2*hlf + e, AC + 16 + 2*hlf + e
            a(f"v_cndmask_b32 v{AC+4*hlf+e}, v{k_}, v{r_}, s[66:67]\nv_cndmask_b32 v{AC+4*hlf+2+e}, v{r_}, v{k_}, s[66:67]")
    for i in range(4):
        a(f"v_fmac_f32 v{24+2*i}, v{AC+2*i}, v142\nv_fmac_f32 v{25+2*i}, v{AC+2*i+1}, v142\nv_cvt_pk_bf16_f32 v{40+i}, v{24+2*i}, v{25+2*i}")
    a("buffer_store_dwordx4 v[40:43], v11, s[60:63], s64 offen" + OPT.get("oflag", ""))
    st0.dyn(8, 42)
    a(TAKE + "\ns_branch K4_red")
    if RING():
        a("K4_own:\ns_sub_u32 s33, s33, 2")
        ws_srd(a, 24, "PART", 14)
        ws_srd(a, 56, "SS", 14)
        srd(a, 60, 4, 0, T*DM*2)
        a(SWZ)
        BS, RS_, TM = 144, 176, 28
        a("v_lshlrev_b32 v19, 2, v5\ns_lshl_b32 s65, s41, 12\ns_lshl_b32 s44, s33, 11\ns_add_u32 s65, s65, s44")
        for i in range(4):
            o = (i >> 1) * 1024 + (i & 1) * 32
            a(f"buffer_load_dword v{180+i}, v19, s[56:59], s65 offen offset:{o + 64} sc1")
            for nb in range(6): a(f"buffer_load_dword v{184+6*i+nb}, v19, s[56:59], s65 offen offset:{o + 128*nb} sc1")
        a("v_lshlrev_b32 v10, 8, v6\nv_lshl_add_u32 v10, v5, 4, v10\ns_mul_i32 s30, s41, 73728\ns_mul_i32 s44, s33, 36864\ns_add_u32 s30, s30, s44\ns_lshl_b32 s44, s40, 11\ns_add_u32 s30, s30, s44\ns_add_u32 s44, s30, 18432")
        for i in range(4):
            a(f"buffer_load_dwordx4 v[{PB+4*i}:{PB+4*i+3}], v10, s[16:19], s{30 if i < 2 else 44} offen offset:{(i&1)*128} sc1")
        a(f"v_mul_u32_u24 v11, {DM*2}, v5\nv_lshl_add_u32 v11, v6, 4, v11\ns_mul_i32 s64, s41, {64*DM*2}\ns_mul_i32 s44, s33, {32*DM*2}\ns_add_u32 s64, s64, s44\ns_lshl_b32 s44, s40, 7\ns_add_u32 s64, s64, s44")
        a(f"s_lshl_b32 s44, s33, 12\ns_add_u32 s44, s44, {8*ffn.STG}\nv_add_u32 v7, s44, v7\nv_lshlrev_b32 v12, 7, v0\nv_and_b32 v19, 1, v0\nv_cmp_eq_u32 s[66:67], 1, v19")
        a("s_mul_i32 s49, s41, 9\ns_add_u32 s49, s49, s40\ns_lshl_b32 s47, s49, 16\ns_lshl_b32 s51, s49, 10\ns_lshl_b32 s44, s33, 12\ns_add_u32 s47, s47, s44\ns_waitcnt vmcnt(0)")
        for i in range(4):
            b = 184 + 6*i
            a(f"v_add_f32 v{b}, v{b}, v{b+1}\nv_add_f32 v{b+2}, v{b+2}, v{b+3}\nv_add_f32 v{b+4}, v{b+4}, v{b+5}\nv_add_f32 v{b}, v{b}, v{b+2}\nv_add_f32 v{b}, v{b}, v{b+4}")
            a(f"v_mov_b32 v{b+1}, {f32bits(1e-5)}\nv_fmac_f32 v{b+1}, {f32bits(1.0/DM)}, v{b}\nv_rsq_f32 v{RS_+i}, v{b+1}")
            for k in range(4):
                d = BS + 8*i + 2*k
                a(f"v_lshlrev_b32 v{d}, 16, v{PB+4*i+k}\nv_and_b32 v{d+1}, 0xffff0000, v{PB+4*i+k}\nv_add_f32 v{d}, v{d}, v{180+i}\nv_add_f32 v{d+1}, v{d+1}, v{180+i}")
        if EARLY:
            for i in range(ffn.N_BARRIERS_AFTER_X): a("s_barrier")
        first = [True]
        def accum(b, i):
            for qq in range(2):
                for p in range(2):
                    src = b + 2*qq + p
                    d0, d1 = AC + 8*i + 4*p + qq, AC + 8*i + 4*p + 2 + qq
                    if first[0]: a(f"v_lshlrev_b32 v{d0}, 16, v{src}\nv_and_b32 v{d1}, 0xffff0000, v{src}")
                    else: a(f"v_lshlrev_b32 v16, 16, v{src}\nv_and_b32 v{src}, 0xffff0000, v{src}\nv_add_f32 v{d0}, v{d0}, v16\nv_add_f32 v{d1}, v{d1}, v{src}")
        def fold(i, bs, rs):
            A_ = AC + 8*i
            for k in range(4):
                a(f"v_cndmask_b32 v{TM+k}, v{A_+4+k}, v{A_+k}, s[66:67]\nv_cndmask_b32 v{TM+4+k}, v{A_+k}, v{A_+4+k}, s[66:67]")
            a("s_nop 1")
            for k in range(4): a(f"v_mov_b32_dpp v{TM+8+k}, v{TM+k} quad_perm:[1,0,3,2] row_mask:0xf bank_mask:0xf")
            for hlf in range(2):
                for e in range(2):
                    k_, r_ = TM + 4 + 2*hlf + e, TM + 8 + 2*hlf + e
                    a(f"v_cndmask_b32 v{A_+4*hlf+e}, v{k_}, v{r_}, s[66:67]\nv_cndmask_b32 v{A_+4*hlf+2+e}, v{r_}, v{k_}, s[66:67]")
            for k in range(8): a(f"v_fmac_f32 v{bs+8*i+k}, v{A_+k}, v{rs+i}")
        def gather(stp, nrg, tag):
            a(f"s_add_u32 s43, s51, {128*stp[0]}")
            poll(a, len(stp), 12, 36, 43, 3, OPT.get("red_slp", 2) if nrg == 4 else 1)
            st(tag)
            for k, p in enumerate(stp):
                a(f"s_add_u32 s71, s47, {p*8192}")
                for i in range(nrg):
                    b = PB + 4*(nrg*k + i)
                    a(f"buffer_load_dwordx4 v[{b}:{b+3}], v2, s[24:27], s71 offen offset:{1024*i} sc1")
        def sums(stp, nrg):
            nl = nrg * len(stp)
            for k, p in enumerate(stp):
                for i in range(nrg):
                    nl -= 1
                    a(f"s_waitcnt vmcnt({nl})"); accum(PB + 4*(nrg*k + i), i)
                first[0] = False
        steps = OPT.get("steps", ((1,), (2, 3), (4,)))
        late = tuple(range(max(steps[-1]) + 1, 8))
        RSL = 73728
        for n, stp in enumerate(steps):
            a(f"v_mov_b32 v4, {ffn.CNT + 4*max(stp)}")
            wait_cnt(f"K4_ow{n}", 2)
            gather(stp, 4, 10 + n); sums(stp, 4)
        for i in range(4): fold(i, BS, RS_)
        a(f"s_lshl_b32 s44, s33, 2\ns_add_u32 s44, s44, {ffn.CNT + 4}\nv_mov_b32 v4, s44")
        wait_cnt("K4_orl", 2, 8)
        a(f"s_lshl_b32 s44, s33, 13\ns_add_u32 s44, s44, {ffn.STG}\nv_add_u32 v8, s44, v2\ns_lshl_b32 s44, s33, 10\ns_add_u32 s44, s44, {RSL}\nv_lshlrev_b32 v9, 2, v0\nv_add_u32 v9, s44, v9")
        for i in range(8): a(f"ds_write_b128 v8, v[{BS+4*i}:{BS+4*i+3}] offset:{1024*i}")
        for i in range(4): a(f"ds_write_b32 v9, v{RS_+i} offset:{256*i}")
        a(f"v_mov_b32 v4, {ffn.CNT + 48}\nv_mov_b32 v3, 1\ns_mov_b64 exec, 1\nds_add_u32 v4, v3\ns_mov_b64 exec, -1\ns_branch K4_work")
        a("K4_last:")
        ws_srd(a, 24, "PART", 14)
        a("s_mul_i32 s49, s41, 9\ns_add_u32 s49, s49, s40\ns_lshl_b32 s47, s49, 16\ns_lshl_b32 s51, s49, 10\ns_lshl_b32 s44, s3, 11\ns_add_u32 s47, s47, s44\nv_lshlrev_b32 v12, 7, v0")
        SPL = OPT.get('split', False) and len(late) > 1
        if SPL: late = late[:-1]
        gather(late, 2, 15)
        srd(a, 60, 4, 0, T*DM*2)
        a(SWZ)
        a(f"s_add_u32 s44, s44, {8*ffn.STG}\nv_add_u32 v7, s44, v7\nv_and_b32 v19, 1, v0\nv_cmp_eq_u32 s[66:67], 1, v19")
        a(f"v_mul_u32_u24 v11, {DM*2}, v5\nv_lshl_add_u32 v11, v6, 4, v11\ns_mul_i32 s64, s41, {64*DM*2}\ns_mul_i32 s44, s3, {16*DM*2}\ns_add_u32 s64, s64, s44\ns_lshl_b32 s44, s40, 7\ns_add_u32 s64, s64, s44")
        a(f"s_lshl_b32 s44, s3, 12\ns_add_u32 s44, s44, {ffn.STG}\nv_add_u32 v8, s44, v2\ns_lshl_b32 s44, s3, 9\ns_add_u32 s44, s44, {RSL}\nv_lshlrev_b32 v9, 2, v0\nv_add_u32 v9, s44, v9")
        a(f"v_mov_b32 v4, {ffn.CNT + 32}")
        wait_cnt("K4_l8", 1)
        a("ds_read_b128 v[96:99], v7\nds_read_b128 v[100:103], v7 offset:1024")
        a(f"v_mov_b32 v4, {ffn.CNT + 48}")
        wait_cnt("K4_lr", 1, 2)
        for i in range(4): a(f"ds_read_b128 v[{BS+4*i}:{BS+4*i+3}], v8 offset:{1024*i}")
        a(f"ds_read_b32 v{RS_}, v9\nds_read_b32 v{RS_+1}, v9 offset:256")
        first[0] = True
        accum(96, 0); accum(100, 1)
        first[0] = False
        sums(late, 2)
        if SPL:
            gather((7,), 2, 14); sums((7,), 2)
        a("s_waitcnt lgkmcnt(0)")
        for i in range(2):
            fold(i, BS, RS_)
            for k in range(4): a(f"v_cvt_pk_bf16_f32 v{96+4*i+k}, v{BS+8*i+2*k}, v{BS+8*i+2*k+1}")
            a(f"buffer_store_dwordx4 v[{96+4*i}:{99+4*i}], v11, s[60:63], s64 offen\ns_add_u32 s64, s64, {8*DM*2}")
    a("K4_fin:")
    st0.finish(14, 3, 8)

HEADER = open("cdna_kernels/" + NAME + ".s.ref").read().split("; Override launch geometry")[0]
DOC = """; Generated by a Python script (hand-designed schedule). One persistent launch, 256 workgroups x 8 waves, one per CU:
"""
def build(stamp_k=-1, force_fallback=False, light=False, **opt):
    LIGHT[0] = light
    OPT.update(opt)
    a = Asm()
    hdr = HEADER + f"; @launch grid=({K1_GRID},1,1) block=(512,1,1) lds={max(K1_LDS, K2_LDS)}\n"
    hdr += DOC
    a('.amdgcn_target "amdgcn-amd-amdhsa--gfx950"\n.text')
    st = Stamps(a, stamp_k == 2, 2, 255, 254)
    k1(a, st)
    descs = [k2(a, st, force_fallback)]
    a('.set CODE_PF_N, (CODE_END - K2_out + 8191) / 8192')
    a('.section .rodata,"a"')
    txt = a.text()
    if OPT.get("stf"):
        txt = "\n".join(ln.replace(" sc1", OPT["stf"]) if "buffer_store" in ln else ln for ln in txt.split("\n"))
    if OPT.get("ldf"):
        txt = "\n".join(ln.replace(" sc1", OPT["ldf"]) if ("buffer_load" in ln and "s[24:27]" in ln) else ln for ln in txt.split("\n"))
    return hdr + txt + "".join(descs)

if __name__ == "__main__":
    out = sys.argv[1] if len(sys.argv) > 1 else "cdna_kernels/" + NAME + ".s"
    kw = eval("dict(" + (sys.argv[2] if len(sys.argv) > 2 else "") + ")")
    open(out, "w").write(build(**kw))
```

```python
import sys, math
from asmlib import *
from gemm import gemm_core
import ffn

T, DM, NH, DH, F = 2048, 576, 32, 18, 4608
NAME = "sequential_preLN__grouped_kv_mqa__dense_activation_relu__prompt"
A_X, A_WQ, A_WK, A_WV, A_WO, B_X, B_W1, B_W2, K_OUT, K_DBG, K_WS = [8 * i for i in range(11)]
def _al(x, a=4096): return (x + a - 1) // a * a
PAIR = 4736
FL_PF, FL_OF, FL_HF, FL_RF = 0, 294912, 294912 + 32768, 294912 + 32768 + 131072
FL_AF = FL_RF + 32768
FL_END = FL_AF + 32768
SW, SE = 100, 101
WS = {}
_o = 0
for nm, sz in [("EP", 128), ("Q", T*DM*2), ("KV", 32*PAIR), ("MEAN1", T*8), ("O", T*DM*2), ("HC", T*DM*2),
               ("SS", 128*8*128), ("XC", T*DM*2), ("WBAR", 36*1024), ("WOF", 648*1024), ("WF", 32*332*1024),
               ("PART", 8*T*DM*2), ("FLAG", FL_END), ("STAMP", 16 << 20)]:
    WS[nm] = (_o, sz); _o += _al(sz)
WS_END = _o
QSCALE = math.log2(math.e) / math.sqrt(DH)
def f32bits(x):
    import struct
    return struct.unpack("<I", struct.pack("<f", x))[0]
ONES = 0x3f803f80

def ws_srd(a, d, nm, base):
    srd(a, d, base, WS[nm][0], WS[nm][1])

def wave_lane(a, s_wave=3):
    a(f"v_lshrrev_b32 v1, 6, v0\nv_and_b32 v0, 63, v0\ns_nop 0\nv_readfirstlane_b32 s{s_wave}, v1")

def sum_g(a, v, t):
    a(f"v_mov_b32 v{t}, v{v}\ns_nop 1\nv_permlane32_swap_b32 v{v}, v{t}\ns_nop 1\nv_add_f32 v{v}, v{v}, v{t}")
    a(f"v_mov_b32 v{t}, v{v}\ns_nop 1\nv_permlane16_swap_b32 v{v}, v{t}\ns_nop 1\nv_add_f32 v{v}, v{v}, v{t}")

LIGHT = [False]
OPT = dict(prio=3, k2_nt=True, codepf=True)
class Stamps:
    def __init__(self, a, on, kidx, vreg, vtmp):
        self.a, self.on, self.k, self.v, self.t = a, bool(on) or LIGHT[0], kidx, vreg, vtmp
        self.full = bool(on)
    def start(self):
        if OPT.get("probe") is not None:
            self.a("s_memrealtime s[96:97]\ns_waitcnt lgkmcnt(0)\ns_mov_b32 s99, s96\ns_mov_b32 s98, s96")
        if self.on:
            self.a(f"s_memrealtime s[96:97]\ns_memtime s[98:99]\nv_mov_b32 v{self.v}, 0\ns_waitcnt lgkmcnt(0)\nv_writelane_b32 v{self.v}, s96, 62")
    def __call__(self, i):
        if OPT.get("probe") == i:
            self.a("s_memrealtime s[96:97]\ns_waitcnt lgkmcnt(0)\ns_mov_b32 s98, s96")
        if self.full or (self.on and i == 61):
            if OPT.get("rt") and i != 61:
                self.a(f"s_memrealtime s[96:97]\ns_waitcnt lgkmcnt(0)\nv_writelane_b32 v{self.v}, s96, {i}")
            else:
                self.a(f"s_memtime s[96:97]\ns_waitcnt lgkmcnt(0)\ns_sub_u32 s96, s96, s98\nv_writelane_b32 v{self.v}, s96, {i}")
    def dyn(self, base, sreg):
        if self.full:
            self.a(f"s_memrealtime s[96:97]\ns_add_u32 m0, s{sreg}, {base}\ns_waitcnt lgkmcnt(0)\nv_writelane_b32 v{self.v}, s96, m0")
    def finish(self, s_ws, s_wave, nw):
        if OPT.get("probe") is not None:
            a = self.a
            a(f"s_cmp_lg_u32 s2, 8\ns_cbranch_scc1 PB_e\ns_cmp_lg_u32 s{s_wave}, 0\ns_cbranch_scc1 PB_e\ns_memrealtime s[96:97]\ns_waitcnt lgkmcnt(0)")
            if OPT["probe"] == 63: a("s_mov_b32 s98, s96")
            a("s_sub_u32 s98, s98, s99\ns_mul_i32 s98, s98, " + str(OPT.get("pk", 2)) + "\ns_mov_b32 s99, s96\nPB_l:\ns_memrealtime s[96:97]\ns_waitcnt lgkmcnt(0)\ns_sub_u32 s96, s96, s99\ns_cmp_lt_u32 s96, s98\ns_cbranch_scc1 PB_l\nPB_e:")
        if self.on:
            a = self.a
            a("s_waitcnt vmcnt(0)")
            self(61)
            a(f"s_memrealtime s[96:97]\ns_waitcnt lgkmcnt(0)\nv_writelane_b32 v{self.v}, s96, 63")
            ws_srd(a, 92, "STAMP", s_ws)
            a(f"s_lshl_b32 s96, s2, 3\ns_add_u32 s96, s96, s{s_wave}\ns_lshl_b32 s96, s96, 8\ns_add_u32 s96, s96, {self.k << 21}")
            a(f"v_mbcnt_lo_u32_b32 v{self.t}, -1, 0\nv_mbcnt_hi_u32_b32 v{self.t}, -1, v{self.t}\nv_lshlrev_b32 v{self.t}, 2, v{self.t}")
            a(f"buffer_store_dword v{self.v}, v{self.t}, s[92:95], s96 offen")


def WST(): return OPT.get('wst', 326)
def RING(): return OPT.get('own', True)
def PAT(): return OPT.get('pat', (2, 2, 2, 1, 1, 1) if RING() else (3, 3, 2, 1))
class Repack:
    PR = 208
    def __init__(self, a): self.a = a
    def common(self):
        return (f"s_add_u32 s60, s14, {WS['WOF'][0]}\ns_addc_u32 s61, s15, 0\ns_mov_b32 s62, {WS['WF'][0] + WS['WF'][1] - WS['WOF'][0]}\ns_mov_b32 s63, 0x00020000\n"
                "v_and_b32 v6, 15, v0\nv_lshrrev_b32 v7, 4, v0\ns_mov_b32 s80, 0x05040100\ns_mov_b32 s81, 0x07060302")
    def regs(self, rnd): return 64 + 4 * rnd, 72 + 4 * rnd, 82 + 4 * rnd, 242 + rnd, 240 + rnd
    def setup_ffn(self, rnd, pw1, pw2):
        L = self.a.label("rp")
        SD, SB_, SO, vsrc, dst = self.regs(rnd)
        OWF = WS["WF"][0] - WS["WOF"][0]
        t = []; A = t.append
        A(f"s_mul_hi_u32 s46, s47, {(2**32 + 161)//162}\ns_mul_i32 s49, s46, 162\ns_sub_u32 s47, s47, s49")
        A(f"s_mul_hi_u32 s49, s47, {(2**32 + 8)//9}\ns_mul_i32 s50, s49, 9\ns_sub_u32 s50, s47, s50")
        A(f"s_mov_b32 s{SD+3}, 0x00020000\ns_lshl_b32 s54, s50, 7\nv_mov_b32 v{dst}, v3")
        A(f"s_cmp_lt_u32 s46, 2\ns_cselect_b32 s{SD+2}, {DM*F*2}, 0\ns_cselect_b32 s57, 0, 0x100000")
        A(f"s_mul_i32 s53, s45, {4*WST()}\ns_mul_i32 s55, s46, 162\ns_add_u32 s53, s53, s55\ns_add_u32 s53, s53, {OWF//1024}\ns_add_u32 s53, s53, s57")
        A(f"s_cmp_eq_u32 s46, 1\ns_cbranch_scc1 {L}_w2")
        A("s_mul_i32 s55, s49, 3\ns_add_u32 s53, s53, s55")
        for q in range(4):
            A(f"s_lshl_b32 s55, s50, 2\ns_add_u32 s55, s55, {q}\ns_mul_i32 s56, s55, 86\ns_lshr_b32 s56, s56, 8")
            A(f"s_lshr_b32 s58, s56, 2\ns_mul_i32 s58, s58, {4*WST()-54}\ns_mul_i32 s56, s56, {WST()-3}\ns_sub_u32 s56, s56, s58")
            A(f"s_add_u32 s55, s55, s56\ns_add_u32 s55, s55, s53\ns_lshl_b32 s{SO+q}, s55, 10")
        A(f"s_mov_b32 s{SD}, s{pw1}\ns_mov_b32 s{SD+1}, s{pw1+1}\ns_mul_i32 s53, s49, {32*F*2}\ns_mul_i32 s55, s45, {DM*2}\ns_add_u32 s53, s53, s55\ns_add_u32 s{SB_}, s53, s54")
        A(f"s_mov_b32 s{SB_+1}, {4*F*2}\ns_mov_b32 s{SB_+2}, {2*F*2}\ns_mov_b32 s{SB_+3}, {F*2}")
        A(f"v_mul_u32_u24 v{vsrc}, {8*F*2}, v7\nv_lshl_add_u32 v{vsrc}, v6, 3, v{vsrc}\ns_branch {L}_done")
        A(f"{L}_w2:")
        idx, siz = 0, 0
        cb = 0
        for n in PAT():
            for i in range(n):
                idx |= i << (2 * (cb + i)); siz |= n << (2 * (cb + i))
            cb += n
        if RING():
            A("s_sub_u32 s55, s50, s45\ns_sub_u32 s55, s55, 1\ns_and_b32 s55, s55, 7\ns_add_u32 s55, s55, 1\ns_cmp_eq_u32 s50, 8\ns_cselect_b32 s50, 0, s55")
        A(f"s_lshl_b32 s55, s50, 1\ns_lshr_b32 s56, {idx}, s55\ns_and_b32 s56, s56, 3\ns_lshr_b32 s58, {siz}, s55\ns_and_b32 s58, s58, 3")
        A("s_mul_i32 s58, s58, s49\ns_add_u32 s53, s53, s58\ns_mul_i32 s58, s50, 18\ns_add_u32 s53, s53, s58\ns_mul_i32 s56, s56, 17\ns_sub_u32 s53, s53, s56")
        A(f"s_lshl_b32 s{SO}, s53, 10\ns_add_u32 s{SO+1}, s{SO}, {WST()*1024}\ns_add_u32 s{SO+2}, s{SO}, {2*WST()*1024}\ns_add_u32 s{SO+3}, s{SO}, {3*WST()*1024}")
        A(f"s_mov_b32 s{SD}, s{pw2}\ns_mov_b32 s{SD+1}, s{pw2+1}\ns_lshr_b32 s53, s49, 1\ns_lshl_b32 s53, s53, 6\ns_and_b32 s55, s49, 1\ns_lshl_b32 s55, s55, 1\ns_add_u32 s53, s53, s55")
        A(f"s_mul_i32 s55, s45, {DM}\ns_add_u32 s53, s53, s55\ns_mul_i32 s53, s53, {DM*2}\ns_add_u32 s{SB_}, s53, s54")
        A(f"s_mov_b32 s{SB_+1}, {DM*2}\ns_mov_b32 s{SB_+2}, {8*DM*2}\ns_mov_b32 s{SB_+3}, {4*DM*2}")
        A(f"v_mul_u32_u24 v{vsrc}, {16*DM*2}, v7\nv_lshl_add_u32 v{vsrc}, v6, 3, v{vsrc}")
        A(f"{L}_done:")
        return "\n".join(t)
    def setup_wo(self, rnd, pwo, scr):
        L = self.a.label("rp")
        SD, SB_, SO, vsrc, dst = self.regs(rnd)
        t = []; A = t.append
        A(f"s_mul_hi_u32 s49, s47, {(2**32 + 8)//9}\ns_mul_i32 s50, s49, 9\ns_sub_u32 s50, s47, s50")
        A(f"s_mov_b32 s{SD+3}, 0x00020000\ns_lshl_b32 s54, s50, 7")
        A(f"s_mov_b32 s{SD}, s{pwo}\ns_mov_b32 s{SD+1}, s{pwo+1}\ns_cmp_lt_u32 s47, 162\ns_cselect_b32 s{SD+2}, {DM*DM*2}, 0\ns_cselect_b32 s56, 0, 0x40000000")
        for e in range(2):
            A(f"s_lshl_b32 s55, s50, 1\ns_add_u32 s55, s55, {e}\ns_mul_i32 s57, s55, 86\ns_lshr_b32 s57, s57, 8\ns_mul_i32 s58, s57, 3\ns_cmp_lt_u32 s49, s58\ns_cselect_b32 s58, 54, 0")
            A(f"s_mul_i32 s57, s57, 42\ns_add_u32 s55, s55, s57\ns_add_u32 s55, s55, s58\ns_mul_i32 s57, s49, 3\ns_add_u32 s55, s55, s57\ns_lshl_b32 s55, s55, 11\ns_add_u32 s{SO+e}, s55, s56")
        A(f"v_lshrrev_b32 v245, 3, v6\nv_lshlrev_b32 v245, 11, v245\nv_and_b32 v246, 7, v6\nv_lshl_add_u32 v245, v246, 5, v245\nv_lshl_add_u32 v245, v7, 8, v245\nv_add_u32 v{dst}, s{scr}, v245")
        A(f"s_mov_b32 s{SB_+3}, {DM*2}\ns_cmp_ge_u32 s49, 16\ns_cbranch_scc1 {L}_wo2")
        A(f"s_mul_i32 s53, s49, {36*DM*2}\ns_mov_b32 s{SB_+1}, {8*DM*2}\ns_mov_b32 s{SB_+2}, {2*DM*2}")
        A(f"v_lshrrev_b32 v246, 1, v7\nv_mul_u32_u24 v246, 18, v246\nv_and_b32 v247, 1, v7\nv_lshl_add_u32 v246, v247, 2, v246\ns_branch {L}_wo3")
        A(f"{L}_wo2:")
        A(f"s_sub_u32 s53, s49, 16\ns_mul_i32 s53, s53, {288*DM*2}\ns_add_u32 s53, s53, {16*DM*2}\ns_mov_b32 s{SB_+1}, {36*DM*2}\ns_mov_b32 s{SB_+2}, {18*DM*2}")
        A(f"v_mul_u32_u24 v246, 72, v7")
        A(f"{L}_wo3:")
        A(f"s_add_u32 s{SB_}, s53, s54\nv_mul_u32_u24 v{vsrc}, {DM*2}, v246\nv_lshl_add_u32 v{vsrc}, v6, 3, v{vsrc}")
        return "\n".join(t)
    def load(self, rnd, s_, flag=""):
        SD, SB_, SO, vsrc, dst = self.regs(rnd)
        raw = self.PR + 16 * rnd
        t = f"s_mov_b32 s55, s{SB_}\n"
        if s_ & 4: t += f"s_add_u32 s55, s55, s{SB_+1}\n"
        if s_ & 2: t += f"s_add_u32 s55, s55, s{SB_+2}\n"
        if s_ & 1: t += f"s_add_u32 s55, s55, s{SB_+3}\n"
        return t + f"buffer_load_dwordx2 v[{raw+2*s_}:{raw+2*s_+1}], v{vsrc}, s[{SD}:{SD+3}], s55 offen{flag}"
    def store(self, rnd, q_, flag=""):
        SD, SB_, SO, vsrc, dst = self.regs(rnd)
        raw = self.PR + 16 * rnd
        t = 196 + 4 * (q_ % 2)
        L = [f"v_perm_b32 v{t+j}, v{raw+2*(2*j+1)+(q_>>1)}, v{raw+2*(2*j)+(q_>>1)}, s{80+(q_&1)}" for j in range(4)]
        L.append(f"buffer_store_dwordx4 v[{t}:{t+3}], v{dst}, s[60:63], s{SO+q_} offen{flag}")
        return "\n".join(L)
    def touch(self, rnd):
        SD, SB_, SO, vsrc, dst = self.regs(rnd)
        return "s_mov_b64 exec, 0xff\nv_lshlrev_b32 v204, 7, v0\n" + "\n".join(f"buffer_load_dword v205, v204, s[60:63], s{SO+q} offen sc1" for q in range(4)) + "\ns_mov_b64 exec, -1"

def ffn_map(sj, smb):
    SL = OPT.get("k4_sl", 1); lg = SL.bit_length() - 1
    return (f"s_and_b32 s46, s2, 7\ns_lshr_b32 s47, s2, 3\ns_and_b32 s{sj}, s46, {8//SL-1}\ns_lshl_b32 s{sj}, s{sj}, {lg}\ns_and_b32 s48, s47, {SL-1}\ns_add_u32 s{sj}, s{sj}, s48\n"
            f"s_lshr_b32 s{smb}, s46, {3-lg}\ns_lshl_b32 s{smb}, s{smb}, {5-lg}\ns_lshr_b32 s48, s47, {lg}\ns_add_u32 s{smb}, s{smb}, s48\n")

def poll(a, n, voff, srd_, soff, vt, slp=2, first_loaded=False):
    L = a.label("poll")
    m = (1 << n) - 1
    a(f"s_mov_b32 s91, 0x10000\ns_mov_b32 exec_lo, {m & 0xffffffff}\ns_mov_b32 exec_hi, {m >> 32}" + (f"\ns_branch {L}_1" if first_loaded else ""))
    a(f"{L}:\nbuffer_load_dword v{vt}, v{voff}, s[{srd_}:{srd_+3}], s{soff} offen{OPT.get('pollf', ' sc1')}\ns_waitcnt vmcnt(0)\n{L}_1:\nv_cmp_eq_u32 vcc, s{SE}, v{vt}\ns_nop 1\ns_cmp_eq_u64 vcc, exec\ns_cbranch_scc1 {L}_ok\ns_sleep {slp}\ns_sub_u32 s91, s91, 1\ns_cbranch_scc0 {L}\n{L}_ok:")
    a("s_mov_b64 exec, -1")

K1_GRID = 256
K1_LDS = 159744 + 1280
def k1(a, st0):
    st = lambda i: st0({3: 30, 22: 31, 23: 30, 2: 31}[i]) if i in (2, 3, 22, 23) else None
    XLQ, XLK = 73728, 86016
    KVI = OPT.get('kvi', 21504)
    ST = OPT.get('k1_st', ' sc1')
    LATE = OPT.get('late', False)
    EPX = f's_load_dword s{SE}, s[14:15], 0'
    EP0 = '' if LATE else '\n' + EPX
    EP1 = EPX if LATE else ''
    kernel_begin(a, NAME + "_kernel")
    if OPT["codepf"]:
        a(f"s_cmp_ge_u32 s2, {OPT.get('pfn', 256)}\ns_cbranch_scc1 K1_nopf")
        a("s_getpc_b64 s[58:59]\nK1_pc:\nv_lshlrev_b32 v252, 7, v0\nv_min_u32 v252, K2_out-K1_pc, v252\nglobal_load_dword v253, v252, s[58:59]")
        a("K1_nopf:")
    a(f"s_cmp_lt_u32 s2, {K1_GRID}\ns_cbranch_scc1 K1_go\ns_endpgm\nK1_go:")
    a(f"s_load_dwordx4 s[4:7], s[0:1], {A_X}\ns_load_dwordx4 s[8:11], s[0:1], {A_WK}\ns_load_dwordx2 s[12:13], s[0:1], {A_WO}\ns_load_dwordx2 s[14:15], s[0:1], {K_WS}")
    st0.start()
    wave_lane(a)
    a(f"v_and_b32 v1, 15, v0\nv_lshrrev_b32 v2, 4, v0\ns_mov_b32 s{SW}, s3")
    if OPT.get("k1map", 0) == 1:
        a("s_and_b32 s62, s2, 7\ns_lshl_b32 s44, s62, 2\ns_bfe_u32 s61, s2, 0x20003\ns_add_u32 s44, s44, s61\ns_lshr_b32 s45, s2, 5")
        a(f"s_mul_i32 s60, s61, {OPT.get('rm', 1)}\ns_add_u32 s60, s60, s45\ns_add_u32 s60, s60, s62")
    else:
        a("s_bfe_u32 s44, s2, 0x20001\ns_lshl_b32 s44, s44, 3\ns_bfe_u32 s61, s2, 0x30003\ns_add_u32 s44, s44, s61\ns_and_b32 s45, s2, 1\ns_lshl_b32 s45, s45, 2\ns_lshr_b32 s62, s2, 6\ns_add_u32 s45, s45, s62")
        a("s_mul_i32 s60, s62, 9\ns_lshr_b32 s60, s60, 2\ns_add_u32 s60, s60, s61\ns_and_b32 s61, s2, 7\ns_add_u32 s60, s60, s61")
    S1 = OPT.get("seg", 5)
    if S1 < 9:
        S2 = 9 - S1
        a(f"s_mul_i32 s61, s60, {(4096 + S2 - 1)//S2}\ns_lshr_b32 s61, s61, 12\ns_mul_i32 s61, s61, {S2}\ns_sub_u32 s71, s60, s61")
        a(f"s_cmp_ge_u32 s45, 6\ns_cselect_b32 s71, 0, s71\ns_add_u32 s71, s71, {S1}")
    a(f"s_mul_i32 s61, s60, {(4096 + S1 - 1)//S1}\ns_lshr_b32 s61, s61, 12\ns_mul_i32 s61, s61, {S1}\ns_sub_u32 s60, s60, s61")
    def adv(slot, unit):
        if slot == S1 - 1 and S1 < 9: return f"s_mul_i32 s61, s71, {unit}"
        if slot < S1: return f"s_add_u32 s61, s61, {unit}\ns_cmp_eq_u32 s61, {S1*unit}\ns_cselect_b32 s61, 0, s61"
        return f"s_add_u32 s61, s61, {unit}\ns_cmp_eq_u32 s61, {9*unit}\ns_cselect_b32 s61, {S1*unit}, s61"
    a(f"s_cmp_ge_u32 s45, 6\ns_cselect_b32 s60, 0, s60\ns_mov_b32 s63, {XLQ}\ns_cselect_b32 s63, {XLK}, s63")
    a("v_lshrrev_b32 v4, 3, v0\nv_and_b32 v5, 7, v0\ns_lshl_b32 s90, s45, 5\ns_add_u32 s90, s90, s44")
    EX = 159744
    X0 = 16
    AR = 172
    ACC, CS, RS, GR, WF, ON = 88, 192, 112, 116, 120, 168
    ONr = f"v[{ON}:{ON+3}]"
    def V4(b): return f"v[{b}:{b+3}]"
    def lane_rc():
        a("v_lshrrev_b32 v10, 2, v1\nv_and_b32 v11, 3, v1\nv_lshl_add_u32 v12, v2, 3, v10")
    def xaddr(sbase):
        a(f"v_and_b32 v7, 7, v1\nv_xor_b32 v8, v2, v7\nv_lshlrev_b32 v8, 4, v8\nv_lshl_add_u32 v8, v1, 7, v8\nv_add_u32 v8, s{sbase}, v8\nv_xor_b32 v9, 64, v8")
        a("v_add_u32 v190, 0x8000, v8\nv_add_u32 v191, 0x8000, v9")
    def xrd(reg, ks, extra=0):
        p, e = divmod(ks, 2)
        b, o = (8 + e, 8192 * p) if p < 4 else (190 + e, 8192 * (p - 4))
        return f"ds_read_b128 {V4(reg)}, v{b} offset:{o + extra}"
    def waddr(shalf):
        a("v_lshrrev_b32 v13, 1, v10\nv_and_b32 v14, 1, v2\nv_lshl_add_u32 v13, v14, 1, v13")
        a("v_lshlrev_b32 v15, 7, v12\nv_lshl_add_u32 v15, v11, 3, v15\nv_lshlrev_b32 v7, 6, v12\nv_lshl_add_u32 v7, v11, 3, v7\nv_add_u32 v7, 4096, v7")
        a(f"s_cmp_eq_u32 s{shalf}, 1\ns_cselect_b64 vcc, -1, 0\ns_mul_i32 s55, s{shalf}, 3")
        a(f"v_xor_b32 v184, s55, v13\nv_lshl_add_u32 v{AR}, v184, 5, v15\nv_add_u32 v{AR+3}, 512, v{AR}")
        for t in (1, 2):
            a(f"v_xor_b32 v184, {t}, v13\nv_lshl_add_u32 v184, v184, 5, v15\nv_xor_b32 v185, {t-1}, v14\nv_lshl_add_u32 v185, v185, 5, v7")
            a(f"v_cndmask_b32 v{AR+t}, v184, v185, vcc\nv_add_u32 v184, 512, v184\nv_add_u32 v185, 256, v185\nv_cndmask_b32 v{AR+3+t}, v184, v185, vcc")
        for i in range(6): a(f"v_add_u32 v{AR+6+i}, {9*6144}, v{AR+i}")
    def wrd(reg, ks, t):
        hi = ks >= 9
        off = (ks - 9 * hi) * 6144
        return [f"ds_read_b64_tr_b16 v[{reg}:{reg+1}], v{AR+6*hi+t} offset:{off}", f"ds_read_b64_tr_b16 v[{reg+2}:{reg+3}], v{AR+6*hi+3+t} offset:{off}"]
    def stat_mfma(x, first):
        return [f"v_mfma_f32_16x16x32_bf16 {V4(RS)}, {ONr}, {V4(x)}, {'0' if first else V4(RS)}",
                f"v_mfma_f32_16x16x32_bf16 {V4(GR)}, {V4(x)}, {V4(x)}, {'0' if first else V4(GR)}"]
    def stats_out():
        a("v_cmp_eq_u32 vcc, 1, v11\nv_cmp_eq_u32 s[54:55], 2, v11\nv_cmp_eq_u32 s[56:57], 3, v11\nv_cmp_eq_u32 s[58:59], v10, v2\ns_nop 3")
        a(f"v_mul_f32 v4, {f32bits(-1.0/DM)}, v{RS}")
        a(f"v_cndmask_b32 v5, v{GR}, v{GR+1}, vcc\nv_cndmask_b32 v5, v5, v{GR+2}, s[54:55]\nv_cndmask_b32 v5, v5, v{GR+3}, s[56:57]\nv_cndmask_b32 v5, 0, v5, s[58:59]")
        sum_g(a, 5, 7)
        a(f"v_mul_f32 v5, {f32bits(1.0/DM)}, v5\nv_fma_f32 v5, -v4, v4, v5\nv_max_f32 v5, 0, v5\nv_add_f32 v5, {f32bits(1e-5)}, v5\nv_rsq_f32 v5, v5")
        a(f"s_lshl_b32 s54, s3, 7\ns_add_u32 s54, s54, {EX + 768}\nv_lshlrev_b32 v7, 3, v1\nv_add_u32 v7, s54, v7\nds_write_b64 v7, v[4:5]")
    if OPT.get("wtlb", False):
        a(f"s_cmp_lg_u32 s3, 7\ns_cbranch_scc1 K1_ntl\ns_load_dwordx4 s[24:27], s[0:1], {B_W1}\nv_lshlrev_b32 v250, 20, v0\ns_waitcnt lgkmcnt(0)")
        for b in (24, 26):
            a(f"s_mov_b32 s28, s{b}\ns_mov_b32 s29, s{b+1}\ns_mov_b32 s30, {DM*F*2}\ns_mov_b32 s31, 0x00020000\nbuffer_load_dword v251, v250, s[28:31], 0 offen nt")
        a("K1_ntl:")
    a("s_cmp_ge_u32 s3, 4\ns_cbranch_scc1 K1_ld")
    a("s_lshl_b32 s46, s44, 6\ns_lshl_b32 s47, s3, 4\ns_add_u32 s46, s46, s47")
    a(f"s_mul_i32 s47, s46, {DM*2}")
    a(f"v_xor_b32 v6, v4, v5\nv_mul_u32_u24 v3, {DM*2}, v4\nv_lshl_add_u32 v3, v6, 4, v3\nv_add_u32 v6, {8*DM*2 - 1024}, v3")
    a(f"s_lshl_b32 s61, s60, 7\ns_lshl_b32 s64, s3, 11\ns_add_u32 s64, s63, s64\ns_mov_b32 s66, s64")
    a(f"s_waitcnt lgkmcnt(0){EP0}")
    srd(a, 16, 4, 0, T*DM*2)
    def xdma(slot):
        return ("s_mov_b32 m0, s64\ns_add_u32 s62, s47, s61\ns_add_u32 s64, s64, 8192\n"
                "buffer_load_dwordx4 v3, s[16:19], s62 offen lds\nbuffer_load_dwordx4 v6, s[16:19], s62 offen offset:1024 lds\n"
                + adv(slot, 128))
    XA = OPT.get("k1_xa", 3)
    a(f"s_mov_b32 s70, {XA}\nK1_xl:"); assert XA < S1; a(xdma(0)); a("s_sub_u32 s70, s70, 1\ns_cmp_lg_u32 s70, 0\ns_cbranch_scc1 K1_xl\ns_branch K1_comp")
    a("K1_ld:")
    if OPT.get("lprio", 3): a(f"s_setprio {OPT.get('lprio', 3)}")
    a("s_cmp_eq_u32 s45, 7\ns_cbranch_scc1 K1_worp")
    a("s_sub_u32 s3, s3, 4")
    a("s_cmp_lg_u32 s45, 6\ns_cbranch_scc1 K1_qld")
    a(f"v_lshlrev_b32 v3, 4, v0\ns_and_b32 s48, s3, 1\ns_lshl_b32 s48, s48, 2\ns_mul_i32 s49, s3, {KVI}")
    a(f"s_waitcnt lgkmcnt(0){EP0}")
    a(f"s_cmp_lt_u32 s3, 2\ns_cselect_b32 s24, s8, s10\ns_cselect_b32 s25, s9, s11\ns_mov_b32 s26, {DM*DH*2}\ns_mov_b32 s27, 0x00020000")
    a(f"s_add_u32 s70, s49, {21*1024}\nK1_kl:\ns_mov_b32 m0, s49\ns_add_u32 s49, s49, 1024\nbuffer_load_dwordx4 v3, s[24:27], s48 offen lds\ns_add_u32 s48, s48, 1024\ns_cmp_lg_u32 s49, s70\ns_cbranch_scc1 K1_kl\ns_branch K1_kvload")
    a("K1_qld:")
    a("v_and_b32 v6, 1, v2\ns_and_b32 s48, s3, 1\ns_lshl_b32 s48, s48, 2\nv_lshlrev_b32 v6, 1, v6\nv_or_b32 v6, s48, v6\nv_xor_b32 v6, v6, v5")
    a(f"v_mul_u32_u24 v3, {DM*2}, v4\nv_lshl_add_u32 v3, v6, 4, v3")
    a("v_lshrrev_b32 v7, 5, v0\nv_lshlrev_b32 v7, 1, v7\nv_and_b32 v6, 3, v0\nv_xor_b32 v7, v7, v6\nv_lshrrev_b32 v6, 2, v0")
    a(f"v_mul_u32_u24 v6, {DM*2}, v6\nv_lshl_add_u32 v6, v7, 4, v6")
    a("s_mul_i32 s48, s45, 192\ns_and_b32 s53, s45, 1\ns_lshl_b32 s54, s53, 6\ns_add_u32 s49, s48, s54\ns_xor_b32 s53, s53, 1\ns_lshl_b32 s53, s53, 7\ns_add_u32 s50, s48, s53")
    a(f"s_mul_i32 s53, s3, {8*DM*2}\ns_add_u32 s49, s49, s53\ns_mul_i32 s53, s3, {16*DM*2}\ns_add_u32 s50, s50, s53")
    a("s_lshl_b32 s51, s3, 10")
    a("s_lshr_b32 s52, s3, 1\ns_mul_i32 s52, s52, 6144\ns_and_b32 s53, s3, 1\ns_lshl_b32 s53, s53, 10\ns_add_u32 s52, s52, s53\ns_add_u32 s52, s52, 4096")
    a(f"s_mul_i32 s61, s60, {64*DM*2}")
    a(f"s_waitcnt lgkmcnt(0){EP0}")
    srd(a, 20, 6, 0, DM*DM*2)
    def wdma(slot):
        a(f"s_add_u32 s62, s49, s61\ns_add_u32 s65, s50, s61\ns_add_u32 s64, s62, {32*DM*2}")
        a(f"s_mov_b32 m0, s51\ns_add_u32 s51, s51, 6144\nbuffer_load_dwordx4 v3, s[20:23], s62 offen lds")
        a(f"s_mov_b32 m0, s52\ns_add_u32 s52, s52, 12288\nbuffer_load_dwordx4 v6, s[20:23], s65 offen lds")
        a(f"s_mov_b32 m0, s51\ns_add_u32 s51, s51, 6144\nbuffer_load_dwordx4 v3, s[20:23], s64 offen lds")
        a(adv(slot, 64*DM*2))
    LA = OPT.get('k1_la', 2)
    a(f"s_mov_b32 s70, {LA}\nK1_wl:"); assert LA < S1; wdma(0); a("s_sub_u32 s70, s70, 1\ns_cmp_lg_u32 s70, 0\ns_cbranch_scc1 K1_wl")
    lane_rc()
    a("s_lshl_b32 s66, s3, 11\ns_add_u32 s66, s66, s63\ns_lshr_b32 s67, s3, 1")
    xaddr(66); waddr(67)
    a("s_and_b32 s55, s3, 1\ns_mul_i32 s55, s55, 6144")
    for i in range(12): a(f"v_add_u32 v{AR+i}, s55, v{AR+i}")
    for r in range(4): a(f"v_mov_b32 v{ON+r}, {ONES}")
    XE = 56
    for p in range(10):
        if p < 9:
            a(f"s_waitcnt vmcnt({3*(min(p + LA, 9) - p - 1)}) lgkmcnt(0)\ns_barrier")
            b = (p % 2) * 20
            if p == 0: a(EP1)
            if p < 8:
                a(xrd(X0 + b, 2*p)); a(xrd(X0 + b + 4, 2*p + 1))
            if p == 7:
                a(xrd(XE, 16)); a(xrd(XE + 4, 17))
            for t in range(3):
                for x in wrd(X0 + b + 8 + 4*t, 2*p if p != 4 else 8, t): a(x)
        else:
            a("s_waitcnt lgkmcnt(0)")
        if p > 0:
            b = ((p - 1) % 2) * 20
            if p < 9:
                for x in stat_mfma(X0 + b, p == 1) + stat_mfma(X0 + b + 4, False): a(x)
            if p == 8:
                for x in stat_mfma(XE, False) + stat_mfma(XE + 4, False): a(x)
            for t in range(3):
                a(f"v_mfma_f32_16x16x32_bf16 {V4(CS+4*t)}, {V4(X0+b+8+4*t)}, {ONr}, {'0' if p == 1 else V4(CS+4*t)}")
            if p == 8: stats_out()
        if p + LA < 9: wdma(p + LA)
    a(f"s_mul_i32 s54, s3, 192\ns_add_u32 s54, s54, {EX}\nv_lshlrev_b32 v7, 4, v2\nv_add_u32 v7, s54, v7\ns_nop 3")
    for t in range(3): a(f"ds_write_b128 v7, {V4(CS+4*t)} offset:{64*t}")
    a("s_waitcnt lgkmcnt(0)\ns_barrier\ns_branch K1_fin")
    a("K1_comp:")
    st(0)
    lane_rc()
    a("s_cmp_ge_u32 s45, 6\ns_cbranch_scc1 K1_kvgemm")
    a("s_and_b32 s68, s3, 1\ns_lshl_b32 s66, s68, 12\ns_add_u32 s66, s66, s63\ns_lshr_b32 s67, s3, 1")
    xaddr(66); waddr(67)
    ws_srd(a, 32, "Q", 14)
    def frags(ks):
        b = X0 + (ks % 2) * 20
        L = [xrd(b, ks), xrd(b + 4, ks, 2048)]
        for t in range(3): L += wrd(b + 8 + 4*t, ks, t)
        return L
    nx = XA
    a(f"s_waitcnt vmcnt({2*XA-2})\ns_barrier")
    st(2)
    a(EP1)
    for x in frags(0): a(x)
    for ks in range(18):
        p = ks // 2
        if ks % 2 == 1 and ks < 17:
            a(f"s_waitcnt vmcnt({2*(nx - p - 2) if ks < 13 else 0})" + (" lgkmcnt(6)" if ks == 9 else "") + "\ns_barrier")
        b = X0 + (ks % 2) * 20
        nf = frags(ks + 1) if ks < 17 else []
        issued = 0
        for t in range(3):
            a(f"s_waitcnt lgkmcnt({4 - 2*t + issued})")
            for m in range(2):
                d = ACC + (t*2 + m) * 4
                a(f"v_mfma_f32_16x16x32_bf16 {V4(d)}, {V4(b+8+4*t)}, {V4(b+4*m)}, {'0' if ks == 0 else V4(d)}")
                for x in nf[:2]: a(x); issued += 1
                nf = nf[2:]
        if ks % 2 == 0 and nx < 9:
            a(xdma(nx)); nx += 1
    st(3)
    a("v_lshlrev_b32 v3, 3, v0")
    a(f"s_lshl_b32 s48, s44, 1\ns_add_u32 s48, s48, s68\ns_mul_i32 s48, s48, {4*9216}")
    a("s_mul_i32 s49, s45, 6\ns_and_b32 s50, s45, 1\ns_lshl_b32 s51, s50, 1\ns_add_u32 s51, s51, s49\ns_lshl_b32 s50, s50, 2\ns_sub_u32 s52, s49, s50\ns_mul_i32 s69, s67, 3")
    a(f"s_mul_i32 s54, s67, 384\ns_add_u32 s54, s54, {EX}\nv_lshlrev_b32 v7, 4, v2\nv_add_u32 v7, s54, v7")
    a(f"s_lshl_b32 s54, s68, 8\ns_add_u32 s54, s54, {EX + 768}\nv_lshlrev_b32 v8, 3, v1\nv_add_u32 v8, s54, v8")
    a("s_barrier")
    a("ds_read_b64 v[12:13], v8\nds_read_b64 v[14:15], v8 offset:128")
    for i in range(6): a(f"ds_read_b128 {V4(CS+4*i)}, v7 offset:{64*i}")
    a(f"s_waitcnt lgkmcnt(0)\nv_mul_f32 v13, {f32bits(QSCALE)}, v13\nv_mul_f32 v15, {f32bits(QSCALE)}, v15")
    for t in range(3):
        a(f"s_add_u32 s53, s69, {t}\ns_cmp_lt_u32 s53, 4\ns_cselect_b32 s54, s51, s52\ns_add_u32 s53, s53, s54")
        a("s_mul_i32 s54, s53, 57\ns_lshr_b32 s54, s54, 9\ns_mul_i32 s54, s54, 4608\ns_lshl_b32 s53, s53, 9\ns_add_u32 s53, s53, s54\ns_add_u32 s53, s53, s48\ns_add_u32 s55, s53, 4608")
        for r in range(4): a(f"v_add_f32 v{CS+4*t+r}, v{CS+4*t+r}, v{CS+12+4*t+r}")
        for m in range(2):
            b = ACC + (t*2 + m) * 4
            for r in range(4): a(f"v_fmac_f32 v{b+r}, v{CS+4*t+r}, v{12+2*m}\nv_mul_f32 v{b+r}, v{b+r}, v{13+2*m}")
            a(f"v_cvt_pk_bf16_f32 v{b}, v{b}, v{b+1}\nv_cvt_pk_bf16_f32 v{b+1}, v{b+2}, v{b+3}")
            a(f"buffer_store_dwordx2 v[{b}:{b+1}], v3, s[32:35], s{53+2*m} offen{ST}")
    a("s_branch K1_fin")
    def kaddr():
        a(f"v_mul_u32_u24 v13, 36, v12\nv_lshl_add_u32 v13, v11, 3, v13\nv_and_b32 v14, 1, v10\nv_mul_u32_u24 v14, {KVI - 4}, v14\nv_add_u32 v{AR}, v13, v14")
        a(f"v_mul_u32_u24 v13, 36, v12\nv_add_u32 v{AR+1}, v13, v14")
    a("K1_kvload:")
    lane_rc()
    a("s_lshl_b32 s66, s3, 11\ns_add_u32 s66, s66, s63")
    xaddr(66)
    for r in range(4): a(f"v_mov_b32 v{ON+r}, {ONES}")
    ws_srd(a, 40, "MEAN1", 14)
    a(f"s_lshl_b32 s46, s44, 2\ns_add_u32 s46, s46, s3")
    a("s_waitcnt vmcnt(0)\ns_barrier")
    for ks in range(8): a(xrd(X0 + 4*ks, ks))
    for ks in range(18):
        a(f"s_waitcnt lgkmcnt({min(7, 17 - ks)})")
        for x in stat_mfma(X0 + 4*ks, ks == 0): a(x)
        if ks + 8 < 18: a(xrd(X0 + 4*(ks + 8), ks + 8))
    a("s_nop 3")
    stats_out()
    a("s_waitcnt lgkmcnt(0)\ns_barrier")
    a("v_sub_f32 v9, 0, v4\nv_lshlrev_b32 v7, 2, v0\ns_lshl_b32 s49, s46, 7\ns_mov_b32 exec_lo, -1\ns_mov_b32 exec_hi, 0\nbuffer_store_dword v9, v7, s[40:43], s49 offen sc1\ns_mov_b64 exec, -1")
    a("s_barrier\ns_branch K1_fin")
    a(f"K1_worp:\ns_waitcnt lgkmcnt(0){EP0}\nv_lshlrev_b32 v3, 4, v0")
    rp = Repack(a)
    a(rp.common())
    if OPT.get("wolate", True): a("s_barrier")
    for rnd in range(2):
        a(f"s_lshl_b32 s47, s44, 2\ns_add_u32 s47, s47, s3\ns_add_u32 s47, s47, {128*rnd - 4 & 0xffffffff}")
        a(f"s_lshl_b32 s59, s3, 13\ns_sub_u32 s59, s59, {32768 - 4096 - 4096*rnd}\nv_add_u32 v{16+rnd}, s59, v3")
        a(rp.setup_wo(rnd, 12, 59))
        for n in range(8): a(rp.load(rnd, n))
    for rnd in range(2):
        a(f"s_waitcnt vmcnt({8 if rnd == 0 else 4})")
        for n in range(4):
            t = rp.store(rnd, n).split("\n")[:4]
            a("\n".join(t) + f"\nds_write_b128 v{240+rnd}, v[{196+4*(n%2)}:{199+4*(n%2)}] offset:{(n&1)*1024 + (n>>1)*16}")
        for n in range(4): a(f"ds_read_b128 v[{32+16*rnd+4*n}:{35+16*rnd+4*n}], v{16+rnd} offset:{1024*n}")
        for n in range(4): a(f"s_waitcnt lgkmcnt({3-n})\nbuffer_store_dwordx4 v[{32+16*rnd+4*n}:{35+16*rnd+4*n}], v3, s[60:63], s{82+4*rnd+(n>>1)} offen offset:{1024*(n&1)} sc1")
    a("s_branch K1_fin")
    a("K1_kvgemm:")
    a("s_cmp_eq_u32 s45, 7\ns_cbranch_scc1 K1_wbar")
    for p in range(XA, 9): a(xdma(p))
    xaddr(63); kaddr()
    a(f"s_cmp_ge_u32 s3, 2\ns_cselect_b64 vcc, -1, 0\ns_and_b32 s55, s3, 1\ns_mul_i32 s55, s55, {2*KVI}\ns_lshr_b32 s56, s3, 1\ns_lshl_b32 s56, s56, 5\ns_add_u32 s55, s55, s56")
    a(f"v_cndmask_b32 v{AR}, v{AR}, v{AR+1}, vcc\nv_add_u32 v{AR}, s55, v{AR}")
    for r in range(4): a(f"v_mov_b32 v{ON+r}, {ONES}")
    ws_srd(a, 36, "KV", 14)
    a(f"s_mul_i32 s48, s44, {PAIR}")
    def kread(ks):
        b = X0 + (ks % 3) * 20
        return [f"ds_read_b64_tr_b16 v[{b}:{b+1}], v{AR} offset:{ks*1152}", f"ds_read_b64_tr_b16 v[{b+2}:{b+3}], v{AR} offset:{ks*1152 + 144}"] + \
               [xrd(b + 4 + 4*m, ks, 2048*m) for m in range(4)]
    a("s_waitcnt vmcnt(0)\ns_barrier")
    st(22)
    for x in kread(0) + kread(1): a(x)
    a("s_bitcmp1_b32 s3, 0\ns_cbranch_scc1 K1_vform")
    for form in range(2):
        if form: a("K1_vform:")
        for ks in range(18):
            b = X0 + (ks % 3) * 20
            fill = kread(ks + 2) if ks < 16 else []
            a(f"s_waitcnt lgkmcnt({6 if ks < 17 else 0})")
            for m in range(5):
                d, o = (ACC + 4*m, V4(b + 4 + 4*m)) if m < 4 else (CS, ONr)
                A_, B_ = (V4(b), o) if form == 0 else (o, V4(b))
                a(f"v_mfma_f32_16x16x32_bf16 {V4(d)}, {A_}, {B_}, {'0' if ks == 0 else V4(d)}")
                n = 2 if m == 0 else 1
                for y in fill[:n]: a(y)
                fill = fill[n:]
        st(23)
        if form == 0:
            a(f"v_lshlrev_b32 v7, 3, v1\nv_add_u32 v7, {EX + 768}, v7")
            a("v_lshrrev_b32 v8, 1, v2\nv_lshlrev_b32 v8, 9, v8\nv_lshl_add_u32 v8, v1, 4, v8\nv_and_b32 v9, 1, v2\nv_lshl_add_u32 v8, v9, 3, v8\nv_lshlrev_b32 v9, 2, v1")
            a("s_barrier")
            for m in range(4): a(f"ds_read_b64 v[{216+2*m}:{217+2*m}], v7 offset:{128*m}")
            a("s_waitcnt lgkmcnt(0)")
            for m in range(4):
                b = ACC + 4*m
                for r in range(4): a(f"v_fmac_f32 v{b+r}, v{CS+r}, v{216+2*m}\nv_mul_f32 v{b+r}, v{b+r}, v{217+2*m}")
                a(f"v_cvt_pk_bf16_f32 v{b}, v{b}, v{b+1}\nv_cvt_pk_bf16_f32 v{b+1}, v{b+2}, v{b+3}")
            a("s_cmp_lg_u32 s3, 0\ns_cbranch_scc1 K1_k2p")
            for m in range(4): a(f"ds_write_b64 v8, v[{ACC+4*m}:{ACC+4*m+1}] offset:{(m>>1)*1024 + (m&1)*256}")
            a("s_branch K1_kvst\nK1_k2p:\ns_mov_b64 exec, 0xffff")
            for m in range(4): a(f"ds_write_b32 v9, v{ACC+4*m} offset:{2048 + 64*m}")
            a("s_mov_b64 exec, -1\ns_branch K1_kvst")
        else:
            a(f"v_lshlrev_b32 v7, 5, v2\nv_add_u32 v7, {EX + 768}, v7")
            a("v_and_b32 v8, 1, v2\nv_mul_u32_u24 v8, 19, v8\nv_add_u32 v8, v8, v1\nv_lshlrev_b32 v8, 4, v8\nv_lshrrev_b32 v10, 1, v2\nv_lshl_add_u32 v8, v10, 3, v8")
            a("s_lshr_b32 s56, s3, 1\ns_lshl_b32 s56, s56, 8\nv_add_u32 v8, s56, v8\nv_cmp_eq_u32 s[54:55], 2, v1\nv_cmp_gt_u32 s[58:59], 3, v1\ns_nop 1")
            a("s_cmp_eq_u32 s3, 3\ns_cselect_b64 s[54:55], s[54:55], 0\ns_cselect_b64 s[58:59], s[58:59], -1")
            a("s_barrier")
            for m in range(4): a(f"ds_read_b128 v[{216+8*m}:{219+8*m}], v7 offset:{128*m}\nds_read_b128 v[{220+8*m}:{223+8*m}], v7 offset:{128*m+16}")
            a("s_waitcnt lgkmcnt(0)")
            for m in range(4):
                b = ACC + 4*m
                for r in range(4): a(f"v_fmac_f32 v{b+r}, v{CS}, v{216+8*m+2*r}\nv_mul_f32 v{b+r}, v{b+r}, v{217+8*m+2*r}")
                a(f"v_cvt_pk_bf16_f32 v{b}, v{b}, v{b+1}\nv_cvt_pk_bf16_f32 v{b+1}, v{b+2}, v{b+3}")
                a(f"v_cndmask_b32 v{b}, v{b}, v{ON}, s[54:55]\nv_cndmask_b32 v{b+1}, v{b+1}, v{ON}, s[54:55]")
            a("s_mov_b64 exec, s[58:59]")
            for m in range(4): a(f"ds_write_b64 v8, v[{ACC+4*m}:{ACC+4*m+1}] offset:{2304 + 608*m}")
            a("s_mov_b64 exec, -1")
    a("K1_kvst:")
    a("s_lshl_b32 s49, s3, 10\nv_lshlrev_b32 v3, 4, v0\nv_add_u32 v3, s49, v3\ns_waitcnt lgkmcnt(0)\ns_barrier")
    a("ds_read_b128 v[16:19], v3\nds_read_b128 v[20:23], v3 offset:1024\ns_waitcnt lgkmcnt(1)\nbuffer_store_dwordx4 v[16:19], v3, s[36:39], s48 offen sc1")
    a("s_waitcnt lgkmcnt(0)\ns_cmp_lg_u32 s3, 3\ns_cbranch_scc1 K1_fin\ns_mov_b32 exec_hi, 0xff\nbuffer_store_dwordx4 v[20:23], v3, s[36:39], s48 offen offset:1024 sc1\ns_mov_b64 exec, -1")
    a("s_branch K1_fin")
    a("K1_wbar:")
    for p in range(XA, 9): a(xdma(p))
    if OPT.get("wolate", True): a("s_waitcnt vmcnt(12)\ns_barrier")
    srd(a, 24, 12, 0, DM*DM*2)
    a("s_cmp_lt_u32 s44, 18\ns_cselect_b32 s26, s26, 0")
    a("s_cmp_ge_u32 s44, 16\ns_cbranch_scc1 K1_wb_hi")
    a("s_mul_i32 s50, s44, 36\ns_lshr_b32 s51, s3, 1\ns_mul_i32 s51, s51, 18\ns_add_u32 s50, s50, s51\ns_and_b32 s51, s3, 1\ns_lshl_b32 s51, s51, 2\ns_add_u32 s50, s50, s51")
    a("v_lshrrev_b32 v13, 2, v4\nv_lshlrev_b32 v13, 3, v13\nv_and_b32 v14, 3, v4\nv_add_u32 v13, v13, v14")
    a("s_branch K1_wb_go")
    a("K1_wb_hi:")
    a("s_sub_u32 s50, s44, 16\ns_mul_i32 s50, s50, 288\ns_mul_i32 s51, s3, 72\ns_add_u32 s50, s50, s51\ns_add_u32 s50, s50, 16")
    a("v_lshrrev_b32 v13, 1, v4\nv_mul_u32_u24 v13, 18, v13\nv_and_b32 v14, 1, v4\nv_add_u32 v13, v13, v14")
    a("K1_wb_go:")
    a(f"s_mul_i32 s50, s50, {DM*2}\nv_mul_u32_u24 v13, {DM*2}, v13\nv_lshl_add_u32 v13, v5, 4, v13")
    for i in range(9):
        a(f"buffer_load_dwordx4 v[{100+4*i}:{103+4*i}], v13, s[24:27], s50 offen offset:{128*i}")
    xaddr(66)
    ws_srd(a, 68, "XC", 14)
    ws_srd(a, 20, "WBAR", 14)
    a(f"v_lshlrev_b32 v3, 4, v0\ns_lshr_b32 s48, s46, 4\ns_mul_i32 s48, s48, 18432\ns_waitcnt vmcnt(9)")
    for ks in range(18): a(xrd(X0 + 4*ks, ks))
    a("s_waitcnt vmcnt(0)\ns_cmp_ge_u32 s44, 18\ns_cbranch_scc1 K1_xc")
    a(f"s_mov_b32 s56, {ONES}\nv_mov_b32 v6, 0\nv_mov_b32 v7, 0")
    for i in range(36):
        a(f"v_dot2_f32_bf16 v{6+i%2}, v{100+i}, s56, v{6+i%2}")
    a("s_nop 2\nv_add_f32 v6, v6, v7\ns_nop 1")
    for x in (1, 2, 4):
        a(f"ds_swizzle_b32 v7, v6 offset:{(x << 10) | 0x1f}\ns_waitcnt lgkmcnt(0)\nv_add_f32 v6, v6, v7")
    a(f"v_mul_f32 v6, {f32bits(1.0/DM)}, v6")
    a("v_cvt_pk_bf16_f32 v7, v6, v6\nv_lshlrev_b32 v8, 16, v7\nv_sub_f32 v8, v6, v8\nv_cvt_pk_bf16_f32 v8, v8, v8")
    a(f"s_lshl_b32 s47, s3, 8\nv_lshlrev_b32 v9, 5, v5\nv_lshl_add_u32 v9, v4, 1, v9\nv_add_u32 v9, s47, v9\nds_write_b16 v9, v7\nds_write_b16 v9, v8 offset:16")
    a("v_lshlrev_b32 v9, 2, v0\nv_add_u32 v10, s47, v9\nds_read_b32 v7, v10\ns_lshl_b32 s50, s44, 10\ns_add_u32 s50, s50, s47\ns_add_u32 s51, s50, 18432\ns_waitcnt lgkmcnt(0)")
    a("buffer_store_dword v7, v9, s[20:23], s50 offen sc1\nbuffer_store_dword v7, v9, s[20:23], s51 offen sc1")
    a("K1_xc:\ns_waitcnt lgkmcnt(0)")
    for ks in range(18):
        if ks and ks % 4 == 0: a("s_add_u32 s48, s48, 4096")
        a(f"buffer_store_dwordx4 {V4(X0+4*ks)}, v3, s[68:71], s48 offen offset:{(ks%4)*1024}{ST}")
    a("K1_fin:")

K2_GRID = 256
K2_LDS = 32 * PAIR + 9216
def k2(a, st, force_fallback=False):
    FB = WS["FLAG"][0]
    a(f"s_mov_b32 s3, s{SW}\ns_waitcnt lgkmcnt(0)")
    ws_srd(a, 36, "FLAG", 14)
    a(f"s_mul_i32 s{SE}, s{SE}, 0x9e3779b1\ns_add_u32 s{SE}, s{SE}, 0x7f4a7c15\nv_mov_b32 v4, s{SE}\nv_lshlrev_b32 v5, 2, v0\ns_lshl_b32 s45, s90, 7\ns_add_u32 s45, s45, {FL_AF}")
    st(19)
    a("s_waitcnt vmcnt(0)\ns_barrier")
    a("s_cmp_lg_u32 s3, 0\ns_cbranch_scc1 K2_naf\ns_mov_b32 exec_lo, -1\ns_mov_b32 exec_hi, 0\nbuffer_store_dword v4, v5, s[36:39], s45 offen sc1\ns_mov_b64 exec, -1\nK2_naf:")
    a(f"s_setprio 0\ns_load_dwordx2 s[4:5], s[0:1], {K_OUT}\ns_load_dwordx4 s[8:11], s[0:1], {B_W1}")
    a("v_and_b32 v1, 31, v0\nv_lshrrev_b32 v2, 5, v0\nv_lshlrev_b32 v3, 4, v0")
    st(17)
    if OPT.get("amap", 1): a("s_and_b32 s93, s2, 7\ns_lshl_b32 s93, s93, 5\ns_lshr_b32 s40, s2, 3\ns_add_u32 s93, s93, s40")
    else: a("s_mov_b32 s93, s2")
    a("s_lshr_b32 s40, s93, 2\ns_and_b32 s41, s93, 3\ns_lshl_b32 s41, s41, 3\ns_add_u32 s41, s41, s3")
    a(f"s_mul_i32 s42, s93, 9216\ns_lshl_b32 s43, s3, 10\ns_add_u32 s42, s42, s43\ns_add_u32 s43, s43, {32*PAIR}")
    a("s_lshl_b32 s44, s3, 10")
    ws_srd(a, 16, "KV", 14)
    ws_srd(a, 20, "Q", 14)
    Q1, Q2 = 8, 12
    def dma(r):
        txt = f"s_mov_b32 m0, s44\ns_nop 0\nbuffer_load_dwordx4 v3, s[16:19], s44 offen sc1 lds\ns_add_u32 s44, s44, 8192"
        if r == 18:
            L = a.label("dm")
            txt = f"s_cmp_ge_u32 s3, 4\ns_cbranch_scc1 {L}\n{txt}\n{L}:"
        return txt
    rp = Repack(a)
    nt_ = " nt" if OPT["k2_nt"] else ""
    def uidx(rnd):
        t = ("" if rnd else ffn_map(34, 35)) + f"s_mov_b32 s45, s34\ns_mul_i32 s47, s35, 11\ns_add_u32 s47, s47, s3\n"
        if rnd: t += "s_add_u32 s47, s47, 3\ns_cmp_lt_u32 s3, 5\ns_cselect_b32 s47, 400, s47\n"
        return t
    def RPS(): return [rp.common() + "\n" + uidx(0) + rp.setup_ffn(0, 8, 10), uidx(1) + rp.setup_ffn(1, 8, 10)]
    for d in (60, 64, 68):
        a(f"s_mov_b32 s{d}, s14\ns_mov_b32 s{d+1}, s15\ns_mov_b32 s{d+2}, 0\ns_mov_b32 s{d+3}, 0x00020000")
    a("v_mov_b32 v240, 0\nv_mov_b32 v241, 0\nv_mov_b32 v242, 0\nv_mov_b32 v243, 0")
    a("s_and_b32 s45, s93, 3\ns_mul_i32 s45, s45, 3\ns_lshr_b32 s45, s45, 1\ns_lshl_b32 s45, s45, 5\ns_lshr_b32 s46, s93, 3\ns_add_u32 s45, s45, s46")
    a("v_add_u32 v30, 192, v0\nv_lshlrev_b32 v31, 5, v1\nv_add_u32 v31, s45, v31\nv_cmp_gt_u32 vcc, 32, v0\ns_nop 1\nv_cndmask_b32 v30, v31, v30, vcc\nv_lshlrev_b32 v30, 7, v30")
    a(f"s_mov_b32 s45, {FL_AF}")
    if OPT.get("a_one", True):
        a("s_cmp_lg_u32 s3, 1\ns_cbranch_scc1 K2_np")
        poll(a, 34, 30, 36, 45, 31, OPT.get("a_slp", 2))
        if OPT.get("rps", 2) == 2:
            r_ = RPS()
            a("s_branch K2_nb\nK2_np:\ns_waitcnt lgkmcnt(0)"); a(r_[0]); a("s_cmp_lt_u32 s3, 5\ns_cbranch_scc1 K2_nb"); a(r_[1]); a("K2_nb:\ns_barrier")
        else:
            a("K2_np:\ns_barrier")
    else:
        poll(a, 34, 30, 36, 45, 31, OPT.get("a_slp", 2))
    st(18)
    a("s_cmp_lg_u32 s3, 0\ns_cbranch_scc1 K2_q1")
    a(f"s_mov_b32 m0, {32*PAIR + 8192}\ns_add_u32 s45, s42, 8192\nbuffer_load_dwordx4 v3, s[20:23], s45 offen sc1 lds")
    a("K2_q1:")
    a("s_mov_b32 m0, s43\ns_nop 0\nbuffer_load_dwordx4 v3, s[20:23], s42 offen sc1 lds")
    a(dma(0)); a(dma(1)); a(dma(2))
    if OPT.get('sync4', True): a(dma(3))
    a(f"v_mov_b32 v{Q2+1}, 0")
    ws_srd(a, 24, "O", 14)
    a(f"v_lshrrev_b32 v4, 4, v1\nv_mul_u32_u24 v4, 4608, v4\nv_and_b32 v5, 15, v1\nv_lshl_add_u32 v4, v5, 3, v4\nv_add_u32 v4, {32*PAIR}, v4")
    a("s_mul_i32 s45, s3, 9\nv_lshlrev_b32 v5, 2, v2\nv_add_u32 v5, s45, v5")
    for i in range(5):
        if i < 4: a(f"v_add_u32 v30, {i}, v5")
        else: a("s_add_u32 s45, s45, 8\nv_mov_b32 v30, s45")
        a(f"v_lshrrev_b32 v31, 1, v30\nv_lshl_add_u32 v31, v31, 7, v4\nv_and_b32 v30, 1, v30\nv_lshl_add_u32 v{25+i}, v30, 2, v31")
    SEG = 13
    VKA, VK2, VVA = 14, 17, 20
    a(f"v_mul_u32_u24 v23, 19, v2\nv_add_u32 v23, v23, v1\nv_lshlrev_b32 v23, 4, v23\nv_mov_b32 v24, 0x40000\nv_cmp_gt_u32 vcc, 19, v1\ns_nop 1\nv_cndmask_b32 v{VVA}, v24, v23, vcc")
    a(f"v_mov_b32 v{VKA}, v3\nv_lshlrev_b32 v{VK2}, 2, v0")
    for b in (VKA, VK2, VVA):
        a(f"v_add_u32 v{b+1}, {SEG*PAIR}, v{b}\nv_add_u32 v{b+2}, {2*SEG*PAIR}, v{b}")
    SA, SB, P, O, NM = 32, 64, 96, 112, 128
    KF, K2F, VF = 144, 160, 164
    FOLD = OPT.get("fold", True)
    a(f"v_mov_b32 v{K2F+1}, {ONES if FOLD else 0}\nv_mov_b32 v{K2F+3}, {ONES if FOLD else 0}")
    for r in range(16): a(f"v_mov_b32 v{O+r}, 0")
    def w3(txt):
        L = a.label("w3")
        return (f"s_cmp_lt_u32 s3, 5" if OPT.get("w3hi", True) else f"s_cmp_ge_u32 s3, 3") + f"\ns_cbranch_scc1 {L}\n{txt}\n{L}:"
    def seg(p): return p // SEG, (p % SEG) * PAIR
    def rdK(i, p):
        sg, o = seg(p)
        return [f"ds_read_b128 v[{KF+8*i}:{KF+8*i+3}], v{VKA+sg} offset:{o}",
                f"ds_read_b128 v[{KF+8*i+4}:{KF+8*i+7}], v{VKA+sg} offset:{o+1024}",
                f"ds_read_b32 v{K2F+2*i}, v{VK2+sg} offset:{o+2048}"]
    def rdV(i, p):
        sg, o = seg(p)
        return [f"ds_read_b128 v[{VF+16*i+4*q}:{VF+16*i+4*q+3}], v{VVA+sg} offset:{o+2304+608*q}" for q in range(4)]
    def qk(S, i, c):
        return [f"v_mfma_f32_32x32x16_bf16 v[{S}:{S+15}], v[{KF+8*i}:{KF+8*i+3}], v[{Q1}:{Q1+3}], {c}",
                f"v_mfma_f32_32x32x16_bf16 v[{S+16}:{S+31}], v[{KF+8*i+4}:{KF+8*i+7}], v[{Q1}:{Q1+3}], {c}",
                f"v_mfma_f32_32x32x4_2b_bf16 v[{S}:{S+31}], v[{K2F+2*i}:{K2F+2*i+1}], v[{Q2}:{Q2+1}], v[{S}:{S+31}]"]
    def pvm(vs_, u):
        return f"v_mfma_f32_32x32x16_bf16 v[{O}:{O+15}], v[{VF+16*vs_+4*u}:{VF+16*vs_+4*u+3}], v[{P+4*u}:{P+4*u+3}], v[{O}:{O+15}]"
    def rowmax(S, dst, first):
        L = []; r = 0
        if first:
            L.append(f"v_max_f32 v{dst}, v{S}, v{S+1}"); r = 2
        while r < 32:
            L.append(f"v_max3_f32 v{dst}, v{S+r}, v{S+r+1}, v{dst}"); r += 2
        return L
    def set_nm(src):
        a(f"v_mov_b32 v25, v{src}\ns_nop 1\nv_permlane32_swap_b32 v{src}, v25\ns_nop 1\nv_max_f32 v{src}, v{src}, v25")
        for r in range(16): a(f"v_sub_f32 v{NM+r}, 0, v{src}")
    def E(cur, g):
        b = cur + 4 * g
        return [f"v_exp_f32 v{b+r}, v{b+r}" for r in range(4)] + \
               [f"v_cvt_pk_bf16_f32 v{P+2*g}, v{b}, v{b+1}", f"v_cvt_pk_bf16_f32 v{P+2*g+1}, v{b+2}, v{b+3}"]
    NMr = f"v[{NM}:{NM+15}]"
    a("s_waitcnt lgkmcnt(0)")
    if OPT.get("rps", 2) == 0: a(RPS()[0]); a(RPS()[1])
    if OPT["prio"]: a("s_setprio 1")
    st(0)
    a(f"s_waitcnt vmcnt({3 if OPT.get('sync4', True) else 2})\ns_barrier")
    st(1)
    for i in range(5): a(f"ds_read_b32 v{Q1+i}, v{25+i}")
    for x in rdK(0, 0) + rdK(1, 1) + rdV(0, 0): a(x)
    a("s_waitcnt lgkmcnt(7)")
    q = qk(SA, 0, "0")
    a(q[0]); a(q[1]); a("s_nop 9"); a(q[2]); a("s_nop 15\ns_nop 3")
    for x in rowmax(SA, 24, True): a(x)
    if force_fallback:
        a(f"v_add_f32 v24, {f32bits(-100.0)}, v24")
    if FOLD:
        a("v_mov_b32 v25, v24\ns_nop 1\nv_permlane32_swap_b32 v24, v25\ns_nop 1\nv_max_f32 v24, v24, v25")
        a(f"v_cvt_pk_bf16_f32 v25, -v24, -v24\nv_mov_b32 v{NM}, 0\nv_lshlrev_b32 v26, 16, v25\nv_sub_f32 v26, -v24, v26\nv_cvt_pk_bf16_f32 v{Q2+1}, -v24, v26\nv_cvt_pk_bf16_f32 v{NM+1}, -v24, v26\ns_nop 1")
        a(f"v_mfma_f32_32x32x4_2b_bf16 v[{SA}:{SA+31}], v[{K2F}:{K2F+1}], v[{NM}:{NM+1}], v[{SA}:{SA+31}]\ns_nop 15\ns_nop 1")
    else:
        set_nm(24)
        for r in range(32): a(f"v_add_f32 v{SA+r}, v{SA+r}, v{NM}")
    st(2)
    extra = {i: [] for i in range(32)}
    pre = {i: [] for i in range(32)}
    SYNC = OPT.get("sync4", True)
    B3 = 8 if SYNC else 9
    if SYNC:
        r = 4
        for i in range(5):
            extra[i] += [dma(r), dma(r + 1), dma(r + 2)]; r += 3
        pre[0].append("s_waitcnt vmcnt(0)\ns_barrier"); pre[4].append("s_waitcnt vmcnt(3)\ns_barrier")
    else:
        r = 3
        for i in range(8):
            extra[i] += [dma(r), dma(r + 1)]; r += 2
        pre[0].append("s_waitcnt vmcnt(0)\ns_barrier"); pre[3].append("s_waitcnt vmcnt(2)\ns_barrier")
    pre[B3].append(f"v_mov_b32 v196, 0\nv_mov_b32 v197, 0\nv_mov_b32 v198, 0\nv_mov_b32 v199, 0\nv_mov_b32 v200, {ffn.CNT}\nds_write_b128 v200, v[196:199]\nds_write_b128 v200, v[196:199] offset:16\nds_write_b128 v200, v[196:199] offset:32\nds_write_b128 v200, v[196:199] offset:48\ns_waitcnt vmcnt(0) lgkmcnt(0)\ns_barrier")
    for n in range(8):
        if OPT.get("rp1", False):
            extra[9 + n].append(rp.load(0, n, nt_)); extra[9 + n].append(w3(rp.load(1, n, nt_)))
        else:
            extra[9 + n // 2].append(rp.load(0, n, nt_))
            extra[13 + n // 2].append(w3(rp.load(1, n, nt_)))
    if OPT.get("rps", 2) == 1: pre[6].append(RPS()[0]); pre[7].append(RPS()[1])
    if OPT.get("rps", 2) == 2: pre[5].append("s_cmp_lg_u32 s3, 1\ns_cbranch_scc1 K2_s1\n" + RPS()[0] + "\nK2_s1:")
    ST0 = OPT.get("k2_st0", 21)
    pre[ST0].append("s_waitcnt vmcnt(0)")
    for n in range(4):
        extra[ST0 + n // 2].append(rp.store(0, n, " sc1"))
        extra[ST0 + 2 + n // 2].append(w3(rp.store(1, n, " sc1")))
    pre[ST0 + 7].append("s_waitcnt vmcnt(0)")
    extra[ST0 + 7].append(f"v_mov_b32 v206, {ffn.CNT}\nv_mov_b32 v207, 1\ns_mov_b64 exec, 1\nds_add_rtn_u32 v205, v206, v207 offset:44\ns_mov_b64 exec, -1")
    extra[ST0 + 8].append(f"v_readfirstlane_b32 s45, v205\ns_cmp_lg_u32 s45, 7\ns_cbranch_scc1 K2_nrf\ns_lshl_b32 s45, s34, 5\ns_add_u32 s45, s45, s35\ns_lshl_b32 s45, s45, 7\ns_add_u32 s45, s45, {FL_RF}\n"
                          f"v_mov_b32 v206, s{SE}\nv_lshlrev_b32 v207, 2, v0\ns_mov_b32 exec_lo, -1\ns_mov_b32 exec_hi, 0\nbuffer_store_dword v206, v207, s[36:39], s45 offen sc1\ns_mov_b64 exec, -1\nK2_nrf:")
    if OPT.get("k2_touch", False):
        extra[ST0 + 7].append(rp.touch(0)); extra[ST0 + 8].append(w3(rp.touch(1)))
    extra[B3 - 1].append(f"s_mov_b32 s45, {FL_AF + 224*128}\nv_lshlrev_b32 v206, 7, v1\nbuffer_load_dword v205, v206, s[36:39], s45 offen sc1")
    tmp = Asm(); tmp.uid = 9000
    poll(tmp, 32, 206, 36, 45, 205, 2, first_loaded=True)
    pre[B3].append(tmp.text())
    EW = OPT.get("wo_early", 10)
    if EW:
        wo0, wosz = WS["WOF"]
        pre[OPT.get('wob', 24)].append(f"s_lshr_b32 s77, s2, 5\ns_add_u32 s20, s14, {wo0}\ns_addc_u32 s21, s15, 0\ns_mov_b32 s22, {wosz}\ns_mov_b32 s23, 0x00020000\n"
                       f"s_lshl_b32 s32, s3, 10\ns_mul_i32 s33, s77, {108*1024}\ns_add_u32 s33, s33, s32\ns_waitcnt lgkmcnt(0)\ns_barrier")
        nb_ = 0
        for i in list(range(25, 32)) + list(range(25, 32)):
            if nb_ < EW and len(extra[i]) < 2:
                extra[i].append("s_mov_b32 m0, s32\ns_add_u32 s32, s32, 8192\nbuffer_load_dwordx4 v3, s[20:23], s33 offen sc1 lds\ns_add_u32 s33, s33, 8192"); nb_ += 1
        assert nb_ == EW
    if OPT.get("wo_touch", True):
        L = a.label("wt")
        wb0 = WS["WBAR"][0]; wsz = WS["WOF"][0] + WS["WOF"][1] - wb0
        extra[19].append(f"s_sub_u32 s56, s3, 3\ns_cmp_ge_u32 s56, 3\ns_cbranch_scc1 {L}\ns_lshr_b32 s57, s2, 3\ns_mul_i32 s57, s57, 3\ns_add_u32 s56, s56, s57\ns_lshl_b32 s56, s56, 13\n"
                         f"s_add_u32 s28, s14, {wb0}\ns_addc_u32 s29, s15, 0\ns_mov_b32 s30, {wsz}\ns_mov_b32 s31, 0x00020000\nv_lshlrev_b32 v206, 7, v0\nbuffer_load_dword v205, v206, s[28:31], s56 offen sc1\n{L}:")
    if OPT["codepf"]:
        L = a.label("cp")
        extra[18].append(f"s_lshr_b32 s56, s2, 3\ns_cmp_ge_u32 s56, CODE_PF_N\ns_cbranch_scc1 {L}\ns_cmp_lg_u32 s3, 0\ns_cbranch_scc1 {L}\n"
                         f"s_getpc_b64 s[58:59]\n{L}_pc:\ns_add_u32 s58, s58, K2_out-{L}_pc\ns_addc_u32 s59, s59, 0\n"
                         f"s_lshl_b32 s56, s56, 13\nv_lshlrev_b32 v206, 7, v0\nv_add_u32 v206, s56, v206\nv_min_u32 v206, CODE_END-K2_out-4, v206\nglobal_load_dword v205, v206, s[58:59]\n{L}:")
    ABL = OPT.get("abl", "")
    if "l" in ABL:
        for i in range(9, 17): extra[i] = []
    if "s" in ABL:
        for i in range(ST0, ST0 + 4): extra[i] = []
    if "u" in ABL:
        pre[6] = [ffn_map(34, 35)]; pre[7] = []
    if "m" in ABL:
        extra[18] = []; extra[19] = []; extra[8] = []; pre[9] = pre[9][:1]
    for i in range(32):
        cur, nxt = (SA, SB) if i % 2 == 0 else (SB, SA)
        q = qk(nxt, (i + 1) % 2, "0" if FOLD else NMr) if i < 31 else ["", "", ""]
        vs_ = i % 2
        kr = rdK(i % 2, i + 2) if i + 2 < 32 else ["", "", ""]
        vrd = rdV((i + 1) % 2, i + 1) if i < 31 else [""] * 4
        e = [E(cur, g) for g in range(8)]
        assert len(extra[i]) <= 3
        ex = extra[i] + ["", "", ""]
        seq = list(pre[i])
        PP = OPT.get("pp", 4)
        if OPT["prio"] and i % PP in (0, OPT["prio"]):
            L = a.label("pr")
            seq.append(f"s_cmp_lt_u32 s3, 4\ns_cbranch_scc1 {L}\ns_setprio {2 if i % PP == 0 else 0}\n{L}:")
        AL = OPT.get("aal", 0)
        P3 = {0: "", 1: ".p2align 3", 2: ".p2align 3\ns_nop 0"}[AL]
        if AL: ex = [x + "\n" + P3 if x else x for x in ex]
        sp = 2 if AL else 3
        seq += ["s_waitcnt lgkmcnt(0)", P3, q[0]] + kr[0:2] + e[0]
        seq += [pvm(1 - vs_, 3) if i > 0 else ""] + kr[2:3] + vrd[0:1] + e[1]
        seq += [q[1]] + vrd[1:3] + e[2]
        seq += [pvm(vs_, 0)] + vrd[3:4] + e[3]
        seq += [q[2], ex[0]] + e[4] + e[5][:sp]
        seq += [pvm(vs_, 1), ex[1]] + e[5][sp:] + e[6][:2]
        seq += [pvm(vs_, 2), ex[2]] + e[6][2:] + e[7]
        for x in seq:
            if x: a(x)
        if i % 8 == 7: st(3 + i // 8)
    a("s_nop 1"); a(pvm(1, 3))
    a("s_setprio 0\ns_nop 15")
    def bcast_l():
        a(f"v_mov_b32 v25, v{O+10}\nv_mov_b32 v26, v{O+10}\ns_nop 1\nv_permlane32_swap_b32 v25, v26\ns_nop 1")
    bcast_l()
    a(f"v_mov_b32 v26, {f32bits(2.0**60)}\nv_cmp_nle_f32 vcc, v25, v26\nv_mov_b32 v26, {f32bits(2.0**-60)}\nv_cmp_lt_f32 s[52:53], v25, v26\ns_nop 4\ns_or_b64 vcc, vcc, s[52:53]\ns_cbranch_scc0 K2_out")
    a(f"v_mov_b32 v24, 0xff800000\nv_mov_b32 v{Q2+1}, 0")
    for ps in range(2):
        a(f"s_mov_b32 s52, 0\nv_mov_b32 v27, v{VKA}\nv_mov_b32 v28, v{VK2}\nv_mov_b32 v29, v{VVA}")
        a(f"K2_fb{ps}:")
        a(f"buffer_load_dwordx4 v[{KF}:{KF+3}], v27, s[16:19], 0 offen sc1\nbuffer_load_dwordx4 v[{KF+4}:{KF+7}], v27, s[16:19], 0 offen offset:1024 sc1\nbuffer_load_dword v{K2F}, v28, s[16:19], 0 offen offset:2048 sc1")
        if ps:
            a("s_movk_i32 s53, 2304")
            for u in range(4): a(f"buffer_load_dwordx4 v[{VF+4*u}:{VF+4*u+3}], v29, s[16:19], s53 offen offset:{608*u} sc1")
        a("s_waitcnt vmcnt(0)")
        q = qk(SA, 0, NMr if ps else "0")
        a(q[0]); a(q[1]); a("s_nop 9"); a(q[2]); a("s_nop 15\ns_nop 3")
        if ps == 0:
            for x in rowmax(SA, 24, False): a(x)
        else:
            for g in range(8):
                for x in E(SA, g): a(x)
            a("s_nop 1")
            for u in range(4): a(pvm(0, u))
        a(f"v_add_u32 v27, {PAIR}, v27\nv_add_u32 v28, {PAIR}, v28\nv_add_u32 v29, {PAIR}, v29")
        a(f"s_add_u32 s52, s52, 1\ns_cmp_lt_u32 s52, 32\ns_cbranch_scc1 K2_fb{ps}")
        if ps == 0:
            set_nm(24)
            for r in range(16): a(f"v_mov_b32 v{O+r}, 0")
    a("s_nop 15")
    bcast_l()
    a("K2_out:")
    WR, XR, ACC, XRES = 12, 40, 112, 140
    a("s_lshr_b32 s77, s2, 5\ns_and_b32 s78, s2, 7\ns_lshl_b32 s78, s78, 2\ns_bfe_u32 s43, s2, 0x20003\ns_add_u32 s78, s78, s43")
    a("s_cmp_ge_u32 s3, 4\ns_cbranch_scc1 K2_noearly")
    a("s_lshl_b32 s46, s78, 2\ns_add_u32 s46, s46, s3")
    ws_srd(a, 48, "MEAN1", 14)
    ws_srd(a, 52, "XC", 14)
    a(f"s_mul_i32 s47, s77, 3072\ns_mul_i32 s30, s46, 18432\ns_add_u32 s47, s47, s30")
    for u in range(3):
        a(f"buffer_load_dwordx4 v[{XRES+4*u}:{XRES+4*u+3}], v3, s[52:55], s47 offen offset:{1024*u} sc1")
    a(f"v_and_b32 v166, 15, v0\nv_lshlrev_b32 v166, 2, v166\ns_lshl_b32 s65, s46, 7\nbuffer_load_dword v165, v166, s[48:51], s65 offen sc1")
    a("K2_noearly:")
    a(f"s_lshl_b32 s43, s34, 12\ns_add_u32 s43, s43, {FL_RF}\nv_lshlrev_b32 v161, 7, v1\nbuffer_load_dword v160, v161, s[36:39], s43 offen sc1")
    a(f"v_rcp_f32 v25, v25\ns_nop 0")
    for r in range(10): a(f"v_mul_f32 v{O+r}, v{O+r}, v25")
    for r in range(5): a(f"v_cvt_pk_bf16_f32 v{P+r}, v{O+2*r}, v{O+2*r+1}")
    a(f"v_lshrrev_b32 v26, 4, v1\nv_mul_u32_u24 v27, {18*1024}, v26\nv_and_b32 v28, 15, v1\nv_lshl_add_u32 v27, v28, 4, v27\nv_lshl_add_u32 v27, v2, 8, v27")
    a(f"s_mul_i32 s42, s40, {36*1024}\ns_lshl_b32 s43, s41, 9\ns_add_u32 s43, s43, s42")
    a(f"buffer_store_dwordx4 v[{P}:{P+3}], v27, s[24:27], s43 offen sc1")
    OSC = 32 * PAIR + 1024
    a(f"s_lshr_b32 s43, s3, 2\ns_lshl_b32 s43, s43, 8\ns_and_b32 s44, s3, 3\ns_lshl_b32 s44, s44, 2\ns_add_u32 s43, s43, s44\ns_add_u32 s43, s43, {OSC}")
    a(f"v_lshlrev_b32 v26, 9, v26\nv_lshl_add_u32 v26, v28, 4, v26\nv_add_u32 v26, s43, v26\ns_mov_b32 exec_lo, -1\ns_mov_b32 exec_hi, 0\nds_write_b32 v26, v{P+4}\ns_mov_b64 exec, -1")
    a(f"v_mov_b32 v172, {ffn.CNT}\nv_mov_b32 v8, 1\nv_lshlrev_b32 v9, 2, v0\nv_mov_b32 v174, s{SE}\ns_lshl_b32 s79, s93, 7\ns_add_u32 s79, s79, {FL_OF}")
    a(f"v_add_u32 v4, {OSC}, v3\nv_mul_u32_u24 v5, {18*1024}, v2\nv_lshl_add_u32 v5, v1, 4, v5")
    a("s_and_b32 s43, s93, 3\ns_lshl_b32 s43, s43, 9\ns_add_u32 s43, s43, s42\ns_add_u32 s43, s43, 16384")
    a("s_waitcnt lgkmcnt(0)\ns_barrier")
    st(7)
    a("s_cmp_lg_u32 s3, 0\ns_cbranch_scc1 K3_norem")
    a("ds_read_b128 v[12:15], v4\ns_waitcnt lgkmcnt(0)\nbuffer_store_dwordx4 v[12:15], v5, s[24:27], s43 offen sc1")
    a("K3_norem:")
    a("v_lshlrev_b32 v2, 4, v0\ns_mov_b32 s40, s77\ns_mov_b32 s41, s78")
    a("s_waitcnt vmcnt(0)\ns_mov_b64 exec, 1\nds_add_rtn_u32 v168, v172, v8 offset:36\ns_waitcnt lgkmcnt(0)\nv_readfirstlane_b32 s70, v168\ns_cmp_lg_u32 s70, 7\ns_cbranch_scc1 K3_nofl")
    a("s_mov_b32 exec_lo, -1\ns_mov_b32 exec_hi, 0\nbuffer_store_dword v174, v9, s[36:39], s79 offen sc1\nK3_nofl:\ns_mov_b64 exec, -1")
    a("s_cmp_ge_u32 s3, 4\ns_cbranch_scc1 K3_loader")
    a("v_add_u32 v3, 0x10000, v2\nv_add_u32 v4, 0x20000, v2\nv_and_b32 v5, 15, v0\nv_lshrrev_b32 v6, 4, v0\nv_lshlrev_b32 v7, 7, v0")
    a("v_lshlrev_b32 v11, 2, v5\nv_mov_b32 v10, v165")
    st(8)
    a("s_cmp_ge_u32 s40, 6\ns_cbranch_scc1 K4_compute")
    a(f"s_lshl_b32 s43, s41, 3\ns_lshr_b32 s44, s3, 1\ns_lshl_b32 s44, s44, 2\ns_add_u32 s43, s43, s44\ns_lshl_b32 s43, s43, 7\ns_add_u32 s43, s43, {FL_OF}")
    ws_srd(a, 52, "HC", 14)
    ws_srd(a, 60, "SS", 14)
    a("s_barrier")
    st(13)
    for j in range(7):
        off = j * 1024 if j < 6 else 108 * 1024
        a(f"ds_read_b128 v[{12+4*j}:{15+4*j}], v{2 + off // 65536} offset:{off % 65536}")
    poll(a, 4, 7, 36, 43, 164, 1)
    st(9)
    a("s_mul_i32 s44, s40, 3072")
    def oload(ks):
        t = ""
        if ks % 3 == 0:
            t = "s_add_u32 s45, s30, s44\ns_add_u32 s44, s44, 3072\ns_cmp_eq_u32 s44, 18432\ns_cselect_b32 s44, 0, s44\n"
        return t + f"buffer_load_dwordx4 v[{XR+4*ks}:{XR+4*ks+3}], v2, s[24:27], s45 offen offset:{(ks%3)*1024} sc1"
    OD = OPT.get("k3_od", 6)
    for ks in range(OD): a(oload(ks))
    st(10)
    def wread(ks, j):
        off = (ks * 6 + j) * 1024 if j < 6 else (108 + ks) * 1024
        return f"ds_read_b128 v[{WR+4*j}:{WR+4*j+3}], v{2 + off // 65536} offset:{off % 65536}"
    nl = OD
    for ks in range(18):
        for j in range(7):
            a((f"s_waitcnt vmcnt({nl-1-ks}) " if j == 0 else "s_waitcnt ") + f"lgkmcnt({6 if ks < 17 else 6-j})")
            c = "0" if ks == 0 else f"v[{ACC+4*j}:{ACC+4*j+3}]"
            a(f"v_mfma_f32_16x16x32_bf16 v[{ACC+4*j}:{ACC+4*j+3}], v[{WR+4*j}:{WR+4*j+3}], v[{XR+4*ks}:{XR+4*ks+3}], {c}")
            if ks < 17: a(wread(ks + 1, j))
            if j in (1, 4) and nl < 18:
                a(oload(nl)); nl += 1
    a("s_barrier")
    st(11)
    e = ACC + 24
    a(f"s_nop 6\nv_add_f32 v10, v10, v{e}\nv_add_f32 v10, v10, v{e+1}\nv_mov_b32 v14, 0")
    for u in range(3):
        for r in range(4):
            x = XRES + 4 * u + r
            lo, hi = ACC + 8 * u + r, ACC + 8 * u + 4 + r
            a(f"v_lshlrev_b32 v12, 16, v{x}\nv_and_b32 v13, 0xffff0000, v{x}")
            a(f"v_add_f32 v{lo}, v{lo}, v12\nv_add_f32 v{hi}, v{hi}, v13")
            a(f"v_sub_f32 v{lo}, v{lo}, v10\nv_sub_f32 v{hi}, v{hi}, v10")
            a(f"v_cvt_pk_bf16_f32 v{XR+4*u+r}, v{lo}, v{hi}")
        a(f"buffer_store_dwordx4 v[{XR+4*u}:{XR+4*u+3}], v2, s[52:55], s47 offen offset:{1024*u} sc1")
    for i in range(12): a(f"v_dot2_f32_bf16 v14, v{XR+i}, v{XR+i}, v14")
    a("s_nop 2")
    sum_g(a, 14, 12)
    a("v_cmp_eq_u32 vcc, 1, v6\ns_lshl_b32 s43, s46, 3\ns_add_u32 s43, s43, s40\ns_lshl_b32 s43, s43, 7\nv_cndmask_b32 v14, v14, v10, vcc\ns_mov_b32 exec_lo, -1\ns_mov_b32 exec_hi, 0")
    a("buffer_store_dword v14, v9, s[60:63], s43 offen sc1")
    a(f"s_lshl_b32 s43, s46, 3\ns_add_u32 s43, s43, s40\ns_lshl_b32 s43, s43, 7\ns_add_u32 s43, s43, {FL_HF}")
    a("s_waitcnt vmcnt(0)\nbuffer_store_dword v174, v9, s[36:39], s43 offen sc1\ns_mov_b64 exec, -1")
    st(12)
    a("s_branch K4_compute")
    a("K3_loader:")
    a(f"v_mov_b32 v4, {ffn.CNT}")
    a("s_sub_u32 s33, s3, 4\ns_cmp_ge_u32 s40, 6\ns_cbranch_scc1 K3_pf")
    ws_srd(a, 20, "WOF", 14)
    ws_srd(a, 68, "WBAR", 14)
    a(f"s_lshl_b32 s76, s33, 10\ns_mul_i32 s75, s40, {108*1024}\ns_add_u32 s74, s76, {EW*8192}\ns_add_u32 s75, s75, s74")
    a("s_mul_i32 s77, s40, 3072\ns_add_u32 s76, s76, s77")
    for i in range(2*EW, 32):
        sd, so = ((20, 75) if i < 27 else (68, 76))
        a(f"s_mov_b32 m0, s74\ns_add_u32 s74, s74, 4096\nbuffer_load_dwordx4 v2, s[{sd}:{sd+3}], s{so} offen sc1 lds\ns_add_u32 s{so}, s{so}, 4096")
    a("s_waitcnt vmcnt(0)\ns_barrier")
    a("K3_pf:")
    a("s_cmp_ge_u32 s40, 6\ns_cbranch_scc1 K4_helper\ns_barrier\ns_branch K4_helper")
    k4(a, st)
    a("s_endpgm\nCODE_END:")
    return kernel_desc(NAME + "_kernel", 256)

def rf_check(a, first_loaded):
    a(f"s_lshl_b32 s43, s34, 12\ns_add_u32 s43, s43, {FL_RF}")
    poll(a, 32, 161, 36, 43, 160, 2, first_loaded)
def h_bases(a, sw):
    a("v_add_u32 v3, 0x10000, v2\nv_add_u32 v4, 0x20000, v2")
    a(f"s_mul_i32 s42, s{sw}, 3\ns_lshr_b32 s43, s42, 1\ns_lshl_b32 s43, s43, 12\ns_and_b32 s44, s42, 1\ns_lshl_b32 s45, s44, 3\ns_add_u32 s43, s43, s45\ns_add_u32 s43, s43, {ffn.HB}")
    a("v_add_u32 v5, s43, v2")
    a("s_mul_i32 s45, s44, 4080\ns_add_u32 s45, s45, 8\nv_add_u32 v6, s45, v5")
def k4(a, st0):
    st = lambda i: st0(20 + i)
    a("K4_compute:\ns_mov_b32 s40, s34\ns_mov_b32 s41, s35")
    rf_check(a, True)
    a(f"s_lshl_b32 s46, s40, 2\ns_add_u32 s46, s46, s3\ns_mul_i32 s31, s46, {WST()*1024}")
    ws_srd(a, 20, "WF", 14)
    cs = ffn.Stream(a, PAT(), srdW=20, sW=31, v_lane16=2, v_h8=5, v_p=7, v_one=10, ACC=16, XF=112, TMP=160, RB=176,
                    RINGF=min(OPT.get('ring', 20), 19 if st0.on else 20), stamp=st, wflag=OPT.get('wflag', ' sc1'), al=OPT.get('al', 0), fast=OPT.get('fast', 2), fastfrom=OPT.get('ff', 4))
    cs.prefill(min(cs.RINGF, OPT.get("k4_pre", 18)))
    a("s_setprio 2")
    h_bases(a, 3)
    a("v_and_b32 v12, 15, v0\nv_lshrrev_b32 v13, 4, v0\ns_lshr_b32 s45, s3, 1\nv_lshl_add_u32 v13, v13, 1, s45\nv_and_b32 v14, 7, v0\nv_xor_b32 v13, v13, v14")
    a("s_and_b32 s45, s3, 1\ns_lshl_b32 s45, s45, 3\nv_lshl_add_u32 v13, v13, 4, s45\nv_lshl_add_u32 v7, v12, 7, v13\nv_add_u32 v8, 0x8000, v7")
    a(f"v_mov_b32 v10, 1\nv_mov_b32 v11, {ffn.CNT}")
    cs.run()
    LASTP = OPT.get("lastp", True) and not RING()
    if LASTP:
        a("s_waitcnt lgkmcnt(0)\nv_readfirstlane_b32 s70, v175\ns_mov_b32 s33, 8\ns_cmp_eq_u32 s70, 3\ns_cbranch_scc1 K4_pubs")
    a("s_branch " + ("K4_last" if RING() else "K4_work"))
    PB, AC = 48, 112
    a("K4_helper:")
    a(f"s_setprio {OPT.get('k4_hprio', 0)}\ns_mov_b32 s40, s34\ns_mov_b32 s41, s35")
    a(f"s_mul_i32 s30, s41, 73728\ns_mul_i32 s90, s33, 18432\ns_add_u32 s30, s30, s90")
    ws_srd(a, 16, "HC", 14)
    a(f"s_lshl_b32 s43, s41, 2\ns_add_u32 s43, s43, s33\ns_lshl_b32 s43, s43, 10\ns_add_u32 s43, s43, {FL_HF}\nv_lshlrev_b32 v12, 7, v0")
    XE2 = OPT.get("xearly", 2)
    poll(a, XE2 if XE2 else 6, 12, 36, 43, 13, 1)
    st(9)
    for i in range(18):
        if XE2 and i == 3 * XE2:
            a("s_waitcnt vmcnt(0)")
            for c in range(XE2 - 1): a("s_barrier")
            poll(a, 6, 12, 36, 43, 13, 1, first_loaded=True)
        if i % 4 == 0: a("s_mov_b32 m0, s90\ns_add_u32 s90, s90, 4096")
        a(f"buffer_load_dwordx4 v2, s[16:19], s30 offen offset:{(i%4)*1024} sc1 lds")
        if i % 4 == 3: a("s_add_u32 s30, s30, 4096")
        if XE2 and i == 3 * XE2 - 1:
            a("s_mov_b64 exec, 63\nbuffer_load_dword v13, v12, s[36:39], s43 offen sc1\ns_mov_b64 exec, -1")
        elif i >= 5 and i % 3 == 2 and i > 3 * XE2: a("s_waitcnt vmcnt(3)\ns_barrier")
    a("s_waitcnt vmcnt(0)\ns_barrier")
    a("s_cmp_lg_u32 s2, 0\ns_cbranch_scc1 K4_nep\ns_cmp_lg_u32 s33, 3\ns_cbranch_scc1 K4_nep\ns_mov_b32 s74, s34\ns_mov_b32 s34, 0\nK4_epl:")
    rf_check(a, False)
    a(f"s_add_u32 s34, s34, 1\ns_cmp_lt_u32 s34, 8\ns_cbranch_scc1 K4_epl\ns_mov_b32 s34, s74\nv_mov_b32 v13, s{SE}\nv_mov_b32 v14, 0")
    ws_srd(a, 52, "EP", 14)
    a("s_mov_b64 exec, 1\nbuffer_store_dword v13, v14, s[52:55], 0 offen sc1\ns_mov_b64 exec, -1\nK4_nep:")
    NPUB = OPT.get("npub", 2)
    EARLY = RING() and OPT.get("own_early", True)
    if EARLY: a(f"s_cmp_ge_u32 s33, {NPUB}\ns_cbranch_scc1 K4_own")
    for i in range(ffn.N_BARRIERS_AFTER_X): a("s_barrier")
    if not EARLY: a(f"s_cmp_ge_u32 s33, {NPUB}\ns_cbranch_scc1 " + ("K4_own" if RING() else "K4_work"))
    def wait_cnt(L, slp, n=4):
        a(f"s_mov_b32 s72, 0x40000\n{L}:\nds_read_b32 v3, v4\ns_waitcnt lgkmcnt(0)\nv_readfirstlane_b32 s70, v3\ns_cmp_ge_u32 s70, {n}\ns_cbranch_scc1 {L}_ok\ns_sleep {slp}\ns_sub_u32 s72, s72, 1\ns_cbranch_scc0 {L}\n{L}_ok:")
    SWZ = "v_lshrrev_b32 v5, 3, v0\nv_and_b32 v6, 7, v0\nv_xor_b32 v7, v5, v6\nv_lshlrev_b32 v7, 4, v7\nv_lshl_add_u32 v7, v5, 7, v7"
    a("K4_pubs:")
    ws_srd(a, 24, "PART", 14)
    a("s_mov_b32 s42, s33"); a(SWZ)
    a(f"s_lshl_b32 s44, s42, 13\nv_add_u32 v7, s44, v7\ns_lshl_b32 s44, s42, 2\ns_add_u32 s44, s44, {ffn.CNT}\nv_mov_b32 v4, s44")
    a("s_mul_i32 s49, s41, 9\ns_add_u32 s49, s49, s42\ns_lshl_b32 s47, s49, 16\ns_lshl_b32 s51, s49, 10")
    a("s_lshl_b32 s44, s40, 13\ns_add_u32 s47, s47, s44\ns_lshl_b32 s44, s40, 7\ns_add_u32 s51, s51, s44\nv_lshlrev_b32 v18, 2, v0")
    a(f"v_mov_b32 v13, s{SE}")
    a("s_mov_b32 s75, s40\nK4_pub:")
    if RING():
        a("s_add_u32 s44, s40, s42\ns_and_b32 s44, s44, 7\ns_cmp_eq_u32 s42, 0\ns_cselect_b32 s44, 8, s44\ns_cselect_b32 s45, s40, s42\ns_cselect_b32 s75, s40, 64")
        a("s_mul_i32 s49, s41, 9\ns_add_u32 s49, s49, s44\ns_lshl_b32 s49, s49, 3\ns_add_u32 s49, s49, s45\ns_lshl_b32 s47, s49, 13\ns_lshl_b32 s51, s49, 7")
    wait_cnt("K4_pw", OPT.get("pw", 2))
    st0.dyn(34, 42)
    for i in range(8): a(f"ds_read_b128 v[{PB+4*i}:{PB+4*i+3}], v7 offset:{1024*i}")
    a("s_add_u32 s71, s47, 4096")
    for i in range(8):
        a(f"s_cmp_eq_u32 s75, {i}\ns_cbranch_scc1 K4_ps{i}\ns_waitcnt lgkmcnt({7-i})\nbuffer_store_dwordx4 v[{PB+4*i}:{PB+4*i+3}], v2, s[24:27], s{47 if i < 4 else 71} offen offset:{(i%4)*1024} sc1\nK4_ps{i}:")
    if RING(): a("v_mov_b32 v3, 4\ns_mov_b64 exec, 1\nds_add_u32 v4, v3\ns_mov_b64 exec, -1")
    a("s_waitcnt vmcnt(0) lgkmcnt(0)\ns_mov_b32 exec_lo, -1\ns_mov_b32 exec_hi, 0\nbuffer_store_dword v13, v18, s[36:39], s51 offen sc1\ns_mov_b64 exec, -1")
    st0.dyn(43, 42)
    a(f"s_add_u32 s42, s42, {NPUB}\ns_add_u32 s47, s47, {NPUB << 16}\ns_add_u32 s51, s51, {NPUB << 10}\nv_add_u32 v7, {NPUB << 13}, v7\nv_add_u32 v4, {4*NPUB}, v4\ns_cmp_lt_u32 s42, {8 if (LASTP or RING()) else 9}\ns_cbranch_scc1 K4_pub")
    a("K4_work:")
    a(f"v_mov_b32 v14, {ffn.CNT}\nv_mov_b32 v15, 1")
    TAKE = "s_mov_b64 exec, 1\nds_add_rtn_u32 v3, v14, v15 offset:40\ns_mov_b64 exec, -1\ns_waitcnt lgkmcnt(0)\nv_readfirstlane_b32 s42, v3\ns_cmp_ge_u32 s42, " + ("1" if RING() else "9") + "\ns_cbranch_scc1 K4_fin\ns_mov_b32 s76, s42" + ("\ns_mov_b32 s42, 8" if RING() else "")
    a(TAKE)
    ws_srd(a, 16, "HC", 14)
    ws_srd(a, 24, "PART", 14)
    ws_srd(a, 56, "SS", 14)
    srd(a, 60, 4, 0, T*DM*2)
    a(SWZ)
    a("s_lshl_b32 s43, s40, 3\nv_add_u32 v8, s43, v5")
    a("v_lshrrev_b32 v19, 4, v8\nv_lshlrev_b32 v19, 10, v19\nv_and_b32 v16, 15, v8\nv_lshl_add_u32 v19, v16, 2, v19\ns_lshl_b32 s65, s41, 12\nbuffer_load_dword v140, v19, s[56:59], s65 offen offset:64 sc1")
    for nb in range(6): a(f"buffer_load_dword v{144+nb}, v19, s[56:59], s65 offen offset:{128*nb} sc1")
    a("s_lshl_b32 s44, s40, 10\nv_add_u32 v9, s44, v7\nv_lshlrev_b32 v12, 7, v0")
    a("v_lshrrev_b32 v10, 4, v8\nv_mul_u32_u24 v10, 18432, v10\nv_lshl_add_u32 v10, v6, 8, v10\nv_and_b32 v11, 15, v8\nv_lshl_add_u32 v10, v11, 4, v10")
    a(f"v_mul_u32_u24 v11, {DM*2}, v8\nv_lshl_add_u32 v11, v6, 4, v11")
    a("v_and_b32 v19, 1, v0\nv_cmp_eq_u32 s[66:67], 1, v19\ns_mov_b32 s68, 0x00003f80\ns_mov_b32 s69, 0x3f800000\ns_mov_b32 s74, 0")
    a("K4_red:")
    a("s_mul_i32 s30, s41, 73728\ns_lshl_b32 s44, s42, 11\ns_add_u32 s30, s30, s44\nbuffer_load_dwordx4 v[20:23], v10, s[16:19], s30 offen sc1")
    a(f"s_mul_i32 s64, s41, {64*DM*2}\ns_lshl_b32 s44, s42, 7\ns_add_u32 s64, s64, s44")
    a(f"s_lshl_b32 s44, s76, 13\nv_add_u32 v7, s44, v9\ns_lshl_b32 s44, s76, 2\ns_add_u32 s44, s44, {ffn.CNT}\nv_mov_b32 v4, s44")
    a("s_mul_i32 s49, s41, 9\ns_add_u32 s49, s49, s42\ns_lshl_b32 s71, s49, 16\ns_lshl_b32 s51, s49, 10\ns_lshl_b32 s44, s40, 10\ns_add_u32 s71, s71, s44")
    wait_cnt("K4_rw", 4)
    poll(a, 8, 12, 36, 51, 3, OPT.get("red_slp", 2))
    st0.dyn(52, 42)
    for j in range(8):
        b = PB + 4*j
        a(f"s_cmp_eq_u32 s40, {j}\ns_cbranch_scc1 K4_ro{j}\nbuffer_load_dwordx4 v[{b}:{b+3}], v2, s[24:27], s71 offen sc1\ns_branch K4_rp{j}\nK4_ro{j}:\nds_read_b128 v[{b}:{b+3}], v7\nK4_rp{j}:\ns_add_u32 s71, s71, 8192")
    a("s_cmp_lg_u32 s74, 0\ns_cbranch_scc1 K4_hs\ns_mov_b32 s74, 1")
    a("v_add_f32 v144, v144, v145\nv_add_f32 v146, v146, v147\nv_add_f32 v148, v148, v149\nv_add_f32 v144, v144, v146\nv_add_f32 v144, v144, v148")
    a(f"v_mov_b32 v145, {f32bits(1e-5)}\nv_fmac_f32 v145, {f32bits(1.0/DM)}, v144\nv_rsq_f32 v142, v145\nK4_hs:")
    for i in range(4):
        a(f"v_lshlrev_b32 v{24+2*i}, 16, v{20+i}\nv_and_b32 v{25+2*i}, 0xffff0000, v{20+i}\nv_add_f32 v{24+2*i}, v{24+2*i}, v140\nv_add_f32 v{25+2*i}, v{25+2*i}, v140")
    a("s_waitcnt lgkmcnt(0)")
    for j in range(8):
        a(f"s_waitcnt vmcnt({max(0, 6-j)})")
        for qq in range(2):
            for p in range(2):
                src = PB + 4*j + 2*qq + p
                d0, d1 = AC + 4*p + qq, AC + 4*p + 2 + qq
                if OPT.get("red_dot", False):
                    for hh, d in ((0, d0), (1, d1)):
                        a(f"v_dot2_f32_bf16 v{d}, v{src}, s{68+hh}, {'0' if j == 0 else f'v{d}'}")
                elif j == 0:
                    a(f"v_lshlrev_b32 v{d0}, 16, v{src}\nv_and_b32 v{d1}, 0xffff0000, v{src}")
                else:
                    a(f"v_lshlrev_b32 v16, 16, v{src}\nv_and_b32 v{src}, 0xffff0000, v{src}\nv_add_f32 v{d0}, v{d0}, v16\nv_add_f32 v{d1}, v{d1}, v{src}")
    a("s_nop 2")
    for i in range(4):
        a(f"v_cndmask_b32 v{AC+8+i}, v{AC+4+i}, v{AC+i}, s[66:67]")
        a(f"v_cndmask_b32 v{AC+12+i}, v{AC+i}, v{AC+4+i}, s[66:67]")
    a("s_nop 1")
    for i in range(4):
        a(f"v_mov_b32_dpp v{AC+16+i}, v{AC+8+i} quad_perm:[1,0,3,2] row_mask:0xf bank_mask:0xf")
    for hlf in range(2):
        for e in range(2):
            k_, r_ = AC + 12 + 2*hlf + e, AC + 16 + 2*hlf + e
            a(f"v_cndmask_b32 v{AC+4*hlf+e}, v{k_}, v{r_}, s[66:67]\nv_cndmask_b32 v{AC+4*hlf+2+e}, v{r_}, v{k_}, s[66:67]")
    for i in range(4):
        a(f"v_fmac_f32 v{24+2*i}, v{AC+2*i}, v142\nv_fmac_f32 v{25+2*i}, v{AC+2*i+1}, v142\nv_cvt_pk_bf16_f32 v{40+i}, v{24+2*i}, v{25+2*i}")
    a("buffer_store_dwordx4 v[40:43], v11, s[60:63], s64 offen" + OPT.get("oflag", ""))
    st0.dyn(8, 42)
    a(TAKE + "\ns_branch K4_red")
    if RING():
        a("K4_own:\ns_sub_u32 s33, s33, 2")
        ws_srd(a, 24, "PART", 14)
        ws_srd(a, 56, "SS", 14)
        srd(a, 60, 4, 0, T*DM*2)
        a(SWZ)
        BS, RS_, TM = 144, 176, 28
        a("v_lshlrev_b32 v19, 2, v5\ns_lshl_b32 s65, s41, 12\ns_lshl_b32 s44, s33, 11\ns_add_u32 s65, s65, s44")
        for i in range(4):
            o = (i >> 1) * 1024 + (i & 1) * 32
            a(f"buffer_load_dword v{180+i}, v19, s[56:59], s65 offen offset:{o + 64} sc1")
            for nb in range(6): a(f"buffer_load_dword v{184+6*i+nb}, v19, s[56:59], s65 offen offset:{o + 128*nb} sc1")
        a("v_lshlrev_b32 v10, 8, v6\nv_lshl_add_u32 v10, v5, 4, v10\ns_mul_i32 s30, s41, 73728\ns_mul_i32 s44, s33, 36864\ns_add_u32 s30, s30, s44\ns_lshl_b32 s44, s40, 11\ns_add_u32 s30, s30, s44\ns_add_u32 s44, s30, 18432")
        for i in range(4):
            a(f"buffer_load_dwordx4 v[{PB+4*i}:{PB+4*i+3}], v10, s[16:19], s{30 if i < 2 else 44} offen offset:{(i&1)*128} sc1")
        a(f"v_mul_u32_u24 v11, {DM*2}, v5\nv_lshl_add_u32 v11, v6, 4, v11\ns_mul_i32 s64, s41, {64*DM*2}\ns_mul_i32 s44, s33, {32*DM*2}\ns_add_u32 s64, s64, s44\ns_lshl_b32 s44, s40, 7\ns_add_u32 s64, s64, s44")
        a(f"s_lshl_b32 s44, s33, 12\ns_add_u32 s44, s44, {8*ffn.STG}\nv_add_u32 v7, s44, v7\nv_lshlrev_b32 v12, 7, v0\nv_and_b32 v19, 1, v0\nv_cmp_eq_u32 s[66:67], 1, v19")
        a("s_mul_i32 s49, s41, 9\ns_add_u32 s49, s49, s40\ns_lshl_b32 s47, s49, 16\ns_lshl_b32 s51, s49, 10\ns_lshl_b32 s44, s33, 12\ns_add_u32 s47, s47, s44\ns_waitcnt vmcnt(0)")
        for i in range(4):
            b = 184 + 6*i
            a(f"v_add_f32 v{b}, v{b}, v{b+1}\nv_add_f32 v{b+2}, v{b+2}, v{b+3}\nv_add_f32 v{b+4}, v{b+4}, v{b+5}\nv_add_f32 v{b}, v{b}, v{b+2}\nv_add_f32 v{b}, v{b}, v{b+4}")
            a(f"v_mov_b32 v{b+1}, {f32bits(1e-5)}\nv_fmac_f32 v{b+1}, {f32bits(1.0/DM)}, v{b}\nv_rsq_f32 v{RS_+i}, v{b+1}")
            for k in range(4):
                d = BS + 8*i + 2*k
                a(f"v_lshlrev_b32 v{d}, 16, v{PB+4*i+k}\nv_and_b32 v{d+1}, 0xffff0000, v{PB+4*i+k}\nv_add_f32 v{d}, v{d}, v{180+i}\nv_add_f32 v{d+1}, v{d+1}, v{180+i}")
        if EARLY:
            for i in range(ffn.N_BARRIERS_AFTER_X): a("s_barrier")
        first = [True]
        def accum(b, i):
            for qq in range(2):
                for p in range(2):
                    src = b + 2*qq + p
                    d0, d1 = AC + 8*i + 4*p + qq, AC + 8*i + 4*p + 2 + qq
                    if first[0]: a(f"v_lshlrev_b32 v{d0}, 16, v{src}\nv_and_b32 v{d1}, 0xffff0000, v{src}")
                    else: a(f"v_lshlrev_b32 v16, 16, v{src}\nv_and_b32 v{src}, 0xffff0000, v{src}\nv_add_f32 v{d0}, v{d0}, v16\nv_add_f32 v{d1}, v{d1}, v{src}")
        def fold(i, bs, rs):
            A_ = AC + 8*i
            for k in range(4):
                a(f"v_cndmask_b32 v{TM+k}, v{A_+4+k}, v{A_+k}, s[66:67]\nv_cndmask_b32 v{TM+4+k}, v{A_+k}, v{A_+4+k}, s[66:67]")
            a("s_nop 1")
            for k in range(4): a(f"v_mov_b32_dpp v{TM+8+k}, v{TM+k} quad_perm:[1,0,3,2] row_mask:0xf bank_mask:0xf")
            for hlf in range(2):
                for e in range(2):
                    k_, r_ = TM + 4 + 2*hlf + e, TM + 8 + 2*hlf + e
                    a(f"v_cndmask_b32 v{A_+4*hlf+e}, v{k_}, v{r_}, s[66:67]\nv_cndmask_b32 v{A_+4*hlf+2+e}, v{r_}, v{k_}, s[66:67]")
            for k in range(8): a(f"v_fmac_f32 v{bs+8*i+k}, v{A_+k}, v{rs+i}")
        def gather(stp, nrg, tag):
            a(f"s_add_u32 s43, s51, {128*stp[0]}")
            poll(a, len(stp), 12, 36, 43, 3, OPT.get("red_slp", 2) if nrg == 4 else 1)
            st(tag)
            for k, p in enumerate(stp):
                a(f"s_add_u32 s71, s47, {p*8192}")
                for i in range(nrg):
                    b = PB + 4*(nrg*k + i)
                    a(f"buffer_load_dwordx4 v[{b}:{b+3}], v2, s[24:27], s71 offen offset:{1024*i} sc1")
        def sums(stp, nrg):
            nl = nrg * len(stp)
            for k, p in enumerate(stp):
                for i in range(nrg):
                    nl -= 1
                    a(f"s_waitcnt vmcnt({nl})"); accum(PB + 4*(nrg*k + i), i)
                first[0] = False
        steps = OPT.get("steps", ((1,), (2, 3), (4,)))
        late = tuple(range(max(steps[-1]) + 1, 8))
        RSL = 73728
        for n, stp in enumerate(steps):
            a(f"v_mov_b32 v4, {ffn.CNT + 4*max(stp)}")
            wait_cnt(f"K4_ow{n}", 2)
            gather(stp, 4, 10 + n); sums(stp, 4)
        for i in range(4): fold(i, BS, RS_)
        a(f"s_lshl_b32 s44, s33, 2\ns_add_u32 s44, s44, {ffn.CNT + 4}\nv_mov_b32 v4, s44")
        wait_cnt("K4_orl", 2, 8)
        a(f"s_lshl_b32 s44, s33, 13\ns_add_u32 s44, s44, {ffn.STG}\nv_add_u32 v8, s44, v2\ns_lshl_b32 s44, s33, 10\ns_add_u32 s44, s44, {RSL}\nv_lshlrev_b32 v9, 2, v0\nv_add_u32 v9, s44, v9")
        for i in range(8): a(f"ds_write_b128 v8, v[{BS+4*i}:{BS+4*i+3}] offset:{1024*i}")
        for i in range(4): a(f"ds_write_b32 v9, v{RS_+i} offset:{256*i}")
        a(f"v_mov_b32 v4, {ffn.CNT + 48}\nv_mov_b32 v3, 1\ns_mov_b64 exec, 1\nds_add_u32 v4, v3\ns_mov_b64 exec, -1\ns_branch K4_work")
        a("K4_last:")
        ws_srd(a, 24, "PART", 14)
        a("s_mul_i32 s49, s41, 9\ns_add_u32 s49, s49, s40\ns_lshl_b32 s47, s49, 16\ns_lshl_b32 s51, s49, 10\ns_lshl_b32 s44, s3, 11\ns_add_u32 s47, s47, s44\nv_lshlrev_b32 v12, 7, v0")
        SPL = OPT.get('split', False) and len(late) > 1
        if SPL: late = late[:-1]
        gather(late, 2, 15)
        srd(a, 60, 4, 0, T*DM*2)
        a(SWZ)
        a(f"s_add_u32 s44, s44, {8*ffn.STG}\nv_add_u32 v7, s44, v7\nv_and_b32 v19, 1, v0\nv_cmp_eq_u32 s[66:67], 1, v19")
        a(f"v_mul_u32_u24 v11, {DM*2}, v5\nv_lshl_add_u32 v11, v6, 4, v11\ns_mul_i32 s64, s41, {64*DM*2}\ns_mul_i32 s44, s3, {16*DM*2}\ns_add_u32 s64, s64, s44\ns_lshl_b32 s44, s40, 7\ns_add_u32 s64, s64, s44")
        a(f"s_lshl_b32 s44, s3, 12\ns_add_u32 s44, s44, {ffn.STG}\nv_add_u32 v8, s44, v2\ns_lshl_b32 s44, s3, 9\ns_add_u32 s44, s44, {RSL}\nv_lshlrev_b32 v9, 2, v0\nv_add_u32 v9, s44, v9")
        a(f"v_mov_b32 v4, {ffn.CNT + 32}")
        wait_cnt("K4_l8", 1)
        a("ds_read_b128 v[96:99], v7\nds_read_b128 v[100:103], v7 offset:1024")
        a(f"v_mov_b32 v4, {ffn.CNT + 48}")
        wait_cnt("K4_lr", 1, 2)
        for i in range(4): a(f"ds_read_b128 v[{BS+4*i}:{BS+4*i+3}], v8 offset:{1024*i}")
        a(f"ds_read_b32 v{RS_}, v9\nds_read_b32 v{RS_+1}, v9 offset:256")
        first[0] = True
        accum(96, 0); accum(100, 1)
        first[0] = False
        sums(late, 2)
        if SPL:
            gather((7,), 2, 14); sums((7,), 2)
        a("s_waitcnt lgkmcnt(0)")
        for i in range(2):
            fold(i, BS, RS_)
            for k in range(4): a(f"v_cvt_pk_bf16_f32 v{96+4*i+k}, v{BS+8*i+2*k}, v{BS+8*i+2*k+1}")
            a(f"buffer_store_dwordx4 v[{96+4*i}:{99+4*i}], v11, s[60:63], s64 offen\ns_add_u32 s64, s64, {8*DM*2}")
    a("K4_fin:")
    st0.finish(14, 3, 8)

HEADER = open("cdna_kernels/" + NAME + ".s.ref").read().split("; Override launch geometry")[0]
DOC = """; Generated by a Python script (hand-designed schedule). One persistent launch, 256 workgroups x 8 waves, one per CU:
"""
def build(stamp_k=-1, force_fallback=False, light=False, **opt):
    LIGHT[0] = light
    OPT.update(opt)
    a = Asm()
    hdr = HEADER + f"; @launch grid=({K1_GRID},1,1) block=(512,1,1) lds={max(K1_LDS, K2_LDS)}\n"
    hdr += DOC
    a('.amdgcn_target "amdgcn-amd-amdhsa--gfx950"\n.text')
    st = Stamps(a, stamp_k == 2, 2, 255, 254)
    k1(a, st)
    descs = [k2(a, st, force_fallback)]
    a('.set CODE_PF_N, (CODE_END - K2_out + 8191) / 8192')
    a('.section .rodata,"a"')
    txt = a.text()
    if OPT.get("stf"):
        txt = "\n".join(ln.replace(" sc1", OPT["stf"]) if "buffer_store" in ln else ln for ln in txt.split("\n"))
    if OPT.get("ldf"):
        txt = "\n".join(ln.replace(" sc1", OPT["ldf"]) if ("buffer_load" in ln and "s[24:27]" in ln) else ln for ln in txt.split("\n"))
    return hdr + txt + "".join(descs)

if __name__ == "__main__":
    out = sys.argv[1] if len(sys.argv) > 1 else "cdna_kernels/" + NAME + ".s"
    kw = eval("dict(" + (sys.argv[2] if len(sys.argv) > 2 else "") + ")")
    open(out, "w").write(build(**kw))
```

```python
import sys, math
from asmlib import *
from gemm import gemm_core
import ffn

T, DM, NH, DH, F = 2048, 576, 32, 18, 4608
NAME = "sequential_preLN__grouped_kv_mqa__dense_activation_relu__prompt"
A_X, A_WQ, A_WK, A_WV, A_WO, B_X, B_W1, B_W2, K_OUT, K_DBG, K_WS = [8 * i for i in range(11)]
def _al(x, a=4096): return (x + a - 1) // a * a
PAIR = 4736
FL_PF, FL_OF, FL_HF, FL_RF = 0, 294912, 294912 + 32768, 294912 + 32768 + 131072
FL_AF = FL_RF + 32768
FL_END = FL_AF + 32768
SW, SE = 100, 101
WS = {}
_o = 0
for nm, sz in [("EP", 128), ("Q", T*DM*2), ("KV", 32*PAIR), ("MEAN1", T*8), ("O", T*DM*2), ("HC", T*DM*2),
               ("SS", 128*8*128), ("XC", T*DM*2), ("WBAR", 36*1024), ("WOF", 648*1024), ("WF", 32*332*1024),
               ("PART", 8*T*DM*2), ("FLAG", FL_END), ("STAMP", 16 << 20)]:
    WS[nm] = (_o, sz); _o += _al(sz)
WS_END = _o
QSCALE = math.log2(math.e) / math.sqrt(DH)
def f32bits(x):
    import struct
    return struct.unpack("<I", struct.pack("<f", x))[0]
ONES = 0x3f803f80

def ws_srd(a, d, nm, base):
    srd(a, d, base, WS[nm][0], WS[nm][1])

def wave_lane(a, s_wave=3):
    a(f"v_lshrrev_b32 v1, 6, v0\nv_and_b32 v0, 63, v0\ns_nop 0\nv_readfirstlane_b32 s{s_wave}, v1")

def sum_g(a, v, t):
    a(f"v_mov_b32 v{t}, v{v}\ns_nop 1\nv_permlane32_swap_b32 v{v}, v{t}\ns_nop 1\nv_add_f32 v{v}, v{v}, v{t}")
    a(f"v_mov_b32 v{t}, v{v}\ns_nop 1\nv_permlane16_swap_b32 v{v}, v{t}\ns_nop 1\nv_add_f32 v{v}, v{v}, v{t}")

LIGHT = [False]
OPT = dict(prio=3, k2_nt=True, codepf=True)
class Stamps:
    def __init__(self, a, on, kidx, vreg, vtmp):
        self.a, self.on, self.k, self.v, self.t = a, bool(on) or LIGHT[0], kidx, vreg, vtmp
        self.full = bool(on)
    def start(self):
        if OPT.get("probe") is not None:
            self.a("s_memrealtime s[96:97]\ns_waitcnt lgkmcnt(0)\ns_mov_b32 s99, s96\ns_mov_b32 s98, s96")
        if self.on:
            self.a(f"s_memrealtime s[96:97]\ns_memtime s[98:99]\nv_mov_b32 v{self.v}, 0\ns_waitcnt lgkmcnt(0)\nv_writelane_b32 v{self.v}, s96, 62")
    def __call__(self, i):
        if OPT.get("probe") == i:
            self.a("s_memrealtime s[96:97]\ns_waitcnt lgkmcnt(0)\ns_mov_b32 s98, s96")
        if self.full or (self.on and i == 61):
            if OPT.get("rt") and i != 61:
                self.a(f"s_memrealtime s[96:97]\ns_waitcnt lgkmcnt(0)\nv_writelane_b32 v{self.v}, s96, {i}")
            else:
                self.a(f"s_memtime s[96:97]\ns_waitcnt lgkmcnt(0)\ns_sub_u32 s96, s96, s98\nv_writelane_b32 v{self.v}, s96, {i}")
    def dyn(self, base, sreg):
        if self.full:
            self.a(f"s_memrealtime s[96:97]\ns_add_u32 m0, s{sreg}, {base}\ns_waitcnt lgkmcnt(0)\nv_writelane_b32 v{self.v}, s96, m0")
    def finish(self, s_ws, s_wave, nw):
        if OPT.get("probe") is not None:
            a = self.a
            a(f"s_cmp_lg_u32 s2, 8\ns_cbranch_scc1 PB_e\ns_cmp_lg_u32 s{s_wave}, 0\ns_cbranch_scc1 PB_e\ns_memrealtime s[96:97]\ns_waitcnt lgkmcnt(0)")
            if OPT["probe"] == 63: a("s_mov_b32 s98, s96")
            a("s_sub_u32 s98, s98, s99\ns_mul_i32 s98, s98, " + str(OPT.get("pk", 2)) + "\ns_mov_b32 s99, s96\nPB_l:\ns_memrealtime s[96:97]\ns_waitcnt lgkmcnt(0)\ns_sub_u32 s96, s96, s99\ns_cmp_lt_u32 s96, s98\ns_cbranch_scc1 PB_l\nPB_e:")
        if self.on:
            a = self.a
            a("s_waitcnt vmcnt(0)")
            self(61)
            a(f"s_memrealtime s[96:97]\ns_waitcnt lgkmcnt(0)\nv_writelane_b32 v{self.v}, s96, 63")
            ws_srd(a, 92, "STAMP", s_ws)
            a(f"s_lshl_b32 s96, s2, 3\ns_add_u32 s96, s96, s{s_wave}\ns_lshl_b32 s96, s96, 8\ns_add_u32 s96, s96, {self.k << 21}")
            a(f"v_mbcnt_lo_u32_b32 v{self.t}, -1, 0\nv_mbcnt_hi_u32_b32 v{self.t}, -1, v{self.t}\nv_lshlrev_b32 v{self.t}, 2, v{self.t}")
            a(f"buffer_store_dword v{self.v}, v{self.t}, s[92:95], s96 offen")


def WST(): return OPT.get('wst', 326)
def RING(): return OPT.get('own', True)
def PAT(): return OPT.get('pat', (2, 2, 2, 1, 1, 1) if RING() else (3, 3, 2, 1))
class Repack:
    PR = 208
    def __init__(self, a): self.a = a
    def common(self):
        return (f"s_add_u32 s60, s14, {WS['WOF'][0]}\ns_addc_u32 s61, s15, 0\ns_mov_b32 s62, {WS['WF'][0] + WS['WF'][1] - WS['WOF'][0]}\ns_mov_b32 s63, 0x00020000\n"
                "v_and_b32 v6, 15, v0\nv_lshrrev_b32 v7, 4, v0\ns_mov_b32 s80, 0x05040100\ns_mov_b32 s81, 0x07060302")
    def regs(self, rnd): return 64 + 4 * rnd, 72 + 4 * rnd, 82 + 4 * rnd, 242 + rnd, 240 + rnd
    def setup_ffn(self, rnd, pw1, pw2):
        L = self.a.label("rp")
        SD, SB_, SO, vsrc, dst = self.regs(rnd)
        OWF = WS["WF"][0] - WS["WOF"][0]
        t = []; A = t.append
        A(f"s_mul_hi_u32 s46, s47, {(2**32 + 161)//162}\ns_mul_i32 s49, s46, 162\ns_sub_u32 s47, s47, s49")
        A(f"s_mul_hi_u32 s49, s47, {(2**32 + 8)//9}\ns_mul_i32 s50, s49, 9\ns_sub_u32 s50, s47, s50")
        A(f"s_mov_b32 s{SD+3}, 0x00020000\ns_lshl_b32 s54, s50, 7\nv_mov_b32 v{dst}, v3")
        A(f"s_cmp_lt_u32 s46, 2\ns_cselect_b32 s{SD+2}, {DM*F*2}, 0\ns_cselect_b32 s57, 0, 0x100000")
        A(f"s_mul_i32 s53, s45, {4*WST()}\ns_mul_i32 s55, s46, 162\ns_add_u32 s53, s53, s55\ns_add_u32 s53, s53, {OWF//1024}\ns_add_u32 s53, s53, s57")
        A(f"s_cmp_eq_u32 s46, 1\ns_cbranch_scc1 {L}_w2")
        A("s_mul_i32 s55, s49, 3\ns_add_u32 s53, s53, s55")
        for q in range(4):
            A(f"s_lshl_b32 s55, s50, 2\ns_add_u32 s55, s55, {q}\ns_mul_i32 s56, s55, 86\ns_lshr_b32 s56, s56, 8")
            A(f"s_lshr_b32 s58, s56, 2\ns_mul_i32 s58, s58, {4*WST()-54}\ns_mul_i32 s56, s56, {WST()-3}\ns_sub_u32 s56, s56, s58")
            A(f"s_add_u32 s55, s55, s56\ns_add_u32 s55, s55, s53\ns_lshl_b32 s{SO+q}, s55, 10")
        A(f"s_mov_b32 s{SD}, s{pw1}\ns_mov_b32 s{SD+1}, s{pw1+1}\ns_mul_i32 s53, s49, {32*F*2}\ns_mul_i32 s55, s45, {DM*2}\ns_add_u32 s53, s53, s55\ns_add_u32 s{SB_}, s53, s54")
        A(f"s_mov_b32 s{SB_+1}, {4*F*2}\ns_mov_b32 s{SB_+2}, {2*F*2}\ns_mov_b32 s{SB_+3}, {F*2}")
        A(f"v_mul_u32_u24 v{vsrc}, {8*F*2}, v7\nv_lshl_add_u32 v{vsrc}, v6, 3, v{vsrc}\ns_branch {L}_done")
        A(f"{L}_w2:")
        idx, siz = 0, 0
        cb = 0
        for n in PAT():
            for i in range(n):
                idx |= i << (2 * (cb + i)); siz |= n << (2 * (cb + i))
            cb += n
        if RING():
            A("s_sub_u32 s55, s50, s45\ns_sub_u32 s55, s55, 1\ns_and_b32 s55, s55, 7\ns_add_u32 s55, s55, 1\ns_cmp_eq_u32 s50, 8\ns_cselect_b32 s50, 0, s55")
        A(f"s_lshl_b32 s55, s50, 1\ns_lshr_b32 s56, {idx}, s55\ns_and_b32 s56, s56, 3\ns_lshr_b32 s58, {siz}, s55\ns_and_b32 s58, s58, 3")
        A("s_mul_i32 s58, s58, s49\ns_add_u32 s53, s53, s58\ns_mul_i32 s58, s50, 18\ns_add_u32 s53, s53, s58\ns_mul_i32 s56, s56, 17\ns_sub_u32 s53, s53, s56")
        A(f"s_lshl_b32 s{SO}, s53, 10\ns_add_u32 s{SO+1}, s{SO}, {WST()*1024}\ns_add_u32 s{SO+2}, s{SO}, {2*WST()*1024}\ns_add_u32 s{SO+3}, s{SO}, {3*WST()*1024}")
        A(f"s_mov_b32 s{SD}, s{pw2}\ns_mov_b32 s{SD+1}, s{pw2+1}\ns_lshr_b32 s53, s49, 1\ns_lshl_b32 s53, s53, 6\ns_and_b32 s55, s49, 1\ns_lshl_b32 s55, s55, 1\ns_add_u32 s53, s53, s55")
        A(f"s_mul_i32 s55, s45, {DM}\ns_add_u32 s53, s53, s55\ns_mul_i32 s53, s53, {DM*2}\ns_add_u32 s{SB_}, s53, s54")
        A(f"s_mov_b32 s{SB_+1}, {DM*2}\ns_mov_b32 s{SB_+2}, {8*DM*2}\ns_mov_b32 s{SB_+3}, {4*DM*2}")
        A(f"v_mul_u32_u24 v{vsrc}, {16*DM*2}, v7\nv_lshl_add_u32 v{vsrc}, v6, 3, v{vsrc}")
        A(f"{L}_done:")
        return "\n".join(t)
    def setup_wo(self, rnd, pwo, scr):
        L = self.a.label("rp")
        SD, SB_, SO, vsrc, dst = self.regs(rnd)
        t = []; A = t.append
        A(f"s_mul_hi_u32 s49, s47, {(2**32 + 8)//9}\ns_mul_i32 s50, s49, 9\ns_sub_u32 s50, s47, s50")
        A(f"s_mov_b32 s{SD+3}, 0x00020000\ns_lshl_b32 s54, s50, 7")
        A(f"s_mov_b32 s{SD}, s{pwo}\ns_mov_b32 s{SD+1}, s{pwo+1}\ns_cmp_lt_u32 s47, 162\ns_cselect_b32 s{SD+2}, {DM*DM*2}, 0\ns_cselect_b32 s56, 0, 0x40000000")
        for e in range(2):
            A(f"s_lshl_b32 s55, s50, 1\ns_add_u32 s55, s55, {e}\ns_mul_i32 s57, s55, 86\ns_lshr_b32 s57, s57, 8\ns_mul_i32 s58, s57, 3\ns_cmp_lt_u32 s49, s58\ns_cselect_b32 s58, 54, 0")
            A(f"s_mul_i32 s57, s57, 42\ns_add_u32 s55, s55, s57\ns_add_u32 s55, s55, s58\ns_mul_i32 s57, s49, 3\ns_add_u32 s55, s55, s57\ns_lshl_b32 s55, s55, 11\ns_add_u32 s{SO+e}, s55, s56")
        A(f"v_lshrrev_b32 v245, 3, v6\nv_lshlrev_b32 v245, 11, v245\nv_and_b32 v246, 7, v6\nv_lshl_add_u32 v245, v246, 5, v245\nv_lshl_add_u32 v245, v7, 8, v245\nv_add_u32 v{dst}, s{scr}, v245")
        A(f"s_mov_b32 s{SB_+3}, {DM*2}\ns_cmp_ge_u32 s49, 16\ns_cbranch_scc1 {L}_wo2")
        A(f"s_mul_i32 s53, s49, {36*DM*2}\ns_mov_b32 s{SB_+1}, {8*DM*2}\ns_mov_b32 s{SB_+2}, {2*DM*2}")
        A(f"v_lshrrev_b32 v246, 1, v7\nv_mul_u32_u24 v246, 18, v246\nv_and_b32 v247, 1, v7\nv_lshl_add_u32 v246, v247, 2, v246\ns_branch {L}_wo3")
        A(f"{L}_wo2:")
        A(f"s_sub_u32 s53, s49, 16\ns_mul_i32 s53, s53, {288*DM*2}\ns_add_u32 s53, s53, {16*DM*2}\ns_mov_b32 s{SB_+1}, {36*DM*2}\ns_mov_b32 s{SB_+2}, {18*DM*2}")
        A(f"v_mul_u32_u24 v246, 72, v7")
        A(f"{L}_wo3:")
        A(f"s_add_u32 s{SB_}, s53, s54\nv_mul_u32_u24 v{vsrc}, {DM*2}, v246\nv_lshl_add_u32 v{vsrc}, v6, 3, v{vsrc}")
        return "\n".join(t)
    def load(self, rnd, s_, flag=""):
        SD, SB_, SO, vsrc, dst = self.regs(rnd)
        raw = self.PR + 16 * rnd
        t = f"s_mov_b32 s55, s{SB_}\n"
        if s_ & 4: t += f"s_add_u32 s55, s55, s{SB_+1}\n"
        if s_ & 2: t += f"s_add_u32 s55, s55, s{SB_+2}\n"
        if s_ & 1: t += f"s_add_u32 s55, s55, s{SB_+3}\n"
        return t + f"buffer_load_dwordx2 v[{raw+2*s_}:{raw+2*s_+1}], v{vsrc}, s[{SD}:{SD+3}], s55 offen{flag}"
    def store(self, rnd, q_, flag=""):
        SD, SB_, SO, vsrc, dst = self.regs(rnd)
        raw = self.PR + 16 * rnd
        t = 196 + 4 * (q_ % 2)
        L = [f"v_perm_b32 v{t+j}, v{raw+2*(2*j+1)+(q_>>1)}, v{raw+2*(2*j)+(q_>>1)}, s{80+(q_&1)}" for j in range(4)]
        L.append(f"buffer_store_dwordx4 v[{t}:{t+3}], v{dst}, s[60:63], s{SO+q_} offen{flag}")
        return "\n".join(L)
    def touch(self, rnd):
        SD, SB_, SO, vsrc, dst = self.regs(rnd)
        return "s_mov_b64 exec, 0xff\nv_lshlrev_b32 v204, 7, v0\n" + "\n".join(f"buffer_load_dword v205, v204, s[60:63], s{SO+q} offen sc1" for q in range(4)) + "\ns_mov_b64 exec, -1"

def ffn_map(sj, smb):
    SL = OPT.get("k4_sl", 1); lg = SL.bit_length() - 1
    return (f"s_and_b32 s46, s2, 7\ns_lshr_b32 s47, s2, 3\ns_and_b32 s{sj}, s46, {8//SL-1}\ns_lshl_b32 s{sj}, s{sj}, {lg}\ns_and_b32 s48, s47, {SL-1}\ns_add_u32 s{sj}, s{sj}, s48\n"
            f"s_lshr_b32 s{smb}, s46, {3-lg}\ns_lshl_b32 s{smb}, s{smb}, {5-lg}\ns_lshr_b32 s48, s47, {lg}\ns_add_u32 s{smb}, s{smb}, s48\n")

def poll(a, n, voff, srd_, soff, vt, slp=2, first_loaded=False):
    L = a.label("poll")
    m = (1 << n) - 1
    a(f"s_mov_b32 s91, 0x10000\ns_mov_b32 exec_lo, {m & 0xffffffff}\ns_mov_b32 exec_hi, {m >> 32}" + (f"\ns_branch {L}_1" if first_loaded else ""))
    a(f"{L}:\nbuffer_load_dword v{vt}, v{voff}, s[{srd_}:{srd_+3}], s{soff} offen{OPT.get('pollf', ' sc1')}\ns_waitcnt vmcnt(0)\n{L}_1:\nv_cmp_eq_u32 vcc, s{SE}, v{vt}\ns_nop 1\ns_cmp_eq_u64 vcc, exec\ns_cbranch_scc1 {L}_ok\ns_sleep {slp}\ns_sub_u32 s91, s91, 1\ns_cbranch_scc0 {L}\n{L}_ok:")
    a("s_mov_b64 exec, -1")

K1_GRID = 256
K1_LDS = 159744 + 1280
def k1(a, st0):
    st = lambda i: st0({3: 30, 22: 31, 23: 30, 2: 31}[i]) if i in (2, 3, 22, 23) else None
    XLQ, XLK = 73728, 86016
    KVI = OPT.get('kvi', 21504)
    ST = OPT.get('k1_st', ' sc1')
    LATE = OPT.get('late', False)
    EPX = f's_load_dword s{SE}, s[14:15], 0'
    EP0 = '' if LATE else '\n' + EPX
    EP1 = EPX if LATE else ''
    kernel_begin(a, NAME + "_kernel")
    if OPT["codepf"]:
        a(f"s_cmp_ge_u32 s2, {OPT.get('pfn', 256)}\ns_cbranch_scc1 K1_nopf")
        a("s_getpc_b64 s[58:59]\nK1_pc:\nv_lshlrev_b32 v252, 7, v0\nv_min_u32 v252, K2_out-K1_pc, v252\nglobal_load_dword v253, v252, s[58:59]")
        a("K1_nopf:")
    a(f"s_cmp_lt_u32 s2, {K1_GRID}\ns_cbranch_scc1 K1_go\ns_endpgm\nK1_go:")
    a(f"s_load_dwordx4 s[4:7], s[0:1], {A_X}\ns_load_dwordx4 s[8:11], s[0:1], {A_WK}\ns_load_dwordx2 s[12:13], s[0:1], {A_WO}\ns_load_dwordx2 s[14:15], s[0:1], {K_WS}")
    st0.start()
    wave_lane(a)
    a(f"v_and_b32 v1, 15, v0\nv_lshrrev_b32 v2, 4, v0\ns_mov_b32 s{SW}, s3")
    if OPT.get("k1map", 0) == 1:
        a("s_and_b32 s62, s2, 7\ns_lshl_b32 s44, s62, 2\ns_bfe_u32 s61, s2, 0x20003\ns_add_u32 s44, s44, s61\ns_lshr_b32 s45, s2, 5")
        a(f"s_mul_i32 s60, s61, {OPT.get('rm', 1)}\ns_add_u32 s60, s60, s45\ns_add_u32 s60, s60, s62")
    else:
        a("s_bfe_u32 s44, s2, 0x20001\ns_lshl_b32 s44, s44, 3\ns_bfe_u32 s61, s2, 0x30003\ns_add_u32 s44, s44, s61\ns_and_b32 s45, s2, 1\ns_lshl_b32 s45, s45, 2\ns_lshr_b32 s62, s2, 6\ns_add_u32 s45, s45, s62")
        a("s_mul_i32 s60, s62, 9\ns_lshr_b32 s60, s60, 2\ns_add_u32 s60, s60, s61\ns_and_b32 s61, s2, 7\ns_add_u32 s60, s60, s61")
    S1 = OPT.get("seg", 5)
    if S1 < 9:
        S2 = 9 - S1
        a(f"s_mul_i32 s61, s60, {(4096 + S2 - 1)//S2}\ns_lshr_b32 s61, s61, 12\ns_mul_i32 s61, s61, {S2}\ns_sub_u32 s71, s60, s61")
        a(f"s_cmp_ge_u32 s45, 6\ns_cselect_b32 s71, 0, s71\ns_add_u32 s71, s71, {S1}")
    a(f"s_mul_i32 s61, s60, {(4096 + S1 - 1)//S1}\ns_lshr_b32 s61, s61, 12\ns_mul_i32 s61, s61, {S1}\ns_sub_u32 s60, s60, s61")
    def adv(slot, unit):
        if slot == S1 - 1 and S1 < 9: return f"s_mul_i32 s61, s71, {unit}"
        if slot < S1: return f"s_add_u32 s61, s61, {unit}\ns_cmp_eq_u32 s61, {S1*unit}\ns_cselect_b32 s61, 0, s61"
        return f"s_add_u32 s61, s61, {unit}\ns_cmp_eq_u32 s61, {9*unit}\ns_cselect_b32 s61, {S1*unit}, s61"
    a(f"s_cmp_ge_u32 s45, 6\ns_cselect_b32 s60, 0, s60\ns_mov_b32 s63, {XLQ}\ns_cselect_b32 s63, {XLK}, s63")
    a("v_lshrrev_b32 v4, 3, v0\nv_and_b32 v5, 7, v0\ns_lshl_b32 s90, s45, 5\ns_add_u32 s90, s90, s44")
    EX = 159744
    X0 = 16
    AR = 172
    ACC, CS, RS, GR, WF, ON = 88, 192, 112, 116, 120, 168
    ONr = f"v[{ON}:{ON+3}]"
    def V4(b): return f"v[{b}:{b+3}]"
    def lane_rc():
        a("v_lshrrev_b32 v10, 2, v1\nv_and_b32 v11, 3, v1\nv_lshl_add_u32 v12, v2, 3, v10")
    def xaddr(sbase):
        a(f"v_and_b32 v7, 7, v1\nv_xor_b32 v8, v2, v7\nv_lshlrev_b32 v8, 4, v8\nv_lshl_add_u32 v8, v1, 7, v8\nv_add_u32 v8, s{sbase}, v8\nv_xor_b32 v9, 64, v8")
        a("v_add_u32 v190, 0x8000, v8\nv_add_u32 v191, 0x8000, v9")
    def xrd(reg, ks, extra=0):
        p, e = divmod(ks, 2)
        b, o = (8 + e, 8192 * p) if p < 4 else (190 + e, 8192 * (p - 4))
        return f"ds_read_b128 {V4(reg)}, v{b} offset:{o + extra}"
    def waddr(shalf):
        a("v_lshrrev_b32 v13, 1, v10\nv_and_b32 v14, 1, v2\nv_lshl_add_u32 v13, v14, 1, v13")
        a("v_lshlrev_b32 v15, 7, v12\nv_lshl_add_u32 v15, v11, 3, v15\nv_lshlrev_b32 v7, 6, v12\nv_lshl_add_u32 v7, v11, 3, v7\nv_add_u32 v7, 4096, v7")
        a(f"s_cmp_eq_u32 s{shalf}, 1\ns_cselect_b64 vcc, -1, 0\ns_mul_i32 s55, s{shalf}, 3")
        a(f"v_xor_b32 v184, s55, v13\nv_lshl_add_u32 v{AR}, v184, 5, v15\nv_add_u32 v{AR+3}, 512, v{AR}")
        for t in (1, 2):
            a(f"v_xor_b32 v184, {t}, v13\nv_lshl_add_u32 v184, v184, 5, v15\nv_xor_b32 v185, {t-1}, v14\nv_lshl_add_u32 v185, v185, 5, v7")
            a(f"v_cndmask_b32 v{AR+t}, v184, v185, vcc\nv_add_u32 v184, 512, v184\nv_add_u32 v185, 256, v185\nv_cndmask_b32 v{AR+3+t}, v184, v185, vcc")
        for i in range(6): a(f"v_add_u32 v{AR+6+i}, {9*6144}, v{AR+i}")
    def wrd(reg, ks, t):
        hi = ks >= 9
        off = (ks - 9 * hi) * 6144
        return [f"ds_read_b64_tr_b16 v[{reg}:{reg+1}], v{AR+6*hi+t} offset:{off}", f"ds_read_b64_tr_b16 v[{reg+2}:{reg+3}], v{AR+6*hi+3+t} offset:{off}"]
    def stat_mfma(x, first):
        return [f"v_mfma_f32_16x16x32_bf16 {V4(RS)}, {ONr}, {V4(x)}, {'0' if first else V4(RS)}",
                f"v_mfma_f32_16x16x32_bf16 {V4(GR)}, {V4(x)}, {V4(x)}, {'0' if first else V4(GR)}"]
    def stats_out():
        a("v_cmp_eq_u32 vcc, 1, v11\nv_cmp_eq_u32 s[54:55], 2, v11\nv_cmp_eq_u32 s[56:57], 3, v11\nv_cmp_eq_u32 s[58:59], v10, v2\ns_nop 3")
        a(f"v_mul_f32 v4, {f32bits(-1.0/DM)}, v{RS}")
        a(f"v_cndmask_b32 v5, v{GR}, v{GR+1}, vcc\nv_cndmask_b32 v5, v5, v{GR+2}, s[54:55]\nv_cndmask_b32 v5, v5, v{GR+3}, s[56:57]\nv_cndmask_b32 v5, 0, v5, s[58:59]")
        sum_g(a, 5, 7)
        a(f"v_mul_f32 v5, {f32bits(1.0/DM)}, v5\nv_fma_f32 v5, -v4, v4, v5\nv_max_f32 v5, 0, v5\nv_add_f32 v5, {f32bits(1e-5)}, v5\nv_rsq_f32 v5, v5")
        a(f"s_lshl_b32 s54, s3, 7\ns_add_u32 s54, s54, {EX + 768}\nv_lshlrev_b32 v7, 3, v1\nv_add_u32 v7, s54, v7\nds_write_b64 v7, v[4:5]")
    if OPT.get("wtlb", False):
        a(f"s_cmp_lg_u32 s3, 7\ns_cbranch_scc1 K1_ntl\ns_load_dwordx4 s[24:27], s[0:1], {B_W1}\nv_lshlrev_b32 v250, 20, v0\ns_waitcnt lgkmcnt(0)")
        for b in (24, 26):
            a(f"s_mov_b32 s28, s{b}\ns_mov_b32 s29, s{b+1}\ns_mov_b32 s30, {DM*F*2}\ns_mov_b32 s31, 0x00020000\nbuffer_load_dword v251, v250, s[28:31], 0 offen nt")
        a("K1_ntl:")
    a("s_cmp_ge_u32 s3, 4\ns_cbranch_scc1 K1_ld")
    a("s_lshl_b32 s46, s44, 6\ns_lshl_b32 s47, s3, 4\ns_add_u32 s46, s46, s47")
    a(f"s_mul_i32 s47, s46, {DM*2}")
    a(f"v_xor_b32 v6, v4, v5\nv_mul_u32_u24 v3, {DM*2}, v4\nv_lshl_add_u32 v3, v6, 4, v3\nv_add_u32 v6, {8*DM*2 - 1024}, v3")
    a(f"s_lshl_b32 s61, s60, 7\ns_lshl_b32 s64, s3, 11\ns_add_u32 s64, s63, s64\ns_mov_b32 s66, s64")
    a(f"s_waitcnt lgkmcnt(0){EP0}")
    srd(a, 16, 4, 0, T*DM*2)
    def xdma(slot):
        return ("s_mov_b32 m0, s64\ns_add_u32 s62, s47, s61\ns_add_u32 s64, s64, 8192\n"
                "buffer_load_dwordx4 v3, s[16:19], s62 offen lds\nbuffer_load_dwordx4 v6, s[16:19], s62 offen offset:1024 lds\n"
                + adv(slot, 128))
    XA = OPT.get("k1_xa", 3)
    a(f"s_mov_b32 s70, {XA}\nK1_xl:"); assert XA < S1; a(xdma(0)); a("s_sub_u32 s70, s70, 1\ns_cmp_lg_u32 s70, 0\ns_cbranch_scc1 K1_xl\ns_branch K1_comp")
    a("K1_ld:")
    if OPT.get("lprio", 3): a(f"s_setprio {OPT.get('lprio', 3)}")
    a("s_cmp_eq_u32 s45, 7\ns_cbranch_scc1 K1_worp")
    a("s_sub_u32 s3, s3, 4")
    a("s_cmp_lg_u32 s45, 6\ns_cbranch_scc1 K1_qld")
    a(f"v_lshlrev_b32 v3, 4, v0\ns_and_b32 s48, s3, 1\ns_lshl_b32 s48, s48, 2\ns_mul_i32 s49, s3, {KVI}")
    a(f"s_waitcnt lgkmcnt(0){EP0}")
    a(f"s_cmp_lt_u32 s3, 2\ns_cselect_b32 s24, s8, s10\ns_cselect_b32 s25, s9, s11\ns_mov_b32 s26, {DM*DH*2}\ns_mov_b32 s27, 0x00020000")
    a(f"s_add_u32 s70, s49, {21*1024}\nK1_kl:\ns_mov_b32 m0, s49\ns_add_u32 s49, s49, 1024\nbuffer_load_dwordx4 v3, s[24:27], s48 offen lds\ns_add_u32 s48, s48, 1024\ns_cmp_lg_u32 s49, s70\ns_cbranch_scc1 K1_kl\ns_branch K1_kvload")
    a("K1_qld:")
    a("v_and_b32 v6, 1, v2\ns_and_b32 s48, s3, 1\ns_lshl_b32 s48, s48, 2\nv_lshlrev_b32 v6, 1, v6\nv_or_b32 v6, s48, v6\nv_xor_b32 v6, v6, v5")
    a(f"v_mul_u32_u24 v3, {DM*2}, v4\nv_lshl_add_u32 v3, v6, 4, v3")
    a("v_lshrrev_b32 v7, 5, v0\nv_lshlrev_b32 v7, 1, v7\nv_and_b32 v6, 3, v0\nv_xor_b32 v7, v7, v6\nv_lshrrev_b32 v6, 2, v0")
    a(f"v_mul_u32_u24 v6, {DM*2}, v6\nv_lshl_add_u32 v6, v7, 4, v6")
    a("s_mul_i32 s48, s45, 192\ns_and_b32 s53, s45, 1\ns_lshl_b32 s54, s53, 6\ns_add_u32 s49, s48, s54\ns_xor_b32 s53, s53, 1\ns_lshl_b32 s53, s53, 7\ns_add_u32 s50, s48, s53")
    a(f"s_mul_i32 s53, s3, {8*DM*2}\ns_add_u32 s49, s49, s53\ns_mul_i32 s53, s3, {16*DM*2}\ns_add_u32 s50, s50, s53")
    a("s_lshl_b32 s51, s3, 10")
    a("s_lshr_b32 s52, s3, 1\ns_mul_i32 s52, s52, 6144\ns_and_b32 s53, s3, 1\ns_lshl_b32 s53, s53, 10\ns_add_u32 s52, s52, s53\ns_add_u32 s52, s52, 4096")
    a(f"s_mul_i32 s61, s60, {64*DM*2}")
    a(f"s_waitcnt lgkmcnt(0){EP0}")
    srd(a, 20, 6, 0, DM*DM*2)
    def wdma(slot):
        a(f"s_add_u32 s62, s49, s61\ns_add_u32 s65, s50, s61\ns_add_u32 s64, s62, {32*DM*2}")
        a(f"s_mov_b32 m0, s51\ns_add_u32 s51, s51, 6144\nbuffer_load_dwordx4 v3, s[20:23], s62 offen lds")
        a(f"s_mov_b32 m0, s52\ns_add_u32 s52, s52, 12288\nbuffer_load_dwordx4 v6, s[20:23], s65 offen lds")
        a(f"s_mov_b32 m0, s51\ns_add_u32 s51, s51, 6144\nbuffer_load_dwordx4 v3, s[20:23], s64 offen lds")
        a(adv(slot, 64*DM*2))
    LA = OPT.get('k1_la', 2)
    a(f"s_mov_b32 s70, {LA}\nK1_wl:"); assert LA < S1; wdma(0); a("s_sub_u32 s70, s70, 1\ns_cmp_lg_u32 s70, 0\ns_cbranch_scc1 K1_wl")
    lane_rc()
    a("s_lshl_b32 s66, s3, 11\ns_add_u32 s66, s66, s63\ns_lshr_b32 s67, s3, 1")
    xaddr(66); waddr(67)
    a("s_and_b32 s55, s3, 1\ns_mul_i32 s55, s55, 6144")
    for i in range(12): a(f"v_add_u32 v{AR+i}, s55, v{AR+i}")
    for r in range(4): a(f"v_mov_b32 v{ON+r}, {ONES}")
    XE = 56
    for p in range(10):
        if p < 9:
            a(f"s_waitcnt vmcnt({3*(min(p + LA, 9) - p - 1)}) lgkmcnt(0)\ns_barrier")
            b = (p % 2) * 20
            if p == 0: a(EP1)
            if p < 8:
                a(xrd(X0 + b, 2*p)); a(xrd(X0 + b + 4, 2*p + 1))
            if p == 7:
                a(xrd(XE, 16)); a(xrd(XE + 4, 17))
            for t in range(3):
                for x in wrd(X0 + b + 8 + 4*t, 2*p if p != 4 else 8, t): a(x)
        else:
            a("s_waitcnt lgkmcnt(0)")
        if p > 0:
            b = ((p - 1) % 2) * 20
            if p < 9:
                for x in stat_mfma(X0 + b, p == 1) + stat_mfma(X0 + b + 4, False): a(x)
            if p == 8:
                for x in stat_mfma(XE, False) + stat_mfma(XE + 4, False): a(x)
            for t in range(3):
                a(f"v_mfma_f32_16x16x32_bf16 {V4(CS+4*t)}, {V4(X0+b+8+4*t)}, {ONr}, {'0' if p == 1 else V4(CS+4*t)}")
            if p == 8: stats_out()
        if p + LA < 9: wdma(p + LA)
    a(f"s_mul_i32 s54, s3, 192\ns_add_u32 s54, s54, {EX}\nv_lshlrev_b32 v7, 4, v2\nv_add_u32 v7, s54, v7\ns_nop 3")
    for t in range(3): a(f"ds_write_b128 v7, {V4(CS+4*t)} offset:{64*t}")
    a("s_waitcnt lgkmcnt(0)\ns_barrier\ns_branch K1_fin")
    a("K1_comp:")
    st(0)
    lane_rc()
    a("s_cmp_ge_u32 s45, 6\ns_cbranch_scc1 K1_kvgemm")
    a("s_and_b32 s68, s3, 1\ns_lshl_b32 s66, s68, 12\ns_add_u32 s66, s66, s63\ns_lshr_b32 s67, s3, 1")
    xaddr(66); waddr(67)
    ws_srd(a, 32, "Q", 14)
    def frags(ks):
        b = X0 + (ks % 2) * 20
        L = [xrd(b, ks), xrd(b + 4, ks, 2048)]
        for t in range(3): L += wrd(b + 8 + 4*t, ks, t)
        return L
    nx = XA
    a(f"s_waitcnt vmcnt({2*XA-2})\ns_barrier")
    st(2)
    a(EP1)
    for x in frags(0): a(x)
    for ks in range(18):
        p = ks // 2
        if ks % 2 == 1 and ks < 17:
            a(f"s_waitcnt vmcnt({2*(nx - p - 2) if ks < 13 else 0})" + (" lgkmcnt(6)" if ks == 9 else "") + "\ns_barrier")
        b = X0 + (ks % 2) * 20
        nf = frags(ks + 1) if ks < 17 else []
        issued = 0
        for t in range(3):
            a(f"s_waitcnt lgkmcnt({4 - 2*t + issued})")
            for m in range(2):
                d = ACC + (t*2 + m) * 4
                a(f"v_mfma_f32_16x16x32_bf16 {V4(d)}, {V4(b+8+4*t)}, {V4(b+4*m)}, {'0' if ks == 0 else V4(d)}")
                for x in nf[:2]: a(x); issued += 1
                nf = nf[2:]
        if ks % 2 == 0 and nx < 9:
            a(xdma(nx)); nx += 1
    st(3)
    a("v_lshlrev_b32 v3, 3, v0")
    a(f"s_lshl_b32 s48, s44, 1\ns_add_u32 s48, s48, s68\ns_mul_i32 s48, s48, {4*9216}")
    a("s_mul_i32 s49, s45, 6\ns_and_b32 s50, s45, 1\ns_lshl_b32 s51, s50, 1\ns_add_u32 s51, s51, s49\ns_lshl_b32 s50, s50, 2\ns_sub_u32 s52, s49, s50\ns_mul_i32 s69, s67, 3")
    a(f"s_mul_i32 s54, s67, 384\ns_add_u32 s54, s54, {EX}\nv_lshlrev_b32 v7, 4, v2\nv_add_u32 v7, s54, v7")
    a(f"s_lshl_b32 s54, s68, 8\ns_add_u32 s54, s54, {EX + 768}\nv_lshlrev_b32 v8, 3, v1\nv_add_u32 v8, s54, v8")
    a("s_barrier")
    a("ds_read_b64 v[12:13], v8\nds_read_b64 v[14:15], v8 offset:128")
    for i in range(6): a(f"ds_read_b128 {V4(CS+4*i)}, v7 offset:{64*i}")
    a(f"s_waitcnt lgkmcnt(0)\nv_mul_f32 v13, {f32bits(QSCALE)}, v13\nv_mul_f32 v15, {f32bits(QSCALE)}, v15")
    for t in range(3):
        a(f"s_add_u32 s53, s69, {t}\ns_cmp_lt_u32 s53, 4\ns_cselect_b32 s54, s51, s52\ns_add_u32 s53, s53, s54")
        a("s_mul_i32 s54, s53, 57\ns_lshr_b32 s54, s54, 9\ns_mul_i32 s54, s54, 4608\ns_lshl_b32 s53, s53, 9\ns_add_u32 s53, s53, s54\ns_add_u32 s53, s53, s48\ns_add_u32 s55, s53, 4608")
        for r in range(4): a(f"v_add_f32 v{CS+4*t+r}, v{CS+4*t+r}, v{CS+12+4*t+r}")
        for m in range(2):
            b = ACC + (t*2 + m) * 4
            for r in range(4): a(f"v_fmac_f32 v{b+r}, v{CS+4*t+r}, v{12+2*m}\nv_mul_f32 v{b+r}, v{b+r}, v{13+2*m}")
            a(f"v_cvt_pk_bf16_f32 v{b}, v{b}, v{b+1}\nv_cvt_pk_bf16_f32 v{b+1}, v{b+2}, v{b+3}")
            a(f"buffer_store_dwordx2 v[{b}:{b+1}], v3, s[32:35], s{53+2*m} offen{ST}")
    a("s_branch K1_fin")
    def kaddr():
        a(f"v_mul_u32_u24 v13, 36, v12\nv_lshl_add_u32 v13, v11, 3, v13\nv_and_b32 v14, 1, v10\nv_mul_u32_u24 v14, {KVI - 4}, v14\nv_add_u32 v{AR}, v13, v14")
        a(f"v_mul_u32_u24 v13, 36, v12\nv_add_u32 v{AR+1}, v13, v14")
    a("K1_kvload:")
    lane_rc()
    a("s_lshl_b32 s66, s3, 11\ns_add_u32 s66, s66, s63")
    xaddr(66)
    for r in range(4): a(f"v_mov_b32 v{ON+r}, {ONES}")
    ws_srd(a, 40, "MEAN1", 14)
    a(f"s_lshl_b32 s46, s44, 2\ns_add_u32 s46, s46, s3")
    a("s_waitcnt vmcnt(0)\ns_barrier")
    for ks in range(8): a(xrd(X0 + 4*ks, ks))
    for ks in range(18):
        a(f"s_waitcnt lgkmcnt({min(7, 17 - ks)})")
        for x in stat_mfma(X0 + 4*ks, ks == 0): a(x)
        if ks + 8 < 18: a(xrd(X0 + 4*(ks + 8), ks + 8))
    a("s_nop 3")
    stats_out()
    a("s_waitcnt lgkmcnt(0)\ns_barrier")
    a("v_sub_f32 v9, 0, v4\nv_lshlrev_b32 v7, 2, v0\ns_lshl_b32 s49, s46, 7\ns_mov_b32 exec_lo, -1\ns_mov_b32 exec_hi, 0\nbuffer_store_dword v9, v7, s[40:43], s49 offen sc1\ns_mov_b64 exec, -1")
    a("s_barrier\ns_branch K1_fin")
    a(f"K1_worp:\ns_waitcnt lgkmcnt(0){EP0}\nv_lshlrev_b32 v3, 4, v0")
    rp = Repack(a)
    a(rp.common())
    if OPT.get("wolate", True): a("s_barrier")
    for rnd in range(2):
        a(f"s_lshl_b32 s47, s44, 2\ns_add_u32 s47, s47, s3\ns_add_u32 s47, s47, {128*rnd - 4 & 0xffffffff}")
        a(f"s_lshl_b32 s59, s3, 13\ns_sub_u32 s59, s59, {32768 - 4096 - 4096*rnd}\nv_add_u32 v{16+rnd}, s59, v3")
        a(rp.setup_wo(rnd, 12, 59))
        for n in range(8): a(rp.load(rnd, n))
    for rnd in range(2):
        a(f"s_waitcnt vmcnt({8 if rnd == 0 else 4})")
        for n in range(4):
            t = rp.store(rnd, n).split("\n")[:4]
            a("\n".join(t) + f"\nds_write_b128 v{240+rnd}, v[{196+4*(n%2)}:{199+4*(n%2)}] offset:{(n&1)*1024 + (n>>1)*16}")
        for n in range(4): a(f"ds_read_b128 v[{32+16*rnd+4*n}:{35+16*rnd+4*n}], v{16+rnd} offset:{1024*n}")
        for n in range(4): a(f"s_waitcnt lgkmcnt({3-n})\nbuffer_store_dwordx4 v[{32+16*rnd+4*n}:{35+16*rnd+4*n}], v3, s[60:63], s{82+4*rnd+(n>>1)} offen offset:{1024*(n&1)} sc1")
    a("s_branch K1_fin")
    a("K1_kvgemm:")
    a("s_cmp_eq_u32 s45, 7\ns_cbranch_scc1 K1_wbar")
    for p in range(XA, 9): a(xdma(p))
    xaddr(63); kaddr()
    a(f"s_cmp_ge_u32 s3, 2\ns_cselect_b64 vcc, -1, 0\ns_and_b32 s55, s3, 1\ns_mul_i32 s55, s55, {2*KVI}\ns_lshr_b32 s56, s3, 1\ns_lshl_b32 s56, s56, 5\ns_add_u32 s55, s55, s56")
    a(f"v_cndmask_b32 v{AR}, v{AR}, v{AR+1}, vcc\nv_add_u32 v{AR}, s55, v{AR}")
    for r in range(4): a(f"v_mov_b32 v{ON+r}, {ONES}")
    ws_srd(a, 36, "KV", 14)
    a(f"s_mul_i32 s48, s44, {PAIR}")
    def kread(ks):
        b = X0 + (ks % 3) * 20
        return [f"ds_read_b64_tr_b16 v[{b}:{b+1}], v{AR} offset:{ks*1152}", f"ds_read_b64_tr_b16 v[{b+2}:{b+3}], v{AR} offset:{ks*1152 + 144}"] + \
               [xrd(b + 4 + 4*m, ks, 2048*m) for m in range(4)]
    a("s_waitcnt vmcnt(0)\ns_barrier")
    st(22)
    for x in kread(0) + kread(1): a(x)
    a("s_bitcmp1_b32 s3, 0\ns_cbranch_scc1 K1_vform")
    for form in range(2):
        if form: a("K1_vform:")
        for ks in range(18):
            b = X0 + (ks % 3) * 20
            fill = kread(ks + 2) if ks < 16 else []
            a(f"s_waitcnt lgkmcnt({6 if ks < 17 else 0})")
            for m in range(5):
                d, o = (ACC + 4*m, V4(b + 4 + 4*m)) if m < 4 else (CS, ONr)
                A_, B_ = (V4(b), o) if form == 0 else (o, V4(b))
                a(f"v_mfma_f32_16x16x32_bf16 {V4(d)}, {A_}, {B_}, {'0' if ks == 0 else V4(d)}")
                n = 2 if m == 0 else 1
                for y in fill[:n]: a(y)
                fill = fill[n:]
        st(23)
        if form == 0:
            a(f"v_lshlrev_b32 v7, 3, v1\nv_add_u32 v7, {EX + 768}, v7")
            a("v_lshrrev_b32 v8, 1, v2\nv_lshlrev_b32 v8, 9, v8\nv_lshl_add_u32 v8, v1, 4, v8\nv_and_b32 v9, 1, v2\nv_lshl_add_u32 v8, v9, 3, v8\nv_lshlrev_b32 v9, 2, v1")
            a("s_barrier")
            for m in range(4): a(f"ds_read_b64 v[{216+2*m}:{217+2*m}], v7 offset:{128*m}")
            a("s_waitcnt lgkmcnt(0)")
            for m in range(4):
                b = ACC + 4*m
                for r in range(4): a(f"v_fmac_f32 v{b+r}, v{CS+r}, v{216+2*m}\nv_mul_f32 v{b+r}, v{b+r}, v{217+2*m}")
                a(f"v_cvt_pk_bf16_f32 v{b}, v{b}, v{b+1}\nv_cvt_pk_bf16_f32 v{b+1}, v{b+2}, v{b+3}")
            a("s_cmp_lg_u32 s3, 0\ns_cbranch_scc1 K1_k2p")
            for m in range(4): a(f"ds_write_b64 v8, v[{ACC+4*m}:{ACC+4*m+1}] offset:{(m>>1)*1024 + (m&1)*256}")
            a("s_branch K1_kvst\nK1_k2p:\ns_mov_b64 exec, 0xffff")
            for m in range(4): a(f"ds_write_b32 v9, v{ACC+4*m} offset:{2048 + 64*m}")
            a("s_mov_b64 exec, -1\ns_branch K1_kvst")
        else:
            a(f"v_lshlrev_b32 v7, 5, v2\nv_add_u32 v7, {EX + 768}, v7")
            a("v_and_b32 v8, 1, v2\nv_mul_u32_u24 v8, 19, v8\nv_add_u32 v8, v8, v1\nv_lshlrev_b32 v8, 4, v8\nv_lshrrev_b32 v10, 1, v2\nv_lshl_add_u32 v8, v10, 3, v8")
            a("s_lshr_b32 s56, s3, 1\ns_lshl_b32 s56, s56, 8\nv_add_u32 v8, s56, v8\nv_cmp_eq_u32 s[54:55], 2, v1\nv_cmp_gt_u32 s[58:59], 3, v1\ns_nop 1")
            a("s_cmp_eq_u32 s3, 3\ns_cselect_b64 s[54:55], s[54:55], 0\ns_cselect_b64 s[58:59], s[58:59], -1")
            a("s_barrier")
            for m in range(4): a(f"ds_read_b128 v[{216+8*m}:{219+8*m}], v7 offset:{128*m}\nds_read_b128 v[{220+8*m}:{223+8*m}], v7 offset:{128*m+16}")
            a("s_waitcnt lgkmcnt(0)")
            for m in range(4):
                b = ACC + 4*m
                for r in range(4): a(f"v_fmac_f32 v{b+r}, v{CS}, v{216+8*m+2*r}\nv_mul_f32 v{b+r}, v{b+r}, v{217+8*m+2*r}")
                a(f"v_cvt_pk_bf16_f32 v{b}, v{b}, v{b+1}\nv_cvt_pk_bf16_f32 v{b+1}, v{b+2}, v{b+3}")
                a(f"v_cndmask_b32 v{b}, v{b}, v{ON}, s[54:55]\nv_cndmask_b32 v{b+1}, v{b+1}, v{ON}, s[54:55]")
            a("s_mov_b64 exec, s[58:59]")
            for m in range(4): a(f"ds_write_b64 v8, v[{ACC+4*m}:{ACC+4*m+1}] offset:{2304 + 608*m}")
            a("s_mov_b64 exec, -1")
    a("K1_kvst:")
    a("s_lshl_b32 s49, s3, 10\nv_lshlrev_b32 v3, 4, v0\nv_add_u32 v3, s49, v3\ns_waitcnt lgkmcnt(0)\ns_barrier")
    a("ds_read_b128 v[16:19], v3\nds_read_b128 v[20:23], v3 offset:1024\ns_waitcnt lgkmcnt(1)\nbuffer_store_dwordx4 v[16:19], v3, s[36:39], s48 offen sc1")
    a("s_waitcnt lgkmcnt(0)\ns_cmp_lg_u32 s3, 3\ns_cbranch_scc1 K1_fin\ns_mov_b32 exec_hi, 0xff\nbuffer_store_dwordx4 v[20:23], v3, s[36:39], s48 offen offset:1024 sc1\ns_mov_b64 exec, -1")
    a("s_branch K1_fin")
    a("K1_wbar:")
    for p in range(XA, 9): a(xdma(p))
    if OPT.get("wolate", True): a("s_waitcnt vmcnt(12)\ns_barrier")
    srd(a, 24, 12, 0, DM*DM*2)
    a("s_cmp_lt_u32 s44, 18\ns_cselect_b32 s26, s26, 0")
    a("s_cmp_ge_u32 s44, 16\ns_cbranch_scc1 K1_wb_hi")
    a("s_mul_i32 s50, s44, 36\ns_lshr_b32 s51, s3, 1\ns_mul_i32 s51, s51, 18\ns_add_u32 s50, s50, s51\ns_and_b32 s51, s3, 1\ns_lshl_b32 s51, s51, 2\ns_add_u32 s50, s50, s51")
    a("v_lshrrev_b32 v13, 2, v4\nv_lshlrev_b32 v13, 3, v13\nv_and_b32 v14, 3, v4\nv_add_u32 v13, v13, v14")
    a("s_branch K1_wb_go")
    a("K1_wb_hi:")
    a("s_sub_u32 s50, s44, 16\ns_mul_i32 s50, s50, 288\ns_mul_i32 s51, s3, 72\ns_add_u32 s50, s50, s51\ns_add_u32 s50, s50, 16")
    a("v_lshrrev_b32 v13, 1, v4\nv_mul_u32_u24 v13, 18, v13\nv_and_b32 v14, 1, v4\nv_add_u32 v13, v13, v14")
    a("K1_wb_go:")
    a(f"s_mul_i32 s50, s50, {DM*2}\nv_mul_u32_u24 v13, {DM*2}, v13\nv_lshl_add_u32 v13, v5, 4, v13")
    for i in range(9):
        a(f"buffer_load_dwordx4 v[{100+4*i}:{103+4*i}], v13, s[24:27], s50 offen offset:{128*i}")
    xaddr(66)
    ws_srd(a, 68, "XC", 14)
    ws_srd(a, 20, "WBAR", 14)
    a(f"v_lshlrev_b32 v3, 4, v0\ns_lshr_b32 s48, s46, 4\ns_mul_i32 s48, s48, 18432\ns_waitcnt vmcnt(9)")
    for ks in range(18): a(xrd(X0 + 4*ks, ks))
    a("s_waitcnt vmcnt(0)\ns_cmp_ge_u32 s44, 18\ns_cbranch_scc1 K1_xc")
    a(f"s_mov_b32 s56, {ONES}\nv_mov_b32 v6, 0\nv_mov_b32 v7, 0")
    for i in range(36):
        a(f"v_dot2_f32_bf16 v{6+i%2}, v{100+i}, s56, v{6+i%2}")
    a("s_nop 2\nv_add_f32 v6, v6, v7\ns_nop 1")
    for x in (1, 2, 4):
        a(f"ds_swizzle_b32 v7, v6 offset:{(x << 10) | 0x1f}\ns_waitcnt lgkmcnt(0)\nv_add_f32 v6, v6, v7")
    a(f"v_mul_f32 v6, {f32bits(1.0/DM)}, v6")
    a("v_cvt_pk_bf16_f32 v7, v6, v6\nv_lshlrev_b32 v8, 16, v7\nv_sub_f32 v8, v6, v8\nv_cvt_pk_bf16_f32 v8, v8, v8")
    a(f"s_lshl_b32 s47, s3, 8\nv_lshlrev_b32 v9, 5, v5\nv_lshl_add_u32 v9, v4, 1, v9\nv_add_u32 v9, s47, v9\nds_write_b16 v9, v7\nds_write_b16 v9, v8 offset:16")
    a("v_lshlrev_b32 v9, 2, v0\nv_add_u32 v10, s47, v9\nds_read_b32 v7, v10\ns_lshl_b32 s50, s44, 10\ns_add_u32 s50, s50, s47\ns_add_u32 s51, s50, 18432\ns_waitcnt lgkmcnt(0)")
    a("buffer_store_dword v7, v9, s[20:23], s50 offen sc1\nbuffer_store_dword v7, v9, s[20:23], s51 offen sc1")
    a("K1_xc:\ns_waitcnt lgkmcnt(0)")
    for ks in range(18):
        if ks and ks % 4 == 0: a("s_add_u32 s48, s48, 4096")
        a(f"buffer_store_dwordx4 {V4(X0+4*ks)}, v3, s[68:71], s48 offen offset:{(ks%4)*1024}{ST}")
    a("K1_fin:")

K2_GRID = 256
K2_LDS = 32 * PAIR + 9216
def k2(a, st, force_fallback=False):
    FB = WS["FLAG"][0]
    a(f"s_mov_b32 s3, s{SW}\ns_waitcnt lgkmcnt(0)")
    ws_srd(a, 36, "FLAG", 14)
    a(f"s_mul_i32 s{SE}, s{SE}, 0x9e3779b1\ns_add_u32 s{SE}, s{SE}, 0x7f4a7c15\nv_mov_b32 v4, s{SE}\nv_lshlrev_b32 v5, 2, v0\ns_lshl_b32 s45, s90, 7\ns_add_u32 s45, s45, {FL_AF}")
    st(19)
    a("s_waitcnt vmcnt(0)\ns_barrier")
    a("s_cmp_lg_u32 s3, 0\ns_cbranch_scc1 K2_naf\ns_mov_b32 exec_lo, -1\ns_mov_b32 exec_hi, 0\nbuffer_store_dword v4, v5, s[36:39], s45 offen sc1\ns_mov_b64 exec, -1\nK2_naf:")
    a(f"s_setprio 0\ns_load_dwordx2 s[4:5], s[0:1], {K_OUT}\ns_load_dwordx4 s[8:11], s[0:1], {B_W1}")
    a("v_and_b32 v1, 31, v0\nv_lshrrev_b32 v2, 5, v0\nv_lshlrev_b32 v3, 4, v0")
    st(17)
    if OPT.get("amap", 1): a("s_and_b32 s93, s2, 7\ns_lshl_b32 s93, s93, 5\ns_lshr_b32 s40, s2, 3\ns_add_u32 s93, s93, s40")
    else: a("s_mov_b32 s93, s2")
    a("s_lshr_b32 s40, s93, 2\ns_and_b32 s41, s93, 3\ns_lshl_b32 s41, s41, 3\ns_add_u32 s41, s41, s3")
    a(f"s_mul_i32 s42, s93, 9216\ns_lshl_b32 s43, s3, 10\ns_add_u32 s42, s42, s43\ns_add_u32 s43, s43, {32*PAIR}")
    a("s_lshl_b32 s44, s3, 10")
    ws_srd(a, 16, "KV", 14)
    ws_srd(a, 20, "Q", 14)
    Q1, Q2 = 8, 12
    def dma(r):
        txt = f"s_mov_b32 m0, s44\ns_nop 0\nbuffer_load_dwordx4 v3, s[16:19], s44 offen sc1 lds\ns_add_u32 s44, s44, 8192"
        if r == 18:
            L = a.label("dm")
            txt = f"s_cmp_ge_u32 s3, 4\ns_cbranch_scc1 {L}\n{txt}\n{L}:"
        return txt
    rp = Repack(a)
    nt_ = " nt" if OPT["k2_nt"] else ""
    def uidx(rnd):
        t = ("" if rnd else ffn_map(34, 35)) + f"s_mov_b32 s45, s34\ns_mul_i32 s47, s35, 11\ns_add_u32 s47, s47, s3\n"
        if rnd: t += "s_add_u32 s47, s47, 3\ns_cmp_lt_u32 s3, 5\ns_cselect_b32 s47, 400, s47\n"
        return t
    def RPS(): return [rp.common() + "\n" + uidx(0) + rp.setup_ffn(0, 8, 10), uidx(1) + rp.setup_ffn(1, 8, 10)]
    for d in (60, 64, 68):
        a(f"s_mov_b32 s{d}, s14\ns_mov_b32 s{d+1}, s15\ns_mov_b32 s{d+2}, 0\ns_mov_b32 s{d+3}, 0x00020000")
    a("v_mov_b32 v240, 0\nv_mov_b32 v241, 0\nv_mov_b32 v242, 0\nv_mov_b32 v243, 0")
    a("s_and_b32 s45, s93, 3\ns_mul_i32 s45, s45, 3\ns_lshr_b32 s45, s45, 1\ns_lshl_b32 s45, s45, 5\ns_lshr_b32 s46, s93, 3\ns_add_u32 s45, s45, s46")
    a("v_add_u32 v30, 192, v0\nv_lshlrev_b32 v31, 5, v1\nv_add_u32 v31, s45, v31\nv_cmp_gt_u32 vcc, 32, v0\ns_nop 1\nv_cndmask_b32 v30, v31, v30, vcc\nv_lshlrev_b32 v30, 7, v30")
    a(f"s_mov_b32 s45, {FL_AF}")
    if OPT.get("a_one", True):
        a("s_cmp_lg_u32 s3, 1\ns_cbranch_scc1 K2_np")
        poll(a, 34, 30, 36, 45, 31, OPT.get("a_slp", 2))
        if OPT.get("rps", 2) == 2:
            r_ = RPS()
            a("s_branch K2_nb\nK2_np:\ns_waitcnt lgkmcnt(0)"); a(r_[0]); a("s_cmp_lt_u32 s3, 5\ns_cbranch_scc1 K2_nb"); a(r_[1]); a("K2_nb:\ns_barrier")
        else:
            a("K2_np:\ns_barrier")
    else:
        poll(a, 34, 30, 36, 45, 31, OPT.get("a_slp", 2))
    st(18)
    a("s_cmp_lg_u32 s3, 0\ns_cbranch_scc1 K2_q1")
    a(f"s_mov_b32 m0, {32*PAIR + 8192}\ns_add_u32 s45, s42, 8192\nbuffer_load_dwordx4 v3, s[20:23], s45 offen sc1 lds")
    a("K2_q1:")
    a("s_mov_b32 m0, s43\ns_nop 0\nbuffer_load_dwordx4 v3, s[20:23], s42 offen sc1 lds")
    a(dma(0)); a(dma(1)); a(dma(2))
    if OPT.get('sync4', True): a(dma(3))
    a(f"v_mov_b32 v{Q2+1}, 0")
    ws_srd(a, 24, "O", 14)
    a(f"v_lshrrev_b32 v4, 4, v1\nv_mul_u32_u24 v4, 4608, v4\nv_and_b32 v5, 15, v1\nv_lshl_add_u32 v4, v5, 3, v4\nv_add_u32 v4, {32*PAIR}, v4")
    a("s_mul_i32 s45, s3, 9\nv_lshlrev_b32 v5, 2, v2\nv_add_u32 v5, s45, v5")
    for i in range(5):
        if i < 4: a(f"v_add_u32 v30, {i}, v5")
        else: a("s_add_u32 s45, s45, 8\nv_mov_b32 v30, s45")
        a(f"v_lshrrev_b32 v31, 1, v30\nv_lshl_add_u32 v31, v31, 7, v4\nv_and_b32 v30, 1, v30\nv_lshl_add_u32 v{25+i}, v30, 2, v31")
    SEG = 13
    VKA, VK2, VVA = 14, 17, 20
    a(f"v_mul_u32_u24 v23, 19, v2\nv_add_u32 v23, v23, v1\nv_lshlrev_b32 v23, 4, v23\nv_mov_b32 v24, 0x40000\nv_cmp_gt_u32 vcc, 19, v1\ns_nop 1\nv_cndmask_b32 v{VVA}, v24, v23, vcc")
    a(f"v_mov_b32 v{VKA}, v3\nv_lshlrev_b32 v{VK2}, 2, v0")
    for b in (VKA, VK2, VVA):
        a(f"v_add_u32 v{b+1}, {SEG*PAIR}, v{b}\nv_add_u32 v{b+2}, {2*SEG*PAIR}, v{b}")
    SA, SB, P, O, NM = 32, 64, 96, 112, 128
    KF, K2F, VF = 144, 160, 164
    FOLD = OPT.get("fold", True)
    a(f"v_mov_b32 v{K2F+1}, {ONES if FOLD else 0}\nv_mov_b32 v{K2F+3}, {ONES if FOLD else 0}")
    for r in range(16): a(f"v_mov_b32 v{O+r}, 0")
    def w3(txt):
        L = a.label("w3")
        return (f"s_cmp_lt_u32 s3, 5" if OPT.get("w3hi", True) else f"s_cmp_ge_u32 s3, 3") + f"\ns_cbranch_scc1 {L}\n{txt}\n{L}:"
    def seg(p): return p // SEG, (p % SEG) * PAIR
    def rdK(i, p):
        sg, o = seg(p)
        return [f"ds_read_b128 v[{KF+8*i}:{KF+8*i+3}], v{VKA+sg} offset:{o}",
                f"ds_read_b128 v[{KF+8*i+4}:{KF+8*i+7}], v{VKA+sg} offset:{o+1024}",
                f"ds_read_b32 v{K2F+2*i}, v{VK2+sg} offset:{o+2048}"]
    def rdV(i, p):
        sg, o = seg(p)
        return [f"ds_read_b128 v[{VF+16*i+4*q}:{VF+16*i+4*q+3}], v{VVA+sg} offset:{o+2304+608*q}" for q in range(4)]
    def qk(S, i, c):
        return [f"v_mfma_f32_32x32x16_bf16 v[{S}:{S+15}], v[{KF+8*i}:{KF+8*i+3}], v[{Q1}:{Q1+3}], {c}",
                f"v_mfma_f32_32x32x16_bf16 v[{S+16}:{S+31}], v[{KF+8*i+4}:{KF+8*i+7}], v[{Q1}:{Q1+3}], {c}",
                f"v_mfma_f32_32x32x4_2b_bf16 v[{S}:{S+31}], v[{K2F+2*i}:{K2F+2*i+1}], v[{Q2}:{Q2+1}], v[{S}:{S+31}]"]
    def pvm(vs_, u):
        return f"v_mfma_f32_32x32x16_bf16 v[{O}:{O+15}], v[{VF+16*vs_+4*u}:{VF+16*vs_+4*u+3}], v[{P+4*u}:{P+4*u+3}], v[{O}:{O+15}]"
    def rowmax(S, dst, first):
        L = []; r = 0
        if first:
            L.append(f"v_max_f32 v{dst}, v{S}, v{S+1}"); r = 2
        while r < 32:
            L.append(f"v_max3_f32 v{dst}, v{S+r}, v{S+r+1}, v{dst}"); r += 2
        return L
    def set_nm(src):
        a(f"v_mov_b32 v25, v{src}\ns_nop 1\nv_permlane32_swap_b32 v{src}, v25\ns_nop 1\nv_max_f32 v{src}, v{src}, v25")
        for r in range(16): a(f"v_sub_f32 v{NM+r}, 0, v{src}")
    def E(cur, g):
        b = cur + 4 * g
        return [f"v_exp_f32 v{b+r}, v{b+r}" for r in range(4)] + \
               [f"v_cvt_pk_bf16_f32 v{P+2*g}, v{b}, v{b+1}", f"v_cvt_pk_bf16_f32 v{P+2*g+1}, v{b+2}, v{b+3}"]
    NMr = f"v[{NM}:{NM+15}]"
    a("s_waitcnt lgkmcnt(0)")
    if OPT.get("rps", 2) == 0: a(RPS()[0]); a(RPS()[1])
    if OPT["prio"]: a("s_setprio 1")
    st(0)
    a(f"s_waitcnt vmcnt({3 if OPT.get('sync4', True) else 2})\ns_barrier")
    st(1)
    for i in range(5): a(f"ds_read_b32 v{Q1+i}, v{25+i}")
    for x in rdK(0, 0) + rdK(1, 1) + rdV(0, 0): a(x)
    a("s_waitcnt lgkmcnt(7)")
    q = qk(SA, 0, "0")
    a(q[0]); a(q[1]); a("s_nop 9"); a(q[2]); a("s_nop 15\ns_nop 3")
    for x in rowmax(SA, 24, True): a(x)
    if force_fallback:
        a(f"v_add_f32 v24, {f32bits(-100.0)}, v24")
    if FOLD:
        a("v_mov_b32 v25, v24\ns_nop 1\nv_permlane32_swap_b32 v24, v25\ns_nop 1\nv_max_f32 v24, v24, v25")
        a(f"v_cvt_pk_bf16_f32 v25, -v24, -v24\nv_mov_b32 v{NM}, 0\nv_lshlrev_b32 v26, 16, v25\nv_sub_f32 v26, -v24, v26\nv_cvt_pk_bf16_f32 v{Q2+1}, -v24, v26\nv_cvt_pk_bf16_f32 v{NM+1}, -v24, v26\ns_nop 1")
        a(f"v_mfma_f32_32x32x4_2b_bf16 v[{SA}:{SA+31}], v[{K2F}:{K2F+1}], v[{NM}:{NM+1}], v[{SA}:{SA+31}]\ns_nop 15\ns_nop 1")
    else:
        set_nm(24)
        for r in range(32): a(f"v_add_f32 v{SA+r}, v{SA+r}, v{NM}")
    st(2)
    extra = {i: [] for i in range(32)}
    pre = {i: [] for i in range(32)}
    SYNC = OPT.get("sync4", True)
    B3 = 8 if SYNC else 9
    if SYNC:
        r = 4
        for i in range(5):
            extra[i] += [dma(r), dma(r + 1), dma(r + 2)]; r += 3
        pre[0].append("s_waitcnt vmcnt(0)\ns_barrier"); pre[4].append("s_waitcnt vmcnt(3)\ns_barrier")
    else:
        r = 3
        for i in range(8):
            extra[i] += [dma(r), dma(r + 1)]; r += 2
        pre[0].append("s_waitcnt vmcnt(0)\ns_barrier"); pre[3].append("s_waitcnt vmcnt(2)\ns_barrier")
    pre[B3].append(f"v_mov_b32 v196, 0\nv_mov_b32 v197, 0\nv_mov_b32 v198, 0\nv_mov_b32 v199, 0\nv_mov_b32 v200, {ffn.CNT}\nds_write_b128 v200, v[196:199]\nds_write_b128 v200, v[196:199] offset:16\nds_write_b128 v200, v[196:199] offset:32\nds_write_b128 v200, v[196:199] offset:48\ns_waitcnt vmcnt(0) lgkmcnt(0)\ns_barrier")
    for n in range(8):
        if OPT.get("rp1", False):
            extra[9 + n].append(rp.load(0, n, nt_)); extra[9 + n].append(w3(rp.load(1, n, nt_)))
        else:
            extra[9 + n // 2].append(rp.load(0, n, nt_))
            extra[13 + n // 2].append(w3(rp.load(1, n, nt_)))
    if OPT.get("rps", 2) == 1: pre[6].append(RPS()[0]); pre[7].append(RPS()[1])
    if OPT.get("rps", 2) == 2: pre[5].append("s_cmp_lg_u32 s3, 1\ns_cbranch_scc1 K2_s1\n" + RPS()[0] + "\nK2_s1:")
    ST0 = OPT.get("k2_st0", 21)
    pre[ST0].append("s_waitcnt vmcnt(0)")
    for n in range(4):
        extra[ST0 + n // 2].append(rp.store(0, n, " sc1"))
        extra[ST0 + 2 + n // 2].append(w3(rp.store(1, n, " sc1")))
    pre[ST0 + 7].append("s_waitcnt vmcnt(0)")
    extra[ST0 + 7].append(f"v_mov_b32 v206, {ffn.CNT}\nv_mov_b32 v207, 1\ns_mov_b64 exec, 1\nds_add_rtn_u32 v205, v206, v207 offset:44\ns_mov_b64 exec, -1")
    extra[ST0 + 8].append(f"v_readfirstlane_b32 s45, v205\ns_cmp_lg_u32 s45, 7\ns_cbranch_scc1 K2_nrf\ns_lshl_b32 s45, s34, 5\ns_add_u32 s45, s45, s35\ns_lshl_b32 s45, s45, 7\ns_add_u32 s45, s45, {FL_RF}\n"
                          f"v_mov_b32 v206, s{SE}\nv_lshlrev_b32 v207, 2, v0\ns_mov_b32 exec_lo, -1\ns_mov_b32 exec_hi, 0\nbuffer_store_dword v206, v207, s[36:39], s45 offen sc1\ns_mov_b64 exec, -1\nK2_nrf:")
    if OPT.get("k2_touch", False):
        extra[ST0 + 7].append(rp.touch(0)); extra[ST0 + 8].append(w3(rp.touch(1)))
    extra[B3 - 1].append(f"s_mov_b32 s45, {FL_AF + 224*128}\nv_lshlrev_b32 v206, 7, v1\nbuffer_load_dword v205, v206, s[36:39], s45 offen sc1")
    tmp = Asm(); tmp.uid = 9000
    poll(tmp, 32, 206, 36, 45, 205, 2, first_loaded=True)
    pre[B3].append(tmp.text())
    EW = OPT.get("wo_early", 13)
    if EW:
        wo0, wosz = WS["WOF"]
        pre[OPT.get('wob', 24)].append(f"s_lshr_b32 s77, s2, 5\ns_add_u32 s20, s14, {wo0}\ns_addc_u32 s21, s15, 0\ns_mov_b32 s22, {wosz}\ns_mov_b32 s23, 0x00020000\n"
                       f"s_lshl_b32 s32, s3, 10\ns_mul_i32 s33, s77, {108*1024}\ns_add_u32 s33, s33, s32\ns_waitcnt lgkmcnt(0)\ns_barrier")
        nb_ = 0
        for k_, i in enumerate(list(range(25, 32)) * 3):
            if nb_ < EW and len(extra[i]) < (2 if k_ < 14 else 3):
                extra[i].append("s_mov_b32 m0, s32\ns_add_u32 s32, s32, 8192\nbuffer_load_dwordx4 v3, s[20:23], s33 offen sc1 lds\ns_add_u32 s33, s33, 8192"); nb_ += 1
        assert nb_ == EW
    if OPT.get("wo_touch", True):
        L = a.label("wt")
        wb0 = WS["WBAR"][0]; wsz = WS["WOF"][0] + WS["WOF"][1] - wb0
        extra[19].append(f"s_sub_u32 s56, s3, 3\ns_cmp_ge_u32 s56, 3\ns_cbranch_scc1 {L}\ns_lshr_b32 s57, s2, 3\ns_mul_i32 s57, s57, 3\ns_add_u32 s56, s56, s57\ns_lshl_b32 s56, s56, 13\n"
                         f"s_add_u32 s28, s14, {wb0}\ns_addc_u32 s29, s15, 0\ns_mov_b32 s30, {wsz}\ns_mov_b32 s31, 0x00020000\nv_lshlrev_b32 v206, 7, v0\nbuffer_load_dword v205, v206, s[28:31], s56 offen sc1\n{L}:")
    if OPT["codepf"]:
        L = a.label("cp")
        extra[18].append(f"s_lshr_b32 s56, s2, 3\ns_cmp_ge_u32 s56, CODE_PF_N\ns_cbranch_scc1 {L}\ns_cmp_lg_u32 s3, 0\ns_cbranch_scc1 {L}\n"
                         f"s_getpc_b64 s[58:59]\n{L}_pc:\ns_add_u32 s58, s58, K2_out-{L}_pc\ns_addc_u32 s59, s59, 0\n"
                         f"s_lshl_b32 s56, s56, 13\nv_lshlrev_b32 v206, 7, v0\nv_add_u32 v206, s56, v206\nv_min_u32 v206, CODE_END-K2_out-4, v206\nglobal_load_dword v205, v206, s[58:59]\n{L}:")
    ABL = OPT.get("abl", "")
    if "l" in ABL:
        for i in range(9, 17): extra[i] = []
    if "s" in ABL:
        for i in range(ST0, ST0 + 4): extra[i] = []
    if "u" in ABL:
        pre[6] = [ffn_map(34, 35)]; pre[7] = []
    if "m" in ABL:
        extra[18] = []; extra[19] = []; extra[8] = []; pre[9] = pre[9][:1]
    for i in range(32):
        cur, nxt = (SA, SB) if i % 2 == 0 else (SB, SA)
        q = qk(nxt, (i + 1) % 2, "0" if FOLD else NMr) if i < 31 else ["", "", ""]
        vs_ = i % 2
        kr = rdK(i % 2, i + 2) if i + 2 < 32 else ["", "", ""]
        vrd = rdV((i + 1) % 2, i + 1) if i < 31 else [""] * 4
        e = [E(cur, g) for g in range(8)]
        assert len(extra[i]) <= 3
        ex = extra[i] + ["", "", ""]
        seq = list(pre[i])
        PP = OPT.get("pp", 4)
        if OPT["prio"] and i % PP in (0, OPT["prio"]):
            L = a.label("pr")
            seq.append(f"s_cmp_lt_u32 s3, 4\ns_cbranch_scc1 {L}\ns_setprio {2 if i % PP == 0 else 0}\n{L}:")
        AL = OPT.get("aal", 0)
        P3 = {0: "", 1: ".p2align 3", 2: ".p2align 3\ns_nop 0"}[AL]
        if AL: ex = [x + "\n" + P3 if x else x for x in ex]
        sp = 2 if AL else 3
        seq += ["s_waitcnt lgkmcnt(0)", P3, q[0]] + kr[0:2] + e[0]
        seq += [pvm(1 - vs_, 3) if i > 0 else ""] + kr[2:3] + vrd[0:1] + e[1]
        seq += [q[1]] + vrd[1:3] + e[2]
        seq += [pvm(vs_, 0)] + vrd[3:4] + e[3]
        seq += [q[2], ex[0]] + e[4] + e[5][:sp]
        seq += [pvm(vs_, 1), ex[1]] + e[5][sp:] + e[6][:2]
        seq += [pvm(vs_, 2), ex[2]] + e[6][2:] + e[7]
        for x in seq:
            if x: a(x)
        if i % 8 == 7: st(3 + i // 8)
    a("s_nop 1"); a(pvm(1, 3))
    a("s_setprio 0\ns_nop 15")
    def bcast_l():
        a(f"v_mov_b32 v25, v{O+10}\nv_mov_b32 v26, v{O+10}\ns_nop 1\nv_permlane32_swap_b32 v25, v26\ns_nop 1")
    bcast_l()
    a(f"v_mov_b32 v26, {f32bits(2.0**60)}\nv_cmp_nle_f32 vcc, v25, v26\nv_mov_b32 v26, {f32bits(2.0**-60)}\nv_cmp_lt_f32 s[52:53], v25, v26\ns_nop 4\ns_or_b64 vcc, vcc, s[52:53]\ns_cbranch_scc0 K2_out")
    a(f"v_mov_b32 v24, 0xff800000\nv_mov_b32 v{Q2+1}, 0")
    for ps in range(2):
        a(f"s_mov_b32 s52, 0\nv_mov_b32 v27, v{VKA}\nv_mov_b32 v28, v{VK2}\nv_mov_b32 v29, v{VVA}")
        a(f"K2_fb{ps}:")
        a(f"buffer_load_dwordx4 v[{KF}:{KF+3}], v27, s[16:19], 0 offen sc1\nbuffer_load_dwordx4 v[{KF+4}:{KF+7}], v27, s[16:19], 0 offen offset:1024 sc1\nbuffer_load_dword v{K2F}, v28, s[16:19], 0 offen offset:2048 sc1")
        if ps:
            a("s_movk_i32 s53, 2304")
            for u in range(4): a(f"buffer_load_dwordx4 v[{VF+4*u}:{VF+4*u+3}], v29, s[16:19], s53 offen offset:{608*u} sc1")
        a("s_waitcnt vmcnt(0)")
        q = qk(SA, 0, NMr if ps else "0")
        a(q[0]); a(q[1]); a("s_nop 9"); a(q[2]); a("s_nop 15\ns_nop 3")
        if ps == 0:
            for x in rowmax(SA, 24, False): a(x)
        else:
            for g in range(8):
                for x in E(SA, g): a(x)
            a("s_nop 1")
            for u in range(4): a(pvm(0, u))
        a(f"v_add_u32 v27, {PAIR}, v27\nv_add_u32 v28, {PAIR}, v28\nv_add_u32 v29, {PAIR}, v29")
        a(f"s_add_u32 s52, s52, 1\ns_cmp_lt_u32 s52, 32\ns_cbranch_scc1 K2_fb{ps}")
        if ps == 0:
            set_nm(24)
            for r in range(16): a(f"v_mov_b32 v{O+r}, 0")
    a("s_nop 15")
    bcast_l()
    a("K2_out:")
    WR, XR, ACC, XRES = 12, 40, 112, 140
    a("s_lshr_b32 s77, s2, 5\ns_and_b32 s78, s2, 7\ns_lshl_b32 s78, s78, 2\ns_bfe_u32 s43, s2, 0x20003\ns_add_u32 s78, s78, s43")
    a("s_cmp_ge_u32 s3, 4\ns_cbranch_scc1 K2_noearly")
    a("s_lshl_b32 s46, s78, 2\ns_add_u32 s46, s46, s3")
    ws_srd(a, 48, "MEAN1", 14)
    ws_srd(a, 52, "XC", 14)
    a(f"s_mul_i32 s47, s77, 3072\ns_mul_i32 s30, s46, 18432\ns_add_u32 s47, s47, s30")
    for u in range(3):
        a(f"buffer_load_dwordx4 v[{XRES+4*u}:{XRES+4*u+3}], v3, s[52:55], s47 offen offset:{1024*u} sc1")
    a(f"v_and_b32 v166, 15, v0\nv_lshlrev_b32 v166, 2, v166\ns_lshl_b32 s65, s46, 7\nbuffer_load_dword v165, v166, s[48:51], s65 offen sc1")
    a("K2_noearly:")
    a(f"s_lshl_b32 s43, s34, 12\ns_add_u32 s43, s43, {FL_RF}\nv_lshlrev_b32 v161, 7, v1\nbuffer_load_dword v160, v161, s[36:39], s43 offen sc1")
    a(f"v_rcp_f32 v25, v25\ns_nop 0")
    for r in range(10): a(f"v_mul_f32 v{O+r}, v{O+r}, v25")
    for r in range(5): a(f"v_cvt_pk_bf16_f32 v{P+r}, v{O+2*r}, v{O+2*r+1}")
    a(f"v_lshrrev_b32 v26, 4, v1\nv_mul_u32_u24 v27, {18*1024}, v26\nv_and_b32 v28, 15, v1\nv_lshl_add_u32 v27, v28, 4, v27\nv_lshl_add_u32 v27, v2, 8, v27")
    a(f"s_mul_i32 s42, s40, {36*1024}\ns_lshl_b32 s43, s41, 9\ns_add_u32 s43, s43, s42")
    a(f"buffer_store_dwordx4 v[{P}:{P+3}], v27, s[24:27], s43 offen sc1")
    OSC = 32 * PAIR + 1024
    a(f"s_lshr_b32 s43, s3, 2\ns_lshl_b32 s43, s43, 8\ns_and_b32 s44, s3, 3\ns_lshl_b32 s44, s44, 2\ns_add_u32 s43, s43, s44\ns_add_u32 s43, s43, {OSC}")
    a(f"v_lshlrev_b32 v26, 9, v26\nv_lshl_add_u32 v26, v28, 4, v26\nv_add_u32 v26, s43, v26\ns_mov_b32 exec_lo, -1\ns_mov_b32 exec_hi, 0\nds_write_b32 v26, v{P+4}\ns_mov_b64 exec, -1")
    a(f"v_mov_b32 v172, {ffn.CNT}\nv_mov_b32 v8, 1\nv_lshlrev_b32 v9, 2, v0\nv_mov_b32 v174, s{SE}\ns_lshl_b32 s79, s93, 7\ns_add_u32 s79, s79, {FL_OF}")
    a(f"v_add_u32 v4, {OSC}, v3\nv_mul_u32_u24 v5, {18*1024}, v2\nv_lshl_add_u32 v5, v1, 4, v5")
    a("s_and_b32 s43, s93, 3\ns_lshl_b32 s43, s43, 9\ns_add_u32 s43, s43, s42\ns_add_u32 s43, s43, 16384")
    a("s_waitcnt lgkmcnt(0)\ns_barrier")
    st(7)
    a("s_cmp_lg_u32 s3, 0\ns_cbranch_scc1 K3_norem")
    a("ds_read_b128 v[12:15], v4\ns_waitcnt lgkmcnt(0)\nbuffer_store_dwordx4 v[12:15], v5, s[24:27], s43 offen sc1")
    a("K3_norem:")
    a("v_lshlrev_b32 v2, 4, v0\ns_mov_b32 s40, s77\ns_mov_b32 s41, s78")
    a("s_sub_u32 s33, s3, 4\ns_cmp_lt_u32 s3, 4\ns_cbranch_scc1 K3_nld\ns_cmp_ge_u32 s40, 6\ns_cbranch_scc1 K3_nld")
    ws_srd(a, 20, "WOF", 14)
    ws_srd(a, 68, "WBAR", 14)
    a(f"s_lshl_b32 s76, s33, 10\ns_mul_i32 s75, s40, {108*1024}\ns_add_u32 s74, s76, {EW*8192}\ns_add_u32 s75, s75, s74")
    a("s_mul_i32 s77, s40, 3072\ns_add_u32 s76, s76, s77")
    for i in range(2*EW, 32):
        sd, so = ((20, 75) if i < 27 else (68, 76))
        a(f"s_mov_b32 m0, s74\ns_add_u32 s74, s74, 4096\nbuffer_load_dwordx4 v2, s[{sd}:{sd+3}], s{so} offen sc1 lds\ns_add_u32 s{so}, s{so}, 4096")
    a("K3_nld:")
    a("s_waitcnt vmcnt(0)\ns_mov_b64 exec, 1\nds_add_rtn_u32 v168, v172, v8 offset:36\ns_waitcnt lgkmcnt(0)\nv_readfirstlane_b32 s70, v168\ns_cmp_lg_u32 s70, 7\ns_cbranch_scc1 K3_nofl")
    a("s_mov_b32 exec_lo, -1\ns_mov_b32 exec_hi, 0\nbuffer_store_dword v174, v9, s[36:39], s79 offen sc1\nK3_nofl:\ns_mov_b64 exec, -1")
    a("s_cmp_ge_u32 s3, 4\ns_cbranch_scc1 K3_loader")
    a("v_add_u32 v3, 0x10000, v2\nv_add_u32 v4, 0x20000, v2\nv_and_b32 v5, 15, v0\nv_lshrrev_b32 v6, 4, v0\nv_lshlrev_b32 v7, 7, v0")
    a("v_lshlrev_b32 v11, 2, v5\nv_mov_b32 v10, v165")
    st(8)
    a("s_cmp_ge_u32 s40, 6\ns_cbranch_scc1 K4_compute")
    a(f"s_lshl_b32 s43, s41, 3\ns_lshr_b32 s44, s3, 1\ns_lshl_b32 s44, s44, 2\ns_add_u32 s43, s43, s44\ns_lshl_b32 s43, s43, 7\ns_add_u32 s43, s43, {FL_OF}")
    ws_srd(a, 52, "HC", 14)
    ws_srd(a, 60, "SS", 14)
    a("s_barrier")
    st(13)
    for j in range(7):
        off = j * 1024 if j < 6 else 108 * 1024
        a(f"ds_read_b128 v[{12+4*j}:{15+4*j}], v{2 + off // 65536} offset:{off % 65536}")
    poll(a, 4, 7, 36, 43, 164, 1)
    st(9)
    a("s_mul_i32 s44, s40, 3072")
    def oload(ks):
        t = ""
        if ks % 3 == 0:
            t = "s_add_u32 s45, s30, s44\ns_add_u32 s44, s44, 3072\ns_cmp_eq_u32 s44, 18432\ns_cselect_b32 s44, 0, s44\n"
        return t + f"buffer_load_dwordx4 v[{XR+4*ks}:{XR+4*ks+3}], v2, s[24:27], s45 offen offset:{(ks%3)*1024} sc1"
    OD = OPT.get("k3_od", 6)
    for ks in range(OD): a(oload(ks))
    st(10)
    def wread(ks, j):
        off = (ks * 6 + j) * 1024 if j < 6 else (108 + ks) * 1024
        return f"ds_read_b128 v[{WR+4*j}:{WR+4*j+3}], v{2 + off // 65536} offset:{off % 65536}"
    nl = OD
    for ks in range(18):
        for j in range(7):
            a((f"s_waitcnt vmcnt({nl-1-ks}) " if j == 0 else "s_waitcnt ") + f"lgkmcnt({6 if ks < 17 else 6-j})")
            c = "0" if ks == 0 else f"v[{ACC+4*j}:{ACC+4*j+3}]"
            a(f"v_mfma_f32_16x16x32_bf16 v[{ACC+4*j}:{ACC+4*j+3}], v[{WR+4*j}:{WR+4*j+3}], v[{XR+4*ks}:{XR+4*ks+3}], {c}")
            if ks < 17: a(wread(ks + 1, j))
            if j in (1, 4) and nl < 18:
                a(oload(nl)); nl += 1
    a("s_barrier")
    st(11)
    e = ACC + 24
    a(f"s_nop 6\nv_add_f32 v10, v10, v{e}\nv_add_f32 v10, v10, v{e+1}\nv_mov_b32 v14, 0")
    for u in range(3):
        for r in range(4):
            x = XRES + 4 * u + r
            lo, hi = ACC + 8 * u + r, ACC + 8 * u + 4 + r
            a(f"v_lshlrev_b32 v12, 16, v{x}\nv_and_b32 v13, 0xffff0000, v{x}")
            a(f"v_add_f32 v{lo}, v{lo}, v12\nv_add_f32 v{hi}, v{hi}, v13")
            a(f"v_sub_f32 v{lo}, v{lo}, v10\nv_sub_f32 v{hi}, v{hi}, v10")
            a(f"v_cvt_pk_bf16_f32 v{XR+4*u+r}, v{lo}, v{hi}")
        a(f"buffer_store_dwordx4 v[{XR+4*u}:{XR+4*u+3}], v2, s[52:55], s47 offen offset:{1024*u} sc1")
    for i in range(12): a(f"v_dot2_f32_bf16 v14, v{XR+i}, v{XR+i}, v14")
    a("s_nop 2")
    sum_g(a, 14, 12)
    a("v_cmp_eq_u32 vcc, 1, v6\ns_lshl_b32 s43, s46, 3\ns_add_u32 s43, s43, s40\ns_lshl_b32 s43, s43, 7\nv_cndmask_b32 v14, v14, v10, vcc\ns_mov_b32 exec_lo, -1\ns_mov_b32 exec_hi, 0")
    a("buffer_store_dword v14, v9, s[60:63], s43 offen sc1")
    a(f"s_lshl_b32 s43, s46, 3\ns_add_u32 s43, s43, s40\ns_lshl_b32 s43, s43, 7\ns_add_u32 s43, s43, {FL_HF}")
    a("s_waitcnt vmcnt(0)\nbuffer_store_dword v174, v9, s[36:39], s43 offen sc1\ns_mov_b64 exec, -1")
    st(12)
    a("s_branch K4_compute")
    a("K3_loader:")
    a(f"v_mov_b32 v4, {ffn.CNT}")
    a("s_sub_u32 s33, s3, 4\ns_cmp_ge_u32 s40, 6\ns_cbranch_scc1 K3_pf")
    a("s_barrier")
    a("K3_pf:")
    a("s_cmp_ge_u32 s40, 6\ns_cbranch_scc1 K4_helper\ns_barrier\ns_branch K4_helper")
    k4(a, st)
    a("s_endpgm\nCODE_END:")
    return kernel_desc(NAME + "_kernel", 256)

def rf_check(a, first_loaded):
    a(f"s_lshl_b32 s43, s34, 12\ns_add_u32 s43, s43, {FL_RF}")
    poll(a, 32, 161, 36, 43, 160, 2, first_loaded)
def h_bases(a, sw):
    a("v_add_u32 v3, 0x10000, v2\nv_add_u32 v4, 0x20000, v2")
    a(f"s_mul_i32 s42, s{sw}, 3\ns_lshr_b32 s43, s42, 1\ns_lshl_b32 s43, s43, 12\ns_and_b32 s44, s42, 1\ns_lshl_b32 s45, s44, 3\ns_add_u32 s43, s43, s45\ns_add_u32 s43, s43, {ffn.HB}")
    a("v_add_u32 v5, s43, v2")
    a("s_mul_i32 s45, s44, 4080\ns_add_u32 s45, s45, 8\nv_add_u32 v6, s45, v5")
def k4(a, st0):
    st = lambda i: st0(20 + i)
    a("K4_compute:\ns_mov_b32 s40, s34\ns_mov_b32 s41, s35")
    rf_check(a, True)
    a(f"s_lshl_b32 s46, s40, 2\ns_add_u32 s46, s46, s3\ns_mul_i32 s31, s46, {WST()*1024}")
    ws_srd(a, 20, "WF", 14)
    cs = ffn.Stream(a, PAT(), srdW=20, sW=31, v_lane16=2, v_h8=5, v_p=7, v_one=10, ACC=16, XF=112, TMP=160, RB=176,
                    RINGF=min(OPT.get('ring', 20), 19 if st0.on else 20), stamp=st, wflag=OPT.get('wflag', ' sc1'), al=OPT.get('al', 0), fast=OPT.get('fast', 2), fastfrom=OPT.get('ff', 4))
    cs.prefill(min(cs.RINGF, OPT.get("k4_pre", 18)))
    a("s_setprio 2")
    h_bases(a, 3)
    a("v_and_b32 v12, 15, v0\nv_lshrrev_b32 v13, 4, v0\ns_lshr_b32 s45, s3, 1\nv_lshl_add_u32 v13, v13, 1, s45\nv_and_b32 v14, 7, v0\nv_xor_b32 v13, v13, v14")
    a("s_and_b32 s45, s3, 1\ns_lshl_b32 s45, s45, 3\nv_lshl_add_u32 v13, v13, 4, s45\nv_lshl_add_u32 v7, v12, 7, v13\nv_add_u32 v8, 0x8000, v7")
    a(f"v_mov_b32 v10, 1\nv_mov_b32 v11, {ffn.CNT}")
    cs.run()
    LASTP = OPT.get("lastp", True) and not RING()
    if LASTP:
        a("s_waitcnt lgkmcnt(0)\nv_readfirstlane_b32 s70, v175\ns_mov_b32 s33, 8\ns_cmp_eq_u32 s70, 3\ns_cbranch_scc1 K4_pubs")
    a("s_branch " + ("K4_last" if RING() else "K4_work"))
    PB, AC = 48, 112
    a("K4_helper:")
    a(f"s_setprio {OPT.get('k4_hprio', 0)}\ns_mov_b32 s40, s34\ns_mov_b32 s41, s35")
    a(f"s_mul_i32 s30, s41, 73728\ns_mul_i32 s90, s33, 18432\ns_add_u32 s30, s30, s90")
    ws_srd(a, 16, "HC", 14)
    a(f"s_lshl_b32 s43, s41, 2\ns_add_u32 s43, s43, s33\ns_lshl_b32 s43, s43, 10\ns_add_u32 s43, s43, {FL_HF}\nv_lshlrev_b32 v12, 7, v0")
    XE2 = OPT.get("xearly", 2)
    poll(a, XE2 if XE2 else 6, 12, 36, 43, 13, 1)
    st(9)
    for i in range(18):
        if XE2 and i == 3 * XE2:
            a("s_waitcnt vmcnt(0)")
            for c in range(XE2 - 1): a("s_barrier")
            poll(a, 6, 12, 36, 43, 13, 1, first_loaded=True)
        if i % 4 == 0: a("s_mov_b32 m0, s90\ns_add_u32 s90, s90, 4096")
        a(f"buffer_load_dwordx4 v2, s[16:19], s30 offen offset:{(i%4)*1024} sc1 lds")
        if i % 4 == 3: a("s_add_u32 s30, s30, 4096")
        if XE2 and i == 3 * XE2 - 1:
            a("s_mov_b64 exec, 63\nbuffer_load_dword v13, v12, s[36:39], s43 offen sc1\ns_mov_b64 exec, -1")
        elif i >= 5 and i % 3 == 2 and i > 3 * XE2: a("s_waitcnt vmcnt(3)\ns_barrier")
    a("s_waitcnt vmcnt(0)\ns_barrier")
    a("s_cmp_lg_u32 s2, 0\ns_cbranch_scc1 K4_nep\ns_cmp_lg_u32 s33, 3\ns_cbranch_scc1 K4_nep\ns_mov_b32 s74, s34\ns_mov_b32 s34, 0\nK4_epl:")
    rf_check(a, False)
    a(f"s_add_u32 s34, s34, 1\ns_cmp_lt_u32 s34, 8\ns_cbranch_scc1 K4_epl\ns_mov_b32 s34, s74\nv_mov_b32 v13, s{SE}\nv_mov_b32 v14, 0")
    ws_srd(a, 52, "EP", 14)
    a("s_mov_b64 exec, 1\nbuffer_store_dword v13, v14, s[52:55], 0 offen sc1\ns_mov_b64 exec, -1\nK4_nep:")
    NPUB = OPT.get("npub", 2)
    EARLY = RING() and OPT.get("own_early", True)
    if EARLY: a(f"s_cmp_ge_u32 s33, {NPUB}\ns_cbranch_scc1 K4_own")
    for i in range(ffn.N_BARRIERS_AFTER_X): a("s_barrier")
    if not EARLY: a(f"s_cmp_ge_u32 s33, {NPUB}\ns_cbranch_scc1 " + ("K4_own" if RING() else "K4_work"))
    def wait_cnt(L, slp, n=4):
        a(f"s_mov_b32 s72, 0x40000\n{L}:\nds_read_b32 v3, v4\ns_waitcnt lgkmcnt(0)\nv_readfirstlane_b32 s70, v3\ns_cmp_ge_u32 s70, {n}\ns_cbranch_scc1 {L}_ok\ns_sleep {slp}\ns_sub_u32 s72, s72, 1\ns_cbranch_scc0 {L}\n{L}_ok:")
    SWZ = "v_lshrrev_b32 v5, 3, v0\nv_and_b32 v6, 7, v0\nv_xor_b32 v7, v5, v6\nv_lshlrev_b32 v7, 4, v7\nv_lshl_add_u32 v7, v5, 7, v7"
    a("K4_pubs:")
    ws_srd(a, 24, "PART", 14)
    a("s_mov_b32 s42, s33"); a(SWZ)
    a(f"s_lshl_b32 s44, s42, 13\nv_add_u32 v7, s44, v7\ns_lshl_b32 s44, s42, 2\ns_add_u32 s44, s44, {ffn.CNT}\nv_mov_b32 v4, s44")
    a("s_mul_i32 s49, s41, 9\ns_add_u32 s49, s49, s42\ns_lshl_b32 s47, s49, 16\ns_lshl_b32 s51, s49, 10")
    a("s_lshl_b32 s44, s40, 13\ns_add_u32 s47, s47, s44\ns_lshl_b32 s44, s40, 7\ns_add_u32 s51, s51, s44\nv_lshlrev_b32 v18, 2, v0")
    a(f"v_mov_b32 v13, s{SE}")
    a("s_mov_b32 s75, s40\nK4_pub:")
    if RING():
        a("s_add_u32 s44, s40, s42\ns_and_b32 s44, s44, 7\ns_cmp_eq_u32 s42, 0\ns_cselect_b32 s44, 8, s44\ns_cselect_b32 s45, s40, s42\ns_cselect_b32 s75, s40, 64")
        a("s_mul_i32 s49, s41, 9\ns_add_u32 s49, s49, s44\ns_lshl_b32 s49, s49, 3\ns_add_u32 s49, s49, s45\ns_lshl_b32 s47, s49, 13\ns_lshl_b32 s51, s49, 7")
    wait_cnt("K4_pw", OPT.get("pw", 2))
    st0.dyn(34, 42)
    for i in range(8): a(f"ds_read_b128 v[{PB+4*i}:{PB+4*i+3}], v7 offset:{1024*i}")
    a("s_add_u32 s71, s47, 4096")
    for i in range(8):
        a(f"s_cmp_eq_u32 s75, {i}\ns_cbranch_scc1 K4_ps{i}\ns_waitcnt lgkmcnt({7-i})\nbuffer_store_dwordx4 v[{PB+4*i}:{PB+4*i+3}], v2, s[24:27], s{47 if i < 4 else 71} offen offset:{(i%4)*1024} sc1\nK4_ps{i}:")
    if RING(): a("v_mov_b32 v3, 4\ns_mov_b64 exec, 1\nds_add_u32 v4, v3\ns_mov_b64 exec, -1")
    a("s_waitcnt vmcnt(0) lgkmcnt(0)\ns_mov_b32 exec_lo, -1\ns_mov_b32 exec_hi, 0\nbuffer_store_dword v13, v18, s[36:39], s51 offen sc1\ns_mov_b64 exec, -1")
    st0.dyn(43, 42)
    a(f"s_add_u32 s42, s42, {NPUB}\ns_add_u32 s47, s47, {NPUB << 16}\ns_add_u32 s51, s51, {NPUB << 10}\nv_add_u32 v7, {NPUB << 13}, v7\nv_add_u32 v4, {4*NPUB}, v4\ns_cmp_lt_u32 s42, {8 if (LASTP or RING()) else 9}\ns_cbranch_scc1 K4_pub")
    a("K4_work:")
    a(f"v_mov_b32 v14, {ffn.CNT}\nv_mov_b32 v15, 1")
    TAKE = "s_mov_b64 exec, 1\nds_add_rtn_u32 v3, v14, v15 offset:40\ns_mov_b64 exec, -1\ns_waitcnt lgkmcnt(0)\nv_readfirstlane_b32 s42, v3\ns_cmp_ge_u32 s42, " + ("1" if RING() else "9") + "\ns_cbranch_scc1 K4_fin\ns_mov_b32 s76, s42" + ("\ns_mov_b32 s42, 8" if RING() else "")
    a(TAKE)
    ws_srd(a, 16, "HC", 14)
    ws_srd(a, 24, "PART", 14)
    ws_srd(a, 56, "SS", 14)
    srd(a, 60, 4, 0, T*DM*2)
    a(SWZ)
    a("s_lshl_b32 s43, s40, 3\nv_add_u32 v8, s43, v5")
    a("v_lshrrev_b32 v19, 4, v8\nv_lshlrev_b32 v19, 10, v19\nv_and_b32 v16, 15, v8\nv_lshl_add_u32 v19, v16, 2, v19\ns_lshl_b32 s65, s41, 12\nbuffer_load_dword v140, v19, s[56:59], s65 offen offset:64 sc1")
    for nb in range(6): a(f"buffer_load_dword v{144+nb}, v19, s[56:59], s65 offen offset:{128*nb} sc1")
    a("s_lshl_b32 s44, s40, 10\nv_add_u32 v9, s44, v7\nv_lshlrev_b32 v12, 7, v0")
    a("v_lshrrev_b32 v10, 4, v8\nv_mul_u32_u24 v10, 18432, v10\nv_lshl_add_u32 v10, v6, 8, v10\nv_and_b32 v11, 15, v8\nv_lshl_add_u32 v10, v11, 4, v10")
    a(f"v_mul_u32_u24 v11, {DM*2}, v8\nv_lshl_add_u32 v11, v6, 4, v11")
    a("v_and_b32 v19, 1, v0\nv_cmp_eq_u32 s[66:67], 1, v19\ns_mov_b32 s68, 0x00003f80\ns_mov_b32 s69, 0x3f800000\ns_mov_b32 s74, 0")
    a("K4_red:")
    a("s_mul_i32 s30, s41, 73728\ns_lshl_b32 s44, s42, 11\ns_add_u32 s30, s30, s44\nbuffer_load_dwordx4 v[20:23], v10, s[16:19], s30 offen sc1")
    a(f"s_mul_i32 s64, s41, {64*DM*2}\ns_lshl_b32 s44, s42, 7\ns_add_u32 s64, s64, s44")
    a(f"s_lshl_b32 s44, s76, 13\nv_add_u32 v7, s44, v9\ns_lshl_b32 s44, s76, 2\ns_add_u32 s44, s44, {ffn.CNT}\nv_mov_b32 v4, s44")
    a("s_mul_i32 s49, s41, 9\ns_add_u32 s49, s49, s42\ns_lshl_b32 s71, s49, 16\ns_lshl_b32 s51, s49, 10\ns_lshl_b32 s44, s40, 10\ns_add_u32 s71, s71, s44")
    wait_cnt("K4_rw", 4)
    poll(a, 8, 12, 36, 51, 3, OPT.get("red_slp", 2))
    st0.dyn(52, 42)
    for j in range(8):
        b = PB + 4*j
        a(f"s_cmp_eq_u32 s40, {j}\ns_cbranch_scc1 K4_ro{j}\nbuffer_load_dwordx4 v[{b}:{b+3}], v2, s[24:27], s71 offen sc1\ns_branch K4_rp{j}\nK4_ro{j}:\nds_read_b128 v[{b}:{b+3}], v7\nK4_rp{j}:\ns_add_u32 s71, s71, 8192")
    a("s_cmp_lg_u32 s74, 0\ns_cbranch_scc1 K4_hs\ns_mov_b32 s74, 1")
    a("v_add_f32 v144, v144, v145\nv_add_f32 v146, v146, v147\nv_add_f32 v148, v148, v149\nv_add_f32 v144, v144, v146\nv_add_f32 v144, v144, v148")
    a(f"v_mov_b32 v145, {f32bits(1e-5)}\nv_fmac_f32 v145, {f32bits(1.0/DM)}, v144\nv_rsq_f32 v142, v145\nK4_hs:")
    for i in range(4):
        a(f"v_lshlrev_b32 v{24+2*i}, 16, v{20+i}\nv_and_b32 v{25+2*i}, 0xffff0000, v{20+i}\nv_add_f32 v{24+2*i}, v{24+2*i}, v140\nv_add_f32 v{25+2*i}, v{25+2*i}, v140")
    a("s_waitcnt lgkmcnt(0)")
    for j in range(8):
        a(f"s_waitcnt vmcnt({max(0, 6-j)})")
        for qq in range(2):
            for p in range(2):
                src = PB + 4*j + 2*qq + p
                d0, d1 = AC + 4*p + qq, AC + 4*p + 2 + qq
                if OPT.get("red_dot", False):
                    for hh, d in ((0, d0), (1, d1)):
                        a(f"v_dot2_f32_bf16 v{d}, v{src}, s{68+hh}, {'0' if j == 0 else f'v{d}'}")
                elif j == 0:
                    a(f"v_lshlrev_b32 v{d0}, 16, v{src}\nv_and_b32 v{d1}, 0xffff0000, v{src}")
                else:
                    a(f"v_lshlrev_b32 v16, 16, v{src}\nv_and_b32 v{src}, 0xffff0000, v{src}\nv_add_f32 v{d0}, v{d0}, v16\nv_add_f32 v{d1}, v{d1}, v{src}")
    a("s_nop 2")
    for i in range(4):
        a(f"v_cndmask_b32 v{AC+8+i}, v{AC+4+i}, v{AC+i}, s[66:67]")
        a(f"v_cndmask_b32 v{AC+12+i}, v{AC+i}, v{AC+4+i}, s[66:67]")
    a("s_nop 1")
    for i in range(4):
        a(f"v_mov_b32_dpp v{AC+16+i}, v{AC+8+i} quad_perm:[1,0,3,2] row_mask:0xf bank_mask:0xf")
    for hlf in range(2):
        for e in range(2):
            k_, r_ = AC + 12 + 2*hlf + e, AC + 16 + 2*hlf + e
            a(f"v_cndmask_b32 v{AC+4*hlf+e}, v{k_}, v{r_}, s[66:67]\nv_cndmask_b32 v{AC+4*hlf+2+e}, v{r_}, v{k_}, s[66:67]")
    for i in range(4):
        a(f"v_fmac_f32 v{24+2*i}, v{AC+2*i}, v142\nv_fmac_f32 v{25+2*i}, v{AC+2*i+1}, v142\nv_cvt_pk_bf16_f32 v{40+i}, v{24+2*i}, v{25+2*i}")
    a("buffer_store_dwordx4 v[40:43], v11, s[60:63], s64 offen" + OPT.get("oflag", ""))
    st0.dyn(8, 42)
    a(TAKE + "\ns_branch K4_red")
    if RING():
        a("K4_own:\ns_sub_u32 s33, s33, 2")
        ws_srd(a, 24, "PART", 14)
        ws_srd(a, 56, "SS", 14)
        srd(a, 60, 4, 0, T*DM*2)
        a(SWZ)
        BS, RS_, TM = 144, 176, 28
        a("v_lshlrev_b32 v19, 2, v5\ns_lshl_b32 s65, s41, 12\ns_lshl_b32 s44, s33, 11\ns_add_u32 s65, s65, s44")
        for i in range(4):
            o = (i >> 1) * 1024 + (i & 1) * 32
            a(f"buffer_load_dword v{180+i}, v19, s[56:59], s65 offen offset:{o + 64} sc1")
            for nb in range(6): a(f"buffer_load_dword v{184+6*i+nb}, v19, s[56:59], s65 offen offset:{o + 128*nb} sc1")
        a("v_lshlrev_b32 v10, 8, v6\nv_lshl_add_u32 v10, v5, 4, v10\ns_mul_i32 s30, s41, 73728\ns_mul_i32 s44, s33, 36864\ns_add_u32 s30, s30, s44\ns_lshl_b32 s44, s40, 11\ns_add_u32 s30, s30, s44\ns_add_u32 s44, s30, 18432")
        for i in range(4):
            a(f"buffer_load_dwordx4 v[{PB+4*i}:{PB+4*i+3}], v10, s[16:19], s{30 if i < 2 else 44} offen offset:{(i&1)*128} sc1")
        a(f"v_mul_u32_u24 v11, {DM*2}, v5\nv_lshl_add_u32 v11, v6, 4, v11\ns_mul_i32 s64, s41, {64*DM*2}\ns_mul_i32 s44, s33, {32*DM*2}\ns_add_u32 s64, s64, s44\ns_lshl_b32 s44, s40, 7\ns_add_u32 s64, s64, s44")
        a(f"s_lshl_b32 s44, s33, 12\ns_add_u32 s44, s44, {8*ffn.STG}\nv_add_u32 v7, s44, v7\nv_lshlrev_b32 v12, 7, v0\nv_and_b32 v19, 1, v0\nv_cmp_eq_u32 s[66:67], 1, v19")
        a("s_mul_i32 s49, s41, 9\ns_add_u32 s49, s49, s40\ns_lshl_b32 s47, s49, 16\ns_lshl_b32 s51, s49, 10\ns_lshl_b32 s44, s33, 12\ns_add_u32 s47, s47, s44\ns_waitcnt vmcnt(0)")
        for i in range(4):
            b = 184 + 6*i
            a(f"v_add_f32 v{b}, v{b}, v{b+1}\nv_add_f32 v{b+2}, v{b+2}, v{b+3}\nv_add_f32 v{b+4}, v{b+4}, v{b+5}\nv_add_f32 v{b}, v{b}, v{b+2}\nv_add_f32 v{b}, v{b}, v{b+4}")
            a(f"v_mov_b32 v{b+1}, {f32bits(1e-5)}\nv_fmac_f32 v{b+1}, {f32bits(1.0/DM)}, v{b}\nv_rsq_f32 v{RS_+i}, v{b+1}")
            for k in range(4):
                d = BS + 8*i + 2*k
                a(f"v_lshlrev_b32 v{d}, 16, v{PB+4*i+k}\nv_and_b32 v{d+1}, 0xffff0000, v{PB+4*i+k}\nv_add_f32 v{d}, v{d}, v{180+i}\nv_add_f32 v{d+1}, v{d+1}, v{180+i}")
        if EARLY:
            for i in range(ffn.N_BARRIERS_AFTER_X): a("s_barrier")
        first = [True]
        def accum(b, i):
            for qq in range(2):
                for p in range(2):
                    src = b + 2*qq + p
                    d0, d1 = AC + 8*i + 4*p + qq, AC + 8*i + 4*p + 2 + qq
                    if first[0]: a(f"v_lshlrev_b32 v{d0}, 16, v{src}\nv_and_b32 v{d1}, 0xffff0000, v{src}")
                    else: a(f"v_lshlrev_b32 v16, 16, v{src}\nv_and_b32 v{src}, 0xffff0000, v{src}\nv_add_f32 v{d0}, v{d0}, v16\nv_add_f32 v{d1}, v{d1}, v{src}")
        def fold(i, bs, rs):
            A_ = AC + 8*i
            for k in range(4):
                a(f"v_cndmask_b32 v{TM+k}, v{A_+4+k}, v{A_+k}, s[66:67]\nv_cndmask_b32 v{TM+4+k}, v{A_+k}, v{A_+4+k}, s[66:67]")
            a("s_nop 1")
            for k in range(4): a(f"v_mov_b32_dpp v{TM+8+k}, v{TM+k} quad_perm:[1,0,3,2] row_mask:0xf bank_mask:0xf")
            for hlf in range(2):
                for e in range(2):
                    k_, r_ = TM + 4 + 2*hlf + e, TM + 8 + 2*hlf + e
                    a(f"v_cndmask_b32 v{A_+4*hlf+e}, v{k_}, v{r_}, s[66:67]\nv_cndmask_b32 v{A_+4*hlf+2+e}, v{r_}, v{k_}, s[66:67]")
            for k in range(8): a(f"v_fmac_f32 v{bs+8*i+k}, v{A_+k}, v{rs+i}")
        def gather(stp, nrg, tag):
            a(f"s_add_u32 s43, s51, {128*stp[0]}")
            poll(a, len(stp), 12, 36, 43, 3, OPT.get("red_slp", 2) if nrg == 4 else 1)
            st(tag)
            for k, p in enumerate(stp):
                a(f"s_add_u32 s71, s47, {p*8192}")
                for i in range(nrg):
                    b = PB + 4*(nrg*k + i)
                    a(f"buffer_load_dwordx4 v[{b}:{b+3}], v2, s[24:27], s71 offen offset:{1024*i} sc1")
        def sums(stp, nrg):
            nl = nrg * len(stp)
            for k, p in enumerate(stp):
                for i in range(nrg):
                    nl -= 1
                    a(f"s_waitcnt vmcnt({nl})"); accum(PB + 4*(nrg*k + i), i)
                first[0] = False
        steps = OPT.get("steps", ((1,), (2, 3), (4,)))
        late = tuple(range(max(steps[-1]) + 1, 8))
        RSL = 73728
        for n, stp in enumerate(steps):
            a(f"v_mov_b32 v4, {ffn.CNT + 4*max(stp)}")
            wait_cnt(f"K4_ow{n}", 2)
            gather(stp, 4, 10 + n); sums(stp, 4)
        for i in range(4): fold(i, BS, RS_)
        a(f"s_lshl_b32 s44, s33, 2\ns_add_u32 s44, s44, {ffn.CNT + 4}\nv_mov_b32 v4, s44")
        wait_cnt("K4_orl", 2, 8)
        a(f"s_lshl_b32 s44, s33, 13\ns_add_u32 s44, s44, {ffn.STG}\nv_add_u32 v8, s44, v2\ns_lshl_b32 s44, s33, 10\ns_add_u32 s44, s44, {RSL}\nv_lshlrev_b32 v9, 2, v0\nv_add_u32 v9, s44, v9")
        for i in range(8): a(f"ds_write_b128 v8, v[{BS+4*i}:{BS+4*i+3}] offset:{1024*i}")
        for i in range(4): a(f"ds_write_b32 v9, v{RS_+i} offset:{256*i}")
        a(f"v_mov_b32 v4, {ffn.CNT + 48}\nv_mov_b32 v3, 1\ns_mov_b64 exec, 1\nds_add_u32 v4, v3\ns_mov_b64 exec, -1\ns_branch K4_work")
        a("K4_last:")
        ws_srd(a, 24, "PART", 14)
        a("s_mul_i32 s49, s41, 9\ns_add_u32 s49, s49, s40\ns_lshl_b32 s47, s49, 16\ns_lshl_b32 s51, s49, 10\ns_lshl_b32 s44, s3, 11\ns_add_u32 s47, s47, s44\nv_lshlrev_b32 v12, 7, v0")
        SPL = OPT.get('split', False) and len(late) > 1
        if SPL: late = late[:-1]
        gather(late, 2, 15)
        srd(a, 60, 4, 0, T*DM*2)
        a(SWZ)
        a(f"s_add_u32 s44, s44, {8*ffn.STG}\nv_add_u32 v7, s44, v7\nv_and_b32 v19, 1, v0\nv_cmp_eq_u32 s[66:67], 1, v19")
        a(f"v_mul_u32_u24 v11, {DM*2}, v5\nv_lshl_add_u32 v11, v6, 4, v11\ns_mul_i32 s64, s41, {64*DM*2}\ns_mul_i32 s44, s3, {16*DM*2}\ns_add_u32 s64, s64, s44\ns_lshl_b32 s44, s40, 7\ns_add_u32 s64, s64, s44")
        a(f"s_lshl_b32 s44, s3, 12\ns_add_u32 s44, s44, {ffn.STG}\nv_add_u32 v8, s44, v2\ns_lshl_b32 s44, s3, 9\ns_add_u32 s44, s44, {RSL}\nv_lshlrev_b32 v9, 2, v0\nv_add_u32 v9, s44, v9")
        a(f"v_mov_b32 v4, {ffn.CNT + 32}")
        wait_cnt("K4_l8", 1)
        a("ds_read_b128 v[96:99], v7\nds_read_b128 v[100:103], v7 offset:1024")
        a(f"v_mov_b32 v4, {ffn.CNT + 48}")
        wait_cnt("K4_lr", 1, 2)
        for i in range(4): a(f"ds_read_b128 v[{BS+4*i}:{BS+4*i+3}], v8 offset:{1024*i}")
        a(f"ds_read_b32 v{RS_}, v9\nds_read_b32 v{RS_+1}, v9 offset:256")
        first[0] = True
        accum(96, 0); accum(100, 1)
        first[0] = False
        sums(late, 2)
        if SPL:
            gather((7,), 2, 14); sums((7,), 2)
        a("s_waitcnt lgkmcnt(0)")
        for i in range(2):
            fold(i, BS, RS_)
            for k in range(4): a(f"v_cvt_pk_bf16_f32 v{96+4*i+k}, v{BS+8*i+2*k}, v{BS+8*i+2*k+1}")
            a(f"buffer_store_dwordx4 v[{96+4*i}:{99+4*i}], v11, s[60:63], s64 offen\ns_add_u32 s64, s64, {8*DM*2}")
    a("K4_fin:")
    st0.finish(14, 3, 8)

HEADER = open("cdna_kernels/" + NAME + ".s.ref").read().split("; Override launch geometry")[0]
DOC = """; Generated by a Python script (hand-designed schedule). One persistent launch, 256 workgroups x 8 waves, one per CU:
"""
def build(stamp_k=-1, force_fallback=False, light=False, **opt):
    LIGHT[0] = light
    OPT.update(opt)
    a = Asm()
    hdr = HEADER + f"; @launch grid=({K1_GRID},1,1) block=(512,1,1) lds={max(K1_LDS, K2_LDS)}\n"
    hdr += DOC
    a('.amdgcn_target "amdgcn-amd-amdhsa--gfx950"\n.text')
    st = Stamps(a, stamp_k == 2, 2, 255, 254)
    k1(a, st)
    descs = [k2(a, st, force_fallback)]
    a('.set CODE_PF_N, (CODE_END - K2_out + 8191) / 8192')
    a('.section .rodata,"a"')
    txt = a.text()
    if OPT.get("stf"):
        txt = "\n".join(ln.replace(" sc1", OPT["stf"]) if "buffer_store" in ln else ln for ln in txt.split("\n"))
    if OPT.get("ldf"):
        txt = "\n".join(ln.replace(" sc1", OPT["ldf"]) if ("buffer_load" in ln and "s[24:27]" in ln) else ln for ln in txt.split("\n"))
    return hdr + txt + "".join(descs)

if __name__ == "__main__":
    out = sys.argv[1] if len(sys.argv) > 1 else "cdna_kernels/" + NAME + ".s"
    kw = eval("dict(" + (sys.argv[2] if len(sys.argv) > 2 else "") + ")")
    open(out, "w").write(build(**kw))
```
